```python
import torch

def _softmax(x, axis=-1):
    return torch.softmax(x, dim=axis)

def _gelu(x):
    return torch.nn.functional.gelu(x, approximate='tanh')

def _silu(x):
    return torch.nn.functional.silu(x)

def _sigmoid(x):
    return torch.sigmoid(x)

def _layernorm(x, axis=-1, eps=1e-05):
    m = x.mean(dim=axis, keepdim=True)
    v = x.var(dim=axis, keepdim=True, unbiased=False)
    return (x - m) / torch.sqrt(v + eps)

def _scatter_add(tgt, idx, src, axis=0):
    return tgt.clone().index_add_(axis, idx, src)

def _segment_sum(src, seg, n):
    out = torch.zeros((n,) + src.shape[1:], dtype=src.dtype)
    return out.index_add_(0, seg, src)

def _pad(x, pw):
    flat = tuple((v for pair in reversed(pw) for v in pair))
    return torch.nn.functional.pad(x, flat)
kernel_name = 'adaLN_cond__compressed_kv_cla__dense_activation_relu__decode'

def setup_inputs():

    _w = lambda a: (lambda t: t.to(torch.bfloat16) if t.is_floating_point() else t)(torch.as_tensor(a))

    def _A_setup():
        B, H, Sq, Sk, D, M = (1, 32, 1, 8192, 192, 640)
        Dc = 4 * D
        return {'x': _w((lambda *s: torch.randn(*s, dtype=torch.bfloat16) * 0.1)(B, Sq, M)), 'c_kv': _w((lambda *s: torch.randn(*s, dtype=torch.bfloat16) * 3.2)(B, Sk, Dc)), 'w_q': _w((lambda *s: torch.randn(*s, dtype=torch.bfloat16) * 1.6)(M, H, D) * M ** (-0.5)), 'w_uk': _w((lambda *s: torch.randn(*s, dtype=torch.bfloat16) * 1.6)(Dc, H, D) * Dc ** (-0.5)), 'w_uv': _w((lambda *s: torch.randn(*s, dtype=torch.bfloat16) * 3.2)(Dc, H, D) * Dc ** (-0.5)), 'w_o': _w((lambda *s: torch.randn(*s, dtype=torch.bfloat16) * 3.2)(H, D, M) * (H * D) ** (-0.5))}
    _A_in = _A_setup()

    def _B_setup():
        B, S, D, Dff = (1, 1, 640, 1536)
        return {'x': _w((lambda *s: torch.randn(*s, dtype=torch.bfloat16) * 0.1)(B, S, D)), 'w1': _w((lambda *s: torch.randn(*s, dtype=torch.bfloat16) * 0.1)(D, Dff)), 'w2': _w((lambda *s: torch.randn(*s, dtype=torch.bfloat16) * 0.1)(Dff, D))}
    _B_in = _B_setup()
    return {'A_x': _A_in['x'], 'A_c_kv': _A_in['c_kv'], 'A_w_q': _A_in['w_q'], 'A_w_uk': _A_in['w_uk'], 'A_w_uv': _A_in['w_uv'], 'A_w_o': _A_in['w_o'], 'B_x': _B_in['x'], 'B_w1': _B_in['w1'], 'B_w2': _B_in['w2'], 'c': _w((lambda *s: torch.randn(*s, dtype=torch.bfloat16) * 0.8)(1, 640) * 8.0), 'w_mod': _w((lambda *s: torch.randn(*s, dtype=torch.bfloat16) * 0.8)(640, 6 * 640) * 640 ** (-0.5) * 8.0)}

def reference(A_x, A_c_kv, A_w_q, A_w_uk, A_w_uv, A_w_o, B_x, B_w1, B_w2, c, w_mod):

    def _A_ref(x, c_kv, w_q, w_uk, w_uv, w_o):
        B, Sq, M = (x.shape[0], x.shape[1], x.shape[2])
        Sk = c_kv.shape[1]
        H, D = (w_q.shape[1], w_q.shape[2])
        q = torch.einsum('bqm,mhd->bhqd', x, w_q)
        k = torch.einsum('bkc,chd->bhkd', c_kv, w_uk)
        v = torch.einsum('bkc,chd->bhkd', c_kv, w_uv)
        scores = torch.einsum('bhqd,bhkd->bhqk', q, k) * D ** (-0.5)
        off = Sk - Sq
        qi = torch.arange(Sq)[:, None]
        kj = torch.arange(Sk)[None, :]
        cmask = kj <= qi + off
        scores = torch.where(cmask[None, None], scores, -1000000000.0)
        p = _softmax(scores, axis=-1)
        ctx = torch.einsum('bhqk,bhkd->bhqd', p, v)
        return torch.einsum('bhqd,hdm->bqm', ctx, w_o)

    def _B_ref(x, w1, w2):
        h = torch.einsum('bsd,df->bsf', x, w1)
        zero = torch.zeros_like(h)
        h = torch.maximum(h, zero)
        return torch.einsum('bsf,fd->bsd', h, w2)
    x = A_x
    mod = (_silu(c) @ w_mod).reshape(c.shape[0], 6, 1, -1)
    sa, ca, ga, sb, cb, gb = (mod[:, 0].clone(), mod[:, 1].clone(), mod[:, 2].clone(), mod[:, 3].clone(), mod[:, 4].clone(), mod[:, 5].clone())
    h = _layernorm(x, axis=-1) * (1 + ca) + sa
    x = x + ga * _A_ref(h, A_c_kv, A_w_q, A_w_uk, A_w_uv, A_w_o)
    h = _layernorm(x, axis=-1) * (1 + cb) + sb
    x = x + gb * _B_ref(h, B_w1, B_w2)
    return x
```

```python
import re

TRANS = ('v_exp_f32', 'v_log_f32', 'v_rcp_f32', 'v_rsq_f32', 'v_sqrt_f32', 'v_sin_f32', 'v_cos_f32', 'v_rcp_iflag_f32')

def regs_of(tok):
    tok = tok.strip()
    tok = re.sub(r'^-', '', tok)
    m = re.match(r'^(?:abs\()?\|?([vsa])\[(\d+):(\d+)\]', tok)
    if m:
        return {f'{m.group(1)}{i}' for i in range(int(m.group(2)), int(m.group(3)) + 1)}
    m = re.match(r'^(?:abs\()?\|?([vsa])(\d+)\b', tok)
    if m:
        return {f'{m.group(1)}{m.group(2)}'}
    if tok.startswith('vcc'): return {'vcc'}
    if tok.startswith('exec'): return {'exec'}
    if tok == 'm0': return {'m0'}
    return set()

class Ins:
    def __init__(self, text):
        self.text = text
        t = text.split(';')[0].strip()
        parts = t.split(None, 1)
        self.op = parts[0]
        rest = parts[1] if len(parts) > 1 else ''
        ops = re.split(r',\s*(?![^\[]*\])', rest)
        self.mods = ''
        if ops:
            last = ops[-1].strip()
            sp = re.split(r'\s+', last, 1)
            ops[-1] = sp[0]
            self.mods = sp[1] if len(sp) > 1 else ''
        self.ops = [o.strip() for o in ops if o.strip()]
        op = self.op
        self.kind = ('mfma' if op.startswith('v_mfma') else 'valu' if op.startswith('v_') else
                     'vmem' if op.startswith(('global_', 'buffer_')) else 'ds' if op.startswith('ds_') else
                     'salu')
        self.dpp = '_dpp' in op or 'row_' in self.mods or 'quad_perm' in self.mods
        self.trans = any(op.startswith(x) for x in TRANS)
        self.dot = op.startswith('v_dot')
        self.perml = op.startswith('v_permlane')
        self.rdlane = op.startswith(('v_readlane', 'v_readfirstlane'))
        R = [regs_of(o) for o in self.ops]
        self.w = set(); self.r = set(); self.srcC = set(); self.srcAB = set(); self.stdata = set()
        if self.kind == 'mfma':
            self.w = R[0]; self.srcAB = R[1] | R[2]; self.srcC = R[3]; self.r = self.srcAB | self.srcC
            self.passes = 8 if '32x32' in op else 4
        elif self.kind == 'valu':
            if self.perml:
                self.w = R[0] | R[1]; self.r = R[0] | R[1]
            else:
                self.w = set(R[0]); self.r = set().union(*R[1:]) if len(R) > 1 else set()
                if op.startswith(('v_add_co', 'v_sub_co', 'v_addc_co', 'v_subb_co', 'v_div_scale', 'v_mad_u64')):
                    self.w |= R[1]; self.r = set().union(*R[2:])
                if op.startswith(('v_fmac', 'v_dot2c', 'v_writelane')) or self.dpp:
                    self.r |= R[0]
                if op.startswith('v_div_fmas'): self.r |= {'vcc'}
                if op.startswith('v_cndmask') and len(self.ops) == 3: self.r |= {'vcc'}
        elif self.kind == 'vmem':
            if 'load_lds' in op:
                self.r = set().union(*R) | {'m0'}
            elif 'load' in op:
                self.w = R[0]; self.r = set().union(*R[1:])
            else:
                self.r = set().union(*R)
                if 'x3' in op or 'x4' in op: self.stdata = R[1]
        elif self.kind == 'ds':
            if 'read' in op or 'permute' in op or 'swizzle' in op:
                self.w = R[0]; self.r = set().union(*R[1:])
            else:
                self.r = set().union(*R)
        else:
            if op.startswith(('s_cmp', 's_cbranch', 's_branch', 's_waitcnt', 's_barrier', 's_nop', 's_sleep', 's_endpgm', 's_setprio', 's_bitcmp')):
                self.r = set().union(*R) if R else set()
            else:
                self.w = set(R[0]) if R else set(); self.r = set().union(*R[1:]) if len(R) > 1 else set()
                if 'saveexec' in op: self.w |= {'exec'}
        self.slots = 1
        if op == 's_nop': self.slots = int(self.ops[0], 0) + 1

def need(p, c):
    n = 0
    pv = {x for x in p.w if x[0] in 'va' and x not in ('vcc',)}
    ps = {x for x in p.w if x[0] == 's' or x in ('vcc',)}
    if p.kind == 'valu':
        if c.kind == 'valu':
            if c.dpp and pv & c.r: n = max(n, 2)
            if c.perml and pv & c.r: n = max(n, 2)
            if c.rdlane and pv & c.r: n = max(n, 1)
            if p.trans and not c.trans and pv & c.r: n = max(n, 1)
            if p.dot and pv & (c.r | c.w):
                same_c = c.dot and c.op == p.op and len(c.ops) == 4 and regs_of(c.ops[3]) & pv and not ((regs_of(c.ops[1]) | regs_of(c.ops[2])) & pv)
                if not same_c: n = max(n, 3)
            if ps & c.r: n = max(n, 4 if (c.rdlane or c.op.startswith(('v_writelane', 'v_div_fmas'))) else 2)
        if c.kind == 'mfma' and pv & c.r: n = max(n, 3 if p.dot else 2)
        if c.kind in ('vmem', 'ds') and p.dot and pv & c.r: n = max(n, 3)
        if c.kind == 'vmem' and ps & c.r: n = max(n, 5)
        if c.kind in ('vmem', 'ds') and p.trans and pv & c.r: n = max(n, 1)
    if p.kind == 'mfma':
        big = 12 if p.passes == 8 else 8
        if c.kind == 'mfma':
            if pv & c.srcAB: n = max(n, big)
            if pv & c.srcC and not (c.srcC == pv and c.passes == p.passes): n = max(n, big - 2)
            if pv & c.w and not (c.srcC == pv): n = max(n, big)
        elif pv & (c.r | c.w): n = max(n, big)
        if c.kind == 'valu' and p.srcC & c.w: n = max(n, 7 if p.passes == 8 else 3)
    if p.kind == 'salu' and 'm0' in p.w and 'm0' in c.r: n = max(n, 1)
    if p.kind == 'vmem' and p.stdata & c.w: n = max(n, 2)
    return n

class Asm:
    def __init__(self):
        self.lines = []
        self.hists = [[]]
        self.nlab = 0
        self.pending = {}
        self.after = {}
        self.open = []
    def raw(self, t): self.lines.append(t)
    def label(self, name):
        self.lines.append(f'{name}:')
        self.hists += self.pending.pop(name, [])
        self.after[name] = []
        self.open.append(name)
    def newlabel(self, p='L'):
        self.nlab += 1
        return f'{p}_{self.nlab}'
    def __call__(self, text):
        for ln in text.strip('\n').split('\n'):
            ln = ln.strip()
            if not ln or ln.startswith(';'):
                if ln: self.lines.append('    ' + ln)
                continue
            if ln.endswith(':'):
                self.label(ln[:-1]); continue
            self.emit(ln)
    @staticmethod
    def _pad(hist, ins, dist0=0):
        dist = dist0; pad = 0
        for p in reversed(hist):
            k = need(p, ins)
            if k > dist: pad = max(pad, k - dist)
            dist += p.slots
            if dist >= 20: break
        return pad
    def _push(self, ins):
        for h in self.hists: h.append(ins)
        self.hists = [h[-24:] for h in self.hists]
        uniq = []
        for h in self.hists:
            if not any(len(u) == len(h) and all(x is y for x, y in zip(u[-20:], h[-20:])) for u in uniq): uniq.append(h)
        self.hists = uniq
        for l in list(self.open):
            self.after[l].append(ins)
            if sum(i.slots for i in self.after[l]) >= 20: self.open.remove(l)
    def _nops(self, pad):
        while pad > 0:
            k = min(pad, 16)
            self.lines.append(f'    s_nop {k-1}'); self._push(Ins(f's_nop {k-1}')); pad -= k
    def emit(self, ln):
        ins = Ins(ln)
        self._nops(max([self._pad(h, ins) for h in self.hists] or [0]))
        isbr = ins.op.startswith(('s_cbranch', 's_branch'))
        if isbr and ins.ops[0] in self.after:
            pad = 0; d = 1
            for c in self.after[ins.ops[0]]:
                pad = max([pad] + [self._pad(h, c, d) for h in self.hists])
                d += c.slots
            self._nops(pad)
        self.lines.append('    ' + ln)
        self._push(ins)
        if isbr and ins.ops[0] not in self.after:
            self.pending.setdefault(ins.ops[0], []).extend([list(h) for h in self.hists])
        if ins.op in ('s_branch', 's_endpgm'):
            self.hists = [[]]
    def text(self):
        assert not self.pending or set(self.pending) <= {'Lend'}, self.pending.keys()
        return '\n'.join(self.lines) + '\n'

def vr(i, n=1): return f'v{i}' if n == 1 else f'v[{i}:{i+n-1}]'
def sr(i, n=1): return f's{i}' if n == 1 else f's[{i}:{i+n-1}]'
```

```python
import sys, struct
sys.path.insert(0, 'gen')
from asmlib import *
NAME = 'adaLN_cond__compressed_kv_cla__dense_activation_relu__decode'

EPOCH, READY, H1, H1B, H2, H3, AUX, H4S, H5 = 0x0, 0x1000, 0x2000, 0x18000, 0x58000, 0x68000, 0x78000, 0x88000, 0xE8000
H6, MODR, H7F, H7X, H4, STAMP = 0x100000, 0x108000, 0x10A000, 0x10B000, 0x200000, 0x4000000
X, CKV, WQ, WUK, WUV, WO, W1, W2, CC, WMOD, OUT, WS = [f's[{i}:{i+1}]' for i in (4, 6, 8, 10, 12, 14, 18, 20, 22, 24, 26, 30)]
TAG, SPIN, PLO, PHI = 's32', 's33', 's34', 's35'
SPINMAX = 20000
def f2u(x): return struct.unpack('<I', struct.pack('<f', x))[0]
L2E = f2u(1.4426950408889634)
L2E_LO = f2u(1.4426950408889634 - struct.unpack('<f', struct.pack('<f', 1.4426950408889634))[0])
LN2 = f2u(0.6931471805599453)
SCALE = f2u(192 ** -0.5)
NEGINF = 0xff800000

class G(Asm):
    def __init__(self, P):
        super().__init__(); self.P = P; self.nst = 0; self.stnames = []
    def stamp(self, name):
        if not self.P.get('stamps'): return
        i = self.stnames.index(name) if name in self.stnames else None
        if i is None:
            self.stnames.append(name); i = len(self.stnames) - 1
        assert i < 20
        self(f's_memrealtime s[{60+2*i}:{61+2*i}]')
    def rnd(self, d, s):
        self(f'v_cvt_pk_bf16_f32 v{d}, v{s}, v{s}\nv_and_b32 v{d}, 0xffff0000, v{d}')
    def wave_is(self, cond, n, lab):
        self(f's_cmp_{cond}_u32 s3, {n}\ns_cbranch_scc0 {lab}')
    def row_red(self, op, regs):
        for k in (8, 4, 2, 1):
            for r in regs: self(f'{op}_dpp v{r}, v{r}, v{r} row_ror:{k} row_mask:0xf bank_mask:0xf')
    def xrow_red(self, op, r, t):
        self(f'v_mov_b32 v{t}, v{r}\nv_permlane16_swap_b32 v{r}, v{t}\n{op} v{r}, v{r}, v{t}')
        self(f'v_mov_b32 v{t}, v{r}\nv_permlane32_swap_b32 v{r}, v{t}\n{op} v{r}, v{r}, v{t}')
    def wave_red(self, op, r, t):
        self.row_red(op, [r]); self.xrow_red(op, r, t)
    def xrow_tr4(self, r):
        self(f'''v_permlane16_swap_b32 v{r}, v{r+1}
v_permlane16_swap_b32 v{r+2}, v{r+3}
v_add_f32 v{r}, v{r}, v{r+1}
v_add_f32 v{r+2}, v{r+2}, v{r+3}
v_permlane32_swap_b32 v{r}, v{r+2}
v_add_f32 v{r}, v{r}, v{r+2}''')
    def recip(self, d, y, t):
        self(f'v_rcp_f32 v{d}, v{y}\nv_fma_f32 v{t}, -v{y}, v{d}, 1.0\nv_fma_f32 v{d}, v{t}, v{d}, v{d}')
    def div(self, d, x, y, rinv, t):
        self(f'v_mul_f32 v{d}, v{x}, v{rinv}\nv_fma_f32 v{t}, -v{y}, v{d}, v{x}\nv_fma_f32 v{d}, v{t}, v{rinv}, v{d}')
    def silu(self, d, x, t):
        self(f'''v_mul_f32 v{t}, s56, v{x}
v_fma_f32 v{t+1}, v{x}, s56, -v{t}
v_fma_f32 v{t+1}, v{x}, s57, v{t+1}
v_exp_f32 v{t}, -v{t}
v_mul_f32 v{t+1}, s58, v{t+1}
v_fma_f32 v{t}, -v{t}, v{t+1}, v{t}
v_min_f32 v{t}, 0x7f000000, v{t}
v_add_f32 v{t}, 1.0, v{t}''')
        self.recip(t + 1, t, t + 2)
        self.div(t + 3, x, t, t + 1, t + 2)
        self.rnd(d, t + 3)
    def perm_block(self, dst, src, nreg=4, rows=8):
        for e in range(2 * nreg):
            for k in range(rows // 2):
                self(f'v_perm_b32 v{dst + e * (rows // 2) + k}, v{src + (2*k+1) * nreg + (e >> 1)}, v{src + 2*k*nreg + (e >> 1)}, {PHI if e & 1 else PLO}')
    def poll(self, loads, check, sleep=2, pre=None):
        top = self.newlabel('Lp'); done = self.newlabel('Ld')
        if pre: self(f's_sleep {pre}')
        self.label(top)
        loads()
        self('s_waitcnt vmcnt(0)')
        check()
        self(f'''s_cbranch_vccz {done}
s_add_u32 {SPIN}, {SPIN}, 1
s_cmp_gt_u32 {SPIN}, {SPINMAX}
s_cbranch_scc1 {done}
s_sleep {sleep}
s_branch {top}''')
        self.label(done)
    def chk_sent(self, regs, t):
        regs = list(regs)
        if len(regs) == 1:
            self(f'v_cmp_eq_u32 vcc, -1, v{regs[0]}'); return
        if len(regs) == 2: self(f'v_max_u32 v{t}, v{regs[0]}, v{regs[1]}'); rest = []
        else: self(f'v_max3_u32 v{t}, v{regs[0]}, v{regs[1]}, v{regs[2]}'); rest = regs[3:]
        while rest:
            if len(rest) >= 2: self(f'v_max3_u32 v{t}, v{t}, v{rest[0]}, v{rest[1]}'); rest = rest[2:]
            else: self(f'v_max_u32 v{t}, v{t}, v{rest[0]}'); rest = []
        self(f'v_cmp_eq_u32 vcc, -1, v{t}')
    def san(self, regs):
        for r in regs: self(f'v_min_u32 v{r}, -2, v{r}')
    def lanes_lt(self, n):
        assert n <= 64
        lo = (1 << min(n, 32)) - 1; hi = (1 << max(n - 32, 0)) - 1
        self(f's_mov_b32 exec_lo, {lo:#x}\ns_mov_b32 exec_hi, {hi:#x}')
    def exec_mask(self, m):
        self(f's_mov_b32 exec_lo, {m & 0xffffffff:#x}\ns_mov_b32 exec_hi, {m >> 32:#x}')
    def full(self): self('s_mov_b64 exec, -1')
    def bar(self): self('s_waitcnt lgkmcnt(0)\ns_barrier')
    def get_tag(self):
        self(f'''v_readfirstlane_b32 {TAG}, v15
s_mul_i32 {TAG}, {TAG}, 0x9E3779B1
s_add_u32 {TAG}, {TAG}, 0x7F4A7C15''')
    def ready_publish(self):
        self(f'''s_waitcnt vmcnt(0)''')
        self.get_tag()
        self(f'''s_lshl_b32 s40, s2, 4
s_add_u32 s40, s40, {READY}
v_mov_b32 v4, s40
v_mov_b32 v5, {TAG}''')
        self.lanes_lt(1)
        self(f'global_store_dword v4, v5, {WS} sc1')
        self.full()
    def ready_check(self):
        self(f'v_lshlrev_b32 v4, 4, v1\nv_add_u32 v4, {READY}, v4')
        def ld():
            for i in range(4): self(f'global_load_dword v{8+i}, v4, {WS} offset:{1024*i} sc1')
        def ck():
            self(f'''v_xor_b32 v8, {TAG}, v8
v_xor_b32 v9, {TAG}, v9
v_xor_b32 v10, {TAG}, v10
v_xor_b32 v11, {TAG}, v11
v_or3_b32 v8, v8, v9, v10
v_or_b32 v8, v8, v11
v_cmp_ne_u32 vcc, 0, v8''')
        self.poll(ld, ck, sleep=4)
    def gemv2(self, D, A, F, first=True):
        for e in range(8):
            c = '0' if first else vr(D + 4*e, 4)
            self(f'v_mfma_f32_16x16x32_bf16 {vr(D+4*e,4)}, {vr(A,4)}, {vr(F+4*e,4)}, {c}')
    def pack2(self, o, D):
        for i in range(4):
            self(f'v_add_f32_dpp v{o+i}, v{D+4*i+1}, v{D+4*i} row_ror:8 row_mask:0xf bank_mask:0x3')
        for i in range(4):
            self(f'v_add_f32_dpp v{o+i}, v{D+4*(i+4)}, v{D+4*(i+4)+1} row_ror:8 row_mask:0xf bank_mask:0xc')
    def load_rows(self, dst, nreg, va, base, pitch, rows=8, pol='nt', t=None):
        op = {1: 'dword', 2: 'dwordx2', 4: 'dwordx4'}[nreg]
        per = 4095 // pitch + 1 if pitch <= 4095 else 1
        for j in range(rows):
            k = j % per
            self(f'global_load_{op} {vr(dst + j*nreg, nreg)}, v{va}, {base} offset:{k*pitch} {pol}')
            if k == per - 1 and j + 1 < rows: self(f'v_add_u32 v{va}, {per*pitch}, v{va}')

def consts(a):
    a(f'''s_mov_b32 {PLO}, 0x05040100
s_mov_b32 {PHI}, 0x07060302
s_mov_b32 {SPIN}, 0
s_mov_b32 s56, {L2E:#x}
s_mov_b32 s57, {L2E_LO:#x}
s_mov_b32 s58, {LN2:#x}
s_mov_b32 s59, {SCALE:#x}''')

def code_warm(a):
    n = a.P['warm_loads']
    a(f'''s_lshr_b32 s40, s2, 3
s_lshl_b32 s40, s40, 10
v_lshlrev_b32 v4, 4, v1
v_add_u32 v4, s40, v4
v_min_u32 v4, CODE_LAST, v4
global_load_dword v14, v4, s[36:37]''')
    if n > 1:
        a(f'''v_add_u32 v4, 32768, v4
v_min_u32 v4, CODE_LAST, v4
global_load_dword v14, v4, s[36:37]''')

CT, SPB, PB, MISC = 0, 98304, 98304 + 34816, 98304 + 34816 + 4608
def role_B(a):
    P = a.P
    a(f'''s_mul_i32 s39, s2, 205
s_lshr_b32 s39, s39, 11          ; b/10
s_mul_i32 s40, s39, 10
s_sub_u32 s38, s2, s40           ; b%10
v_mov_b32 v12, 0
s_waitcnt lgkmcnt(0)''')
    a.stamp('start')
    a.wave_is('lt', 5, 'LB_nos1a')
    a('s_cmp_lt_u32 s2, 80\ns_cbranch_scc0 LB_nos1a')
    a(f'''s_mul_i32 s40, s39, 80
s_lshl_b32 s41, s3, 4
s_add_u32 s40, s40, s41
v_lshl_add_u32 v5, v3, 2, s40      ; row0
v_mul_u32_u24 v4, 7680, v5
v_lshrrev_b32 v6, 3, v2
v_mul_u32_u24 v6, 1152, v6
v_lshl_add_u32 v6, v2, 4, v6
s_lshl_b32 s41, s38, 7
v_add3_u32 v4, v4, v6, s41
v_lshlrev_b32 v5, 1, v5''')
    a(f'global_load_dwordx2 v[32:33], v5, {CC}\nglobal_load_dword v15, v12, {WS} sc1')
    a.load_rows(16, 4, 4, WMOD, 7680, rows=4)
    consts(a)
    a(f'''s_waitcnt vmcnt(4)
v_lshlrev_b32 v36, 16, v32
v_and_b32 v37, 0xffff0000, v32
v_lshlrev_b32 v38, 16, v33
v_and_b32 v39, 0xffff0000, v33''')
    for i in range(4): a.silu(36 + i, 36 + i, 8)
    a(f'''v_perm_b32 v34, v37, v36, {PHI}
v_perm_b32 v35, v39, v38, {PHI}
s_waitcnt vmcnt(0)''')
    a.get_tag()
    a.perm_block(40, 16, nreg=4, rows=4)
    for e in range(8):
        a(f'v_mfma_f32_16x16x16_bf16 {vr(64+4*e,4)}, v[34:35], {vr(40+2*e,2)}, 0')
    a(f'''v_cmp_eq_u32 vcc, 1, v3
v_lshlrev_b32 v4, 5, v2
v_lshl_add_u32 v4, v3, 4, v4
s_lshl_b32 s40, s3, 9
s_add_u32 s40, s40, {MISC}
v_add_u32 v4, s40, v4''')
    for i in range(4): a(f'v_cndmask_b32 v{8+i}, v{64+4*i}, v{64+4*(i+4)}, vcc')
    a.lanes_lt(32)
    a('ds_write_b128 v4, v[8:11]')
    a.full()
    a('s_branch LB_b1')
    a.label('LB_nos1a')
    a(f'global_load_dword v15, v12, {WS} sc1')
    consts(a)
    a.wave_is('eq', 5, 'LB_not5')
    a(f'''v_mov_b32 v8, -1
v_mov_b32 v9, -1
v_mov_b32 v10, -1
v_mov_b32 v11, -1
s_lshl_b32 s40, s2, 4
v_lshlrev_b32 v4, 11, v1
v_add_u32 v4, s40, v4
v_add_u32 v4, {H3}, v4
global_store_dwordx4 v4, v[8:11], {WS} sc1
s_mul_i32 s40, s39, 2560
s_lshl_b32 s41, s38, 8
s_add_u32 s40, s40, s41
s_add_u32 s40, s40, {H6}
s_cmp_lt_u32 s2, 120
s_cselect_b32 s40, s40, {H6 + 30720}
v_lshl_add_u32 v4, v1, 2, s40
global_store_dword v4, v8, {WS} sc1
s_lshl_b32 s40, s2, 7
s_add_u32 s41, s40, {MODR}
s_add_u32 s42, s40, {H7F - 40*128}
s_cmp_lt_u32 s2, 40
s_cselect_b32 s40, s41, s42
s_cmp_lt_u32 s2, 64
s_cselect_b32 s40, s40, {H6 + 30720 + 256}
v_and_b32 v5, 31, v1
v_lshl_add_u32 v4, v5, 2, s40
global_store_dword v4, v8, {WS} sc1
s_cmp_eq_u32 s2, 40
s_cbranch_scc0 LB_nox2c
v_lshlrev_b32 v4, 4, v1
v_add_u32 v4, {H7X}, v4
global_store_dwordx4 v4, v[8:11], {WS} sc1
v_and_b32 v4, 15, v1
v_lshlrev_b32 v4, 4, v4
v_add_u32 v4, {H7X + 1024}, v4
global_store_dwordx4 v4, v[8:11], {WS} sc1
LB_nox2c:''')
    a.ready_publish()
    a('s_branch LB_b1')
    a.label('LB_not5')
    a.wave_is('eq', 6, 'LB_not6')
    code_warm(a)
    a.label('LB_not6')
    a('s_waitcnt vmcnt(0)')
    a.get_tag()
    a.label('LB_b1')
    a.bar()
    a.wave_is('eq', 0, 'LB_dma')
    a('s_cmp_lt_u32 s2, 80\ns_cbranch_scc0 LB_dma')
    a(f'v_lshlrev_b32 v4, 2, v1\nv_add_u32 v4, {MISC}, v4')
    for w in range(5): a(f'ds_read2st64_b32 {vr(16+2*w,2)}, v4 offset0:{2*w} offset1:{2*w+1}')
    a(f'''s_lshl_b32 s40, s38, 13
s_lshl_b32 s41, s39, 7
s_add_u32 s40, s40, s41
s_add_u32 s40, s40, {H1}
v_lshrrev_b32 v5, 3, v1
v_lshlrev_b32 v5, 10, v5
v_and_b32 v6, 7, v1
v_lshl_add_u32 v5, v6, 4, v5
v_add_u32 v5, s40, v5
v_mov_b32 v9, {TAG}
v_mov_b32 v11, {TAG}
s_waitcnt lgkmcnt(0)
v_add_f32 v16, v16, v18
v_add_f32 v17, v17, v19
v_add_f32 v20, v20, v22
v_add_f32 v21, v21, v23
v_add_f32 v16, v16, v20
v_add_f32 v17, v17, v21
v_add_f32 v8, v16, v24
v_add_f32 v10, v17, v25
global_store_dwordx4 v5, v[8:11], {WS} sc1''')
    a.stamp('h1pub')
    a.label('LB_dma')
    a(f'''s_lshl_b32 s40, s2, 6
s_lshl_b32 s41, s3, 3
s_add_u32 s40, s40, s41
s_mul_i32 s40, s40, 1536           ; (64b+8w)*1536
s_and_b32 s41, s3, 1
s_lshl_b32 s41, s41, 3             ; 8*(w&1)
s_mul_i32 s42, s3, 12288
v_cmp_le_u32 vcc, 32, v1
v_add_u32 v5, 64, v1
v_subrev_u32 v6, 32, v1
v_cndmask_b32 v5, v5, v6, vcc
v_cndmask_b32 v7, 0, 1, vcc
v_xor_b32 v5, v5, v7               ; q''_1
v_mul_u32_u24 v7, 1536, v7         ; hi_1*1536
v_add_u32 v6, 32, v1
v_xor_b32 v6, 1, v6                ; q''_2''')
    for i in range(12):
        k, j = divmod(i, 3)
        src = ('v1', 'v5', 'v6')[j]
        a(f's_add_u32 s43, s41, {2*k}\nv_xor_b32 v8, s43, {src}')
        a(f's_add_u32 s44, s40, {2*k*1536 + (1536 if j == 2 else 0)}')
        if j == 1: a('v_lshl_add_u32 v8, v8, 4, v7\nv_add_u32 v8, s44, v8')
        else: a('v_lshl_add_u32 v8, v8, 4, s44')
        a(f's_add_u32 m0, s42, {i*1024}\nglobal_load_lds_dwordx4 v8, {CKV} nt')
        if P.get('dma_win') and i >= P['dma_win'] - 1 and i < 11: a(f's_waitcnt vmcnt({P["dma_win"] - 1})')
    a('s_waitcnt vmcnt(0)')
    a.wave_is('eq', 3, 'LB_nordy')
    a.ready_check()
    a.label('LB_nordy')
    a.bar()
    a.stamp('ckv')
    a(f'''v_lshrrev_b32 v4, 2, v2            ; rr
v_lshl_add_u32 v4, v3, 3, v4       ; 8g+rr
v_and_b32 v5, 3, v1                ; cc
s_mul_i32 s40, s3, 12
v_add_u32 v5, s40, v5              ; 12w+cc''')
    for t in range(3):
        for sub in range(2):
            a(f'''v_add_u32 v6, {4*sub}, v4
v_and_b32 v7, 15, v6
v_add_u32 v8, {4*t}, v5
v_xor_b32 v7, v7, v8
v_mul_u32_u24 v6, 1536, v6
v_lshl_add_u32 v6, v7, 4, v6''')
            for hf in range(2):
                for ks in range(2):
                    r = 160 + ((t*2+hf)*2+ks)*4 + 2*sub
                    a(f'ds_read_b64_tr_b16 {vr(r,2)}, v6 offset:{ks*49152 + hf*8}')
    a.wave_is('ge', 4, 'LB_noqk')
    a('s_sub_u32 s45, s3, 4\ns_mul_i32 s40, s45, 24\nv_add_u32 v5, s40, v3\nv_mul_u32_u24 v4, 1536, v2')
    for s in range(6):
        a(f'v_add_u32 v6, {4*s}, v5\nv_xor_b32 v6, v6, v2\nv_lshl_add_u32 v6, v6, 4, v4\nv_add_u32 v7, 49152, v6')
        for kt in range(4):
            a(f'ds_read_b128 {vr(64+(kt*6+s)*4,4)}, v{6 + (kt >> 1)} offset:{(kt & 1)*24576}')
    a(f'''s_mul_i32 s40, s45, 12288
s_add_u32 s40, s40, {H2}
v_lshlrev_b32 v4, 6, v2
v_lshl_add_u32 v4, v3, 4, v4
v_add_u32 v4, s40, v4
v_add_u32 v5, 4096, v4
v_add_u32 v6, 8192, v4
s_mul_i32 s40, s45, {32*272}
s_add_u32 s40, s40, {SPB}
v_mul_u32_u24 v7, 272, v2
v_lshl_add_u32 v7, v3, 4, v7
v_add_u32 v7, s40, v7
s_waitcnt lgkmcnt(0)''')
    def ld():
        for i in range(12): a(f'global_load_dwordx4 {vr(16+4*i,4)}, v{4 + i//4}, {WS} offset:{(i%4)*1024} sc1')
    a.poll(ld, lambda: a.chk_sent(range(16, 64), 8), sleep=P['sl_h2'])
    a.stamp('h2')
    for kt in range(4):
        for ht in range(2):
            for s in range(6):
                d = 208 + (kt*2+ht)*4
                a(f'v_mfma_f32_16x16x32_bf16 {vr(d,4)}, {vr(64+(kt*6+s)*4,4)}, {vr(16+(s*2+ht)*4,4)}, {"0" if s == 0 else vr(d,4)}')
        if kt >= 1:
            for ht in range(2): a(f'ds_write_b128 v7, {vr(208+((kt-1)*2+ht)*4,4)} offset:{ht*16*272 + (kt-1)*64}')
    for ht in range(2): a(f'ds_write_b128 v7, {vr(208+(3*2+ht)*4,4)} offset:{ht*16*272 + 3*64}')
    a.label('LB_noqk')
    a(f'''s_lshl_b32 s40, s3, 2
v_add_u32 v9, s40, v3              ; head = 4w+g
v_mul_u32_u24 v4, 272, v9
v_lshl_add_u32 v4, v2, 4, v4
v_add_u32 v4, {SPB}, v4
v_mul_u32_u24 v5, 144, v9
v_lshl_add_u32 v5, v2, 3, v5
v_add_u32 v5, {PB}, v5
s_lshl_b32 s40, s2, 4
s_add_u32 s40, s40, {H3}
v_lshl_add_u32 v6, v9, 11, s40
v_lshlrev_b32 v10, 2, v2           ; 4*kq''')
    a.bar()
    a.stamp('qk')
    for i in range(4): a(f'ds_read_b128 {vr(16+4*i,4)}, v4 offset:{8704*i}')
    a('s_waitcnt lgkmcnt(0)')
    for i in range(4):
        a(f'v_add_f32 v{16+i}, v{16+i}, v{20+i}\nv_add_f32 v{24+i}, v{24+i}, v{28+i}')
    for i in range(4):
        a(f'v_add_f32 v{32+i}, v{16+i}, v{24+i}')
    for i in range(4):
        a(f'v_add_u32 v{40+i}, {i}, v10\nv_and_or_b32 v{36+i}, v{32+i}, s46, v{40+i}' if False else
          f'v_add_u32 v{40+i}, {i}, v10\nv_and_b32 v{36+i}, 0xffffffc0, v{32+i}\nv_or_b32 v{36+i}, v{36+i}, v{40+i}')
    a('v_max3_f32 v44, v36, v37, v38\nv_max_f32 v44, v44, v39')
    a.row_red('v_max_f32', [44])
    a.rnd(46, 44)
    a('v_mul_f32 v46, s59, v46')
    a.rnd(46, 46)
    a('v_and_b32 v47, 63, v44')
    a.exec_mask(0x0001000100010001)
    a(f'global_store_dwordx2 v6, v[46:47], {WS} sc1')
    a.full()
    a.stamp('h3pub')
    for i in range(4):
        a.rnd(32 + i, 32 + i)
        a(f'v_mul_f32 v{32+i}, s59, v{32+i}')
        a.rnd(32 + i, 32 + i)
    a(f'v_mov_b32 v11, {NEGINF:#x}')
    for i in range(4):
        a(f'v_cmp_eq_u32 vcc, v{40+i}, v47\nv_cndmask_b32 v{32+i}, v{32+i}, v11, vcc')
    a('v_max3_f32 v48, v32, v33, v34\nv_max_f32 v48, v48, v35')
    a.row_red('v_max_f32', [48])
    for i in range(4):
        a(f'v_sub_f32 v{32+i}, v{32+i}, v48\nv_mul_f32 v{32+i}, s56, v{32+i}\nv_exp_f32 v{32+i}, v{32+i}')
    a(f'''v_cvt_pk_bf16_f32 v36, v32, v33
v_cvt_pk_bf16_f32 v37, v34, v35
ds_write_b64 v5, v[36:37]
v_add_f32 v49, v32, v33
v_add_f32 v50, v34, v35
v_add_f32 v49, v49, v50
v_mul_u32_u24 v4, 144, v2
v_lshl_add_u32 v4, v3, 4, v4
v_add_u32 v4, {PB}, v4''')
    a.row_red('v_add_f32', [49])
    a(f'''s_lshr_b32 s40, s3, 1
s_mul_i32 s40, s40, 49152
s_mul_i32 s41, s2, 384
s_add_u32 s40, s40, s41
s_and_b32 s41, s3, 1
s_mul_i32 s41, s41, 192
s_add_u32 s40, s40, s41
s_add_u32 s40, s40, {H4}
s_mov_b32 s41, 196608
v_mul_lo_u32 v7, v2, s41
v_lshl_add_u32 v7, v3, 4, v7
v_add_u32 v7, s40, v7
v_add_u32 v8, {16*196608}, v7''')
    a.bar()
    for ht in range(2):
        for ks in range(2): a(f'ds_read_b128 {vr(16+(ht*2+ks)*4,4)}, v4 offset:{ht*16*144 + ks*64}')
    a('s_waitcnt lgkmcnt(0)')
    def pv(t, ht):
        for hf in range(2):
            d = 64 + ((t*2+ht)*2+hf)*4
            for ks in range(2):
                a(f'v_mfma_f32_16x16x32_bf16 {vr(d,4)}, {vr(160+((t*2+hf)*2+ks)*4,4)}, {vr(16+(ht*2+ks)*4,4)}, {"0" if ks == 0 else vr(d,4)}')
    def pvst(t, ht):
        d = 64 + (t*2+ht)*8; o = 112 + (t*2+ht)*4
        for k in range(4): a(f'v_cvt_pk_bf16_f32 v{o+k}, v{d+2*k}, v{d+2*k+1}')
        a(f'global_store_dwordx4 v{7+ht}, {vr(o,4)}, {WS} offset:{64*t} sc1')
    seq = [(t, ht) for t in range(3) for ht in range(2)]
    for i, (t, ht) in enumerate(seq):
        pv(t, ht)
        if i >= 2: pvst(*seq[i-2])
    pvst(*seq[4]); pvst(*seq[5])
    a.stamp('pvst')
    a.san([48, 49])
    a(f'v_add_u32 v6, {AUX - H3}, v6\ns_waitcnt vmcnt(0)\ns_barrier')
    a.exec_mask(0x0001000100010001)
    a(f'global_store_dwordx2 v6, v[48:49], {WS} sc1')
    a.full()
    a.stamp('auxpub')
    a('s_cmp_lt_u32 s2, 120\ns_cbranch_scc0 LB_nowo')
    a(f'''s_lshl_b32 s40, s39, 9
s_lshl_b32 s41, s3, 6
s_add_u32 s40, s40, s41
v_lshrrev_b32 v4, 3, v2
v_lshlrev_b32 v4, 5, v4
v_lshl_add_u32 v4, v3, 3, v4
v_add_u32 v4, s40, v4
v_mul_u32_u24 v4, 1280, v4
v_and_b32 v5, 7, v2
v_lshl_add_u32 v4, v5, 4, v4
s_lshl_b32 s40, s38, 7
v_add_u32 v4, s40, v4''')
    a.load_rows(64, 4, 4, WO, 1280)
    a.label('LB_nowo')
    a('s_cmp_lt_u32 s2, 64\ns_cbranch_scc0 LB_r2')
    a.wave_is('lt', 5, 'LB_rdone')
    a(f'''s_lshl_b32 s40, s3, 7
v_lshrrev_b32 v4, 3, v2
v_lshlrev_b32 v4, 5, v4
v_lshl_add_u32 v4, v3, 3, v4
v_add_u32 v4, s40, v4
v_and_b32 v5, 7, v2
s_cmp_lt_u32 s2, 40
s_cbranch_scc0 LB_r1
v_mul_u32_u24 v4, 7680, v4
v_lshl_add_u32 v4, v5, 4, v4
s_lshl_b32 s40, s2, 7
s_add_u32 s40, s40, 2560
v_add_u32 v4, s40, v4
v_add_u32 v5, {64*7680}, v4''')
    a.load_rows(128, 4, 4, WMOD, 7680)
    a.load_rows(160, 4, 5, WMOD, 7680)
    a(f'''v_and_b32 v4, 1, v2
v_lshlrev_b32 v4, 6, v4
v_lshl_add_u32 v4, v3, 4, v4
s_lshl_b32 s40, s3, 8
v_add_u32 v4, s40, v4
global_load_dwordx4 v[16:19], v4, {CC}
global_load_dwordx4 v[20:23], v4, {CC} offset:128
s_branch LB_rdone
LB_r1:
v_mul_u32_u24 v4, 3072, v4
v_lshl_add_u32 v4, v5, 4, v4
s_lshl_b32 s40, s2, 7
s_sub_u32 s40, s40, {40*128}
v_add_u32 v4, s40, v4
v_add_u32 v5, {64*3072}, v4''')
    a.load_rows(128, 4, 4, W1, 3072)
    a.load_rows(160, 4, 5, W1, 3072)
    a(f'v_lshlrev_b32 v4, 2, v0\nglobal_load_dword v24, v4, {X}\ns_branch LB_rdone')
    a.label('LB_r2')
    a('s_cmp_ge_u32 s2, 88\ns_cbranch_scc0 LB_rdone')
    a.wave_is('lt', 6, 'LB_rdone')
    a(f'''s_and_b32 s46, s2, 7
s_mul_i32 s46, s46, 5
s_sub_u32 s40, s2, 88
s_lshr_b32 s40, s40, 3
s_add_u32 s46, s46, s40
s_lshl_b32 s40, s3, 8
v_lshrrev_b32 v4, 1, v2
v_lshlrev_b32 v4, 5, v4
v_lshl_add_u32 v4, v3, 3, v4
v_add_u32 v4, s40, v4
v_mul_u32_u24 v4, 1280, v4
v_and_b32 v5, 1, v2
v_lshl_add_u32 v4, v5, 4, v4
s_lshl_b32 s40, s46, 5
v_add_u32 v4, s40, v4''')
    a.load_rows(128, 4, 4, W2, 1280)
    a.label('LB_rdone')
    a('s_waitcnt vmcnt(0)')
    a.stamp('late')
    a.perm_block(96, 64)
    a.perm_block(192, 128)
    a.perm_block(224, 160)
    a('s_cmp_lt_u32 s2, 40\ns_cbranch_scc0 LB_nomr')
    a.wave_is('lt', 5, 'LB_mrb')
    for i in range(8):
        a(f'v_lshlrev_b32 v32, 16, v{16+i}\nv_and_b32 v33, 0xffff0000, v{16+i}')
        a.silu(32, 32, 8); a.silu(33, 33, 8)
        a(f'v_perm_b32 v{16+i}, v33, v32, {PHI}')
    a.gemv2(128, 16, 192, True)
    a.gemv2(128, 20, 224, False)
    gemv_out_lds(a, 128)
    a.label('LB_mrb')
    a.bar()
    a.wave_is('eq', 0, 'LB_mre')
    sum_pairs(a, 5)
    a(f'''v_cvt_pk_bf16_f32 v8, v16, v17
s_lshl_b32 s40, s2, 7
s_add_u32 s40, s40, {MODR}
v_lshl_add_u32 v4, v1, 2, s40''')
    a.san([8])
    a.lanes_lt(32)
    a(f'global_store_dword v4, v8, {WS} sc1')
    a.full()
    a.label('LB_mre')
    a.bar()
    a.label('LB_nomr')
    a('s_cmp_lt_u32 s2, 120\ns_cbranch_scc0 LB_nowo2')
    a(f'''s_lshl_b32 s40, s39, 3
s_add_u32 s40, s40, s3
s_lshl_b32 s40, s40, 10
s_add_u32 s40, s40, {H5}
v_lshl_add_u32 v4, v1, 4, s40
s_lshl_b32 s40, s3, 7
s_add_u32 s40, s40, {MISC + 4096}
v_lshl_add_u32 v5, v2, 2, v3
v_lshl_add_u32 v5, v5, 1, s40      ; (4p+g)*2
v_and_b32 v6, 1, v2
v_lshlrev_b32 v6, 6, v6
v_lshl_add_u32 v6, v3, 4, v6
v_add_u32 v6, s40, v6''')
    a.poll(lambda: a(f'global_load_dwordx4 v[16:19], v4, {WS} sc1'), lambda: a.chk_sent(range(16, 20), 8), sleep=P['sl_h5'])
    a.stamp('h5')
    a.xrow_tr4(16)
    a('v_cvt_pk_bf16_f32 v16, v16, v16\nds_write_b16 v5, v16\ns_waitcnt lgkmcnt(0)\nds_read_b128 v[20:23], v6\ns_waitcnt lgkmcnt(0)')
    a.gemv2(128, 20, 96, True)
    gemv_out_lds(a, 128)
    a.bar()
    a.wave_is('eq', 0, 'LB_woe')
    a(f'v_lshlrev_b32 v4, 2, v1\nv_add_u32 v4, {MISC}, v4')
    for i in range(4): a(f'ds_read2st64_b32 {vr(16+2*i,2)}, v4 offset0:{2*i} offset1:{2*i+1}')
    a(f'''s_mul_i32 s40, s39, 2560
s_lshl_b32 s41, s38, 8
s_add_u32 s40, s40, s41
s_add_u32 s40, s40, {H6}
v_lshl_add_u32 v4, v1, 2, s40
s_waitcnt lgkmcnt(0)
v_add_f32 v16, v16, v17
v_add_f32 v18, v18, v19
v_add_f32 v20, v20, v21
v_add_f32 v22, v22, v23
v_add_f32 v16, v16, v18
v_add_f32 v20, v20, v22
v_add_f32 v16, v16, v20
global_store_dword v4, v16, {WS} sc1''')
    a.stamp('h6pub')
    a.label('LB_woe')
    a.label('LB_nowo2')
    a('s_cmp_lt_u32 s2, 40\ns_cbranch_scc1 Lfin\ns_cmp_lt_u32 s2, 64\ns_cbranch_scc0 LB_w2')
    a.wave_is('lt', 5, 'LB_w1b')
    a(f'v_lshlrev_b32 v4, 2, v0\nv_add_u32 v4, {MODR}, v4')
    def ld():
        for i in range(3): a(f'global_load_dword v{25+i}, v4, {WS} offset:{1280*i} sc1')
    a.poll(ld, lambda: a.chk_sent(range(25, 28), 8), sleep=8)
    a(f'''v_lshlrev_b32 v4, 3, v0
v_add_u32 v4, {H6}, v4
v_lshlrev_b32 v28, 16, v24
v_and_b32 v29, 0xffff0000, v24     ; x pair
v_lshlrev_b32 v30, 16, v25
v_and_b32 v31, 0xffff0000, v25     ; ga
v_lshlrev_b32 v32, 16, v26
v_and_b32 v33, 0xffff0000, v26     ; sb
v_lshlrev_b32 v34, 16, v27
v_and_b32 v35, 0xffff0000, v27     ; cb
v_add_f32 v34, 1.0, v34
v_add_f32 v35, 1.0, v35''')
    a.rnd(34, 34); a.rnd(35, 35)
    for i in range(1, 6): a(f'v_add_u32 v{8+i}, {5120*i}, v4')
    a('v_mov_b32 v8, v4')
    def ld():
        for i in range(12): a(f'global_load_dwordx2 {vr(40+2*i,2)}, v{8 + i//2}, {WS} offset:{2560*(i%2)} sc1')
    a.poll(ld, lambda: a.chk_sent(range(40, 64), 14), sleep=P['sl_h6'])
    a.stamp('h6')
    for st in (2, 4, 8):
        for i in range(0, 24, 2 * st):
            if i + st < 24:
                a(f'v_add_f32 v{40+i}, v{40+i}, v{40+i+st}\nv_add_f32 v{41+i}, v{41+i}, v{41+i+st}')
    a('v_add_f32 v40, v40, v56\nv_add_f32 v41, v41, v57')
    for i in range(2):
        a.rnd(40 + i, 40 + i)
        a(f'v_mul_f32 v{40+i}, v{30+i}, v{40+i}')
        a.rnd(40 + i, 40 + i)
        a(f'v_add_f32 v{40+i}, v{28+i}, v{40+i}')
        a.rnd(40 + i, 40 + i)
    a(f'v_add_f32 v42, v40, v41\nv_perm_b32 v36, v41, v40, {PHI}')
    a.wave_red('v_add_f32', 42, 43)
    a(f'''v_mul_f32 v42, {f2u(1/128):#x}, v42
v_sub_f32 v44, v40, v42
v_sub_f32 v45, v41, v42
v_mul_f32 v43, v44, v44
v_fmac_f32 v43, v45, v45''')
    a.wave_red('v_add_f32', 43, 44)
    a(f'''s_lshl_b32 s40, s3, 3
s_add_u32 s40, s40, {MISC + 8192}
v_mov_b32 v4, s40
ds_write_b64 v4, v[42:43]
s_cmp_eq_u32 s2, 40
s_cbranch_scc0 LB_w1b
v_lshlrev_b32 v4, 2, v0
v_add_u32 v4, {H7X}, v4''')
    a.san([36])
    a(f'global_store_dword v4, v36, {WS} sc1')
    a.label('LB_w1b')
    a.bar()
    a.wave_is('lt', 5, 'LB_w1c')
    a(f'''v_mov_b32 v4, {MISC + 8192}
ds_read_b128 v[44:47], v4
ds_read_b128 v[48:51], v4 offset:16
ds_read_b64 v[52:53], v4 offset:32
s_lshl_b32 s40, s3, 8
s_add_u32 s40, s40, {MISC + 4096}
v_lshl_add_u32 v5, v1, 2, s40
v_and_b32 v6, 1, v2
v_lshlrev_b32 v6, 6, v6
v_lshl_add_u32 v6, v3, 4, v6
v_add_u32 v6, s40, v6
s_waitcnt lgkmcnt(0)
v_add_f32 v54, v44, v46
v_add_f32 v55, v48, v50
v_add_f32 v54, v54, v55
v_add_f32 v54, v54, v52
v_mul_f32 v54, {f2u(0.2):#x}, v54      ; mean
v_add_f32 v55, v45, v47
v_add_f32 v56, v49, v51
v_add_f32 v55, v55, v56
v_add_f32 v55, v55, v53''')
    a('v_sub_f32 v44, v44, v54\nv_mul_f32 v56, v44, v44')
    for r in (46, 48, 50, 52): a(f'v_sub_f32 v{r}, v{r}, v54\nv_fmac_f32 v56, v{r}, v{r}')
    a(f'v_fmac_f32 v55, {f2u(128.0):#x}, v56\nv_mul_f32 v55, {f2u(1/640):#x}, v55')
    ln_finish(a, 54, 55, 56)
    for i in range(2):
        a(f'v_sub_f32 v{40+i}, v{40+i}, v54')
        a.rnd(40 + i, 40 + i)
        a.div(42 + i, 40 + i, 55, 56, 57)
        a.rnd(42 + i, 42 + i)
        a(f'v_mul_f32 v{42+i}, v{42+i}, v{34+i}')
        a.rnd(42 + i, 42 + i)
        a(f'v_add_f32 v{42+i}, v{42+i}, v{32+i}')
    a('''v_cvt_pk_bf16_f32 v42, v42, v43
ds_write_b32 v5, v42
s_waitcnt lgkmcnt(0)
ds_read_b128 v[16:19], v6
ds_read_b128 v[20:23], v6 offset:128
s_waitcnt lgkmcnt(0)''')
    a.gemv2(128, 16, 192, True)
    a.gemv2(128, 20, 224, False)
    gemv_out_lds(a, 128)
    a.label('LB_w1c')
    a.bar()
    a.wave_is('eq', 0, 'Lfin')
    sum_pairs(a, 5)
    a(f'''v_max_f32 v16, 0, v16
v_max_f32 v17, 0, v17
v_cvt_pk_bf16_f32 v8, v16, v17
s_lshl_b32 s40, s2, 7
s_add_u32 s40, s40, {H7F - 40*128}
v_lshl_add_u32 v4, v1, 2, s40''')
    a.san([8])
    a.lanes_lt(32)
    a(f'global_store_dword v4, v8, {WS} sc1')
    a.full()
    a.stamp('h7pub')
    a('s_branch Lfin')
    a.label('LB_w2')
    a('s_cmp_ge_u32 s2, 88\ns_cbranch_scc0 Lfin')
    a(f'''s_and_b32 s46, s2, 7
s_mul_i32 s46, s46, 5
s_sub_u32 s40, s2, 88
s_lshr_b32 s40, s40, 3
s_add_u32 s46, s46, s40''')
    a.wave_is('lt', 6, 'LB_w2b')
    a(f'''v_lshrrev_b32 v4, 2, v2
v_and_b32 v5, 1, v2
v_lshl_add_u32 v4, v5, 2, v4       ; kb(r)
v_lshlrev_b32 v4, 6, v4
v_lshl_add_u32 v4, v3, 4, v4
s_lshl_b32 s40, s3, 9
s_add_u32 s40, s40, {H7F}
v_add_u32 v4, s40, v4
s_lshl_b32 s40, s3, 9
s_add_u32 s40, s40, {MISC}
v_lshl_add_u32 v5, v2, 5, s40
v_cmp_le_u32 s[42:43], 8, v2''')
    a.poll(lambda: a(f'global_load_dwordx4 v[16:19], v4, {WS} sc1'), lambda: a.chk_sent(range(16, 20), 8), sleep=P['sl_h7'])
    a.stamp('h7')
    a.gemv2(128, 16, 192, True)
    for e in range(8): a(f'v_cndmask_b32 v{24+e}, v{128+4*e}, v{129+4*e}, s[42:43]')
    m = 0
    for p in range(16): m |= 1 << (p + 16 * ((p >> 1) & 3))
    a.exec_mask(m)
    a('ds_write_b128 v5, v[24:27]\nds_write_b128 v5, v[28:31] offset:16')
    a.full()
    a('s_branch LB_w2c')
    a.label('LB_w2b')
    a.wave_is('eq', 7, 'LB_w2c')
    a(f'''s_lshl_b32 s40, s46, 5
v_lshrrev_b32 v4, 1, v2
v_lshl_add_u32 v4, v4, 2, s40
v_add_u32 v5, {MODR + 3*1280}, v4
v_add_u32 v4, {H7X}, v4''')
    a.poll(lambda: a(f'global_load_dword v32, v5, {WS} sc1'), lambda: a.chk_sent([32], 8), sleep=8)
    a.poll(lambda: a(f'global_load_dword v33, v4, {WS} sc1'), lambda: a.chk_sent([33], 8), sleep=P['sl_h7'])
    a(f'''v_and_b32 v6, 1, v2
v_cmp_eq_u32 vcc, 1, v6
v_lshlrev_b32 v34, 16, v32
v_and_b32 v32, 0xffff0000, v32
v_cndmask_b32 v32, v34, v32, vcc
v_lshlrev_b32 v34, 16, v33
v_and_b32 v33, 0xffff0000, v33
v_cndmask_b32 v33, v34, v33, vcc
v_mul_u32_u24 v4, 768, v3
v_lshl_add_u32 v4, v2, 2, v4
v_add_u32 v4, {MISC}, v4
s_lshl_b32 s40, s46, 5
v_lshl_add_u32 v5, v2, 1, s40''')
    a.label('LB_w2c')
    a.bar()
    a.wave_is('eq', 7, 'Lfin')
    for i in range(6): a(f'ds_read2_b32 {vr(16+2*i,2)}, v4 offset0:{32*i} offset1:{32*i+16}')
    a('s_waitcnt lgkmcnt(0)')
    for st in (1, 2, 4):
        for i in range(0, 12, 2 * st):
            if i + st < 12: a(f'v_add_f32 v{16+i}, v{16+i}, v{16+i+st}')
    a('v_add_f32 v16, v16, v24')
    a.xrow_red('v_add_f32', 16, 17)
    a.rnd(16, 16)
    a('v_mul_f32 v16, v32, v16')
    a.rnd(16, 16)
    a('v_add_f32 v16, v33, v16\nv_cvt_pk_bf16_f32 v16, v16, v16')
    a.lanes_lt(16)
    a(f'global_store_short v5, v16, {OUT}')
    a.full()
    a.stamp('out')
    a('s_branch Lfin')

def gemv_out_lds(a, D):
    a(f'''v_and_b32 v4, 7, v2
v_lshlrev_b32 v4, 5, v4
v_lshrrev_b32 v5, 3, v2
v_lshl_add_u32 v4, v5, 4, v4
s_lshl_b32 s40, s3, 8
s_add_u32 s40, s40, {MISC}
v_add_u32 v4, s40, v4''')
    a.pack2(8, D)
    a.lanes_lt(16)
    a('ds_write_b128 v4, v[8:11]')
    a.full()

def sum_pairs(a, n):
    a(f'v_and_b32 v4, 31, v1\nv_lshlrev_b32 v4, 3, v4\nv_add_u32 v4, {MISC}, v4')
    for i in range(n): a(f'ds_read_b64 {vr(16+2*i,2)}, v4 offset:{256*i}')
    a('''s_waitcnt lgkmcnt(0)
v_add_f32 v16, v16, v18
v_add_f32 v17, v17, v19
v_add_f32 v20, v20, v22
v_add_f32 v21, v21, v23
v_add_f32 v16, v16, v20
v_add_f32 v17, v17, v21
v_add_f32 v16, v16, v24
v_add_f32 v17, v17, v25''')

def ln_finish(a, m, v, ri):
    a.rnd(m, m); a.rnd(v, v)
    a(f'v_add_f32 v{v}, {f2u(1e-5):#x}, v{v}')
    a.rnd(v, v)
    a(f'v_sqrt_f32 v{v}, v{v}')
    a.rnd(v, v)
    a.recip(ri, v, ri + 1)

LH, LQ, LKEY, LEK, LWT, LWP, LFW, LKP, LRP, LCC, LVP = 0, 256, 1024, 1536, 2048, 2560, 3072, 4096, 4096 + 18432, 4096 + 18432 + 6144, 4096 + 18432 + 6144 + 1024
def load_uk(a, base, off=128):
    a(f'''s_mul_i32 s40, s41, 192
s_lshl_b32 s42, s3, 5
s_add_u32 s40, s40, s42
v_lshl_add_u32 v4, v3, 3, s40
v_mul_u32_u24 v4, 12288, v4
s_mul_i32 s40, s47, 384
v_add_u32 v4, s40, v4
v_lshl_add_u32 v5, v2, 3, v4
v_lshl_add_u32 v4, v2, 4, v4''')
    for j in range(8):
        a(f'global_load_dwordx4 {vr(off+4*j,4)}, v4, {base} nt')
        a(f'global_load_dwordx2 {vr(off+32+2*j,2)}, v5, {base} offset:256 nt')
        if j < 7: a('v_add_u32 v4, 12288, v4\nv_add_u32 v5, 12288, v5')
def perm12(a, dst, src=128):
    a.perm_block(dst, src, nreg=4); a.perm_block(dst + 32, src + 32, nreg=2)
def mfma12(a, D, A, F):
    for e in range(12): a(f'v_mfma_f32_16x16x32_bf16 {vr(D+4*e,4)}, {vr(A,4)}, {vr(F+4*e,4)}, 0')
def out12(a, D, o, lbase):
    a(f'''s_mul_i32 s40, s3, 768
s_add_u32 s40, s40, {lbase}
v_lshl_add_u32 v4, v2, 5, s40
v_lshl_add_u32 v5, v2, 4, s40''')
    for e in range(12): a(f'v_add_f32 v{o+e}, v{D+4*e}, v{D+4*e+1}')
    a.lanes_lt(16)
    a(f'ds_write_b128 v4, {vr(o,4)}\nds_write_b128 v4, {vr(o+4,4)} offset:16\nds_write_b128 v5, {vr(o+8,4)} offset:512')
    a.full()
def weights_out(a, val, lbase, k):
    a(f'''v_cvt_pk_bf16_f32 v8, v{val}, v{val}
ds_write_b16 v4, v8 offset:{lbase + 128*k}
v_and_b32 v9, 0xffff0000, v8
v_sub_f32 v9, v{val}, v9
v_cvt_pk_bf16_f32 v9, v9, v9
ds_write_b16 v4, v9 offset:{lbase + 256 + 128*k}''')

def role_A(a):
    P = a.P
    a(f'''s_sub_u32 s44, s2, 128
s_mul_i32 s39, s44, 205
s_lshr_b32 s39, s39, 11          ; cb = a/10
s_mul_i32 s40, s39, 10
s_sub_u32 s38, s44, s40          ; T = a%10
s_lshr_b32 s47, s44, 2           ; head
s_and_b32 s41, s44, 3            ; quarter
v_mov_b32 v12, 0
s_lshl_b32 s45, s39, 3
s_add_u32 s45, s45, s3
s_waitcnt lgkmcnt(0)''')
    a.stamp('start')
    a.wave_is('eq', 7, 'LA_not7')
    a(f'''global_load_dword v15, v12, {WS} sc1
v_mov_b32 v8, -1
v_mov_b32 v9, -1
v_mov_b32 v10, -1
v_mov_b32 v11, -1
s_cmp_lt_u32 s44, 120
s_cbranch_scc0 LA_noc1''')
    for i in range(2):
        a(f'''s_lshl_b32 s40, s39, 3
s_add_u32 s40, s40, {4*i}
v_add_u32 v4, s40, v3              ; chunk
v_mul_u32_u24 v5, 43, v4
v_lshrrev_b32 v5, 7, v5            ; head
v_mul_u32_u24 v6, 3, v5
v_sub_u32 v4, v4, v6
v_lshlrev_b32 v4, 8, v4            ; d0*4
v_mul_u32_u24 v5, 7680, v5
v_add_u32 v4, v4, v5
v_lshl_add_u32 v4, v2, 4, v4
s_mul_i32 s40, s38, 768
s_add_u32 s40, s40, {H1B}
v_add_u32 v4, s40, v4
global_store_dwordx4 v4, v[8:11], {WS} sc1''')
    a(f'''LA_noc1:
s_mul_i32 s40, s41, 12288
s_lshr_b32 s42, s47, 4
s_lshl_b32 s42, s42, 10
s_add_u32 s40, s40, s42
s_and_b32 s42, s47, 15
s_lshl_b32 s42, s42, 6
s_add_u32 s40, s40, s42
s_add_u32 s40, s40, {H2}
v_lshrrev_b32 v4, 2, v1
v_min_u32 v4, 5, v4
v_lshlrev_b32 v4, 11, v4
v_and_b32 v5, 3, v1
v_lshl_add_u32 v4, v5, 4, v4
v_add_u32 v4, s40, v4
global_store_dwordx4 v4, v[8:11], {WS} sc1
; H4S 3KB
s_mul_i32 s40, s44, 3072
s_add_u32 s40, s40, {H4S}
v_lshl_add_u32 v4, v1, 4, s40
global_store_dwordx4 v4, v[8:11], {WS} sc1
global_store_dwordx4 v4, v[8:11], {WS} offset:1024 sc1
global_store_dwordx4 v4, v[8:11], {WS} offset:2048 sc1
; H5 3 x 256B
s_mul_i32 s40, s47, 3072
s_lshl_b32 s42, s41, 8
s_add_u32 s40, s40, s42
s_add_u32 s40, s40, {H5}
v_min_u32 v4, 2, v3
v_lshlrev_b32 v4, 10, v4
v_lshl_add_u32 v4, v2, 4, v4
v_add_u32 v4, s40, v4
global_store_dwordx4 v4, v[8:11], {WS} sc1''')
    a.ready_publish()
    a.label('LA_not7')
    a('s_cmp_lt_u32 s44, 120\ns_cbranch_scc0 LA_nowq')
    a(f'''s_lshl_b32 s40, s38, 6
v_lshrrev_b32 v4, 3, v2
v_lshlrev_b32 v4, 5, v4
v_lshl_add_u32 v4, v3, 3, v4
v_add_u32 v4, s40, v4
v_mul_u32_u24 v4, 12288, v4
v_and_b32 v5, 7, v2
v_lshl_add_u32 v4, v5, 4, v4
s_lshl_b32 s40, s45, 7
v_add_u32 v4, s40, v4''')
    a.load_rows(64, 4, 4, WQ, 12288)
    a.label('LA_nowq')
    a(f'''global_load_dword v15, v12, {WS} sc1
v_lshlrev_b32 v4, 2, v1''')
    for k in range(5): a(f'global_load_dword v{16+k}, v4, {X} offset:{256*k}')
    a(f'''s_lshl_b32 s40, s38, 6
s_lshl_b32 s42, s3, 3
s_add_u32 s40, s40, s42
v_and_b32 v5, 7, v1
v_add_u32 v5, s40, v5
v_lshlrev_b32 v5, 1, v5
global_load_ushort v21, v5, {X}''')
    a.wave_is('eq', 6, 'LA_not6')
    code_warm(a)
    a.label('LA_not6')
    consts(a)
    if P['uk_early']:
        a.wave_is('lt', 6, 'LA_nouk0')
        load_uk(a, WUK)
        a('s_waitcnt vmcnt(16)\ns_branch LA_uk0d')
        a.label('LA_nouk0')
        a('s_waitcnt vmcnt(0)')
        a.label('LA_uk0d')
    else:
        a('s_waitcnt vmcnt(0)')
    a.stamp('wq')
    a.get_tag()
    for k in range(5): a(f'v_lshlrev_b32 v{24+2*k}, 16, v{16+k}\nv_and_b32 v{25+2*k}, 0xffff0000, v{16+k}')
    a('v_add_f32 v22, v24, v25')
    for k in range(2, 10): a(f'v_add_f32 v22, v22, v{24+k}')
    a.wave_red('v_add_f32', 22, 23)
    a(f'v_mul_f32 v22, {f2u(1/640):#x}, v22\nv_mov_b32 v23, 0')
    for k in range(10): a(f'v_sub_f32 v{24+k}, v{24+k}, v22\nv_fmac_f32 v23, v{24+k}, v{24+k}')
    a.wave_red('v_add_f32', 23, 24)
    a(f'v_mul_f32 v23, {f2u(1/640):#x}, v23')
    ln_finish(a, 22, 23, 24)
    a('v_lshlrev_b32 v21, 16, v21\nv_sub_f32 v21, v21, v22')
    a.rnd(21, 21)
    a.div(20, 21, 23, 24, 25)
    a.rnd(20, 20)
    a.perm_block(96, 64)
    a('s_cmp_lt_u32 s44, 120\ns_cbranch_scc0 LA_noh1')
    a(f'''s_lshl_b32 s40, s38, 13
s_lshl_b32 s42, s3, 10
s_add_u32 s40, s40, s42
s_add_u32 s40, s40, {H1}
v_lshl_add_u32 v4, v1, 4, s40
s_lshl_b32 s40, s3, 4
v_and_b32 v5, 7, v1
v_lshl_add_u32 v5, v5, 1, s40''')
    def ck():
        a(f'v_xor_b32 v17, {TAG}, v17\nv_xor_b32 v19, {TAG}, v19\nv_or_b32 v17, v17, v19\nv_cmp_ne_u32 vcc, 0, v17')
    a.poll(lambda: a(f'global_load_dwordx4 v[16:19], v4, {WS} sc1'), ck, sleep=P['sl_h1'])
    a.stamp('h1')
    a('''v_add_f32_dpp v16, v16, v16 row_ror:8 row_mask:0xf bank_mask:0xf
v_add_f32_dpp v18, v18, v18 row_ror:8 row_mask:0xf bank_mask:0xf
v_permlane16_swap_b32 v16, v18
v_add_f32 v16, v16, v18
v_mov_b32 v18, v16
v_permlane32_swap_b32 v16, v18
v_add_f32 v16, v16, v18
v_mov_b32 v18, v16
v_permlane16_swap_b32 v16, v18''')
    a.rnd(16, 16); a.rnd(18, 18)
    a('v_add_f32 v18, 1.0, v18')
    a.rnd(18, 18)
    a('v_mul_f32 v18, v20, v18')
    a.rnd(18, 18)
    a(f'v_add_f32 v16, v18, v16\nv_cvt_pk_bf16_f32 v16, v16, v16\nds_write_b16 v5, v16 offset:{LH}')
    a.label('LA_noh1')
    a.wave_is('eq', 7, 'LA_nordy')
    a.ready_check()
    a.label('LA_nordy')
    a(f'''v_and_b32 v6, 1, v2
v_lshlrev_b32 v6, 6, v6
v_lshl_add_u32 v6, v3, 4, v6
s_mul_i32 s40, s45, 43
s_lshr_b32 s40, s40, 7
s_mul_i32 s42, s40, 3
s_sub_u32 s42, s45, s42
s_lshl_b32 s42, s42, 8
s_mul_i32 s40, s40, 7680
s_add_u32 s40, s40, s42
s_mul_i32 s42, s38, 768
s_add_u32 s40, s40, s42
s_add_u32 s40, s40, {H1B}
v_and_b32 v4, 7, v2
v_lshlrev_b32 v4, 5, v4
v_lshrrev_b32 v5, 3, v2
v_lshl_add_u32 v4, v5, 4, v4
v_add_u32 v4, s40, v4''')
    a.bar()
    a('s_cmp_lt_u32 s44, 120\ns_cbranch_scc0 LA_nos2')
    a(f'ds_read_b128 v[16:19], v6 offset:{LH}\ns_waitcnt lgkmcnt(0)')
    a.gemv2(24, 16, 96, True)
    a.pack2(8, 24)
    a.lanes_lt(16)
    a(f'global_store_dwordx4 v4, v[8:11], {WS} sc1')
    a.full()
    a.stamp('qpub')
    a.label('LA_nos2')
    if not P['uk_early']:
        a.wave_is('lt', 6, 'LA_nouk1')
        load_uk(a, WUK)
        a.label('LA_nouk1')
    a(f'''s_mul_i32 s40, s47, 7680
s_mul_i32 s42, s3, 96
s_add_u32 s40, s40, s42
s_add_u32 s40, s40, {H1B}
v_and_b32 v5, 7, v1
v_min_u32 v5, 5, v5
v_lshrrev_b32 v4, 3, v1
v_mul_u32_u24 v4, 768, v4
v_lshl_add_u32 v4, v5, 4, v4
v_add_u32 v4, s40, v4
v_add_u32 v7, 6144, v4
s_mul_i32 s40, s3, 48
v_lshl_add_u32 v5, v5, 2, v3
v_lshl_add_u32 v5, v5, 1, s40      ; (24w+4dq+rho)*2
v_mov_b32 v20, 0
v_mov_b32 v21, 0
v_mov_b32 v22, 0
v_mov_b32 v23, 0''')
    def ld():
        a(f'global_load_dwordx4 v[16:19], v4, {WS} sc1')
        a.lanes_lt(16)
        a(f'global_load_dwordx4 v[20:23], v7, {WS} sc1')
        a.full()
    a.poll(ld, lambda: a.chk_sent(range(16, 24), 8), sleep=P['sl_h1b'], pre=P['pre_h1b'])
    a.stamp('h1b')
    for i in range(4): a(f'v_add_f32 v{16+i}, v{16+i}, v{20+i}')
    for i in range(4): a(f'v_add_f32_dpp v{16+i}, v{16+i}, v{16+i} row_ror:8 row_mask:0xf bank_mask:0xf')
    a.xrow_tr4(16)
    a(f'''v_cvt_pk_bf16_f32 v16, v16, v16
ds_write_b16 v5, v16 offset:{LQ}
v_lshlrev_b32 v4, 4, v2
v_lshlrev_b32 v5, 3, v2
s_mul_i32 s40, s41, 6
s_add_u32 s40, s40, s3
s_lshl_b32 s40, s40, 11
s_lshr_b32 s42, s47, 4
s_lshl_b32 s42, s42, 10
s_add_u32 s40, s40, s42
s_and_b32 s42, s47, 15
s_lshl_b32 s42, s42, 6
s_add_u32 s40, s40, s42
s_add_u32 s40, s40, {H2}
v_lshl_add_u32 v6, v3, 4, v2
v_add_u32 v6, s40, v6''')
    a.bar()
    a.wave_is('lt', 6, 'LA_nos3')
    a(f'ds_read_b128 v[16:19], v4 offset:{LQ}\nds_read_b64 v[20:21], v5 offset:{LQ+256}\ns_waitcnt lgkmcnt(0) vmcnt(0)')
    for k in range(6):
        for j in range(8):
            src = 128 + 4*j + k if k < 4 else 160 + 2*j + (k - 4)
            a(f'v_dot2_f32_bf16 v{24+j}, v{src}, v{16+k}, {"0" if k == 0 else "v%d" % (24+j)}')
    for i in range(4): a(f'v_add_f32_dpp v{32+i}, v{24+i}, v{24+i} row_ror:8 row_mask:0xf bank_mask:0x3')
    for i in range(4): a(f'v_add_f32_dpp v{32+i}, v{28+i}, v{28+i} row_ror:8 row_mask:0xf bank_mask:0xc')
    for i in range(2): a(f'v_add_f32_dpp v{36+i}, v{32+i}, v{32+i} row_shl:4 row_mask:0xf bank_mask:0x5')
    for i in range(2): a(f'v_add_f32_dpp v{36+i}, v{34+i}, v{34+i} row_shr:4 row_mask:0xf bank_mask:0xa')
    for qp in ('[2,3,0,1]', '[1,0,3,2]'):
        for i in range(2): a(f'v_add_f32_dpp v{36+i}, v{36+i}, v{36+i} quad_perm:{qp} row_mask:0xf bank_mask:0xf')
    a('v_cvt_pk_bf16_f32 v36, v36, v37')
    a.san([36])
    a.exec_mask(0x1111111111111111)
    a(f'global_store_dword v6, v36, {WS} sc1')
    a.full()
    a.stamp('h2pub')
    perm12(a, 64)
    load_uk(a, WUV)
    a('s_waitcnt vmcnt(0)')
    perm12(a, 176)
    a.stamp('wuv')
    a.label('LA_nos3')
    a.wave_is('eq', 7, 'LA_noh3')
    a(f'''s_lshl_b32 s40, s47, 11
s_add_u32 s40, s40, {H3}
v_lshl_add_u32 v4, v1, 4, s40''')
    a.poll(lambda: a(f'global_load_dwordx2 v[16:17], v4, {WS} sc1\nglobal_load_dwordx2 v[18:19], v4, {WS} offset:1024 sc1'),
           lambda: a.chk_sent(range(16, 20), 8), sleep=P['sl_h3'])
    a.stamp('h3')
    a('v_max_f32 v20, v16, v18')
    a.wave_red('v_max_f32', 20, 21)
    a(f'''v_and_b32 v21, 0x7f800000, v20
v_fma_f32 v20, v21, s48, v20
v_and_b32 v17, 63, v17
v_and_b32 v19, 63, v19
v_lshl_add_u32 v17, v1, 6, v17
v_lshl_add_u32 v19, v1, 6, v19
v_add_u32 v19, 4096, v19
v_cmp_ge_f32 s[50:51], v16, v20
v_cmp_ge_f32 s[52:53], v18, v20
v_lshlrev_b32 v4, 2, v1
ds_write2st64_b32 v4, v17, v19 offset0:{LKEY//256} offset1:{LKEY//256+1}'''.replace('v_fma_f32 v20, v21, s48, v20', f's_mov_b32 s48, {f2u(-1/64):#x}\nv_fma_f32 v20, v21, s48, v20'))
    a.lanes_lt(4)
    a(f'ds_write_b32 v4, v17 offset:{LEK}')
    a.full()
    a(f'''s_bcnt1_i32_b64 s49, s[50:51]
v_mbcnt_lo_u32_b32 v22, s50, 0
v_mbcnt_hi_u32_b32 v22, s51, v22
v_mov_b32 v23, s49
v_mbcnt_lo_u32_b32 v23, s52, v23
v_mbcnt_hi_u32_b32 v23, s53, v23
s_bcnt1_i32_b64 s54, s[52:53]
s_add_u32 s49, s49, s54
s_min_u32 s49, s49, 4              ; nE
v_cmp_gt_u32 vcc, 4, v22
s_and_b64 s[50:51], s[50:51], vcc
v_cmp_gt_u32 vcc, 4, v23
s_and_b64 s[52:53], s[52:53], vcc
v_lshlrev_b32 v22, 2, v22
v_lshlrev_b32 v23, 2, v23
s_mov_b64 exec, s[50:51]
ds_write_b32 v22, v17 offset:{LEK}
s_mov_b64 exec, s[52:53]
ds_write_b32 v23, v19 offset:{LEK}
s_mov_b64 exec, -1
v_mov_b32 v21, {NEGINF:#x}
v_cndmask_b32 v16, v16, v21, s[50:51]
v_cndmask_b32 v18, v18, v21, s[52:53]
v_max_f32 v228, v16, v18''')
    a.wave_red('v_max_f32', 228, 21)
    a(f'''v_sub_f32 v16, v16, v228
v_sub_f32 v18, v18, v228
v_mul_f32 v16, s56, v16
v_mul_f32 v18, s56, v18
v_exp_f32 v16, v16
v_exp_f32 v18, v18
v_lshlrev_b32 v4, 1, v1''')
    weights_out(a, 16, LWT, 0); weights_out(a, 18, LWT, 1)
    a('v_add_f32 v229, v16, v18')
    a.label('LA_noh3')
    a.bar()
    a.stamp('b3')
    a.wave_is('lt', 6, 'LA_noe')
    a(f'''v_and_b32 v4, 3, v2
v_lshlrev_b32 v4, 2, v4
ds_read_b32 v5, v4 offset:{LEK}
ds_read_b128 v[8:11], v12 offset:{LEK}
s_mul_i32 s40, s41, 384
s_lshl_b32 s42, s3, 6
s_add_u32 s40, s40, s42
v_lshl_add_u32 v6, v3, 4, s40
v_and_b32 v7, 31, v1
v_lshl_add_u32 v7, v7, 1, s40
s_waitcnt lgkmcnt(0)
v_mad_u32_u24 v5, v5, s55, v6
global_load_dwordx4 v[224:227], v5, {CKV}'''.replace('v_mad_u32_u24 v5, v5, s55, v6', 's_movk_i32 s55, 1536\nv_mad_u32_u24 v5, v5, s55, v6'))
    for j in range(4): a(f'v_mad_u32_u24 v{8+j}, v{8+j}, s55, v7\nglobal_load_ushort v{232+j}, v{8+j}, {CKV}')
    a.label('LA_noe')
    a.wave_is('ge', 4, 'LA_notop')
    a(f'''s_sub_u32 s40, s3, 4
s_lshl_b32 s40, s40, 7
v_lshl_add_u32 v4, v3, 5, s40
ds_read_b128 v[240:243], v4 offset:{LKEY}
ds_read_b128 v[244:247], v4 offset:{LKEY+16}
s_movk_i32 s55, 1536
s_mul_i32 s40, s41, 384
v_lshl_add_u32 v6, v2, 4, s40
v_lshlrev_b32 v7, 3, v2
s_waitcnt lgkmcnt(0)''')
    for j in range(8):
        a(f'''v_mad_u32_u24 v{240+j}, v{240+j}, s55, v6
global_load_dwordx4 {vr(128+4*j,4)}, v{240+j}, {CKV}
v_sub_u32 v{240+j}, v{240+j}, v7
global_load_dwordx2 {vr(160+2*j,2)}, v{240+j}, {CKV} offset:256''')
    a.label('LA_notop')
    a.wave_is('lt', 6, 'LA_nok')
    a.wave_is('lt', 4, 'LA_k45')
    a('s_waitcnt vmcnt(4)\ns_branch LA_kgo')
    a.label('LA_k45')
    a('s_waitcnt vmcnt(20)')
    a.label('LA_kgo')
    mfma12(a, 16, 224, 64)
    a(f'''s_mul_i32 s40, s3, 3072
s_add_u32 s40, s40, {LKP}
v_lshl_add_u32 v4, v2, 4, s40''')
    a.lanes_lt(16)
    for e in range(12): a(f'ds_write_b128 v4, {vr(16+4*e,4)} offset:{256*e}')
    a.full()
    a.label('LA_nok')
    a.wave_is('eq', 6, 'LA_noaux')
    a(f'''s_lshl_b32 s40, s47, 11
s_add_u32 s40, s40, {AUX}
v_lshl_add_u32 v4, v1, 4, s40''')
    a.poll(lambda: a(f'global_load_dwordx2 v[16:17], v4, {WS} sc1\nglobal_load_dwordx2 v[18:19], v4, {WS} offset:1024 sc1'),
           lambda: a.chk_sent(range(16, 20), 8), sleep=P['sl_aux'])
    a.stamp('aux')
    a('v_max_f32 v20, v16, v18')
    a.wave_red('v_max_f32', 20, 21)
    a(f'''v_sub_f32 v16, v16, v20
v_sub_f32 v18, v18, v20
v_mul_f32 v16, s56, v16
v_mul_f32 v18, s56, v18
v_exp_f32 v16, v16
v_exp_f32 v18, v18
v_lshlrev_b32 v4, 1, v1''')
    weights_out(a, 16, LWP, 0); weights_out(a, 18, LWP, 1)
    a('v_mul_f32 v21, v16, v17\nv_fmac_f32 v21, v18, v19')
    a.wave_red('v_add_f32', 21, 22)
    a(f'ds_write_b64 v12, v[20:21] offset:{LFW+32}')
    a.label('LA_noaux')
    a.bar()
    a.stamp('b45')
    a.wave_is('lt', 4, 'LA_nog')
    a(f'''s_lshl_b32 s40, s44, 7
s_lshl_b32 s42, s3, 5
s_add_u32 s40, s40, s42
v_lshl_add_u32 v4, v3, 3, s40
v_mul_u32_u24 v4, 384, v4
v_add_u32 v4, {H4}, v4
v_lshl_add_u32 v5, v2, 3, v4
v_lshl_add_u32 v4, v2, 4, v4''')
    a.wave_is('lt', 3, 'LA_nopub')
    a(f'v_lshlrev_b32 v6, 4, v0\nv_add_u32 v7, {LKP}, v6')
    for w in range(6): a(f'ds_read_b128 {vr(16+4*w,4)}, v7 offset:{3072*w}')
    a(f's_mul_i32 s40, s44, 3072\ns_add_u32 s40, s40, {H4S}\nv_add_u32 v6, s40, v6\ns_waitcnt lgkmcnt(0)')
    for i in range(4):
        a(f'v_add_f32 v{16+i}, v{16+i}, v{20+i}\nv_add_f32 v{24+i}, v{24+i}, v{28+i}\nv_add_f32 v{32+i}, v{32+i}, v{36+i}')
    for i in range(4): a(f'v_add_f32 v{16+i}, v{16+i}, v{24+i}\nv_add_f32 v{16+i}, v{16+i}, v{32+i}')
    a(f'global_store_dwordx4 v6, v[16:19], {WS} sc1')
    a.stamp('kpub')
    a.label('LA_nopub')
    for j in range(8):
        a(f'global_load_dwordx4 {vr(128+4*j,4)}, v4, {WS} offset:{384*j} sc1')
        a(f'global_load_dwordx2 {vr(160+2*j,2)}, v5, {WS} offset:{384*j+256} sc1')
    a.label('LA_nog')
    a(f'''s_and_b32 s40, s3, 3
s_lshl_b32 s40, s40, 6
s_add_u32 s42, s40, {LWP}
s_add_u32 s40, s40, {LWT}
s_cmp_lt_u32 s3, 4
s_cselect_b32 s40, s42, s40
v_and_b32 v4, 1, v2
v_lshlrev_b32 v4, 8, v4
v_lshl_add_u32 v4, v3, 4, v4
v_add_u32 v4, s40, v4
ds_read_b128 v[224:227], v4
s_waitcnt vmcnt(0) lgkmcnt(0)''')
    a.stamp('gath')
    perm12(a, 16)
    mfma12(a, 128, 224, 16)
    out12(a, 128, 16, LRP)
    a.wave_is('eq', 7, 'LA_nofw')
    a(f'''s_mul_i32 s40, s47, 12288
s_add_u32 s40, s40, {H4S}
v_lshl_add_u32 v4, v1, 4, s40
v_add_u32 v5, 3072, v4
v_add_u32 v6, 6144, v4
v_add_u32 v7, 9216, v4
v_lshl_add_u32 v8, v2, 3, v3
v_lshlrev_b32 v8, 1, v8
v_lshl_add_u32 v9, v2, 2, v3
v_lshlrev_b32 v9, 1, v9
ds_read_u16 v64, v8 offset:{LQ}
ds_read_u16 v65, v8 offset:{LQ+8}
ds_read_u16 v66, v9 offset:{LQ+256}
ds_read_b64 v[230:231], v12 offset:{LFW+32}''')
    a.wave_red('v_add_f32', 229, 21)
    def ld():
        for qq in range(4):
            for k in range(3): a(f'global_load_dwordx4 {vr(16+(qq*3+k)*4,4)}, v{4+qq}, {WS} offset:{1024*k} sc1')
    a.poll(ld, lambda: a.chk_sent(range(16, 64), 9), sleep=P['sl_h4s'])
    a.stamp('h4s')
    a('s_waitcnt lgkmcnt(0)')
    for k in range(3): a(f'v_lshlrev_b32 v{64+k}, 16, v{64+k}')
    for i in range(12):
        a(f'v_add_f32 v{16+i}, v{16+i}, v{28+i}\nv_add_f32 v{40+i}, v{40+i}, v{52+i}')
    for i in range(12): a(f'v_add_f32 v{16+i}, v{16+i}, v{40+i}')
    for i in range(12): a.rnd(16 + i, 16 + i)
    for j in range(4):
        a(f'v_mul_f32 v{68+j}, v{16+j}, v64\nv_fmac_f32 v{68+j}, v{20+j}, v65\nv_fmac_f32 v{68+j}, v{24+j}, v66')
    a.row_red('v_add_f32', [68, 69, 70, 71])
    a.xrow_tr4(68)
    a.rnd(68, 68)
    a('v_mul_f32 v68, s59, v68')
    a.rnd(68, 68)
    a(f'''v_mov_b32 v21, {NEGINF:#x}
v_cmp_gt_u32 vcc, s49, v3
v_cndmask_b32 v68, v21, v68, vcc
v_max3_f32 v69, v68, v228, v230''')
    a.xrow_red('v_max_f32', 69, 70)
    a(f'''v_sub_f32 v68, v68, v69
v_sub_f32 v228, v228, v69
v_sub_f32 v230, v230, v69
v_mul_f32 v68, s56, v68
v_mul_f32 v228, s56, v228
v_mul_f32 v230, s56, v230
v_exp_f32 v68, v68
v_exp_f32 v228, v228
v_exp_f32 v230, v230
v_mov_b32 v70, v68''')
    a.xrow_red('v_add_f32', 70, 71)
    a('v_fmac_f32 v70, v228, v229\nv_fmac_f32 v70, v230, v231')
    a.recip(71, 70, 72)
    a.div(73, 68, 70, 71, 72)
    a.rnd(73, 73)
    a(f'''v_mul_f32 v74, v230, v71
v_mul_f32 v75, v228, v71
v_lshlrev_b32 v4, 2, v3
ds_write_b32 v4, v73 offset:{LFW}
ds_write_b64 v12, v[74:75] offset:{LFW+16}''')
    a.label('LA_nofw')
    a(f'''s_lshl_b32 s40, s3, 7
v_and_b32 v4, 31, v1
v_lshl_add_u32 v4, v4, 2, s40
s_lshl_b32 s40, s3, 7
v_and_b32 v5, 31, v1
v_lshl_add_u32 v5, v5, 1, s40
v_and_b32 v6, 1, v2
v_lshlrev_b32 v6, 6, v6
v_lshl_add_u32 v6, v3, 4, v6
v_add_u32 v6, s40, v6''')
    a.bar()
    a.stamp('b6')
    a.wave_is('lt', 6, 'LA_nov')
    for w in range(8): a(f'ds_read_b32 v{16+w}, v4 offset:{LRP + 768*w}')
    a(f'ds_read_b128 v[24:27], v12 offset:{LFW}\nds_read_b64 v[28:29], v12 offset:{LFW+16}')
    for j in range(4): a(f'v_lshlrev_b32 v{232+j}, 16, v{232+j}')
    a(f'''s_waitcnt lgkmcnt(0)
v_add_f32 v16, v16, v17
v_add_f32 v18, v18, v19
v_add_f32 v20, v20, v21
v_add_f32 v22, v22, v23
v_add_f32 v16, v16, v18
v_add_f32 v20, v20, v22
v_mul_f32 v16, v16, v28
v_fmac_f32 v16, v20, v29
v_fmac_f32 v16, v24, v232
v_fmac_f32 v16, v25, v233
v_fmac_f32 v16, v26, v234
v_fmac_f32 v16, v27, v235
v_cvt_pk_bf16_f32 v17, v16, v16
ds_write_b16 v5, v17 offset:{LCC}
v_and_b32 v18, 0xffff0000, v17
v_sub_f32 v18, v16, v18
v_cvt_pk_bf16_f32 v18, v18, v18
ds_write_b16 v5, v18 offset:{LCC+64}
s_waitcnt lgkmcnt(0)
ds_read_b128 v[224:227], v6 offset:{LCC}
s_waitcnt lgkmcnt(0)''')
    mfma12(a, 128, 224, 176)
    out12(a, 128, 16, LVP)
    a.label('LA_nov')
    a(f'''v_lshlrev_b32 v4, 2, v0
s_mul_i32 s40, s47, 3
s_add_u32 s40, s40, s3
s_lshl_b32 s40, s40, 10
s_lshl_b32 s42, s41, 8
s_add_u32 s40, s40, s42
s_add_u32 s40, s40, {H5}
v_lshl_add_u32 v5, v1, 2, s40''')
    a.bar()
    a.wave_is('lt', 3, 'Lfin')
    for w in range(6): a(f'ds_read_b32 v{16+w}, v4 offset:{LVP + 768*w}')
    a(f'''s_waitcnt lgkmcnt(0)
v_add_f32 v16, v16, v17
v_add_f32 v18, v18, v19
v_add_f32 v20, v20, v21
v_add_f32 v16, v16, v18
v_add_f32 v16, v16, v20
global_store_dword v5, v16, {WS} sc1''')
    a.stamp('h5pub')
    a(f'''s_add_u32 s40, s44, s3
s_cmp_eq_u32 s40, 0
s_cbranch_scc0 Lfin
v_mov_b32 v5, {TAG}
global_store_dword v12, v5, {WS} sc1''')

DEFAULTS = dict(code_last=0x1000, stamps=False, uk_early=True, dma_win=0, warm_loads=1, sl_h1=4, sl_h1b=2, pre_h1b=8, sl_h2=4, sl_h3=4, sl_aux=2, sl_h4s=2, sl_h5=4, sl_h6=4, sl_h7=4)

def generate(**kw):
    P = dict(DEFAULTS); P.update(kw)
    a = G(P)
    a(f'''s_cmp_ge_u32 s2, 256
s_cbranch_scc1 Lend
s_load_dwordx16 s[4:19], s[0:1], 0
s_load_dwordx8 s[20:27], s[0:1], 64
s_load_dwordx4 s[28:31], s[0:1], 96
s_getpc_b64 s[36:37]
Lpc:
v_lshrrev_b32 v4, 6, v0
v_and_b32 v1, 63, v0
v_readfirstlane_b32 s3, v4
v_and_b32 v2, 15, v0
v_lshrrev_b32 v3, 4, v1''')
    if P['stamps']:
        for i in range(20): a(f's_mov_b64 s[{60+2*i}:{61+2*i}], 0')
    a('s_cmp_ge_u32 s2, 128\ns_cbranch_scc1 LA')
    role_B(a)
    namesB = a.stnames; a.stnames = []
    a.label('LA')
    role_A(a)
    namesA = a.stnames
    a.label('Lfin')
    if P['stamps']:
        a(f'''s_waitcnt lgkmcnt(0)
s_lshl_b32 s40, s2, 3
s_add_u32 s40, s40, s3
s_lshl_b32 s40, s40, 7
s_add_u32 s40, s40, {STAMP}
v_mov_b32 v4, s40''')
        for i in range(20): a(f'v_mov_b32 v5, s{60+2*i}\nglobal_store_dword v4, v5, {WS} offset:{4*i}')
    a.label('Lend')
    a('s_endpgm')
    a.raw('Lcode_end:')
    hdr = open(f'cdna_kernels/{NAME}.s.ref').read().split('; Override launch')[0]
    lds = MISC + 8192 + 256
    txt = hdr + f'''; @launch grid=(256,1,1) block=(512,1,1) lds={lds}
.amdgcn_target "amdgcn-amd-amdhsa--gfx950"
.text
.globl {NAME}_kernel
.p2align 8
.type {NAME}_kernel,@function
.set CODE_LAST, {P['code_last']:#x}
{NAME}_kernel:
''' + a.text() + f'''.section .rodata,"a"
.p2align 6
.amdhsa_kernel {NAME}_kernel
  .amdhsa_next_free_vgpr 256
  .amdhsa_next_free_sgpr 102
  .amdhsa_accum_offset 256
  .amdhsa_group_segment_fixed_size 0
  .amdhsa_kernarg_size 112
  .amdhsa_user_sgpr_count 2
  .amdhsa_user_sgpr_kernarg_segment_ptr 1
  .amdhsa_system_sgpr_workgroup_id_x 1
  .amdhsa_float_denorm_mode_32 3
.end_amdhsa_kernel
'''
    return txt, namesB, namesA

if __name__ == '__main__':
    import json
    out = sys.argv[1]
    kw = {}
    for x in sys.argv[2:]:
        k, v = x.split('='); kw[k] = int(v)
    import subprocess, re
    txt, nb, na = generate(**kw)
    open('_g.s', 'w').write(txt)
    subprocess.check_call(['clang', '-x', 'assembler', '-target', 'amdgcn-amd-amdhsa', '-mcpu=gfx950', '-c', '_g.s', '-o', '_g.o'])
    h = subprocess.check_output(['llvm-objdump', '-h', '_g.o'], text=True)
    size = int(re.search(r'\.text\s+([0-9a-f]+)', h).group(1), 16)
    kw['code_last'] = size - 0x28 - 4
    assert size <= 32768 * kw.get('warm_loads', 1)
    txt, nb, na = generate(**kw)
    print('code bytes', size)
    open(out, 'w').write(txt)
    json.dump({'B': nb, 'A': na}, open(out + '.names.json', 'w'))
```

```python
import sys, struct
sys.path.insert(0, 'gen')
from asmlib import *
NAME = 'adaLN_cond__compressed_kv_cla__dense_activation_relu__decode'

EPOCH, READY, H1, H1B, H2, H3, AUX, H4S, H5 = 0x0, 0x1000, 0x2000, 0x18000, 0x58000, 0x68000, 0x78000, 0x88000, 0xE8000
H6, MODR, H7F, H7X, H4, STAMP = 0x100000, 0x108000, 0x10A000, 0x10B000, 0x200000, 0x4000000
X, CKV, WQ, WUK, WUV, WO, W1, W2, CC, WMOD, OUT, WS = [f's[{i}:{i+1}]' for i in (4, 6, 8, 10, 12, 14, 18, 20, 22, 24, 26, 30)]
TAG, SPIN, PLO, PHI = 's32', 's33', 's34', 's35'
SPINMAX = 20000
def f2u(x): return struct.unpack('<I', struct.pack('<f', x))[0]
L2E = f2u(1.4426950408889634)
L2E_LO = f2u(1.4426950408889634 - struct.unpack('<f', struct.pack('<f', 1.4426950408889634))[0])
LN2 = f2u(0.6931471805599453)
SCALE = f2u(192 ** -0.5)
NEGINF = 0xff800000

class G(Asm):
    def __init__(self, P):
        super().__init__(); self.P = P; self.nst = 0; self.stnames = []
    def stamp(self, name):
        if not self.P.get('stamps'): return
        i = self.stnames.index(name) if name in self.stnames else None
        if i is None:
            self.stnames.append(name); i = len(self.stnames) - 1
        assert i < 20
        self(f's_memrealtime s[{60+2*i}:{61+2*i}]')
    def rnd(self, d, s):
        self(f'v_cvt_pk_bf16_f32 v{d}, v{s}, v{s}\nv_and_b32 v{d}, 0xffff0000, v{d}')
    def wave_is(self, cond, n, lab):
        self(f's_cmp_{cond}_u32 s3, {n}\ns_cbranch_scc0 {lab}')
    def row_red(self, op, regs):
        for k in (8, 4, 2, 1):
            for r in regs: self(f'{op}_dpp v{r}, v{r}, v{r} row_ror:{k} row_mask:0xf bank_mask:0xf')
    def xrow_red(self, op, r, t):
        self(f'v_mov_b32 v{t}, v{r}\nv_permlane16_swap_b32 v{r}, v{t}\n{op} v{r}, v{r}, v{t}')
        self(f'v_mov_b32 v{t}, v{r}\nv_permlane32_swap_b32 v{r}, v{t}\n{op} v{r}, v{r}, v{t}')
    def wave_red(self, op, r, t):
        self.row_red(op, [r]); self.xrow_red(op, r, t)
    def xrow_tr4(self, r):
        self(f'''v_permlane16_swap_b32 v{r}, v{r+1}
v_permlane16_swap_b32 v{r+2}, v{r+3}
v_add_f32 v{r}, v{r}, v{r+1}
v_add_f32 v{r+2}, v{r+2}, v{r+3}
v_permlane32_swap_b32 v{r}, v{r+2}
v_add_f32 v{r}, v{r}, v{r+2}''')
    def recip(self, d, y, t):
        self(f'v_rcp_f32 v{d}, v{y}\nv_fma_f32 v{t}, -v{y}, v{d}, 1.0\nv_fma_f32 v{d}, v{t}, v{d}, v{d}')
    def div(self, d, x, y, rinv, t):
        self(f'v_mul_f32 v{d}, v{x}, v{rinv}\nv_fma_f32 v{t}, -v{y}, v{d}, v{x}\nv_fma_f32 v{d}, v{t}, v{rinv}, v{d}')
    def silu(self, d, x, t):
        self(f'''v_mul_f32 v{t}, s56, v{x}
v_fma_f32 v{t+1}, v{x}, s56, -v{t}
v_fma_f32 v{t+1}, v{x}, s57, v{t+1}
v_exp_f32 v{t}, -v{t}
v_mul_f32 v{t+1}, s58, v{t+1}
v_fma_f32 v{t}, -v{t}, v{t+1}, v{t}
v_min_f32 v{t}, 0x7f000000, v{t}
v_add_f32 v{t}, 1.0, v{t}''')
        self.recip(t + 1, t, t + 2)
        self.div(t + 3, x, t, t + 1, t + 2)
        self.rnd(d, t + 3)
    def perm_block(self, dst, src, nreg=4, rows=8):
        for e in range(2 * nreg):
            for k in range(rows // 2):
                self(f'v_perm_b32 v{dst + e * (rows // 2) + k}, v{src + (2*k+1) * nreg + (e >> 1)}, v{src + 2*k*nreg + (e >> 1)}, {PHI if e & 1 else PLO}')
    def poll(self, loads, check, sleep=2, pre=None):
        top = self.newlabel('Lp'); done = self.newlabel('Ld')
        if pre: self(f's_sleep {pre}')
        self.label(top)
        loads()
        self('s_waitcnt vmcnt(0)')
        check()
        self(f'''s_cbranch_vccz {done}
s_add_u32 {SPIN}, {SPIN}, 1
s_cmp_gt_u32 {SPIN}, {SPINMAX}
s_cbranch_scc1 {done}
s_sleep {sleep}
s_branch {top}''')
        self.label(done)
    def chk_sent(self, regs, t):
        regs = list(regs)
        if len(regs) == 1:
            self(f'v_cmp_eq_u32 vcc, -1, v{regs[0]}'); return
        if len(regs) == 2: self(f'v_max_u32 v{t}, v{regs[0]}, v{regs[1]}'); rest = []
        else: self(f'v_max3_u32 v{t}, v{regs[0]}, v{regs[1]}, v{regs[2]}'); rest = regs[3:]
        while rest:
            if len(rest) >= 2: self(f'v_max3_u32 v{t}, v{t}, v{rest[0]}, v{rest[1]}'); rest = rest[2:]
            else: self(f'v_max_u32 v{t}, v{t}, v{rest[0]}'); rest = []
        self(f'v_cmp_eq_u32 vcc, -1, v{t}')
    def san(self, regs):
        for r in regs: self(f'v_min_u32 v{r}, -2, v{r}')
    def lanes_lt(self, n):
        assert n <= 64
        lo = (1 << min(n, 32)) - 1; hi = (1 << max(n - 32, 0)) - 1
        self(f's_mov_b32 exec_lo, {lo:#x}\ns_mov_b32 exec_hi, {hi:#x}')
    def exec_mask(self, m):
        self(f's_mov_b32 exec_lo, {m & 0xffffffff:#x}\ns_mov_b32 exec_hi, {m >> 32:#x}')
    def full(self): self('s_mov_b64 exec, -1')
    def bar(self): self('s_waitcnt lgkmcnt(0)\ns_barrier')
    def get_tag(self):
        self(f'''v_readfirstlane_b32 {TAG}, v15
s_mul_i32 {TAG}, {TAG}, 0x9E3779B1
s_add_u32 {TAG}, {TAG}, 0x7F4A7C15''')
    def ready_publish(self):
        self(f'''s_waitcnt vmcnt(0)''')
        self.get_tag()
        self(f'''s_lshl_b32 s40, s2, 4
s_add_u32 s40, s40, {READY}
v_mov_b32 v4, s40
v_mov_b32 v5, {TAG}''')
        self.lanes_lt(1)
        self(f'global_store_dword v4, v5, {WS} sc1')
        self.full()
    def ready_check(self):
        self(f'v_lshlrev_b32 v4, 4, v1\nv_add_u32 v4, {READY}, v4')
        def ld():
            for i in range(4): self(f'global_load_dword v{8+i}, v4, {WS} offset:{1024*i} sc1')
        def ck():
            self(f'''v_xor_b32 v8, {TAG}, v8
v_xor_b32 v9, {TAG}, v9
v_xor_b32 v10, {TAG}, v10
v_xor_b32 v11, {TAG}, v11
v_or3_b32 v8, v8, v9, v10
v_or_b32 v8, v8, v11
v_cmp_ne_u32 vcc, 0, v8''')
        self.poll(ld, ck, sleep=4)
    def gemv2(self, D, A, F, first=True):
        for e in range(8):
            c = '0' if first else vr(D + 4*e, 4)
            self(f'v_mfma_f32_16x16x32_bf16 {vr(D+4*e,4)}, {vr(A,4)}, {vr(F+4*e,4)}, {c}')
    def pack2(self, o, D):
        for i in range(4):
            self(f'v_add_f32_dpp v{o+i}, v{D+4*i+1}, v{D+4*i} row_ror:8 row_mask:0xf bank_mask:0x3')
        for i in range(4):
            self(f'v_add_f32_dpp v{o+i}, v{D+4*(i+4)}, v{D+4*(i+4)+1} row_ror:8 row_mask:0xf bank_mask:0xc')
    def load_rows(self, dst, nreg, va, base, pitch, rows=8, pol='nt', t=None):
        op = {1: 'dword', 2: 'dwordx2', 4: 'dwordx4'}[nreg]
        per = 4095 // pitch + 1 if pitch <= 4095 else 1
        for j in range(rows):
            k = j % per
            self(f'global_load_{op} {vr(dst + j*nreg, nreg)}, v{va}, {base} offset:{k*pitch} {pol}')
            if k == per - 1 and j + 1 < rows: self(f'v_add_u32 v{va}, {per*pitch}, v{va}')

def consts(a):
    a(f'''s_mov_b32 {PLO}, 0x05040100
s_mov_b32 {PHI}, 0x07060302
s_mov_b32 {SPIN}, 0
s_mov_b32 s56, {L2E:#x}
s_mov_b32 s57, {L2E_LO:#x}
s_mov_b32 s58, {LN2:#x}
s_mov_b32 s59, {SCALE:#x}''')

def code_warm(a):
    n = a.P['warm_loads']
    a(f'''s_lshr_b32 s40, s2, 3
s_lshl_b32 s40, s40, 10
v_lshlrev_b32 v4, 4, v1
v_add_u32 v4, s40, v4
v_min_u32 v4, CODE_LAST, v4
global_load_dword v14, v4, s[36:37]''')
    if n > 1:
        a(f'''v_add_u32 v4, 32768, v4
v_min_u32 v4, CODE_LAST, v4
global_load_dword v14, v4, s[36:37]''')

CT, SPB, PB, MISC = 0, 98304, 98304 + 34816, 98304 + 34816 + 4608
def role_B(a):
    P = a.P
    a(f'''s_mul_i32 s39, s2, 205
s_lshr_b32 s39, s39, 11          ; b/10
s_mul_i32 s40, s39, 10
s_sub_u32 s38, s2, s40           ; b%10
v_mov_b32 v12, 0
s_waitcnt lgkmcnt(0)''')
    a.stamp('start')
    a.wave_is('lt', 5, 'LB_nos1a')
    a('s_cmp_lt_u32 s2, 80\ns_cbranch_scc0 LB_nos1a')
    a(f'''s_mul_i32 s40, s39, 80
s_lshl_b32 s41, s3, 4
s_add_u32 s40, s40, s41
v_lshl_add_u32 v5, v3, 2, s40      ; row0
v_mul_u32_u24 v4, 7680, v5
v_lshrrev_b32 v6, 3, v2
v_mul_u32_u24 v6, 1152, v6
v_lshl_add_u32 v6, v2, 4, v6
s_lshl_b32 s41, s38, 7
v_add3_u32 v4, v4, v6, s41
v_lshlrev_b32 v5, 1, v5''')
    a(f'global_load_dwordx2 v[32:33], v5, {CC}\nglobal_load_dword v15, v12, {WS} sc1')
    a.load_rows(16, 4, 4, WMOD, 7680, rows=4)
    consts(a)
    a(f'''s_waitcnt vmcnt(4)
v_lshlrev_b32 v36, 16, v32
v_and_b32 v37, 0xffff0000, v32
v_lshlrev_b32 v38, 16, v33
v_and_b32 v39, 0xffff0000, v33''')
    for i in range(4): a.silu(36 + i, 36 + i, 8)
    a(f'''v_perm_b32 v34, v37, v36, {PHI}
v_perm_b32 v35, v39, v38, {PHI}
s_waitcnt vmcnt(0)''')
    a.get_tag()
    a.perm_block(40, 16, nreg=4, rows=4)
    for e in range(8):
        a(f'v_mfma_f32_16x16x16_bf16 {vr(64+4*e,4)}, v[34:35], {vr(40+2*e,2)}, 0')
    a(f'''v_cmp_eq_u32 vcc, 1, v3
v_lshlrev_b32 v4, 5, v2
v_lshl_add_u32 v4, v3, 4, v4
s_lshl_b32 s40, s3, 9
s_add_u32 s40, s40, {MISC}
v_add_u32 v4, s40, v4''')
    for i in range(4): a(f'v_cndmask_b32 v{8+i}, v{64+4*i}, v{64+4*(i+4)}, vcc')
    a.lanes_lt(32)
    a('ds_write_b128 v4, v[8:11]')
    a.full()
    a('s_branch LB_b1')
    a.label('LB_nos1a')
    a(f'global_load_dword v15, v12, {WS} sc1')
    consts(a)
    a.wave_is('eq', 5, 'LB_not5')
    a(f'''v_mov_b32 v8, -1
v_mov_b32 v9, -1
v_mov_b32 v10, -1
v_mov_b32 v11, -1
s_lshl_b32 s40, s2, 4
v_lshlrev_b32 v4, 11, v1
v_add_u32 v4, s40, v4
v_add_u32 v4, {H3}, v4
global_store_dwordx4 v4, v[8:11], {WS} sc1
s_mul_i32 s40, s39, 2560
s_lshl_b32 s41, s38, 8
s_add_u32 s40, s40, s41
s_add_u32 s40, s40, {H6}
s_cmp_lt_u32 s2, 120
s_cselect_b32 s40, s40, {H6 + 30720}
v_lshl_add_u32 v4, v1, 2, s40
global_store_dword v4, v8, {WS} sc1
s_lshl_b32 s40, s2, 7
s_add_u32 s41, s40, {MODR}
s_add_u32 s42, s40, {H7F - 40*128}
s_cmp_lt_u32 s2, 40
s_cselect_b32 s40, s41, s42
s_cmp_lt_u32 s2, 64
s_cselect_b32 s40, s40, {H6 + 30720 + 256}
v_and_b32 v5, 31, v1
v_lshl_add_u32 v4, v5, 2, s40
global_store_dword v4, v8, {WS} sc1
s_cmp_eq_u32 s2, 40
s_cbranch_scc0 LB_nox2c
v_lshlrev_b32 v4, 4, v1
v_add_u32 v4, {H7X}, v4
global_store_dwordx4 v4, v[8:11], {WS} sc1
v_and_b32 v4, 15, v1
v_lshlrev_b32 v4, 4, v4
v_add_u32 v4, {H7X + 1024}, v4
global_store_dwordx4 v4, v[8:11], {WS} sc1
LB_nox2c:''')
    a.ready_publish()
    a('s_branch LB_b1')
    a.label('LB_not5')
    a.wave_is('eq', 6, 'LB_not6')
    code_warm(a)
    a.label('LB_not6')
    a('s_waitcnt vmcnt(0)')
    a.get_tag()
    a.label('LB_b1')
    a.bar()
    a.wave_is('eq', 0, 'LB_dma')
    a('s_cmp_lt_u32 s2, 80\ns_cbranch_scc0 LB_dma')
    a(f'v_lshlrev_b32 v4, 2, v1\nv_add_u32 v4, {MISC}, v4')
    for w in range(5): a(f'ds_read2st64_b32 {vr(16+2*w,2)}, v4 offset0:{2*w} offset1:{2*w+1}')
    a(f'''s_lshl_b32 s40, s38, 13
s_lshl_b32 s41, s39, 7
s_add_u32 s40, s40, s41
s_add_u32 s40, s40, {H1}
v_lshrrev_b32 v5, 3, v1
v_lshlrev_b32 v5, 10, v5
v_and_b32 v6, 7, v1
v_lshl_add_u32 v5, v6, 4, v5
v_add_u32 v5, s40, v5
v_mov_b32 v9, {TAG}
v_mov_b32 v11, {TAG}
s_waitcnt lgkmcnt(0)
v_add_f32 v16, v16, v18
v_add_f32 v17, v17, v19
v_add_f32 v20, v20, v22
v_add_f32 v21, v21, v23
v_add_f32 v16, v16, v20
v_add_f32 v17, v17, v21
v_add_f32 v8, v16, v24
v_add_f32 v10, v17, v25
global_store_dwordx4 v5, v[8:11], {WS} sc1''')
    a.stamp('h1pub')
    a.label('LB_dma')
    a(f'''s_lshl_b32 s40, s2, 6
s_lshl_b32 s41, s3, 3
s_add_u32 s40, s40, s41
s_mul_i32 s40, s40, 1536           ; (64b+8w)*1536
s_and_b32 s41, s3, 1
s_lshl_b32 s41, s41, 3             ; 8*(w&1)
s_mul_i32 s42, s3, 12288
v_cmp_le_u32 vcc, 32, v1
v_add_u32 v5, 64, v1
v_subrev_u32 v6, 32, v1
v_cndmask_b32 v5, v5, v6, vcc
v_cndmask_b32 v7, 0, 1, vcc
v_xor_b32 v5, v5, v7               ; q''_1
v_mul_u32_u24 v7, 1536, v7         ; hi_1*1536
v_add_u32 v6, 32, v1
v_xor_b32 v6, 1, v6                ; q''_2''')
    for i in range(12):
        k, j = divmod(i, 3)
        src = ('v1', 'v5', 'v6')[j]
        a(f's_add_u32 s43, s41, {2*k}\nv_xor_b32 v8, s43, {src}')
        a(f's_add_u32 s44, s40, {2*k*1536 + (1536 if j == 2 else 0)}')
        if j == 1: a('v_lshl_add_u32 v8, v8, 4, v7\nv_add_u32 v8, s44, v8')
        else: a('v_lshl_add_u32 v8, v8, 4, s44')
        a(f's_add_u32 m0, s42, {i*1024}\nglobal_load_lds_dwordx4 v8, {CKV} nt')
        if P.get('dma_win') and i >= P['dma_win'] - 1 and i < 11: a(f's_waitcnt vmcnt({P["dma_win"] - 1})')
    a('s_waitcnt vmcnt(0)')
    a.wave_is('eq', 3, 'LB_nordy')
    a.ready_check()
    a.label('LB_nordy')
    a.bar()
    a.stamp('ckv')
    a(f'''v_lshrrev_b32 v4, 2, v2            ; rr
v_lshl_add_u32 v4, v3, 3, v4       ; 8g+rr
v_and_b32 v5, 3, v1                ; cc
s_mul_i32 s40, s3, 12
v_add_u32 v5, s40, v5              ; 12w+cc''')
    for t in range(3):
        for sub in range(2):
            a(f'''v_add_u32 v6, {4*sub}, v4
v_and_b32 v7, 15, v6
v_add_u32 v8, {4*t}, v5
v_xor_b32 v7, v7, v8
v_mul_u32_u24 v6, 1536, v6
v_lshl_add_u32 v6, v7, 4, v6''')
            for hf in range(2):
                for ks in range(2):
                    r = 160 + ((t*2+hf)*2+ks)*4 + 2*sub
                    a(f'ds_read_b64_tr_b16 {vr(r,2)}, v6 offset:{ks*49152 + hf*8}')
    a.wave_is('ge', 4, 'LB_noqk')
    a('s_sub_u32 s45, s3, 4\ns_mul_i32 s40, s45, 24\nv_add_u32 v5, s40, v3\nv_mul_u32_u24 v4, 1536, v2')
    for s in range(6):
        a(f'v_add_u32 v6, {4*s}, v5\nv_xor_b32 v6, v6, v2\nv_lshl_add_u32 v6, v6, 4, v4\nv_add_u32 v7, 49152, v6')
        for kt in range(4):
            a(f'ds_read_b128 {vr(64+(kt*6+s)*4,4)}, v{6 + (kt >> 1)} offset:{(kt & 1)*24576}')
    a(f'''s_mul_i32 s40, s45, 12288
s_add_u32 s40, s40, {H2}
v_lshlrev_b32 v4, 6, v2
v_lshl_add_u32 v4, v3, 4, v4
v_add_u32 v4, s40, v4
v_add_u32 v5, 4096, v4
v_add_u32 v6, 8192, v4
s_mul_i32 s40, s45, {32*272}
s_add_u32 s40, s40, {SPB}
v_mul_u32_u24 v7, 272, v2
v_lshl_add_u32 v7, v3, 4, v7
v_add_u32 v7, s40, v7
s_waitcnt lgkmcnt(0)''')
    def ld():
        for i in range(12): a(f'global_load_dwordx4 {vr(16+4*i,4)}, v{4 + i//4}, {WS} offset:{(i%4)*1024} sc1')
    a.poll(ld, lambda: a.chk_sent(range(16, 64), 8), sleep=P['sl_h2'])
    a.stamp('h2')
    for kt in range(4):
        for ht in range(2):
            for s in range(6):
                d = 208 + (kt*2+ht)*4
                a(f'v_mfma_f32_16x16x32_bf16 {vr(d,4)}, {vr(64+(kt*6+s)*4,4)}, {vr(16+(s*2+ht)*4,4)}, {"0" if s == 0 else vr(d,4)}')
        if kt >= 1:
            for ht in range(2): a(f'ds_write_b128 v7, {vr(208+((kt-1)*2+ht)*4,4)} offset:{ht*16*272 + (kt-1)*64}')
    for ht in range(2): a(f'ds_write_b128 v7, {vr(208+(3*2+ht)*4,4)} offset:{ht*16*272 + 3*64}')
    a.label('LB_noqk')
    a(f'''s_lshl_b32 s40, s3, 2
v_add_u32 v9, s40, v3              ; head = 4w+g
v_mul_u32_u24 v4, 272, v9
v_lshl_add_u32 v4, v2, 4, v4
v_add_u32 v4, {SPB}, v4
v_mul_u32_u24 v5, 144, v9
v_lshl_add_u32 v5, v2, 3, v5
v_add_u32 v5, {PB}, v5
s_lshl_b32 s40, s2, 4
s_add_u32 s40, s40, {H3}
v_lshl_add_u32 v6, v9, 11, s40
v_lshlrev_b32 v10, 2, v2           ; 4*kq''')
    a.bar()
    a.stamp('qk')
    for i in range(4): a(f'ds_read_b128 {vr(16+4*i,4)}, v4 offset:{8704*i}')
    a('s_waitcnt lgkmcnt(0)')
    for i in range(4):
        a(f'v_add_f32 v{16+i}, v{16+i}, v{20+i}\nv_add_f32 v{24+i}, v{24+i}, v{28+i}')
    for i in range(4):
        a(f'v_add_f32 v{32+i}, v{16+i}, v{24+i}')
    for i in range(4):
        a(f'v_add_u32 v{40+i}, {i}, v10\nv_and_or_b32 v{36+i}, v{32+i}, s46, v{40+i}' if False else
          f'v_add_u32 v{40+i}, {i}, v10\nv_and_b32 v{36+i}, 0xffffffc0, v{32+i}\nv_or_b32 v{36+i}, v{36+i}, v{40+i}')
    a('v_max3_f32 v44, v36, v37, v38\nv_max_f32 v44, v44, v39')
    a.row_red('v_max_f32', [44])
    a.rnd(46, 44)
    a('v_mul_f32 v46, s59, v46')
    a.rnd(46, 46)
    a('v_and_b32 v47, 63, v44')
    a.exec_mask(0x0001000100010001)
    a(f'global_store_dwordx2 v6, v[46:47], {WS} sc1')
    a.full()
    a.stamp('h3pub')
    for i in range(4):
        a.rnd(32 + i, 32 + i)
        a(f'v_mul_f32 v{32+i}, s59, v{32+i}')
        a.rnd(32 + i, 32 + i)
    a(f'v_mov_b32 v11, {NEGINF:#x}')
    for i in range(4):
        a(f'v_cmp_eq_u32 vcc, v{40+i}, v47\nv_cndmask_b32 v{32+i}, v{32+i}, v11, vcc')
    a('v_max3_f32 v48, v32, v33, v34\nv_max_f32 v48, v48, v35')
    a.row_red('v_max_f32', [48])
    for i in range(4):
        a(f'v_sub_f32 v{32+i}, v{32+i}, v48\nv_mul_f32 v{32+i}, s56, v{32+i}\nv_exp_f32 v{32+i}, v{32+i}')
    a(f'''v_cvt_pk_bf16_f32 v36, v32, v33
v_cvt_pk_bf16_f32 v37, v34, v35
ds_write_b64 v5, v[36:37]
v_add_f32 v49, v32, v33
v_add_f32 v50, v34, v35
v_add_f32 v49, v49, v50
v_mul_u32_u24 v4, 144, v2
v_lshl_add_u32 v4, v3, 4, v4
v_add_u32 v4, {PB}, v4''')
    a.row_red('v_add_f32', [49])
    a(f'''s_lshr_b32 s40, s3, 1
s_mul_i32 s40, s40, 49152
s_mul_i32 s41, s2, 384
s_add_u32 s40, s40, s41
s_and_b32 s41, s3, 1
s_mul_i32 s41, s41, 192
s_add_u32 s40, s40, s41
s_add_u32 s40, s40, {H4}
s_mov_b32 s41, 196608
v_mul_lo_u32 v7, v2, s41
v_lshl_add_u32 v7, v3, 4, v7
v_add_u32 v7, s40, v7
v_add_u32 v8, {16*196608}, v7''')
    a.bar()
    for ht in range(2):
        for ks in range(2): a(f'ds_read_b128 {vr(16+(ht*2+ks)*4,4)}, v4 offset:{ht*16*144 + ks*64}')
    a('s_waitcnt lgkmcnt(0)')
    def pv(t, ht):
        for hf in range(2):
            d = 64 + ((t*2+ht)*2+hf)*4
            for ks in range(2):
                a(f'v_mfma_f32_16x16x32_bf16 {vr(d,4)}, {vr(160+((t*2+hf)*2+ks)*4,4)}, {vr(16+(ht*2+ks)*4,4)}, {"0" if ks == 0 else vr(d,4)}')
    def pvst(t, ht):
        d = 64 + (t*2+ht)*8; o = 112 + (t*2+ht)*4
        for k in range(4): a(f'v_cvt_pk_bf16_f32 v{o+k}, v{d+2*k}, v{d+2*k+1}')
        a(f'global_store_dwordx4 v{7+ht}, {vr(o,4)}, {WS} offset:{64*t} sc1')
    seq = [(t, ht) for t in range(3) for ht in range(2)]
    for i, (t, ht) in enumerate(seq):
        pv(t, ht)
        if i >= 2: pvst(*seq[i-2])
    pvst(*seq[4]); pvst(*seq[5])
    a.stamp('pvst')
    a.san([48, 49])
    a(f'v_add_u32 v6, {AUX - H3}, v6\ns_waitcnt vmcnt(0)\ns_barrier')
    a.exec_mask(0x0001000100010001)
    a(f'global_store_dwordx2 v6, v[48:49], {WS} sc1')
    a.full()
    a.stamp('auxpub')
    a('s_cmp_lt_u32 s2, 120\ns_cbranch_scc0 LB_nowo')
    a(f'''s_lshl_b32 s40, s39, 9
s_lshl_b32 s41, s3, 6
s_add_u32 s40, s40, s41
v_lshrrev_b32 v4, 3, v2
v_lshlrev_b32 v4, 5, v4
v_lshl_add_u32 v4, v3, 3, v4
v_add_u32 v4, s40, v4
v_mul_u32_u24 v4, 1280, v4
v_and_b32 v5, 7, v2
v_lshl_add_u32 v4, v5, 4, v4
s_lshl_b32 s40, s38, 7
v_add_u32 v4, s40, v4''')
    a.load_rows(64, 4, 4, WO, 1280)
    a.label('LB_nowo')
    a('s_cmp_lt_u32 s2, 64\ns_cbranch_scc0 LB_r2')
    a.wave_is('lt', 5, 'LB_rdone')
    a(f'''s_lshl_b32 s40, s3, 7
v_lshrrev_b32 v4, 3, v2
v_lshlrev_b32 v4, 5, v4
v_lshl_add_u32 v4, v3, 3, v4
v_add_u32 v4, s40, v4
v_and_b32 v5, 7, v2
s_cmp_lt_u32 s2, 40
s_cbranch_scc0 LB_r1
v_mul_u32_u24 v4, 7680, v4
v_lshl_add_u32 v4, v5, 4, v4
s_lshl_b32 s40, s2, 7
s_add_u32 s40, s40, 2560
v_add_u32 v4, s40, v4
v_add_u32 v5, {64*7680}, v4''')
    a.load_rows(128, 4, 4, WMOD, 7680)
    a.load_rows(160, 4, 5, WMOD, 7680)
    a(f'''v_and_b32 v4, 1, v2
v_lshlrev_b32 v4, 6, v4
v_lshl_add_u32 v4, v3, 4, v4
s_lshl_b32 s40, s3, 8
v_add_u32 v4, s40, v4
global_load_dwordx4 v[16:19], v4, {CC}
global_load_dwordx4 v[20:23], v4, {CC} offset:128
s_branch LB_rdone
LB_r1:
v_mul_u32_u24 v4, 3072, v4
v_lshl_add_u32 v4, v5, 4, v4
s_lshl_b32 s40, s2, 7
s_sub_u32 s40, s40, {40*128}
v_add_u32 v4, s40, v4
v_add_u32 v5, {64*3072}, v4''')
    a.load_rows(128, 4, 4, W1, 3072)
    a.load_rows(160, 4, 5, W1, 3072)
    a(f'v_lshlrev_b32 v4, 2, v0\nglobal_load_dword v24, v4, {X}\ns_branch LB_rdone')
    a.label('LB_r2')
    a('s_cmp_ge_u32 s2, 88\ns_cbranch_scc0 LB_rdone')
    a.wave_is('lt', 6, 'LB_rdone')
    a(f'''s_and_b32 s46, s2, 7
s_mul_i32 s46, s46, 5
s_sub_u32 s40, s2, 88
s_lshr_b32 s40, s40, 3
s_add_u32 s46, s46, s40
s_lshl_b32 s40, s3, 8
v_lshrrev_b32 v4, 1, v2
v_lshlrev_b32 v4, 5, v4
v_lshl_add_u32 v4, v3, 3, v4
v_add_u32 v4, s40, v4
v_mul_u32_u24 v4, 1280, v4
v_and_b32 v5, 1, v2
v_lshl_add_u32 v4, v5, 4, v4
s_lshl_b32 s40, s46, 5
v_add_u32 v4, s40, v4''')
    a.load_rows(128, 4, 4, W2, 1280)
    a.label('LB_rdone')
    a('s_waitcnt vmcnt(0)')
    a.stamp('late')
    a.perm_block(96, 64)
    a.perm_block(192, 128)
    a.perm_block(224, 160)
    a('s_cmp_lt_u32 s2, 40\ns_cbranch_scc0 LB_nomr')
    a.wave_is('lt', 5, 'LB_mrb')
    for i in range(8):
        a(f'v_lshlrev_b32 v32, 16, v{16+i}\nv_and_b32 v33, 0xffff0000, v{16+i}')
        a.silu(32, 32, 8); a.silu(33, 33, 8)
        a(f'v_perm_b32 v{16+i}, v33, v32, {PHI}')
    a.gemv2(128, 16, 192, True)
    a.gemv2(128, 20, 224, False)
    gemv_out_lds(a, 128)
    a.label('LB_mrb')
    a.bar()
    a.wave_is('eq', 0, 'LB_mre')
    sum_pairs(a, 5)
    a(f'''v_cvt_pk_bf16_f32 v8, v16, v17
s_lshl_b32 s40, s2, 7
s_add_u32 s40, s40, {MODR}
v_lshl_add_u32 v4, v1, 2, s40''')
    a.san([8])
    a.lanes_lt(32)
    a(f'global_store_dword v4, v8, {WS} sc1')
    a.full()
    a.label('LB_mre')
    a.bar()
    a.label('LB_nomr')
    a('s_cmp_lt_u32 s2, 120\ns_cbranch_scc0 LB_nowo2')
    a(f'''s_lshl_b32 s40, s39, 3
s_add_u32 s40, s40, s3
s_lshl_b32 s40, s40, 10
s_add_u32 s40, s40, {H5}
v_lshl_add_u32 v4, v1, 4, s40
s_lshl_b32 s40, s3, 7
s_add_u32 s40, s40, {MISC + 4096}
v_lshl_add_u32 v5, v2, 2, v3
v_lshl_add_u32 v5, v5, 1, s40      ; (4p+g)*2
v_and_b32 v6, 1, v2
v_lshlrev_b32 v6, 6, v6
v_lshl_add_u32 v6, v3, 4, v6
v_add_u32 v6, s40, v6''')
    a.poll(lambda: a(f'global_load_dwordx4 v[16:19], v4, {WS} sc1'), lambda: a.chk_sent(range(16, 20), 8), sleep=P['sl_h5'])
    a.stamp('h5')
    a.xrow_tr4(16)
    a('v_cvt_pk_bf16_f32 v16, v16, v16\nds_write_b16 v5, v16\ns_waitcnt lgkmcnt(0)\nds_read_b128 v[20:23], v6\ns_waitcnt lgkmcnt(0)')
    a.gemv2(128, 20, 96, True)
    gemv_out_lds(a, 128)
    a.bar()
    a.wave_is('eq', 0, 'LB_woe')
    a(f'v_lshlrev_b32 v4, 2, v1\nv_add_u32 v4, {MISC}, v4')
    for i in range(4): a(f'ds_read2st64_b32 {vr(16+2*i,2)}, v4 offset0:{2*i} offset1:{2*i+1}')
    a(f'''s_mul_i32 s40, s39, 2560
s_lshl_b32 s41, s38, 8
s_add_u32 s40, s40, s41
s_add_u32 s40, s40, {H6}
v_lshl_add_u32 v4, v1, 2, s40
s_waitcnt lgkmcnt(0)
v_add_f32 v16, v16, v17
v_add_f32 v18, v18, v19
v_add_f32 v20, v20, v21
v_add_f32 v22, v22, v23
v_add_f32 v16, v16, v18
v_add_f32 v20, v20, v22
v_add_f32 v16, v16, v20
global_store_dword v4, v16, {WS} sc1''')
    a.stamp('h6pub')
    a.label('LB_woe')
    a.label('LB_nowo2')
    a('s_cmp_lt_u32 s2, 40\ns_cbranch_scc1 Lfin\ns_cmp_lt_u32 s2, 64\ns_cbranch_scc0 LB_w2')
    a.wave_is('lt', 5, 'LB_w1b')
    a(f'v_lshlrev_b32 v4, 2, v0\nv_add_u32 v4, {MODR}, v4')
    def ld():
        for i in range(3): a(f'global_load_dword v{25+i}, v4, {WS} offset:{1280*i} sc1')
    a.poll(ld, lambda: a.chk_sent(range(25, 28), 8), sleep=8)
    a(f'''v_lshlrev_b32 v4, 3, v0
v_add_u32 v4, {H6}, v4
v_lshlrev_b32 v28, 16, v24
v_and_b32 v29, 0xffff0000, v24     ; x pair
v_lshlrev_b32 v30, 16, v25
v_and_b32 v31, 0xffff0000, v25     ; ga
v_lshlrev_b32 v32, 16, v26
v_and_b32 v33, 0xffff0000, v26     ; sb
v_lshlrev_b32 v34, 16, v27
v_and_b32 v35, 0xffff0000, v27     ; cb
v_add_f32 v34, 1.0, v34
v_add_f32 v35, 1.0, v35''')
    a.rnd(34, 34); a.rnd(35, 35)
    for i in range(1, 6): a(f'v_add_u32 v{8+i}, {5120*i}, v4')
    a('v_mov_b32 v8, v4')
    def ld():
        for i in range(12): a(f'global_load_dwordx2 {vr(40+2*i,2)}, v{8 + i//2}, {WS} offset:{2560*(i%2)} sc1')
    a.poll(ld, lambda: a.chk_sent(range(40, 64), 14), sleep=P['sl_h6'])
    a.stamp('h6')
    for st in (2, 4, 8):
        for i in range(0, 24, 2 * st):
            if i + st < 24:
                a(f'v_add_f32 v{40+i}, v{40+i}, v{40+i+st}\nv_add_f32 v{41+i}, v{41+i}, v{41+i+st}')
    a('v_add_f32 v40, v40, v56\nv_add_f32 v41, v41, v57')
    for i in range(2):
        a.rnd(40 + i, 40 + i)
        a(f'v_mul_f32 v{40+i}, v{30+i}, v{40+i}')
        a.rnd(40 + i, 40 + i)
        a(f'v_add_f32 v{40+i}, v{28+i}, v{40+i}')
        a.rnd(40 + i, 40 + i)
    a(f'v_add_f32 v42, v40, v41\nv_perm_b32 v36, v41, v40, {PHI}')
    a.wave_red('v_add_f32', 42, 43)
    a(f'''v_mul_f32 v42, {f2u(1/128):#x}, v42
v_sub_f32 v44, v40, v42
v_sub_f32 v45, v41, v42
v_mul_f32 v43, v44, v44
v_fmac_f32 v43, v45, v45''')
    a.wave_red('v_add_f32', 43, 44)
    a(f'''s_lshl_b32 s40, s3, 3
s_add_u32 s40, s40, {MISC + 8192}
v_mov_b32 v4, s40
ds_write_b64 v4, v[42:43]
s_cmp_eq_u32 s2, 40
s_cbranch_scc0 LB_w1b
v_lshlrev_b32 v4, 2, v0
v_add_u32 v4, {H7X}, v4''')
    a.san([36])
    a(f'global_store_dword v4, v36, {WS} sc1')
    a.label('LB_w1b')
    a.bar()
    a.wave_is('lt', 5, 'LB_w1c')
    a(f'''v_mov_b32 v4, {MISC + 8192}
ds_read_b128 v[44:47], v4
ds_read_b128 v[48:51], v4 offset:16
ds_read_b64 v[52:53], v4 offset:32
s_lshl_b32 s40, s3, 8
s_add_u32 s40, s40, {MISC + 4096}
v_lshl_add_u32 v5, v1, 2, s40
v_and_b32 v6, 1, v2
v_lshlrev_b32 v6, 6, v6
v_lshl_add_u32 v6, v3, 4, v6
v_add_u32 v6, s40, v6
s_waitcnt lgkmcnt(0)
v_add_f32 v54, v44, v46
v_add_f32 v55, v48, v50
v_add_f32 v54, v54, v55
v_add_f32 v54, v54, v52
v_mul_f32 v54, {f2u(0.2):#x}, v54      ; mean
v_add_f32 v55, v45, v47
v_add_f32 v56, v49, v51
v_add_f32 v55, v55, v56
v_add_f32 v55, v55, v53''')
    a('v_sub_f32 v44, v44, v54\nv_mul_f32 v56, v44, v44')
    for r in (46, 48, 50, 52): a(f'v_sub_f32 v{r}, v{r}, v54\nv_fmac_f32 v56, v{r}, v{r}')
    a(f'v_fmac_f32 v55, {f2u(128.0):#x}, v56\nv_mul_f32 v55, {f2u(1/640):#x}, v55')
    ln_finish(a, 54, 55, 56)
    for i in range(2):
        a(f'v_sub_f32 v{40+i}, v{40+i}, v54')
        a.rnd(40 + i, 40 + i)
        a.div(42 + i, 40 + i, 55, 56, 57)
        a.rnd(42 + i, 42 + i)
        a(f'v_mul_f32 v{42+i}, v{42+i}, v{34+i}')
        a.rnd(42 + i, 42 + i)
        a(f'v_add_f32 v{42+i}, v{42+i}, v{32+i}')
    a('''v_cvt_pk_bf16_f32 v42, v42, v43
ds_write_b32 v5, v42
s_waitcnt lgkmcnt(0)
ds_read_b128 v[16:19], v6
ds_read_b128 v[20:23], v6 offset:128
s_waitcnt lgkmcnt(0)''')
    a.gemv2(128, 16, 192, True)
    a.gemv2(128, 20, 224, False)
    gemv_out_lds(a, 128)
    a.label('LB_w1c')
    a.bar()
    a.wave_is('eq', 0, 'Lfin')
    sum_pairs(a, 5)
    a(f'''v_max_f32 v16, 0, v16
v_max_f32 v17, 0, v17
v_cvt_pk_bf16_f32 v8, v16, v17
s_lshl_b32 s40, s2, 7
s_add_u32 s40, s40, {H7F - 40*128}
v_lshl_add_u32 v4, v1, 2, s40''')
    a.san([8])
    a.lanes_lt(32)
    a(f'global_store_dword v4, v8, {WS} sc1')
    a.full()
    a.stamp('h7pub')
    a('s_branch Lfin')
    a.label('LB_w2')
    a('s_cmp_ge_u32 s2, 88\ns_cbranch_scc0 Lfin')
    a(f'''s_and_b32 s46, s2, 7
s_mul_i32 s46, s46, 5
s_sub_u32 s40, s2, 88
s_lshr_b32 s40, s40, 3
s_add_u32 s46, s46, s40''')
    a.wave_is('lt', 6, 'LB_w2b')
    a(f'''v_lshrrev_b32 v4, 2, v2
v_and_b32 v5, 1, v2
v_lshl_add_u32 v4, v5, 2, v4       ; kb(r)
v_lshlrev_b32 v4, 6, v4
v_lshl_add_u32 v4, v3, 4, v4
s_lshl_b32 s40, s3, 9
s_add_u32 s40, s40, {H7F}
v_add_u32 v4, s40, v4
s_lshl_b32 s40, s3, 9
s_add_u32 s40, s40, {MISC}
v_lshl_add_u32 v5, v2, 5, s40
v_cmp_le_u32 s[42:43], 8, v2''')
    a.poll(lambda: a(f'global_load_dwordx4 v[16:19], v4, {WS} sc1'), lambda: a.chk_sent(range(16, 20), 8), sleep=P['sl_h7'])
    a.stamp('h7')
    a.gemv2(128, 16, 192, True)
    for e in range(8): a(f'v_cndmask_b32 v{24+e}, v{128+4*e}, v{129+4*e}, s[42:43]')
    m = 0
    for p in range(16): m |= 1 << (p + 16 * ((p >> 1) & 3))
    a.exec_mask(m)
    a('ds_write_b128 v5, v[24:27]\nds_write_b128 v5, v[28:31] offset:16')
    a.full()
    a('s_branch LB_w2c')
    a.label('LB_w2b')
    a.wave_is('eq', 7, 'LB_w2c')
    a(f'''s_lshl_b32 s40, s46, 5
v_lshrrev_b32 v4, 1, v2
v_lshl_add_u32 v4, v4, 2, s40
v_add_u32 v5, {MODR + 3*1280}, v4
v_add_u32 v4, {H7X}, v4''')
    a.poll(lambda: a(f'global_load_dword v32, v5, {WS} sc1'), lambda: a.chk_sent([32], 8), sleep=8)
    a.poll(lambda: a(f'global_load_dword v33, v4, {WS} sc1'), lambda: a.chk_sent([33], 8), sleep=P['sl_h7'])
    a(f'''v_and_b32 v6, 1, v2
v_cmp_eq_u32 vcc, 1, v6
v_lshlrev_b32 v34, 16, v32
v_and_b32 v32, 0xffff0000, v32
v_cndmask_b32 v32, v34, v32, vcc
v_lshlrev_b32 v34, 16, v33
v_and_b32 v33, 0xffff0000, v33
v_cndmask_b32 v33, v34, v33, vcc
v_mul_u32_u24 v4, 768, v3
v_lshl_add_u32 v4, v2, 2, v4
v_add_u32 v4, {MISC}, v4
s_lshl_b32 s40, s46, 5
v_lshl_add_u32 v5, v2, 1, s40''')
    a.label('LB_w2c')
    a.bar()
    a.wave_is('eq', 7, 'Lfin')
    for i in range(6): a(f'ds_read2_b32 {vr(16+2*i,2)}, v4 offset0:{32*i} offset1:{32*i+16}')
    a('s_waitcnt lgkmcnt(0)')
    for st in (1, 2, 4):
        for i in range(0, 12, 2 * st):
            if i + st < 12: a(f'v_add_f32 v{16+i}, v{16+i}, v{16+i+st}')
    a('v_add_f32 v16, v16, v24')
    a.xrow_red('v_add_f32', 16, 17)
    a.rnd(16, 16)
    a('v_mul_f32 v16, v32, v16')
    a.rnd(16, 16)
    a('v_add_f32 v16, v33, v16\nv_cvt_pk_bf16_f32 v16, v16, v16')
    a.lanes_lt(16)
    a(f'global_store_short v5, v16, {OUT}')
    a.full()
    a.stamp('out')
    a('s_branch Lfin')

def gemv_out_lds(a, D):
    a(f'''v_and_b32 v4, 7, v2
v_lshlrev_b32 v4, 5, v4
v_lshrrev_b32 v5, 3, v2
v_lshl_add_u32 v4, v5, 4, v4
s_lshl_b32 s40, s3, 8
s_add_u32 s40, s40, {MISC}
v_add_u32 v4, s40, v4''')
    a.pack2(8, D)
    a.lanes_lt(16)
    a('ds_write_b128 v4, v[8:11]')
    a.full()

def sum_pairs(a, n):
    a(f'v_and_b32 v4, 31, v1\nv_lshlrev_b32 v4, 3, v4\nv_add_u32 v4, {MISC}, v4')
    for i in range(n): a(f'ds_read_b64 {vr(16+2*i,2)}, v4 offset:{256*i}')
    a('''s_waitcnt lgkmcnt(0)
v_add_f32 v16, v16, v18
v_add_f32 v17, v17, v19
v_add_f32 v20, v20, v22
v_add_f32 v21, v21, v23
v_add_f32 v16, v16, v20
v_add_f32 v17, v17, v21
v_add_f32 v16, v16, v24
v_add_f32 v17, v17, v25''')

def ln_finish(a, m, v, ri):
    a.rnd(m, m); a.rnd(v, v)
    a(f'v_add_f32 v{v}, {f2u(1e-5):#x}, v{v}')
    a.rnd(v, v)
    a(f'v_sqrt_f32 v{v}, v{v}')
    a.rnd(v, v)
    a.recip(ri, v, ri + 1)

LH, LQ, LKEY, LEK, LWT, LWP, LFW, LKP, LRP, LCC, LVP = 0, 256, 1024, 1536, 2048, 2560, 3072, 4096, 4096 + 18432, 4096 + 18432 + 6144, 4096 + 18432 + 6144 + 1024
def load_uk(a, base, off=128):
    a(f'''s_mul_i32 s40, s41, 192
s_lshl_b32 s42, s3, 5
s_add_u32 s40, s40, s42
v_lshl_add_u32 v4, v3, 3, s40
v_mul_u32_u24 v4, 12288, v4
s_mul_i32 s40, s47, 384
v_add_u32 v4, s40, v4
v_lshl_add_u32 v5, v2, 3, v4
v_lshl_add_u32 v4, v2, 4, v4''')
    for j in range(8):
        a(f'global_load_dwordx4 {vr(off+4*j,4)}, v4, {base} nt')
        a(f'global_load_dwordx2 {vr(off+32+2*j,2)}, v5, {base} offset:256 nt')
        if j < 7: a('v_add_u32 v4, 12288, v4\nv_add_u32 v5, 12288, v5')
def perm12(a, dst, src=128):
    a.perm_block(dst, src, nreg=4); a.perm_block(dst + 32, src + 32, nreg=2)
def mfma12(a, D, A, F):
    for e in range(12): a(f'v_mfma_f32_16x16x32_bf16 {vr(D+4*e,4)}, {vr(A,4)}, {vr(F+4*e,4)}, 0')
def out12(a, D, o, lbase):
    a(f'''s_mul_i32 s40, s3, 768
s_add_u32 s40, s40, {lbase}
v_lshl_add_u32 v4, v2, 5, s40
v_lshl_add_u32 v5, v2, 4, s40''')
    for e in range(12): a(f'v_add_f32 v{o+e}, v{D+4*e}, v{D+4*e+1}')
    a.lanes_lt(16)
    a(f'ds_write_b128 v4, {vr(o,4)}\nds_write_b128 v4, {vr(o+4,4)} offset:16\nds_write_b128 v5, {vr(o+8,4)} offset:512')
    a.full()
def weights_out(a, val, lbase, k):
    a(f'''v_cvt_pk_bf16_f32 v8, v{val}, v{val}
ds_write_b16 v4, v8 offset:{lbase + 128*k}
v_and_b32 v9, 0xffff0000, v8
v_sub_f32 v9, v{val}, v9
v_cvt_pk_bf16_f32 v9, v9, v9
ds_write_b16 v4, v9 offset:{lbase + 256 + 128*k}''')

def role_A(a):
    P = a.P
    a(f'''s_sub_u32 s44, s2, 128
s_mul_i32 s39, s44, 205
s_lshr_b32 s39, s39, 11          ; cb = a/10
s_mul_i32 s40, s39, 10
s_sub_u32 s38, s44, s40          ; T = a%10
s_lshr_b32 s47, s44, 2           ; head
s_and_b32 s41, s44, 3            ; quarter
v_mov_b32 v12, 0
s_lshl_b32 s45, s39, 3
s_add_u32 s45, s45, s3
s_waitcnt lgkmcnt(0)''')
    a.stamp('start')
    a.wave_is('eq', 7, 'LA_not7')
    a(f'''global_load_dword v15, v12, {WS} sc1
v_mov_b32 v8, -1
v_mov_b32 v9, -1
v_mov_b32 v10, -1
v_mov_b32 v11, -1
s_cmp_lt_u32 s44, 120
s_cbranch_scc0 LA_noc1''')
    for i in range(2):
        a(f'''s_lshl_b32 s40, s39, 3
s_add_u32 s40, s40, {4*i}
v_add_u32 v4, s40, v3              ; chunk
v_mul_u32_u24 v5, 43, v4
v_lshrrev_b32 v5, 7, v5            ; head
v_mul_u32_u24 v6, 3, v5
v_sub_u32 v4, v4, v6
v_lshlrev_b32 v4, 8, v4            ; d0*4
v_mul_u32_u24 v5, 7680, v5
v_add_u32 v4, v4, v5
v_lshl_add_u32 v4, v2, 4, v4
s_mul_i32 s40, s38, 768
s_add_u32 s40, s40, {H1B}
v_add_u32 v4, s40, v4
global_store_dwordx4 v4, v[8:11], {WS} sc1''')
    a(f'''LA_noc1:
s_mul_i32 s40, s41, 12288
s_lshr_b32 s42, s47, 4
s_lshl_b32 s42, s42, 10
s_add_u32 s40, s40, s42
s_and_b32 s42, s47, 15
s_lshl_b32 s42, s42, 6
s_add_u32 s40, s40, s42
s_add_u32 s40, s40, {H2}
v_lshrrev_b32 v4, 2, v1
v_min_u32 v4, 5, v4
v_lshlrev_b32 v4, 11, v4
v_and_b32 v5, 3, v1
v_lshl_add_u32 v4, v5, 4, v4
v_add_u32 v4, s40, v4
global_store_dwordx4 v4, v[8:11], {WS} sc1
; H4S 3KB
s_mul_i32 s40, s44, 3072
s_add_u32 s40, s40, {H4S}
v_lshl_add_u32 v4, v1, 4, s40
global_store_dwordx4 v4, v[8:11], {WS} sc1
global_store_dwordx4 v4, v[8:11], {WS} offset:1024 sc1
global_store_dwordx4 v4, v[8:11], {WS} offset:2048 sc1
; H5 3 x 256B
s_mul_i32 s40, s47, 3072
s_lshl_b32 s42, s41, 8
s_add_u32 s40, s40, s42
s_add_u32 s40, s40, {H5}
v_min_u32 v4, 2, v3
v_lshlrev_b32 v4, 10, v4
v_lshl_add_u32 v4, v2, 4, v4
v_add_u32 v4, s40, v4
global_store_dwordx4 v4, v[8:11], {WS} sc1''')
    a.ready_publish()
    a.label('LA_not7')
    a('s_cmp_lt_u32 s44, 120\ns_cbranch_scc0 LA_nowq')
    a(f'''s_lshl_b32 s40, s38, 6
v_lshrrev_b32 v4, 3, v2
v_lshlrev_b32 v4, 5, v4
v_lshl_add_u32 v4, v3, 3, v4
v_add_u32 v4, s40, v4
v_mul_u32_u24 v4, 12288, v4
v_and_b32 v5, 7, v2
v_lshl_add_u32 v4, v5, 4, v4
s_lshl_b32 s40, s45, 7
v_add_u32 v4, s40, v4''')
    a.load_rows(64, 4, 4, WQ, 12288)
    a.label('LA_nowq')
    a(f'''global_load_dword v15, v12, {WS} sc1
v_lshlrev_b32 v4, 2, v1''')
    for k in range(5): a(f'global_load_dword v{16+k}, v4, {X} offset:{256*k}')
    a(f'''s_lshl_b32 s40, s38, 6
s_lshl_b32 s42, s3, 3
s_add_u32 s40, s40, s42
v_and_b32 v5, 7, v1
v_add_u32 v5, s40, v5
v_lshlrev_b32 v5, 1, v5
global_load_ushort v21, v5, {X}''')
    a.wave_is('eq', 6, 'LA_not6')
    code_warm(a)
    a.label('LA_not6')
    consts(a)
    if P['uk_early']:
        a.wave_is('lt', 6, 'LA_nouk0')
        load_uk(a, WUK)
        a('s_waitcnt vmcnt(16)\ns_branch LA_uk0d')
        a.label('LA_nouk0')
        a('s_waitcnt vmcnt(0)')
        a.label('LA_uk0d')
    else:
        a('s_waitcnt vmcnt(0)')
    a.stamp('wq')
    a.get_tag()
    for k in range(5): a(f'v_lshlrev_b32 v{24+2*k}, 16, v{16+k}\nv_and_b32 v{25+2*k}, 0xffff0000, v{16+k}')
    a('v_add_f32 v22, v24, v25')
    for k in range(2, 10): a(f'v_add_f32 v22, v22, v{24+k}')
    a.wave_red('v_add_f32', 22, 23)
    a(f'v_mul_f32 v22, {f2u(1/640):#x}, v22\nv_mov_b32 v23, 0')
    for k in range(10): a(f'v_sub_f32 v{24+k}, v{24+k}, v22\nv_fmac_f32 v23, v{24+k}, v{24+k}')
    a.wave_red('v_add_f32', 23, 24)
    a(f'v_mul_f32 v23, {f2u(1/640):#x}, v23')
    ln_finish(a, 22, 23, 24)
    a('v_lshlrev_b32 v21, 16, v21\nv_sub_f32 v21, v21, v22')
    a.rnd(21, 21)
    a.div(20, 21, 23, 24, 25)
    a.rnd(20, 20)
    a.perm_block(96, 64)
    a('s_cmp_lt_u32 s44, 120\ns_cbranch_scc0 LA_noh1')
    a(f'''s_lshl_b32 s40, s38, 13
s_lshl_b32 s42, s3, 10
s_add_u32 s40, s40, s42
s_add_u32 s40, s40, {H1}
v_lshl_add_u32 v4, v1, 4, s40
s_lshl_b32 s40, s3, 4
v_and_b32 v5, 7, v1
v_lshl_add_u32 v5, v5, 1, s40''')
    def ck():
        a(f'v_xor_b32 v17, {TAG}, v17\nv_xor_b32 v19, {TAG}, v19\nv_or_b32 v17, v17, v19\nv_cmp_ne_u32 vcc, 0, v17')
    a.poll(lambda: a(f'global_load_dwordx4 v[16:19], v4, {WS} sc1'), ck, sleep=P['sl_h1'])
    a.stamp('h1')
    a('''v_add_f32_dpp v16, v16, v16 row_ror:8 row_mask:0xf bank_mask:0xf
v_add_f32_dpp v18, v18, v18 row_ror:8 row_mask:0xf bank_mask:0xf
v_permlane16_swap_b32 v16, v18
v_add_f32 v16, v16, v18
v_mov_b32 v18, v16
v_permlane32_swap_b32 v16, v18
v_add_f32 v16, v16, v18
v_mov_b32 v18, v16
v_permlane16_swap_b32 v16, v18''')
    a.rnd(16, 16); a.rnd(18, 18)
    a('v_add_f32 v18, 1.0, v18')
    a.rnd(18, 18)
    a('v_mul_f32 v18, v20, v18')
    a.rnd(18, 18)
    a(f'v_add_f32 v16, v18, v16\nv_cvt_pk_bf16_f32 v16, v16, v16\nds_write_b16 v5, v16 offset:{LH}')
    a.label('LA_noh1')
    a.wave_is('eq', 7, 'LA_nordy')
    a.ready_check()
    a.label('LA_nordy')
    a(f'''v_and_b32 v6, 1, v2
v_lshlrev_b32 v6, 6, v6
v_lshl_add_u32 v6, v3, 4, v6
s_mul_i32 s40, s45, 43
s_lshr_b32 s40, s40, 7
s_mul_i32 s42, s40, 3
s_sub_u32 s42, s45, s42
s_lshl_b32 s42, s42, 8
s_mul_i32 s40, s40, 7680
s_add_u32 s40, s40, s42
s_mul_i32 s42, s38, 768
s_add_u32 s40, s40, s42
s_add_u32 s40, s40, {H1B}
v_and_b32 v4, 7, v2
v_lshlrev_b32 v4, 5, v4
v_lshrrev_b32 v5, 3, v2
v_lshl_add_u32 v4, v5, 4, v4
v_add_u32 v4, s40, v4''')
    a.bar()
    a('s_cmp_lt_u32 s44, 120\ns_cbranch_scc0 LA_nos2')
    a(f'ds_read_b128 v[16:19], v6 offset:{LH}\ns_waitcnt lgkmcnt(0)')
    a.gemv2(24, 16, 96, True)
    a.pack2(8, 24)
    a.lanes_lt(16)
    a(f'global_store_dwordx4 v4, v[8:11], {WS} sc1')
    a.full()
    a.stamp('qpub')
    a.label('LA_nos2')
    if not P['uk_early']:
        a.wave_is('lt', 6, 'LA_nouk1')
        load_uk(a, WUK)
        a.label('LA_nouk1')
    a(f'''s_mul_i32 s40, s47, 7680
s_mul_i32 s42, s3, 96
s_add_u32 s40, s40, s42
s_add_u32 s40, s40, {H1B}
v_and_b32 v5, 7, v1
v_min_u32 v5, 5, v5
v_lshrrev_b32 v4, 3, v1
v_mul_u32_u24 v4, 768, v4
v_lshl_add_u32 v4, v5, 4, v4
v_add_u32 v4, s40, v4
v_add_u32 v7, 6144, v4
s_mul_i32 s40, s3, 48
v_lshl_add_u32 v5, v5, 2, v3
v_lshl_add_u32 v5, v5, 1, s40      ; (24w+4dq+rho)*2
v_mov_b32 v20, 0
v_mov_b32 v21, 0
v_mov_b32 v22, 0
v_mov_b32 v23, 0''')
    def ld():
        a(f'global_load_dwordx4 v[16:19], v4, {WS} sc1')
        a.lanes_lt(16)
        a(f'global_load_dwordx4 v[20:23], v7, {WS} sc1')
        a.full()
    a.poll(ld, lambda: a.chk_sent(range(16, 24), 8), sleep=P['sl_h1b'], pre=P['pre_h1b'])
    a.stamp('h1b')
    for i in range(4): a(f'v_add_f32 v{16+i}, v{16+i}, v{20+i}')
    for i in range(4): a(f'v_add_f32_dpp v{16+i}, v{16+i}, v{16+i} row_ror:8 row_mask:0xf bank_mask:0xf')
    a.xrow_tr4(16)
    a(f'''v_cvt_pk_bf16_f32 v16, v16, v16
ds_write_b16 v5, v16 offset:{LQ}
v_lshlrev_b32 v4, 4, v2
v_lshlrev_b32 v5, 3, v2
s_mul_i32 s40, s41, 6
s_add_u32 s40, s40, s3
s_lshl_b32 s40, s40, 11
s_lshr_b32 s42, s47, 4
s_lshl_b32 s42, s42, 10
s_add_u32 s40, s40, s42
s_and_b32 s42, s47, 15
s_lshl_b32 s42, s42, 6
s_add_u32 s40, s40, s42
s_add_u32 s40, s40, {H2}
v_lshl_add_u32 v6, v3, 4, v2
v_add_u32 v6, s40, v6''')
    a.bar()
    a.wave_is('lt', 6, 'LA_nos3')
    a(f'ds_read_b128 v[16:19], v4 offset:{LQ}\nds_read_b64 v[20:21], v5 offset:{LQ+256}\ns_waitcnt lgkmcnt(0) vmcnt(0)')
    for k in range(6):
        for j in range(8):
            src = 128 + 4*j + k if k < 4 else 160 + 2*j + (k - 4)
            a(f'v_dot2_f32_bf16 v{24+j}, v{src}, v{16+k}, {"0" if k == 0 else "v%d" % (24+j)}')
    for i in range(4): a(f'v_add_f32_dpp v{32+i}, v{24+i}, v{24+i} row_ror:8 row_mask:0xf bank_mask:0x3')
    for i in range(4): a(f'v_add_f32_dpp v{32+i}, v{28+i}, v{28+i} row_ror:8 row_mask:0xf bank_mask:0xc')
    for i in range(2): a(f'v_add_f32_dpp v{36+i}, v{32+i}, v{32+i} row_shl:4 row_mask:0xf bank_mask:0x5')
    for i in range(2): a(f'v_add_f32_dpp v{36+i}, v{34+i}, v{34+i} row_shr:4 row_mask:0xf bank_mask:0xa')
    for qp in ('[2,3,0,1]', '[1,0,3,2]'):
        for i in range(2): a(f'v_add_f32_dpp v{36+i}, v{36+i}, v{36+i} quad_perm:{qp} row_mask:0xf bank_mask:0xf')
    a('v_cvt_pk_bf16_f32 v36, v36, v37')
    a.san([36])
    a.exec_mask(0x1111111111111111)
    a(f'global_store_dword v6, v36, {WS} sc1')
    a.full()
    a.stamp('h2pub')
    perm12(a, 64)
    load_uk(a, WUV)
    a('s_waitcnt vmcnt(0)')
    perm12(a, 176)
    a.stamp('wuv')
    a.label('LA_nos3')
    a.wave_is('eq', 7, 'LA_noh3')
    a(f'''s_lshl_b32 s40, s47, 11
s_add_u32 s40, s40, {H3}
v_lshl_add_u32 v4, v1, 4, s40''')
    a.poll(lambda: a(f'global_load_dwordx2 v[16:17], v4, {WS} sc1\nglobal_load_dwordx2 v[18:19], v4, {WS} offset:1024 sc1'),
           lambda: a.chk_sent(range(16, 20), 8), sleep=P['sl_h3'])
    a.stamp('h3')
    a('v_max_f32 v20, v16, v18')
    a.wave_red('v_max_f32', 20, 21)
    a(f'''v_and_b32 v21, 0x7f800000, v20
v_fma_f32 v20, v21, s48, v20
v_and_b32 v17, 63, v17
v_and_b32 v19, 63, v19
v_lshl_add_u32 v17, v1, 6, v17
v_lshl_add_u32 v19, v1, 6, v19
v_add_u32 v19, 4096, v19
v_cmp_ge_f32 s[50:51], v16, v20
v_cmp_ge_f32 s[52:53], v18, v20
v_lshlrev_b32 v4, 2, v1
ds_write2st64_b32 v4, v17, v19 offset0:{LKEY//256} offset1:{LKEY//256+1}'''.replace('v_fma_f32 v20, v21, s48, v20', f's_mov_b32 s48, {f2u(-1/64):#x}\nv_fma_f32 v20, v21, s48, v20'))
    a.lanes_lt(4)
    a(f'ds_write_b32 v4, v17 offset:{LEK}')
    a.full()
    a(f'''s_bcnt1_i32_b64 s49, s[50:51]
v_mbcnt_lo_u32_b32 v22, s50, 0
v_mbcnt_hi_u32_b32 v22, s51, v22
v_mov_b32 v23, s49
v_mbcnt_lo_u32_b32 v23, s52, v23
v_mbcnt_hi_u32_b32 v23, s53, v23
s_bcnt1_i32_b64 s54, s[52:53]
s_add_u32 s49, s49, s54
s_min_u32 s49, s49, 4              ; nE
v_cmp_gt_u32 vcc, 4, v22
s_and_b64 s[50:51], s[50:51], vcc
v_cmp_gt_u32 vcc, 4, v23
s_and_b64 s[52:53], s[52:53], vcc
v_lshlrev_b32 v22, 2, v22
v_lshlrev_b32 v23, 2, v23
s_mov_b64 exec, s[50:51]
ds_write_b32 v22, v17 offset:{LEK}
s_mov_b64 exec, s[52:53]
ds_write_b32 v23, v19 offset:{LEK}
s_mov_b64 exec, -1
v_mov_b32 v21, {NEGINF:#x}
v_cndmask_b32 v16, v16, v21, s[50:51]
v_cndmask_b32 v18, v18, v21, s[52:53]
v_max_f32 v228, v16, v18''')
    a.wave_red('v_max_f32', 228, 21)
    a(f'''v_sub_f32 v16, v16, v228
v_sub_f32 v18, v18, v228
v_mul_f32 v16, s56, v16
v_mul_f32 v18, s56, v18
v_exp_f32 v16, v16
v_exp_f32 v18, v18
v_lshlrev_b32 v4, 1, v1''')
    weights_out(a, 16, LWT, 0); weights_out(a, 18, LWT, 1)
    a('v_add_f32 v229, v16, v18')
    a.label('LA_noh3')
    a.bar()
    a.stamp('b3')
    a.wave_is('lt', 6, 'LA_noe')
    a(f'''v_and_b32 v4, 3, v2
v_lshlrev_b32 v4, 2, v4
ds_read_b32 v5, v4 offset:{LEK}
ds_read_b128 v[8:11], v12 offset:{LEK}
s_mul_i32 s40, s41, 384
s_lshl_b32 s42, s3, 6
s_add_u32 s40, s40, s42
v_lshl_add_u32 v6, v3, 4, s40
v_and_b32 v7, 31, v1
v_lshl_add_u32 v7, v7, 1, s40
s_waitcnt lgkmcnt(0)
v_mad_u32_u24 v5, v5, s55, v6
global_load_dwordx4 v[224:227], v5, {CKV}'''.replace('v_mad_u32_u24 v5, v5, s55, v6', 's_movk_i32 s55, 1536\nv_mad_u32_u24 v5, v5, s55, v6'))
    for j in range(4): a(f'v_mad_u32_u24 v{8+j}, v{8+j}, s55, v7\nglobal_load_ushort v{232+j}, v{8+j}, {CKV}')
    a.label('LA_noe')
    a.wave_is('ge', 4, 'LA_notop')
    a(f'''s_sub_u32 s40, s3, 4
s_lshl_b32 s40, s40, 7
v_lshl_add_u32 v4, v3, 5, s40
ds_read_b128 v[240:243], v4 offset:{LKEY}
ds_read_b128 v[244:247], v4 offset:{LKEY+16}
s_movk_i32 s55, 1536
s_mul_i32 s40, s41, 384
v_lshl_add_u32 v6, v2, 4, s40
v_lshlrev_b32 v7, 3, v2
s_waitcnt lgkmcnt(0)''')
    for j in range(8):
        a(f'''v_mad_u32_u24 v{240+j}, v{240+j}, s55, v6
global_load_dwordx4 {vr(128+4*j,4)}, v{240+j}, {CKV}
v_sub_u32 v{240+j}, v{240+j}, v7
global_load_dwordx2 {vr(160+2*j,2)}, v{240+j}, {CKV} offset:256''')
    a.label('LA_notop')
    a.wave_is('lt', 6, 'LA_nok')
    a.wave_is('lt', 4, 'LA_k45')
    a('s_waitcnt vmcnt(4)\ns_branch LA_kgo')
    a.label('LA_k45')
    a('s_waitcnt vmcnt(20)')
    a.label('LA_kgo')
    mfma12(a, 16, 224, 64)
    a(f'''s_mul_i32 s40, s3, 3072
s_add_u32 s40, s40, {LKP}
v_lshl_add_u32 v4, v2, 4, s40''')
    a.lanes_lt(16)
    for e in range(12): a(f'ds_write_b128 v4, {vr(16+4*e,4)} offset:{256*e}')
    a.full()
    a.label('LA_nok')
    a.wave_is('eq', 6, 'LA_noaux')
    a(f'''s_lshl_b32 s40, s47, 11
s_add_u32 s40, s40, {AUX}
v_lshl_add_u32 v4, v1, 4, s40''')
    a.poll(lambda: a(f'global_load_dwordx2 v[16:17], v4, {WS} sc1\nglobal_load_dwordx2 v[18:19], v4, {WS} offset:1024 sc1'),
           lambda: a.chk_sent(range(16, 20), 8), sleep=P['sl_aux'])
    a.stamp('aux')
    a('v_max_f32 v20, v16, v18')
    a.wave_red('v_max_f32', 20, 21)
    a(f'''v_sub_f32 v16, v16, v20
v_sub_f32 v18, v18, v20
v_mul_f32 v16, s56, v16
v_mul_f32 v18, s56, v18
v_exp_f32 v16, v16
v_exp_f32 v18, v18
v_lshlrev_b32 v4, 1, v1''')
    weights_out(a, 16, LWP, 0); weights_out(a, 18, LWP, 1)
    a('v_mul_f32 v21, v16, v17\nv_fmac_f32 v21, v18, v19')
    a.wave_red('v_add_f32', 21, 22)
    a(f'ds_write_b64 v12, v[20:21] offset:{LFW+32}')
    a.label('LA_noaux')
    a.bar()
    a.stamp('b45')
    a.wave_is('lt', 4, 'LA_nog')
    a(f'''s_lshl_b32 s40, s44, 7
s_lshl_b32 s42, s3, 5
s_add_u32 s40, s40, s42
v_lshl_add_u32 v4, v3, 3, s40
v_mul_u32_u24 v4, 384, v4
v_add_u32 v4, {H4}, v4
v_lshl_add_u32 v5, v2, 3, v4
v_lshl_add_u32 v4, v2, 4, v4''')
    a.wave_is('lt', 3, 'LA_nopub')
    a(f'v_lshlrev_b32 v6, 4, v0\nv_add_u32 v7, {LKP}, v6')
    for w in range(6): a(f'ds_read_b128 {vr(16+4*w,4)}, v7 offset:{3072*w}')
    a(f's_mul_i32 s40, s44, 3072\ns_add_u32 s40, s40, {H4S}\nv_add_u32 v6, s40, v6\ns_waitcnt lgkmcnt(0)')
    for i in range(4):
        a(f'v_add_f32 v{16+i}, v{16+i}, v{20+i}\nv_add_f32 v{24+i}, v{24+i}, v{28+i}\nv_add_f32 v{32+i}, v{32+i}, v{36+i}')
    for i in range(4): a(f'v_add_f32 v{16+i}, v{16+i}, v{24+i}\nv_add_f32 v{16+i}, v{16+i}, v{32+i}')
    a(f'global_store_dwordx4 v6, v[16:19], {WS} sc1')
    a.stamp('kpub')
    a.label('LA_nopub')
    for j in range(8):
        a(f'global_load_dwordx4 {vr(128+4*j,4)}, v4, {WS} offset:{384*j} sc1')
        a(f'global_load_dwordx2 {vr(160+2*j,2)}, v5, {WS} offset:{384*j+256} sc1')
    a.label('LA_nog')
    a(f'''s_and_b32 s40, s3, 3
s_lshl_b32 s40, s40, 6
s_add_u32 s42, s40, {LWP}
s_add_u32 s40, s40, {LWT}
s_cmp_lt_u32 s3, 4
s_cselect_b32 s40, s42, s40
v_and_b32 v4, 1, v2
v_lshlrev_b32 v4, 8, v4
v_lshl_add_u32 v4, v3, 4, v4
v_add_u32 v4, s40, v4
ds_read_b128 v[224:227], v4
s_waitcnt vmcnt(0) lgkmcnt(0)''')
    a.stamp('gath')
    perm12(a, 16)
    mfma12(a, 128, 224, 16)
    out12(a, 128, 16, LRP)
    a.wave_is('eq', 7, 'LA_nofw')
    a(f'''s_mul_i32 s40, s47, 12288
s_add_u32 s40, s40, {H4S}
v_lshl_add_u32 v4, v1, 4, s40
v_add_u32 v5, 3072, v4
v_add_u32 v6, 6144, v4
v_add_u32 v7, 9216, v4
v_lshl_add_u32 v8, v2, 3, v3
v_lshlrev_b32 v8, 1, v8
v_lshl_add_u32 v9, v2, 2, v3
v_lshlrev_b32 v9, 1, v9
ds_read_u16 v64, v8 offset:{LQ}
ds_read_u16 v65, v8 offset:{LQ+8}
ds_read_u16 v66, v9 offset:{LQ+256}
ds_read_b64 v[230:231], v12 offset:{LFW+32}''')
    a.wave_red('v_add_f32', 229, 21)
    def ld():
        for qq in range(4):
            for k in range(3): a(f'global_load_dwordx4 {vr(16+(qq*3+k)*4,4)}, v{4+qq}, {WS} offset:{1024*k} sc1')
    a.poll(ld, lambda: a.chk_sent(range(16, 64), 9), sleep=P['sl_h4s'])
    a.stamp('h4s')
    a('s_waitcnt lgkmcnt(0)')
    for k in range(3): a(f'v_lshlrev_b32 v{64+k}, 16, v{64+k}')
    for i in range(12):
        a(f'v_add_f32 v{16+i}, v{16+i}, v{28+i}\nv_add_f32 v{40+i}, v{40+i}, v{52+i}')
    for i in range(12): a(f'v_add_f32 v{16+i}, v{16+i}, v{40+i}')
    for i in range(12): a.rnd(16 + i, 16 + i)
    for j in range(4):
        a(f'v_mul_f32 v{68+j}, v{16+j}, v64\nv_fmac_f32 v{68+j}, v{20+j}, v65\nv_fmac_f32 v{68+j}, v{24+j}, v66')
    a.row_red('v_add_f32', [68, 69, 70, 71])
    a.xrow_tr4(68)
    a.rnd(68, 68)
    a('v_mul_f32 v68, s59, v68')
    a.rnd(68, 68)
    a(f'''v_mov_b32 v21, {NEGINF:#x}
v_cmp_gt_u32 vcc, s49, v3
v_cndmask_b32 v68, v21, v68, vcc
v_max3_f32 v69, v68, v228, v230''')
    a.xrow_red('v_max_f32', 69, 70)
    a(f'''v_sub_f32 v68, v68, v69
v_sub_f32 v228, v228, v69
v_sub_f32 v230, v230, v69
v_mul_f32 v68, s56, v68
v_mul_f32 v228, s56, v228
v_mul_f32 v230, s56, v230
v_exp_f32 v68, v68
v_exp_f32 v228, v228
v_exp_f32 v230, v230
v_mov_b32 v70, v68''')
    a.xrow_red('v_add_f32', 70, 71)
    a('v_fmac_f32 v70, v228, v229\nv_fmac_f32 v70, v230, v231')
    a.recip(71, 70, 72)
    a.div(73, 68, 70, 71, 72)
    a.rnd(73, 73)
    a(f'''v_mul_f32 v74, v230, v71
v_mul_f32 v75, v228, v71
v_lshlrev_b32 v4, 2, v3
ds_write_b32 v4, v73 offset:{LFW}
ds_write_b64 v12, v[74:75] offset:{LFW+16}''')
    a.label('LA_nofw')
    a(f'''s_lshl_b32 s40, s3, 7
v_and_b32 v4, 31, v1
v_lshl_add_u32 v4, v4, 2, s40
s_lshl_b32 s40, s3, 7
v_and_b32 v5, 31, v1
v_lshl_add_u32 v5, v5, 1, s40
v_and_b32 v6, 1, v2
v_lshlrev_b32 v6, 6, v6
v_lshl_add_u32 v6, v3, 4, v6
v_add_u32 v6, s40, v6''')
    a.bar()
    a.stamp('b6')
    a.wave_is('lt', 6, 'LA_nov')
    for w in range(8): a(f'ds_read_b32 v{16+w}, v4 offset:{LRP + 768*w}')
    a(f'ds_read_b128 v[24:27], v12 offset:{LFW}\nds_read_b64 v[28:29], v12 offset:{LFW+16}')
    for j in range(4): a(f'v_lshlrev_b32 v{232+j}, 16, v{232+j}')
    a(f'''s_waitcnt lgkmcnt(0)
v_add_f32 v16, v16, v17
v_add_f32 v18, v18, v19
v_add_f32 v20, v20, v21
v_add_f32 v22, v22, v23
v_add_f32 v16, v16, v18
v_add_f32 v20, v20, v22
v_mul_f32 v16, v16, v28
v_fmac_f32 v16, v20, v29
v_fmac_f32 v16, v24, v232
v_fmac_f32 v16, v25, v233
v_fmac_f32 v16, v26, v234
v_fmac_f32 v16, v27, v235
v_cvt_pk_bf16_f32 v17, v16, v16
ds_write_b16 v5, v17 offset:{LCC}
v_and_b32 v18, 0xffff0000, v17
v_sub_f32 v18, v16, v18
v_cvt_pk_bf16_f32 v18, v18, v18
ds_write_b16 v5, v18 offset:{LCC+64}
s_waitcnt lgkmcnt(0)
ds_read_b128 v[224:227], v6 offset:{LCC}
s_waitcnt lgkmcnt(0)''')
    mfma12(a, 128, 224, 176)
    out12(a, 128, 16, LVP)
    a.label('LA_nov')
    a(f'''v_lshlrev_b32 v4, 2, v0
s_mul_i32 s40, s47, 3
s_add_u32 s40, s40, s3
s_lshl_b32 s40, s40, 10
s_lshl_b32 s42, s41, 8
s_add_u32 s40, s40, s42
s_add_u32 s40, s40, {H5}
v_lshl_add_u32 v5, v1, 2, s40''')
    a.bar()
    a.wave_is('lt', 3, 'Lfin')
    for w in range(6): a(f'ds_read_b32 v{16+w}, v4 offset:{LVP + 768*w}')
    a(f'''s_waitcnt lgkmcnt(0)
v_add_f32 v16, v16, v17
v_add_f32 v18, v18, v19
v_add_f32 v20, v20, v21
v_add_f32 v16, v16, v18
v_add_f32 v16, v16, v20
global_store_dword v5, v16, {WS} sc1''')
    a.stamp('h5pub')
    a(f'''s_add_u32 s40, s44, s3
s_cmp_eq_u32 s40, 0
s_cbranch_scc0 Lfin
v_mov_b32 v5, {TAG}
global_store_dword v12, v5, {WS} sc1''')

DEFAULTS = dict(code_last=0x1000, stamps=False, uk_early=True, dma_win=0, warm_loads=1, sl_h1=4, sl_h1b=2, pre_h1b=8, sl_h2=4, sl_h3=4, sl_aux=2, sl_h4s=2, sl_h5=4, sl_h6=4, sl_h7=4)

def generate(**kw):
    P = dict(DEFAULTS); P.update(kw)
    a = G(P)
    a(f'''s_cmp_ge_u32 s2, 256
s_cbranch_scc1 Lend
s_load_dwordx16 s[4:19], s[0:1], 0
s_load_dwordx8 s[20:27], s[0:1], 64
s_load_dwordx4 s[28:31], s[0:1], 96
s_getpc_b64 s[36:37]
Lpc:
v_lshrrev_b32 v4, 6, v0
v_and_b32 v1, 63, v0
v_readfirstlane_b32 s3, v4
v_and_b32 v2, 15, v0
v_lshrrev_b32 v3, 4, v1''')
    if P['stamps']:
        for i in range(20): a(f's_mov_b64 s[{60+2*i}:{61+2*i}], 0')
    if P.get('dbgtime'): a('s_memrealtime s[60:61]')
    a('s_cmp_ge_u32 s2, 128\ns_cbranch_scc1 LA')
    role_B(a)
    namesB = a.stnames; a.stnames = []
    a.label('LA')
    role_A(a)
    namesA = a.stnames
    a.label('Lfin')
    if P['stamps']:
        a(f'''s_waitcnt lgkmcnt(0)
s_lshl_b32 s40, s2, 3
s_add_u32 s40, s40, s3
s_lshl_b32 s40, s40, 7
s_add_u32 s40, s40, {STAMP}
v_mov_b32 v4, s40''')
        for i in range(20): a(f'v_mov_b32 v5, s{60+2*i}\nglobal_store_dword v4, v5, {WS} offset:{4*i}')
    if P.get('dbgtime'):
        a(f'''s_memrealtime s[62:63]
s_waitcnt lgkmcnt(0)
s_not_b32 s60, s60
v_mov_b32 v4, 0
v_mov_b32 v5, s60
v_mov_b32 v6, s62
s_mov_b64 exec, 1
global_atomic_umax v4, v5, s[28:29]
global_atomic_umax v4, v6, s[28:29] offset:4''')
    a.label('Lend')
    a('s_endpgm')
    a.raw('Lcode_end:')
    hdr = open(f'cdna_kernels/{NAME}.s.ref').read().split('; Override launch')[0]
    lds = MISC + 8192 + 256
    txt = hdr + f'''; @launch grid=(256,1,1) block=(512,1,1) lds={lds}
.amdgcn_target "amdgcn-amd-amdhsa--gfx950"
.text
.globl {NAME}_kernel
.p2align 8
.type {NAME}_kernel,@function
.set CODE_LAST, {P['code_last']:#x}
{NAME}_kernel:
''' + a.text() + f'''.section .rodata,"a"
.p2align 6
.amdhsa_kernel {NAME}_kernel
  .amdhsa_next_free_vgpr 256
  .amdhsa_next_free_sgpr 102
  .amdhsa_accum_offset 256
  .amdhsa_group_segment_fixed_size 0
  .amdhsa_kernarg_size 112
  .amdhsa_user_sgpr_count 2
  .amdhsa_user_sgpr_kernarg_segment_ptr 1
  .amdhsa_system_sgpr_workgroup_id_x 1
  .amdhsa_float_denorm_mode_32 3
.end_amdhsa_kernel
'''
    return txt, namesB, namesA

if __name__ == '__main__':
    import json
    out = sys.argv[1]
    kw = {}
    for x in sys.argv[2:]:
        k, v = x.split('='); kw[k] = int(v)
    import subprocess, re
    txt, nb, na = generate(**kw)
    open('_g.s', 'w').write(txt)
    subprocess.check_call(['clang', '-x', 'assembler', '-target', 'amdgcn-amd-amdhsa', '-mcpu=gfx950', '-c', '_g.s', '-o', '_g.o'])
    h = subprocess.check_output(['llvm-objdump', '-h', '_g.o'], text=True)
    size = int(re.search(r'\.text\s+([0-9a-f]+)', h).group(1), 16)
    kw['code_last'] = size - 0x28 - 4
    assert size <= 32768 * kw.get('warm_loads', 1)
    txt, nb, na = generate(**kw)
    print('code bytes', size)
    open(out, 'w').write(txt)
    json.dump({'B': nb, 'A': na}, open(out + '.names.json', 'w'))
```

```python
import sys, struct
sys.path.insert(0, 'gen')
from asmlib import *
NAME = 'adaLN_cond__compressed_kv_cla__dense_activation_relu__decode'

EPOCH, READY, H1, H1B, H2, H3, AUX, H4S, H5 = 0x0, 0x1000, 0x2000, 0x18000, 0x58000, 0x68000, 0x78000, 0x88000, 0xE8000
H6, MODR, H7F, H7X, H4, STAMP = 0x100000, 0x108000, 0x10A000, 0x10B000, 0x200000, 0x4000000
X, CKV, WQ, WUK, WUV, WO, W1, W2, CC, WMOD, OUT, WS = [f's[{i}:{i+1}]' for i in (4, 6, 8, 10, 12, 14, 18, 20, 22, 24, 26, 30)]
TAG, SPIN, PLO, PHI = 's32', 's33', 's34', 's35'
SPINMAX = 20000
def f2u(x): return struct.unpack('<I', struct.pack('<f', x))[0]
L2E = f2u(1.4426950408889634)
L2E_LO = f2u(1.4426950408889634 - struct.unpack('<f', struct.pack('<f', 1.4426950408889634))[0])
LN2 = f2u(0.6931471805599453)
SCALE = f2u(192 ** -0.5)
NEGINF = 0xff800000

class G(Asm):
    def __init__(self, P):
        super().__init__(); self.P = P; self.nst = 0; self.stnames = []
    def stamp(self, name):
        if not self.P.get('stamps'): return
        i = self.stnames.index(name) if name in self.stnames else None
        if i is None:
            self.stnames.append(name); i = len(self.stnames) - 1
        assert i < 20
        self(f's_memrealtime s[{60+2*i}:{61+2*i}]')
    def rnd(self, d, s):
        self(f'v_cvt_pk_bf16_f32 v{d}, v{s}, v{s}\nv_and_b32 v{d}, 0xffff0000, v{d}')
    def wave_is(self, cond, n, lab):
        self(f's_cmp_{cond}_u32 s3, {n}\ns_cbranch_scc0 {lab}')
    def row_red(self, op, regs):
        for k in (8, 4, 2, 1):
            for r in regs: self(f'{op}_dpp v{r}, v{r}, v{r} row_ror:{k} row_mask:0xf bank_mask:0xf')
    def xrow_red(self, op, r, t):
        self(f'v_mov_b32 v{t}, v{r}\nv_permlane16_swap_b32 v{r}, v{t}\n{op} v{r}, v{r}, v{t}')
        self(f'v_mov_b32 v{t}, v{r}\nv_permlane32_swap_b32 v{r}, v{t}\n{op} v{r}, v{r}, v{t}')
    def wave_red(self, op, r, t):
        self.row_red(op, [r]); self.xrow_red(op, r, t)
    def xrow_tr4(self, r):
        self(f'''v_permlane16_swap_b32 v{r}, v{r+1}
v_permlane16_swap_b32 v{r+2}, v{r+3}
v_add_f32 v{r}, v{r}, v{r+1}
v_add_f32 v{r+2}, v{r+2}, v{r+3}
v_permlane32_swap_b32 v{r}, v{r+2}
v_add_f32 v{r}, v{r}, v{r+2}''')
    def recip(self, d, y, t):
        self(f'v_rcp_f32 v{d}, v{y}\nv_fma_f32 v{t}, -v{y}, v{d}, 1.0\nv_fma_f32 v{d}, v{t}, v{d}, v{d}')
    def div(self, d, x, y, rinv, t):
        self(f'v_mul_f32 v{d}, v{x}, v{rinv}\nv_fma_f32 v{t}, -v{y}, v{d}, v{x}\nv_fma_f32 v{d}, v{t}, v{rinv}, v{d}')
    def silu(self, d, x, t):
        self(f'''v_mul_f32 v{t}, s56, v{x}
v_fma_f32 v{t+1}, v{x}, s56, -v{t}
v_fma_f32 v{t+1}, v{x}, s57, v{t+1}
v_exp_f32 v{t}, -v{t}
v_mul_f32 v{t+1}, s58, v{t+1}
v_fma_f32 v{t}, -v{t}, v{t+1}, v{t}
v_min_f32 v{t}, 0x7f000000, v{t}
v_add_f32 v{t}, 1.0, v{t}''')
        self.recip(t + 1, t, t + 2)
        self.div(t + 3, x, t, t + 1, t + 2)
        self.rnd(d, t + 3)
    def perm_block(self, dst, src, nreg=4, rows=8):
        for e in range(2 * nreg):
            for k in range(rows // 2):
                self(f'v_perm_b32 v{dst + e * (rows // 2) + k}, v{src + (2*k+1) * nreg + (e >> 1)}, v{src + 2*k*nreg + (e >> 1)}, {PHI if e & 1 else PLO}')
    def poll(self, loads, check, sleep=2, pre=None):
        top = self.newlabel('Lp'); done = self.newlabel('Ld')
        if pre: self(f's_sleep {pre}')
        self.label(top)
        loads()
        self('s_waitcnt vmcnt(0)')
        check()
        self(f'''s_cbranch_vccz {done}
s_add_u32 {SPIN}, {SPIN}, 1
s_cmp_gt_u32 {SPIN}, {SPINMAX}
s_cbranch_scc1 {done}
s_sleep {sleep}
s_branch {top}''')
        self.label(done)
    def chk_sent(self, regs, t):
        regs = list(regs)
        if len(regs) == 1:
            self(f'v_cmp_eq_u32 vcc, -1, v{regs[0]}'); return
        if len(regs) == 2: self(f'v_max_u32 v{t}, v{regs[0]}, v{regs[1]}'); rest = []
        else: self(f'v_max3_u32 v{t}, v{regs[0]}, v{regs[1]}, v{regs[2]}'); rest = regs[3:]
        while rest:
            if len(rest) >= 2: self(f'v_max3_u32 v{t}, v{t}, v{rest[0]}, v{rest[1]}'); rest = rest[2:]
            else: self(f'v_max_u32 v{t}, v{t}, v{rest[0]}'); rest = []
        self(f'v_cmp_eq_u32 vcc, -1, v{t}')
    def san(self, regs):
        for r in regs: self(f'v_min_u32 v{r}, -2, v{r}')
    def lanes_lt(self, n):
        assert n <= 64
        lo = (1 << min(n, 32)) - 1; hi = (1 << max(n - 32, 0)) - 1
        self(f's_mov_b32 exec_lo, {lo:#x}\ns_mov_b32 exec_hi, {hi:#x}')
    def exec_mask(self, m):
        self(f's_mov_b32 exec_lo, {m & 0xffffffff:#x}\ns_mov_b32 exec_hi, {m >> 32:#x}')
    def full(self): self('s_mov_b64 exec, -1')
    def bar(self): self('s_waitcnt lgkmcnt(0)\ns_barrier')
    def get_tag(self):
        self(f'''v_readfirstlane_b32 {TAG}, v15
s_mul_i32 {TAG}, {TAG}, 0x9E3779B1
s_add_u32 {TAG}, {TAG}, 0x7F4A7C15''')
    def ready_publish(self):
        self(f'''s_waitcnt vmcnt(0)''')
        self.get_tag()
        self(f'''s_lshl_b32 s40, s2, 4
s_add_u32 s40, s40, {READY}
v_mov_b32 v4, s40
v_mov_b32 v5, {TAG}''')
        self.lanes_lt(1)
        self(f'global_store_dword v4, v5, {WS} sc1')
        self.full()
    def ready_check(self):
        self(f'v_lshlrev_b32 v4, 4, v1\nv_add_u32 v4, {READY}, v4')
        def ld():
            for i in range(4): self(f'global_load_dword v{8+i}, v4, {WS} offset:{1024*i} sc1')
        def ck():
            self(f'''v_xor_b32 v8, {TAG}, v8
v_xor_b32 v9, {TAG}, v9
v_xor_b32 v10, {TAG}, v10
v_xor_b32 v11, {TAG}, v11
v_or3_b32 v8, v8, v9, v10
v_or_b32 v8, v8, v11
v_cmp_ne_u32 vcc, 0, v8''')
        self.poll(ld, ck, sleep=4)
    def gemv2(self, D, A, F, first=True):
        for e in range(8):
            c = '0' if first else vr(D + 4*e, 4)
            self(f'v_mfma_f32_16x16x32_bf16 {vr(D+4*e,4)}, {vr(A,4)}, {vr(F+4*e,4)}, {c}')
    def pack2(self, o, D):
        for i in range(4):
            self(f'v_add_f32_dpp v{o+i}, v{D+4*i+1}, v{D+4*i} row_ror:8 row_mask:0xf bank_mask:0x3')
        for i in range(4):
            self(f'v_add_f32_dpp v{o+i}, v{D+4*(i+4)}, v{D+4*(i+4)+1} row_ror:8 row_mask:0xf bank_mask:0xc')
    def load_rows(self, dst, nreg, va, base, pitch, rows=8, pol='nt', t=None):
        op = {1: 'dword', 2: 'dwordx2', 4: 'dwordx4'}[nreg]
        per = 4095 // pitch + 1 if pitch <= 4095 else 1
        for j in range(rows):
            k = j % per
            self(f'global_load_{op} {vr(dst + j*nreg, nreg)}, v{va}, {base} offset:{k*pitch} {pol}')
            if k == per - 1 and j + 1 < rows: self(f'v_add_u32 v{va}, {per*pitch}, v{va}')

def consts(a):
    a(f'''s_mov_b32 {PLO}, 0x05040100
s_mov_b32 {PHI}, 0x07060302
s_mov_b32 {SPIN}, 0
s_mov_b32 s56, {L2E:#x}
s_mov_b32 s57, {L2E_LO:#x}
s_mov_b32 s58, {LN2:#x}
s_mov_b32 s59, {SCALE:#x}''')

def code_warm(a):
    n = a.P['warm_loads']
    a(f'''s_lshr_b32 s40, s2, 3
s_lshl_b32 s40, s40, 10
v_lshlrev_b32 v4, 4, v1
v_add_u32 v4, s40, v4
v_min_u32 v4, CODE_LAST, v4
global_load_dword v14, v4, s[36:37]''')
    if n > 1:
        a(f'''v_add_u32 v4, 32768, v4
v_min_u32 v4, CODE_LAST, v4
global_load_dword v14, v4, s[36:37]''')

CT, SPB, PB, MISC = 0, 98304, 98304 + 34816, 98304 + 34816 + 4608
def role_B(a):
    P = a.P
    a(f'''s_mul_i32 s39, s2, 205
s_lshr_b32 s39, s39, 11          ; b/10
s_mul_i32 s40, s39, 10
s_sub_u32 s38, s2, s40           ; b%10
v_mov_b32 v12, 0
s_waitcnt lgkmcnt(0)''')
    a.stamp('start')
    a.wave_is('lt', 5, 'LB_nos1a')
    a('s_cmp_lt_u32 s2, 80\ns_cbranch_scc0 LB_nos1a')
    a(f'''s_mul_i32 s40, s39, 80
s_lshl_b32 s41, s3, 4
s_add_u32 s40, s40, s41
v_lshl_add_u32 v5, v3, 2, s40      ; row0
v_mul_u32_u24 v4, 7680, v5
v_lshrrev_b32 v6, 3, v2
v_mul_u32_u24 v6, 1152, v6
v_lshl_add_u32 v6, v2, 4, v6
s_lshl_b32 s41, s38, 7
v_add3_u32 v4, v4, v6, s41
v_lshlrev_b32 v5, 1, v5''')
    a(f'global_load_dwordx2 v[32:33], v5, {CC}\nglobal_load_dword v15, v12, {WS} sc1')
    a.load_rows(16, 4, 4, WMOD, 7680, rows=4)
    consts(a)
    a(f'''s_waitcnt vmcnt(4)
v_lshlrev_b32 v36, 16, v32
v_and_b32 v37, 0xffff0000, v32
v_lshlrev_b32 v38, 16, v33
v_and_b32 v39, 0xffff0000, v33''')
    for i in range(4): a.silu(36 + i, 36 + i, 8)
    a(f'''v_perm_b32 v34, v37, v36, {PHI}
v_perm_b32 v35, v39, v38, {PHI}
s_waitcnt vmcnt(0)''')
    a.get_tag()
    a.perm_block(40, 16, nreg=4, rows=4)
    for e in range(8):
        a(f'v_mfma_f32_16x16x16_bf16 {vr(64+4*e,4)}, v[34:35], {vr(40+2*e,2)}, 0')
    a(f'''v_cmp_eq_u32 vcc, 1, v3
v_lshlrev_b32 v4, 5, v2
v_lshl_add_u32 v4, v3, 4, v4
s_lshl_b32 s40, s3, 9
s_add_u32 s40, s40, {MISC}
v_add_u32 v4, s40, v4''')
    for i in range(4): a(f'v_cndmask_b32 v{8+i}, v{64+4*i}, v{64+4*(i+4)}, vcc')
    a.lanes_lt(32)
    a('ds_write_b128 v4, v[8:11]')
    a.full()
    a('s_branch LB_b1')
    a.label('LB_nos1a')
    a(f'global_load_dword v15, v12, {WS} sc1')
    consts(a)
    a.wave_is('eq', 5, 'LB_not5')
    a(f'''v_mov_b32 v8, -1
v_mov_b32 v9, -1
v_mov_b32 v10, -1
v_mov_b32 v11, -1
s_lshl_b32 s40, s2, 4
v_lshlrev_b32 v4, 11, v1
v_add_u32 v4, s40, v4
v_add_u32 v4, {H3}, v4
global_store_dwordx4 v4, v[8:11], {WS} sc1
s_mul_i32 s40, s39, 2560
s_lshl_b32 s41, s38, 8
s_add_u32 s40, s40, s41
s_add_u32 s40, s40, {H6}
s_cmp_lt_u32 s2, 120
s_cselect_b32 s40, s40, {H6 + 30720}
v_lshl_add_u32 v4, v1, 2, s40
global_store_dword v4, v8, {WS} sc1
s_lshl_b32 s40, s2, 7
s_add_u32 s41, s40, {MODR}
s_add_u32 s42, s40, {H7F - 40*128}
s_cmp_lt_u32 s2, 40
s_cselect_b32 s40, s41, s42
s_cmp_lt_u32 s2, 64
s_cselect_b32 s40, s40, {H6 + 30720 + 256}
v_and_b32 v5, 31, v1
v_lshl_add_u32 v4, v5, 2, s40
global_store_dword v4, v8, {WS} sc1
s_cmp_eq_u32 s2, 40
s_cbranch_scc0 LB_nox2c
v_lshlrev_b32 v4, 4, v1
v_add_u32 v4, {H7X}, v4
global_store_dwordx4 v4, v[8:11], {WS} sc1
v_and_b32 v4, 15, v1
v_lshlrev_b32 v4, 4, v4
v_add_u32 v4, {H7X + 1024}, v4
global_store_dwordx4 v4, v[8:11], {WS} sc1
LB_nox2c:''')
    a.ready_publish()
    a('s_branch LB_b1')
    a.label('LB_not5')
    a.wave_is('eq', 6, 'LB_not6')
    code_warm(a)
    a.label('LB_not6')
    a('s_waitcnt vmcnt(0)')
    a.get_tag()
    a.label('LB_b1')
    a.bar()
    a.wave_is('eq', 0, 'LB_dma')
    a('s_cmp_lt_u32 s2, 80\ns_cbranch_scc0 LB_dma')
    a(f'v_lshlrev_b32 v4, 2, v1\nv_add_u32 v4, {MISC}, v4')
    for w in range(5): a(f'ds_read2st64_b32 {vr(16+2*w,2)}, v4 offset0:{2*w} offset1:{2*w+1}')
    a(f'''s_lshl_b32 s40, s38, 13
s_lshl_b32 s41, s39, 7
s_add_u32 s40, s40, s41
s_add_u32 s40, s40, {H1}
v_lshrrev_b32 v5, 3, v1
v_lshlrev_b32 v5, 10, v5
v_and_b32 v6, 7, v1
v_lshl_add_u32 v5, v6, 4, v5
v_add_u32 v5, s40, v5
v_mov_b32 v9, {TAG}
v_mov_b32 v11, {TAG}
s_waitcnt lgkmcnt(0)
v_add_f32 v16, v16, v18
v_add_f32 v17, v17, v19
v_add_f32 v20, v20, v22
v_add_f32 v21, v21, v23
v_add_f32 v16, v16, v20
v_add_f32 v17, v17, v21
v_add_f32 v8, v16, v24
v_add_f32 v10, v17, v25
global_store_dwordx4 v5, v[8:11], {WS} sc1''')
    a.stamp('h1pub')
    a.label('LB_dma')
    a(f'''s_lshl_b32 s40, s2, 6
s_lshl_b32 s41, s3, 3
s_add_u32 s40, s40, s41
s_mul_i32 s40, s40, 1536           ; (64b+8w)*1536
s_and_b32 s41, s3, 1
s_lshl_b32 s41, s41, 3             ; 8*(w&1)
s_mul_i32 s42, s3, 12288
v_cmp_le_u32 vcc, 32, v1
v_add_u32 v5, 64, v1
v_subrev_u32 v6, 32, v1
v_cndmask_b32 v5, v5, v6, vcc
v_cndmask_b32 v7, 0, 1, vcc
v_xor_b32 v5, v5, v7               ; q''_1
v_mul_u32_u24 v7, 1536, v7         ; hi_1*1536
v_add_u32 v6, 32, v1
v_xor_b32 v6, 1, v6                ; q''_2''')
    for i in range(12):
        k, j = divmod(i, 3)
        src = ('v1', 'v5', 'v6')[j]
        a(f's_add_u32 s43, s41, {2*k}\nv_xor_b32 v8, s43, {src}')
        a(f's_add_u32 s44, s40, {2*k*1536 + (1536 if j == 2 else 0)}')
        if j == 1: a('v_lshl_add_u32 v8, v8, 4, v7\nv_add_u32 v8, s44, v8')
        else: a('v_lshl_add_u32 v8, v8, 4, s44')
        a(f's_add_u32 m0, s42, {i*1024}\nglobal_load_lds_dwordx4 v8, {CKV} nt')
        if P.get('dma_win') and i >= P['dma_win'] - 1 and i < 11: a(f's_waitcnt vmcnt({P["dma_win"] - 1})')
    a('s_waitcnt vmcnt(0)')
    a.wave_is('eq', 3, 'LB_nordy')
    a.ready_check()
    a.label('LB_nordy')
    a.bar()
    a.stamp('ckv')
    a(f'''v_lshrrev_b32 v4, 2, v2            ; rr
v_lshl_add_u32 v4, v3, 3, v4       ; 8g+rr
v_and_b32 v5, 3, v1                ; cc
s_mul_i32 s40, s3, 12
v_add_u32 v5, s40, v5              ; 12w+cc''')
    for t in range(3):
        for sub in range(2):
            a(f'''v_add_u32 v6, {4*sub}, v4
v_and_b32 v7, 15, v6
v_add_u32 v8, {4*t}, v5
v_xor_b32 v7, v7, v8
v_mul_u32_u24 v6, 1536, v6
v_lshl_add_u32 v6, v7, 4, v6''')
            for hf in range(2):
                for ks in range(2):
                    r = 160 + ((t*2+hf)*2+ks)*4 + 2*sub
                    a(f'ds_read_b64_tr_b16 {vr(r,2)}, v6 offset:{ks*49152 + hf*8}')
    a.wave_is('ge', 4, 'LB_noqk')
    a('s_sub_u32 s45, s3, 4\ns_mul_i32 s40, s45, 24\nv_add_u32 v5, s40, v3\nv_mul_u32_u24 v4, 1536, v2')
    for s in range(6):
        a(f'v_add_u32 v6, {4*s}, v5\nv_xor_b32 v6, v6, v2\nv_lshl_add_u32 v6, v6, 4, v4\nv_add_u32 v7, 49152, v6')
        for kt in range(4):
            a(f'ds_read_b128 {vr(64+(kt*6+s)*4,4)}, v{6 + (kt >> 1)} offset:{(kt & 1)*24576}')
    a(f'''s_mul_i32 s40, s45, 12288
s_add_u32 s40, s40, {H2}
v_lshlrev_b32 v4, 6, v2
v_lshl_add_u32 v4, v3, 4, v4
v_add_u32 v4, s40, v4
v_add_u32 v5, 4096, v4
v_add_u32 v6, 8192, v4
s_mul_i32 s40, s45, {32*272}
s_add_u32 s40, s40, {SPB}
v_mul_u32_u24 v7, 272, v2
v_lshl_add_u32 v7, v3, 4, v7
v_add_u32 v7, s40, v7
s_waitcnt lgkmcnt(0)''')
    def ld():
        for i in range(12): a(f'global_load_dwordx4 {vr(16+4*i,4)}, v{4 + i//4}, {WS} offset:{(i%4)*1024} sc1')
    a.poll(ld, lambda: a.chk_sent(range(16, 64), 8), sleep=P['sl_h2'])
    a.stamp('h2')
    for kt in range(4):
        for ht in range(2):
            for s in range(6):
                d = 208 + (kt*2+ht)*4
                a(f'v_mfma_f32_16x16x32_bf16 {vr(d,4)}, {vr(64+(kt*6+s)*4,4)}, {vr(16+(s*2+ht)*4,4)}, {"0" if s == 0 else vr(d,4)}')
        if kt >= 1:
            for ht in range(2): a(f'ds_write_b128 v7, {vr(208+((kt-1)*2+ht)*4,4)} offset:{ht*16*272 + (kt-1)*64}')
    for ht in range(2): a(f'ds_write_b128 v7, {vr(208+(3*2+ht)*4,4)} offset:{ht*16*272 + 3*64}')
    a.label('LB_noqk')
    a(f'''s_lshl_b32 s40, s3, 2
v_add_u32 v9, s40, v3              ; head = 4w+g
v_mul_u32_u24 v4, 272, v9
v_lshl_add_u32 v4, v2, 4, v4
v_add_u32 v4, {SPB}, v4
v_mul_u32_u24 v5, 144, v9
v_lshl_add_u32 v5, v2, 3, v5
v_add_u32 v5, {PB}, v5
s_lshl_b32 s40, s2, 4
s_add_u32 s40, s40, {H3}
v_lshl_add_u32 v6, v9, 11, s40
v_lshlrev_b32 v10, 2, v2           ; 4*kq''')
    a.bar()
    a.stamp('qk')
    for i in range(4): a(f'ds_read_b128 {vr(16+4*i,4)}, v4 offset:{8704*i}')
    a('s_waitcnt lgkmcnt(0)')
    for i in range(4):
        a(f'v_add_f32 v{16+i}, v{16+i}, v{20+i}\nv_add_f32 v{24+i}, v{24+i}, v{28+i}')
    for i in range(4):
        a(f'v_add_f32 v{32+i}, v{16+i}, v{24+i}')
    for i in range(4):
        a(f'v_add_u32 v{40+i}, {i}, v10\nv_and_or_b32 v{36+i}, v{32+i}, s46, v{40+i}' if False else
          f'v_add_u32 v{40+i}, {i}, v10\nv_and_b32 v{36+i}, 0xffffffc0, v{32+i}\nv_or_b32 v{36+i}, v{36+i}, v{40+i}')
    a('v_max3_f32 v44, v36, v37, v38\nv_max_f32 v44, v44, v39')
    a.row_red('v_max_f32', [44])
    a.rnd(46, 44)
    a('v_mul_f32 v46, s59, v46')
    a.rnd(46, 46)
    a('v_and_b32 v47, 63, v44')
    a.exec_mask(0x0001000100010001)
    a(f'global_store_dwordx2 v6, v[46:47], {WS} sc1')
    a.full()
    a.stamp('h3pub')
    for i in range(4):
        a.rnd(32 + i, 32 + i)
        a(f'v_mul_f32 v{32+i}, s59, v{32+i}')
        a.rnd(32 + i, 32 + i)
    a(f'v_mov_b32 v11, {NEGINF:#x}')
    for i in range(4):
        a(f'v_cmp_eq_u32 vcc, v{40+i}, v47\nv_cndmask_b32 v{32+i}, v{32+i}, v11, vcc')
    a('v_max3_f32 v48, v32, v33, v34\nv_max_f32 v48, v48, v35')
    a.row_red('v_max_f32', [48])
    for i in range(4):
        a(f'v_sub_f32 v{32+i}, v{32+i}, v48\nv_mul_f32 v{32+i}, s56, v{32+i}\nv_exp_f32 v{32+i}, v{32+i}')
    a(f'''v_cvt_pk_bf16_f32 v36, v32, v33
v_cvt_pk_bf16_f32 v37, v34, v35
ds_write_b64 v5, v[36:37]
v_add_f32 v49, v32, v33
v_add_f32 v50, v34, v35
v_add_f32 v49, v49, v50
v_mul_u32_u24 v4, 144, v2
v_lshl_add_u32 v4, v3, 4, v4
v_add_u32 v4, {PB}, v4''')
    a.row_red('v_add_f32', [49])
    a(f'''s_lshr_b32 s40, s3, 1
s_mul_i32 s40, s40, 49152
s_mul_i32 s41, s2, 384
s_add_u32 s40, s40, s41
s_and_b32 s41, s3, 1
s_mul_i32 s41, s41, 192
s_add_u32 s40, s40, s41
s_add_u32 s40, s40, {H4}
s_mov_b32 s41, 196608
v_mul_lo_u32 v7, v2, s41
v_lshl_add_u32 v7, v3, 4, v7
v_add_u32 v7, s40, v7
v_add_u32 v8, {16*196608}, v7''')
    a.bar()
    for ht in range(2):
        for ks in range(2): a(f'ds_read_b128 {vr(16+(ht*2+ks)*4,4)}, v4 offset:{ht*16*144 + ks*64}')
    a('s_waitcnt lgkmcnt(0)')
    def pv(t, ht):
        for hf in range(2):
            d = 64 + ((t*2+ht)*2+hf)*4
            for ks in range(2):
                a(f'v_mfma_f32_16x16x32_bf16 {vr(d,4)}, {vr(160+((t*2+hf)*2+ks)*4,4)}, {vr(16+(ht*2+ks)*4,4)}, {"0" if ks == 0 else vr(d,4)}')
    def pvst(t, ht):
        d = 64 + (t*2+ht)*8; o = 112 + (t*2+ht)*4
        for k in range(4): a(f'v_cvt_pk_bf16_f32 v{o+k}, v{d+2*k}, v{d+2*k+1}')
        a(f'global_store_dwordx4 v{7+ht}, {vr(o,4)}, {WS} offset:{64*t} sc1')
    seq = [(t, ht) for t in range(3) for ht in range(2)]
    for i, (t, ht) in enumerate(seq):
        pv(t, ht)
        if i >= 2: pvst(*seq[i-2])
    pvst(*seq[4]); pvst(*seq[5])
    a.stamp('pvst')
    a.san([48, 49])
    a(f'v_add_u32 v6, {AUX - H3}, v6\ns_waitcnt vmcnt(0)\ns_barrier')
    a.exec_mask(0x0001000100010001)
    a(f'global_store_dwordx2 v6, v[48:49], {WS} sc1')
    a.full()
    a.stamp('auxpub')
    a('s_cmp_lt_u32 s2, 120\ns_cbranch_scc0 LB_nowo')
    a(f'''s_lshl_b32 s40, s39, 9
s_lshl_b32 s41, s3, 6
s_add_u32 s40, s40, s41
v_lshrrev_b32 v4, 3, v2
v_lshlrev_b32 v4, 5, v4
v_lshl_add_u32 v4, v3, 3, v4
v_add_u32 v4, s40, v4
v_mul_u32_u24 v4, 1280, v4
v_and_b32 v5, 7, v2
v_lshl_add_u32 v4, v5, 4, v4
s_lshl_b32 s40, s38, 7
v_add_u32 v4, s40, v4''')
    a.load_rows(64, 4, 4, WO, 1280)
    a.label('LB_nowo')
    a('s_cmp_lt_u32 s2, 64\ns_cbranch_scc0 LB_r2')
    a.wave_is('lt', 5, 'LB_rdone')
    a(f'''s_lshl_b32 s40, s3, 7
v_lshrrev_b32 v4, 3, v2
v_lshlrev_b32 v4, 5, v4
v_lshl_add_u32 v4, v3, 3, v4
v_add_u32 v4, s40, v4
v_and_b32 v5, 7, v2
s_cmp_lt_u32 s2, 40
s_cbranch_scc0 LB_r1
v_mul_u32_u24 v4, 7680, v4
v_lshl_add_u32 v4, v5, 4, v4
s_lshl_b32 s40, s2, 7
s_add_u32 s40, s40, 2560
v_add_u32 v4, s40, v4
v_add_u32 v5, {64*7680}, v4''')
    a.load_rows(128, 4, 4, WMOD, 7680)
    a.load_rows(160, 4, 5, WMOD, 7680)
    a(f'''v_and_b32 v4, 1, v2
v_lshlrev_b32 v4, 6, v4
v_lshl_add_u32 v4, v3, 4, v4
s_lshl_b32 s40, s3, 8
v_add_u32 v4, s40, v4
global_load_dwordx4 v[16:19], v4, {CC}
global_load_dwordx4 v[20:23], v4, {CC} offset:128
s_branch LB_rdone
LB_r1:
v_mul_u32_u24 v4, 3072, v4
v_lshl_add_u32 v4, v5, 4, v4
s_lshl_b32 s40, s2, 7
s_sub_u32 s40, s40, {40*128}
v_add_u32 v4, s40, v4
v_add_u32 v5, {64*3072}, v4''')
    a.load_rows(128, 4, 4, W1, 3072)
    a.load_rows(160, 4, 5, W1, 3072)
    a(f'v_lshlrev_b32 v4, 2, v0\nglobal_load_dword v24, v4, {X}\ns_branch LB_rdone')
    a.label('LB_r2')
    a('s_cmp_ge_u32 s2, 88\ns_cbranch_scc0 LB_rdone')
    a.wave_is('lt', 6, 'LB_rdone')
    a(f'''s_and_b32 s46, s2, 7
s_mul_i32 s46, s46, 5
s_sub_u32 s40, s2, 88
s_lshr_b32 s40, s40, 3
s_add_u32 s46, s46, s40
s_lshl_b32 s40, s3, 8
v_lshrrev_b32 v4, 1, v2
v_lshlrev_b32 v4, 5, v4
v_lshl_add_u32 v4, v3, 3, v4
v_add_u32 v4, s40, v4
v_mul_u32_u24 v4, 1280, v4
v_and_b32 v5, 1, v2
v_lshl_add_u32 v4, v5, 4, v4
s_lshl_b32 s40, s46, 5
v_add_u32 v4, s40, v4''')
    a.load_rows(128, 4, 4, W2, 1280)
    a.label('LB_rdone')
    a('s_waitcnt vmcnt(0)')
    a.stamp('late')
    a.perm_block(96, 64)
    a.perm_block(192, 128)
    a.perm_block(224, 160)
    a('s_cmp_lt_u32 s2, 40\ns_cbranch_scc0 LB_nomr')
    a.wave_is('lt', 5, 'LB_mrb')
    for i in range(8):
        a(f'v_lshlrev_b32 v32, 16, v{16+i}\nv_and_b32 v33, 0xffff0000, v{16+i}')
        a.silu(32, 32, 8); a.silu(33, 33, 8)
        a(f'v_perm_b32 v{16+i}, v33, v32, {PHI}')
    a.gemv2(128, 16, 192, True)
    a.gemv2(128, 20, 224, False)
    gemv_out_lds(a, 128)
    a.label('LB_mrb')
    a.bar()
    a.wave_is('eq', 0, 'LB_mre')
    sum_pairs(a, 5)
    a(f'''v_cvt_pk_bf16_f32 v8, v16, v17
s_lshl_b32 s40, s2, 7
s_add_u32 s40, s40, {MODR}
v_lshl_add_u32 v4, v1, 2, s40''')
    a.san([8])
    a.lanes_lt(32)
    a(f'global_store_dword v4, v8, {WS} sc1')
    a.full()
    a.label('LB_mre')
    a.bar()
    a.label('LB_nomr')
    a('s_cmp_lt_u32 s2, 120\ns_cbranch_scc0 LB_nowo2')
    a(f'''s_lshl_b32 s40, s39, 3
s_add_u32 s40, s40, s3
s_lshl_b32 s40, s40, 10
s_add_u32 s40, s40, {H5}
v_lshl_add_u32 v4, v1, 4, s40
s_lshl_b32 s40, s3, 7
s_add_u32 s40, s40, {MISC + 4096}
v_lshl_add_u32 v5, v2, 2, v3
v_lshl_add_u32 v5, v5, 1, s40      ; (4p+g)*2
v_and_b32 v6, 1, v2
v_lshlrev_b32 v6, 6, v6
v_lshl_add_u32 v6, v3, 4, v6
v_add_u32 v6, s40, v6''')
    a.poll(lambda: a(f'global_load_dwordx4 v[16:19], v4, {WS} sc1'), lambda: a.chk_sent(range(16, 20), 8), sleep=P['sl_h5'])
    a.stamp('h5')
    a.xrow_tr4(16)
    a('v_cvt_pk_bf16_f32 v16, v16, v16\nds_write_b16 v5, v16\ns_waitcnt lgkmcnt(0)\nds_read_b128 v[20:23], v6\ns_waitcnt lgkmcnt(0)')
    a.gemv2(128, 20, 96, True)
    gemv_out_lds(a, 128)
    a.bar()
    a.wave_is('eq', 0, 'LB_woe')
    a(f'v_lshlrev_b32 v4, 2, v1\nv_add_u32 v4, {MISC}, v4')
    for i in range(4): a(f'ds_read2st64_b32 {vr(16+2*i,2)}, v4 offset0:{2*i} offset1:{2*i+1}')
    a(f'''s_mul_i32 s40, s39, 2560
s_lshl_b32 s41, s38, 8
s_add_u32 s40, s40, s41
s_add_u32 s40, s40, {H6}
v_lshl_add_u32 v4, v1, 2, s40
s_waitcnt lgkmcnt(0)
v_add_f32 v16, v16, v17
v_add_f32 v18, v18, v19
v_add_f32 v20, v20, v21
v_add_f32 v22, v22, v23
v_add_f32 v16, v16, v18
v_add_f32 v20, v20, v22
v_add_f32 v16, v16, v20
global_store_dword v4, v16, {WS} sc1''')
    a.stamp('h6pub')
    a.label('LB_woe')
    a.label('LB_nowo2')
    a('s_cmp_lt_u32 s2, 40\ns_cbranch_scc1 Lfin\ns_cmp_lt_u32 s2, 64\ns_cbranch_scc0 LB_w2')
    a.wave_is('lt', 5, 'LB_w1b')
    a(f'v_lshlrev_b32 v4, 2, v0\nv_add_u32 v4, {MODR}, v4')
    def ld():
        for i in range(3): a(f'global_load_dword v{25+i}, v4, {WS} offset:{1280*i} sc1')
    a.poll(ld, lambda: a.chk_sent(range(25, 28), 8), sleep=8)
    a(f'''v_lshlrev_b32 v4, 3, v0
v_add_u32 v4, {H6}, v4
v_lshlrev_b32 v28, 16, v24
v_and_b32 v29, 0xffff0000, v24     ; x pair
v_lshlrev_b32 v30, 16, v25
v_and_b32 v31, 0xffff0000, v25     ; ga
v_lshlrev_b32 v32, 16, v26
v_and_b32 v33, 0xffff0000, v26     ; sb
v_lshlrev_b32 v34, 16, v27
v_and_b32 v35, 0xffff0000, v27     ; cb
v_add_f32 v34, 1.0, v34
v_add_f32 v35, 1.0, v35''')
    a.rnd(34, 34); a.rnd(35, 35)
    for i in range(1, 6): a(f'v_add_u32 v{8+i}, {5120*i}, v4')
    a('v_mov_b32 v8, v4')
    def ld():
        for i in range(12): a(f'global_load_dwordx2 {vr(40+2*i,2)}, v{8 + i//2}, {WS} offset:{2560*(i%2)} sc1')
    a.poll(ld, lambda: a.chk_sent(range(40, 64), 14), sleep=P['sl_h6'])
    a.stamp('h6')
    for st in (2, 4, 8):
        for i in range(0, 24, 2 * st):
            if i + st < 24:
                a(f'v_add_f32 v{40+i}, v{40+i}, v{40+i+st}\nv_add_f32 v{41+i}, v{41+i}, v{41+i+st}')
    a('v_add_f32 v40, v40, v56\nv_add_f32 v41, v41, v57')
    for i in range(2):
        a.rnd(40 + i, 40 + i)
        a(f'v_mul_f32 v{40+i}, v{30+i}, v{40+i}')
        a.rnd(40 + i, 40 + i)
        a(f'v_add_f32 v{40+i}, v{28+i}, v{40+i}')
        a.rnd(40 + i, 40 + i)
    a(f'v_add_f32 v42, v40, v41\nv_perm_b32 v36, v41, v40, {PHI}')
    a.wave_red('v_add_f32', 42, 43)
    a(f'''v_mul_f32 v42, {f2u(1/128):#x}, v42
v_sub_f32 v44, v40, v42
v_sub_f32 v45, v41, v42
v_mul_f32 v43, v44, v44
v_fmac_f32 v43, v45, v45''')
    a.wave_red('v_add_f32', 43, 44)
    a(f'''s_lshl_b32 s40, s3, 3
s_add_u32 s40, s40, {MISC + 8192}
v_mov_b32 v4, s40
ds_write_b64 v4, v[42:43]
s_cmp_eq_u32 s2, 40
s_cbranch_scc0 LB_w1b
v_lshlrev_b32 v4, 2, v0
v_add_u32 v4, {H7X}, v4''')
    a.san([36])
    a(f'global_store_dword v4, v36, {WS} sc1')
    a.label('LB_w1b')
    a.bar()
    a.wave_is('lt', 5, 'LB_w1c')
    a(f'''v_mov_b32 v4, {MISC + 8192}
ds_read_b128 v[44:47], v4
ds_read_b128 v[48:51], v4 offset:16
ds_read_b64 v[52:53], v4 offset:32
s_lshl_b32 s40, s3, 8
s_add_u32 s40, s40, {MISC + 4096}
v_lshl_add_u32 v5, v1, 2, s40
v_and_b32 v6, 1, v2
v_lshlrev_b32 v6, 6, v6
v_lshl_add_u32 v6, v3, 4, v6
v_add_u32 v6, s40, v6
s_waitcnt lgkmcnt(0)
v_add_f32 v54, v44, v46
v_add_f32 v55, v48, v50
v_add_f32 v54, v54, v55
v_add_f32 v54, v54, v52
v_mul_f32 v54, {f2u(0.2):#x}, v54      ; mean
v_add_f32 v55, v45, v47
v_add_f32 v56, v49, v51
v_add_f32 v55, v55, v56
v_add_f32 v55, v55, v53''')
    a('v_sub_f32 v44, v44, v54\nv_mul_f32 v56, v44, v44')
    for r in (46, 48, 50, 52): a(f'v_sub_f32 v{r}, v{r}, v54\nv_fmac_f32 v56, v{r}, v{r}')
    a(f'v_fmac_f32 v55, {f2u(128.0):#x}, v56\nv_mul_f32 v55, {f2u(1/640):#x}, v55')
    ln_finish(a, 54, 55, 56)
    for i in range(2):
        a(f'v_sub_f32 v{40+i}, v{40+i}, v54')
        a.rnd(40 + i, 40 + i)
        a.div(42 + i, 40 + i, 55, 56, 57)
        a.rnd(42 + i, 42 + i)
        a(f'v_mul_f32 v{42+i}, v{42+i}, v{34+i}')
        a.rnd(42 + i, 42 + i)
        a(f'v_add_f32 v{42+i}, v{42+i}, v{32+i}')
    a('''v_cvt_pk_bf16_f32 v42, v42, v43
ds_write_b32 v5, v42
s_waitcnt lgkmcnt(0)
ds_read_b128 v[16:19], v6
ds_read_b128 v[20:23], v6 offset:128
s_waitcnt lgkmcnt(0)''')
    a.gemv2(128, 16, 192, True)
    a.gemv2(128, 20, 224, False)
    gemv_out_lds(a, 128)
    a.label('LB_w1c')
    a.bar()
    a.wave_is('eq', 0, 'Lfin')
    sum_pairs(a, 5)
    a(f'''v_max_f32 v16, 0, v16
v_max_f32 v17, 0, v17
v_cvt_pk_bf16_f32 v8, v16, v17
s_lshl_b32 s40, s2, 7
s_add_u32 s40, s40, {H7F - 40*128}
v_lshl_add_u32 v4, v1, 2, s40''')
    a.san([8])
    a.lanes_lt(32)
    a(f'global_store_dword v4, v8, {WS} sc1')
    a.full()
    a.stamp('h7pub')
    a('s_branch Lfin')
    a.label('LB_w2')
    a('s_cmp_ge_u32 s2, 88\ns_cbranch_scc0 Lfin')
    a(f'''s_and_b32 s46, s2, 7
s_mul_i32 s46, s46, 5
s_sub_u32 s40, s2, 88
s_lshr_b32 s40, s40, 3
s_add_u32 s46, s46, s40''')
    a.wave_is('lt', 6, 'LB_w2b')
    a(f'''v_lshrrev_b32 v4, 2, v2
v_and_b32 v5, 1, v2
v_lshl_add_u32 v4, v5, 2, v4       ; kb(r)
v_lshlrev_b32 v4, 6, v4
v_lshl_add_u32 v4, v3, 4, v4
s_lshl_b32 s40, s3, 9
s_add_u32 s40, s40, {H7F}
v_add_u32 v4, s40, v4
s_lshl_b32 s40, s3, 9
s_add_u32 s40, s40, {MISC}
v_lshl_add_u32 v5, v2, 5, s40
v_cmp_le_u32 s[42:43], 8, v2''')
    a.poll(lambda: a(f'global_load_dwordx4 v[16:19], v4, {WS} sc1'), lambda: a.chk_sent(range(16, 20), 8), sleep=P['sl_h7'])
    a.stamp('h7')
    a.gemv2(128, 16, 192, True)
    for e in range(8): a(f'v_cndmask_b32 v{24+e}, v{128+4*e}, v{129+4*e}, s[42:43]')
    m = 0
    for p in range(16): m |= 1 << (p + 16 * ((p >> 1) & 3))
    a.exec_mask(m)
    a('ds_write_b128 v5, v[24:27]\nds_write_b128 v5, v[28:31] offset:16')
    a.full()
    a('s_branch LB_w2c')
    a.label('LB_w2b')
    a.wave_is('eq', 7, 'LB_w2c')
    a(f'''s_lshl_b32 s40, s46, 5
v_lshrrev_b32 v4, 1, v2
v_lshl_add_u32 v4, v4, 2, s40
v_add_u32 v5, {MODR + 3*1280}, v4
v_add_u32 v4, {H7X}, v4''')
    a.poll(lambda: a(f'global_load_dword v32, v5, {WS} sc1'), lambda: a.chk_sent([32], 8), sleep=8)
    a.poll(lambda: a(f'global_load_dword v33, v4, {WS} sc1'), lambda: a.chk_sent([33], 8), sleep=P['sl_h7'])
    a(f'''v_and_b32 v6, 1, v2
v_cmp_eq_u32 vcc, 1, v6
v_lshlrev_b32 v34, 16, v32
v_and_b32 v32, 0xffff0000, v32
v_cndmask_b32 v32, v34, v32, vcc
v_lshlrev_b32 v34, 16, v33
v_and_b32 v33, 0xffff0000, v33
v_cndmask_b32 v33, v34, v33, vcc
v_mul_u32_u24 v4, 768, v3
v_lshl_add_u32 v4, v2, 2, v4
v_add_u32 v4, {MISC}, v4
s_lshl_b32 s40, s46, 5
v_lshl_add_u32 v5, v2, 1, s40''')
    a.label('LB_w2c')
    a.bar()
    a.wave_is('eq', 7, 'Lfin')
    for i in range(6): a(f'ds_read2_b32 {vr(16+2*i,2)}, v4 offset0:{32*i} offset1:{32*i+16}')
    a('s_waitcnt lgkmcnt(0)')
    for st in (1, 2, 4):
        for i in range(0, 12, 2 * st):
            if i + st < 12: a(f'v_add_f32 v{16+i}, v{16+i}, v{16+i+st}')
    a('v_add_f32 v16, v16, v24')
    a.xrow_red('v_add_f32', 16, 17)
    a.rnd(16, 16)
    a('v_mul_f32 v16, v32, v16')
    a.rnd(16, 16)
    a('v_add_f32 v16, v33, v16\nv_cvt_pk_bf16_f32 v16, v16, v16')
    a.lanes_lt(16)
    a(f'global_store_short v5, v16, {OUT}')
    a.full()
    a.stamp('out')
    a('s_branch Lfin')

def gemv_out_lds(a, D):
    a(f'''v_and_b32 v4, 7, v2
v_lshlrev_b32 v4, 5, v4
v_lshrrev_b32 v5, 3, v2
v_lshl_add_u32 v4, v5, 4, v4
s_lshl_b32 s40, s3, 8
s_add_u32 s40, s40, {MISC}
v_add_u32 v4, s40, v4''')
    a.pack2(8, D)
    a.lanes_lt(16)
    a('ds_write_b128 v4, v[8:11]')
    a.full()

def sum_pairs(a, n):
    a(f'v_and_b32 v4, 31, v1\nv_lshlrev_b32 v4, 3, v4\nv_add_u32 v4, {MISC}, v4')
    for i in range(n): a(f'ds_read_b64 {vr(16+2*i,2)}, v4 offset:{256*i}')
    a('''s_waitcnt lgkmcnt(0)
v_add_f32 v16, v16, v18
v_add_f32 v17, v17, v19
v_add_f32 v20, v20, v22
v_add_f32 v21, v21, v23
v_add_f32 v16, v16, v20
v_add_f32 v17, v17, v21
v_add_f32 v16, v16, v24
v_add_f32 v17, v17, v25''')

def ln_finish(a, m, v, ri):
    a.rnd(m, m); a.rnd(v, v)
    a(f'v_add_f32 v{v}, {f2u(1e-5):#x}, v{v}')
    a.rnd(v, v)
    a(f'v_sqrt_f32 v{v}, v{v}')
    a.rnd(v, v)
    a.recip(ri, v, ri + 1)

LH, LQ, LKEY, LEK, LWT, LWP, LFW, LKP, LRP, LCC, LVP = 0, 256, 1024, 1536, 2048, 2560, 3072, 4096, 4096 + 18432, 4096 + 18432 + 6144, 4096 + 18432 + 6144 + 1024
def load_uk(a, base, off=128):
    a(f'''s_mul_i32 s40, s41, 192
s_lshl_b32 s42, s3, 5
s_add_u32 s40, s40, s42
v_lshl_add_u32 v4, v3, 3, s40
v_mul_u32_u24 v4, 12288, v4
s_mul_i32 s40, s47, 384
v_add_u32 v4, s40, v4
v_lshl_add_u32 v5, v2, 3, v4
v_lshl_add_u32 v4, v2, 4, v4''')
    for j in range(8):
        a(f'global_load_dwordx4 {vr(off+4*j,4)}, v4, {base} nt')
        a(f'global_load_dwordx2 {vr(off+32+2*j,2)}, v5, {base} offset:256 nt')
        if j < 7: a('v_add_u32 v4, 12288, v4\nv_add_u32 v5, 12288, v5')
def perm12(a, dst, src=128):
    a.perm_block(dst, src, nreg=4); a.perm_block(dst + 32, src + 32, nreg=2)
def mfma12(a, D, A, F):
    for e in range(12): a(f'v_mfma_f32_16x16x32_bf16 {vr(D+4*e,4)}, {vr(A,4)}, {vr(F+4*e,4)}, 0')
def out12(a, D, o, lbase):
    a(f'''s_mul_i32 s40, s3, 768
s_add_u32 s40, s40, {lbase}
v_lshl_add_u32 v4, v2, 5, s40
v_lshl_add_u32 v5, v2, 4, s40''')
    for e in range(12): a(f'v_add_f32 v{o+e}, v{D+4*e}, v{D+4*e+1}')
    a.lanes_lt(16)
    a(f'ds_write_b128 v4, {vr(o,4)}\nds_write_b128 v4, {vr(o+4,4)} offset:16\nds_write_b128 v5, {vr(o+8,4)} offset:512')
    a.full()
def weights_out(a, val, lbase, k):
    a(f'''v_cvt_pk_bf16_f32 v8, v{val}, v{val}
ds_write_b16 v4, v8 offset:{lbase + 128*k}
v_and_b32 v9, 0xffff0000, v8
v_sub_f32 v9, v{val}, v9
v_cvt_pk_bf16_f32 v9, v9, v9
ds_write_b16 v4, v9 offset:{lbase + 256 + 128*k}''')

def role_A(a):
    P = a.P
    a(f'''s_sub_u32 s44, s2, 128
s_mul_i32 s39, s44, 205
s_lshr_b32 s39, s39, 11          ; cb = a/10
s_mul_i32 s40, s39, 10
s_sub_u32 s38, s44, s40          ; T = a%10
s_lshr_b32 s47, s44, 2           ; head
s_and_b32 s41, s44, 3            ; quarter
v_mov_b32 v12, 0
s_lshl_b32 s45, s39, 3
s_add_u32 s45, s45, s3
s_waitcnt lgkmcnt(0)''')
    a.stamp('start')
    a.wave_is('eq', 7, 'LA_not7')
    a(f'''global_load_dword v15, v12, {WS} sc1
v_mov_b32 v8, -1
v_mov_b32 v9, -1
v_mov_b32 v10, -1
v_mov_b32 v11, -1
s_cmp_lt_u32 s44, 120
s_cbranch_scc0 LA_noc1''')
    for i in range(2):
        a(f'''s_lshl_b32 s40, s39, 3
s_add_u32 s40, s40, {4*i}
v_add_u32 v4, s40, v3              ; chunk
v_mul_u32_u24 v5, 43, v4
v_lshrrev_b32 v5, 7, v5            ; head
v_mul_u32_u24 v6, 3, v5
v_sub_u32 v4, v4, v6
v_lshlrev_b32 v4, 8, v4            ; d0*4
v_mul_u32_u24 v5, 7680, v5
v_add_u32 v4, v4, v5
v_lshl_add_u32 v4, v2, 4, v4
s_mul_i32 s40, s38, 768
s_add_u32 s40, s40, {H1B}
v_add_u32 v4, s40, v4
global_store_dwordx4 v4, v[8:11], {WS} sc1''')
    a(f'''LA_noc1:
s_mul_i32 s40, s41, 12288
s_lshr_b32 s42, s47, 4
s_lshl_b32 s42, s42, 10
s_add_u32 s40, s40, s42
s_and_b32 s42, s47, 15
s_lshl_b32 s42, s42, 6
s_add_u32 s40, s40, s42
s_add_u32 s40, s40, {H2}
v_lshrrev_b32 v4, 2, v1
v_min_u32 v4, 5, v4
v_lshlrev_b32 v4, 11, v4
v_and_b32 v5, 3, v1
v_lshl_add_u32 v4, v5, 4, v4
v_add_u32 v4, s40, v4
global_store_dwordx4 v4, v[8:11], {WS} sc1
; H4S 3KB
s_mul_i32 s40, s44, 3072
s_add_u32 s40, s40, {H4S}
v_lshl_add_u32 v4, v1, 4, s40
global_store_dwordx4 v4, v[8:11], {WS} sc1
global_store_dwordx4 v4, v[8:11], {WS} offset:1024 sc1
global_store_dwordx4 v4, v[8:11], {WS} offset:2048 sc1
; H5 3 x 256B
s_mul_i32 s40, s47, 3072
s_lshl_b32 s42, s41, 8
s_add_u32 s40, s40, s42
s_add_u32 s40, s40, {H5}
v_min_u32 v4, 2, v3
v_lshlrev_b32 v4, 10, v4
v_lshl_add_u32 v4, v2, 4, v4
v_add_u32 v4, s40, v4
global_store_dwordx4 v4, v[8:11], {WS} sc1''')
    a.ready_publish()
    a.label('LA_not7')
    a('s_cmp_lt_u32 s44, 120\ns_cbranch_scc0 LA_nowq')
    a(f'''s_lshl_b32 s40, s38, 6
v_lshrrev_b32 v4, 3, v2
v_lshlrev_b32 v4, 5, v4
v_lshl_add_u32 v4, v3, 3, v4
v_add_u32 v4, s40, v4
v_mul_u32_u24 v4, 12288, v4
v_and_b32 v5, 7, v2
v_lshl_add_u32 v4, v5, 4, v4
s_lshl_b32 s40, s45, 7
v_add_u32 v4, s40, v4''')
    a.load_rows(64, 4, 4, WQ, 12288)
    a.label('LA_nowq')
    a(f'''global_load_dword v15, v12, {WS} sc1
v_lshlrev_b32 v4, 2, v1''')
    for k in range(5): a(f'global_load_dword v{16+k}, v4, {X} offset:{256*k}')
    a(f'''s_lshl_b32 s40, s38, 6
s_lshl_b32 s42, s3, 3
s_add_u32 s40, s40, s42
v_and_b32 v5, 7, v1
v_add_u32 v5, s40, v5
v_lshlrev_b32 v5, 1, v5
global_load_ushort v21, v5, {X}''')
    a.wave_is('eq', 6, 'LA_not6')
    code_warm(a)
    a.label('LA_not6')
    consts(a)
    if P['uk_early']:
        a.wave_is('lt', 6, 'LA_nouk0')
        load_uk(a, WUK)
        a('s_waitcnt vmcnt(16)\ns_branch LA_uk0d')
        a.label('LA_nouk0')
        a('s_waitcnt vmcnt(0)')
        a.label('LA_uk0d')
    else:
        a('s_waitcnt vmcnt(0)')
    a.stamp('wq')
    a.get_tag()
    for k in range(5): a(f'v_lshlrev_b32 v{24+2*k}, 16, v{16+k}\nv_and_b32 v{25+2*k}, 0xffff0000, v{16+k}')
    a('v_add_f32 v22, v24, v25')
    for k in range(2, 10): a(f'v_add_f32 v22, v22, v{24+k}')
    a.wave_red('v_add_f32', 22, 23)
    a(f'v_mul_f32 v22, {f2u(1/640):#x}, v22\nv_mov_b32 v23, 0')
    for k in range(10): a(f'v_sub_f32 v{24+k}, v{24+k}, v22\nv_fmac_f32 v23, v{24+k}, v{24+k}')
    a.wave_red('v_add_f32', 23, 24)
    a(f'v_mul_f32 v23, {f2u(1/640):#x}, v23')
    ln_finish(a, 22, 23, 24)
    a('v_lshlrev_b32 v21, 16, v21\nv_sub_f32 v21, v21, v22')
    a.rnd(21, 21)
    a.div(20, 21, 23, 24, 25)
    a.rnd(20, 20)
    a.perm_block(96, 64)
    a('s_cmp_lt_u32 s44, 120\ns_cbranch_scc0 LA_noh1')
    a(f'''s_lshl_b32 s40, s38, 13
s_lshl_b32 s42, s3, 10
s_add_u32 s40, s40, s42
s_add_u32 s40, s40, {H1}
v_lshl_add_u32 v4, v1, 4, s40
s_lshl_b32 s40, s3, 4
v_and_b32 v5, 7, v1
v_lshl_add_u32 v5, v5, 1, s40''')
    def ck():
        a(f'v_xor_b32 v17, {TAG}, v17\nv_xor_b32 v19, {TAG}, v19\nv_or_b32 v17, v17, v19\nv_cmp_ne_u32 vcc, 0, v17')
    a.poll(lambda: a(f'global_load_dwordx4 v[16:19], v4, {WS} sc1'), ck, sleep=P['sl_h1'])
    a.stamp('h1')
    a('''v_add_f32_dpp v16, v16, v16 row_ror:8 row_mask:0xf bank_mask:0xf
v_add_f32_dpp v18, v18, v18 row_ror:8 row_mask:0xf bank_mask:0xf
v_permlane16_swap_b32 v16, v18
v_add_f32 v16, v16, v18
v_mov_b32 v18, v16
v_permlane32_swap_b32 v16, v18
v_add_f32 v16, v16, v18
v_mov_b32 v18, v16
v_permlane16_swap_b32 v16, v18''')
    a.rnd(16, 16); a.rnd(18, 18)
    a('v_add_f32 v18, 1.0, v18')
    a.rnd(18, 18)
    a('v_mul_f32 v18, v20, v18')
    a.rnd(18, 18)
    a(f'v_add_f32 v16, v18, v16\nv_cvt_pk_bf16_f32 v16, v16, v16\nds_write_b16 v5, v16 offset:{LH}')
    a.label('LA_noh1')
    a.wave_is('eq', 7, 'LA_nordy')
    a.ready_check()
    a.label('LA_nordy')
    a(f'''v_and_b32 v6, 1, v2
v_lshlrev_b32 v6, 6, v6
v_lshl_add_u32 v6, v3, 4, v6
s_mul_i32 s40, s45, 43
s_lshr_b32 s40, s40, 7
s_mul_i32 s42, s40, 3
s_sub_u32 s42, s45, s42
s_lshl_b32 s42, s42, 8
s_mul_i32 s40, s40, 7680
s_add_u32 s40, s40, s42
s_mul_i32 s42, s38, 768
s_add_u32 s40, s40, s42
s_add_u32 s40, s40, {H1B}
v_and_b32 v4, 7, v2
v_lshlrev_b32 v4, 5, v4
v_lshrrev_b32 v5, 3, v2
v_lshl_add_u32 v4, v5, 4, v4
v_add_u32 v4, s40, v4''')
    a.bar()
    a('s_cmp_lt_u32 s44, 120\ns_cbranch_scc0 LA_nos2')
    a(f'ds_read_b128 v[16:19], v6 offset:{LH}\ns_waitcnt lgkmcnt(0)')
    a.gemv2(24, 16, 96, True)
    a.pack2(8, 24)
    a.lanes_lt(16)
    a(f'global_store_dwordx4 v4, v[8:11], {WS} sc1')
    a.full()
    a.stamp('qpub')
    a.label('LA_nos2')
    if not P['uk_early']:
        a.wave_is('lt', 6, 'LA_nouk1')
        load_uk(a, WUK)
        a.label('LA_nouk1')
    a(f'''s_mul_i32 s40, s47, 7680
s_mul_i32 s42, s3, 96
s_add_u32 s40, s40, s42
s_add_u32 s40, s40, {H1B}
v_and_b32 v5, 7, v1
v_min_u32 v5, 5, v5
v_lshrrev_b32 v4, 3, v1
v_mul_u32_u24 v4, 768, v4
v_lshl_add_u32 v4, v5, 4, v4
v_add_u32 v4, s40, v4
v_add_u32 v7, 6144, v4
s_mul_i32 s40, s3, 48
v_lshl_add_u32 v5, v5, 2, v3
v_lshl_add_u32 v5, v5, 1, s40      ; (24w+4dq+rho)*2
v_mov_b32 v20, 0
v_mov_b32 v21, 0
v_mov_b32 v22, 0
v_mov_b32 v23, 0''')
    def ld():
        a(f'global_load_dwordx4 v[16:19], v4, {WS} sc1')
        a.lanes_lt(16)
        a(f'global_load_dwordx4 v[20:23], v7, {WS} sc1')
        a.full()
    a.poll(ld, lambda: a.chk_sent(range(16, 24), 8), sleep=P['sl_h1b'], pre=P['pre_h1b'])
    a.stamp('h1b')
    for i in range(4): a(f'v_add_f32 v{16+i}, v{16+i}, v{20+i}')
    for i in range(4): a(f'v_add_f32_dpp v{16+i}, v{16+i}, v{16+i} row_ror:8 row_mask:0xf bank_mask:0xf')
    a.xrow_tr4(16)
    a(f'''v_cvt_pk_bf16_f32 v16, v16, v16
ds_write_b16 v5, v16 offset:{LQ}
v_lshlrev_b32 v4, 4, v2
v_lshlrev_b32 v5, 3, v2
s_mul_i32 s40, s41, 6
s_add_u32 s40, s40, s3
s_lshl_b32 s40, s40, 11
s_lshr_b32 s42, s47, 4
s_lshl_b32 s42, s42, 10
s_add_u32 s40, s40, s42
s_and_b32 s42, s47, 15
s_lshl_b32 s42, s42, 6
s_add_u32 s40, s40, s42
s_add_u32 s40, s40, {H2}
v_lshl_add_u32 v6, v3, 4, v2
v_add_u32 v6, s40, v6''')
    a.bar()
    a.wave_is('lt', 6, 'LA_nos3')
    a(f'ds_read_b128 v[16:19], v4 offset:{LQ}\nds_read_b64 v[20:21], v5 offset:{LQ+256}\ns_waitcnt lgkmcnt(0) vmcnt(0)')
    for k in range(6):
        for j in range(8):
            src = 128 + 4*j + k if k < 4 else 160 + 2*j + (k - 4)
            a(f'v_dot2_f32_bf16 v{24+j}, v{src}, v{16+k}, {"0" if k == 0 else "v%d" % (24+j)}')
    for i in range(4): a(f'v_add_f32_dpp v{32+i}, v{24+i}, v{24+i} row_ror:8 row_mask:0xf bank_mask:0x3')
    for i in range(4): a(f'v_add_f32_dpp v{32+i}, v{28+i}, v{28+i} row_ror:8 row_mask:0xf bank_mask:0xc')
    for i in range(2): a(f'v_add_f32_dpp v{36+i}, v{32+i}, v{32+i} row_shl:4 row_mask:0xf bank_mask:0x5')
    for i in range(2): a(f'v_add_f32_dpp v{36+i}, v{34+i}, v{34+i} row_shr:4 row_mask:0xf bank_mask:0xa')
    for qp in ('[2,3,0,1]', '[1,0,3,2]'):
        for i in range(2): a(f'v_add_f32_dpp v{36+i}, v{36+i}, v{36+i} quad_perm:{qp} row_mask:0xf bank_mask:0xf')
    a('v_cvt_pk_bf16_f32 v36, v36, v37')
    a.san([36])
    a.exec_mask(0x1111111111111111)
    a(f'global_store_dword v6, v36, {WS} sc1')
    a.full()
    a.stamp('h2pub')
    perm12(a, 64)
    load_uk(a, WUV)
    a('s_waitcnt vmcnt(0)')
    perm12(a, 176)
    a.stamp('wuv')
    a.label('LA_nos3')
    a.wave_is('eq', 7, 'LA_noh3')
    a(f'''s_lshl_b32 s40, s47, 11
s_add_u32 s40, s40, {H3}
v_lshl_add_u32 v4, v1, 4, s40''')
    a.poll(lambda: a(f'global_load_dwordx2 v[16:17], v4, {WS} sc1\nglobal_load_dwordx2 v[18:19], v4, {WS} offset:1024 sc1'),
           lambda: a.chk_sent(range(16, 20), 8), sleep=P['sl_h3'])
    a.stamp('h3')
    a('v_max_f32 v20, v16, v18')
    a.wave_red('v_max_f32', 20, 21)
    a(f'''v_and_b32 v21, 0x7f800000, v20
v_fma_f32 v20, v21, s48, v20
v_and_b32 v17, 63, v17
v_and_b32 v19, 63, v19
v_lshl_add_u32 v17, v1, 6, v17
v_lshl_add_u32 v19, v1, 6, v19
v_add_u32 v19, 4096, v19
v_cmp_ge_f32 s[50:51], v16, v20
v_cmp_ge_f32 s[52:53], v18, v20
v_lshlrev_b32 v4, 2, v1
ds_write2st64_b32 v4, v17, v19 offset0:{LKEY//256} offset1:{LKEY//256+1}'''.replace('v_fma_f32 v20, v21, s48, v20', f's_mov_b32 s48, {f2u(-1/64):#x}\nv_fma_f32 v20, v21, s48, v20'))
    a.lanes_lt(4)
    a(f'ds_write_b32 v4, v17 offset:{LEK}')
    a.full()
    a(f'''s_bcnt1_i32_b64 s49, s[50:51]
v_mbcnt_lo_u32_b32 v22, s50, 0
v_mbcnt_hi_u32_b32 v22, s51, v22
v_mov_b32 v23, s49
v_mbcnt_lo_u32_b32 v23, s52, v23
v_mbcnt_hi_u32_b32 v23, s53, v23
s_bcnt1_i32_b64 s54, s[52:53]
s_add_u32 s49, s49, s54
s_min_u32 s49, s49, 4              ; nE
v_cmp_gt_u32 vcc, 4, v22
s_and_b64 s[50:51], s[50:51], vcc
v_cmp_gt_u32 vcc, 4, v23
s_and_b64 s[52:53], s[52:53], vcc
v_lshlrev_b32 v22, 2, v22
v_lshlrev_b32 v23, 2, v23
s_mov_b64 exec, s[50:51]
ds_write_b32 v22, v17 offset:{LEK}
s_mov_b64 exec, s[52:53]
ds_write_b32 v23, v19 offset:{LEK}
s_mov_b64 exec, -1
v_mov_b32 v21, {NEGINF:#x}
v_cndmask_b32 v16, v16, v21, s[50:51]
v_cndmask_b32 v18, v18, v21, s[52:53]
v_max_f32 v228, v16, v18''')
    a.wave_red('v_max_f32', 228, 21)
    a(f'''v_sub_f32 v16, v16, v228
v_sub_f32 v18, v18, v228
v_mul_f32 v16, s56, v16
v_mul_f32 v18, s56, v18
v_exp_f32 v16, v16
v_exp_f32 v18, v18
v_lshlrev_b32 v4, 1, v1''')
    weights_out(a, 16, LWT, 0); weights_out(a, 18, LWT, 1)
    a('v_add_f32 v229, v16, v18')
    a.label('LA_noh3')
    a.bar()
    a.stamp('b3')
    a.wave_is('lt', 6, 'LA_noe')
    a(f'''v_and_b32 v4, 3, v2
v_lshlrev_b32 v4, 2, v4
ds_read_b32 v5, v4 offset:{LEK}
ds_read_b128 v[8:11], v12 offset:{LEK}
s_mul_i32 s40, s41, 384
s_lshl_b32 s42, s3, 6
s_add_u32 s40, s40, s42
v_lshl_add_u32 v6, v3, 4, s40
v_and_b32 v7, 31, v1
v_lshl_add_u32 v7, v7, 1, s40
s_waitcnt lgkmcnt(0)
v_mad_u32_u24 v5, v5, s55, v6
global_load_dwordx4 v[224:227], v5, {CKV}'''.replace('v_mad_u32_u24 v5, v5, s55, v6', 's_movk_i32 s55, 1536\nv_mad_u32_u24 v5, v5, s55, v6'))
    for j in range(4): a(f'v_mad_u32_u24 v{8+j}, v{8+j}, s55, v7\nglobal_load_ushort v{232+j}, v{8+j}, {CKV}')
    a.label('LA_noe')
    a.wave_is('ge', 4, 'LA_notop')
    a(f'''s_sub_u32 s40, s3, 4
s_lshl_b32 s40, s40, 7
v_lshl_add_u32 v4, v3, 5, s40
ds_read_b128 v[240:243], v4 offset:{LKEY}
ds_read_b128 v[244:247], v4 offset:{LKEY+16}
s_movk_i32 s55, 1536
s_mul_i32 s40, s41, 384
v_lshl_add_u32 v6, v2, 4, s40
v_lshlrev_b32 v7, 3, v2
s_waitcnt lgkmcnt(0)''')
    for j in range(8):
        a(f'''v_mad_u32_u24 v{240+j}, v{240+j}, s55, v6
global_load_dwordx4 {vr(128+4*j,4)}, v{240+j}, {CKV}
v_sub_u32 v{240+j}, v{240+j}, v7
global_load_dwordx2 {vr(160+2*j,2)}, v{240+j}, {CKV} offset:256''')
    a.label('LA_notop')
    a.wave_is('lt', 6, 'LA_nok')
    a.wave_is('lt', 4, 'LA_k45')
    a('s_waitcnt vmcnt(4)\ns_branch LA_kgo')
    a.label('LA_k45')
    a('s_waitcnt vmcnt(20)')
    a.label('LA_kgo')
    mfma12(a, 16, 224, 64)
    a(f'''s_mul_i32 s40, s3, 3072
s_add_u32 s40, s40, {LKP}
v_lshl_add_u32 v4, v2, 4, s40''')
    a.lanes_lt(16)
    for e in range(12): a(f'ds_write_b128 v4, {vr(16+4*e,4)} offset:{256*e}')
    a.full()
    a.label('LA_nok')
    a.wave_is('eq', 6, 'LA_noaux')
    a(f'''s_lshl_b32 s40, s47, 11
s_add_u32 s40, s40, {AUX}
v_lshl_add_u32 v4, v1, 4, s40''')
    a.poll(lambda: a(f'global_load_dwordx2 v[16:17], v4, {WS} sc1\nglobal_load_dwordx2 v[18:19], v4, {WS} offset:1024 sc1'),
           lambda: a.chk_sent(range(16, 20), 8), sleep=P['sl_aux'])
    a.stamp('aux')
    a('v_max_f32 v20, v16, v18')
    a.wave_red('v_max_f32', 20, 21)
    a(f'''v_sub_f32 v16, v16, v20
v_sub_f32 v18, v18, v20
v_mul_f32 v16, s56, v16
v_mul_f32 v18, s56, v18
v_exp_f32 v16, v16
v_exp_f32 v18, v18
v_lshlrev_b32 v4, 1, v1''')
    weights_out(a, 16, LWP, 0); weights_out(a, 18, LWP, 1)
    a('v_mul_f32 v21, v16, v17\nv_fmac_f32 v21, v18, v19')
    a.wave_red('v_add_f32', 21, 22)
    a(f'ds_write_b64 v12, v[20:21] offset:{LFW+32}')
    a.label('LA_noaux')
    a.bar()
    a.stamp('b45')
    a.wave_is('lt', 4, 'LA_nog')
    a(f'''s_lshl_b32 s40, s44, 7
s_lshl_b32 s42, s3, 5
s_add_u32 s40, s40, s42
v_lshl_add_u32 v4, v3, 3, s40
v_mul_u32_u24 v4, 384, v4
v_add_u32 v4, {H4}, v4
v_lshl_add_u32 v5, v2, 3, v4
v_lshl_add_u32 v4, v2, 4, v4''')
    a.wave_is('lt', 3, 'LA_nopub')
    a(f'v_lshlrev_b32 v6, 4, v0\nv_add_u32 v7, {LKP}, v6')
    for w in range(6): a(f'ds_read_b128 {vr(16+4*w,4)}, v7 offset:{3072*w}')
    a(f's_mul_i32 s40, s44, 3072\ns_add_u32 s40, s40, {H4S}\nv_add_u32 v6, s40, v6\ns_waitcnt lgkmcnt(0)')
    for i in range(4):
        a(f'v_add_f32 v{16+i}, v{16+i}, v{20+i}\nv_add_f32 v{24+i}, v{24+i}, v{28+i}\nv_add_f32 v{32+i}, v{32+i}, v{36+i}')
    for i in range(4): a(f'v_add_f32 v{16+i}, v{16+i}, v{24+i}\nv_add_f32 v{16+i}, v{16+i}, v{32+i}')
    a(f'global_store_dwordx4 v6, v[16:19], {WS} sc1')
    a.stamp('kpub')
    a.label('LA_nopub')
    for j in range(8):
        a(f'global_load_dwordx4 {vr(128+4*j,4)}, v4, {WS} offset:{384*j} sc1')
        a(f'global_load_dwordx2 {vr(160+2*j,2)}, v5, {WS} offset:{384*j+256} sc1')
    a.label('LA_nog')
    a(f'''s_and_b32 s40, s3, 3
s_lshl_b32 s40, s40, 6
s_add_u32 s42, s40, {LWP}
s_add_u32 s40, s40, {LWT}
s_cmp_lt_u32 s3, 4
s_cselect_b32 s40, s42, s40
v_and_b32 v4, 1, v2
v_lshlrev_b32 v4, 8, v4
v_lshl_add_u32 v4, v3, 4, v4
v_add_u32 v4, s40, v4
ds_read_b128 v[224:227], v4
s_waitcnt vmcnt(0) lgkmcnt(0)''')
    a.stamp('gath')
    perm12(a, 16)
    mfma12(a, 128, 224, 16)
    out12(a, 128, 16, LRP)
    a.wave_is('eq', 7, 'LA_nofw')
    a(f'''s_mul_i32 s40, s47, 12288
s_add_u32 s40, s40, {H4S}
v_lshl_add_u32 v4, v1, 4, s40
v_add_u32 v5, 3072, v4
v_add_u32 v6, 6144, v4
v_add_u32 v7, 9216, v4
v_lshl_add_u32 v8, v2, 3, v3
v_lshlrev_b32 v8, 1, v8
v_lshl_add_u32 v9, v2, 2, v3
v_lshlrev_b32 v9, 1, v9
ds_read_u16 v64, v8 offset:{LQ}
ds_read_u16 v65, v8 offset:{LQ+8}
ds_read_u16 v66, v9 offset:{LQ+256}
ds_read_b64 v[230:231], v12 offset:{LFW+32}''')
    a.wave_red('v_add_f32', 229, 21)
    def ld():
        for qq in range(4):
            for k in range(3): a(f'global_load_dwordx4 {vr(16+(qq*3+k)*4,4)}, v{4+qq}, {WS} offset:{1024*k} sc1')
    a.poll(ld, lambda: a.chk_sent(range(16, 64), 9), sleep=P['sl_h4s'])
    a.stamp('h4s')
    a('s_waitcnt lgkmcnt(0)')
    for k in range(3): a(f'v_lshlrev_b32 v{64+k}, 16, v{64+k}')
    for i in range(12):
        a(f'v_add_f32 v{16+i}, v{16+i}, v{28+i}\nv_add_f32 v{40+i}, v{40+i}, v{52+i}')
    for i in range(12): a(f'v_add_f32 v{16+i}, v{16+i}, v{40+i}')
    for i in range(12): a.rnd(16 + i, 16 + i)
    for j in range(4):
        a(f'v_mul_f32 v{68+j}, v{16+j}, v64\nv_fmac_f32 v{68+j}, v{20+j}, v65\nv_fmac_f32 v{68+j}, v{24+j}, v66')
    a.row_red('v_add_f32', [68, 69, 70, 71])
    a.xrow_tr4(68)
    a.rnd(68, 68)
    a('v_mul_f32 v68, s59, v68')
    a.rnd(68, 68)
    a(f'''v_mov_b32 v21, {NEGINF:#x}
v_cmp_gt_u32 vcc, s49, v3
v_cndmask_b32 v68, v21, v68, vcc
v_max3_f32 v69, v68, v228, v230''')
    a.xrow_red('v_max_f32', 69, 70)
    a(f'''v_sub_f32 v68, v68, v69
v_sub_f32 v228, v228, v69
v_sub_f32 v230, v230, v69
v_mul_f32 v68, s56, v68
v_mul_f32 v228, s56, v228
v_mul_f32 v230, s56, v230
v_exp_f32 v68, v68
v_exp_f32 v228, v228
v_exp_f32 v230, v230
v_mov_b32 v70, v68''')
    a.xrow_red('v_add_f32', 70, 71)
    a('v_fmac_f32 v70, v228, v229\nv_fmac_f32 v70, v230, v231')
    a.recip(71, 70, 72)
    a.div(73, 68, 70, 71, 72)
    a.rnd(73, 73)
    a(f'''v_mul_f32 v74, v230, v71
v_mul_f32 v75, v228, v71
v_lshlrev_b32 v4, 2, v3
ds_write_b32 v4, v73 offset:{LFW}
ds_write_b64 v12, v[74:75] offset:{LFW+16}''')
    a.label('LA_nofw')
    a(f'''s_lshl_b32 s40, s3, 7
v_and_b32 v4, 31, v1
v_lshl_add_u32 v4, v4, 2, s40
s_lshl_b32 s40, s3, 7
v_and_b32 v5, 31, v1
v_lshl_add_u32 v5, v5, 1, s40
v_and_b32 v6, 1, v2
v_lshlrev_b32 v6, 6, v6
v_lshl_add_u32 v6, v3, 4, v6
v_add_u32 v6, s40, v6''')
    a.bar()
    a.stamp('b6')
    a.wave_is('lt', 6, 'LA_nov')
    for w in range(8): a(f'ds_read_b32 v{16+w}, v4 offset:{LRP + 768*w}')
    a(f'ds_read_b128 v[24:27], v12 offset:{LFW}\nds_read_b64 v[28:29], v12 offset:{LFW+16}')
    for j in range(4): a(f'v_lshlrev_b32 v{232+j}, 16, v{232+j}')
    a(f'''s_waitcnt lgkmcnt(0)
v_add_f32 v16, v16, v17
v_add_f32 v18, v18, v19
v_add_f32 v20, v20, v21
v_add_f32 v22, v22, v23
v_add_f32 v16, v16, v18
v_add_f32 v20, v20, v22
v_mul_f32 v16, v16, v28
v_fmac_f32 v16, v20, v29
v_fmac_f32 v16, v24, v232
v_fmac_f32 v16, v25, v233
v_fmac_f32 v16, v26, v234
v_fmac_f32 v16, v27, v235
v_cvt_pk_bf16_f32 v17, v16, v16
ds_write_b16 v5, v17 offset:{LCC}
v_and_b32 v18, 0xffff0000, v17
v_sub_f32 v18, v16, v18
v_cvt_pk_bf16_f32 v18, v18, v18
ds_write_b16 v5, v18 offset:{LCC+64}
s_waitcnt lgkmcnt(0)
ds_read_b128 v[224:227], v6 offset:{LCC}
s_waitcnt lgkmcnt(0)''')
    mfma12(a, 128, 224, 176)
    out12(a, 128, 16, LVP)
    a.label('LA_nov')
    a(f'''v_lshlrev_b32 v4, 2, v0
s_mul_i32 s40, s47, 3
s_add_u32 s40, s40, s3
s_lshl_b32 s40, s40, 10
s_lshl_b32 s42, s41, 8
s_add_u32 s40, s40, s42
s_add_u32 s40, s40, {H5}
v_lshl_add_u32 v5, v1, 2, s40''')
    a.bar()
    a.wave_is('lt', 3, 'Lfin')
    for w in range(6): a(f'ds_read_b32 v{16+w}, v4 offset:{LVP + 768*w}')
    a(f'''s_waitcnt lgkmcnt(0)
v_add_f32 v16, v16, v17
v_add_f32 v18, v18, v19
v_add_f32 v20, v20, v21
v_add_f32 v16, v16, v18
v_add_f32 v16, v16, v20
global_store_dword v5, v16, {WS} sc1''')
    a.stamp('h5pub')
    a(f'''s_add_u32 s40, s44, s3
s_cmp_eq_u32 s40, 0
s_cbranch_scc0 Lfin
v_mov_b32 v5, {TAG}
global_store_dword v12, v5, {WS} sc1''')

DEFAULTS = dict(code_last=0x1000, stamps=False, uk_early=True, dma_win=0, warm_loads=1, sl_h1=4, sl_h1b=2, pre_h1b=8, sl_h2=4, sl_h3=4, sl_aux=2, sl_h4s=2, sl_h5=4, sl_h6=4, sl_h7=4)

def generate(**kw):
    P = dict(DEFAULTS); P.update(kw)
    a = G(P)
    a(f'''s_cmp_ge_u32 s2, 256
s_cbranch_scc1 Lend
s_load_dwordx16 s[4:19], s[0:1], 0
s_load_dwordx8 s[20:27], s[0:1], 64
s_load_dwordx4 s[28:31], s[0:1], 96
s_getpc_b64 s[36:37]
Lpc:
v_lshrrev_b32 v4, 6, v0
v_and_b32 v1, 63, v0
v_readfirstlane_b32 s3, v4
v_and_b32 v2, 15, v0
v_lshrrev_b32 v3, 4, v1''')
    if P['stamps']:
        for i in range(20): a(f's_mov_b64 s[{60+2*i}:{61+2*i}], 0')
    if P.get('dbgtime'): a('s_memrealtime s[60:61]')
    a('s_cmp_ge_u32 s2, 128\ns_cbranch_scc1 LA')
    role_B(a)
    namesB = a.stnames; a.stnames = []
    a.label('LA')
    role_A(a)
    namesA = a.stnames
    a.label('Lfin')
    if P['stamps']:
        a(f'''s_waitcnt lgkmcnt(0)
s_lshl_b32 s40, s2, 3
s_add_u32 s40, s40, s3
s_lshl_b32 s40, s40, 7
s_add_u32 s40, s40, {STAMP}
v_mov_b32 v4, s40''')
        for i in range(20): a(f'v_mov_b32 v5, s{60+2*i}\nglobal_store_dword v4, v5, {WS} offset:{4*i}')
    if P.get('dbgtime'):
        a(f'''s_memrealtime s[62:63]
s_cmp_eq_u32 s3, 7
s_cbranch_scc0 Lend
s_and_b32 s40, s2, 31
s_cmp_eq_u32 s40, 31
s_cbranch_scc0 Lend
s_waitcnt lgkmcnt(0)
s_lshr_b32 s40, s2, 5
s_lshl_b32 s40, s40, 3
v_mov_b32 v4, s40
v_mov_b32 v6, s60
v_mov_b32 v7, s62
s_mov_b64 exec, 1
global_store_dwordx2 v4, v[6:7], s[28:29]''')
    a.label('Lend')
    a('s_endpgm')
    a.raw('Lcode_end:')
    hdr = open(f'cdna_kernels/{NAME}.s.ref').read().split('; Override launch')[0]
    lds = MISC + 8192 + 256
    txt = hdr + f'''; @launch grid=(256,1,1) block=(512,1,1) lds={lds}
.amdgcn_target "amdgcn-amd-amdhsa--gfx950"
.text
.globl {NAME}_kernel
.p2align 8
.type {NAME}_kernel,@function
.set CODE_LAST, {P['code_last']:#x}
{NAME}_kernel:
''' + a.text() + f'''.section .rodata,"a"
.p2align 6
.amdhsa_kernel {NAME}_kernel
  .amdhsa_next_free_vgpr 256
  .amdhsa_next_free_sgpr 102
  .amdhsa_accum_offset 256
  .amdhsa_group_segment_fixed_size 0
  .amdhsa_kernarg_size 112
  .amdhsa_user_sgpr_count 2
  .amdhsa_user_sgpr_kernarg_segment_ptr 1
  .amdhsa_system_sgpr_workgroup_id_x 1
  .amdhsa_float_denorm_mode_32 3
.end_amdhsa_kernel
'''
    return txt, namesB, namesA

if __name__ == '__main__':
    import json
    out = sys.argv[1]
    kw = {}
    for x in sys.argv[2:]:
        k, v = x.split('='); kw[k] = int(v)
    import subprocess, re
    txt, nb, na = generate(**kw)
    open('_g.s', 'w').write(txt)
    subprocess.check_call(['clang', '-x', 'assembler', '-target', 'amdgcn-amd-amdhsa', '-mcpu=gfx950', '-c', '_g.s', '-o', '_g.o'])
    h = subprocess.check_output(['llvm-objdump', '-h', '_g.o'], text=True)
    size = int(re.search(r'\.text\s+([0-9a-f]+)', h).group(1), 16)
    kw['code_last'] = size - 0x28 - 4
    assert size <= 32768 * kw.get('warm_loads', 1)
    txt, nb, na = generate(**kw)
    print('code bytes', size)
    open(out, 'w').write(txt)
    json.dump({'B': nb, 'A': na}, open(out + '.names.json', 'w'))
```

```python
import sys, struct
sys.path.insert(0, 'gen')
from asmlib import *
NAME = 'adaLN_cond__compressed_kv_cla__dense_activation_relu__decode'

EPOCH, READY, H1, H1B, H2, H3, AUX, H4S, H5 = 0x0, 0x1000, 0x2000, 0x120000, 0x58000, 0x68000, 0x1A0000, 0x88000, 0xE8000
H6, MODR, H7F, H7X, H4, STAMP = 0x100000, 0x108000, 0x110000, 0x111000, 0x200000, 0x4000000
H7Y = 0x110000
DB3, DB4, ELIST, SIDE = 0x1E0000, 0x1E4000, 0x1F8000, 0x18000
X, CKV, WQ, WUK, WUV, WO, W1, W2, CC, WMOD, OUT, WS = [f's[{i}:{i+1}]' for i in (4, 6, 8, 10, 12, 14, 18, 20, 22, 24, 26, 30)]
TAG, SPIN, PLO, PHI = 's32', 's33', 's34', 's35'
SPINMAX = 20000
def f2u(x): return struct.unpack('<I', struct.pack('<f', x))[0]
L2E = f2u(1.4426950408889634)
L2E_LO = f2u(1.4426950408889634 - struct.unpack('<f', struct.pack('<f', 1.4426950408889634))[0])
LN2 = f2u(0.6931471805599453)
SCALE = f2u(192 ** -0.5)
NEGINF = 0xff800000

class G(Asm):
    def __init__(self, P):
        super().__init__(); self.P = P; self.nst = 0; self.stnames = []
    def stamp(self, name):
        if not self.P.get('stamps'): return
        i = self.stnames.index(name) if name in self.stnames else None
        if i is None:
            self.stnames.append(name); i = len(self.stnames) - 1
        assert i < 21
        self(f's_memrealtime s[{60+2*i}:{61+2*i}]')
    def rnd(self, d, s):
        self(f'v_cvt_pk_bf16_f32 v{d}, v{s}, v{s}\nv_and_b32 v{d}, 0xffff0000, v{d}')
    def wave_is(self, cond, n, lab):
        self(f's_cmp_{cond}_u32 s3, {n}\ns_cbranch_scc0 {lab}')
    def row_red(self, op, regs):
        for k in (8, 4, 2, 1):
            for r in regs: self(f'{op}_dpp v{r}, v{r}, v{r} row_ror:{k} row_mask:0xf bank_mask:0xf')
    def xrow_red(self, op, r, t):
        self(f'v_mov_b32 v{t}, v{r}\nv_permlane16_swap_b32 v{r}, v{t}\n{op} v{r}, v{r}, v{t}')
        self(f'v_mov_b32 v{t}, v{r}\nv_permlane32_swap_b32 v{r}, v{t}\n{op} v{r}, v{r}, v{t}')
    def wave_red(self, op, r, t):
        self.row_red(op, [r]); self.xrow_red(op, r, t)
    def xrow_tr4(self, r):
        self(f'''v_permlane16_swap_b32 v{r}, v{r+1}
v_permlane16_swap_b32 v{r+2}, v{r+3}
v_add_f32 v{r}, v{r}, v{r+1}
v_add_f32 v{r+2}, v{r+2}, v{r+3}
v_permlane32_swap_b32 v{r}, v{r+2}
v_add_f32 v{r}, v{r}, v{r+2}''')
    def recip(self, d, y, t):
        self(f'v_rcp_f32 v{d}, v{y}\nv_fma_f32 v{t}, -v{y}, v{d}, 1.0\nv_fma_f32 v{d}, v{t}, v{d}, v{d}')
    def div(self, d, x, y, rinv, t):
        self(f'v_mul_f32 v{d}, v{x}, v{rinv}\nv_fma_f32 v{t}, -v{y}, v{d}, v{x}\nv_fma_f32 v{d}, v{t}, v{rinv}, v{d}')
    def silu(self, d, x, t):
        self(f'''v_mul_f32 v{t}, s56, v{x}
v_fma_f32 v{t+1}, v{x}, s56, -v{t}
v_fma_f32 v{t+1}, v{x}, s57, v{t+1}
v_exp_f32 v{t}, -v{t}
v_mul_f32 v{t+1}, s58, v{t+1}
v_fma_f32 v{t}, -v{t}, v{t+1}, v{t}
v_min_f32 v{t}, 0x7f000000, v{t}
v_add_f32 v{t}, 1.0, v{t}''')
        self.recip(t + 1, t, t + 2)
        self.div(t + 3, x, t, t + 1, t + 2)
        self.rnd(d, t + 3)
    def perm_block(self, dst, src, nreg=4, rows=8):
        for e in range(2 * nreg):
            for k in range(rows // 2):
                self(f'v_perm_b32 v{dst + e * (rows // 2) + k}, v{src + (2*k+1) * nreg + (e >> 1)}, v{src + 2*k*nreg + (e >> 1)}, {PHI if e & 1 else PLO}')
    def poll(self, loads, check, sleep=2, pre=None):
        top = self.newlabel('Lp'); done = self.newlabel('Ld')
        if pre: self(f's_sleep {pre}')
        self.label(top)
        loads()
        self('s_waitcnt vmcnt(0)')
        check()
        self(f'''s_cbranch_vccz {done}
s_add_u32 {SPIN}, {SPIN}, 1
s_cmp_gt_u32 {SPIN}, {SPINMAX}
s_cbranch_scc1 {done}
s_sleep {sleep}
s_branch {top}''')
        self.label(done)
    def probe(self, va, t, off=0, sleep=1, post=None, tag=False, mask=1):
        self.exec_mask(mask)
        def ck():
            if tag: self(f'v_cmp_ne_u32 vcc, {TAG}, v{t}')
            else: self(f'v_cmp_eq_u32 vcc, -1, v{t}')
        self.poll(lambda: self(f'global_load_dword v{t}, v{va}, {WS} offset:{off} sc1'), ck, sleep=sleep)
        self.full()
        if post: self(f's_sleep {post}')
    def chk_sent(self, regs, t):
        regs = list(regs)
        if len(regs) == 1:
            self(f'v_cmp_eq_u32 vcc, -1, v{regs[0]}'); return
        if len(regs) == 2: self(f'v_max_u32 v{t}, v{regs[0]}, v{regs[1]}'); rest = []
        else: self(f'v_max3_u32 v{t}, v{regs[0]}, v{regs[1]}, v{regs[2]}'); rest = regs[3:]
        while rest:
            if len(rest) >= 2: self(f'v_max3_u32 v{t}, v{t}, v{rest[0]}, v{rest[1]}'); rest = rest[2:]
            else: self(f'v_max_u32 v{t}, v{t}, v{rest[0]}'); rest = []
        self(f'v_cmp_eq_u32 vcc, -1, v{t}')
    def chk_tag(self, regs, t):
        regs = list(regs)
        self(f'v_cmp_ne_u32 vcc, {TAG}, v{regs[0]}')
        for r in regs[1:]:
            self(f'v_cmp_ne_u32 s[50:51], {TAG}, v{r}\ns_or_b64 vcc, vcc, s[50:51]')
    def san(self, regs):
        for r in regs: self(f'v_min_u32 v{r}, -2, v{r}')
    def lanes_lt(self, n):
        assert n <= 64
        lo = (1 << min(n, 32)) - 1; hi = (1 << max(n - 32, 0)) - 1
        self(f's_mov_b32 exec_lo, {lo:#x}\ns_mov_b32 exec_hi, {hi:#x}')
    def exec_mask(self, m):
        self(f's_mov_b32 exec_lo, {m & 0xffffffff:#x}\ns_mov_b32 exec_hi, {m >> 32:#x}')
    def full(self): self('s_mov_b64 exec, -1')
    def bar(self): self('s_waitcnt lgkmcnt(0)\ns_barrier')
    def get_tag(self):
        self(f'''v_readfirstlane_b32 {TAG}, v15
s_mul_i32 {TAG}, {TAG}, 0x9E3779B1
s_add_u32 {TAG}, {TAG}, 0x7F4A7C15''')
    def ready_publish(self):
        self(f'''s_waitcnt vmcnt(0)''')
        self.get_tag()
        self(f'''s_lshl_b32 s40, s2, 4
s_add_u32 s40, s40, {READY}
v_mov_b32 v4, s40
v_mov_b32 v5, {TAG}''')
        self.lanes_lt(1)
        self(f'global_store_dword v4, v5, {WS} sc1')
        self.full()
    def ready_check(self, half, v=8):
        self(f'v_lshlrev_b32 v{v+2}, 4, v1\nv_add_u32 v{v+2}, {READY + 2048*half}, v{v+2}')
        def ld():
            for i in range(2): self(f'global_load_dword v{v+i}, v{v+2}, {WS} offset:{1024*i} sc1')
        self.poll(ld, lambda: self.chk_tag([v, v + 1], 0), sleep=4)
    def gemv2(self, D, A, F, first=True):
        for e in range(8):
            c = '0' if first else vr(D + 4*e, 4)
            self(f'v_mfma_f32_16x16x32_bf16 {vr(D+4*e,4)}, {vr(A,4)}, {vr(F+4*e,4)}, {c}')
    def pack2(self, o, D):
        for i in range(4):
            self(f'v_add_f32_dpp v{o+i}, v{D+4*i+1}, v{D+4*i} row_ror:8 row_mask:0xf bank_mask:0x3')
        for i in range(4):
            self(f'v_add_f32_dpp v{o+i}, v{D+4*(i+4)}, v{D+4*(i+4)+1} row_ror:8 row_mask:0xf bank_mask:0xc')
    def load_rows(self, dst, nreg, va, base, pitch, rows=8, pol='nt', t=None):
        op = {1: 'dword', 2: 'dwordx2', 4: 'dwordx4'}[nreg]
        per = 4095 // pitch + 1 if pitch <= 4095 else 1
        for j in range(rows):
            k = j % per
            self(f'global_load_{op} {vr(dst + j*nreg, nreg)}, v{va}, {base} offset:{k*pitch} {pol}')
            if k == per - 1 and j + 1 < rows: self(f'v_add_u32 v{va}, {per*pitch}, v{va}')

def consts(a):
    a(f'''s_mov_b32 {PLO}, 0x05040100
s_mov_b32 {PHI}, 0x07060302
s_mov_b32 {SPIN}, 0
s_mov_b32 s56, {L2E:#x}
s_mov_b32 s57, {L2E_LO:#x}
s_mov_b32 s58, {LN2:#x}
s_mov_b32 s59, {SCALE:#x}''')

def code_warm(a, v=4):
    n = a.P['warm_loads']
    a(f'''s_lshr_b32 s50, s2, 3
s_lshl_b32 s50, s50, 10
v_lshlrev_b32 v{v}, 4, v1
v_add_u32 v{v}, s50, v{v}
v_min_u32 v{v}, CODE_LAST, v{v}
global_load_dword v14, v{v}, s[36:37]''')
    if n > 1:
        a(f'''v_add_u32 v{v}, 32768, v{v}
v_min_u32 v{v}, CODE_LAST, v{v}
global_load_dword v14, v{v}, s[36:37]''')

CT, SPB, PB, STB, MISC = 0, 98304, 98304 + 34816, 98304 + 34816 + 9216, 98304 + 34816 + 9216 + 1024
def blk2_addr(a, v, srow, pitch, scol):
    a(f'''v_lshrrev_b32 v{v}, 3, v2
v_lshlrev_b32 v{v}, 5, v{v}
v_lshl_add_u32 v{v}, v3, 3, v{v}
v_add_u32 v{v}, {srow}, v{v}
v_mul_u32_u24 v{v}, {pitch}, v{v}
v_and_b32 v{v+1}, 7, v2
v_lshl_add_u32 v{v}, v{v+1}, 4, v{v}
v_add_u32 v{v}, {scol}, v{v}''')
def frag2_addr(a, v, sbase):
    a(f'v_and_b32 v{v}, 1, v2\nv_lshlrev_b32 v{v}, 6, v{v}\nv_lshl_add_u32 v{v}, v3, 4, v{v}\nv_add_u32 v{v}, {sbase}, v{v}')
def pack_addr(a, v, sbase):
    a(f'v_and_b32 v{v}, 7, v2\nv_lshlrev_b32 v{v}, 5, v{v}\nv_lshrrev_b32 v{v+1}, 3, v2\nv_lshl_add_u32 v{v}, v{v+1}, 4, v{v}\nv_add_u32 v{v}, {sbase}, v{v}')
def gemv_out_lds(a, D, base):
    a.pack2(8, D)
    a.lanes_lt(16)
    a('ds_write_b128 v14, v[8:11]')
    a.full()
def gemv_out_prep(a, base):
    a(f's_lshl_b32 s40, s3, 8\ns_add_u32 s40, s40, {base}')
    pack_addr(a, 14, 's40')
def tree(a, regs, stride=1, n=1):
    regs = list(regs)
    while len(regs) > 1:
        nxt = []
        for i in range(0, len(regs) - 1, 2):
            for k in range(n): a(f'v_add_f32 v{regs[i]+k}, v{regs[i]+k}, v{regs[i+1]+k}')
            nxt.append(regs[i])
        if len(regs) & 1: nxt.append(regs[-1])
        regs = nxt
def ln_finish(a, m, v, ri):
    a.rnd(m, m); a.rnd(v, v)
    a(f'v_add_f32 v{v}, {f2u(1e-5):#x}, v{v}')
    a.rnd(v, v)
    a(f'v_sqrt_f32 v{v}, v{v}')
    a.rnd(v, v)
    a.recip(ri, v, ri + 1)
def neg1(a, r=8):
    for i in range(4): a(f'v_mov_b32 v{r+i}, -1')

def role_B(a):
    P = a.P
    a(f'''s_mul_i32 s39, s2, 205
s_lshr_b32 s39, s39, 11          ; b/10
s_mul_i32 s40, s39, 10
s_sub_u32 s38, s2, s40           ; b%10
s_lshl_b32 s45, s39, 3
s_add_u32 s45, s45, s3
v_mov_b32 v12, 0
s_lshl_b32 s40, s38, 6
s_lshl_b32 s41, s45, 7''')
    blk2_addr(a, 4, 's40', 12288, 's41')
    a(f'''v_lshlrev_b32 v6, 2, v1
s_lshl_b32 s42, s3, 3
s_add_u32 s40, s40, s42
v_and_b32 v7, 7, v1
v_add_u32 v7, s40, v7
v_lshlrev_b32 v7, 1, v7
s_waitcnt lgkmcnt(0)''')
    a.stamp('start')
    a.wave_is('eq', 6, 'LB_not6')
    code_warm(a, 24)
    if P['tlb']:
        a(f'''v_lshlrev_b32 v24, 17, v1
global_load_dword v14, v24, {WS} offset:64 nt''')
    a.label('LB_not6')
    a.wave_is('eq', 7, 'LB_not7')
    neg1(a, 28)
    a(f'''s_mul_i32 s50, s39, 2560
s_lshl_b32 s51, s38, 8
s_add_u32 s50, s50, s51
s_add_u32 s50, s50, {H6}
s_lshl_b32 s51, s2, 8
s_add_u32 s51, s51, {MODR - 104*256}
s_cmp_lt_u32 s2, 104
s_cselect_b32 s50, s50, s51
v_lshl_add_u32 v24, v2, 4, s50
s_cmp_lt_u32 s2, 80
s_cbranch_scc1 LB_c1
s_cmp_lt_u32 s2, 104
s_cbranch_scc0 LB_c1
s_mul_i32 s50, s2, 2560
s_add_u32 s50, s50, {H7Y - 80*2560}
v_lshl_add_u32 v24, v1, 4, s50
global_store_dwordx4 v24, v[28:31], {WS} sc1
global_store_dwordx4 v24, v[28:31], {WS} offset:1024 sc1
v_and_b32 v24, 31, v1
v_lshl_add_u32 v24, v24, 4, s50
v_add_u32 v24, 2048, v24
LB_c1:
global_store_dwordx4 v24, v[28:31], {WS} sc1''')
    a.label('LB_not7')
    a(f'global_load_dword v15, v12, {WS} sc1')
    for k in range(5): a(f'global_load_dword v{16+k}, v6, {X} offset:{256*k}')
    a(f'global_load_ushort v21, v7, {X}')
    a('s_cmp_lt_u32 s2, 120\ns_cbranch_scc0 LB_nowq')
    a.load_rows(64, 4, 4, WQ, 12288)
    a.label('LB_nowq')
    a(f'''s_lshl_b32 s46, s2, 6
s_lshl_b32 s41, s3, 3
s_add_u32 s46, s46, s41
s_mul_i32 s46, s46, 1536           ; (64b+8w)*1536
s_and_b32 s47, s3, 1
s_lshl_b32 s47, s47, 3             ; 8*(w&1)
s_mul_i32 s48, s3, 12288
v_cmp_le_u32 vcc, 32, v1
v_add_u32 v56, 64, v1
v_subrev_u32 v57, 32, v1
v_cndmask_b32 v56, v56, v57, vcc
v_cndmask_b32 v58, 0, 1, vcc
v_xor_b32 v56, v56, v58
v_mul_u32_u24 v58, 1536, v58
v_add_u32 v57, 32, v1
v_xor_b32 v57, 1, v57''')
    def dma(lo, hi):
        for i in range(lo, hi):
            k, j = divmod(i, 3)
            src = ('v1', 'v56', 'v57')[j]
            a(f's_add_u32 s43, s47, {2*k}\nv_xor_b32 v8, s43, {src}')
            a(f's_add_u32 s44, s46, {2*k*1536 + (1536 if j == 2 else 0)}')
            if j == 1: a('v_lshl_add_u32 v8, v8, 4, v58\nv_add_u32 v8, s44, v8')
            else: a('v_lshl_add_u32 v8, v8, 4, s44')
            a(f's_add_u32 m0, s48, {i*1024}\nglobal_load_lds_dwordx4 v8, {CKV} nt')
    N1 = P['dma1']
    if N1: a('s_barrier')
    dma(0, N1)
    consts(a)
    a('s_cmp_lt_u32 s2, 120\ns_cbranch_scc1 LB_w8\ns_waitcnt vmcnt(' + str(N1) + ')\nLB_w8:')
    a(f's_waitcnt vmcnt({8+N1})')
    a.get_tag()
    for k in range(5): a(f'v_lshlrev_b32 v{24+2*k}, 16, v{16+k}\nv_and_b32 v{25+2*k}, 0xffff0000, v{16+k}')
    a('v_add_f32 v22, v24, v25')
    for k in range(2, 10): a(f'v_add_f32 v22, v22, v{24+k}')
    a.wave_red('v_add_f32', 22, 23)
    a(f'v_mul_f32 v22, {f2u(1/640):#x}, v22\nv_mov_b32 v23, 0')
    for k in range(10): a(f'v_sub_f32 v{24+k}, v{24+k}, v22\nv_fmac_f32 v23, v{24+k}, v{24+k}')
    a.wave_red('v_add_f32', 23, 24)
    a(f'v_mul_f32 v23, {f2u(1/640):#x}, v23')
    ln_finish(a, 22, 23, 24)
    a('v_lshlrev_b32 v21, 16, v21\nv_sub_f32 v21, v21, v22')
    a.rnd(21, 21)
    a.div(20, 21, 23, 24, 25)
    a.rnd(20, 20)
    a('s_cmp_lt_u32 s2, 120\ns_cbranch_scc0 LB_dma')
    a(f'''s_lshl_b32 s40, s38, 13
s_lshl_b32 s42, s3, 10
s_add_u32 s40, s40, s42
s_add_u32 s40, s40, {H1}
v_lshl_add_u32 v4, v1, 4, s40
s_lshl_b32 s40, s3, 4
s_add_u32 s40, s40, {MISC}
v_and_b32 v5, 7, v1
v_lshl_add_u32 v5, v5, 1, s40
s_mul_i32 s40, s45, 43
s_lshr_b32 s40, s40, 7
s_mul_i32 s42, s40, 3
s_sub_u32 s42, s45, s42
s_lshl_b32 s42, s42, 9
s_mul_i32 s40, s40, 15360
s_add_u32 s40, s40, s42
s_mul_i32 s42, s38, 1536
s_add_u32 s40, s40, s42
s_add_u32 s40, s40, {H1B}''')
    pack_addr(a, 6, 0)
    a(f'v_lshlrev_b32 v6, 1, v6\nv_lshl_add_u32 v6, v3, 4, v6\nv_add_u32 v6, s40, v6\nv_mov_b32 v61, {TAG}\nv_mov_b32 v63, {TAG}\nv_cmp_eq_u32 s[42:43], 1, v3')
    frag2_addr(a, 7, MISC)
    a(f's_waitcnt vmcnt({N1})')
    a.stamp('wq')
    a.perm_block(96, 64)
    def ck():
        a(f'v_xor_b32 v17, {TAG}, v17\nv_xor_b32 v19, {TAG}, v19\nv_or_b32 v17, v17, v19\nv_cmp_ne_u32 vcc, 0, v17')
    a.poll(lambda: a(f'global_load_dwordx4 v[16:19], v4, {WS} sc1'), ck, sleep=P['sl_h1'])
    a.stamp('h1')
    a('s_setprio 3')
    a('''v_add_f32_dpp v16, v16, v16 row_ror:8 row_mask:0xf bank_mask:0xf
v_add_f32_dpp v18, v18, v18 row_ror:8 row_mask:0xf bank_mask:0xf
v_permlane16_swap_b32 v16, v18
v_add_f32 v16, v16, v18
v_mov_b32 v18, v16
v_permlane32_swap_b32 v16, v18
v_add_f32 v16, v16, v18
v_mov_b32 v18, v16
v_permlane16_swap_b32 v16, v18''')
    a.rnd(16, 16); a.rnd(18, 18)
    a('v_add_f32 v18, 1.0, v18')
    a.rnd(18, 18)
    a('v_mul_f32 v18, v20, v18')
    a.rnd(18, 18)
    a('v_add_f32 v16, v18, v16\nv_cvt_pk_bf16_f32 v16, v16, v16\nds_write_b16 v5, v16')
    a.bar()
    a('ds_read_b128 v[16:19], v7\ns_waitcnt lgkmcnt(0)')
    a.gemv2(24, 16, 96, True)
    a.pack2(8, 24)
    a('v_cndmask_b32 v60, v8, v10, s[42:43]\nv_cndmask_b32 v62, v9, v11, s[42:43]')
    a.lanes_lt(32)
    a(f'global_store_dwordx4 v6, v[60:63], {WS} sc1')
    a.full()
    a.stamp('qpub')
    a('s_setprio 0\ns_barrier')
    a.label('LB_dma')
    a.wave_is('eq', 7, 'LB_nrp')
    a.ready_publish()
    a.label('LB_nrp')
    dma(N1, 12)
    a.wave_is('eq', 3, 'LB_nordy')
    a.ready_check(1)
    a.label('LB_nordy')
    a.wave_is('lt', 4, 'LB_qa')
    a(f'''v_lshrrev_b32 v4, 2, v2            ; rr
v_lshl_add_u32 v4, v3, 3, v4       ; 8g+rr
v_and_b32 v5, 3, v1                ; cc
s_mul_i32 s40, s3, 24
v_add_u32 v5, s40, v5              ; 24w+cc''')
    for t in range(6):
        for sub in range(2):
            a(f'''v_add_u32 v6, {4*sub}, v4
v_and_b32 v7, 15, v6
v_add_u32 v8, {4*t}, v5
v_xor_b32 v7, v7, v8
v_mul_u32_u24 v6, 1536, v6
v_lshl_add_u32 v{40+t*2+sub}, v7, 4, v6''')
    a('s_waitcnt vmcnt(0)\ns_barrier')
    a.stamp('ckv')
    for t in range(6):
        for sub in range(2):
            for hf in range(2):
                for ks in range(2):
                    r = 64 + ((t*2+hf)*2+ks)*4 + 2*sub
                    a(f'ds_read_b64_tr_b16 {vr(r,2)}, v{40+t*2+sub} offset:{ks*49152 + hf*8}')
    a(f'''s_mul_i32 s41, s2, 384
s_mul_i32 s40, s3, 49152
s_add_u32 s41, s41, s40
s_add_u32 s41, s41, {H4}
s_mov_b32 s40, 196608
v_and_b32 v52, 7, v2
v_mul_lo_u32 v52, v52, s40
v_lshl_add_u32 v52, v3, 4, v52
v_lshrrev_b32 v8, 3, v2
v_lshl_add_u32 v52, v8, 6, v52
v_add_u32 v52, s41, v52
v_add_u32 v53, {8*196608}, v52
v_add_u32 v54, {16*196608}, v52
v_add_u32 v55, {24*196608}, v52
s_lshl_b32 s40, s3, 11
s_lshl_b32 s41, s2, 4
s_add_u32 s40, s40, s41
s_add_u32 s40, s40, {AUX}
v_lshl_add_u32 v56, v1, 13, s40
s_lshl_b32 s40, s3, 7
s_add_u32 s40, s40, s2
s_lshl_b32 s40, s40, 7
s_add_u32 s40, s40, {DB4}
v_mov_b32 v8, s40
v_cmp_eq_u32 vcc, 32, v1
v_cndmask_b32 v56, v56, v8, vcc
v_and_b32 v57, 31, v1
v_lshlrev_b32 v57, 4, v57
v_add_u32 v57, {STB}, v57
s_branch LB_noqk''')
    a.label('LB_qa')
    a('s_sub_u32 s45, s3, 4\ns_mul_i32 s40, s45, 24\nv_add_u32 v5, s40, v3\nv_mul_u32_u24 v4, 1536, v2')
    for s_ in range(6):
        a(f'v_add_u32 v6, {4*s_}, v5\nv_xor_b32 v6, v6, v2\nv_lshl_add_u32 v{240+2*s_}, v6, 4, v4\nv_add_u32 v{241+2*s_}, 49152, v{240+2*s_}')
    a(f'''s_mul_i32 s40, s45, 12288
s_add_u32 s40, s40, {H2}
v_lshlrev_b32 v4, 6, v2
v_lshl_add_u32 v4, v3, 4, v4
v_add_u32 v4, s40, v4
v_add_u32 v5, 4096, v4
v_add_u32 v6, 8192, v4
s_and_b32 s41, s2, 3
s_lshl_b32 s41, s41, 6
s_add_u32 s40, s40, s41
s_add_u32 s40, s40, 10240
v_lshl_add_u32 v9, v1, 8, s40
s_mul_i32 s40, s45, {32*272}
s_add_u32 s40, s40, {SPB}
v_mul_u32_u24 v7, 272, v2
v_lshl_add_u32 v7, v3, 4, v7
v_add_u32 v7, s40, v7
v_mov_b32 v10, 0
s_mov_b64 exec, 0xff
global_load_dword v10, v9, {WS} sc1
s_mov_b64 exec, -1
s_waitcnt vmcnt(0)
v_cmp_eq_u32 s[52:53], -1, v10
s_barrier''')
    for s_ in range(6):
        for kt in range(4):
            a(f'ds_read_b128 {vr(64+(kt*6+s_)*4,4)}, v{240 + 2*s_ + (kt >> 1)} offset:{(kt & 1)*24576}')
    a('s_cmp_eq_u64 s[52:53], 0\ns_cbranch_scc1 LB_h2go')
    a.probe(9, 8, sleep=P['sl_pr'], post=P['post_h2'], mask=0xff)
    a.label('LB_h2go')
    def ld():
        for i in range(12): a(f'global_load_dwordx4 {vr(16+4*i,4)}, v{4 + i//4}, {WS} offset:{(i%4)*1024} sc1')
    a.poll(ld, lambda: a.chk_sent(range(16, 64), 8), sleep=P['sl_h2'])
    a('s_waitcnt lgkmcnt(0)')
    a.stamp('h2')
    a('s_setprio 3')
    for kt in range(4):
        for ht in range(2):
            for s_ in range(6):
                d = 224 + (kt*2+ht)*4
                a(f'v_mfma_f32_16x16x32_bf16 {vr(d,4)}, {vr(64+(kt*6+s_)*4,4)}, {vr(16+(s_*2+ht)*4,4)}, {"0" if s_ == 0 else vr(d,4)}')
        if kt >= 1:
            for ht in range(2): a(f'ds_write_b128 v7, {vr(224+((kt-1)*2+ht)*4,4)} offset:{ht*16*272 + (kt-1)*64}')
    for ht in range(2): a(f'ds_write_b128 v7, {vr(224+(3*2+ht)*4,4)} offset:{ht*16*272 + 3*64}')
    a.label('LB_noqk')
    a(f'''s_lshl_b32 s40, s3, 2
v_add_u32 v9, s40, v3              ; head = 4w+g
v_mul_u32_u24 v4, 272, v9
v_lshl_add_u32 v4, v2, 4, v4
v_add_u32 v4, {SPB}, v4
v_mul_u32_u24 v5, 144, v9
v_lshl_add_u32 v5, v2, 3, v5
v_add_u32 v5, {PB}, v5
s_lshl_b32 s40, s2, 4
s_add_u32 s40, s40, {H3}
v_lshl_add_u32 v6, v9, 11, s40
v_lshlrev_b32 v7, 4, v9
v_add_u32 v7, {STB}, v7
v_lshlrev_b32 v10, 2, v2           ; 4*kq
v_mov_b32 v45, {TAG}
v_mov_b32 v47, {TAG}
s_lshl_b32 s40, s2, 7
s_add_u32 s40, s40, {DB3}
v_mov_b32 v8, s40
v_cmp_eq_u32 vcc, 1, v1
v_cndmask_b32 v6, v6, v8, vcc
s_cmp_eq_u32 s3, 7
s_cselect_b32 s49, 2, 0
s_or_b32 s49, s49, 0x00010001
v_mov_b32 v58, {STB + 512}
v_mov_b32 v13, 0
ds_write_b64 v58, v[12:13]''')
    for i in range(4): a(f'v_add_u32 v{40+i}, {i}, v10')
    a.bar()
    a.stamp('qk')
    a('s_setprio 3')
    for i in range(4): a(f'ds_read_b128 {vr(16+4*i,4)}, v4 offset:{8704*i}')
    a(f'''v_mul_u32_u24 v4, 144, v2
v_lshl_add_u32 v4, v3, 4, v4
v_add_u32 v4, {PB}, v4
v_mov_b32 v11, {NEGINF:#x}
s_mov_b32 s40, 0xffffffc0
s_waitcnt lgkmcnt(0)''')
    for i in range(4):
        a(f'v_add_f32 v{16+i}, v{16+i}, v{20+i}\nv_add_f32 v{24+i}, v{24+i}, v{28+i}')
    for i in range(4): a(f'v_add_f32 v{32+i}, v{16+i}, v{24+i}')
    for i in range(4): a(f'v_and_or_b32 v{36+i}, v{32+i}, s40, v{40+i}')
    a('v_max3_f32 v50, v36, v37, v38\nv_max_f32 v50, v50, v39')
    for i in range(4): a(f'v_cvt_pk_bf16_f32 v{32+i}, v{32+i}, v{32+i}')
    a.row_red('v_max_f32', [50])
    a.rnd(44, 50)
    a('v_mul_f32 v44, s59, v44\nv_and_b32 v46, 63, v50')
    a.rnd(44, 44)
    a('s_mov_b32 exec_lo, s49\ns_mov_b32 exec_hi, 0x00010001')
    a(f'global_store_dwordx4 v6, v[44:47], {WS} sc1')
    a.full()
    a.stamp('h3pub')
    for i in range(4): a(f'v_and_b32 v{32+i}, 0xffff0000, v{32+i}')
    for i in range(4): a(f'v_mul_f32 v{32+i}, s59, v{32+i}')
    for i in range(4): a.rnd(32 + i, 32 + i)
    for i in range(4):
        a(f'v_cmp_eq_u32 s[{50+2*(i&1)}:{51+2*(i&1)}], v{40+i}, v46\nv_cndmask_b32 v{32+i}, v{32+i}, v11, s[{50+2*(i&1)}:{51+2*(i&1)}]\nv_cndmask_b32 v{24+i}, 0, 1.0, s[{50+2*(i&1)}:{51+2*(i&1)}]')
    a('v_max3_f32 v50, v32, v33, v34\nv_max_f32 v50, v50, v35')
    a.row_red('v_max_f32', [50])
    a('v_sub_f32 v28, v50, v44')
    for i in range(4): a(f'v_sub_f32 v{32+i}, v{32+i}, v50')
    a('v_mul_f32 v28, s56, v28')
    for i in range(4): a(f'v_mul_f32 v{32+i}, s56, v{32+i}')
    a('v_exp_f32 v28, v28')
    for i in range(4): a(f'v_exp_f32 v{32+i}, v{32+i}')
    for i in range(4): a(f'v_fmac_f32 v{24+i}, v{32+i}, v28')
    a(f'''v_cvt_pk_bf16_f32 v36, v24, v25
v_cvt_pk_bf16_f32 v37, v26, v27
ds_write_b64 v5, v[36:37]
v_add_f32 v51, v32, v33
v_add_f32 v49, v34, v35
v_add_f32 v51, v51, v49
v_cvt_pk_bf16_f32 v38, v32, v33
v_cvt_pk_bf16_f32 v39, v34, v35
ds_write_b64 v5, v[38:39] offset:4608
v_mov_b32 v48, v44''')
    a.row_red('v_add_f32', [51])
    a('v_fma_f32 v49, v51, v28, 1.0\nds_write_b128 v7, v[48:51]')
    a.bar()
    a.wave_is('lt', 4, 'LB_lw')
    for ht in range(2):
        for ks in range(2): a(f'ds_read_b128 {vr(16+(ht*2+ks)*4,4)}, v4 offset:{ht*16*144 + ks*64}')
    a('ds_read_b128 v[36:39], v57\ns_waitcnt lgkmcnt(1)')
    def unit(i):
        cl, ht = i >> 1, i & 1
        for tp in range(2):
            for hf in range(2):
                d = 160 + (i % 3)*16 + (tp*2+hf)*4
                t = cl*2 + tp
                for ks in range(2):
                    a(f'v_mfma_f32_16x16x32_bf16 {vr(d,4)}, {vr(64+((t*2+hf)*2+ks)*4,4)}, {vr(16+(ht*2+ks)*4,4)}, {"0" if ks == 0 else vr(d,4)}')
    def ust(i):
        cl, ht = i >> 1, i & 1
        d = 160 + (i % 3)*16; o = 208 + (i % 4)*12
        for k in range(4): a(f'v_cvt_pk_bf16_f32 v{o+k}, v{d+2*k}, v{d+2*k+1}')
        for k in range(4): a(f'v_cvt_pk_bf16_f32 v{o+4+k}, v{d+8+2*k}, v{d+8+2*k+1}')
        for k in range(4): a(f'v_mov_b32 v{o+8+k}, v{o+k}')
        for k in range(4): a(f'v_mov_b32_dpp v{o+k}, v{o+4+k} row_ror:8 row_mask:0xf bank_mask:0xc')
        a(f'global_store_dwordx4 v{52+2*ht}, {vr(o,4)}, {WS} offset:{128*cl} sc1 {"nt" if P["pv_nt"] else ""}')
        for k in range(4): a(f'v_mov_b32_dpp v{o+4+k}, v{o+8+k} row_ror:8 row_mask:0xf bank_mask:0x3')
        a(f'global_store_dwordx4 v{53+2*ht}, {vr(o+4,4)}, {WS} offset:{128*cl} sc1 {"nt" if P["pv_nt"] else ""}')
    unit(0)
    for i in range(1, 6):
        unit(i); ust(i - 1)
    ust(5)
    a(f'v_mov_b32 v8, 1\nv_mov_b32 v33, {TAG}\nv_mov_b32 v32, v36\nv_mov_b32 v34, v37\nv_mov_b32 v35, {TAG}')
    a.lanes_lt(1)
    a('ds_add_u32 v58, v8')
    a.stamp('pvst')
    a.lanes_lt(33)
    a(f's_waitcnt vmcnt(0)\nglobal_store_dwordx4 v56, v[32:35], {WS} sc1')
    a.full()
    a.stamp('auxpub')
    a(f'''v_lshlrev_b32 v9, 2, v2
v_add_u32 v9, {STB + 576}, v9
s_lshl_b32 s40, s3, 9
s_add_u32 s40, s40, {SIDE}
v_lshlrev_b32 v10, 13, v2
v_lshl_add_u32 v10, v3, 4, v10
v_add_u32 v10, s40, v10
v_lshlrev_b32 v11, 4, v2
v_add_u32 v11, {STB}, v11
LB_cw:
s_sleep 1
ds_read_b32 v8, v58 offset:4
ds_read2_b32 v[40:41], v9 offset0:0 offset1:16
s_waitcnt lgkmcnt(0)
v_cmp_eq_u32 vcc, 0, v8
s_cbranch_vccnz LB_cw''')
    for ht in range(2):
        a(f'''v_cmp_gt_u32 s[42:43], 4, v{40+ht}
s_cmp_eq_u64 s[42:43], 0
s_cbranch_scc1 LB_cn{ht}
ds_read_b128 v[16:19], v4 offset:{4608 + ht*16*144}
ds_read_b128 v[20:23], v4 offset:{4608 + ht*16*144 + 64}
ds_read_b64 v[44:45], v11 offset:{ht*256 + 8}
v_and_b32 v42, 3, v{40+ht}
v_lshl_add_u32 v42, v42, 11, v10
v_add_u32 v42, {ht*16*8192}, v42
s_waitcnt lgkmcnt(0)''')
        for t in range(6):
            for hf in range(2):
                d = 160 + (t*2+hf)*4
                for ks in range(2):
                    a(f'v_mfma_f32_16x16x32_bf16 {vr(d,4)}, {vr(64+((t*2+hf)*2+ks)*4,4)}, {vr(16+ks*4,4)}, {"0" if ks == 0 else vr(d,4)}')
        for t in range(6):
            for k in range(4): a(f'v_cvt_pk_bf16_f32 v{208+4*t+k}, v{160+8*t+2*k}, v{161+8*t+2*k}')
        a.san(range(208, 232))
        a(f'v_mov_b32 v46, v45\nv_mov_b32 v45, {TAG}\nv_mov_b32 v47, {TAG}\ns_mov_b64 exec, s[42:43]')
        for t in range(6): a(f'global_store_dwordx4 v42, {vr(208+4*t,4)}, {WS} offset:{64*t} sc1')
        a(f's_and_b64 exec, exec, 0xffff\nglobal_store_dwordx4 v42, v[44:47], {WS} offset:384 sc1')
        a.full()
        a.label(f'LB_cn{ht}')
    a('v_mov_b32 v8, 1')
    a.lanes_lt(1)
    a('ds_add_u32 v58, v8')
    a.full()
    a('s_branch LB_lw2')
    a.label('LB_lw')
    a('s_setprio 0')
    a.wave_is('eq', 4, 'LB_lw2')
    a(f'''v_and_b32 v9, 31, v1
v_lshlrev_b32 v10, 2, v9
v_add_u32 v10, {STB + 576}, v10
v_lshlrev_b32 v9, 7, v9
v_add_u32 v9, {ELIST}, v9
LB_ew:
s_sleep 2
ds_read_b32 v8, v58
s_waitcnt lgkmcnt(0)
v_cmp_gt_u32 vcc, {P['ew_cnt']}, v8
s_cbranch_vccnz LB_ew''')
    a.poll(lambda: a(f'global_load_dwordx4 v[16:19], v9, {WS} sc1\nglobal_load_dwordx4 v[20:23], v9, {WS} offset:16 sc1'),
           lambda: a.chk_tag(range(17, 24, 2), 8), sleep=P['sl_el'])
    a.stamp('el')
    a('v_mov_b32 v8, 15')
    for j in range(4): a(f'v_cmp_eq_u32 vcc, s2, v{16+2*j}\nv_cndmask_b32 v8, v8, {j}, vcc' if False else f'v_cmp_ne_u32 vcc, s2, v{16+2*j}\nv_cndmask_b32 v8, {j}, v8, vcc')
    a('ds_write_b32 v10, v8\nv_mov_b32 v8, 1\nds_write_b32 v58, v8 offset:4')
    a.label('LB_lw2')
    a(f'''s_sleep {P['sl_lw']}
ds_read_b32 v8, v58
s_waitcnt lgkmcnt(0)
v_cmp_gt_u32 vcc, 8, v8
s_cbranch_vccnz LB_lw2''')
    a.label('LB_late')
    a('s_cmp_lt_u32 s2, 80\ns_cbranch_scc0 LB_hi')
    a.wave_is('ge', 4, 'LB_wob')
    a(f'''s_mul_i32 s40, s39, 768
s_mul_i32 s41, s45, 192
s_add_u32 s40, s40, s41
s_lshl_b32 s41, s38, 7''')
    blk2_addr(a, 4, 's40', 1280, 's41')
    a(f'v_add_u32 v5, {64*1280}, v4\nv_add_u32 v6, {128*1280}, v4')
    for i in range(3): a.load_rows(64 + 32*i, 4, 4 + i, WO, 1280)
    a(f'''s_mul_i32 s40, s39, 12
s_mul_i32 s41, s45, 3
s_add_u32 s40, s40, s41
s_lshl_b32 s40, s40, 10
s_add_u32 s40, s40, {H5}
v_lshl_add_u32 v4, v1, 4, s40
s_mul_i32 s40, s45, 384
s_add_u32 s40, s40, {MISC + 4096}
v_lshl_add_u32 v5, v2, 2, v3
v_lshl_add_u32 v5, v5, 1, s40      ; (4p+g)*2''')
    frag2_addr(a, 6, 's40')
    gemv_out_prep(a, MISC + 2048 - 1024)
    for i in range(3):
        a(f's_waitcnt vmcnt({16 - 8*i})')
        a.perm_block(160 + 32*i, 64 + 32*i)
    a.stamp('late')
    if P['probe_h5']: a.probe(4, 8, off=2048, sleep=P['sl_pr'], post=P['post_h5'], mask=0x0001000100010001)
    def ld():
        for i in range(3): a(f'global_load_dwordx4 {vr(16+4*i,4)}, v4, {WS} offset:{1024*i} sc1')
    a.poll(ld, lambda: a.chk_sent(range(16, 28), 8), sleep=P['sl_h5'])
    a.stamp('h5')
    a('s_setprio 3')
    for i in range(3): a.xrow_tr4(16 + 4*i)
    for i in range(3): a(f'v_cvt_pk_bf16_f32 v{16+4*i}, v{16+4*i}, v{16+4*i}\nds_write_b16 v5, v{16+4*i} offset:{128*i}')
    a('s_waitcnt lgkmcnt(0)')
    for i in range(3): a(f'ds_read_b128 {vr(16+4*i,4)}, v6 offset:{128*i}')
    for i in range(3):
        a(f's_waitcnt lgkmcnt({2-i})')
        a.gemv2(64, 16 + 4*i, 160 + 32*i, i == 0)
    gemv_out_lds(a, 64, 0)
    a.label('LB_wob')
    a(f'''v_lshlrev_b32 v4, 2, v1
v_add_u32 v4, {MISC + 2048}, v4
s_mul_i32 s40, s39, 2560
s_lshl_b32 s41, s38, 8
s_add_u32 s40, s40, s41
s_add_u32 s40, s40, {H6}
v_lshl_add_u32 v5, v1, 2, s40''')
    a.bar()
    a.wave_is('eq', 4, 'Lfin')
    for i in range(2): a(f'ds_read2st64_b32 {vr(16+2*i,2)}, v4 offset0:{2*i} offset1:{2*i+1}')
    a('s_waitcnt lgkmcnt(0)')
    tree(a, range(16, 20))
    a(f'global_store_dword v5, v16, {WS} sc1')
    a.stamp('h6pub')
    a('s_branch Lfin')
    a.label('LB_hi')
    a('s_cmp_lt_u32 s2, 104\ns_cbranch_scc0 LB_mr')
    a(f's_sub_u32 s46, s2, 80\ns_lshl_b32 s40, s46, 6\ns_lshl_b32 s41, s3, 7')
    blk2_addr(a, 10, 's40', 1280, 's41')
    a.wave_is('lt', 5, 'LB_f5')
    a(f's_lshl_b32 s40, s3, 7\ns_lshl_b32 s41, s46, 7')
    blk2_addr(a, 4, 's40', 3072, 's41')
    a(f'v_add_u32 v5, {64*3072}, v4\nv_lshlrev_b32 v6, 2, v0\nglobal_load_dword v24, v6, {X}')
    a.load_rows(128, 4, 4, W1, 3072)
    a.load_rows(160, 4, 5, W1, 3072)
    a.load_rows(64, 4, 10, W2, 1280)
    a(f'v_lshlrev_b32 v4, 2, v0\nv_add_u32 v4, {MODR}, v4\nv_add_u32 v5, 2560, v4\ns_waitcnt vmcnt(8)')
    a.perm_block(192, 128)
    a.perm_block(224, 160)
    a('s_waitcnt vmcnt(0)')
    a.stamp('late1')
    a.perm_block(96, 64)
    a.ready_check(0, 36)
    def ld():
        a(f'''global_load_dword v25, v4, {WS} sc1
global_load_dword v26, v4, {WS} offset:1280 sc1
global_load_dword v27, v5, {WS} sc1
global_load_dword v38, v5, {WS} offset:1280 sc1''')
    a.poll(ld, lambda: a.chk_sent([25, 26, 27, 38], 8), sleep=8)
    a(f'''v_lshlrev_b32 v4, 3, v0
v_add_u32 v8, {H6}, v4
v_lshlrev_b32 v28, 16, v24
v_and_b32 v29, 0xffff0000, v24
v_lshlrev_b32 v30, 16, v25
v_and_b32 v31, 0xffff0000, v25
v_lshlrev_b32 v32, 16, v26
v_and_b32 v33, 0xffff0000, v26
v_lshlrev_b32 v34, 16, v27
v_and_b32 v35, 0xffff0000, v27
v_add_f32 v34, 1.0, v34
v_add_f32 v35, 1.0, v35''')
    a.rnd(34, 34); a.rnd(35, 35)
    for i in range(1, 4): a(f'v_add_u32 v{8+i}, {5120*i}, v8')
    a(f'''s_lshl_b32 s40, s3, 3
s_add_u32 s40, s40, {MISC + 8192}
v_mov_b32 v13, s40
s_lshl_b32 s40, s3, 8
s_add_u32 s40, s40, {MISC + 4096}
v_lshl_add_u32 v5, v1, 2, s40''')
    frag2_addr(a, 6, 's40')
    gemv_out_prep(a, MISC)
    a(f'v_mul_u32_u24 v37, 2560, v1\ns_lshl_b32 s40, s3, 9\ns_add_u32 s40, s40, {H6}\nv_add_u32 v37, s40, v37')
    if P['probe_h6']: a.probe(37, 4, sleep=P['sl_pr'], post=P['post_h6'], mask=0xff)
    def ld():
        for i in range(8): a(f'global_load_dwordx2 {vr(40+2*i,2)}, v{8 + i//2}, {WS} offset:{2560*(i%2)} sc1')
    a.poll(ld, lambda: a.chk_sent(range(40, 56), 4), sleep=P['sl_h6'])
    a.stamp('h6')
    a('s_setprio 3')
    tree(a, range(40, 56, 2), n=2)
    for i in range(2): a.rnd(40 + i, 40 + i)
    for i in range(2): a(f'v_mul_f32 v{40+i}, v{30+i}, v{40+i}')
    for i in range(2): a.rnd(40 + i, 40 + i)
    for i in range(2): a(f'v_add_f32 v{40+i}, v{28+i}, v{40+i}')
    a('''v_cvt_pk_bf16_f32 v36, v40, v41
v_lshlrev_b32 v40, 16, v36
v_and_b32 v41, 0xffff0000, v36
v_readfirstlane_b32 s42, v40
v_subrev_f32 v44, s42, v40
v_subrev_f32 v45, s42, v41
v_add_f32 v42, v44, v45
v_mul_f32 v43, v44, v44
v_fmac_f32 v43, v45, v45''')
    a.row_red('v_add_f32', [42, 43])
    a(f'''v_permlane16_swap_b32 v42, v43
v_add_f32 v42, v42, v43
v_mov_b32 v43, v42
v_permlane32_swap_b32 v42, v43
v_add_f32 v42, v42, v43
v_mov_b32 v43, v42
v_permlane16_swap_b32 v42, v43
v_mul_f32 v42, {f2u(1/128):#x}, v42
v_mul_f32 v44, {f2u(128.0):#x}, v42
v_fma_f32 v43, -v44, v42, v43
v_add_f32 v42, s42, v42
ds_write_b64 v13, v[42:43]
s_branch LB_w1b''')
    a.label('LB_f5')
    a.load_rows(64, 4, 10, W2, 1280)
    a.wave_is('lt', 7, 'LB_f7')
    a(f's_lshl_b32 s40, s46, 6\ns_add_u32 s41, s3, 3\ns_lshl_b32 s41, s41, 7')
    blk2_addr(a, 10, 's40', 1280, 's41')
    a.load_rows(128, 4, 10, W2, 1280)
    a.label('LB_f7')
    a('s_waitcnt vmcnt(0)')
    a.perm_block(96, 64)
    a.perm_block(192, 128)
    a.label('LB_w1b')
    a(f'v_mov_b32 v4, {MISC + 8192}')
    a.bar()
    a('s_setprio 3')
    a.wave_is('lt', 5, 'LB_w1c')
    a(f'''ds_read_b128 v[44:47], v4
ds_read_b128 v[48:51], v4 offset:16
ds_read_b64 v[52:53], v4 offset:32
s_waitcnt lgkmcnt(0)
v_add_f32 v54, v44, v46
v_add_f32 v55, v48, v50
v_add_f32 v56, v45, v47
v_add_f32 v54, v54, v55
v_add_f32 v57, v49, v51
v_add_f32 v54, v54, v52
v_add_f32 v55, v56, v57
v_mul_f32 v54, {f2u(0.2):#x}, v54      ; mean
v_add_f32 v55, v55, v53''')
    for r in (44, 46, 48, 50, 52): a(f'v_sub_f32 v{r}, v{r}, v54')
    a('v_mul_f32 v56, v44, v44\nv_mul_f32 v57, v46, v46\nv_fmac_f32 v56, v48, v48\nv_fmac_f32 v57, v50, v50\nv_fmac_f32 v56, v52, v52\nv_add_f32 v56, v56, v57')
    a(f'v_fmac_f32 v55, {f2u(128.0):#x}, v56\nv_mul_f32 v55, {f2u(1/640):#x}, v55')
    ln_finish(a, 54, 55, 56)
    for i in range(2): a(f'v_sub_f32 v{44+i}, v{40+i}, v54')
    for i in range(2): a.rnd(44 + i, 44 + i)
    for i in range(2): a.div(42 + i, 44 + i, 55, 56, 57 + i)
    for i in range(2): a.rnd(42 + i, 42 + i)
    for i in range(2): a(f'v_mul_f32 v{42+i}, v{42+i}, v{34+i}')
    for i in range(2): a.rnd(42 + i, 42 + i)
    for i in range(2): a(f'v_add_f32 v{42+i}, v{42+i}, v{32+i}')
    a('''v_cvt_pk_bf16_f32 v42, v42, v43
ds_write_b32 v5, v42
s_waitcnt lgkmcnt(0)
ds_read_b128 v[16:19], v6
ds_read_b128 v[20:23], v6 offset:128
s_waitcnt lgkmcnt(1)''')
    a.gemv2(128, 16, 192, True)
    a('s_waitcnt lgkmcnt(0)')
    a.gemv2(128, 20, 224, False)
    gemv_out_lds(a, 128, MISC)
    a.label('LB_w1c')
    a(f'''v_and_b32 v4, 31, v1
v_lshlrev_b32 v5, 2, v4
v_lshlrev_b32 v4, 3, v4
v_add_u32 v4, {MISC}, v4
s_lshl_b32 s40, s3, 7
s_add_u32 s40, s40, {MISC + 6144}
v_add_u32 v5, s40, v5''')
    frag2_addr(a, 6, 's40')
    a(f's_mul_i32 s40, s46, 2560\ns_lshl_b32 s41, s3, 8\ns_add_u32 s40, s40, s41\ns_add_u32 s40, s40, {H7Y}')
    pack_addr(a, 14, 's40')
    a.bar()
    for i in range(5): a(f'ds_read_b64 {vr(16+2*i,2)}, v4 offset:{256*i}')
    a('s_waitcnt lgkmcnt(0)')
    tree(a, range(16, 26, 2), n=2)
    a('''v_max_f32 v16, 0, v16
v_max_f32 v17, 0, v17
v_cvt_pk_bf16_f32 v8, v16, v17
ds_write_b32 v5, v8
s_waitcnt lgkmcnt(0)
ds_read_b128 v[16:19], v6
s_waitcnt lgkmcnt(0)''')
    a.gemv2(64, 16, 96, True)
    a('s_sub_u32 s40, s3, 5\ns_cmp_lt_u32 s40, 2\ns_cbranch_scc0 LB_y1')
    a.gemv2(128, 16, 192, True)
    a.label('LB_y1')
    a.pack2(8, 64)
    a.lanes_lt(16)
    a(f'global_store_dwordx4 v14, v[8:11], {WS} sc1')
    a.full()
    a('s_cbranch_scc0 LB_y2')
    a.pack2(20, 128)
    a.lanes_lt(16)
    a(f'global_store_dwordx4 v14, v[20:23], {WS} offset:768 sc1')
    a.full()
    a.label('LB_y2')
    a.stamp('h7pub')
    a('s_lshr_b32 s40, s46, 2\ns_cmp_eq_u32 s40, s3\ns_cbranch_scc0 Lfin\ns_cmp_lt_u32 s3, 5\ns_cbranch_scc0 Lfin\ns_and_b32 s40, s46, 3\ns_lshl_b32 s40, s40, 4\ns_mov_b64 s[42:43], 0xffff\ns_lshl_b64 exec, s[42:43], s40')
    a(f'v_lshlrev_b32 v4, 3, v0\nv_add_u32 v4, {H7Y}, v4')
    for i in range(1, 12): a(f'v_add_u32 v{16+i}, {5120*i}, v4')
    a(f'''v_mov_b32 v16, v4
v_lshlrev_b32 v5, 2, v0
v_lshlrev_b32 v30, 16, v38
v_and_b32 v31, 0xffff0000, v38''')
    def ld():
        for i in range(24): a(f'global_load_dwordx2 {vr(64+2*i,2)}, v{16 + i//2}, {WS} offset:{2560*(i%2)} sc1')
    a.poll(ld, lambda: a.chk_sent(range(64, 112), 4), sleep=P['sl_h7'], pre=P['pre_h7'])
    a.stamp('h7')
    tree(a, range(64, 112, 2), n=2)
    for i in range(2): a.rnd(64 + i, 64 + i)
    for i in range(2): a(f'v_mul_f32 v{64+i}, v{30+i}, v{64+i}')
    for i in range(2): a.rnd(64 + i, 64 + i)
    for i in range(2): a(f'v_add_f32 v{64+i}, v{40+i}, v{64+i}')
    a(f'v_cvt_pk_bf16_f32 v64, v64, v65\nglobal_store_dword v5, v64, {OUT}\ns_mov_b64 exec, -1')
    a.stamp('out')
    a('s_branch Lfin')
    a.label('LB_mr')
    a('s_cmp_lt_u32 s2, 124\ns_cbranch_scc0 Lfin\ns_sub_u32 s46, s2, 104')
    a.wave_is('lt', 5, 'LB_mrb')
    a(f'''s_lshl_b32 s40, s3, 7
v_lshl_add_u32 v4, v3, 3, s40      ; row = 128w + 8g
v_lshlrev_b32 v6, 1, v4
v_add_u32 v6, {MISC + 4096}, v6
v_mul_u32_u24 v4, 7680, v4
v_lshl_add_u32 v4, v2, 4, v4
s_lshl_b32 s40, s46, 8
s_add_u32 s40, s40, 2560
v_add_u32 v4, s40, v4
v_lshlrev_b32 v7, 2, v0
global_load_dword v16, v7, {CC}
v_add_u32 v7, {MISC + 4096}, v7''')
    for i in range(4):
        a.load_rows(64 + 32*i, 4, 4, WMOD, 7680)
        if i < 3: a(f'v_add_u32 v4, {25*7680}, v4')
    a('s_waitcnt vmcnt(32)')
    a('v_lshlrev_b32 v32, 16, v16\nv_and_b32 v33, 0xffff0000, v16')
    a.silu(32, 32, 8); a.silu(33, 33, 8)
    a(f'v_perm_b32 v16, v33, v32, {PHI}\nds_write_b32 v7, v16\ns_waitcnt lgkmcnt(0)')
    for i in range(4): a(f'ds_read_b128 {vr(16+4*i,4)}, v6 offset:{64*i}')
    a('s_waitcnt lgkmcnt(0)')
    a(f'''v_cmp_eq_u32 s[42:43], 1, v3
v_lshlrev_b32 v4, 5, v2
v_lshl_add_u32 v4, v3, 4, v4
s_lshl_b32 s40, s3, 9
s_add_u32 s40, s40, {MISC}
v_add_u32 v4, s40, v4''')
    for i in range(4):
        a(f's_waitcnt vmcnt({24 - 8*i})')
        a.perm_block(192, 64 + 32*i)
        a.gemv2(224, 16 + 4*i, 192, i == 0)
    a.stamp('late2')
    for i in range(4): a(f'v_cndmask_b32 v{8+i}, v{224+4*i}, v{224+4*(i+4)}, s[42:43]')
    a.lanes_lt(32)
    a('ds_write_b128 v4, v[8:11]')
    a.full()
    a.label('LB_mrb')
    a.bar()
    a.wave_is('eq', 0, 'Lfin')
    a(f'v_lshlrev_b32 v4, 3, v1\nv_add_u32 v4, {MISC}, v4')
    for i in range(5): a(f'ds_read_b64 {vr(16+2*i,2)}, v4 offset:{512*i}')
    a(f's_lshl_b32 s40, s46, 8\ns_add_u32 s40, s40, {MODR}\nv_lshl_add_u32 v4, v1, 2, s40\ns_waitcnt lgkmcnt(0)')
    tree(a, range(16, 26, 2), n=2)
    a('v_cvt_pk_bf16_f32 v8, v16, v17')
    a.san([8])
    a(f'global_store_dword v4, v8, {WS} sc1')
    a.stamp('mrpub')
    a('s_branch Lfin')

LS1, LQ, LKEY, LEK, LWT, LWP, LFW, LKP = 0, 2816, 3328, 3840, 4096, 4608, 5120, 6144
LRP = LKP + 18432; LCC = LRP + 6144; LVP = LCC + 1024; LQF = LVP + 4608; LSR = LQF + 1024; LFL = LSR + 1536
def load_uk(a, base, off=128, lo=0, hi=8, v=4):
    if lo == hi: return
    a(f'''s_mul_i32 s40, s41, 192
s_lshl_b32 s42, s3, 5
s_add_u32 s40, s40, s42
s_add_u32 s40, s40, {lo}
v_lshl_add_u32 v{v}, v3, 3, s40
v_mul_u32_u24 v{v}, 12288, v{v}
s_mul_i32 s40, s47, 384
v_add_u32 v{v}, s40, v{v}
v_lshl_add_u32 v{v+1}, v2, 3, v{v}
v_lshl_add_u32 v{v}, v2, 4, v{v}''')
    for j in range(lo, hi):
        a(f'global_load_dwordx4 {vr(off+4*j,4)}, v{v}, {base} nt')
        a(f'global_load_dwordx2 {vr(off+32+2*j,2)}, v{v+1}, {base} offset:256 nt')
        if j < hi - 1: a(f'v_add_u32 v{v}, 12288, v{v}\nv_add_u32 v{v+1}, 12288, v{v+1}')
def perm12(a, dst, src=128):
    a.perm_block(dst, src, nreg=4); a.perm_block(dst + 32, src + 32, nreg=2)
def mfma12(a, D, A, F):
    for e in range(12): a(f'v_mfma_f32_16x16x32_bf16 {vr(D+4*e,4)}, {vr(A,4)}, {vr(F+4*e,4)}, 0')
def out12_prep(a, v, lbase):
    a(f's_mul_i32 s40, s3, 768\ns_add_u32 s40, s40, {lbase}\nv_lshl_add_u32 v{v}, v2, 5, s40\nv_lshl_add_u32 v{v+1}, v2, 4, s40')
def out12(a, D, o, v):
    for e in range(12): a(f'v_add_f32 v{o+e}, v{D+4*e}, v{D+4*e+1}')
    a.lanes_lt(16)
    a(f'ds_write_b128 v{v}, {vr(o,4)}\nds_write_b128 v{v}, {vr(o+4,4)} offset:16\nds_write_b128 v{v+1}, {vr(o+8,4)} offset:512')
    a.full()
def weights_out(a, val, lbase, k):
    a(f'''v_cvt_pk_bf16_f32 v8, v{val}, v{val}
ds_write_b16 v4, v8 offset:{lbase + 128*k}
v_and_b32 v9, 0xffff0000, v8
v_sub_f32 v9, v{val}, v9
v_cvt_pk_bf16_f32 v9, v9, v9
ds_write_b16 v4, v9 offset:{lbase + 256 + 128*k}''')

def role_A(a):
    P = a.P
    a(f'''s_sub_u32 s44, s2, 128
s_mul_i32 s39, s44, 205
s_lshr_b32 s39, s39, 11          ; kp = a/10
s_mul_i32 s40, s39, 10
s_sub_u32 s38, s44, s40          ; mg = a%10
s_lshr_b32 s47, s44, 2           ; head
s_and_b32 s41, s44, 3            ; quarter
v_mov_b32 v12, 0
s_mul_i32 s40, s39, 80
s_lshl_b32 s42, s3, 4
s_add_u32 s40, s40, s42
v_lshl_add_u32 v5, v3, 2, s40      ; row0
v_mul_u32_u24 v4, 7680, v5
v_lshrrev_b32 v6, 3, v2
v_mul_u32_u24 v6, 1152, v6
v_lshl_add_u32 v6, v2, 4, v6
s_lshl_b32 s42, s38, 7
v_add3_u32 v4, v4, v6, s42
v_lshlrev_b32 v5, 1, v5
s_waitcnt lgkmcnt(0)''')
    a.stamp('start')
    a.wave_is('lt', 5, 'LA_nos1')
    a('s_cmp_lt_u32 s44, 80\ns_cbranch_scc0 LA_nos1')
    a(f'global_load_dwordx2 v[32:33], v5, {CC}\nglobal_load_dword v15, v12, {WS} sc1')
    a.load_rows(16, 4, 4, WMOD, 7680, rows=4)
    U1 = P['uk1']
    load_uk(a, WUK, hi=U1)
    consts(a)
    a(f'''s_waitcnt vmcnt({4+2*U1})
v_lshlrev_b32 v36, 16, v32
v_and_b32 v37, 0xffff0000, v32
v_lshlrev_b32 v38, 16, v33
v_and_b32 v39, 0xffff0000, v33''')
    for i in range(4): a.silu(36 + i, 36 + i, 8)
    a(f'''v_perm_b32 v34, v37, v36, {PHI}
v_perm_b32 v35, v39, v38, {PHI}
v_cmp_eq_u32 vcc, 1, v3
v_lshlrev_b32 v4, 5, v2
v_lshl_add_u32 v4, v3, 4, v4
s_lshl_b32 s40, s3, 9
v_add_u32 v4, s40, v4''')
    a.get_tag()
    a(f's_waitcnt vmcnt({2*U1})')
    for e in range(8):
        for k in range(2):
            a(f'v_perm_b32 v{40+2*e+k}, v{16+(2*k+1)*4+(e>>1)}, v{16+2*k*4+(e>>1)}, {PHI if e & 1 else PLO}')
        a(f'v_mfma_f32_16x16x16_bf16 {vr(64+4*e,4)}, v[34:35], {vr(40+2*e,2)}, 0')
    for i in range(4): a(f'v_cndmask_b32 v{8+i}, v{64+4*i}, v{64+4*(i+4)}, vcc')
    a.lanes_lt(32)
    a('ds_write_b128 v4, v[8:11]')
    a.full()
    a('s_branch LA_b1')
    a.label('LA_nos1')
    a(f'global_load_dword v15, v12, {WS} sc1')
    a.wave_is('lt', 6, 'LA_nos1b')
    load_uk(a, WUK, hi=U1)
    a.label('LA_nos1b')
    consts(a)
    a.wave_is('eq', 7, 'LA_not7')
    neg1(a)
    a(f'''s_mul_i32 s40, s41, 12288
s_lshr_b32 s42, s47, 4
s_lshl_b32 s42, s42, 10
s_add_u32 s40, s40, s42
s_and_b32 s42, s47, 15
s_lshl_b32 s42, s42, 6
s_add_u32 s40, s40, s42
s_add_u32 s40, s40, {H2}
v_lshrrev_b32 v4, 2, v1
v_min_u32 v4, 5, v4
v_lshlrev_b32 v4, 11, v4
v_and_b32 v5, 3, v1
v_lshl_add_u32 v4, v5, 4, v4
v_add_u32 v4, s40, v4
global_store_dwordx4 v4, v[8:11], {WS} sc1
s_mul_i32 s40, s44, 3072
s_add_u32 s40, s40, {H4S}
v_lshl_add_u32 v4, v1, 4, s40
global_store_dwordx4 v4, v[8:11], {WS} sc1
global_store_dwordx4 v4, v[8:11], {WS} offset:1024 sc1
global_store_dwordx4 v4, v[8:11], {WS} offset:2048 sc1
s_lshl_b32 s40, s47, 13
s_lshl_b32 s42, s41, 9
s_add_u32 s40, s40, s42
s_add_u32 s40, s40, {SIDE}
v_lshrrev_b32 v4, 5, v1
v_lshlrev_b32 v4, 11, v4
v_and_b32 v5, 31, v1
v_lshl_add_u32 v4, v5, 4, v4
v_add_u32 v4, s40, v4
v_add_u32 v5, 4096, v4
global_store_dwordx4 v4, v[8:11], {WS} sc1
global_store_dwordx4 v5, v[8:11], {WS} sc1
s_mul_i32 s40, s47, 3072
s_lshl_b32 s42, s41, 8
s_add_u32 s40, s40, s42
s_add_u32 s40, s40, {H5}
v_min_u32 v4, 2, v3
v_lshlrev_b32 v4, 10, v4
v_lshl_add_u32 v4, v2, 4, v4
v_add_u32 v4, s40, v4
global_store_dwordx4 v4, v[8:11], {WS} sc1''')
    a('s_branch LA_b1')
    a.label('LA_not7')
    a.wave_is('eq', 6, 'LA_b1')
    code_warm(a)
    if P['tlb']:
        a(f'''s_mov_b32 s50, 196608
v_mul_lo_u32 v4, v1, s50
global_load_dword v14, v4, {CKV} nt
v_lshlrev_b32 v4, 17, v1
global_load_dword v14, v4, {WS} offset:64 nt''')
    a.label('LA_b1')
    a(f'''v_lshlrev_b32 v4, 2, v1
s_lshl_b32 s40, s38, 13
s_lshl_b32 s42, s39, 7
s_add_u32 s40, s40, s42
s_add_u32 s40, s40, {H1}
v_lshrrev_b32 v5, 3, v1
v_lshlrev_b32 v5, 10, v5
v_and_b32 v6, 7, v1
v_lshl_add_u32 v5, v6, 4, v5
v_add_u32 v5, s40, v5
v_mov_b32 v9, {TAG}
v_mov_b32 v11, {TAG}''')
    a('s_cmp_lt_u32 s44, 80\ns_cbranch_scc0 LA_uk')
    a.bar()
    a.wave_is('eq', 0, 'LA_uk0')
    for w in range(5): a(f'ds_read2st64_b32 {vr(16+2*w,2)}, v4 offset0:{2*w} offset1:{2*w+1}')
    a(f'''s_waitcnt lgkmcnt(0)
v_add_f32 v16, v16, v18
v_add_f32 v17, v17, v19
v_add_f32 v20, v20, v22
v_add_f32 v21, v21, v23
v_add_f32 v16, v16, v20
v_add_f32 v17, v17, v21
v_add_f32 v8, v16, v24
v_add_f32 v10, v17, v25
global_store_dwordx4 v5, v[8:11], {WS} sc1''')
    a.stamp('h1pub')
    a.label('LA_uk0')
    a('s_barrier')
    a.label('LA_uk')
    a.wave_is('lt', 6, 'LA_nouk')
    load_uk(a, WUK, lo=U1)
    a.label('LA_nouk')
    a.wave_is('eq', 7, 'LA_nordy')
    a.ready_publish()
    a.label('LA_nordy')
    a(f'''s_mul_i32 s40, s47, 15360
s_mul_i32 s42, s3, 192
s_add_u32 s40, s40, s42
s_add_u32 s40, s40, {H1B}
v_min_u32 v5, 11, v2
v_mul_u32_u24 v4, 1536, v3
v_lshl_add_u32 v4, v5, 4, v4
v_add_u32 v4, s40, v4
v_add_u32 v7, 6144, v4
v_add_u32 v13, 12288, v4
s_mul_i32 s40, s3, 48
v_and_b32 v8, 1, v3
v_lshl_add_u32 v5, v5, 1, v8
v_lshl_add_u32 v5, v5, 1, s40      ; (24w+2dp+(g&1))*2
v_lshlrev_b32 v40, 5, v2
v_lshlrev_b32 v41, 4, v2
v_lshlrev_b32 v42, 1, v5
s_mul_i32 s40, s41, 6
s_add_u32 s40, s40, s3
s_lshl_b32 s40, s40, 11
s_lshr_b32 s42, s47, 4
s_lshl_b32 s42, s42, 10
s_add_u32 s40, s40, s42
s_and_b32 s42, s47, 15
s_lshl_b32 s42, s42, 6
s_add_u32 s40, s40, s42
s_add_u32 s40, s40, {H2}
v_lshl_add_u32 v6, v3, 4, v2
v_add_u32 v6, s40, v6
s_waitcnt vmcnt(0)''')
    a.get_tag()
    a(f'v_mov_b32 v24, 0\nv_mov_b32 v25, {TAG}\nv_mov_b32 v26, 0\nv_mov_b32 v27, {TAG}')
    a.stamp('uk')
    a.wave_is('lt', 6, 'LA_nounp')
    def U(j, k): n = j*6 + k; return 64 + 2*n if n < 32 else 176 + 2*(n - 32)
    for j in range(8):
        for k in range(6):
            src = 128 + 4*j + k if k < 4 else 160 + 2*j + (k - 4)
            a(f'v_lshlrev_b32 v{U(j,k)}, 16, v{src}\nv_and_b32 v{U(j,k)+1}, 0xffff0000, v{src}')
    a.label('LA_nounp')
    if P['probe_h1b']: a.probe(7, 8, off=4, sleep=P['sl_pr'], post=P['post_h1b'], tag=True, mask=0x0001000100010001)
    def ld():
        a(f'global_load_dwordx4 v[16:19], v4, {WS} sc1\nglobal_load_dwordx4 v[20:23], v7, {WS} sc1')
        a.lanes_lt(32)
        a(f'global_load_dwordx4 v[24:27], v13, {WS} sc1')
        a.full()
    a.poll(ld, lambda: a.chk_tag(range(17, 28, 2), 8), sleep=P['sl_h1b'])
    a.stamp('h1b')
    a('s_setprio 3')
    a(f'''v_add_f32 v16, v16, v20
v_add_f32 v18, v18, v22
v_add_f32 v16, v16, v24
v_add_f32 v18, v18, v26
v_permlane16_swap_b32 v16, v18
v_add_f32 v16, v16, v18
v_mov_b32 v18, v16
v_permlane32_swap_b32 v16, v18
v_add_f32 v16, v16, v18
v_cvt_pk_bf16_f32 v16, v16, v16
v_and_b32 v17, 0xffff0000, v16
ds_write_b32 v42, v17 offset:{LQF}
ds_write_b16 v5, v16 offset:{LQ}''')
    a.bar()
    a.wave_is('lt', 6, 'LA_nos3')
    a(f'ds_read_b128 v[44:47], v40 offset:{LQF}\nds_read_b128 v[48:51], v40 offset:{LQF+16}\nds_read_b128 v[52:55], v41 offset:{LQF+512}')
    for k in range(6):
        if k in (0, 2, 4): a(f's_waitcnt lgkmcnt({2 - k//2})')
        for j in range(8):
            if k == 0: a(f'v_pk_mul_f32 {vr(208+2*j,2)}, {vr(U(j,k),2)}, {vr(44+2*k,2)}')
            else: a(f'v_pk_fma_f32 {vr(208+2*j,2)}, {vr(U(j,k),2)}, {vr(44+2*k,2)}, {vr(208+2*j,2)}')
    for j in range(8): a(f'v_add_f32 v{24+j}, v{208+2*j}, v{209+2*j}')
    for i in range(4): a(f'v_add_f32_dpp v{32+i}, v{24+i}, v{24+i} row_ror:8 row_mask:0xf bank_mask:0x3')
    for i in range(4): a(f'v_add_f32_dpp v{32+i}, v{28+i}, v{28+i} row_ror:8 row_mask:0xf bank_mask:0xc')
    for i in range(2): a(f'v_add_f32_dpp v{36+i}, v{32+i}, v{32+i} row_shl:4 row_mask:0xf bank_mask:0x5')
    for i in range(2): a(f'v_add_f32_dpp v{36+i}, v{34+i}, v{34+i} row_shr:4 row_mask:0xf bank_mask:0xa')
    for qp in ('[2,3,0,1]', '[1,0,3,2]'):
        for i in range(2): a(f'v_add_f32_dpp v{36+i}, v{36+i}, v{36+i} quad_perm:{qp} row_mask:0xf bank_mask:0xf')
    a('v_cvt_pk_bf16_f32 v36, v36, v37')
    a.san([36])
    a.exec_mask(0x1111111111111111)
    a(f'global_store_dword v6, v36, {WS} sc1')
    a.full()
    a.stamp('h2pub')
    a('s_setprio 0')
    a('s_barrier')
    perm12(a, 64)
    if P['sl_uv']: a(f's_sleep {P["sl_uv"]}')
    load_uk(a, WUV)
    a('s_waitcnt vmcnt(0)')
    perm12(a, 176)
    a.stamp('wuv')
    a('s_branch LA_s3d')
    a.label('LA_nos3')
    a('s_setprio 0\ns_barrier')
    a.label('LA_s3d')
    a.wave_is('eq', 7, 'LA_noh3')
    a(f'''s_lshl_b32 s40, s47, 11
s_add_u32 s40, s40, {H3}
v_lshl_add_u32 v4, v1, 4, s40
s_and_b32 s42, s44, 15
s_lshl_b32 s42, s42, 7
s_add_u32 s42, s42, {DB3}
v_lshl_add_u32 v5, v1, 11, s42
s_mov_b32 s48, {f2u(-1/64):#x}
v_mov_b32 v24, {NEGINF:#x}''')
    if P['probe_h3']: a.probe(5, 8, off=4, sleep=P['sl_pr3'], post=P['post_h3'], tag=True, mask=0xff)
    a.poll(lambda: a(f'global_load_dwordx4 v[28:31], v4, {WS} sc1\nglobal_load_dwordx4 v[32:35], v4, {WS} offset:1024 sc1'),
           lambda: a.chk_tag(range(29, 36, 2), 8), sleep=P['sl_h3'])
    a.stamp('h3')
    a('v_max_f32 v20, v28, v32\nv_and_b32 v17, 63, v30\nv_and_b32 v19, 63, v34\nv_mov_b32 v16, v28\nv_mov_b32 v18, v32')
    a.wave_red('v_max_f32', 20, 21)
    a(f'''v_and_b32 v21, 0x7f800000, v20
v_fma_f32 v20, v21, s48, v20
v_lshl_add_u32 v17, v1, 6, v17
v_lshl_add_u32 v19, v1, 6, v19
v_add_u32 v19, 4096, v19
v_cmp_ge_f32 s[50:51], v16, v20
v_cmp_ge_f32 s[52:53], v18, v20
v_lshlrev_b32 v4, 2, v1
v_mov_b32 v25, 999
v_add_u32 v26, 64, v1''')
    a.lanes_lt(4)
    a(f'ds_write2_b32 v4, v17, v25 offset0:{LEK//4 - 900} offset1:{LEK//4 - 896}' if False else f'ds_write_b32 v4, v17 offset:{LEK}\nds_write_b32 v4, v25 offset:{LEK+16}')
    a.full()
    a(f'''s_bcnt1_i32_b64 s49, s[50:51]
v_mbcnt_lo_u32_b32 v22, s50, 0
v_mbcnt_hi_u32_b32 v22, s51, v22
v_mov_b32 v23, s49
v_mbcnt_lo_u32_b32 v23, s52, v23
v_mbcnt_hi_u32_b32 v23, s53, v23
v_cmp_gt_u32 vcc, 4, v22
s_and_b64 s[50:51], s[50:51], vcc
v_cmp_gt_u32 vcc, 4, v23
s_and_b64 s[52:53], s[52:53], vcc
v_lshlrev_b32 v22, 2, v22
v_lshlrev_b32 v23, 2, v23
s_mov_b64 exec, s[50:51]
ds_write_b32 v22, v17 offset:{LEK}
ds_write_b32 v22, v1 offset:{LEK+16}
s_mov_b64 exec, s[52:53]
ds_write_b32 v23, v19 offset:{LEK}
ds_write_b32 v23, v26 offset:{LEK+16}
s_mov_b64 exec, -1''')
    a.label('LA_noh3')
    a(f'''v_and_b32 v4, 3, v2
v_lshlrev_b32 v4, 2, v4
s_mul_i32 s40, s41, 384
s_lshl_b32 s42, s3, 6
s_add_u32 s42, s40, s42
v_lshl_add_u32 v6, v3, 4, s42
v_and_b32 v7, 31, v1
v_lshl_add_u32 v7, v7, 1, s42
s_movk_i32 s55, 1536
v_mov_b32 v13, 0
ds_write_b64 v12, v[12:13] offset:{LFL}
ds_write_b32 v12, v12 offset:{LFL+8}''')
    a.bar()
    a.stamp('b3')
    a('s_setprio 3')
    a.wave_is('lt', 6, 'LA_noe')
    a(f'''ds_read_b32 v5, v4 offset:{LEK}
ds_read_b128 v[8:11], v12 offset:{LEK}
s_waitcnt lgkmcnt(1)
v_mad_u32_u24 v5, v5, s55, v6
global_load_dwordx4 v[224:227], v5, {CKV} {'nt' if P['e_nt'] else ''}
s_waitcnt lgkmcnt(0)''')
    for j in range(4): a(f'v_mad_u32_u24 v{8+j}, v{8+j}, s55, v7\nglobal_load_ushort v{232+j}, v{8+j}, {CKV} {"nt" if P["e_nt"] else ""}')
    a(f's_mul_i32 s40, s3, 3072\ns_add_u32 s40, s40, {LKP}\nv_lshl_add_u32 v4, v2, 4, s40\ns_waitcnt vmcnt(4)')
    a.stamp('erow')
    mfma12(a, 16, 224, 64)
    a.lanes_lt(16)
    for e in range(12): a(f'ds_write_b128 v4, {vr(16+4*e,4)} offset:{256*e}')
    a.full()
    a('s_branch LA_b4')
    a.label('LA_noe')
    a.wave_is('eq', 7, 'LA_b4')
    a(f'''s_cmp_eq_u32 s41, 0
s_cbranch_scc0 LA_b4
v_and_b32 v4, 3, v1
v_lshlrev_b32 v5, 2, v4
ds_read_b32 v8, v5 offset:{LEK+16}
s_lshl_b32 s40, s47, 7
s_add_u32 s40, s40, {ELIST}
v_lshl_add_u32 v4, v4, 3, s40
v_mov_b32 v9, {TAG}
s_mov_b64 exec, 15
s_waitcnt lgkmcnt(0)
global_store_dwordx2 v4, v[8:9], {WS} sc1
s_mov_b64 exec, -1''')
    a.label('LA_b4')
    a(f'v_lshlrev_b32 v6, 4, v0\nv_add_u32 v7, {LKP}, v6\ns_mul_i32 s40, s44, 3072\ns_add_u32 s40, s40, {H4S}\nv_add_u32 v6, s40, v6')
    a.bar()
    a.stamp('b4')
    a.wave_is('lt', 3, 'LA_nopub')
    for w in range(6): a(f'ds_read_b128 {vr(16+4*w,4)}, v7 offset:{3072*w}')
    a('s_waitcnt lgkmcnt(0)')
    tree(a, range(16, 40, 4), n=4)
    a(f'global_store_dwordx4 v6, v[16:19], {WS} sc1')
    a.stamp('kpub')
    a('s_setprio 0')
    a.label('LA_nopub')
    def fl_wait(i, lab):
        a(f'''{lab}:
ds_read_b32 v8, v12 offset:{LFL + 4*i}
s_waitcnt lgkmcnt(0)
v_cmp_eq_u32 vcc, 0, v8
s_cbranch_vccz {lab}d
s_sleep 1
s_branch {lab}
{lab}d:''')
    def fl_set(i): a(f'v_mov_b32 v8, 1\nds_write_b32 v12, v8 offset:{LFL + 4*i}')
    a.wave_is('lt', 4, 'LA_w4')
    out12_prep(a, 248, LRP)
    a(f'''s_lshl_b32 s40, s3, 6
s_add_u32 s40, s40, {LWP}
v_and_b32 v250, 1, v2
v_lshlrev_b32 v250, 8, v250
v_lshl_add_u32 v250, v3, 4, v250
v_add_u32 v250, s40, v250
s_lshl_b32 s40, s44, 7
s_lshl_b32 s42, s3, 5
s_add_u32 s40, s40, s42
v_lshl_add_u32 v4, v3, 3, s40
v_mul_u32_u24 v4, 384, v4
v_add_u32 v4, {H4}, v4
v_lshl_add_u32 v5, v2, 3, v4
v_lshl_add_u32 v4, v2, 4, v4''')
    fl_wait(0, 'LA_f0')
    a.stamp('b5')
    for j in range(8):
        a(f'global_load_dwordx4 {vr(128+4*j,4)}, v4, {WS} offset:{384*j} sc1')
        a(f'global_load_dwordx2 {vr(160+2*j,2)}, v5, {WS} offset:{384*j+256} sc1')
    fl_wait(1, 'LA_f1')
    a('ds_read_b128 v[224:227], v250\ns_waitcnt vmcnt(0) lgkmcnt(0)')
    a.stamp('gath')
    a('s_setprio 3')
    for e in range(12):
        nreg, src, ee = (4, 128, e) if e < 8 else (2, 160, e - 8)
        for k in range(4):
            a(f'v_perm_b32 v{16+4*e+k}, v{src+(2*k+1)*nreg+(ee>>1)}, v{src+2*k*nreg+(ee>>1)}, {PHI if ee & 1 else PLO}')
        a(f'v_mfma_f32_16x16x32_bf16 {vr(64+4*e,4)}, v[224:227], {vr(16+4*e,4)}, 0')
    out12(a, 64, 16, 248)
    a('s_branch LA_b6')
    a.label('LA_w4')
    a.wave_is('eq', 4, 'LA_w5')
    a(f'''s_lshl_b32 s40, s44, 11
s_add_u32 s40, s40, {AUX}
v_lshl_add_u32 v4, v1, 4, s40
s_and_b32 s42, s47, 15
s_lshl_b32 s42, s42, 7
s_lshl_b32 s40, s41, 14
s_add_u32 s42, s42, s40
s_add_u32 s42, s42, {DB4}
v_lshl_add_u32 v5, v1, 11, s42
ds_read_b128 v[24:27], v12 offset:{LEK+16}
v_add_u32 v23, 64, v1
v_mov_b32 v22, {NEGINF:#x}
s_waitcnt lgkmcnt(0)
v_cmp_eq_u32 s[52:53], v24, v1
v_cmp_eq_u32 s[54:55], v24, v23''')
    for j in range(1, 4):
        a(f'v_cmp_eq_u32 vcc, v{24+j}, v1\ns_or_b64 s[52:53], s[52:53], vcc\nv_cmp_eq_u32 vcc, v{24+j}, v23\ns_or_b64 s[54:55], s[54:55], vcc')
    if P['probe_aux']: a.probe(5, 8, off=4, sleep=P['sl_pr'], post=P['post_aux'], tag=True, mask=0xff)
    a.poll(lambda: a(f'global_load_dwordx4 v[28:31], v4, {WS} sc1\nglobal_load_dwordx4 v[32:35], v4, {WS} offset:1024 sc1'),
           lambda: a.chk_tag(range(29, 36, 2), 8), sleep=P['sl_aux'])
    fl_set(0)
    a.stamp('aux')
    a('v_cndmask_b32 v16, v28, v22, s[52:53]\nv_cndmask_b32 v18, v32, v22, s[54:55]\nv_max_f32 v20, v16, v18')
    a.wave_red('v_max_f32', 20, 21)
    a(f'''v_sub_f32 v16, v16, v20
v_sub_f32 v18, v18, v20
v_mul_f32 v16, s56, v16
v_mul_f32 v18, s56, v18
v_exp_f32 v16, v16
v_exp_f32 v18, v18
v_lshlrev_b32 v4, 1, v1''')
    weights_out(a, 16, LWP, 0); weights_out(a, 18, LWP, 1)
    a('v_mul_f32 v21, v16, v30\nv_fmac_f32 v21, v18, v34')
    a.wave_red('v_add_f32', 21, 22)
    a(f'ds_write_b64 v12, v[20:21] offset:{LFW+32}')
    fl_set(1)
    a('s_branch LA_b6')
    a.label('LA_w5')
    a.wave_is('eq', 5, 'LA_w6')
    a(f'''s_mul_i32 s40, s47, 12288
s_add_u32 s40, s40, {H4S}
v_lshl_add_u32 v4, v1, 4, s40
v_add_u32 v5, 3072, v4
v_add_u32 v6, 6144, v4
v_add_u32 v7, 9216, v4
v_lshl_add_u32 v8, v2, 3, v3
v_lshlrev_b32 v8, 1, v8
v_lshl_add_u32 v9, v2, 2, v3
v_lshlrev_b32 v9, 1, v9
v_lshlrev_b32 v10, 2, v3
ds_read_u16 v64, v8 offset:{LQ}
ds_read_u16 v65, v8 offset:{LQ+8}
ds_read_u16 v66, v9 offset:{LQ+256}
ds_read_b32 v67, v10 offset:{LEK+16}
s_sleep {P['pre_h4s']}''')
    def ld():
        for qq in range(4):
            for k in range(3): a(f'global_load_dwordx4 {vr(16+(qq*3+k)*4,4)}, v{4+qq}, {WS} offset:{1024*k} sc1')
    a.poll(ld, lambda: a.chk_sent(range(16, 64), 9), sleep=P['sl_h4s'])
    a.stamp('h4s')
    a('s_waitcnt lgkmcnt(0)\nv_cmp_gt_u32 s[52:53], 0x80, v67' if False else 's_waitcnt lgkmcnt(0)\ns_movk_i32 s40, 128\nv_cmp_gt_u32 s[52:53], s40, v67')
    for k in range(3): a(f'v_lshlrev_b32 v{64+k}, 16, v{64+k}')
    tree(a, (16, 28, 40, 52), n=12)
    for i in range(12): a.rnd(16 + i, 16 + i)
    for j in range(4):
        a(f'v_mul_f32 v{68+j}, v{16+j}, v64\nv_fmac_f32 v{68+j}, v{20+j}, v65\nv_fmac_f32 v{68+j}, v{24+j}, v66')
    a.row_red('v_add_f32', [68, 69, 70, 71])
    a.xrow_tr4(68)
    a.rnd(68, 68)
    a('v_mul_f32 v68, s59, v68')
    a.rnd(68, 68)
    a(f'v_mov_b32 v21, {NEGINF:#x}\nv_cndmask_b32 v68, v21, v68, s[52:53]\nv_lshlrev_b32 v11, 3, v3')
    fl_wait(2, 'LA_f2')
    fl_wait(1, 'LA_f3')
    a(f'''ds_read_b64 v[228:229], v11 offset:{LFW+64}
ds_read_b64 v[230:231], v12 offset:{LFW+32}
s_waitcnt lgkmcnt(0)
v_max3_f32 v69, v68, v228, v230''')
    a.xrow_red('v_max_f32', 69, 70)
    a(f'''v_sub_f32 v68, v68, v69
v_sub_f32 v228, v228, v69
v_sub_f32 v230, v230, v69
v_mul_f32 v68, s56, v68
v_mul_f32 v228, s56, v228
v_mul_f32 v230, s56, v230
v_exp_f32 v68, v68
v_exp_f32 v228, v228
v_exp_f32 v230, v230
v_fma_f32 v70, v228, v229, v68''')
    a.xrow_red('v_add_f32', 70, 71)
    a('v_fmac_f32 v70, v230, v231')
    a.recip(71, 70, 72)
    a.div(73, 68, 70, 71, 72)
    a.rnd(73, 73)
    a(f'''v_mul_f32 v74, v230, v71
v_mul_f32 v75, v228, v71
ds_write_b32 v10, v73 offset:{LFW}
ds_write_b32 v10, v75 offset:{LFW+16}
ds_write_b32 v12, v74 offset:{LFW+48}
s_branch LA_b6''')
    a.label('LA_w6')
    a.wave_is('eq', 6, 'LA_b6')
    a(f'''v_lshlrev_b32 v10, 2, v3
ds_read_b32 v11, v10 offset:{LEK+16}
s_lshl_b32 s40, s47, 13
s_lshl_b32 s42, s41, 9
s_add_u32 s40, s40, s42
s_add_u32 s40, s40, {SIDE}
v_lshl_add_u32 v6, v3, 11, s40
v_lshl_add_u32 v4, v2, 4, v6
v_lshl_add_u32 v5, v2, 3, v6
v_mul_u32_u24 v9, 384, v3
v_lshl_add_u32 v7, v2, 4, v9
v_lshl_add_u32 v9, v2, 3, v9
v_lshlrev_b32 v10, 3, v3
v_mov_b32 v24, {NEGINF:#x}
v_mov_b32 v26, 0
s_movk_i32 s40, 128
s_waitcnt lgkmcnt(0)
v_cmp_gt_u32 s[52:53], s40, v11''')
    for i in range(6): a(f'v_mov_b32 v{16+i}, 0')
    a(f's_sleep {P["pre_side"]}\ns_mov_b64 exec, s[52:53]')
    def ck():
        a.chk_sent(range(16, 22), 8)
        a(f'v_cmp_ne_u32 s[50:51], {TAG}, v25\ns_or_b64 vcc, vcc, s[50:51]\nv_cmp_ne_u32 s[50:51], {TAG}, v27\ns_or_b64 vcc, vcc, s[50:51]')
    a.poll(lambda: a(f'global_load_dwordx4 v[16:19], v4, {WS} sc1\nglobal_load_dwordx2 v[20:21], v5, {WS} offset:256 sc1\nglobal_load_dwordx4 v[24:27], v6, {WS} offset:384 sc1'),
           ck, sleep=P['sl_side'])
    a.full()
    a.stamp('side')
    a(f'v_mov_b32 v25, v26\nds_write_b128 v7, v[16:19] offset:{LSR}\nds_write_b64 v9, v[20:21] offset:{LSR+256}\nds_write_b64 v10, v[24:25] offset:{LFW+64}')
    fl_set(2)
    a.label('LA_b6')
    a(f'''s_lshl_b32 s40, s3, 7
v_and_b32 v4, 31, v1
v_lshl_add_u32 v5, v4, 1, s40
s_lshl_b32 s42, s3, 6
v_lshl_add_u32 v7, v4, 1, s42
v_lshl_add_u32 v4, v4, 2, s40
v_mov_b32 v20, 0
v_mov_b32 v21, 0
v_mov_b32 v22, 0
v_mov_b32 v23, 0''')
    frag2_addr(a, 6, 's40')
    out12_prep(a, 248, LVP)
    for j in range(4): a(f'v_lshlrev_b32 v{232+j}, 16, v{232+j}')
    a.bar()
    a.stamp('b6')
    a('s_setprio 3')
    a.wave_is('lt', 6, 'LA_nov')
    for w in range(4): a(f'ds_read_b32 v{16+w}, v4 offset:{LRP + 768*w}')
    for j in range(4): a(f'ds_read_u16_d16_hi v{20+j}, v7 offset:{LSR + 384*j}')
    a(f'ds_read_b128 v[24:27], v12 offset:{LFW}\nds_read_b128 v[28:31], v12 offset:{LFW+16}\nds_read_b32 v32, v12 offset:{LFW+48}')
    a(f'''s_waitcnt lgkmcnt(0)
v_add_f32 v16, v16, v17
v_add_f32 v18, v18, v19
v_mul_f32 v24, v24, v232
v_mul_f32 v28, v28, v20
v_add_f32 v16, v16, v18
v_fmac_f32 v24, v25, v233
v_fmac_f32 v28, v29, v21
v_fmac_f32 v24, v26, v234
v_fmac_f32 v28, v30, v22
v_fmac_f32 v24, v27, v235
v_fmac_f32 v28, v31, v23
v_fmac_f32 v24, v16, v32
v_add_f32 v16, v24, v28
v_cvt_pk_bf16_f32 v17, v16, v16
ds_write_b16 v5, v17 offset:{LCC}
v_and_b32 v18, 0xffff0000, v17
v_sub_f32 v18, v16, v18
v_cvt_pk_bf16_f32 v18, v18, v18
ds_write_b16 v5, v18 offset:{LCC+64}
s_waitcnt lgkmcnt(0)
ds_read_b128 v[224:227], v6 offset:{LCC}
s_waitcnt lgkmcnt(0)''')
    mfma12(a, 128, 224, 176)
    out12(a, 128, 16, 248)
    a.label('LA_nov')
    a(f'''v_lshlrev_b32 v4, 2, v0
s_mul_i32 s40, s47, 3
s_add_u32 s40, s40, s3
s_lshl_b32 s40, s40, 10
s_lshl_b32 s42, s41, 8
s_add_u32 s40, s40, s42
s_add_u32 s40, s40, {H5}
v_lshl_add_u32 v5, v1, 2, s40''')
    a.bar()
    a.wave_is('lt', 3, 'Lfin')
    for w in range(6): a(f'ds_read_b32 v{16+w}, v4 offset:{LVP + 768*w}')
    a('s_waitcnt lgkmcnt(0)')
    tree(a, range(16, 22))
    a(f'global_store_dword v5, v16, {WS} sc1')
    a.stamp('h5pub')
    a(f'''s_add_u32 s40, s44, s3
s_cmp_eq_u32 s40, 0
s_cbranch_scc0 Lfin
v_mov_b32 v5, {TAG}
global_store_dword v12, v5, {WS} sc1''')

DEFAULTS = dict(code_last=0x1000, stamps=False, warm_loads=2, sl_pr=1, sl_pr3=4, sl_h1=3, sl_h1b=2, sl_h2=4, sl_h3=2, sl_aux=2, sl_h4s=2, sl_h5=2, sl_h6=3, sl_h7=2, sl_x2=4, sl_lw=1, lw_cnt=4, dma1=3, sl_top2=4, pre_h7=6, tlb=0, e_nt=0, pv_nt=0, uk1=0, ew_cnt=4, sl_el=2, pre_side=16, sl_side=2, sl_uv=20, pre_h4s=8, sl_top=6,
    probe_h1b=1, post_h1b=1, probe_h2=1, post_h2=1, probe_h3=1, post_h3=2, probe_aux=0, post_aux=2, probe_h5=0, post_h5=1, probe_h6=0, post_h6=1, probe_h7=1, post_h7=0)

def generate(**kw):
    P = dict(DEFAULTS); P.update(kw)
    a = G(P)
    a(f'''s_cmp_ge_u32 s2, 256
s_cbranch_scc1 Lend
s_load_dwordx16 s[4:19], s[0:1], 0
s_load_dwordx8 s[20:27], s[0:1], 64
s_load_dwordx4 s[28:31], s[0:1], 96
s_getpc_b64 s[36:37]
Lpc:
v_lshrrev_b32 v4, 6, v0
v_and_b32 v1, 63, v0
v_readfirstlane_b32 s3, v4
v_and_b32 v2, 15, v0
v_lshrrev_b32 v3, 4, v1''')
    if P['stamps']:
        for i in range(21): a(f's_mov_b64 s[{60+2*i}:{61+2*i}], 0')
    if P.get('dbgtime'): a('s_memrealtime s[60:61]')
    a('s_cmp_ge_u32 s2, 128\ns_cbranch_scc1 LA')
    role_B(a)
    namesB = a.stnames; a.stnames = []
    a.label('LA')
    role_A(a)
    namesA = a.stnames
    a.label('Lfin')
    if P['stamps']:
        a(f'''s_waitcnt lgkmcnt(0)
s_lshl_b32 s40, s2, 3
s_add_u32 s40, s40, s3
s_lshl_b32 s40, s40, 7
s_add_u32 s40, s40, {STAMP}
v_mov_b32 v4, s40''')
        for i in range(21): a(f'v_mov_b32 v5, s{60+2*i}\nglobal_store_dword v4, v5, {WS} offset:{4*i}')
    if P.get('dbgtime'):
        a(f'''s_memrealtime s[62:63]
s_cmp_eq_u32 s3, 7
s_cbranch_scc0 Lend
s_and_b32 s40, s2, 31
s_cmp_eq_u32 s40, 31
s_cbranch_scc0 Lend
s_waitcnt lgkmcnt(0)
s_lshr_b32 s40, s2, 5
s_lshl_b32 s40, s40, 3
v_mov_b32 v4, s40
v_mov_b32 v6, s60
v_mov_b32 v7, s62
s_mov_b64 exec, 1
global_store_dwordx2 v4, v[6:7], s[28:29]''')
    a.label('Lend')
    a('s_endpgm')
    a.raw('Lcode_end:')
    hdr = open(f'cdna_kernels/{NAME}.s.ref').read().split('; Override launch')[0]
    lds = MISC + 8192 + 256
    txt = hdr + f'''; @launch grid=(256,1,1) block=(512,1,1) lds={lds}
.amdgcn_target "amdgcn-amd-amdhsa--gfx950"
.text
.globl {NAME}_kernel
.p2align 8
.type {NAME}_kernel,@function
.set CODE_LAST, {P['code_last']:#x}
{NAME}_kernel:
''' + a.text() + f'''.section .rodata,"a"
.p2align 6
.amdhsa_kernel {NAME}_kernel
  .amdhsa_next_free_vgpr 256
  .amdhsa_next_free_sgpr 102
  .amdhsa_accum_offset 256
  .amdhsa_group_segment_fixed_size 0
  .amdhsa_kernarg_size 112
  .amdhsa_user_sgpr_count 2
  .amdhsa_user_sgpr_kernarg_segment_ptr 1
  .amdhsa_system_sgpr_workgroup_id_x 1
  .amdhsa_float_denorm_mode_32 3
.end_amdhsa_kernel
'''
    return txt, namesB, namesA

if __name__ == '__main__':
    import json
    out = sys.argv[1]
    kw = {}
    for x in sys.argv[2:]:
        k, v = x.split('='); kw[k] = int(v)
    import subprocess, re
    txt, nb, na = generate(**kw)
    open('_g.s', 'w').write(txt)
    subprocess.check_call(['clang', '-x', 'assembler', '-target', 'amdgcn-amd-amdhsa', '-mcpu=gfx950', '-c', '_g.s', '-o', '_g.o'])
    h = subprocess.check_output(['llvm-objdump', '-h', '_g.o'], text=True)
    size = int(re.search(r'\.text\s+([0-9a-f]+)', h).group(1), 16)
    kw['code_last'] = size - 0x28 - 4
    assert size <= 32768 * kw.get('warm_loads', 1)
    txt, nb, na = generate(**kw)
    print('code bytes', size)
    open(out, 'w').write(txt)
    json.dump({'B': nb, 'A': na}, open(out + '.names.json', 'w'))
```

```python
import sys, struct
sys.path.insert(0, 'gen')
from asmlib import *
NAME = 'adaLN_cond__compressed_kv_cla__dense_activation_relu__decode'

EPOCH, READY, H1, H1B, H2, H3, AUX, H4S, H5 = 0x0, 0x1000, 0x2000, 0x120000, 0x58000, 0x68000, 0x1A0000, 0x88000, 0xE8000
H6, MODR, H7F, H7X, H4, STAMP = 0x100000, 0x108000, 0x110000, 0x111000, 0x200000, 0x4000000
H7Y = 0x110000
DB3, DB4, ELIST, SIDE = 0x1E0000, 0x1E4000, 0x1F8000, 0x18000
X, CKV, WQ, WUK, WUV, WO, W1, W2, CC, WMOD, OUT, WS = [f's[{i}:{i+1}]' for i in (4, 6, 8, 10, 12, 14, 18, 20, 22, 24, 26, 30)]
TAG, SPIN, PLO, PHI = 's32', 's33', 's34', 's35'
SPINMAX = 20000
def f2u(x): return struct.unpack('<I', struct.pack('<f', x))[0]
L2E = f2u(1.4426950408889634)
L2E_LO = f2u(1.4426950408889634 - struct.unpack('<f', struct.pack('<f', 1.4426950408889634))[0])
LN2 = f2u(0.6931471805599453)
SCALE = f2u(192 ** -0.5)
NEGINF = 0xff800000

class G(Asm):
    def __init__(self, P):
        super().__init__(); self.P = P; self.nst = 0; self.stnames = []
    def stamp(self, name):
        if not self.P.get('stamps'): return
        if name.startswith('x') != (self.P['stamps'] == 2) and name not in ('start', 'h1pub', 'out', 'wq', 'h1', 'qpub', 'h1b', 'h2pub', 'h5', 'h6pub', 'h6', 'h7pub', 'gath', 'b6', 'h5pub', 'h2', 'qk', 'h3pub', 'pvst', 'auxpub'): return
        i = self.stnames.index(name) if name in self.stnames else None
        if i is None:
            self.stnames.append(name); i = len(self.stnames) - 1
        assert i < 21
        self(f's_memrealtime s[{60+2*i}:{61+2*i}]')
    def rnd(self, d, s):
        self(f'v_cvt_pk_bf16_f32 v{d}, v{s}, v{s}\nv_and_b32 v{d}, 0xffff0000, v{d}')
    def wave_is(self, cond, n, lab):
        self(f's_cmp_{cond}_u32 s3, {n}\ns_cbranch_scc0 {lab}')
    def row_red(self, op, regs):
        for k in (8, 4, 2, 1):
            for r in regs: self(f'{op}_dpp v{r}, v{r}, v{r} row_ror:{k} row_mask:0xf bank_mask:0xf')
    def xrow_red(self, op, r, t):
        self(f'v_mov_b32 v{t}, v{r}\nv_permlane16_swap_b32 v{r}, v{t}\n{op} v{r}, v{r}, v{t}')
        self(f'v_mov_b32 v{t}, v{r}\nv_permlane32_swap_b32 v{r}, v{t}\n{op} v{r}, v{r}, v{t}')
    def wave_red(self, op, r, t):
        self.row_red(op, [r]); self.xrow_red(op, r, t)
    def xrow_tr4(self, r):
        self(f'''v_permlane16_swap_b32 v{r}, v{r+1}
v_permlane16_swap_b32 v{r+2}, v{r+3}
v_add_f32 v{r}, v{r}, v{r+1}
v_add_f32 v{r+2}, v{r+2}, v{r+3}
v_permlane32_swap_b32 v{r}, v{r+2}
v_add_f32 v{r}, v{r}, v{r+2}''')
    def recip(self, d, y, t):
        self(f'v_rcp_f32 v{d}, v{y}\nv_fma_f32 v{t}, -v{y}, v{d}, 1.0\nv_fma_f32 v{d}, v{t}, v{d}, v{d}')
    def div(self, d, x, y, rinv, t):
        self(f'v_mul_f32 v{d}, v{x}, v{rinv}\nv_fma_f32 v{t}, -v{y}, v{d}, v{x}\nv_fma_f32 v{d}, v{t}, v{rinv}, v{d}')
    def silu(self, d, x, t):
        self(f'''v_mul_f32 v{t}, s56, v{x}
v_fma_f32 v{t+1}, v{x}, s56, -v{t}
v_fma_f32 v{t+1}, v{x}, s57, v{t+1}
v_exp_f32 v{t}, -v{t}
v_mul_f32 v{t+1}, s58, v{t+1}
v_fma_f32 v{t}, -v{t}, v{t+1}, v{t}
v_min_f32 v{t}, 0x7f000000, v{t}
v_add_f32 v{t}, 1.0, v{t}''')
        self.recip(t + 1, t, t + 2)
        self.div(t + 3, x, t, t + 1, t + 2)
        self.rnd(d, t + 3)
    def perm_block(self, dst, src, nreg=4, rows=8):
        for e in range(2 * nreg):
            for k in range(rows // 2):
                self(f'v_perm_b32 v{dst + e * (rows // 2) + k}, v{src + (2*k+1) * nreg + (e >> 1)}, v{src + 2*k*nreg + (e >> 1)}, {PHI if e & 1 else PLO}')
    def poll(self, loads, check, sleep=2, pre=None):
        top = self.newlabel('Lp'); done = self.newlabel('Ld')
        if pre: self(f's_sleep {pre}')
        self.label(top)
        loads()
        self('s_waitcnt vmcnt(0)')
        check()
        self(f'''s_cbranch_vccz {done}
s_add_u32 {SPIN}, {SPIN}, 1
s_cmp_gt_u32 {SPIN}, {SPINMAX}
s_cbranch_scc1 {done}
s_sleep {sleep}
s_branch {top}''')
        self.label(done)
    def poll_masked(self, items, t, sleep=2, tag=False):
        top = self.newlabel('Lm'); done = self.newlabel('Lmd')
        for ld, regs in items: self(ld)
        self.label(top)
        self('s_waitcnt vmcnt(0)\ns_mov_b32 s49, 0')
        for ld, regs in items:
            skip = self.newlabel('Lms')
            if tag: self.chk_tag(regs, t)
            else: self.chk_sent(regs, t)
            self(f's_cbranch_vccz {skip}\ns_mov_b64 exec, vcc\n{ld}\ns_mov_b64 exec, -1\ns_mov_b32 s49, 1')
            self.label(skip)
        self(f'''s_cmp_eq_u32 s49, 0
s_cbranch_scc1 {done}
s_add_u32 {SPIN}, {SPIN}, 1
s_cmp_gt_u32 {SPIN}, {SPINMAX}
s_cbranch_scc1 {done}
s_sleep {sleep}
s_branch {top}''')
        self.label(done)
        self('s_waitcnt vmcnt(0)')
    def probe(self, va, t, off=0, sleep=1, post=None, tag=False, mask=1):
        self.exec_mask(mask)
        def ck():
            if tag: self(f'v_cmp_ne_u32 vcc, {TAG}, v{t}')
            else: self(f'v_cmp_eq_u32 vcc, -1, v{t}')
        self.poll(lambda: self(f'global_load_dword v{t}, v{va}, {WS} offset:{off} sc1'), ck, sleep=sleep)
        self.full()
        if post: self(f's_sleep {post}')
    def chk_sent(self, regs, t):
        regs = list(regs)
        if len(regs) == 1:
            self(f'v_cmp_eq_u32 vcc, -1, v{regs[0]}'); return
        if len(regs) == 2: self(f'v_max_u32 v{t}, v{regs[0]}, v{regs[1]}'); rest = []
        else: self(f'v_max3_u32 v{t}, v{regs[0]}, v{regs[1]}, v{regs[2]}'); rest = regs[3:]
        while rest:
            if len(rest) >= 2: self(f'v_max3_u32 v{t}, v{t}, v{rest[0]}, v{rest[1]}'); rest = rest[2:]
            else: self(f'v_max_u32 v{t}, v{t}, v{rest[0]}'); rest = []
        self(f'v_cmp_eq_u32 vcc, -1, v{t}')
    def chk_tag(self, regs, t):
        regs = list(regs)
        self(f'v_cmp_ne_u32 vcc, {TAG}, v{regs[0]}')
        for r in regs[1:]:
            self(f'v_cmp_ne_u32 s[50:51], {TAG}, v{r}\ns_or_b64 vcc, vcc, s[50:51]')
    def san(self, regs):
        for r in regs: self(f'v_min_u32 v{r}, -2, v{r}')
    def lanes_lt(self, n):
        assert n <= 64
        lo = (1 << min(n, 32)) - 1; hi = (1 << max(n - 32, 0)) - 1
        self(f's_mov_b32 exec_lo, {lo:#x}\ns_mov_b32 exec_hi, {hi:#x}')
    def exec_mask(self, m):
        self(f's_mov_b32 exec_lo, {m & 0xffffffff:#x}\ns_mov_b32 exec_hi, {m >> 32:#x}')
    def full(self): self('s_mov_b64 exec, -1')
    def bar(self): self('s_waitcnt lgkmcnt(0)\ns_barrier')
    def get_tag(self):
        self(f'''v_readfirstlane_b32 {TAG}, v15
s_mul_i32 {TAG}, {TAG}, 0x9E3779B1
s_add_u32 {TAG}, {TAG}, 0x7F4A7C15''')
    def ready_publish(self):
        self(f'''s_waitcnt vmcnt(0)''')
        self.get_tag()
        self(f'''s_lshl_b32 s40, s2, 4
s_add_u32 s40, s40, {READY}
v_mov_b32 v4, s40
v_mov_b32 v5, {TAG}''')
        self.lanes_lt(1)
        self(f'global_store_dword v4, v5, {WS} sc1')
        self.full()
    def ready_check(self, half, v=8):
        self(f'v_lshlrev_b32 v{v+2}, 4, v1\nv_add_u32 v{v+2}, {READY + 2048*half}, v{v+2}')
        def ld():
            for i in range(2): self(f'global_load_dword v{v+i}, v{v+2}, {WS} offset:{1024*i} sc1')
        self.poll(ld, lambda: self.chk_tag([v, v + 1], 0), sleep=4)
    def gemv2(self, D, A, F, first=True):
        for e in range(8):
            c = '0' if first else vr(D + 4*e, 4)
            self(f'v_mfma_f32_16x16x32_bf16 {vr(D+4*e,4)}, {vr(A,4)}, {vr(F+4*e,4)}, {c}')
    def pack2(self, o, D):
        for i in range(4):
            self(f'v_add_f32_dpp v{o+i}, v{D+4*i+1}, v{D+4*i} row_ror:8 row_mask:0xf bank_mask:0x3')
        for i in range(4):
            self(f'v_add_f32_dpp v{o+i}, v{D+4*(i+4)}, v{D+4*(i+4)+1} row_ror:8 row_mask:0xf bank_mask:0xc')
    def load_rows(self, dst, nreg, va, base, pitch, rows=8, pol='nt', t=None):
        op = {1: 'dword', 2: 'dwordx2', 4: 'dwordx4'}[nreg]
        per = 4095 // pitch + 1 if pitch <= 4095 else 1
        for j in range(rows):
            k = j % per
            self(f'global_load_{op} {vr(dst + j*nreg, nreg)}, v{va}, {base} offset:{k*pitch} {pol}')
            if k == per - 1 and j + 1 < rows: self(f'v_add_u32 v{va}, {per*pitch}, v{va}')

def consts(a):
    a(f'''s_mov_b32 {PLO}, 0x05040100
s_mov_b32 {PHI}, 0x07060302
s_mov_b32 {SPIN}, 0
s_mov_b32 s56, {L2E:#x}
s_mov_b32 s57, {L2E_LO:#x}
s_mov_b32 s58, {LN2:#x}
s_mov_b32 s59, {SCALE:#x}''')

def code_warm(a, v=4):
    n = a.P['warm_loads']
    a(f'''s_lshr_b32 s50, s2, 3
s_lshl_b32 s50, s50, 10
v_lshlrev_b32 v{v}, 4, v1
v_add_u32 v{v}, s50, v{v}
v_min_u32 v{v}, CODE_LAST, v{v}
global_load_dword v14, v{v}, s[36:37]''')
    if n > 1:
        a(f'''v_add_u32 v{v}, 32768, v{v}
v_min_u32 v{v}, CODE_LAST, v{v}
global_load_dword v14, v{v}, s[36:37]''')

CT, SPB, PB, STB, MISC = 0, 98304, 98304 + 34816, 98304 + 34816 + 9216, 98304 + 34816 + 9216 + 1024
def blk2_addr(a, v, srow, pitch, scol):
    a(f'''v_lshrrev_b32 v{v}, 3, v2
v_lshlrev_b32 v{v}, 5, v{v}
v_lshl_add_u32 v{v}, v3, 3, v{v}
v_add_u32 v{v}, {srow}, v{v}
v_mul_u32_u24 v{v}, {pitch}, v{v}
v_and_b32 v{v+1}, 7, v2
v_lshl_add_u32 v{v}, v{v+1}, 4, v{v}
v_add_u32 v{v}, {scol}, v{v}''')
def frag2_addr(a, v, sbase):
    a(f'v_and_b32 v{v}, 1, v2\nv_lshlrev_b32 v{v}, 6, v{v}\nv_lshl_add_u32 v{v}, v3, 4, v{v}\nv_add_u32 v{v}, {sbase}, v{v}')
def pack_addr(a, v, sbase):
    a(f'v_and_b32 v{v}, 7, v2\nv_lshlrev_b32 v{v}, 5, v{v}\nv_lshrrev_b32 v{v+1}, 3, v2\nv_lshl_add_u32 v{v}, v{v+1}, 4, v{v}\nv_add_u32 v{v}, {sbase}, v{v}')
def gemv_out_lds(a, D, base):
    a.pack2(8, D)
    a.lanes_lt(16)
    a('ds_write_b128 v14, v[8:11]')
    a.full()
def gemv_out_prep(a, base):
    a(f's_lshl_b32 s40, s3, 8\ns_add_u32 s40, s40, {base}')
    pack_addr(a, 14, 's40')
def tree(a, regs, stride=1, n=1):
    regs = list(regs)
    while len(regs) > 1:
        nxt = []
        for i in range(0, len(regs) - 1, 2):
            for k in range(n): a(f'v_add_f32 v{regs[i]+k}, v{regs[i]+k}, v{regs[i+1]+k}')
            nxt.append(regs[i])
        if len(regs) & 1: nxt.append(regs[-1])
        regs = nxt
def ln_finish(a, m, v, ri):
    a.rnd(m, m); a.rnd(v, v)
    a(f'v_add_f32 v{v}, {f2u(1e-5):#x}, v{v}')
    a.rnd(v, v)
    a(f'v_sqrt_f32 v{v}, v{v}')
    a.rnd(v, v)
    a.recip(ri, v, ri + 1)
def neg1(a, r=8):
    for i in range(4): a(f'v_mov_b32 v{r+i}, -1')

def role_B(a):
    P = a.P
    a(f'''s_mul_i32 s39, s2, 205
s_lshr_b32 s39, s39, 11          ; b/10
s_mul_i32 s40, s39, 10
s_sub_u32 s38, s2, s40           ; b%10
s_lshl_b32 s45, s39, 3
s_add_u32 s45, s45, s3
v_mov_b32 v12, 0
s_lshl_b32 s40, s38, 6
s_lshl_b32 s41, s45, 7''')
    blk2_addr(a, 4, 's40', 12288, 's41')
    a(f'''v_lshlrev_b32 v6, 2, v1
s_lshl_b32 s42, s3, 3
s_add_u32 s40, s40, s42
v_and_b32 v7, 7, v1
v_add_u32 v7, s40, v7
v_lshlrev_b32 v7, 1, v7
s_waitcnt lgkmcnt(0)''')
    a.stamp('start')
    a.wave_is('eq', 6, 'LB_not6')
    code_warm(a, 24)
    if P['tlb']:
        a(f'''v_lshlrev_b32 v24, 17, v1
global_load_dword v14, v24, {WS} offset:64 nt''')
    a.label('LB_not6')
    a.wave_is('eq', 7, 'LB_not7')
    neg1(a, 28)
    a(f'''s_mul_i32 s50, s39, 2560
s_lshl_b32 s51, s38, 8
s_add_u32 s50, s50, s51
s_add_u32 s50, s50, {H6}
s_lshl_b32 s51, s2, 8
s_add_u32 s51, s51, {MODR - 104*256}
s_cmp_lt_u32 s2, 104
s_cselect_b32 s50, s50, s51
v_lshl_add_u32 v24, v2, 4, s50
s_cmp_lt_u32 s2, 80
s_cbranch_scc1 LB_c1
s_cmp_lt_u32 s2, 104
s_cbranch_scc0 LB_c1
s_mul_i32 s50, s2, 2560
s_add_u32 s50, s50, {H7Y - 80*2560}
v_lshl_add_u32 v24, v1, 4, s50
global_store_dwordx4 v24, v[28:31], {WS} sc1
global_store_dwordx4 v24, v[28:31], {WS} offset:1024 sc1
v_and_b32 v24, 31, v1
v_lshl_add_u32 v24, v24, 4, s50
v_add_u32 v24, 2048, v24
LB_c1:
global_store_dwordx4 v24, v[28:31], {WS} sc1''')
    a.label('LB_not7')
    a(f'global_load_dword v15, v12, {WS} sc1')
    for k in range(5): a(f'global_load_dword v{16+k}, v6, {X} offset:{256*k}')
    a(f'global_load_ushort v21, v7, {X}')
    a('s_cmp_lt_u32 s2, 120\ns_cbranch_scc0 LB_nowq')
    a.load_rows(64, 4, 4, WQ, 12288)
    a.label('LB_nowq')
    a(f'''s_lshl_b32 s46, s2, 6
s_lshl_b32 s41, s3, 3
s_add_u32 s46, s46, s41
s_mul_i32 s46, s46, 1536           ; (64b+8w)*1536
s_and_b32 s47, s3, 1
s_lshl_b32 s47, s47, 3             ; 8*(w&1)
s_mul_i32 s48, s3, 12288
v_cmp_le_u32 vcc, 32, v1
v_add_u32 v56, 64, v1
v_subrev_u32 v57, 32, v1
v_cndmask_b32 v56, v56, v57, vcc
v_cndmask_b32 v58, 0, 1, vcc
v_xor_b32 v56, v56, v58
v_mul_u32_u24 v58, 1536, v58
v_add_u32 v57, 32, v1
v_xor_b32 v57, 1, v57''')
    def dma(lo, hi):
        for i in range(lo, hi):
            k, j = divmod(i, 3)
            src = ('v1', 'v56', 'v57')[j]
            a(f's_add_u32 s43, s47, {2*k}\nv_xor_b32 v8, s43, {src}')
            a(f's_add_u32 s44, s46, {2*k*1536 + (1536 if j == 2 else 0)}')
            if j == 1: a('v_lshl_add_u32 v8, v8, 4, v58\nv_add_u32 v8, s44, v8')
            else: a('v_lshl_add_u32 v8, v8, 4, s44')
            a(f's_add_u32 m0, s48, {i*1024}\nglobal_load_lds_dwordx4 v8, {CKV} nt')
    N1 = P['dma1']
    if N1: a('s_barrier')
    dma(0, N1)
    consts(a)
    a('s_cmp_lt_u32 s2, 120\ns_cbranch_scc1 LB_w8\ns_waitcnt vmcnt(' + str(N1) + ')\nLB_w8:')
    a(f's_waitcnt vmcnt({8+N1})')
    a.get_tag()
    for k in range(5): a(f'v_lshlrev_b32 v{24+2*k}, 16, v{16+k}\nv_and_b32 v{25+2*k}, 0xffff0000, v{16+k}')
    a('v_add_f32 v22, v24, v25')
    for k in range(2, 10): a(f'v_add_f32 v22, v22, v{24+k}')
    a.wave_red('v_add_f32', 22, 23)
    a(f'v_mul_f32 v22, {f2u(1/640):#x}, v22\nv_mov_b32 v23, 0')
    for k in range(10): a(f'v_sub_f32 v{24+k}, v{24+k}, v22\nv_fmac_f32 v23, v{24+k}, v{24+k}')
    a.wave_red('v_add_f32', 23, 24)
    a(f'v_mul_f32 v23, {f2u(1/640):#x}, v23')
    ln_finish(a, 22, 23, 24)
    a('v_lshlrev_b32 v21, 16, v21\nv_sub_f32 v21, v21, v22')
    a.rnd(21, 21)
    a.div(20, 21, 23, 24, 25)
    a.rnd(20, 20)
    a('s_cmp_lt_u32 s2, 120\ns_cbranch_scc0 LB_dma')
    a(f'''s_lshl_b32 s40, s38, 13
s_lshl_b32 s42, s3, 10
s_add_u32 s40, s40, s42
s_add_u32 s40, s40, {H1}
v_lshl_add_u32 v4, v1, 4, s40
s_lshl_b32 s40, s3, 4
s_add_u32 s40, s40, {MISC}
v_and_b32 v5, 7, v1
v_lshl_add_u32 v5, v5, 1, s40
s_mul_i32 s40, s45, 43
s_lshr_b32 s40, s40, 7
s_mul_i32 s42, s40, 3
s_sub_u32 s42, s45, s42
s_lshl_b32 s42, s42, 9
s_mul_i32 s40, s40, 15360
s_add_u32 s40, s40, s42
s_mul_i32 s42, s38, 1536
s_add_u32 s40, s40, s42
s_add_u32 s40, s40, {H1B}''')
    pack_addr(a, 6, 0)
    a(f'v_lshlrev_b32 v6, 1, v6\nv_lshl_add_u32 v6, v3, 4, v6\nv_add_u32 v6, s40, v6\nv_mov_b32 v61, {TAG}\nv_mov_b32 v63, {TAG}\nv_cmp_eq_u32 s[42:43], 1, v3')
    frag2_addr(a, 7, MISC)
    a(f's_waitcnt vmcnt({N1})')
    a.stamp('wq')
    a.perm_block(96, 64)
    def ck():
        a(f'v_xor_b32 v17, {TAG}, v17\nv_xor_b32 v19, {TAG}, v19\nv_or_b32 v17, v17, v19\nv_cmp_ne_u32 vcc, 0, v17')
    a.poll(lambda: a(f'global_load_dwordx4 v[16:19], v4, {WS} sc1'), ck, sleep=P['sl_h1'], pre=P['pre_h1'])
    a.stamp('h1')
    a('s_setprio 3')
    a('''v_add_f32_dpp v16, v16, v16 row_ror:8 row_mask:0xf bank_mask:0xf
v_add_f32_dpp v18, v18, v18 row_ror:8 row_mask:0xf bank_mask:0xf
v_permlane16_swap_b32 v16, v18
v_add_f32 v16, v16, v18
v_mov_b32 v18, v16
v_permlane32_swap_b32 v16, v18
v_add_f32 v16, v16, v18
v_mov_b32 v18, v16
v_permlane16_swap_b32 v16, v18''')
    a.rnd(16, 16); a.rnd(18, 18)
    a('v_add_f32 v18, 1.0, v18')
    a.rnd(18, 18)
    a('v_mul_f32 v18, v20, v18')
    a.rnd(18, 18)
    a('v_add_f32 v16, v18, v16\nv_cvt_pk_bf16_f32 v16, v16, v16\nds_write_b16 v5, v16')
    a.bar()
    a('ds_read_b128 v[16:19], v7\ns_waitcnt lgkmcnt(0)')
    a.gemv2(24, 16, 96, True)
    a.pack2(8, 24)
    a('v_cndmask_b32 v60, v8, v10, s[42:43]\nv_cndmask_b32 v62, v9, v11, s[42:43]')
    a.lanes_lt(32)
    a(f'global_store_dwordx4 v6, v[60:63], {WS} sc1')
    a.full()
    a.stamp('qpub')
    a('s_setprio 0\ns_barrier')
    a.label('LB_dma')
    a.wave_is('eq', 7, 'LB_nrp')
    a.ready_publish()
    a.label('LB_nrp')
    dma(N1, 12)
    a.wave_is('eq', 3, 'LB_nordy')
    a.ready_check(1)
    a.label('LB_nordy')
    a.wave_is('lt', 4, 'LB_qa')
    a(f'''v_lshrrev_b32 v4, 2, v2            ; rr
v_lshl_add_u32 v4, v3, 3, v4       ; 8g+rr
v_and_b32 v5, 3, v1                ; cc
s_mul_i32 s40, s3, 24
v_add_u32 v5, s40, v5              ; 24w+cc''')
    for t in range(6):
        for sub in range(2):
            a(f'''v_add_u32 v6, {4*sub}, v4
v_and_b32 v7, 15, v6
v_add_u32 v8, {4*t}, v5
v_xor_b32 v7, v7, v8
v_mul_u32_u24 v6, 1536, v6
v_lshl_add_u32 v{40+t*2+sub}, v7, 4, v6''')
    a('s_waitcnt vmcnt(0)\ns_barrier')
    a.stamp('ckv')
    for t in range(6):
        for sub in range(2):
            for hf in range(2):
                for ks in range(2):
                    r = 64 + ((t*2+hf)*2+ks)*4 + 2*sub
                    a(f'ds_read_b64_tr_b16 {vr(r,2)}, v{40+t*2+sub} offset:{ks*49152 + hf*8}')
    a(f'''s_mul_i32 s41, s2, 384
s_mul_i32 s40, s3, 49152
s_add_u32 s41, s41, s40
s_add_u32 s41, s41, {H4}
s_mov_b32 s40, 196608
v_and_b32 v52, 7, v2
v_mul_lo_u32 v52, v52, s40
v_lshl_add_u32 v52, v3, 4, v52
v_lshrrev_b32 v8, 3, v2
v_lshl_add_u32 v52, v8, 6, v52
v_add_u32 v52, s41, v52
v_add_u32 v53, {8*196608}, v52
v_add_u32 v54, {16*196608}, v52
v_add_u32 v55, {24*196608}, v52
s_lshl_b32 s40, s3, 11
s_lshl_b32 s41, s2, 4
s_add_u32 s40, s40, s41
s_add_u32 s40, s40, {AUX}
v_lshl_add_u32 v56, v1, 13, s40
s_lshl_b32 s40, s3, 7
s_add_u32 s40, s40, s2
s_lshl_b32 s40, s40, 7
s_add_u32 s40, s40, {DB4}
v_mov_b32 v8, s40
v_cmp_eq_u32 vcc, 32, v1
v_cndmask_b32 v56, v56, v8, vcc
v_and_b32 v57, 31, v1
v_lshlrev_b32 v57, 4, v57
v_add_u32 v57, {STB}, v57
s_branch LB_noqk''')
    a.label('LB_qa')
    a('s_sub_u32 s45, s3, 4\ns_mul_i32 s40, s45, 24\nv_add_u32 v5, s40, v3\nv_mul_u32_u24 v4, 1536, v2')
    for s_ in range(6):
        a(f'v_add_u32 v6, {4*s_}, v5\nv_xor_b32 v6, v6, v2\nv_lshl_add_u32 v{240+2*s_}, v6, 4, v4\nv_add_u32 v{241+2*s_}, 49152, v{240+2*s_}')
    a(f'''s_mul_i32 s40, s45, 12288
s_add_u32 s40, s40, {H2}
v_lshlrev_b32 v4, 6, v2
v_lshl_add_u32 v4, v3, 4, v4
v_add_u32 v4, s40, v4
v_add_u32 v5, 4096, v4
v_add_u32 v6, 8192, v4
s_and_b32 s41, s2, 3
s_lshl_b32 s41, s41, 6
s_add_u32 s40, s40, s41
s_add_u32 s40, s40, 10240
v_lshl_add_u32 v9, v1, 8, s40
s_mul_i32 s40, s45, {32*272}
s_add_u32 s40, s40, {SPB}
v_mul_u32_u24 v7, 272, v2
v_lshl_add_u32 v7, v3, 4, v7
v_add_u32 v7, s40, v7
v_mov_b32 v10, 0
s_mov_b64 exec, {P['k_h2']}
global_load_dword v10, v9, {WS} sc1
s_mov_b64 exec, -1
s_waitcnt vmcnt(0)
v_cmp_eq_u32 s[52:53], -1, v10
s_barrier''')
    for s_ in range(6):
        for kt in range(4):
            a(f'ds_read_b128 {vr(64+(kt*6+s_)*4,4)}, v{240 + 2*s_ + (kt >> 1)} offset:{(kt & 1)*24576}')
    a('s_cmp_eq_u64 s[52:53], 0\ns_cbranch_scc1 LB_h2go')
    a.probe(9, 8, sleep=P['sl_pr'], post=P['post_h2'], mask=P['k_h2'])
    a.label('LB_h2go')
    def ld():
        for i in range(12): a(f'global_load_dwordx4 {vr(16+4*i,4)}, v{4 + i//4}, {WS} offset:{(i%4)*1024} sc1')
    if P['m_h2']:
        a.poll_masked([(f'global_load_dwordx4 {vr(16+4*i,4)}, v{4 + i//4}, {WS} offset:{(i%4)*1024} sc1', range(16+4*i, 20+4*i)) for i in range(12)], 8, sleep=P['sl_h2'])
    else: a.poll(ld, lambda: a.chk_sent(range(16, 64), 8), sleep=P['sl_h2'])
    a('s_waitcnt lgkmcnt(0)')
    a.stamp('h2')
    a('s_setprio 3')
    for kt in range(4):
        for ht in range(2):
            for s_ in range(6):
                d = 224 + (kt*2+ht)*4
                a(f'v_mfma_f32_16x16x32_bf16 {vr(d,4)}, {vr(64+(kt*6+s_)*4,4)}, {vr(16+(s_*2+ht)*4,4)}, {"0" if s_ == 0 else vr(d,4)}')
        if kt >= 1:
            for ht in range(2): a(f'ds_write_b128 v7, {vr(224+((kt-1)*2+ht)*4,4)} offset:{ht*16*272 + (kt-1)*64}')
    for ht in range(2): a(f'ds_write_b128 v7, {vr(224+(3*2+ht)*4,4)} offset:{ht*16*272 + 3*64}')
    a.label('LB_noqk')
    a(f'''s_lshl_b32 s40, s3, 2
v_add_u32 v9, s40, v3              ; head = 4w+g
v_mul_u32_u24 v4, 272, v9
v_lshl_add_u32 v4, v2, 4, v4
v_add_u32 v4, {SPB}, v4
v_mul_u32_u24 v5, 144, v9
v_lshl_add_u32 v5, v2, 3, v5
v_add_u32 v5, {PB}, v5
s_lshl_b32 s40, s2, 4
s_add_u32 s40, s40, {H3}
v_lshl_add_u32 v6, v9, 11, s40
v_lshlrev_b32 v7, 4, v9
v_add_u32 v7, {STB}, v7
v_lshlrev_b32 v10, 2, v2           ; 4*kq
v_mov_b32 v45, {TAG}
v_mov_b32 v47, {TAG}
s_lshl_b32 s40, s2, 7
s_add_u32 s40, s40, {DB3}
v_mov_b32 v8, s40
v_cmp_eq_u32 vcc, 1, v1
v_cndmask_b32 v6, v6, v8, vcc
s_cmp_eq_u32 s3, 7
s_cselect_b32 s49, 2, 0
s_or_b32 s49, s49, 0x00010001
v_mov_b32 v58, {STB + 512}
v_mov_b32 v13, 0
ds_write_b64 v58, v[12:13]''')
    for i in range(4): a(f'v_add_u32 v{40+i}, {i}, v10')
    a.bar()
    a.stamp('qk')
    a('s_setprio 3')
    for i in range(4): a(f'ds_read_b128 {vr(16+4*i,4)}, v4 offset:{8704*i}')
    a(f'''v_mul_u32_u24 v4, 144, v2
v_lshl_add_u32 v4, v3, 4, v4
v_add_u32 v4, {PB}, v4
v_mov_b32 v11, {NEGINF:#x}
s_mov_b32 s40, 0xffffffc0
s_waitcnt lgkmcnt(0)''')
    for i in range(4):
        a(f'v_add_f32 v{16+i}, v{16+i}, v{20+i}\nv_add_f32 v{24+i}, v{24+i}, v{28+i}')
    for i in range(4): a(f'v_add_f32 v{32+i}, v{16+i}, v{24+i}')
    for i in range(4): a(f'v_and_or_b32 v{36+i}, v{32+i}, s40, v{40+i}')
    a('v_max3_f32 v50, v36, v37, v38\nv_max_f32 v50, v50, v39')
    for i in range(4): a(f'v_cvt_pk_bf16_f32 v{32+i}, v{32+i}, v{32+i}')
    a.row_red('v_max_f32', [50])
    a.rnd(44, 50)
    a('v_mul_f32 v44, s59, v44\nv_and_b32 v46, 63, v50')
    a.rnd(44, 44)
    a('s_mov_b32 exec_lo, s49\ns_mov_b32 exec_hi, 0x00010001')
    a(f'global_store_dwordx4 v6, v[44:47], {WS} sc1')
    a.full()
    a.stamp('h3pub')
    for i in range(4): a(f'v_and_b32 v{32+i}, 0xffff0000, v{32+i}')
    for i in range(4): a(f'v_mul_f32 v{32+i}, s59, v{32+i}')
    for i in range(4): a.rnd(32 + i, 32 + i)
    for i in range(4):
        a(f'v_cmp_eq_u32 s[{50+2*(i&1)}:{51+2*(i&1)}], v{40+i}, v46\nv_cndmask_b32 v{32+i}, v{32+i}, v11, s[{50+2*(i&1)}:{51+2*(i&1)}]\nv_cndmask_b32 v{24+i}, 0, 1.0, s[{50+2*(i&1)}:{51+2*(i&1)}]')
    a('v_max3_f32 v50, v32, v33, v34\nv_max_f32 v50, v50, v35')
    a.row_red('v_max_f32', [50])
    a('v_sub_f32 v28, v50, v44')
    for i in range(4): a(f'v_sub_f32 v{32+i}, v{32+i}, v50')
    a('v_mul_f32 v28, s56, v28')
    for i in range(4): a(f'v_mul_f32 v{32+i}, s56, v{32+i}')
    a('v_exp_f32 v28, v28')
    for i in range(4): a(f'v_exp_f32 v{32+i}, v{32+i}')
    for i in range(4): a(f'v_fmac_f32 v{24+i}, v{32+i}, v28')
    a(f'''v_cvt_pk_bf16_f32 v36, v24, v25
v_cvt_pk_bf16_f32 v37, v26, v27
ds_write_b64 v5, v[36:37]
v_add_f32 v51, v32, v33
v_add_f32 v49, v34, v35
v_add_f32 v51, v51, v49
v_cvt_pk_bf16_f32 v38, v32, v33
v_cvt_pk_bf16_f32 v39, v34, v35
ds_write_b64 v5, v[38:39] offset:4608
v_mov_b32 v48, v44''')
    a.row_red('v_add_f32', [51])
    a('v_fma_f32 v49, v51, v28, 1.0\nds_write_b128 v7, v[48:51]')
    a.stamp('xa')
    a.bar()
    a.stamp('xb')
    a.wave_is('lt', 4, 'LB_lw')
    for ht in range(2):
        for ks in range(2): a(f'ds_read_b128 {vr(16+(ht*2+ks)*4,4)}, v4 offset:{ht*16*144 + ks*64}')
    a('ds_read_b128 v[36:39], v57\ns_waitcnt lgkmcnt(1)')
    def unit(i):
        cl, ht = i >> 1, i & 1
        for tp in range(2):
            for hf in range(2):
                d = 160 + (i % 3)*16 + (tp*2+hf)*4
                t = cl*2 + tp
                for ks in range(2):
                    a(f'v_mfma_f32_16x16x32_bf16 {vr(d,4)}, {vr(64+((t*2+hf)*2+ks)*4,4)}, {vr(16+(ht*2+ks)*4,4)}, {"0" if ks == 0 else vr(d,4)}')
    def ust(i):
        cl, ht = i >> 1, i & 1
        d = 160 + (i % 3)*16; o = 208 + (i % 4)*12
        for k in range(4): a(f'v_cvt_pk_bf16_f32 v{o+k}, v{d+2*k}, v{d+2*k+1}')
        for k in range(4): a(f'v_cvt_pk_bf16_f32 v{o+4+k}, v{d+8+2*k}, v{d+8+2*k+1}')
        for k in range(4): a(f'v_mov_b32 v{o+8+k}, v{o+k}')
        for k in range(4): a(f'v_mov_b32_dpp v{o+k}, v{o+4+k} row_ror:8 row_mask:0xf bank_mask:0xc')
        a(f'global_store_dwordx4 v{52+2*ht}, {vr(o,4)}, {WS} offset:{128*cl} sc1 {"nt" if P["pv_nt"] else ""}')
        for k in range(4): a(f'v_mov_b32_dpp v{o+4+k}, v{o+8+k} row_ror:8 row_mask:0xf bank_mask:0x3')
        a(f'global_store_dwordx4 v{53+2*ht}, {vr(o+4,4)}, {WS} offset:{128*cl} sc1 {"nt" if P["pv_nt"] else ""}')
    a.stamp('xc')
    unit(0)
    for i in range(1, 6):
        unit(i); ust(i - 1)
        if i in (1, 3): a.stamp(f'xd{i}')
    ust(5)
    a(f'v_mov_b32 v8, 1\nv_mov_b32 v33, {TAG}\nv_mov_b32 v32, v36\nv_mov_b32 v34, v37\nv_mov_b32 v35, {TAG}')
    a.lanes_lt(1)
    a('ds_add_u32 v58, v8')
    a.stamp('pvst')
    a.lanes_lt(32)
    a(f's_waitcnt vmcnt(0)\nglobal_store_dwordx4 v56, v[32:35], {WS} sc1')
    a.full()
    a.stamp('auxpub')
    a(f'''v_lshlrev_b32 v9, 2, v2
v_add_u32 v9, {STB + 576}, v9
s_lshl_b32 s40, s3, 9
s_add_u32 s40, s40, {SIDE}
v_lshlrev_b32 v10, 13, v2
v_lshl_add_u32 v10, v3, 4, v10
v_add_u32 v10, s40, v10
v_lshlrev_b32 v11, 4, v2
v_add_u32 v11, {STB}, v11
LB_cw:
s_sleep 1
ds_read_b32 v8, v58 offset:4
ds_read2_b32 v[40:41], v9 offset0:0 offset1:16
s_waitcnt lgkmcnt(0)
v_cmp_eq_u32 vcc, 0, v8
s_cbranch_vccnz LB_cw''')
    for ht in range(2):
        a(f'''v_cmp_gt_u32 s[42:43], 4, v{40+ht}
s_cmp_eq_u64 s[42:43], 0
s_cbranch_scc1 LB_cn{ht}
ds_read_b128 v[16:19], v4 offset:{4608 + ht*16*144}
ds_read_b128 v[20:23], v4 offset:{4608 + ht*16*144 + 64}
ds_read_b64 v[44:45], v11 offset:{ht*256 + 8}
v_and_b32 v42, 3, v{40+ht}
v_lshl_add_u32 v42, v42, 11, v10
v_add_u32 v42, {ht*16*8192}, v42
s_waitcnt lgkmcnt(0)''')
        for t in range(6):
            for hf in range(2):
                d = 160 + (t*2+hf)*4
                for ks in range(2):
                    a(f'v_mfma_f32_16x16x32_bf16 {vr(d,4)}, {vr(64+((t*2+hf)*2+ks)*4,4)}, {vr(16+ks*4,4)}, {"0" if ks == 0 else vr(d,4)}')
        for t in range(6):
            for k in range(4): a(f'v_cvt_pk_bf16_f32 v{208+4*t+k}, v{160+8*t+2*k}, v{161+8*t+2*k}')
        a.san(range(208, 232))
        a(f'v_mov_b32 v46, v45\nv_mov_b32 v45, {TAG}\nv_mov_b32 v47, {TAG}\ns_mov_b64 exec, s[42:43]')
        for t in range(6): a(f'global_store_dwordx4 v42, {vr(208+4*t,4)}, {WS} offset:{64*t} sc1')
        a(f's_and_b64 exec, exec, 0xffff\nglobal_store_dwordx4 v42, v[44:47], {WS} offset:384 sc1')
        a.full()
        a.label(f'LB_cn{ht}')
    a('v_mov_b32 v8, 1')
    a.lanes_lt(1)
    a('ds_add_u32 v58, v8')
    a.full()
    a('s_branch LB_lw2')
    a.label('LB_lw')
    a('s_setprio 0')
    a.wave_is('eq', 4, 'LB_lw2')
    a(f'''v_and_b32 v9, 31, v1
v_lshlrev_b32 v10, 2, v9
v_add_u32 v10, {STB + 576}, v10
v_lshlrev_b32 v9, 7, v9
v_add_u32 v9, {ELIST}, v9
LB_ew:
s_sleep 2
ds_read_b32 v8, v58
s_waitcnt lgkmcnt(0)
v_cmp_gt_u32 vcc, {P['ew_cnt']}, v8
s_cbranch_vccnz LB_ew''')
    a.poll(lambda: a(f'global_load_dwordx4 v[16:19], v9, {WS} sc1\nglobal_load_dwordx4 v[20:23], v9, {WS} offset:16 sc1'),
           lambda: a.chk_tag(range(17, 24, 2), 8), sleep=P['sl_el'])
    a.stamp('el')
    a('v_mov_b32 v8, 15')
    for j in range(4): a(f'v_cmp_eq_u32 vcc, s2, v{16+2*j}\nv_cndmask_b32 v8, v8, {j}, vcc' if False else f'v_cmp_ne_u32 vcc, s2, v{16+2*j}\nv_cndmask_b32 v8, {j}, v8, vcc')
    a('ds_write_b32 v10, v8\nv_mov_b32 v8, 1\nds_write_b32 v58, v8 offset:4')
    a.label('LB_lw2')
    a(f'''s_sleep {P['sl_lw']}
ds_read_b32 v8, v58
s_waitcnt lgkmcnt(0)
v_cmp_gt_u32 vcc, 8, v8
s_cbranch_vccnz LB_lw2''')
    a.label('LB_late')
    a('s_cmp_lt_u32 s2, 80\ns_cbranch_scc0 LB_hi')
    a.wave_is('ge', 4, 'LB_wob')
    a(f'''s_mul_i32 s40, s39, 768
s_mul_i32 s41, s45, 192
s_add_u32 s40, s40, s41
s_lshl_b32 s41, s38, 7''')
    blk2_addr(a, 4, 's40', 1280, 's41')
    a(f'v_add_u32 v5, {64*1280}, v4\nv_add_u32 v6, {128*1280}, v4')
    for i in range(3): a.load_rows(64 + 32*i, 4, 4 + i, WO, 1280)
    a(f'''s_mul_i32 s40, s39, 12
s_mul_i32 s41, s45, 3
s_add_u32 s40, s40, s41
s_lshl_b32 s40, s40, 10
s_add_u32 s40, s40, {H5}
v_lshl_add_u32 v4, v1, 4, s40
s_mul_i32 s40, s45, 384
s_add_u32 s40, s40, {MISC + 4096}
v_lshl_add_u32 v5, v2, 2, v3
v_lshl_add_u32 v5, v5, 1, s40      ; (4p+g)*2''')
    frag2_addr(a, 6, 's40')
    gemv_out_prep(a, MISC + 2048 - 1024)
    for i in range(3):
        a(f's_waitcnt vmcnt({16 - 8*i})')
        a.perm_block(160 + 32*i, 64 + 32*i)
    a.stamp('late')
    if P['probe_h5']: a.probe(4, 8, off=2048, sleep=P['sl_pr'], post=P['post_h5'], mask=0x0001000100010001)
    def ld():
        for i in range(3): a(f'global_load_dwordx4 {vr(16+4*i,4)}, v4, {WS} offset:{1024*i} sc1')
    a.poll(ld, lambda: a.chk_sent(range(16, 28), 8), sleep=P['sl_h5'])
    a.stamp('h5')
    a('s_setprio 3')
    for i in range(3): a.xrow_tr4(16 + 4*i)
    for i in range(3): a(f'v_cvt_pk_bf16_f32 v{16+4*i}, v{16+4*i}, v{16+4*i}\nds_write_b16 v5, v{16+4*i} offset:{128*i}')
    a('s_waitcnt lgkmcnt(0)')
    for i in range(3): a(f'ds_read_b128 {vr(16+4*i,4)}, v6 offset:{128*i}')
    for i in range(3):
        a(f's_waitcnt lgkmcnt({2-i})')
        a.gemv2(64, 16 + 4*i, 160 + 32*i, i == 0)
    gemv_out_lds(a, 64, 0)
    a.label('LB_wob')
    a(f'''v_lshlrev_b32 v4, 2, v1
v_add_u32 v4, {MISC + 2048}, v4
s_mul_i32 s40, s39, 2560
s_lshl_b32 s41, s38, 8
s_add_u32 s40, s40, s41
s_add_u32 s40, s40, {H6}
v_lshl_add_u32 v5, v1, 2, s40''')
    a.bar()
    a.wave_is('eq', 4, 'Lfin')
    for i in range(2): a(f'ds_read2st64_b32 {vr(16+2*i,2)}, v4 offset0:{2*i} offset1:{2*i+1}')
    a('s_waitcnt lgkmcnt(0)')
    tree(a, range(16, 20))
    a(f'global_store_dword v5, v16, {WS} sc1')
    a.stamp('h6pub')
    a('s_branch Lfin')
    a.label('LB_hi')
    a('s_cmp_lt_u32 s2, 104\ns_cbranch_scc0 LB_mr')
    a(f's_sub_u32 s46, s2, 80\ns_lshl_b32 s40, s46, 6\ns_lshl_b32 s41, s3, 7')
    blk2_addr(a, 10, 's40', 1280, 's41')
    a.wave_is('lt', 5, 'LB_f5')
    a(f's_lshl_b32 s40, s3, 7\ns_lshl_b32 s41, s46, 7')
    blk2_addr(a, 4, 's40', 3072, 's41')
    a(f'v_add_u32 v5, {64*3072}, v4\nv_lshlrev_b32 v6, 2, v0\nglobal_load_dword v24, v6, {X}')
    a.load_rows(128, 4, 4, W1, 3072)
    a.load_rows(160, 4, 5, W1, 3072)
    a.load_rows(64, 4, 10, W2, 1280)
    a(f'v_lshlrev_b32 v4, 2, v0\nv_add_u32 v4, {MODR}, v4\nv_add_u32 v5, 2560, v4\ns_waitcnt vmcnt(8)')
    a.perm_block(192, 128)
    a.perm_block(224, 160)
    a('s_waitcnt vmcnt(0)')
    a.stamp('late1')
    a.perm_block(96, 64)
    a.ready_check(0, 36)
    def ld():
        a(f'''global_load_dword v25, v4, {WS} sc1
global_load_dword v26, v4, {WS} offset:1280 sc1
global_load_dword v27, v5, {WS} sc1
global_load_dword v38, v5, {WS} offset:1280 sc1''')
    a.poll(ld, lambda: a.chk_sent([25, 26, 27, 38], 8), sleep=8)
    a(f'''v_lshlrev_b32 v4, 3, v0
v_add_u32 v8, {H6}, v4
v_lshlrev_b32 v28, 16, v24
v_and_b32 v29, 0xffff0000, v24
v_lshlrev_b32 v30, 16, v25
v_and_b32 v31, 0xffff0000, v25
v_lshlrev_b32 v32, 16, v26
v_and_b32 v33, 0xffff0000, v26
v_lshlrev_b32 v34, 16, v27
v_and_b32 v35, 0xffff0000, v27
v_add_f32 v34, 1.0, v34
v_add_f32 v35, 1.0, v35''')
    a.rnd(34, 34); a.rnd(35, 35)
    for i in range(1, 4): a(f'v_add_u32 v{8+i}, {5120*i}, v8')
    a(f'''s_lshl_b32 s40, s3, 3
s_add_u32 s40, s40, {MISC + 8192}
v_mov_b32 v13, s40
s_lshl_b32 s40, s3, 8
s_add_u32 s40, s40, {MISC + 4096}
v_lshl_add_u32 v5, v1, 2, s40''')
    frag2_addr(a, 6, 's40')
    gemv_out_prep(a, MISC)
    a(f'v_mul_u32_u24 v37, 2560, v1\ns_lshl_b32 s40, s3, 9\ns_add_u32 s40, s40, {H6}\nv_add_u32 v37, s40, v37')
    if P['probe_h6']: a.probe(37, 4, sleep=P['sl_pr'], post=P['post_h6'], mask=0xff)
    def ld():
        for i in range(8): a(f'global_load_dwordx2 {vr(40+2*i,2)}, v{8 + i//2}, {WS} offset:{2560*(i%2)} sc1')
    if P['m_h6']:
        a.poll_masked([(f'global_load_dwordx2 {vr(40+2*i,2)}, v{8 + i//2}, {WS} offset:{2560*(i%2)} sc1', range(40+2*i, 42+2*i)) for i in range(8)], 4, sleep=P['sl_h6'])
    else: a.poll(ld, lambda: a.chk_sent(range(40, 56), 4), sleep=P['sl_h6'])
    a.stamp('h6')
    a('s_setprio 3')
    tree(a, range(40, 56, 2), n=2)
    for i in range(2): a.rnd(40 + i, 40 + i)
    for i in range(2): a(f'v_mul_f32 v{40+i}, v{30+i}, v{40+i}')
    for i in range(2): a.rnd(40 + i, 40 + i)
    for i in range(2): a(f'v_add_f32 v{40+i}, v{28+i}, v{40+i}')
    a('''v_cvt_pk_bf16_f32 v36, v40, v41
v_lshlrev_b32 v40, 16, v36
v_and_b32 v41, 0xffff0000, v36
v_readfirstlane_b32 s42, v40
v_subrev_f32 v44, s42, v40
v_subrev_f32 v45, s42, v41
v_add_f32 v42, v44, v45
v_mul_f32 v43, v44, v44
v_fmac_f32 v43, v45, v45''')
    a.row_red('v_add_f32', [42, 43])
    a(f'''v_permlane16_swap_b32 v42, v43
v_add_f32 v42, v42, v43
v_mov_b32 v43, v42
v_permlane32_swap_b32 v42, v43
v_add_f32 v42, v42, v43
v_mov_b32 v43, v42
v_permlane16_swap_b32 v42, v43
v_mul_f32 v42, {f2u(1/128):#x}, v42
v_mul_f32 v44, {f2u(128.0):#x}, v42
v_fma_f32 v43, -v44, v42, v43
v_add_f32 v42, s42, v42
ds_write_b64 v13, v[42:43]
s_branch LB_w1b''')
    a.label('LB_f5')
    a.load_rows(64, 4, 10, W2, 1280)
    a.wave_is('lt', 7, 'LB_f7')
    a(f's_lshl_b32 s40, s46, 6\ns_add_u32 s41, s3, 3\ns_lshl_b32 s41, s41, 7')
    blk2_addr(a, 10, 's40', 1280, 's41')
    a.load_rows(128, 4, 10, W2, 1280)
    a.label('LB_f7')
    a('s_waitcnt vmcnt(0)')
    a.perm_block(96, 64)
    a.perm_block(192, 128)
    a.label('LB_w1b')
    a(f'v_mov_b32 v4, {MISC + 8192}')
    a.bar()
    a('s_setprio 3')
    a.wave_is('lt', 5, 'LB_w1c')
    a(f'''ds_read_b128 v[44:47], v4
ds_read_b128 v[48:51], v4 offset:16
ds_read_b64 v[52:53], v4 offset:32
s_waitcnt lgkmcnt(0)
v_add_f32 v54, v44, v46
v_add_f32 v55, v48, v50
v_add_f32 v56, v45, v47
v_add_f32 v54, v54, v55
v_add_f32 v57, v49, v51
v_add_f32 v54, v54, v52
v_add_f32 v55, v56, v57
v_mul_f32 v54, {f2u(0.2):#x}, v54      ; mean
v_add_f32 v55, v55, v53''')
    for r in (44, 46, 48, 50, 52): a(f'v_sub_f32 v{r}, v{r}, v54')
    a('v_mul_f32 v56, v44, v44\nv_mul_f32 v57, v46, v46\nv_fmac_f32 v56, v48, v48\nv_fmac_f32 v57, v50, v50\nv_fmac_f32 v56, v52, v52\nv_add_f32 v56, v56, v57')
    a(f'v_fmac_f32 v55, {f2u(128.0):#x}, v56\nv_mul_f32 v55, {f2u(1/640):#x}, v55')
    ln_finish(a, 54, 55, 56)
    for i in range(2): a(f'v_sub_f32 v{44+i}, v{40+i}, v54')
    for i in range(2): a.rnd(44 + i, 44 + i)
    for i in range(2): a.div(42 + i, 44 + i, 55, 56, 57 + i)
    for i in range(2): a.rnd(42 + i, 42 + i)
    for i in range(2): a(f'v_mul_f32 v{42+i}, v{42+i}, v{34+i}')
    for i in range(2): a.rnd(42 + i, 42 + i)
    for i in range(2): a(f'v_add_f32 v{42+i}, v{42+i}, v{32+i}')
    a('''v_cvt_pk_bf16_f32 v42, v42, v43
ds_write_b32 v5, v42
s_waitcnt lgkmcnt(0)
ds_read_b128 v[16:19], v6
ds_read_b128 v[20:23], v6 offset:128
s_waitcnt lgkmcnt(1)''')
    a.gemv2(128, 16, 192, True)
    a('s_waitcnt lgkmcnt(0)')
    a.gemv2(128, 20, 224, False)
    gemv_out_lds(a, 128, MISC)
    a.label('LB_w1c')
    a(f'''v_and_b32 v4, 31, v1
v_lshlrev_b32 v5, 2, v4
v_lshlrev_b32 v4, 3, v4
v_add_u32 v4, {MISC}, v4
s_lshl_b32 s40, s3, 7
s_add_u32 s40, s40, {MISC + 6144}
v_add_u32 v5, s40, v5''')
    frag2_addr(a, 6, 's40')
    a(f's_mul_i32 s40, s46, 2560\ns_lshl_b32 s41, s3, 8\ns_add_u32 s40, s40, s41\ns_add_u32 s40, s40, {H7Y}')
    pack_addr(a, 14, 's40')
    a.bar()
    for i in range(5): a(f'ds_read_b64 {vr(16+2*i,2)}, v4 offset:{256*i}')
    a('s_waitcnt lgkmcnt(0)')
    tree(a, range(16, 26, 2), n=2)
    a('''v_max_f32 v16, 0, v16
v_max_f32 v17, 0, v17
v_cvt_pk_bf16_f32 v8, v16, v17
ds_write_b32 v5, v8
s_waitcnt lgkmcnt(0)
ds_read_b128 v[16:19], v6
s_waitcnt lgkmcnt(0)''')
    a.gemv2(64, 16, 96, True)
    a('s_sub_u32 s40, s3, 5\ns_cmp_lt_u32 s40, 2\ns_cbranch_scc0 LB_y1')
    a.gemv2(128, 16, 192, True)
    a.label('LB_y1')
    a.pack2(8, 64)
    a.lanes_lt(16)
    a(f'global_store_dwordx4 v14, v[8:11], {WS} sc1')
    a.full()
    a('s_cbranch_scc0 LB_y2')
    a.pack2(20, 128)
    a.lanes_lt(16)
    a(f'global_store_dwordx4 v14, v[20:23], {WS} offset:768 sc1')
    a.full()
    a.label('LB_y2')
    a.stamp('h7pub')
    a('s_lshr_b32 s40, s46, 2\ns_cmp_eq_u32 s40, s3\ns_cbranch_scc0 Lfin\ns_cmp_lt_u32 s3, 5\ns_cbranch_scc0 Lfin\ns_and_b32 s40, s46, 3\ns_lshl_b32 s40, s40, 4\ns_mov_b64 s[42:43], 0xffff\ns_lshl_b64 exec, s[42:43], s40')
    a(f'v_lshlrev_b32 v4, 3, v0\nv_add_u32 v4, {H7Y}, v4')
    for i in range(1, 12): a(f'v_add_u32 v{16+i}, {5120*i}, v4')
    a(f'''v_mov_b32 v16, v4
v_lshlrev_b32 v5, 2, v0
v_lshlrev_b32 v30, 16, v38
v_and_b32 v31, 0xffff0000, v38''')
    def ld():
        for i in range(24): a(f'global_load_dwordx2 {vr(64+2*i,2)}, v{16 + i//2}, {WS} offset:{2560*(i%2)} sc1')
    a.poll(ld, lambda: a.chk_sent(range(64, 112), 4), sleep=P['sl_h7'], pre=P['pre_h7'])
    a.stamp('h7')
    tree(a, range(64, 112, 2), n=2)
    for i in range(2): a.rnd(64 + i, 64 + i)
    for i in range(2): a(f'v_mul_f32 v{64+i}, v{30+i}, v{64+i}')
    for i in range(2): a.rnd(64 + i, 64 + i)
    for i in range(2): a(f'v_add_f32 v{64+i}, v{40+i}, v{64+i}')
    a(f'v_cvt_pk_bf16_f32 v64, v64, v65\nglobal_store_dword v5, v64, {OUT}\ns_mov_b64 exec, -1')
    a.stamp('out')
    a('s_branch Lfin')
    a.label('LB_mr')
    a('s_cmp_lt_u32 s2, 124\ns_cbranch_scc0 Lfin\ns_sub_u32 s46, s2, 104')
    a.wave_is('lt', 5, 'LB_mrb')
    a(f'''s_lshl_b32 s40, s3, 7
v_lshl_add_u32 v4, v3, 3, s40      ; row = 128w + 8g
v_lshlrev_b32 v6, 1, v4
v_add_u32 v6, {MISC + 4096}, v6
v_mul_u32_u24 v4, 7680, v4
v_lshl_add_u32 v4, v2, 4, v4
s_lshl_b32 s40, s46, 8
s_add_u32 s40, s40, 2560
v_add_u32 v4, s40, v4
v_lshlrev_b32 v7, 2, v0
global_load_dword v16, v7, {CC}
v_add_u32 v7, {MISC + 4096}, v7''')
    for i in range(4):
        a.load_rows(64 + 32*i, 4, 4, WMOD, 7680)
        if i < 3: a(f'v_add_u32 v4, {25*7680}, v4')
    a('s_waitcnt vmcnt(32)')
    a('v_lshlrev_b32 v32, 16, v16\nv_and_b32 v33, 0xffff0000, v16')
    a.silu(32, 32, 8); a.silu(33, 33, 8)
    a(f'v_perm_b32 v16, v33, v32, {PHI}\nds_write_b32 v7, v16\ns_waitcnt lgkmcnt(0)')
    for i in range(4): a(f'ds_read_b128 {vr(16+4*i,4)}, v6 offset:{64*i}')
    a('s_waitcnt lgkmcnt(0)')
    a(f'''v_cmp_eq_u32 s[42:43], 1, v3
v_lshlrev_b32 v4, 5, v2
v_lshl_add_u32 v4, v3, 4, v4
s_lshl_b32 s40, s3, 9
s_add_u32 s40, s40, {MISC}
v_add_u32 v4, s40, v4''')
    for i in range(4):
        a(f's_waitcnt vmcnt({24 - 8*i})')
        a.perm_block(192, 64 + 32*i)
        a.gemv2(224, 16 + 4*i, 192, i == 0)
    a.stamp('late2')
    for i in range(4): a(f'v_cndmask_b32 v{8+i}, v{224+4*i}, v{224+4*(i+4)}, s[42:43]')
    a.lanes_lt(32)
    a('ds_write_b128 v4, v[8:11]')
    a.full()
    a.label('LB_mrb')
    a.bar()
    a.wave_is('eq', 0, 'Lfin')
    a(f'v_lshlrev_b32 v4, 3, v1\nv_add_u32 v4, {MISC}, v4')
    for i in range(5): a(f'ds_read_b64 {vr(16+2*i,2)}, v4 offset:{512*i}')
    a(f's_lshl_b32 s40, s46, 8\ns_add_u32 s40, s40, {MODR}\nv_lshl_add_u32 v4, v1, 2, s40\ns_waitcnt lgkmcnt(0)')
    tree(a, range(16, 26, 2), n=2)
    a('v_cvt_pk_bf16_f32 v8, v16, v17')
    a.san([8])
    a(f'global_store_dword v4, v8, {WS} sc1')
    a.stamp('mrpub')
    a('s_branch Lfin')

LS1, LQ, LKEY, LEK, LWT, LWP, LFW, LKP = 0, 2816, 3328, 3840, 4096, 4608, 5120, 6144
LRP = LKP + 18432; LCC = LRP + 6144; LVP = LCC + 1024; LQF = LVP + 4608; LSR = LQF + 1024; LFL = LSR + 1536
def load_uk(a, base, off=128, lo=0, hi=8, v=4):
    if lo == hi: return
    a(f'''s_mul_i32 s40, s41, 192
s_lshl_b32 s42, s3, 5
s_add_u32 s40, s40, s42
s_add_u32 s40, s40, {lo}
v_lshl_add_u32 v{v}, v3, 3, s40
v_mul_u32_u24 v{v}, 12288, v{v}
s_mul_i32 s40, s47, 384
v_add_u32 v{v}, s40, v{v}
v_lshl_add_u32 v{v+1}, v2, 3, v{v}
v_lshl_add_u32 v{v}, v2, 4, v{v}''')
    for j in range(lo, hi):
        a(f'global_load_dwordx4 {vr(off+4*j,4)}, v{v}, {base} nt')
        a(f'global_load_dwordx2 {vr(off+32+2*j,2)}, v{v+1}, {base} offset:256 nt')
        if j < hi - 1: a(f'v_add_u32 v{v}, 12288, v{v}\nv_add_u32 v{v+1}, 12288, v{v+1}')
def perm12(a, dst, src=128):
    a.perm_block(dst, src, nreg=4); a.perm_block(dst + 32, src + 32, nreg=2)
def mfma12(a, D, A, F):
    for e in range(12): a(f'v_mfma_f32_16x16x32_bf16 {vr(D+4*e,4)}, {vr(A,4)}, {vr(F+4*e,4)}, 0')
def out12_prep(a, v, lbase):
    a(f's_mul_i32 s40, s3, 768\ns_add_u32 s40, s40, {lbase}\nv_lshl_add_u32 v{v}, v2, 5, s40\nv_lshl_add_u32 v{v+1}, v2, 4, s40')
def out12(a, D, o, v):
    for e in range(12): a(f'v_add_f32 v{o+e}, v{D+4*e}, v{D+4*e+1}')
    a.lanes_lt(16)
    a(f'ds_write_b128 v{v}, {vr(o,4)}\nds_write_b128 v{v}, {vr(o+4,4)} offset:16\nds_write_b128 v{v+1}, {vr(o+8,4)} offset:512')
    a.full()
def weights_out(a, val, lbase, k):
    a(f'''v_cvt_pk_bf16_f32 v8, v{val}, v{val}
ds_write_b16 v4, v8 offset:{lbase + 128*k}
v_and_b32 v9, 0xffff0000, v8
v_sub_f32 v9, v{val}, v9
v_cvt_pk_bf16_f32 v9, v9, v9
ds_write_b16 v4, v9 offset:{lbase + 256 + 128*k}''')

def role_A(a):
    P = a.P
    a(f'''s_sub_u32 s44, s2, 128
s_mul_i32 s39, s44, 205
s_lshr_b32 s39, s39, 11          ; kp = a/10
s_mul_i32 s40, s39, 10
s_sub_u32 s38, s44, s40          ; mg = a%10
s_lshr_b32 s47, s44, 2           ; head
s_and_b32 s41, s44, 3            ; quarter
v_mov_b32 v12, 0
s_mul_i32 s40, s39, 80
s_lshl_b32 s42, s3, 4
s_add_u32 s40, s40, s42
v_lshl_add_u32 v5, v3, 2, s40      ; row0
v_mul_u32_u24 v4, 7680, v5
v_lshrrev_b32 v6, 3, v2
v_mul_u32_u24 v6, 1152, v6
v_lshl_add_u32 v6, v2, 4, v6
s_lshl_b32 s42, s38, 7
v_add3_u32 v4, v4, v6, s42
v_lshlrev_b32 v5, 1, v5
s_waitcnt lgkmcnt(0)''')
    a.stamp('start')
    a.wave_is('lt', 5, 'LA_nos1')
    a('s_cmp_lt_u32 s44, 80\ns_cbranch_scc0 LA_nos1')
    a(f'global_load_dwordx2 v[32:33], v5, {CC}\nglobal_load_dword v15, v12, {WS} sc1')
    a.load_rows(16, 4, 4, WMOD, 7680, rows=4)
    U1 = P['uk1']
    load_uk(a, WUK, hi=U1)
    a.stamp('x1')
    consts(a)
    a(f'''s_waitcnt vmcnt({4+2*U1})
v_lshlrev_b32 v36, 16, v32
v_and_b32 v37, 0xffff0000, v32
v_lshlrev_b32 v38, 16, v33
v_and_b32 v39, 0xffff0000, v33''')
    a.stamp('x2')
    for i in range(4): a.silu(36 + i, 36 + i, 8)
    a.stamp('x3')
    a(f'''v_perm_b32 v34, v37, v36, {PHI}
v_perm_b32 v35, v39, v38, {PHI}
v_cmp_eq_u32 vcc, 1, v3
v_lshlrev_b32 v4, 5, v2
v_lshl_add_u32 v4, v3, 4, v4
s_lshl_b32 s40, s3, 9
v_add_u32 v4, s40, v4''')
    a.get_tag()
    a(f's_waitcnt vmcnt({2*U1})')
    a.stamp('x4')
    for e in range(8):
        for k in range(2):
            a(f'v_perm_b32 v{40+2*e+k}, v{16+(2*k+1)*4+(e>>1)}, v{16+2*k*4+(e>>1)}, {PHI if e & 1 else PLO}')
        a(f'v_mfma_f32_16x16x16_bf16 {vr(64+4*e,4)}, v[34:35], {vr(40+2*e,2)}, 0')
    for i in range(4): a(f'v_cndmask_b32 v{8+i}, v{64+4*i}, v{64+4*(i+4)}, vcc')
    a.lanes_lt(32)
    a('ds_write_b128 v4, v[8:11]')
    a.full()
    a('s_branch LA_b1')
    a.label('LA_nos1')
    a(f'global_load_dword v15, v12, {WS} sc1')
    a.wave_is('lt', 6, 'LA_nos1b')
    load_uk(a, WUK, hi=U1)
    a.label('LA_nos1b')
    consts(a)
    a.wave_is('eq', 7, 'LA_not7')
    neg1(a)
    a(f'''s_mul_i32 s40, s41, 12288
s_lshr_b32 s42, s47, 4
s_lshl_b32 s42, s42, 10
s_add_u32 s40, s40, s42
s_and_b32 s42, s47, 15
s_lshl_b32 s42, s42, 6
s_add_u32 s40, s40, s42
s_add_u32 s40, s40, {H2}
v_lshrrev_b32 v4, 2, v1
v_min_u32 v4, 5, v4
v_lshlrev_b32 v4, 11, v4
v_and_b32 v5, 3, v1
v_lshl_add_u32 v4, v5, 4, v4
v_add_u32 v4, s40, v4
global_store_dwordx4 v4, v[8:11], {WS} sc1
s_mul_i32 s40, s44, 3072
s_add_u32 s40, s40, {H4S}
v_lshl_add_u32 v4, v1, 4, s40
global_store_dwordx4 v4, v[8:11], {WS} sc1
global_store_dwordx4 v4, v[8:11], {WS} offset:1024 sc1
global_store_dwordx4 v4, v[8:11], {WS} offset:2048 sc1
s_lshl_b32 s40, s47, 13
s_lshl_b32 s42, s41, 9
s_add_u32 s40, s40, s42
s_add_u32 s40, s40, {SIDE}
v_lshrrev_b32 v4, 5, v1
v_lshlrev_b32 v4, 11, v4
v_and_b32 v5, 31, v1
v_lshl_add_u32 v4, v5, 4, v4
v_add_u32 v4, s40, v4
v_add_u32 v5, 4096, v4
global_store_dwordx4 v4, v[8:11], {WS} sc1
global_store_dwordx4 v5, v[8:11], {WS} sc1
s_mul_i32 s40, s47, 3072
s_lshl_b32 s42, s41, 8
s_add_u32 s40, s40, s42
s_add_u32 s40, s40, {H5}
v_min_u32 v4, 2, v3
v_lshlrev_b32 v4, 10, v4
v_lshl_add_u32 v4, v2, 4, v4
v_add_u32 v4, s40, v4
global_store_dwordx4 v4, v[8:11], {WS} sc1''')
    a('s_branch LA_b1')
    a.label('LA_not7')
    a.wave_is('eq', 6, 'LA_b1')
    code_warm(a)
    if P['tlb']:
        a(f'''s_mov_b32 s50, 196608
v_mul_lo_u32 v4, v1, s50
global_load_dword v14, v4, {CKV} nt
v_lshlrev_b32 v4, 17, v1
global_load_dword v14, v4, {WS} offset:64 nt''')
    a.label('LA_b1')
    a(f'''v_lshlrev_b32 v4, 2, v1
s_lshl_b32 s40, s38, 13
s_lshl_b32 s42, s39, 7
s_add_u32 s40, s40, s42
s_add_u32 s40, s40, {H1}
v_lshrrev_b32 v5, 3, v1
v_lshlrev_b32 v5, 10, v5
v_and_b32 v6, 7, v1
v_lshl_add_u32 v5, v6, 4, v5
v_add_u32 v5, s40, v5
v_mov_b32 v9, {TAG}
v_mov_b32 v11, {TAG}''')
    a('s_cmp_lt_u32 s44, 80\ns_cbranch_scc0 LA_u80')
    a.bar()
    a.wave_is('eq', 0, 'LA_uk0')
    for w in range(5): a(f'ds_read2st64_b32 {vr(16+2*w,2)}, v4 offset0:{2*w} offset1:{2*w+1}')
    a(f'''s_waitcnt lgkmcnt(0)
v_add_f32 v16, v16, v18
v_add_f32 v17, v17, v19
v_add_f32 v20, v20, v22
v_add_f32 v21, v21, v23
v_add_f32 v16, v16, v20
v_add_f32 v17, v17, v21
v_add_f32 v8, v16, v24
v_add_f32 v10, v17, v25
global_store_dwordx4 v5, v[8:11], {WS} sc1''')
    a.stamp('h1pub')
    a.label('LA_uk0')
    a('s_barrier\ns_branch LA_uk')
    a.label('LA_u80')
    if P['sl_a80']: a(f's_sleep {P["sl_a80"]}')
    a.label('LA_uk')
    a.wave_is('lt', 6, 'LA_nouk')
    load_uk(a, WUK, lo=U1)
    a.label('LA_nouk')
    a.wave_is('eq', 7, 'LA_nordy')
    a.ready_publish()
    a.label('LA_nordy')
    a(f'''s_mul_i32 s40, s47, 15360
s_mul_i32 s42, s3, 192
s_add_u32 s40, s40, s42
s_add_u32 s40, s40, {H1B}
v_min_u32 v5, 11, v2
v_mul_u32_u24 v4, 1536, v3
v_lshl_add_u32 v4, v5, 4, v4
v_add_u32 v4, s40, v4
v_add_u32 v7, 6144, v4
v_add_u32 v13, 12288, v4
s_mul_i32 s40, s3, 48
v_and_b32 v8, 1, v3
v_lshl_add_u32 v5, v5, 1, v8
v_lshl_add_u32 v5, v5, 1, s40      ; (24w+2dp+(g&1))*2
v_lshlrev_b32 v40, 5, v2
v_lshlrev_b32 v41, 4, v2
v_lshlrev_b32 v42, 1, v5
s_mul_i32 s40, s41, 6
s_add_u32 s40, s40, s3
s_lshl_b32 s40, s40, 11
s_lshr_b32 s42, s47, 4
s_lshl_b32 s42, s42, 10
s_add_u32 s40, s40, s42
s_and_b32 s42, s47, 15
s_lshl_b32 s42, s42, 6
s_add_u32 s40, s40, s42
s_add_u32 s40, s40, {H2}
v_lshl_add_u32 v6, v3, 4, v2
v_add_u32 v6, s40, v6
s_waitcnt vmcnt(0)''')
    a.get_tag()
    a(f'v_mov_b32 v24, 0\nv_mov_b32 v25, {TAG}\nv_mov_b32 v26, 0\nv_mov_b32 v27, {TAG}')
    a.stamp('uk')
    a.wave_is('lt', 6, 'LA_nounp')
    def U(j, k): n = j*6 + k; return 64 + 2*n if n < 32 else 176 + 2*(n - 32)
    for j in range(8):
        for k in range(6):
            src = 128 + 4*j + k if k < 4 else 160 + 2*j + (k - 4)
            a(f'v_lshlrev_b32 v{U(j,k)}, 16, v{src}\nv_and_b32 v{U(j,k)+1}, 0xffff0000, v{src}')
    a.label('LA_nounp')
    if P['probe_h1b']: a.probe(7, 8, off=4, sleep=P['sl_pr'], post=P['post_h1b'], tag=True, mask=0x0001000100010001)
    def ld():
        a(f'global_load_dwordx4 v[16:19], v4, {WS} sc1\nglobal_load_dwordx4 v[20:23], v7, {WS} sc1')
        a.lanes_lt(32)
        a(f'global_load_dwordx4 v[24:27], v13, {WS} sc1')
        a.full()
    a.poll(ld, lambda: a.chk_tag(range(17, 28, 2), 8), sleep=P['sl_h1b'])
    a.stamp('h1b')
    a('s_setprio 3')
    a(f'''v_add_f32 v16, v16, v20
v_add_f32 v18, v18, v22
v_add_f32 v16, v16, v24
v_add_f32 v18, v18, v26
v_permlane16_swap_b32 v16, v18
v_add_f32 v16, v16, v18
v_mov_b32 v18, v16
v_permlane32_swap_b32 v16, v18
v_add_f32 v16, v16, v18
v_cvt_pk_bf16_f32 v16, v16, v16
v_and_b32 v17, 0xffff0000, v16
ds_write_b32 v42, v17 offset:{LQF}
ds_write_b16 v5, v16 offset:{LQ}''')
    a.bar()
    a.wave_is('lt', 6, 'LA_nos3')
    a(f'ds_read_b128 v[44:47], v40 offset:{LQF}\nds_read_b128 v[48:51], v40 offset:{LQF+16}\nds_read_b128 v[52:55], v41 offset:{LQF+512}')
    for k in range(6):
        if k in (0, 2, 4): a(f's_waitcnt lgkmcnt({2 - k//2})')
        for j in range(8):
            if k == 0: a(f'v_pk_mul_f32 {vr(208+2*j,2)}, {vr(U(j,k),2)}, {vr(44+2*k,2)}')
            else: a(f'v_pk_fma_f32 {vr(208+2*j,2)}, {vr(U(j,k),2)}, {vr(44+2*k,2)}, {vr(208+2*j,2)}')
    for j in range(8): a(f'v_add_f32 v{24+j}, v{208+2*j}, v{209+2*j}')
    for i in range(4): a(f'v_add_f32_dpp v{32+i}, v{24+i}, v{24+i} row_ror:8 row_mask:0xf bank_mask:0x3')
    for i in range(4): a(f'v_add_f32_dpp v{32+i}, v{28+i}, v{28+i} row_ror:8 row_mask:0xf bank_mask:0xc')
    for i in range(2): a(f'v_add_f32_dpp v{36+i}, v{32+i}, v{32+i} row_shl:4 row_mask:0xf bank_mask:0x5')
    for i in range(2): a(f'v_add_f32_dpp v{36+i}, v{34+i}, v{34+i} row_shr:4 row_mask:0xf bank_mask:0xa')
    for qp in ('[2,3,0,1]', '[1,0,3,2]'):
        for i in range(2): a(f'v_add_f32_dpp v{36+i}, v{36+i}, v{36+i} quad_perm:{qp} row_mask:0xf bank_mask:0xf')
    a('v_cvt_pk_bf16_f32 v36, v36, v37')
    a.san([36])
    a.exec_mask(0x1111111111111111)
    a(f'global_store_dword v6, v36, {WS} sc1')
    a.full()
    a.stamp('h2pub')
    a('s_setprio 0')
    a('s_barrier')
    perm12(a, 64)
    if P['sl_uv']: a(f's_sleep {P["sl_uv"]}')
    load_uk(a, WUV)
    a('s_waitcnt vmcnt(0)')
    perm12(a, 176)
    a.stamp('wuv')
    a('s_branch LA_s3d')
    a.label('LA_nos3')
    a('s_setprio 0\ns_barrier')
    a.label('LA_s3d')
    a.wave_is('eq', 7, 'LA_noh3')
    a(f'''s_lshl_b32 s40, s47, 11
s_add_u32 s40, s40, {H3}
v_lshl_add_u32 v4, v1, 4, s40
s_and_b32 s42, s44, 15
s_lshl_b32 s42, s42, 7
s_add_u32 s42, s42, {DB3}
v_lshl_add_u32 v5, v1, 11, s42
s_mov_b32 s48, {f2u(-1/64):#x}
v_mov_b32 v24, {NEGINF:#x}''')
    if P['probe_h3']: a.probe(5, 8, off=4, sleep=P['sl_pr3'], post=P['post_h3'], tag=True, mask=0xff)
    a.poll(lambda: a(f'global_load_dwordx4 v[28:31], v4, {WS} sc1\nglobal_load_dwordx4 v[32:35], v4, {WS} offset:1024 sc1'),
           lambda: a.chk_tag(range(29, 36, 2), 8), sleep=P['sl_h3'])
    a.stamp('h3')
    a('v_max_f32 v20, v28, v32\nv_and_b32 v17, 63, v30\nv_and_b32 v19, 63, v34\nv_mov_b32 v16, v28\nv_mov_b32 v18, v32')
    a.wave_red('v_max_f32', 20, 21)
    a(f'''v_and_b32 v21, 0x7f800000, v20
v_fma_f32 v20, v21, s48, v20
v_lshl_add_u32 v17, v1, 6, v17
v_lshl_add_u32 v19, v1, 6, v19
v_add_u32 v19, 4096, v19
v_cmp_ge_f32 s[50:51], v16, v20
v_cmp_ge_f32 s[52:53], v18, v20
v_lshlrev_b32 v4, 2, v1
v_mov_b32 v25, 999
v_add_u32 v26, 64, v1''')
    a.lanes_lt(4)
    a(f'ds_write2_b32 v4, v17, v25 offset0:{LEK//4 - 900} offset1:{LEK//4 - 896}' if False else f'ds_write_b32 v4, v17 offset:{LEK}\nds_write_b32 v4, v25 offset:{LEK+16}')
    a.full()
    a(f'''s_bcnt1_i32_b64 s49, s[50:51]
v_mbcnt_lo_u32_b32 v22, s50, 0
v_mbcnt_hi_u32_b32 v22, s51, v22
v_mov_b32 v23, s49
v_mbcnt_lo_u32_b32 v23, s52, v23
v_mbcnt_hi_u32_b32 v23, s53, v23
v_cmp_gt_u32 vcc, 4, v22
s_and_b64 s[50:51], s[50:51], vcc
v_cmp_gt_u32 vcc, 4, v23
s_and_b64 s[52:53], s[52:53], vcc
v_lshlrev_b32 v22, 2, v22
v_lshlrev_b32 v23, 2, v23
s_mov_b64 exec, s[50:51]
ds_write_b32 v22, v17 offset:{LEK}
ds_write_b32 v22, v1 offset:{LEK+16}
s_mov_b64 exec, s[52:53]
ds_write_b32 v23, v19 offset:{LEK}
ds_write_b32 v23, v26 offset:{LEK+16}
s_mov_b64 exec, -1''')
    a.label('LA_noh3')
    a(f'''v_and_b32 v4, 3, v2
v_lshlrev_b32 v4, 2, v4
s_mul_i32 s40, s41, 384
s_lshl_b32 s42, s3, 6
s_add_u32 s42, s40, s42
v_lshl_add_u32 v6, v3, 4, s42
v_and_b32 v7, 31, v1
v_lshl_add_u32 v7, v7, 1, s42
s_movk_i32 s55, 1536
v_mov_b32 v13, 0
ds_write_b64 v12, v[12:13] offset:{LFL}
ds_write_b32 v12, v12 offset:{LFL+8}
v_mov_b32 v8, {NEGINF:#x}
v_mov_b32 v9, 0
ds_write_b64 v12, v[8:9] offset:{LFW+112}
ds_write_b64 v12, v[8:9] offset:{LFW+120}''')
    a.bar()
    a.stamp('b3')
    a('s_setprio 3')
    a.wave_is('lt', 6, 'LA_noe')
    a(f'''ds_read_b32 v5, v4 offset:{LEK}
ds_read_b128 v[8:11], v12 offset:{LEK}
s_waitcnt lgkmcnt(1)
v_mad_u32_u24 v5, v5, s55, v6
global_load_dwordx4 v[224:227], v5, {CKV} {'nt' if P['e_nt'] else ''}
s_waitcnt lgkmcnt(0)''')
    for j in range(4): a(f'v_mad_u32_u24 v{8+j}, v{8+j}, s55, v7\nglobal_load_ushort v{232+j}, v{8+j}, {CKV} {"nt" if P["e_nt"] else ""}')
    a(f's_mul_i32 s40, s3, 3072\ns_add_u32 s40, s40, {LKP}\nv_lshl_add_u32 v4, v2, 4, s40\ns_waitcnt vmcnt(4)')
    a.stamp('erow')
    mfma12(a, 16, 224, 64)
    a.lanes_lt(16)
    for e in range(12): a(f'ds_write_b128 v4, {vr(16+4*e,4)} offset:{256*e}')
    a.full()
    a('s_branch LA_b4')
    a.label('LA_noe')
    a.wave_is('eq', 7, 'LA_g')
    a(f'''s_cmp_eq_u32 s41, 0
s_cbranch_scc0 LA_g
v_and_b32 v4, 3, v1
v_lshlrev_b32 v5, 2, v4
ds_read_b32 v8, v5 offset:{LEK+16}
s_lshl_b32 s40, s47, 7
s_add_u32 s40, s40, {ELIST}
v_lshl_add_u32 v4, v4, 3, s40
v_mov_b32 v9, {TAG}
s_mov_b64 exec, 15
s_waitcnt lgkmcnt(0)
global_store_dwordx2 v4, v[8:9], {WS} sc1
s_mov_b64 exec, -1''')
    a.label('LA_g')
    a(f'''s_setprio 1
s_and_b32 s42, s3, 1
s_mul_i32 s40, s42, 768
s_add_u32 s40, s40, {LRP}
v_lshl_add_u32 v248, v2, 5, s40
v_lshl_add_u32 v249, v2, 4, s40
s_lshl_b32 s40, s42, 8
s_add_u32 s40, s40, {LWP}
v_and_b32 v250, 1, v2
v_lshlrev_b32 v250, 7, v250
v_lshl_add_u32 v250, v3, 4, v250
v_add_u32 v250, s40, v250
v_lshl_add_u32 v251, v1, 1, s40
s_lshl_b32 s43, s42, 6
v_add_u32 v7, s43, v1
s_lshl_b32 s40, s44, 11
s_add_u32 s40, s40, {AUX}
v_lshl_add_u32 v6, v7, 4, s40
ds_read_b128 v[24:27], v12 offset:{LEK+16}
s_lshl_b32 s40, s44, 7
s_add_u32 s40, s40, s43
v_lshl_add_u32 v4, v3, 3, s40
v_mul_u32_u24 v4, 384, v4
v_add_u32 v4, {H4}, v4
v_lshl_add_u32 v5, v2, 3, v4
v_lshl_add_u32 v4, v2, 4, v4
v_add_u32 v10, {32*384}, v4
v_add_u32 v11, {32*384}, v5
s_mov_b64 s[52:53], 0
s_mov_b32 s48, 0x01010101
v_mov_b32 v22, {NEGINF:#x}
s_lshl_b32 s40, s42, 3
v_mov_b32 v23, s40
s_waitcnt lgkmcnt(0)
v_cmp_eq_u32 s[54:55], v24, v7''')
    for j in range(1, 4): a(f'v_cmp_eq_u32 vcc, v{24+j}, v7\ns_or_b64 s[54:55], s[54:55], vcc')
    a(f's_sleep {P["pre_aux"]}')
    a.label('LA_g0')
    a(f'''global_load_dwordx4 v[28:31], v6, {WS} sc1
s_waitcnt vmcnt(0)
v_cmp_eq_u32 vcc, {TAG}, v29
v_cmp_eq_u32 s[50:51], {TAG}, v31
s_and_b64 s[50:51], s[50:51], vcc
s_andn2_b64 s[42:43], s[50:51], s[52:53]
s_mov_b64 s[52:53], s[50:51]
s_cbranch_scc0 LA_gn''')
    for b in range(2):
        for j in range(8):
            a(f'''s_lshr_b32 s40, s{42+b}, {j}
s_and_b32 s40, s40, s48
s_cbranch_scc0 LA_gs{b}_{j}
s_and_b32 s38, s40, 0x101
s_lshr_b32 s39, s40, 16
s_mul_i32 s38, s38, 0x101
s_mul_i32 s39, s39, 0x101
s_and_b32 s38, s38, 0x10001
s_and_b32 s39, s39, 0x10001
s_mul_i32 exec_lo, s38, 0xffff
s_mul_i32 exec_hi, s39, 0xffff
global_load_dwordx4 {vr(64+48*b+4*j,4)}, v{4+6*b}, {WS} offset:{384*j} sc1
global_load_dwordx2 {vr(96+48*b+2*j,2)}, v{5+6*b}, {WS} offset:{384*j+256} sc1
LA_gs{b}_{j}:''')
    a(f'''s_mov_b64 exec, -1
s_cmp_eq_u64 s[52:53], -1
s_cbranch_scc1 LA_g1
LA_gn:
s_add_u32 {SPIN}, {SPIN}, 1
s_cmp_gt_u32 {SPIN}, {SPINMAX}
s_cbranch_scc1 LA_g1
s_sleep {P['sl_aux']}
s_branch LA_g0
LA_g1:''')
    a.stamp('aux')
    a('s_setprio 3\nv_cndmask_b32 v16, v28, v22, s[54:55]\nv_mov_b32 v20, v16')
    a.wave_red('v_max_f32', 20, 21)
    a(f'''v_sub_f32 v16, v16, v20
v_mul_f32 v16, s56, v16
v_exp_f32 v16, v16
v_cvt_pk_bf16_f32 v8, v16, v16
v_mul_f32 v21, v16, v30
ds_write_b16 v251, v8
v_and_b32 v9, 0xffff0000, v8
v_sub_f32 v9, v16, v9
v_cvt_pk_bf16_f32 v9, v9, v9
ds_write_b16 v251, v9 offset:128
s_waitcnt lgkmcnt(0)
ds_read_b128 v[224:227], v250
ds_read_b128 v[228:231], v250 offset:64''')
    a.wave_red('v_add_f32', 21, 22)
    a(f'v_mov_b32 v8, 1\nds_write_b64 v23, v[20:21] offset:{LFW+96}\ns_mov_b64 exec, 1\nds_add_u32 v12, v8 offset:{LFL+4}\ns_mov_b64 exec, -1\ns_waitcnt vmcnt(0) lgkmcnt(0)')
    a.stamp('gath')
    for b in range(2):
        for e in range(12):
            nreg, src, ee = (4, 64 + 48*b, e) if e < 8 else (2, 96 + 48*b, e - 8)
            f = 16 + 4*(e % 6) + 24*b
            for k in range(4):
                a(f'v_perm_b32 v{f+k}, v{src+(2*k+1)*nreg+(ee>>1)}, v{src+2*k*nreg+(ee>>1)}, {PHI if ee & 1 else PLO}')
            a(f'v_mfma_f32_16x16x32_bf16 {vr(160+4*e,4)}, {vr(224+4*b,4)}, {vr(f,4)}, {"0" if b == 0 else vr(160+4*e,4)}')
    out12(a, 160, 16, 248)
    a('s_branch LA_b6')
    def fl_wait(i, lab, n=1):
        a(f'''{lab}:
ds_read_b32 v8, v12 offset:{LFL + 4*i}
s_waitcnt lgkmcnt(0)
v_cmp_gt_u32 vcc, {n}, v8
s_cbranch_vccz {lab}d
s_sleep 1
s_branch {lab}
{lab}d:''')
    def fl_set(i): a(f'v_mov_b32 v8, 1\nds_write_b32 v12, v8 offset:{LFL + 4*i}')
    a.label('LA_b4')
    a(f'v_mov_b32 v8, 1\ns_mov_b64 exec, 1\nds_add_u32 v12, v8 offset:{LFL}\ns_mov_b64 exec, -1')
    a.wave_is('lt', 3, 'LA_nopub')
    a(f'v_lshlrev_b32 v6, 4, v0\nv_add_u32 v7, {LKP}, v6\ns_mul_i32 s40, s44, 3072\ns_add_u32 s40, s40, {H4S}\nv_add_u32 v6, s40, v6')
    fl_wait(0, 'LA_f0', 6)
    a.stamp('b4')
    for w in range(6): a(f'ds_read_b128 {vr(16+4*w,4)}, v7 offset:{3072*w}')
    a('s_waitcnt lgkmcnt(0)')
    tree(a, range(16, 40, 4), n=4)
    a(f'global_store_dwordx4 v6, v[16:19], {WS} sc1')
    a.stamp('kpub')
    a('s_branch LA_b6')
    a.label('LA_nopub')
    a.label('LA_w5')
    a.wave_is('eq', 5, 'LA_w6')
    a(f'''s_mul_i32 s40, s47, 12288
s_add_u32 s40, s40, {H4S}
v_lshl_add_u32 v4, v1, 4, s40
v_add_u32 v5, 3072, v4
v_add_u32 v6, 6144, v4
v_add_u32 v7, 9216, v4
v_lshl_add_u32 v8, v2, 3, v3
v_lshlrev_b32 v8, 1, v8
v_lshl_add_u32 v9, v2, 2, v3
v_lshlrev_b32 v9, 1, v9
v_lshlrev_b32 v10, 2, v3
ds_read_u16 v64, v8 offset:{LQ}
ds_read_u16 v65, v8 offset:{LQ+8}
ds_read_u16 v66, v9 offset:{LQ+256}
ds_read_b32 v67, v10 offset:{LEK+16}
s_sleep {P['pre_h4s']}''')
    def ld():
        for qq in range(4):
            for k in range(3): a(f'global_load_dwordx4 {vr(16+(qq*3+k)*4,4)}, v{4+qq}, {WS} offset:{1024*k} sc1')
    a.poll(ld, lambda: a.chk_sent(range(16, 64), 9), sleep=P['sl_h4s'])
    a.stamp('h4s')
    a('s_waitcnt lgkmcnt(0)\nv_cmp_gt_u32 s[52:53], 0x80, v67' if False else 's_waitcnt lgkmcnt(0)\ns_movk_i32 s40, 128\nv_cmp_gt_u32 s[52:53], s40, v67')
    for k in range(3): a(f'v_lshlrev_b32 v{64+k}, 16, v{64+k}')
    tree(a, (16, 28, 40, 52), n=12)
    for i in range(12): a.rnd(16 + i, 16 + i)
    for j in range(4):
        a(f'v_mul_f32 v{68+j}, v{16+j}, v64\nv_fmac_f32 v{68+j}, v{20+j}, v65\nv_fmac_f32 v{68+j}, v{24+j}, v66')
    a.row_red('v_add_f32', [68, 69, 70, 71])
    a.xrow_tr4(68)
    a.rnd(68, 68)
    a('v_mul_f32 v68, s59, v68')
    a.rnd(68, 68)
    a(f'v_mov_b32 v21, {NEGINF:#x}\nv_cndmask_b32 v68, v21, v68, s[52:53]\nv_lshlrev_b32 v11, 3, v3')
    fl_wait(2, 'LA_f2')
    fl_wait(1, 'LA_f3', 2)
    a(f'''ds_read_b64 v[228:229], v11 offset:{LFW+64}
ds_read_b64 v[230:231], v11 offset:{LFW+96}
s_waitcnt lgkmcnt(0)
v_max3_f32 v69, v68, v228, v230''')
    a.xrow_red('v_max_f32', 69, 70)
    a(f'''v_sub_f32 v68, v68, v69
v_sub_f32 v228, v228, v69
v_sub_f32 v230, v230, v69
v_mul_f32 v68, s56, v68
v_mul_f32 v228, s56, v228
v_mul_f32 v230, s56, v230
v_exp_f32 v68, v68
v_exp_f32 v228, v228
v_exp_f32 v230, v230
v_fma_f32 v70, v228, v229, v68
v_fmac_f32 v70, v230, v231''')
    a.xrow_red('v_add_f32', 70, 71)
    a.recip(71, 70, 72)
    a.div(73, 68, 70, 71, 72)
    a.rnd(73, 73)
    a(f'''v_mul_f32 v74, v230, v71
v_mul_f32 v75, v228, v71
ds_write_b32 v10, v73 offset:{LFW}
ds_write_b32 v10, v75 offset:{LFW+16}
ds_write_b32 v10, v74 offset:{LFW+32}
s_branch LA_b6''')
    a.label('LA_w6')
    a.wave_is('eq', 4, 'LA_b6')
    a(f'''v_lshlrev_b32 v10, 2, v3
ds_read_b32 v11, v10 offset:{LEK+16}
s_lshl_b32 s40, s47, 13
s_lshl_b32 s42, s41, 9
s_add_u32 s40, s40, s42
s_add_u32 s40, s40, {SIDE}
v_lshl_add_u32 v6, v3, 11, s40
v_lshl_add_u32 v4, v2, 4, v6
v_lshl_add_u32 v5, v2, 3, v6
v_mul_u32_u24 v9, 384, v3
v_lshl_add_u32 v7, v2, 4, v9
v_lshl_add_u32 v9, v2, 3, v9
v_lshlrev_b32 v10, 3, v3
v_mov_b32 v24, {NEGINF:#x}
v_mov_b32 v26, 0
s_movk_i32 s40, 128
s_waitcnt lgkmcnt(0)
v_cmp_gt_u32 s[52:53], s40, v11''')
    for i in range(6): a(f'v_mov_b32 v{16+i}, 0')
    a(f's_sleep {P["pre_side"]}\ns_mov_b64 exec, s[52:53]')
    def ck():
        a.chk_sent(range(16, 22), 8)
        a(f'v_cmp_ne_u32 s[50:51], {TAG}, v25\ns_or_b64 vcc, vcc, s[50:51]\nv_cmp_ne_u32 s[50:51], {TAG}, v27\ns_or_b64 vcc, vcc, s[50:51]')
    a.poll(lambda: a(f'global_load_dwordx4 v[16:19], v4, {WS} sc1\nglobal_load_dwordx2 v[20:21], v5, {WS} offset:256 sc1\nglobal_load_dwordx4 v[24:27], v6, {WS} offset:384 sc1'),
           ck, sleep=P['sl_side'])
    a.full()
    a.stamp('side')
    a(f'v_mov_b32 v25, v26\nds_write_b128 v7, v[16:19] offset:{LSR}\nds_write_b64 v9, v[20:21] offset:{LSR+256}\nds_write_b64 v10, v[24:25] offset:{LFW+64}')
    fl_set(2)
    a.label('LA_b6')
    a(f'''s_lshl_b32 s40, s3, 7
v_and_b32 v4, 31, v1
v_lshl_add_u32 v5, v4, 1, s40
s_lshl_b32 s42, s3, 6
v_lshl_add_u32 v7, v4, 1, s42
v_lshl_add_u32 v4, v4, 2, s40
v_mov_b32 v20, 0
v_mov_b32 v21, 0
v_mov_b32 v22, 0
v_mov_b32 v23, 0''')
    frag2_addr(a, 6, 's40')
    out12_prep(a, 248, LVP)
    a('s_waitcnt vmcnt(0)')
    for j in range(4): a(f'v_lshlrev_b32 v{232+j}, 16, v{232+j}')
    a.bar()
    a.stamp('b6')
    a('s_setprio 3')
    a.wave_is('lt', 6, 'LA_nov')
    for w in range(2): a(f'ds_read_b32 v{16+w}, v4 offset:{LRP + 768*w}')
    for j in range(4): a(f'ds_read_u16_d16_hi v{20+j}, v7 offset:{LSR + 384*j}')
    a(f'ds_read_b128 v[24:27], v12 offset:{LFW}\nds_read_b128 v[28:31], v12 offset:{LFW+16}\nds_read_b64 v[32:33], v12 offset:{LFW+32}')
    a(f'''s_waitcnt lgkmcnt(0)
v_mul_f32 v16, v16, v32
v_mul_f32 v24, v24, v232
v_mul_f32 v28, v28, v20
v_fmac_f32 v16, v17, v33
v_fmac_f32 v24, v25, v233
v_fmac_f32 v28, v29, v21
v_fmac_f32 v24, v26, v234
v_fmac_f32 v28, v30, v22
v_fmac_f32 v24, v27, v235
v_fmac_f32 v28, v31, v23
v_add_f32 v24, v24, v28
v_add_f32 v16, v16, v24
v_cvt_pk_bf16_f32 v17, v16, v16
ds_write_b16 v5, v17 offset:{LCC}
v_and_b32 v18, 0xffff0000, v17
v_sub_f32 v18, v16, v18
v_cvt_pk_bf16_f32 v18, v18, v18
ds_write_b16 v5, v18 offset:{LCC+64}
s_waitcnt lgkmcnt(0)
ds_read_b128 v[224:227], v6 offset:{LCC}
s_waitcnt lgkmcnt(0)''')
    mfma12(a, 128, 224, 176)
    out12(a, 128, 16, 248)
    a.label('LA_nov')
    a(f'''v_lshlrev_b32 v4, 2, v0
s_mul_i32 s40, s47, 3
s_add_u32 s40, s40, s3
s_lshl_b32 s40, s40, 10
s_lshl_b32 s42, s41, 8
s_add_u32 s40, s40, s42
s_add_u32 s40, s40, {H5}
v_lshl_add_u32 v5, v1, 2, s40''')
    a.bar()
    a.wave_is('lt', 3, 'Lfin')
    for w in range(6): a(f'ds_read_b32 v{16+w}, v4 offset:{LVP + 768*w}')
    a('s_waitcnt lgkmcnt(0)')
    tree(a, range(16, 22))
    a(f'global_store_dword v5, v16, {WS} sc1')
    a.stamp('h5pub')
    a(f'''s_add_u32 s40, s44, s3
s_cmp_eq_u32 s40, 0
s_cbranch_scc0 Lfin
v_mov_b32 v5, {TAG}
global_store_dword v12, v5, {WS} sc1''')

DEFAULTS = dict(code_last=0x1000, stamps=False, warm_loads=2, sl_pr=1, sl_pr3=4, sl_h1=3, sl_h1b=2, sl_h2=4, sl_h3=2, sl_aux=2, sl_h4s=2, sl_h5=2, sl_h6=3, sl_h7=2, sl_x2=4, sl_lw=1, lw_cnt=4, dma1=3, sl_top2=4, pre_h7=6, m_h2=0, m_h6=0, k_h2=255, pre_aux=8, swap=1, sl_a80=30, pre_h1=0, tlb=0, e_nt=0, pv_nt=0, uk1=0, ew_cnt=4, sl_el=2, pre_side=12, sl_side=2, sl_uv=20, pre_h4s=16, sl_top=6,
    probe_h1b=1, post_h1b=1, probe_h2=1, post_h2=1, probe_h3=1, post_h3=2, probe_aux=0, post_aux=2, probe_h5=0, post_h5=1, probe_h6=0, post_h6=1, probe_h7=1, post_h7=0)

def generate(**kw):
    P = dict(DEFAULTS); P.update(kw)
    a = G(P)
    a(f'''s_cmp_ge_u32 s2, 256
s_cbranch_scc1 Lend
s_load_dwordx16 s[4:19], s[0:1], 0
{'s_xor_b32 s2, s2, 128' if P['swap'] else 's_nop 0'}
s_load_dwordx8 s[20:27], s[0:1], 64
s_load_dwordx4 s[28:31], s[0:1], 96
s_getpc_b64 s[36:37]
Lpc:
v_lshrrev_b32 v4, 6, v0
v_and_b32 v1, 63, v0
v_readfirstlane_b32 s3, v4
v_and_b32 v2, 15, v0
v_lshrrev_b32 v3, 4, v1''')
    if P['stamps']:
        for i in range(21): a(f's_mov_b64 s[{60+2*i}:{61+2*i}], 0')
    if P.get('dbgtime'): a('s_memrealtime s[60:61]')
    a('s_cmp_ge_u32 s2, 128\ns_cbranch_scc1 LA')
    role_B(a)
    namesB = a.stnames; a.stnames = []
    a.label('LA')
    role_A(a)
    namesA = a.stnames
    a.label('Lfin')
    if P['stamps']:
        a(f'''s_waitcnt lgkmcnt(0)
s_lshl_b32 s40, s2, 3
s_add_u32 s40, s40, s3
s_lshl_b32 s40, s40, 7
s_add_u32 s40, s40, {STAMP}
v_mov_b32 v4, s40''')
        for i in range(21): a(f'v_mov_b32 v5, s{60+2*i}\nglobal_store_dword v4, v5, {WS} offset:{4*i}')
    if P.get('dbgtime'):
        a(f'''s_memrealtime s[62:63]
s_cmp_eq_u32 s3, 7
s_cbranch_scc0 Lend
s_and_b32 s40, s2, 31
s_cmp_eq_u32 s40, 31
s_cbranch_scc0 Lend
s_waitcnt lgkmcnt(0)
s_lshr_b32 s40, s2, 5
s_lshl_b32 s40, s40, 3
v_mov_b32 v4, s40
v_mov_b32 v6, s60
v_mov_b32 v7, s62
s_mov_b64 exec, 1
global_store_dwordx2 v4, v[6:7], s[28:29]''')
    a.label('Lend')
    a('s_endpgm')
    a.raw('Lcode_end:')
    hdr = open(f'cdna_kernels/{NAME}.s.ref').read().split('; Override launch')[0]
    lds = MISC + 8192 + 256
    txt = hdr + f'''; @launch grid=(256,1,1) block=(512,1,1) lds={lds}
.amdgcn_target "amdgcn-amd-amdhsa--gfx950"
.text
.globl {NAME}_kernel
.p2align 8
.type {NAME}_kernel,@function
.set CODE_LAST, {P['code_last']:#x}
{NAME}_kernel:
''' + a.text() + f'''.section .rodata,"a"
.p2align 6
.amdhsa_kernel {NAME}_kernel
  .amdhsa_next_free_vgpr 256
  .amdhsa_next_free_sgpr 102
  .amdhsa_accum_offset 256
  .amdhsa_group_segment_fixed_size 0
  .amdhsa_kernarg_size 112
  .amdhsa_user_sgpr_count 2
  .amdhsa_user_sgpr_kernarg_segment_ptr 1
  .amdhsa_system_sgpr_workgroup_id_x 1
  .amdhsa_float_denorm_mode_32 3
.end_amdhsa_kernel
'''
    return txt, namesB, namesA

if __name__ == '__main__':
    import json
    out = sys.argv[1]
    kw = {}
    for x in sys.argv[2:]:
        k, v = x.split('='); kw[k] = int(v)
    import subprocess, re
    txt, nb, na = generate(**kw)
    open('_g.s', 'w').write(txt)
    subprocess.check_call(['clang', '-x', 'assembler', '-target', 'amdgcn-amd-amdhsa', '-mcpu=gfx950', '-c', '_g.s', '-o', '_g.o'])
    h = subprocess.check_output(['llvm-objdump', '-h', '_g.o'], text=True)
    size = int(re.search(r'\.text\s+([0-9a-f]+)', h).group(1), 16)
    kw['code_last'] = size - 0x30 - 4
    assert size <= 32768 * kw.get('warm_loads', 1)
    txt, nb, na = generate(**kw)
    print('code bytes', size)
    open(out, 'w').write(txt)
    json.dump({'B': nb, 'A': na}, open(out + '.names.json', 'w'))
```

```python
import sys, struct
sys.path.insert(0, 'gen')
from asmlib import *
NAME = 'adaLN_cond__compressed_kv_cla__dense_activation_relu__decode'

EPOCH, READY, H1, H1B, H2, H3, AUX, H4S, H5 = 0x0, 0x1000, 0x2000, 0x120000, 0x58000, 0x68000, 0x1A0000, 0x88000, 0xE8000
H6, MODR, H7F, H7X, H4, STAMP = 0x100000, 0x108000, 0x110000, 0x111000, 0x200000, 0x4000000
H7Y = 0x110000
DB3, DB4, ELIST, SIDE = 0x1E0000, 0x1E4000, 0x1F8000, 0x18000
X, CKV, WQ, WUK, WUV, WO, W1, W2, CC, WMOD, OUT, WS = [f's[{i}:{i+1}]' for i in (4, 6, 8, 10, 12, 14, 18, 20, 22, 24, 26, 30)]
TAG, SPIN, PLO, PHI = 's32', 's33', 's34', 's35'
SPINMAX = 200000
def f2u(x): return struct.unpack('<I', struct.pack('<f', x))[0]
L2E = f2u(1.4426950408889634)
L2E_LO = f2u(1.4426950408889634 - struct.unpack('<f', struct.pack('<f', 1.4426950408889634))[0])
LN2 = f2u(0.6931471805599453)
SCALE = f2u(192 ** -0.5)
NEGINF = 0xff800000

class G(Asm):
    def __init__(self, P):
        super().__init__(); self.P = P; self.nst = 0; self.stnames = []
    def stamp(self, name):
        if not self.P.get('stamps'): return
        if name.startswith('x') != (self.P['stamps'] == 2) and name not in ('start', 'h1pub', 'out', 'wq', 'h1', 'qpub', 'h1b', 'h2pub', 'h5', 'h6pub', 'h6', 'h7pub', 'gath', 'b6', 'h5pub', 'h2', 'qk', 'h3pub', 'pvst', 'auxpub'): return
        i = self.stnames.index(name) if name in self.stnames else None
        if i is None:
            self.stnames.append(name); i = len(self.stnames) - 1
        assert i < 21
        self(f's_memrealtime s[{60+2*i}:{61+2*i}]')
    def rnd(self, d, s):
        self(f'v_cvt_pk_bf16_f32 v{d}, v{s}, v{s}\nv_and_b32 v{d}, 0xffff0000, v{d}')
    def wave_is(self, cond, n, lab):
        self(f's_cmp_{cond}_u32 s3, {n}\ns_cbranch_scc0 {lab}')
    def row_red(self, op, regs):
        for k in (8, 4, 2, 1):
            for r in regs: self(f'{op}_dpp v{r}, v{r}, v{r} row_ror:{k} row_mask:0xf bank_mask:0xf')
    def xrow_red(self, op, r, t):
        self(f'v_mov_b32 v{t}, v{r}\nv_permlane16_swap_b32 v{r}, v{t}\n{op} v{r}, v{r}, v{t}')
        self(f'v_mov_b32 v{t}, v{r}\nv_permlane32_swap_b32 v{r}, v{t}\n{op} v{r}, v{r}, v{t}')
    def wave_red(self, op, r, t):
        self.row_red(op, [r]); self.xrow_red(op, r, t)
    def xrow_tr4(self, r):
        self(f'''v_permlane16_swap_b32 v{r}, v{r+1}
v_permlane16_swap_b32 v{r+2}, v{r+3}
v_add_f32 v{r}, v{r}, v{r+1}
v_add_f32 v{r+2}, v{r+2}, v{r+3}
v_permlane32_swap_b32 v{r}, v{r+2}
v_add_f32 v{r}, v{r}, v{r+2}''')
    def recip(self, d, y, t):
        self(f'v_rcp_f32 v{d}, v{y}\nv_fma_f32 v{t}, -v{y}, v{d}, 1.0\nv_fma_f32 v{d}, v{t}, v{d}, v{d}')
    def div(self, d, x, y, rinv, t):
        self(f'v_mul_f32 v{d}, v{x}, v{rinv}\nv_fma_f32 v{t}, -v{y}, v{d}, v{x}\nv_fma_f32 v{d}, v{t}, v{rinv}, v{d}')
    def silu(self, d, x, t):
        self(f'''v_mul_f32 v{t}, s56, v{x}
v_fma_f32 v{t+1}, v{x}, s56, -v{t}
v_fma_f32 v{t+1}, v{x}, s57, v{t+1}
v_exp_f32 v{t}, -v{t}
v_mul_f32 v{t+1}, s58, v{t+1}
v_fma_f32 v{t}, -v{t}, v{t+1}, v{t}
v_min_f32 v{t}, 0x7f000000, v{t}
v_add_f32 v{t}, 1.0, v{t}''')
        self.recip(t + 1, t, t + 2)
        self.div(t + 3, x, t, t + 1, t + 2)
        self.rnd(d, t + 3)
    def perm_block(self, dst, src, nreg=4, rows=8):
        for e in range(2 * nreg):
            for k in range(rows // 2):
                self(f'v_perm_b32 v{dst + e * (rows // 2) + k}, v{src + (2*k+1) * nreg + (e >> 1)}, v{src + 2*k*nreg + (e >> 1)}, {PHI if e & 1 else PLO}')
    def poll(self, loads, check, sleep=2, pre=None, mid=None):
        top = self.newlabel('Lp'); done = self.newlabel('Ld'); chk = self.newlabel('Lc')
        if pre: self(f's_sleep {pre}')
        if mid:
            loads(); mid(); self(f's_branch {chk}')
        self.label(top)
        loads()
        self.label(chk)
        self('s_waitcnt vmcnt(0)')
        check()
        self(f'''s_cbranch_vccz {done}
s_add_u32 {SPIN}, {SPIN}, 1
s_cmp_gt_u32 {SPIN}, {SPINMAX}
s_cbranch_scc1 {done}
s_sleep {sleep}
s_branch {top}''')
        self.label(done)
    def poll_masked(self, items, t, sleep=2, tag=False):
        top = self.newlabel('Lm'); done = self.newlabel('Lmd')
        for ld, regs in items: self(ld)
        self.label(top)
        self('s_waitcnt vmcnt(0)\ns_mov_b32 s49, 0')
        for ld, regs in items:
            skip = self.newlabel('Lms')
            if tag: self.chk_tag(regs, t)
            else: self.chk_sent(regs, t)
            self(f's_cbranch_vccz {skip}\ns_mov_b64 exec, vcc\n{ld}\ns_mov_b64 exec, -1\ns_mov_b32 s49, 1')
            self.label(skip)
        self(f'''s_cmp_eq_u32 s49, 0
s_cbranch_scc1 {done}
s_add_u32 {SPIN}, {SPIN}, 1
s_cmp_gt_u32 {SPIN}, {SPINMAX}
s_cbranch_scc1 {done}
s_sleep {sleep}
s_branch {top}''')
        self.label(done)
        self('s_waitcnt vmcnt(0)')
    def lds_wait(self, addr, n, off=0, sleep=1, extra=None, t=8):
        top = self.newlabel('Lw'); done = self.newlabel('Lwd')
        self.label(top)
        self(f'ds_read_b32 v{t}, v{addr} offset:{off}')
        if extra: self(extra)
        self(f'''s_waitcnt lgkmcnt(0)
v_cmp_gt_u32 vcc, {n}, v{t}
s_cbranch_vccz {done}
s_add_u32 {SPIN}, {SPIN}, 1
s_cmp_gt_u32 {SPIN}, {SPINMAX}
s_cbranch_scc1 {done}
s_sleep {sleep}
s_branch {top}''')
        self.label(done)
    def probe(self, va, t, off=0, sleep=1, post=None, tag=False, mask=1):
        self.exec_mask(mask)
        def ck():
            if tag: self(f'v_cmp_ne_u32 vcc, {TAG}, v{t}')
            else: self(f'v_cmp_eq_u32 vcc, -1, v{t}')
        self.poll(lambda: self(f'global_load_dword v{t}, v{va}, {WS} offset:{off} sc1'), ck, sleep=sleep)
        self.full()
        if post: self(f's_sleep {post}')
    def chk_sent(self, regs, t):
        regs = list(regs)
        if len(regs) == 1:
            self(f'v_cmp_eq_u32 vcc, -1, v{regs[0]}'); return
        if len(regs) == 2: self(f'v_max_u32 v{t}, v{regs[0]}, v{regs[1]}'); rest = []
        else: self(f'v_max3_u32 v{t}, v{regs[0]}, v{regs[1]}, v{regs[2]}'); rest = regs[3:]
        while rest:
            if len(rest) >= 2: self(f'v_max3_u32 v{t}, v{t}, v{rest[0]}, v{rest[1]}'); rest = rest[2:]
            else: self(f'v_max_u32 v{t}, v{t}, v{rest[0]}'); rest = []
        self(f'v_cmp_eq_u32 vcc, -1, v{t}')
    def chk_tag(self, regs, t):
        regs = list(regs)
        self(f'v_cmp_ne_u32 vcc, {TAG}, v{regs[0]}')
        for r in regs[1:]:
            self(f'v_cmp_ne_u32 s[50:51], {TAG}, v{r}\ns_or_b64 vcc, vcc, s[50:51]')
    def san(self, regs):
        for r in regs: self(f'v_min_u32 v{r}, -2, v{r}')
    def lanes_lt(self, n):
        assert n <= 64
        lo = (1 << min(n, 32)) - 1; hi = (1 << max(n - 32, 0)) - 1
        self(f's_mov_b32 exec_lo, {lo:#x}\ns_mov_b32 exec_hi, {hi:#x}')
    def exec_mask(self, m):
        self(f's_mov_b32 exec_lo, {m & 0xffffffff:#x}\ns_mov_b32 exec_hi, {m >> 32:#x}')
    def full(self): self('s_mov_b64 exec, -1')
    def bar(self): self('s_waitcnt lgkmcnt(0)\ns_barrier')
    def get_tag(self):
        self(f'''v_readfirstlane_b32 {TAG}, v15
s_mul_i32 {TAG}, {TAG}, 0x9E3779B1
s_add_u32 {TAG}, {TAG}, 0x7F4A7C15''')
    def ready_publish(self):
        self(f'''s_waitcnt vmcnt(0)''')
        self.get_tag()
        self(f'''s_lshl_b32 s40, s2, 4
s_add_u32 s40, s40, {READY}
v_mov_b32 v4, s40
v_mov_b32 v5, {TAG}''')
        self.lanes_lt(1)
        self(f'global_store_dword v4, v5, {WS} sc1')
        self.full()
    def ready_check(self, half, v=8):
        self(f'v_lshlrev_b32 v{v+2}, 4, v1\nv_add_u32 v{v+2}, {READY + 2048*half}, v{v+2}')
        def ld():
            for i in range(2): self(f'global_load_dword v{v+i}, v{v+2}, {WS} offset:{1024*i} sc1')
        self.poll(ld, lambda: self.chk_tag([v, v + 1], 0), sleep=4)
    def gemv2(self, D, A, F, first=True):
        for e in range(8):
            c = '0' if first else vr(D + 4*e, 4)
            self(f'v_mfma_f32_16x16x32_bf16 {vr(D+4*e,4)}, {vr(A,4)}, {vr(F+4*e,4)}, {c}')
    def pack2(self, o, D):
        for i in range(4):
            self(f'v_add_f32_dpp v{o+i}, v{D+4*i+1}, v{D+4*i} row_ror:8 row_mask:0xf bank_mask:0x3')
        for i in range(4):
            self(f'v_add_f32_dpp v{o+i}, v{D+4*(i+4)}, v{D+4*(i+4)+1} row_ror:8 row_mask:0xf bank_mask:0xc')
    def load_rows(self, dst, nreg, va, base, pitch, rows=8, pol='nt', t=None):
        op = {1: 'dword', 2: 'dwordx2', 4: 'dwordx4'}[nreg]
        per = 4095 // pitch + 1 if pitch <= 4095 else 1
        for j in range(rows):
            k = j % per
            self(f'global_load_{op} {vr(dst + j*nreg, nreg)}, v{va}, {base} offset:{k*pitch} {pol}')
            if k == per - 1 and j + 1 < rows: self(f'v_add_u32 v{va}, {per*pitch}, v{va}')

def consts(a):
    a(f'''s_mov_b32 {PLO}, 0x05040100
s_mov_b32 {PHI}, 0x07060302
s_mov_b32 {SPIN}, 0
s_mov_b32 s56, {L2E:#x}
s_mov_b32 s57, {L2E_LO:#x}
s_mov_b32 s58, {LN2:#x}
s_mov_b32 s59, {SCALE:#x}''')

def code_warm(a, v=4):
    n = a.P['warm_loads']
    a(f'''s_lshr_b32 s50, s2, 3
s_lshl_b32 s50, s50, 10
v_lshlrev_b32 v{v}, 4, v1
v_add_u32 v{v}, s50, v{v}
v_min_u32 v{v}, CODE_LAST, v{v}
global_load_dword v14, v{v}, s[36:37]''')
    if n > 1:
        a(f'''v_add_u32 v{v}, 32768, v{v}
v_min_u32 v{v}, CODE_LAST, v{v}
global_load_dword v14, v{v}, s[36:37]''')

CT, SPB, PB, STB, MISC = 0, 98304, 98304 + 34816, 98304 + 34816 + 9216, 98304 + 34816 + 9216 + 1024
def blk2_addr(a, v, srow, pitch, scol):
    a(f'''v_lshrrev_b32 v{v}, 3, v2
v_lshlrev_b32 v{v}, 5, v{v}
v_lshl_add_u32 v{v}, v3, 3, v{v}
v_add_u32 v{v}, {srow}, v{v}
v_mul_u32_u24 v{v}, {pitch}, v{v}
v_and_b32 v{v+1}, 7, v2
v_lshl_add_u32 v{v}, v{v+1}, 4, v{v}
v_add_u32 v{v}, {scol}, v{v}''')
def frag2_addr(a, v, sbase):
    a(f'v_and_b32 v{v}, 1, v2\nv_lshlrev_b32 v{v}, 6, v{v}\nv_lshl_add_u32 v{v}, v3, 4, v{v}\nv_add_u32 v{v}, {sbase}, v{v}')
def pack_addr(a, v, sbase):
    a(f'v_and_b32 v{v}, 7, v2\nv_lshlrev_b32 v{v}, 5, v{v}\nv_lshrrev_b32 v{v+1}, 3, v2\nv_lshl_add_u32 v{v}, v{v+1}, 4, v{v}\nv_add_u32 v{v}, {sbase}, v{v}')
def gemv_out_lds(a, D, base):
    a.pack2(8, D)
    a.lanes_lt(16)
    a('ds_write_b128 v14, v[8:11]')
    a.full()
def gemv_out_prep(a, base):
    a(f's_lshl_b32 s40, s3, 8\ns_add_u32 s40, s40, {base}')
    pack_addr(a, 14, 's40')
def tree(a, regs, stride=1, n=1):
    regs = list(regs)
    while len(regs) > 1:
        nxt = []
        for i in range(0, len(regs) - 1, 2):
            for k in range(n): a(f'v_add_f32 v{regs[i]+k}, v{regs[i]+k}, v{regs[i+1]+k}')
            nxt.append(regs[i])
        if len(regs) & 1: nxt.append(regs[-1])
        regs = nxt
def ln_finish(a, m, v, ri):
    a.rnd(m, m); a.rnd(v, v)
    a(f'v_add_f32 v{v}, {f2u(1e-5):#x}, v{v}')
    a.rnd(v, v)
    a(f'v_sqrt_f32 v{v}, v{v}')
    a.rnd(v, v)
    a.recip(ri, v, ri + 1)
def neg1(a, r=8):
    for i in range(4): a(f'v_mov_b32 v{r+i}, -1')

def role_B(a):
    P = a.P
    a(f'''s_mul_i32 s39, s2, 205
s_lshr_b32 s39, s39, 11          ; b/10
s_mul_i32 s40, s39, 10
s_sub_u32 s38, s2, s40           ; b%10
s_lshl_b32 s45, s39, 3
s_add_u32 s45, s45, s3
v_mov_b32 v12, 0
s_lshl_b32 s40, s38, 6
s_lshl_b32 s41, s45, 7''')
    blk2_addr(a, 4, 's40', 12288, 's41')
    a(f'''v_lshlrev_b32 v6, 2, v1
s_lshl_b32 s42, s3, 3
s_add_u32 s40, s40, s42
v_and_b32 v7, 7, v1
v_add_u32 v7, s40, v7
v_lshlrev_b32 v7, 1, v7
s_waitcnt lgkmcnt(0)''')
    a.stamp('start')
    for k in range(5): a(f'global_load_dword v{16+k}, v6, {X} offset:{256*k}')
    a(f'global_load_ushort v21, v7, {X}')
    a('s_cmp_lt_u32 s2, 120\ns_cbranch_scc0 LB_nowq')
    a.load_rows(64, 4, 4, WQ, 12288)
    a.label('LB_nowq')
    a(f'global_load_dword v15, v12, {WS} sc1\ns_branch LB2')

def role_B2(a):
    P = a.P
    a.label('LB2')
    a('s_mov_b32 s49, 0')
    a.wave_is('eq', 6, 'LB_not6')
    code_warm(a, 24)
    if P['tlb']:
        a(f'''v_lshlrev_b32 v24, 17, v1
global_load_dword v14, v24, {WS} offset:64 nt''')
    a('s_mov_b32 s49, 1')
    a.label('LB_not6')
    a.wave_is('eq', 7, 'LB_not7')
    neg1(a, 28)
    a(f'''s_mul_i32 s50, s39, 2560
s_lshl_b32 s51, s38, 8
s_add_u32 s50, s50, s51
s_add_u32 s50, s50, {H6}
s_lshl_b32 s51, s2, 8
s_add_u32 s51, s51, {MODR - 104*256}
s_cmp_lt_u32 s2, 104
s_cselect_b32 s50, s50, s51
v_lshl_add_u32 v24, v2, 4, s50
s_cmp_lt_u32 s2, 80
s_cbranch_scc1 LB_c1
s_cmp_lt_u32 s2, 104
s_cbranch_scc0 LB_c1
s_mul_i32 s50, s2, 2560
s_add_u32 s50, s50, {H7Y - 80*2560}
v_lshl_add_u32 v24, v1, 4, s50
global_store_dwordx4 v24, v[28:31], {WS} sc1
global_store_dwordx4 v24, v[28:31], {WS} offset:1024 sc1
v_and_b32 v24, 31, v1
v_lshl_add_u32 v24, v24, 4, s50
v_add_u32 v24, 2048, v24
LB_c1:
global_store_dwordx4 v24, v[28:31], {WS} sc1''')
    a('s_mov_b32 s49, 1')
    a.label('LB_not7')
    a(f'''s_lshl_b32 s46, s2, 6
s_lshl_b32 s41, s3, 3
s_add_u32 s46, s46, s41
s_mul_i32 s46, s46, 1536           ; (64b+8w)*1536
s_and_b32 s47, s3, 1
s_lshl_b32 s47, s47, 3             ; 8*(w&1)
s_mul_i32 s48, s3, 12288
v_cmp_le_u32 vcc, 32, v1
v_add_u32 v56, 64, v1
v_subrev_u32 v57, 32, v1
v_cndmask_b32 v56, v56, v57, vcc
v_cndmask_b32 v58, 0, 1, vcc
v_xor_b32 v56, v56, v58
v_mul_u32_u24 v58, 1536, v58
v_add_u32 v57, 32, v1
v_xor_b32 v57, 1, v57''')
    def dma(lo, hi, other=0):
        for i in range(lo, hi):
            k, j = divmod(i, 3)
            src = ('v1', 'v56', 'v57')[j]
            a(f's_add_u32 s43, s47, {2*k}\nv_xor_b32 v8, s43, {src}')
            a(f's_add_u32 s44, s46, {2*k*1536 + (1536 if j == 2 else 0) + other*32*1536}')
            if j == 1: a('v_lshl_add_u32 v8, v8, 4, v58\nv_add_u32 v8, s44, v8')
            else: a('v_lshl_add_u32 v8, v8, 4, s44')
            a(f's_add_u32 m0, s48, {i*1024 + other*49152}\nglobal_load_lds_dwordx4 v8, {CKV} nt')
    N1 = P['dma1']
    a(f'v_mov_b32 v253, {STB + 520}\nds_write_b32 v253, v12')
    a.bar()
    dma(0, N1)
    consts(a)
    a('s_cmp_ge_u32 s2, 120\ns_cselect_b32 s49, 1, s49\ns_cmp_eq_u32 s49, 0\ns_cbranch_scc1 LB_w8\ns_waitcnt vmcnt(' + str(N1) + ')\nLB_w8:')
    a(f's_waitcnt vmcnt({9+N1})')
    for k in range(5): a(f'v_lshlrev_b32 v{24+2*k}, 16, v{16+k}\nv_and_b32 v{25+2*k}, 0xffff0000, v{16+k}')
    a('v_add_f32 v22, v24, v25')
    for k in range(2, 10): a(f'v_add_f32 v22, v22, v{24+k}')
    a.wave_red('v_add_f32', 22, 23)
    a(f'v_mul_f32 v22, {f2u(1/640):#x}, v22\nv_mov_b32 v23, 0')
    for k in range(10): a(f'v_sub_f32 v{24+k}, v{24+k}, v22\nv_fmac_f32 v23, v{24+k}, v{24+k}')
    a.wave_red('v_add_f32', 23, 24)
    a(f'v_mul_f32 v23, {f2u(1/640):#x}, v23')
    ln_finish(a, 22, 23, 24)
    a('v_lshlrev_b32 v21, 16, v21\nv_sub_f32 v21, v21, v22')
    a.rnd(21, 21)
    a.div(20, 21, 23, 24, 25)
    a.rnd(20, 20)
    a('s_cmp_lt_u32 s2, 120\ns_cbranch_scc0 LB_dma0')
    a(f'''s_lshl_b32 s40, s38, 13
s_lshl_b32 s42, s3, 10
s_add_u32 s40, s40, s42
s_add_u32 s40, s40, {H1}
v_lshl_add_u32 v4, v1, 4, s40
s_lshl_b32 s40, s3, 4
s_add_u32 s40, s40, {MISC}
v_and_b32 v5, 7, v1
v_lshl_add_u32 v5, v5, 1, s40
s_mul_i32 s40, s45, 43
s_lshr_b32 s40, s40, 7
s_mul_i32 s42, s40, 3
s_sub_u32 s42, s45, s42
s_lshl_b32 s42, s42, 9
s_mul_i32 s40, s40, 15360
s_add_u32 s40, s40, s42
s_mul_i32 s42, s38, 1536
s_add_u32 s40, s40, s42
s_add_u32 s40, s40, {H1B}''')
    pack_addr(a, 6, 0)
    a(f'v_lshlrev_b32 v6, 1, v6\nv_lshl_add_u32 v6, v3, 4, v6\nv_add_u32 v6, s40, v6\nv_cmp_eq_u32 s[42:43], 1, v3')
    frag2_addr(a, 7, MISC)
    a(f's_waitcnt vmcnt({N1})')
    a.stamp('wq')
    a.get_tag()
    a(f'v_mov_b32 v61, {TAG}\nv_mov_b32 v63, {TAG}')
    def ck():
        a(f'v_xor_b32 v17, {TAG}, v17\nv_xor_b32 v19, {TAG}, v19\nv_or_b32 v17, v17, v19\nv_cmp_ne_u32 vcc, 0, v17')
    a.poll(lambda: a(f'global_load_dwordx4 v[16:19], v4, {WS} sc1'), ck, sleep=P['sl_h1'], pre=P['pre_h1'], mid=lambda: a.perm_block(96, 64))
    a.stamp('h1')
    a('s_setprio 3')
    a('''v_add_f32_dpp v16, v16, v16 row_ror:8 row_mask:0xf bank_mask:0xf
v_add_f32_dpp v18, v18, v18 row_ror:8 row_mask:0xf bank_mask:0xf
v_permlane16_swap_b32 v16, v18
v_add_f32 v16, v16, v18
v_mov_b32 v18, v16
v_permlane32_swap_b32 v16, v18
v_add_f32 v16, v16, v18
v_mov_b32 v18, v16
v_permlane16_swap_b32 v16, v18''')
    a.rnd(16, 16); a.rnd(18, 18)
    a('v_add_f32 v18, 1.0, v18')
    a.rnd(18, 18)
    a('v_mul_f32 v18, v20, v18')
    a.rnd(18, 18)
    a('v_add_f32 v16, v18, v16\nv_cvt_pk_bf16_f32 v16, v16, v16\nds_write_b16 v5, v16')
    a.bar()
    a('ds_read_b128 v[16:19], v7\ns_waitcnt lgkmcnt(0)')
    a.gemv2(24, 16, 96, True)
    a.pack2(8, 24)
    a('v_cndmask_b32 v60, v8, v10, s[42:43]\nv_cndmask_b32 v62, v9, v11, s[42:43]')
    a.lanes_lt(32)
    a(f'global_store_dwordx4 v6, v[60:63], {WS} sc1')
    a.full()
    a.stamp('qpub')
    a('s_setprio 0\ns_barrier')
    if P['sl_dma2']: a(f's_sleep {P["sl_dma2"]}')
    a('s_branch LB_dma')
    a.label('LB_dma0')
    a.get_tag()
    a.label('LB_dma')
    a.wave_is('eq', 7, 'LB_nrp')
    a.ready_publish()
    a.label('LB_nrp')
    def bump():
        a('v_mov_b32 v8, 1\ns_mov_b64 exec, 1\nds_add_u32 v253, v8\ns_mov_b64 exec, -1')
    def ckwait(lab): a.lds_wait(253, 8)
    a.wave_is('lt', 4, 'LB_qa')
    for i in range(N1, 12):
        dma(i, i + 1); dma(i, i + 1, 1)
    a(f'''v_lshrrev_b32 v4, 2, v2            ; rr
v_lshl_add_u32 v4, v3, 3, v4       ; 8g+rr
v_and_b32 v5, 3, v1                ; cc
s_mul_i32 s40, s3, 24
v_add_u32 v5, s40, v5              ; 24w+cc''')
    for t in range(6):
        for sub in range(2):
            a(f'''v_add_u32 v6, {4*sub}, v4
v_and_b32 v7, 15, v6
v_add_u32 v8, {4*t}, v5
v_xor_b32 v7, v7, v8
v_mul_u32_u24 v6, 1536, v6
v_lshl_add_u32 v{40+t*2+sub}, v7, 4, v6''')
    a('s_waitcnt vmcnt(0)')
    bump()
    ckwait('LB_ck0')
    a.stamp('ckv')
    for t in range(6):
        for sub in range(2):
            for hf in range(2):
                for ks in range(2):
                    r = 64 + ((t*2+hf)*2+ks)*4 + 2*sub
                    a(f'ds_read_b64_tr_b16 {vr(r,2)}, v{40+t*2+sub} offset:{ks*49152 + hf*8}')
    a(f'''s_mul_i32 s41, s2, 384
s_mul_i32 s40, s3, 49152
s_add_u32 s41, s41, s40
s_add_u32 s41, s41, {H4}
s_mov_b32 s40, 196608
v_and_b32 v52, 7, v2
v_mul_lo_u32 v52, v52, s40
v_lshl_add_u32 v52, v3, 4, v52
v_lshrrev_b32 v8, 3, v2
v_lshl_add_u32 v52, v8, 6, v52
v_add_u32 v52, s41, v52
v_add_u32 v53, {8*196608}, v52
v_add_u32 v54, {16*196608}, v52
v_add_u32 v55, {24*196608}, v52
s_lshl_b32 s40, s3, 11
s_lshl_b32 s41, s2, 4
s_add_u32 s40, s40, s41
s_add_u32 s40, s40, {AUX}
v_lshl_add_u32 v56, v1, 13, s40
s_lshl_b32 s40, s3, 7
s_add_u32 s40, s40, s2
s_lshl_b32 s40, s40, 7
s_add_u32 s40, s40, {DB4}
v_mov_b32 v8, s40
v_cmp_eq_u32 vcc, 32, v1
v_cndmask_b32 v56, v56, v8, vcc
v_and_b32 v57, 31, v1
v_lshlrev_b32 v57, 4, v57
v_add_u32 v57, {STB}, v57
s_branch LB_noqk''')
    a.label('LB_qa')
    a('s_sub_u32 s45, s3, 4\ns_mul_i32 s40, s45, 24\nv_add_u32 v5, s40, v3\nv_mul_u32_u24 v4, 1536, v2')
    for s_ in range(6):
        a(f'v_add_u32 v6, {4*s_}, v5\nv_xor_b32 v6, v6, v2\nv_lshl_add_u32 v{240+2*s_}, v6, 4, v4\nv_add_u32 v{241+2*s_}, 49152, v{240+2*s_}')
    a(f'''s_mul_i32 s40, s45, 12288
s_add_u32 s40, s40, {H2}
v_lshlrev_b32 v4, 6, v2
v_lshl_add_u32 v4, v3, 4, v4
v_add_u32 v4, s40, v4
v_add_u32 v5, 4096, v4
v_add_u32 v6, 8192, v4
s_and_b32 s41, s2, 3
s_lshl_b32 s41, s41, 6
s_add_u32 s40, s40, s41
s_add_u32 s40, s40, 10240
v_lshl_add_u32 v9, v1, 8, s40
s_mul_i32 s40, s45, {32*272}
s_add_u32 s40, s40, {SPB}
v_mul_u32_u24 v7, 272, v2
v_lshl_add_u32 v7, v3, 4, v7
v_add_u32 v7, s40, v7
s_mov_b32 s52, 0
s_waitcnt vmcnt(0)''')
    bump()
    a.ready_check(1, 10)
    a('v_mov_b32 v12, 0\nv_mov_b32 v10, 0')
    def cf():
        for kt in range(4):
            for s_ in range(6):
                a(f'ds_read_b128 {vr(64+(kt*6+s_)*4,4)}, v{240 + 2*s_ + (kt >> 1)} offset:{(kt & 1)*24576}')
    a(f'''LB_q0:
s_mov_b64 exec, {P['k_h2']}
global_load_dword v10, v9, {WS} sc1
s_mov_b64 exec, -1
s_cmp_eq_u32 s52, 0
s_cbranch_scc0 LB_q1
ds_read_b32 v8, v253
s_waitcnt lgkmcnt(0)
v_cmp_gt_u32 vcc, 8, v8
s_cbranch_vccnz LB_q1
s_mov_b32 s52, 1''')
    cf()
    a(f'''LB_q1:
s_waitcnt vmcnt(0)
v_cmp_eq_u32 vcc, -1, v10
s_cbranch_vccz LB_h2go
s_add_u32 {SPIN}, {SPIN}, 1
s_cmp_gt_u32 {SPIN}, {SPINMAX}
s_cbranch_scc1 LB_h2go
s_sleep {P['sl_pr2']}
s_branch LB_q0
LB_h2go:''')
    if P['post_h2']: a(f's_sleep {P["post_h2"]}')
    def ld():
        for i in range(12): a(f'global_load_dwordx4 {vr(16+4*i,4)}, v{4 + i//4}, {WS} offset:{(i%4)*1024} sc1')
    def mid():
        a('s_cmp_eq_u32 s52, 0\ns_cbranch_scc0 LB_q2')
        ckwait('LB_ck1')
        cf()
        a.label('LB_q2')
    a.poll(ld, lambda: a.chk_sent(range(16, 64), 8), sleep=P['sl_h2'], mid=mid)
    a('s_waitcnt lgkmcnt(0)')
    a.stamp('h2')
    a('s_setprio 3')
    for kt in range(4):
        for ht in range(2):
            for s_ in range(6):
                d = 224 + (kt*2+ht)*4
                a(f'v_mfma_f32_16x16x32_bf16 {vr(d,4)}, {vr(64+(kt*6+s_)*4,4)}, {vr(16+(s_*2+ht)*4,4)}, {"0" if s_ == 0 else vr(d,4)}')
        if kt >= 1:
            for ht in range(2): a(f'ds_write_b128 v7, {vr(224+((kt-1)*2+ht)*4,4)} offset:{ht*16*272 + (kt-1)*64}')
    for ht in range(2): a(f'ds_write_b128 v7, {vr(224+(3*2+ht)*4,4)} offset:{ht*16*272 + 3*64}')
    a.label('LB_noqk')
    a(f'''s_lshl_b32 s40, s3, 2
v_add_u32 v9, s40, v3              ; head = 4w+g
v_mul_u32_u24 v4, 272, v9
v_lshl_add_u32 v4, v2, 4, v4
v_add_u32 v4, {SPB}, v4
v_mul_u32_u24 v5, 144, v9
v_lshl_add_u32 v5, v2, 3, v5
v_add_u32 v5, {PB}, v5
s_lshl_b32 s40, s2, 4
s_add_u32 s40, s40, {H3}
v_lshl_add_u32 v6, v9, 11, s40
v_lshlrev_b32 v7, 4, v9
v_add_u32 v7, {STB}, v7
v_lshlrev_b32 v10, 2, v2           ; 4*kq
v_mov_b32 v45, {TAG}
v_mov_b32 v47, {TAG}
s_lshl_b32 s40, s2, 7
s_add_u32 s40, s40, {DB3}
v_mov_b32 v8, s40
v_cmp_eq_u32 vcc, 1, v1
v_cndmask_b32 v6, v6, v8, vcc
s_cmp_eq_u32 s3, 7
s_cselect_b32 s49, 2, 0
s_or_b32 s49, s49, 0x00010001
v_mov_b32 v58, {STB + 512}
v_mov_b32 v13, 0
ds_write_b64 v58, v[12:13]
ds_write_b32 v58, v12 offset:12''')
    for i in range(4): a(f'v_add_u32 v{40+i}, {i}, v10')
    a.bar()
    a.stamp('qk')
    a('s_setprio 3')
    for i in range(4): a(f'ds_read_b128 {vr(16+4*i,4)}, v4 offset:{8704*i}')
    a(f'''v_mul_u32_u24 v4, 144, v2
v_lshl_add_u32 v4, v3, 4, v4
v_add_u32 v4, {PB}, v4
v_mov_b32 v11, {NEGINF:#x}
s_mov_b32 s40, 0xffffffc0
s_waitcnt lgkmcnt(0)''')
    for i in range(4):
        a(f'v_add_f32 v{16+i}, v{16+i}, v{20+i}\nv_add_f32 v{24+i}, v{24+i}, v{28+i}')
    for i in range(4): a(f'v_add_f32 v{32+i}, v{16+i}, v{24+i}')
    for i in range(4): a(f'v_and_or_b32 v{36+i}, v{32+i}, s40, v{40+i}')
    a('v_max3_f32 v50, v36, v37, v38\nv_max_f32 v50, v50, v39')
    for i in range(4): a(f'v_cvt_pk_bf16_f32 v{32+i}, v{32+i}, v{32+i}')
    a.row_red('v_max_f32', [50])
    a.rnd(44, 50)
    a('v_mul_f32 v44, s59, v44\nv_and_b32 v46, 63, v50')
    a.rnd(44, 44)
    a('s_mov_b32 exec_lo, s49\ns_mov_b32 exec_hi, 0x00010001')
    a(f'global_store_dwordx4 v6, v[44:47], {WS} sc1')
    a.full()
    a.stamp('h3pub')
    for i in range(4): a(f'v_and_b32 v{32+i}, 0xffff0000, v{32+i}')
    for i in range(4): a(f'v_mul_f32 v{32+i}, s59, v{32+i}')
    for i in range(4): a.rnd(32 + i, 32 + i)
    for i in range(4):
        a(f'v_cmp_eq_u32 s[{50+2*(i&1)}:{51+2*(i&1)}], v{40+i}, v46\nv_cndmask_b32 v{32+i}, v{32+i}, v11, s[{50+2*(i&1)}:{51+2*(i&1)}]\nv_cndmask_b32 v{24+i}, 0, 1.0, s[{50+2*(i&1)}:{51+2*(i&1)}]')
    a('v_max3_f32 v50, v32, v33, v34\nv_max_f32 v50, v50, v35')
    a.row_red('v_max_f32', [50])
    a('v_sub_f32 v28, v50, v44')
    for i in range(4): a(f'v_sub_f32 v{32+i}, v{32+i}, v50')
    a('v_mul_f32 v28, s56, v28')
    for i in range(4): a(f'v_mul_f32 v{32+i}, s56, v{32+i}')
    a('v_exp_f32 v28, v28')
    for i in range(4): a(f'v_exp_f32 v{32+i}, v{32+i}')
    for i in range(4): a(f'v_fmac_f32 v{24+i}, v{32+i}, v28')
    a(f'''v_cvt_pk_bf16_f32 v36, v24, v25
v_cvt_pk_bf16_f32 v37, v26, v27
ds_write_b64 v5, v[36:37]
v_add_f32 v51, v32, v33
v_add_f32 v49, v34, v35
v_add_f32 v51, v51, v49
v_cvt_pk_bf16_f32 v38, v32, v33
v_cvt_pk_bf16_f32 v39, v34, v35
ds_write_b64 v5, v[38:39] offset:4608
v_mov_b32 v48, v44''')
    a.row_red('v_add_f32', [51])
    a('v_fma_f32 v49, v51, v28, 1.0\nds_write_b128 v7, v[48:51]')
    a.stamp('xa')
    a.bar()
    a.stamp('xb')
    a.wave_is('lt', 4, 'LB_lw')
    for ht in range(2):
        for ks in range(2): a(f'ds_read_b128 {vr(16+(ht*2+ks)*4,4)}, v4 offset:{ht*16*144 + ks*64}')
    a('ds_read_b128 v[36:39], v57\ns_waitcnt lgkmcnt(1)')
    def unit(i):
        cl, ht = i >> 1, i & 1
        for tp in range(2):
            for hf in range(2):
                d = 160 + (i % 3)*16 + (tp*2+hf)*4
                t = cl*2 + tp
                for ks in range(2):
                    a(f'v_mfma_f32_16x16x32_bf16 {vr(d,4)}, {vr(64+((t*2+hf)*2+ks)*4,4)}, {vr(16+(ht*2+ks)*4,4)}, {"0" if ks == 0 else vr(d,4)}')
    def ust(i):
        cl, ht = i >> 1, i & 1
        d = 160 + (i % 3)*16; o = 208 + (i % 4)*12
        for k in range(4): a(f'v_cvt_pk_bf16_f32 v{o+k}, v{d+2*k}, v{d+2*k+1}')
        for k in range(4): a(f'v_cvt_pk_bf16_f32 v{o+4+k}, v{d+8+2*k}, v{d+8+2*k+1}')
        for k in range(4): a(f'v_mov_b32 v{o+8+k}, v{o+k}')
        for k in range(4): a(f'v_mov_b32_dpp v{o+k}, v{o+4+k} row_ror:8 row_mask:0xf bank_mask:0xc')
        a(f'global_store_dwordx4 v{52+2*ht}, {vr(o,4)}, {WS} offset:{128*cl} sc1 {"nt" if P["pv_nt"] else ""}')
        for k in range(4): a(f'v_mov_b32_dpp v{o+4+k}, v{o+8+k} row_ror:8 row_mask:0xf bank_mask:0x3')
        a(f'global_store_dwordx4 v{53+2*ht}, {vr(o+4,4)}, {WS} offset:{128*cl} sc1 {"nt" if P["pv_nt"] else ""}')
    a.stamp('xc')
    unit(0)
    for i in range(1, 6):
        unit(i); ust(i - 1)
        if i in (1, 3): a.stamp(f'xd{i}')
    ust(5)
    a(f'v_mov_b32 v8, 1\nv_mov_b32 v33, {TAG}\nv_mov_b32 v32, v36\nv_mov_b32 v34, v37\nv_mov_b32 v35, {TAG}')
    a.lanes_lt(1)
    a('ds_add_u32 v58, v8')
    a.stamp('pvst')
    a.lanes_lt(32)
    a(f's_waitcnt vmcnt(0)\nglobal_store_dwordx4 v56, v[32:35], {WS} sc1')
    a.lanes_lt(1)
    a('ds_add_u32 v58, v8 offset:12')
    a.full()
    a.stamp('auxpub')
    a(f'''v_lshlrev_b32 v9, 2, v2
v_add_u32 v9, {STB + 576}, v9
s_lshl_b32 s40, s3, 9
s_add_u32 s40, s40, {SIDE}
v_lshlrev_b32 v10, 13, v2
v_lshl_add_u32 v10, v3, 4, v10
v_add_u32 v10, s40, v10
v_lshlrev_b32 v11, 4, v2
v_add_u32 v11, {STB}, v11
''')
    a.lds_wait(58, 1, off=4, extra='ds_read2_b32 v[40:41], v9 offset0:0 offset1:16')
    for ht in range(2):
        a(f'''v_cmp_gt_u32 s[42:43], 4, v{40+ht}
s_cmp_eq_u64 s[42:43], 0
s_cbranch_scc1 LB_cn{ht}
ds_read_b128 v[16:19], v4 offset:{4608 + ht*16*144}
ds_read_b128 v[20:23], v4 offset:{4608 + ht*16*144 + 64}
ds_read_b64 v[44:45], v11 offset:{ht*256 + 8}
v_and_b32 v42, 3, v{40+ht}
v_lshl_add_u32 v42, v42, 11, v10
v_add_u32 v42, {ht*16*8192}, v42
s_waitcnt lgkmcnt(0)''')
        for t in range(6):
            for hf in range(2):
                d = 160 + (t*2+hf)*4
                for ks in range(2):
                    a(f'v_mfma_f32_16x16x32_bf16 {vr(d,4)}, {vr(64+((t*2+hf)*2+ks)*4,4)}, {vr(16+ks*4,4)}, {"0" if ks == 0 else vr(d,4)}')
        for t in range(6):
            for k in range(4): a(f'v_cvt_pk_bf16_f32 v{208+4*t+k}, v{160+8*t+2*k}, v{161+8*t+2*k}')
        a.san(range(208, 232))
        a(f'v_mov_b32 v46, v45\nv_mov_b32 v45, {TAG}\nv_mov_b32 v47, {TAG}\ns_mov_b64 exec, s[42:43]')
        for t in range(6): a(f'global_store_dwordx4 v42, {vr(208+4*t,4)}, {WS} offset:{64*t} sc1')
        a(f's_and_b64 exec, exec, 0xffff\nglobal_store_dwordx4 v42, v[44:47], {WS} offset:384 sc1')
        a.full()
        a.label(f'LB_cn{ht}')
    a('v_mov_b32 v8, 1')
    a.lanes_lt(1)
    a('ds_add_u32 v58, v8')
    a.full()
    a('s_branch LB_lw2')
    a.label('LB_lw')
    a('s_setprio 0')
    a.wave_is('eq', 4, 'LB_lw3')
    a(f'''v_and_b32 v9, 31, v1
v_lshlrev_b32 v10, 2, v9
v_add_u32 v10, {STB + 576}, v10
v_lshlrev_b32 v9, 7, v9
v_add_u32 v9, {ELIST}, v9
''')
    a.lds_wait(58, P['ew_cnt'], sleep=2)
    a.poll(lambda: a(f'global_load_dwordx4 v[16:19], v9, {WS} sc1\nglobal_load_dwordx4 v[20:23], v9, {WS} offset:16 sc1'),
           lambda: a.chk_tag(range(17, 24, 2), 8), sleep=P['sl_el'])
    a.stamp('el')
    a('v_mov_b32 v8, 15')
    for j in range(4): a(f'v_cmp_eq_u32 vcc, s2, v{16+2*j}\nv_cndmask_b32 v8, v8, {j}, vcc' if False else f'v_cmp_ne_u32 vcc, s2, v{16+2*j}\nv_cndmask_b32 v8, {j}, v8, vcc')
    a('ds_write_b32 v10, v8\nv_mov_b32 v8, 1\nds_write_b32 v58, v8 offset:4')
    a.label('LB_lw2')
    a.lds_wait(58, 8, sleep=P['sl_lw'])
    a('s_branch LB_late')
    a.label('LB_lw3')
    if P['early_late']: a.lds_wait(58, 4, off=12, sleep=P['sl_lw'])
    else: a.lds_wait(58, 8, sleep=P['sl_lw'])
    a.label('LB_late')
    def gate2(): a.lds_wait(58, 8, sleep=P['sl_lw'])
    a('s_cmp_lt_u32 s2, 80\ns_cbranch_scc0 LB_hi')
    a.wave_is('ge', 4, 'LB_wob')
    a(f'''s_mul_i32 s40, s39, 768
s_mul_i32 s41, s45, 192
s_add_u32 s40, s40, s41
s_lshl_b32 s41, s38, 7''')
    blk2_addr(a, 4, 's40', 1280, 's41')
    a(f'v_add_u32 v5, {64*1280}, v4\nv_add_u32 v6, {128*1280}, v4')
    for i in range(3):
        a.load_rows(64 + 32*i, 4, 4 + i, WO, 1280)
        if i == P['early_late'] - 1: gate2()
    a(f'''s_mul_i32 s40, s39, 12
s_mul_i32 s41, s45, 3
s_add_u32 s40, s40, s41
s_lshl_b32 s40, s40, 10
s_add_u32 s40, s40, {H5}
v_lshl_add_u32 v4, v1, 4, s40
s_mul_i32 s40, s45, 384
s_add_u32 s40, s40, {MISC + 4096}
v_lshl_add_u32 v5, v2, 2, v3
v_lshl_add_u32 v5, v5, 1, s40      ; (4p+g)*2''')
    frag2_addr(a, 6, 's40')
    gemv_out_prep(a, MISC + 2048 - 1024)
    for i in range(3):
        a(f's_waitcnt vmcnt({16 - 8*i})')
        a.perm_block(160 + 32*i, 64 + 32*i)
    a.stamp('late')
    if P['probe_h5']: a.probe(4, 8, off=2048, sleep=P['sl_pr'], post=P['post_h5'], mask=0x0001000100010001)
    def ld():
        for i in range(3): a(f'global_load_dwordx4 {vr(16+4*i,4)}, v4, {WS} offset:{1024*i} sc1')
    a.poll(ld, lambda: a.chk_sent(range(16, 28), 8), sleep=P['sl_h5'])
    a.stamp('h5')
    a('s_setprio 3')
    for i in range(3): a.xrow_tr4(16 + 4*i)
    for i in range(3): a(f'v_cvt_pk_bf16_f32 v{16+4*i}, v{16+4*i}, v{16+4*i}\nds_write_b16 v5, v{16+4*i} offset:{128*i}')
    a('s_waitcnt lgkmcnt(0)')
    for i in range(3): a(f'ds_read_b128 {vr(16+4*i,4)}, v6 offset:{128*i}')
    for i in range(3):
        a(f's_waitcnt lgkmcnt({2-i})')
        a.gemv2(64, 16 + 4*i, 160 + 32*i, i == 0)
    gemv_out_lds(a, 64, 0)
    a.label('LB_wob')
    a(f'''v_lshlrev_b32 v4, 2, v1
v_add_u32 v4, {MISC + 2048}, v4
s_mul_i32 s40, s39, 2560
s_lshl_b32 s41, s38, 8
s_add_u32 s40, s40, s41
s_add_u32 s40, s40, {H6}
v_lshl_add_u32 v5, v1, 2, s40''')
    a.bar()
    a.wave_is('eq', 4, 'Lfin')
    for i in range(2): a(f'ds_read2st64_b32 {vr(16+2*i,2)}, v4 offset0:{2*i} offset1:{2*i+1}')
    a('s_waitcnt lgkmcnt(0)')
    tree(a, range(16, 20))
    a(f'global_store_dword v5, v16, {WS} sc1')
    a.stamp('h6pub')
    a('s_branch Lfin')
    a.label('LB_hi')
    a('s_cmp_lt_u32 s2, 104\ns_cbranch_scc0 LB_mr')
    a(f's_sub_u32 s46, s2, 80\ns_lshl_b32 s40, s46, 6\ns_lshl_b32 s41, s3, 7')
    blk2_addr(a, 10, 's40', 1280, 's41')
    a.wave_is('lt', 5, 'LB_f5')
    a(f's_lshl_b32 s40, s3, 7\ns_lshl_b32 s41, s46, 7')
    blk2_addr(a, 4, 's40', 3072, 's41')
    a(f'v_add_u32 v5, {64*3072}, v4\nv_lshlrev_b32 v6, 2, v0\nglobal_load_dword v24, v6, {X}')
    a.load_rows(128, 4, 4, W1, 3072)
    a.load_rows(160, 4, 5, W1, 3072)
    a.load_rows(64, 4, 10, W2, 1280)
    a(f'v_lshlrev_b32 v4, 2, v0\nv_add_u32 v4, {MODR}, v4\nv_add_u32 v5, 2560, v4\ns_waitcnt vmcnt(8)')
    a.perm_block(192, 128)
    a.perm_block(224, 160)
    a('s_waitcnt vmcnt(0)')
    a.stamp('late1')
    a.perm_block(96, 64)
    a.ready_check(0, 36)
    def ld():
        a(f'''global_load_dword v25, v4, {WS} sc1
global_load_dword v26, v4, {WS} offset:1280 sc1
global_load_dword v27, v5, {WS} sc1
global_load_dword v38, v5, {WS} offset:1280 sc1''')
    a.poll(ld, lambda: a.chk_sent([25, 26, 27, 38], 8), sleep=8)
    a(f'''v_lshlrev_b32 v4, 3, v0
v_add_u32 v8, {H6}, v4
v_lshlrev_b32 v28, 16, v24
v_and_b32 v29, 0xffff0000, v24
v_lshlrev_b32 v30, 16, v25
v_and_b32 v31, 0xffff0000, v25
v_lshlrev_b32 v32, 16, v26
v_and_b32 v33, 0xffff0000, v26
v_lshlrev_b32 v34, 16, v27
v_and_b32 v35, 0xffff0000, v27
v_add_f32 v34, 1.0, v34
v_add_f32 v35, 1.0, v35''')
    a.rnd(34, 34); a.rnd(35, 35)
    for i in range(1, 4): a(f'v_add_u32 v{8+i}, {5120*i}, v8')
    a(f'''s_lshl_b32 s40, s3, 3
s_add_u32 s40, s40, {MISC + 8192}
v_mov_b32 v13, s40
s_lshl_b32 s40, s3, 8
s_add_u32 s40, s40, {MISC + 4096}
v_lshl_add_u32 v5, v1, 2, s40''')
    frag2_addr(a, 6, 's40')
    gemv_out_prep(a, MISC)
    a(f'v_mul_u32_u24 v37, 2560, v1\ns_lshl_b32 s40, s3, 9\ns_add_u32 s40, s40, {H6}\nv_add_u32 v37, s40, v37')
    if P['probe_h6']: a.probe(37, 4, sleep=P['sl_pr'], post=P['post_h6'], mask=0xff)
    def ld():
        for i in range(8): a(f'global_load_dwordx2 {vr(40+2*i,2)}, v{8 + i//2}, {WS} offset:{2560*(i%2)} sc1')
    if P['m_h6']:
        a.poll_masked([(f'global_load_dwordx2 {vr(40+2*i,2)}, v{8 + i//2}, {WS} offset:{2560*(i%2)} sc1', range(40+2*i, 42+2*i)) for i in range(8)], 4, sleep=P['sl_h6'])
    else: a.poll(ld, lambda: a.chk_sent(range(40, 56), 4), sleep=P['sl_h6'])
    a.stamp('h6')
    a('s_setprio 3')
    tree(a, range(40, 56, 2), n=2)
    for i in range(2): a.rnd(40 + i, 40 + i)
    for i in range(2): a(f'v_mul_f32 v{40+i}, v{30+i}, v{40+i}')
    for i in range(2): a.rnd(40 + i, 40 + i)
    for i in range(2): a(f'v_add_f32 v{40+i}, v{28+i}, v{40+i}')
    a('''v_cvt_pk_bf16_f32 v36, v40, v41
v_lshlrev_b32 v40, 16, v36
v_and_b32 v41, 0xffff0000, v36
v_readfirstlane_b32 s42, v40
v_subrev_f32 v44, s42, v40
v_subrev_f32 v45, s42, v41
v_add_f32 v42, v44, v45
v_mul_f32 v43, v44, v44
v_fmac_f32 v43, v45, v45''')
    a.row_red('v_add_f32', [42, 43])
    a(f'''v_permlane16_swap_b32 v42, v43
v_add_f32 v42, v42, v43
v_mov_b32 v43, v42
v_permlane32_swap_b32 v42, v43
v_add_f32 v42, v42, v43
v_mov_b32 v43, v42
v_permlane16_swap_b32 v42, v43
v_mul_f32 v42, {f2u(1/128):#x}, v42
v_mul_f32 v44, {f2u(128.0):#x}, v42
v_fma_f32 v43, -v44, v42, v43
v_add_f32 v42, s42, v42
ds_write_b64 v13, v[42:43]
s_branch LB_w1b''')
    a.label('LB_f5')
    a.load_rows(64, 4, 10, W2, 1280)
    if P['early_late'] < 2: gate2()
    a.wave_is('lt', 7, 'LB_f7')
    a(f's_lshl_b32 s40, s46, 6\ns_add_u32 s41, s3, 3\ns_lshl_b32 s41, s41, 7')
    blk2_addr(a, 10, 's40', 1280, 's41')
    a.load_rows(128, 4, 10, W2, 1280)
    a.label('LB_f7')
    a('s_waitcnt vmcnt(0)')
    a.perm_block(96, 64)
    a.perm_block(192, 128)
    a.label('LB_w1b')
    a(f'v_mov_b32 v4, {MISC + 8192}')
    a.bar()
    a('s_setprio 3')
    a.wave_is('lt', 5, 'LB_w1c')
    a(f'''ds_read_b128 v[44:47], v4
ds_read_b128 v[48:51], v4 offset:16
ds_read_b64 v[52:53], v4 offset:32
s_waitcnt lgkmcnt(0)
v_add_f32 v54, v44, v46
v_add_f32 v55, v48, v50
v_add_f32 v56, v45, v47
v_add_f32 v54, v54, v55
v_add_f32 v57, v49, v51
v_add_f32 v54, v54, v52
v_add_f32 v55, v56, v57
v_mul_f32 v54, {f2u(0.2):#x}, v54      ; mean
v_add_f32 v55, v55, v53''')
    for r in (44, 46, 48, 50, 52): a(f'v_sub_f32 v{r}, v{r}, v54')
    a('v_mul_f32 v56, v44, v44\nv_mul_f32 v57, v46, v46\nv_fmac_f32 v56, v48, v48\nv_fmac_f32 v57, v50, v50\nv_fmac_f32 v56, v52, v52\nv_add_f32 v56, v56, v57')
    a(f'v_fmac_f32 v55, {f2u(128.0):#x}, v56\nv_mul_f32 v55, {f2u(1/640):#x}, v55')
    ln_finish(a, 54, 55, 56)
    for i in range(2): a(f'v_sub_f32 v{44+i}, v{40+i}, v54')
    for i in range(2): a.rnd(44 + i, 44 + i)
    for i in range(2): a.div(42 + i, 44 + i, 55, 56, 57 + i)
    for i in range(2): a.rnd(42 + i, 42 + i)
    for i in range(2): a(f'v_mul_f32 v{42+i}, v{42+i}, v{34+i}')
    for i in range(2): a.rnd(42 + i, 42 + i)
    for i in range(2): a(f'v_add_f32 v{42+i}, v{42+i}, v{32+i}')
    a('''v_cvt_pk_bf16_f32 v42, v42, v43
ds_write_b32 v5, v42
s_waitcnt lgkmcnt(0)
ds_read_b128 v[16:19], v6
ds_read_b128 v[20:23], v6 offset:128
s_waitcnt lgkmcnt(1)''')
    a.gemv2(128, 16, 192, True)
    a('s_waitcnt lgkmcnt(0)')
    a.gemv2(128, 20, 224, False)
    gemv_out_lds(a, 128, MISC)
    a.label('LB_w1c')
    a(f'''v_and_b32 v4, 31, v1
v_lshlrev_b32 v5, 2, v4
v_lshlrev_b32 v4, 3, v4
v_add_u32 v4, {MISC}, v4
s_lshl_b32 s40, s3, 7
s_add_u32 s40, s40, {MISC + 6144}
v_add_u32 v5, s40, v5''')
    frag2_addr(a, 6, 's40')
    a(f's_mul_i32 s40, s46, 2560\ns_lshl_b32 s41, s3, 8\ns_add_u32 s40, s40, s41\ns_add_u32 s40, s40, {H7Y}')
    pack_addr(a, 14, 's40')
    a.bar()
    for i in range(5): a(f'ds_read_b64 {vr(16+2*i,2)}, v4 offset:{256*i}')
    a('s_waitcnt lgkmcnt(0)')
    tree(a, range(16, 26, 2), n=2)
    a('''v_max_f32 v16, 0, v16
v_max_f32 v17, 0, v17
v_cvt_pk_bf16_f32 v8, v16, v17
ds_write_b32 v5, v8
s_waitcnt lgkmcnt(0)
ds_read_b128 v[16:19], v6
s_waitcnt lgkmcnt(0)''')
    a.gemv2(64, 16, 96, True)
    a('s_sub_u32 s40, s3, 5\ns_cmp_lt_u32 s40, 2\ns_cbranch_scc0 LB_y1')
    a.gemv2(128, 16, 192, True)
    a.label('LB_y1')
    a.pack2(8, 64)
    a.lanes_lt(16)
    a(f'global_store_dwordx4 v14, v[8:11], {WS} sc1')
    a.full()
    a('s_cbranch_scc0 LB_y2')
    a.pack2(20, 128)
    a.lanes_lt(16)
    a(f'global_store_dwordx4 v14, v[20:23], {WS} offset:768 sc1')
    a.full()
    a.label('LB_y2')
    a.stamp('h7pub')
    a('s_lshr_b32 s40, s46, 2\ns_cmp_eq_u32 s40, s3\ns_cbranch_scc0 Lfin\ns_cmp_lt_u32 s3, 5\ns_cbranch_scc0 Lfin\ns_and_b32 s40, s46, 3\ns_lshl_b32 s40, s40, 4\ns_mov_b64 s[42:43], 0xffff\ns_lshl_b64 exec, s[42:43], s40')
    a(f'v_lshlrev_b32 v4, 3, v0\nv_add_u32 v4, {H7Y}, v4')
    for i in range(1, 12): a(f'v_add_u32 v{16+i}, {5120*i}, v4')
    a(f'''v_mov_b32 v16, v4
v_lshlrev_b32 v5, 2, v0
v_lshlrev_b32 v30, 16, v38
v_and_b32 v31, 0xffff0000, v38''')
    def ld():
        for i in range(24): a(f'global_load_dwordx2 {vr(64+2*i,2)}, v{16 + i//2}, {WS} offset:{2560*(i%2)} sc1')
    a.poll(ld, lambda: a.chk_sent(range(64, 112), 4), sleep=P['sl_h7'], pre=P['pre_h7'])
    a.stamp('h7')
    tree(a, range(64, 112, 2), n=2)
    for i in range(2): a.rnd(64 + i, 64 + i)
    for i in range(2): a(f'v_mul_f32 v{64+i}, v{30+i}, v{64+i}')
    for i in range(2): a.rnd(64 + i, 64 + i)
    for i in range(2): a(f'v_add_f32 v{64+i}, v{40+i}, v{64+i}')
    a(f'v_cvt_pk_bf16_f32 v64, v64, v65\nglobal_store_dword v5, v64, {OUT}\ns_mov_b64 exec, -1')
    a.stamp('out')
    a('s_branch Lfin')
    a.label('LB_mr')
    a('s_cmp_lt_u32 s2, 124\ns_cbranch_scc0 Lfin\ns_sub_u32 s46, s2, 104\ns_add_u32 s45, s3, 3\ns_and_b32 s45, s45, 7\ns_cmp_lt_u32 s45, 5\ns_cbranch_scc0 LB_mrb')
    a(f'''s_lshl_b32 s40, s45, 7
v_lshl_add_u32 v4, v3, 3, s40      ; row = 128w + 8g
v_lshlrev_b32 v6, 1, v4
v_add_u32 v6, {MISC + 4096}, v6
v_mul_u32_u24 v4, 7680, v4
v_lshl_add_u32 v4, v2, 4, v4
s_lshl_b32 s40, s46, 8
s_add_u32 s40, s40, 2560
v_add_u32 v4, s40, v4
s_lshl_b32 s40, s45, 8
v_lshl_add_u32 v7, v1, 2, s40
global_load_dword v16, v7, {CC}
v_add_u32 v7, {MISC + 4096}, v7''')
    for i in range(4):
        a.load_rows(64 + 32*i, 4, 4, WMOD, 7680)
        if i < 3: a(f'v_add_u32 v4, {25*7680}, v4')
        if i == P['early_late'] - 1: gate2()
    a('s_waitcnt vmcnt(32)')
    a('v_lshlrev_b32 v32, 16, v16\nv_and_b32 v33, 0xffff0000, v16')
    a.silu(32, 32, 8); a.silu(33, 33, 8)
    a(f'v_perm_b32 v16, v33, v32, {PHI}\nds_write_b32 v7, v16\ns_waitcnt lgkmcnt(0)')
    for i in range(4): a(f'ds_read_b128 {vr(16+4*i,4)}, v6 offset:{64*i}')
    a('s_waitcnt lgkmcnt(0)')
    a(f'''v_cmp_eq_u32 s[42:43], 1, v3
v_lshlrev_b32 v4, 5, v2
v_lshl_add_u32 v4, v3, 4, v4
s_lshl_b32 s40, s45, 9
s_add_u32 s40, s40, {MISC}
v_add_u32 v4, s40, v4''')
    for i in range(4):
        a(f's_waitcnt vmcnt({24 - 8*i})')
        a.perm_block(192, 64 + 32*i)
        a.gemv2(224, 16 + 4*i, 192, i == 0)
    a.stamp('late2')
    for i in range(4): a(f'v_cndmask_b32 v{8+i}, v{224+4*i}, v{224+4*(i+4)}, s[42:43]')
    a.lanes_lt(32)
    a('ds_write_b128 v4, v[8:11]')
    a.full()
    a.label('LB_mrb')
    a.bar()
    a.wave_is('eq', 2, 'Lfin')
    a(f'v_lshlrev_b32 v4, 3, v1\nv_add_u32 v4, {MISC}, v4')
    for i in range(5): a(f'ds_read_b64 {vr(16+2*i,2)}, v4 offset:{512*i}')
    a(f's_lshl_b32 s40, s46, 8\ns_add_u32 s40, s40, {MODR}\nv_lshl_add_u32 v4, v1, 2, s40\ns_waitcnt lgkmcnt(0)')
    tree(a, range(16, 26, 2), n=2)
    a('v_cvt_pk_bf16_f32 v8, v16, v17')
    a.san([8])
    a(f'global_store_dword v4, v8, {WS} sc1')
    a.stamp('mrpub')
    a('s_branch Lfin')

LS1, LQ, LKEY, LEK, LWT, LWP, LFW, LKP = 0, 2816, 3328, 3840, 4096, 4608, 5120, 6144
LRP = LKP + 18432; LCC = LRP + 6144; LVP = LCC + 1024; LQF = LVP + 4608; LSR = LQF + 1024; LFL = LSR + 1536
def load_uk(a, base, off=128, lo=0, hi=8, v=4):
    if lo == hi: return
    a(f'''s_mul_i32 s40, s41, 192
s_lshl_b32 s42, s3, 5
s_add_u32 s40, s40, s42
s_add_u32 s40, s40, {lo}
v_lshl_add_u32 v{v}, v3, 3, s40
v_mul_u32_u24 v{v}, 12288, v{v}
s_mul_i32 s40, s47, 384
v_add_u32 v{v}, s40, v{v}
v_lshl_add_u32 v{v+1}, v2, 3, v{v}
v_lshl_add_u32 v{v}, v2, 4, v{v}''')
    for j in range(lo, hi):
        a(f'global_load_dwordx4 {vr(off+4*j,4)}, v{v}, {base} nt')
        a(f'global_load_dwordx2 {vr(off+32+2*j,2)}, v{v+1}, {base} offset:256 nt')
        if j < hi - 1: a(f'v_add_u32 v{v}, 12288, v{v}\nv_add_u32 v{v+1}, 12288, v{v+1}')
def perm12(a, dst, src=128):
    a.perm_block(dst, src, nreg=4); a.perm_block(dst + 32, src + 32, nreg=2)
def mfma12(a, D, A, F):
    for e in range(12): a(f'v_mfma_f32_16x16x32_bf16 {vr(D+4*e,4)}, {vr(A,4)}, {vr(F+4*e,4)}, 0')
def out12_prep(a, v, lbase):
    a(f's_mul_i32 s40, s3, 768\ns_add_u32 s40, s40, {lbase}\nv_lshl_add_u32 v{v}, v2, 5, s40\nv_lshl_add_u32 v{v+1}, v2, 4, s40')
def out12(a, D, o, v):
    for e in range(12): a(f'v_add_f32 v{o+e}, v{D+4*e}, v{D+4*e+1}')
    a.lanes_lt(16)
    a(f'ds_write_b128 v{v}, {vr(o,4)}\nds_write_b128 v{v}, {vr(o+4,4)} offset:16\nds_write_b128 v{v+1}, {vr(o+8,4)} offset:512')
    a.full()
def weights_out(a, val, lbase, k):
    a(f'''v_cvt_pk_bf16_f32 v8, v{val}, v{val}
ds_write_b16 v4, v8 offset:{lbase + 128*k}
v_and_b32 v9, 0xffff0000, v8
v_sub_f32 v9, v{val}, v9
v_cvt_pk_bf16_f32 v9, v9, v9
ds_write_b16 v4, v9 offset:{lbase + 256 + 128*k}''')

def role_A(a):
    P = a.P
    a(f'''s_sub_u32 s44, s2, 128
s_mul_i32 s39, s44, 205
s_lshr_b32 s39, s39, 11          ; kp = a/10
s_mul_i32 s40, s39, 10
s_sub_u32 s38, s44, s40          ; mg = a%10
s_lshr_b32 s47, s44, 2           ; head
s_and_b32 s41, s44, 3            ; quarter
v_mov_b32 v12, 0
s_mul_i32 s40, s39, 80
s_lshl_b32 s42, s3, 4
s_add_u32 s40, s40, s42
v_lshl_add_u32 v5, v3, 2, s40      ; row0
v_mul_u32_u24 v4, 7680, v5
v_lshrrev_b32 v6, 3, v2
v_mul_u32_u24 v6, 1152, v6
v_lshl_add_u32 v6, v2, 4, v6
s_lshl_b32 s42, s38, 7
v_add3_u32 v4, v4, v6, s42
v_lshlrev_b32 v5, 1, v5
s_waitcnt lgkmcnt(0)''')
    a.stamp('start')
    a.wave_is('lt', 5, 'LA_nos1')
    a('s_cmp_lt_u32 s44, 80\ns_cbranch_scc0 LA_nos1')
    a(f'global_load_dwordx2 v[32:33], v5, {CC}')
    a.load_rows(16, 4, 4, WMOD, 7680, rows=4)
    a(f'global_load_dword v15, v12, {WS} sc1')
    U1 = P['uk1']
    load_uk(a, WUK, hi=U1)
    a.stamp('x1')
    a('s_branch LA2')

def role_A2(a):
    P = a.P; U1 = P['uk1']
    a.label('LA2')
    consts(a)
    a(f'''s_waitcnt vmcnt({5+2*U1})
v_lshlrev_b32 v36, 16, v32
v_and_b32 v37, 0xffff0000, v32
v_lshlrev_b32 v38, 16, v33
v_and_b32 v39, 0xffff0000, v33''')
    a.stamp('x2')
    for i in range(4): a.silu(36 + i, 36 + i, 8)
    a.stamp('x3')
    a(f'''v_perm_b32 v34, v37, v36, {PHI}
v_perm_b32 v35, v39, v38, {PHI}
v_cmp_eq_u32 vcc, 1, v3
v_lshlrev_b32 v4, 5, v2
v_lshl_add_u32 v4, v3, 4, v4
s_lshl_b32 s40, s3, 9
v_add_u32 v4, s40, v4''')
    a(f's_waitcnt vmcnt({1+2*U1})')
    a.stamp('x4')
    for e in range(8):
        for k in range(2):
            a(f'v_perm_b32 v{40+2*e+k}, v{16+(2*k+1)*4+(e>>1)}, v{16+2*k*4+(e>>1)}, {PHI if e & 1 else PLO}')
        a(f'v_mfma_f32_16x16x16_bf16 {vr(64+4*e,4)}, v[34:35], {vr(40+2*e,2)}, 0')
    for i in range(4): a(f'v_cndmask_b32 v{8+i}, v{64+4*i}, v{64+4*(i+4)}, vcc')
    a.lanes_lt(32)
    a('ds_write_b128 v4, v[8:11]')
    a.full()
    a(f's_waitcnt vmcnt({2*U1})')
    a.get_tag()
    a('s_branch LA_b1')
    a.label('LA_nos1')
    a(f'global_load_dword v15, v12, {WS} sc1')
    a.wave_is('lt', 6, 'LA_nos1b')
    load_uk(a, WUK, hi=U1)
    a.label('LA_nos1b')
    consts(a)
    a.wave_is('eq', 7, 'LA_not7')
    neg1(a)
    a(f'''s_mul_i32 s40, s41, 12288
s_lshr_b32 s42, s47, 4
s_lshl_b32 s42, s42, 10
s_add_u32 s40, s40, s42
s_and_b32 s42, s47, 15
s_lshl_b32 s42, s42, 6
s_add_u32 s40, s40, s42
s_add_u32 s40, s40, {H2}
v_lshrrev_b32 v4, 2, v1
v_min_u32 v4, 5, v4
v_lshlrev_b32 v4, 11, v4
v_and_b32 v5, 3, v1
v_lshl_add_u32 v4, v5, 4, v4
v_add_u32 v4, s40, v4
global_store_dwordx4 v4, v[8:11], {WS} sc1
s_mul_i32 s40, s44, 3072
s_add_u32 s40, s40, {H4S}
v_lshl_add_u32 v4, v1, 4, s40
global_store_dwordx4 v4, v[8:11], {WS} sc1
global_store_dwordx4 v4, v[8:11], {WS} offset:1024 sc1
global_store_dwordx4 v4, v[8:11], {WS} offset:2048 sc1
s_lshl_b32 s40, s47, 13
s_lshl_b32 s42, s41, 9
s_add_u32 s40, s40, s42
s_add_u32 s40, s40, {SIDE}
v_lshrrev_b32 v4, 5, v1
v_lshlrev_b32 v4, 11, v4
v_and_b32 v5, 31, v1
v_lshl_add_u32 v4, v5, 4, v4
v_add_u32 v4, s40, v4
v_add_u32 v5, 4096, v4
global_store_dwordx4 v4, v[8:11], {WS} sc1
global_store_dwordx4 v5, v[8:11], {WS} sc1
s_mul_i32 s40, s47, 3072
s_lshl_b32 s42, s41, 8
s_add_u32 s40, s40, s42
s_add_u32 s40, s40, {H5}
v_min_u32 v4, 2, v3
v_lshlrev_b32 v4, 10, v4
v_lshl_add_u32 v4, v2, 4, v4
v_add_u32 v4, s40, v4
global_store_dwordx4 v4, v[8:11], {WS} sc1''')
    a('s_branch LA_b1')
    a.label('LA_not7')
    a.wave_is('eq', 6, 'LA_b1')
    code_warm(a)
    if P['tlb']:
        a(f'''s_mov_b32 s50, 196608
v_mul_lo_u32 v4, v1, s50
global_load_dword v14, v4, {CKV} nt
v_lshlrev_b32 v4, 17, v1
global_load_dword v14, v4, {WS} offset:64 nt''')
    a.label('LA_b1')
    a(f'''v_lshlrev_b32 v4, 2, v1
s_lshl_b32 s40, s38, 13
s_lshl_b32 s42, s39, 7
s_add_u32 s40, s40, s42
s_add_u32 s40, s40, {H1}
v_lshrrev_b32 v5, 3, v1
v_lshlrev_b32 v5, 10, v5
v_and_b32 v6, 7, v1
v_lshl_add_u32 v5, v6, 4, v5
v_add_u32 v5, s40, v5
v_mov_b32 v9, {TAG}
v_mov_b32 v11, {TAG}''')
    a('s_cmp_lt_u32 s44, 80\ns_cbranch_scc0 LA_u80')
    a.bar()
    a.wave_is('eq', 0, 'LA_uk0')
    for w in range(5): a(f'ds_read2st64_b32 {vr(16+2*w,2)}, v4 offset0:{2*w} offset1:{2*w+1}')
    a(f'''s_waitcnt lgkmcnt(0)
v_add_f32 v16, v16, v18
v_add_f32 v17, v17, v19
v_add_f32 v20, v20, v22
v_add_f32 v21, v21, v23
v_add_f32 v16, v16, v20
v_add_f32 v17, v17, v21
v_add_f32 v8, v16, v24
v_add_f32 v10, v17, v25
global_store_dwordx4 v5, v[8:11], {WS} sc1''')
    a.stamp('h1pub')
    a.label('LA_uk0')
    a('s_barrier\ns_branch LA_uk')
    a.label('LA_u80')
    if P['sl_a80']: a(f's_sleep {P["sl_a80"]}')
    a.label('LA_uk')
    a.wave_is('lt', 6, 'LA_nouk')
    load_uk(a, WUK, lo=U1)
    a.label('LA_nouk')
    a.wave_is('eq', 7, 'LA_nordy')
    a.ready_publish()
    a.label('LA_nordy')
    a(f'''s_mul_i32 s40, s47, 15360
s_mul_i32 s42, s3, 192
s_add_u32 s40, s40, s42
s_add_u32 s40, s40, {H1B}
v_min_u32 v5, 11, v2
v_mul_u32_u24 v4, 1536, v3
v_lshl_add_u32 v4, v5, 4, v4
v_add_u32 v4, s40, v4
v_add_u32 v7, 6144, v4
v_add_u32 v13, 12288, v4
s_mul_i32 s40, s3, 48
v_and_b32 v8, 1, v3
v_lshl_add_u32 v5, v5, 1, v8
v_lshl_add_u32 v5, v5, 1, s40      ; (24w+2dp+(g&1))*2
v_lshlrev_b32 v40, 5, v2
v_lshlrev_b32 v41, 4, v2
v_lshlrev_b32 v42, 1, v5
s_mul_i32 s40, s41, 6
s_add_u32 s40, s40, s3
s_lshl_b32 s40, s40, 11
s_lshr_b32 s42, s47, 4
s_lshl_b32 s42, s42, 10
s_add_u32 s40, s40, s42
s_and_b32 s42, s47, 15
s_lshl_b32 s42, s42, 6
s_add_u32 s40, s40, s42
s_add_u32 s40, s40, {H2}
v_lshl_add_u32 v6, v3, 4, v2
v_add_u32 v6, s40, v6
s_waitcnt vmcnt(0)''')
    a.get_tag()
    a(f'v_mov_b32 v24, 0\nv_mov_b32 v25, {TAG}\nv_mov_b32 v26, 0\nv_mov_b32 v27, {TAG}')
    a.stamp('uk')
    def U(j, k): n = j*6 + k; return 64 + 2*n if n < 32 else 176 + 2*(n - 32)
    def unp():
        a.wave_is('lt', 6, 'LA_nounp')
        for j in range(8):
            for k in range(6):
                src = 128 + 4*j + k if k < 4 else 160 + 2*j + (k - 4)
                a(f'v_lshlrev_b32 v{U(j,k)}, 16, v{src}\nv_and_b32 v{U(j,k)+1}, 0xffff0000, v{src}')
        a.label('LA_nounp')
    if P['probe_h1b']: a.probe(7, 8, off=4, sleep=P['sl_pr'], post=P['post_h1b'], tag=True, mask=0x0001000100010001)
    def ld():
        a(f'global_load_dwordx4 v[16:19], v4, {WS} sc1\nglobal_load_dwordx4 v[20:23], v7, {WS} sc1')
        a.lanes_lt(32)
        a(f'global_load_dwordx4 v[24:27], v13, {WS} sc1')
        a.full()
    a.poll(ld, lambda: a.chk_tag(range(17, 28, 2), 8), sleep=P['sl_h1b'], mid=unp)
    a.stamp('h1b')
    a('s_setprio 3')
    a(f'''v_add_f32 v16, v16, v20
v_add_f32 v18, v18, v22
v_add_f32 v16, v16, v24
v_add_f32 v18, v18, v26
v_permlane16_swap_b32 v16, v18
v_add_f32 v16, v16, v18
v_mov_b32 v18, v16
v_permlane32_swap_b32 v16, v18
v_add_f32 v16, v16, v18
v_cvt_pk_bf16_f32 v16, v16, v16
v_and_b32 v17, 0xffff0000, v16
ds_write_b32 v42, v17 offset:{LQF}
ds_write_b16 v5, v16 offset:{LQ}''')
    a.bar()
    a.wave_is('lt', 6, 'LA_nos3')
    a(f'ds_read_b128 v[44:47], v40 offset:{LQF}\nds_read_b128 v[48:51], v40 offset:{LQF+16}\nds_read_b128 v[52:55], v41 offset:{LQF+512}')
    for k in range(6):
        if k in (0, 2, 4): a(f's_waitcnt lgkmcnt({2 - k//2})')
        for j in range(8):
            if k == 0: a(f'v_pk_mul_f32 {vr(208+2*j,2)}, {vr(U(j,k),2)}, {vr(44+2*k,2)}')
            else: a(f'v_pk_fma_f32 {vr(208+2*j,2)}, {vr(U(j,k),2)}, {vr(44+2*k,2)}, {vr(208+2*j,2)}')
    for j in range(8): a(f'v_add_f32 v{24+j}, v{208+2*j}, v{209+2*j}')
    for i in range(4): a(f'v_add_f32_dpp v{32+i}, v{24+i}, v{24+i} row_ror:8 row_mask:0xf bank_mask:0x3')
    for i in range(4): a(f'v_add_f32_dpp v{32+i}, v{28+i}, v{28+i} row_ror:8 row_mask:0xf bank_mask:0xc')
    for i in range(2): a(f'v_add_f32_dpp v{36+i}, v{32+i}, v{32+i} row_shl:4 row_mask:0xf bank_mask:0x5')
    for i in range(2): a(f'v_add_f32_dpp v{36+i}, v{34+i}, v{34+i} row_shr:4 row_mask:0xf bank_mask:0xa')
    for qp in ('[2,3,0,1]', '[1,0,3,2]'):
        for i in range(2): a(f'v_add_f32_dpp v{36+i}, v{36+i}, v{36+i} quad_perm:{qp} row_mask:0xf bank_mask:0xf')
    a('v_cvt_pk_bf16_f32 v36, v36, v37')
    a.san([36])
    a.exec_mask(0x1111111111111111)
    a(f'global_store_dword v6, v36, {WS} sc1')
    a.full()
    a.stamp('h2pub')
    a('s_setprio 0')
    a('s_barrier')
    perm12(a, 64)
    if P['sl_uv']: a(f's_sleep {P["sl_uv"]}')
    load_uk(a, WUV)
    a('s_waitcnt vmcnt(0)')
    perm12(a, 176)
    a.stamp('wuv')
    a('s_branch LA_s3d')
    a.label('LA_nos3')
    a('s_setprio 0\ns_barrier')
    a.label('LA_s3d')
    a.wave_is('eq', 7, 'LA_noh3')
    a(f'''s_lshl_b32 s40, s47, 11
s_add_u32 s40, s40, {H3}
v_lshl_add_u32 v4, v1, 4, s40
s_and_b32 s42, s44, 15
s_lshl_b32 s42, s42, 7
s_add_u32 s42, s42, {DB3}
v_lshl_add_u32 v5, v1, 11, s42
s_mov_b32 s48, {f2u(-1/64):#x}
v_mov_b32 v24, {NEGINF:#x}''')
    if P['probe_h3']: a.probe(5, 8, off=4, sleep=P['sl_pr3'], post=P['post_h3'], tag=True, mask=0xff)
    a.poll(lambda: a(f'global_load_dwordx4 v[28:31], v4, {WS} sc1\nglobal_load_dwordx4 v[32:35], v4, {WS} offset:1024 sc1'),
           lambda: a.chk_tag(range(29, 36, 2), 8), sleep=P['sl_h3'])
    a.stamp('h3')
    a('v_max_f32 v20, v28, v32\nv_and_b32 v17, 63, v30\nv_and_b32 v19, 63, v34\nv_mov_b32 v16, v28\nv_mov_b32 v18, v32')
    a.wave_red('v_max_f32', 20, 21)
    a(f'''v_and_b32 v21, 0x7f800000, v20
v_fma_f32 v20, v21, s48, v20
v_lshl_add_u32 v17, v1, 6, v17
v_lshl_add_u32 v19, v1, 6, v19
v_add_u32 v19, 4096, v19
v_cmp_ge_f32 s[50:51], v16, v20
v_cmp_ge_f32 s[52:53], v18, v20
v_lshlrev_b32 v4, 2, v1
v_mov_b32 v25, 999
v_add_u32 v26, 64, v1''')
    a.lanes_lt(4)
    a(f'ds_write2_b32 v4, v17, v25 offset0:{LEK//4 - 900} offset1:{LEK//4 - 896}' if False else f'ds_write_b32 v4, v17 offset:{LEK}\nds_write_b32 v4, v25 offset:{LEK+16}')
    a.full()
    a(f'''s_bcnt1_i32_b64 s49, s[50:51]
v_mbcnt_lo_u32_b32 v22, s50, 0
v_mbcnt_hi_u32_b32 v22, s51, v22
v_mov_b32 v23, s49
v_mbcnt_lo_u32_b32 v23, s52, v23
v_mbcnt_hi_u32_b32 v23, s53, v23
v_cmp_gt_u32 vcc, 4, v22
s_and_b64 s[50:51], s[50:51], vcc
v_cmp_gt_u32 vcc, 4, v23
s_and_b64 s[52:53], s[52:53], vcc
v_lshlrev_b32 v22, 2, v22
v_lshlrev_b32 v23, 2, v23
s_mov_b64 exec, s[50:51]
ds_write_b32 v22, v17 offset:{LEK}
ds_write_b32 v22, v1 offset:{LEK+16}
s_mov_b64 exec, s[52:53]
ds_write_b32 v23, v19 offset:{LEK}
ds_write_b32 v23, v26 offset:{LEK+16}
s_mov_b64 exec, -1''')
    a.label('LA_noh3')
    a(f'''v_and_b32 v4, 3, v2
v_lshlrev_b32 v4, 2, v4
s_mul_i32 s40, s41, 384
s_lshl_b32 s42, s3, 6
s_add_u32 s42, s40, s42
v_lshl_add_u32 v6, v3, 4, s42
v_and_b32 v7, 31, v1
v_lshl_add_u32 v7, v7, 1, s42
s_movk_i32 s55, 1536
v_mov_b32 v13, 0
ds_write_b64 v12, v[12:13] offset:{LFL}
ds_write_b32 v12, v12 offset:{LFL+8}
v_mov_b32 v8, {NEGINF:#x}
v_mov_b32 v9, 0
ds_write_b64 v12, v[8:9] offset:{LFW+112}
ds_write_b64 v12, v[8:9] offset:{LFW+120}''')
    a.bar()
    a.stamp('b3')
    a('s_setprio 3')
    a.wave_is('lt', 6, 'LA_noe')
    a(f'''ds_read_b32 v5, v4 offset:{LEK}
ds_read_b128 v[8:11], v12 offset:{LEK}
s_waitcnt lgkmcnt(1)
v_mad_u32_u24 v5, v5, s55, v6
global_load_dwordx4 v[224:227], v5, {CKV} {'nt' if P['e_nt'] else ''}
s_waitcnt lgkmcnt(0)''')
    for j in range(4): a(f'v_mad_u32_u24 v{8+j}, v{8+j}, s55, v7\nglobal_load_ushort v{232+j}, v{8+j}, {CKV} {"nt" if P["e_nt"] else ""}')
    a(f's_mul_i32 s40, s3, 3072\ns_add_u32 s40, s40, {LKP}\nv_lshl_add_u32 v4, v2, 4, s40\ns_waitcnt vmcnt(4)')
    a.stamp('erow')
    mfma12(a, 16, 224, 64)
    a.lanes_lt(16)
    for e in range(12): a(f'ds_write_b128 v4, {vr(16+4*e,4)} offset:{256*e}')
    a.full()
    a('s_branch LA_b4')
    a.label('LA_noe')
    a.wave_is('eq', 7, 'LA_g')
    a(f'''s_cmp_eq_u32 s41, 0
s_cbranch_scc0 LA_g
v_and_b32 v4, 3, v1
v_lshlrev_b32 v5, 2, v4
ds_read_b32 v8, v5 offset:{LEK+16}
s_lshl_b32 s40, s47, 7
s_add_u32 s40, s40, {ELIST}
v_lshl_add_u32 v4, v4, 3, s40
v_mov_b32 v9, {TAG}
s_mov_b64 exec, 15
s_waitcnt lgkmcnt(0)
global_store_dwordx2 v4, v[8:9], {WS} sc1
s_mov_b64 exec, -1''')
    a.label('LA_g')
    a(f'''s_setprio 1
s_and_b32 s42, s3, 1
s_mul_i32 s40, s42, 768
s_add_u32 s40, s40, {LRP}
v_lshl_add_u32 v248, v2, 5, s40
v_lshl_add_u32 v249, v2, 4, s40
s_lshl_b32 s40, s42, 8
s_add_u32 s40, s40, {LWP}
v_and_b32 v250, 1, v2
v_lshlrev_b32 v250, 7, v250
v_lshl_add_u32 v250, v3, 4, v250
v_add_u32 v250, s40, v250
v_lshl_add_u32 v251, v1, 1, s40
s_lshl_b32 s43, s42, 6
v_add_u32 v7, s43, v1
s_lshl_b32 s40, s44, 11
s_add_u32 s40, s40, {AUX}
v_lshl_add_u32 v6, v7, 4, s40
ds_read_b128 v[24:27], v12 offset:{LEK+16}
s_lshl_b32 s40, s44, 7
s_add_u32 s40, s40, s43
v_lshl_add_u32 v4, v3, 3, s40
v_mul_u32_u24 v4, 384, v4
v_add_u32 v4, {H4}, v4
v_lshl_add_u32 v5, v2, 3, v4
v_lshl_add_u32 v4, v2, 4, v4
v_add_u32 v10, {32*384}, v4
v_add_u32 v11, {32*384}, v5
s_mov_b64 s[52:53], 0
s_mov_b32 s48, 0x01010101
v_mov_b32 v22, {NEGINF:#x}
s_lshl_b32 s40, s42, 3
v_mov_b32 v23, s40
s_waitcnt lgkmcnt(0)
v_cmp_eq_u32 s[54:55], v24, v7''')
    for j in range(1, 4): a(f'v_cmp_eq_u32 vcc, v{24+j}, v7\ns_or_b64 s[54:55], s[54:55], vcc')
    a(f's_sleep {P["pre_aux"]}')
    a.label('LA_g0')
    a(f'''global_load_dwordx4 v[28:31], v6, {WS} sc1
s_waitcnt vmcnt(0)
v_cmp_eq_u32 vcc, {TAG}, v29
v_cmp_eq_u32 s[50:51], {TAG}, v31
s_and_b64 s[50:51], s[50:51], vcc
s_andn2_b64 s[42:43], s[50:51], s[52:53]
s_mov_b64 s[52:53], s[50:51]
s_cbranch_scc0 LA_gn''')
    for b in range(2):
        for j in range(8):
            a(f'''s_lshr_b32 s40, s{42+b}, {j}
s_and_b32 s40, s40, s48
s_cbranch_scc0 LA_gs{b}_{j}
s_and_b32 s38, s40, 0x101
s_lshr_b32 s39, s40, 16
s_mul_i32 s38, s38, 0x101
s_mul_i32 s39, s39, 0x101
s_and_b32 s38, s38, 0x10001
s_and_b32 s39, s39, 0x10001
s_mul_i32 exec_lo, s38, 0xffff
s_mul_i32 exec_hi, s39, 0xffff
global_load_dwordx4 {vr(64+48*b+4*j,4)}, v{4+6*b}, {WS} offset:{384*j} sc1
global_load_dwordx2 {vr(96+48*b+2*j,2)}, v{5+6*b}, {WS} offset:{384*j+256} sc1
LA_gs{b}_{j}:''')
    a(f'''s_mov_b64 exec, -1
s_cmp_eq_u64 s[52:53], -1
s_cbranch_scc1 LA_g1
LA_gn:
s_add_u32 {SPIN}, {SPIN}, 1
s_cmp_gt_u32 {SPIN}, {SPINMAX}
s_cbranch_scc1 LA_g1
s_sleep {P['sl_aux']}
s_branch LA_g0
LA_g1:''')
    a.stamp('aux')
    a('s_setprio 3\nv_cndmask_b32 v16, v28, v22, s[54:55]\nv_mov_b32 v20, v16')
    a.wave_red('v_max_f32', 20, 21)
    a(f'''v_sub_f32 v16, v16, v20
v_mul_f32 v16, s56, v16
v_exp_f32 v16, v16
v_cvt_pk_bf16_f32 v8, v16, v16
v_mul_f32 v21, v16, v30
ds_write_b16 v251, v8
v_and_b32 v9, 0xffff0000, v8
v_sub_f32 v9, v16, v9
v_cvt_pk_bf16_f32 v9, v9, v9
ds_write_b16 v251, v9 offset:128
s_waitcnt lgkmcnt(0)
ds_read_b128 v[224:227], v250
ds_read_b128 v[228:231], v250 offset:64''')
    a.wave_red('v_add_f32', 21, 22)
    a(f'v_mov_b32 v8, 1\nds_write_b64 v23, v[20:21] offset:{LFW+96}\ns_mov_b64 exec, 1\nds_add_u32 v12, v8 offset:{LFL+4}\ns_mov_b64 exec, -1\ns_waitcnt vmcnt(0) lgkmcnt(0)')
    a.stamp('gath')
    for b in range(2):
        for e in range(12):
            nreg, src, ee = (4, 64 + 48*b, e) if e < 8 else (2, 96 + 48*b, e - 8)
            f = 16 + 4*(e % 6) + 24*b
            for k in range(4):
                a(f'v_perm_b32 v{f+k}, v{src+(2*k+1)*nreg+(ee>>1)}, v{src+2*k*nreg+(ee>>1)}, {PHI if ee & 1 else PLO}')
            a(f'v_mfma_f32_16x16x32_bf16 {vr(160+4*e,4)}, {vr(224+4*b,4)}, {vr(f,4)}, {"0" if b == 0 else vr(160+4*e,4)}')
    out12(a, 160, 16, 248)
    a('s_branch LA_b6')
    def fl_wait(i, lab, n=1): a.lds_wait(12, n, off=LFL + 4*i)
    def fl_set(i): a(f'v_mov_b32 v8, 1\nds_write_b32 v12, v8 offset:{LFL + 4*i}')
    a.label('LA_b4')
    a(f'v_mov_b32 v8, 1\ns_mov_b64 exec, 1\nds_add_u32 v12, v8 offset:{LFL}\ns_mov_b64 exec, -1')
    a.wave_is('lt', 3, 'LA_nopub')
    a(f'v_lshlrev_b32 v6, 4, v0\nv_add_u32 v7, {LKP}, v6\ns_mul_i32 s40, s44, 3072\ns_add_u32 s40, s40, {H4S}\nv_add_u32 v6, s40, v6')
    fl_wait(0, 'LA_f0', 6)
    a.stamp('b4')
    for w in range(6): a(f'ds_read_b128 {vr(16+4*w,4)}, v7 offset:{3072*w}')
    a('s_waitcnt lgkmcnt(0)')
    tree(a, range(16, 40, 4), n=4)
    a(f'global_store_dwordx4 v6, v[16:19], {WS} sc1')
    a.stamp('kpub')
    a('s_branch LA_b6')
    a.label('LA_nopub')
    a.label('LA_w5')
    a.wave_is('eq', 5, 'LA_w6')
    a(f'''s_mul_i32 s40, s47, 12288
s_add_u32 s40, s40, {H4S}
v_lshl_add_u32 v4, v1, 4, s40
v_add_u32 v5, 3072, v4
v_add_u32 v6, 6144, v4
v_add_u32 v7, 9216, v4
v_lshl_add_u32 v8, v2, 3, v3
v_lshlrev_b32 v8, 1, v8
v_lshl_add_u32 v9, v2, 2, v3
v_lshlrev_b32 v9, 1, v9
v_lshlrev_b32 v10, 2, v3
ds_read_u16 v64, v8 offset:{LQ}
ds_read_u16 v65, v8 offset:{LQ+8}
ds_read_u16 v66, v9 offset:{LQ+256}
ds_read_b32 v67, v10 offset:{LEK+16}
s_sleep {P['pre_h4s']}''')
    def ld():
        for qq in range(4):
            for k in range(3): a(f'global_load_dwordx4 {vr(16+(qq*3+k)*4,4)}, v{4+qq}, {WS} offset:{1024*k} sc1')
    a.poll(ld, lambda: a.chk_sent(range(16, 64), 9), sleep=P['sl_h4s'])
    a.stamp('h4s')
    a('s_waitcnt lgkmcnt(0)\nv_cmp_gt_u32 s[52:53], 0x80, v67' if False else 's_waitcnt lgkmcnt(0)\ns_movk_i32 s40, 128\nv_cmp_gt_u32 s[52:53], s40, v67')
    for k in range(3): a(f'v_lshlrev_b32 v{64+k}, 16, v{64+k}')
    tree(a, (16, 28, 40, 52), n=12)
    for i in range(12): a.rnd(16 + i, 16 + i)
    for j in range(4):
        a(f'v_mul_f32 v{68+j}, v{16+j}, v64\nv_fmac_f32 v{68+j}, v{20+j}, v65\nv_fmac_f32 v{68+j}, v{24+j}, v66')
    a.row_red('v_add_f32', [68, 69, 70, 71])
    a.xrow_tr4(68)
    a.rnd(68, 68)
    a('v_mul_f32 v68, s59, v68')
    a.rnd(68, 68)
    a(f'v_mov_b32 v21, {NEGINF:#x}\nv_cndmask_b32 v68, v21, v68, s[52:53]\nv_lshlrev_b32 v11, 3, v3')
    fl_wait(2, 'LA_f2')
    fl_wait(1, 'LA_f3', 2)
    a(f'''ds_read_b64 v[228:229], v11 offset:{LFW+64}
ds_read_b64 v[230:231], v11 offset:{LFW+96}
s_waitcnt lgkmcnt(0)
v_max3_f32 v69, v68, v228, v230''')
    a.xrow_red('v_max_f32', 69, 70)
    a(f'''v_sub_f32 v68, v68, v69
v_sub_f32 v228, v228, v69
v_sub_f32 v230, v230, v69
v_mul_f32 v68, s56, v68
v_mul_f32 v228, s56, v228
v_mul_f32 v230, s56, v230
v_exp_f32 v68, v68
v_exp_f32 v228, v228
v_exp_f32 v230, v230
v_fma_f32 v70, v228, v229, v68
v_fmac_f32 v70, v230, v231''')
    a.xrow_red('v_add_f32', 70, 71)
    a.recip(71, 70, 72)
    a.div(73, 68, 70, 71, 72)
    a.rnd(73, 73)
    a(f'''v_mul_f32 v74, v230, v71
v_mul_f32 v75, v228, v71
ds_write_b32 v10, v73 offset:{LFW}
ds_write_b32 v10, v75 offset:{LFW+16}
ds_write_b32 v10, v74 offset:{LFW+32}
s_branch LA_b6''')
    a.label('LA_w6')
    a.wave_is('eq', 4, 'LA_b6')
    a(f'''v_lshlrev_b32 v10, 2, v3
ds_read_b32 v11, v10 offset:{LEK+16}
s_lshl_b32 s40, s47, 13
s_lshl_b32 s42, s41, 9
s_add_u32 s40, s40, s42
s_add_u32 s40, s40, {SIDE}
v_lshl_add_u32 v6, v3, 11, s40
v_lshl_add_u32 v4, v2, 4, v6
v_lshl_add_u32 v5, v2, 3, v6
v_mul_u32_u24 v9, 384, v3
v_lshl_add_u32 v7, v2, 4, v9
v_lshl_add_u32 v9, v2, 3, v9
v_lshlrev_b32 v10, 3, v3
v_mov_b32 v24, {NEGINF:#x}
v_mov_b32 v26, 0
s_movk_i32 s40, 128
s_waitcnt lgkmcnt(0)
v_cmp_gt_u32 s[52:53], s40, v11''')
    for i in range(6): a(f'v_mov_b32 v{16+i}, 0')
    a(f's_sleep {P["pre_side"]}\ns_mov_b64 exec, s[52:53]')
    def ck():
        a.chk_sent(range(16, 22), 8)
        a(f'v_cmp_ne_u32 s[50:51], {TAG}, v25\ns_or_b64 vcc, vcc, s[50:51]\nv_cmp_ne_u32 s[50:51], {TAG}, v27\ns_or_b64 vcc, vcc, s[50:51]')
    a.poll(lambda: a(f'global_load_dwordx4 v[16:19], v4, {WS} sc1\nglobal_load_dwordx2 v[20:21], v5, {WS} offset:256 sc1\nglobal_load_dwordx4 v[24:27], v6, {WS} offset:384 sc1'),
           ck, sleep=P['sl_side'])
    a.full()
    a.stamp('side')
    a(f'v_mov_b32 v25, v26\nds_write_b128 v7, v[16:19] offset:{LSR}\nds_write_b64 v9, v[20:21] offset:{LSR+256}\nds_write_b64 v10, v[24:25] offset:{LFW+64}')
    fl_set(2)
    a.label('LA_b6')
    a(f'''s_lshl_b32 s40, s3, 7
v_and_b32 v4, 31, v1
v_lshl_add_u32 v5, v4, 1, s40
s_lshl_b32 s42, s3, 6
v_lshl_add_u32 v7, v4, 1, s42
v_lshl_add_u32 v4, v4, 2, s40
v_mov_b32 v20, 0
v_mov_b32 v21, 0
v_mov_b32 v22, 0
v_mov_b32 v23, 0''')
    frag2_addr(a, 6, 's40')
    out12_prep(a, 248, LVP)
    a('s_waitcnt vmcnt(0)')
    for j in range(4): a(f'v_lshlrev_b32 v{232+j}, 16, v{232+j}')
    a.bar()
    a.stamp('b6')
    a('s_setprio 3')
    a.wave_is('lt', 6, 'LA_nov')
    for w in range(2): a(f'ds_read_b32 v{16+w}, v4 offset:{LRP + 768*w}')
    for j in range(4): a(f'ds_read_u16_d16_hi v{20+j}, v7 offset:{LSR + 384*j}')
    a(f'ds_read_b128 v[24:27], v12 offset:{LFW}\nds_read_b128 v[28:31], v12 offset:{LFW+16}\nds_read_b64 v[32:33], v12 offset:{LFW+32}')
    a(f'''s_waitcnt lgkmcnt(0)
v_mul_f32 v16, v16, v32
v_mul_f32 v24, v24, v232
v_mul_f32 v28, v28, v20
v_fmac_f32 v16, v17, v33
v_fmac_f32 v24, v25, v233
v_fmac_f32 v28, v29, v21
v_fmac_f32 v24, v26, v234
v_fmac_f32 v28, v30, v22
v_fmac_f32 v24, v27, v235
v_fmac_f32 v28, v31, v23
v_add_f32 v24, v24, v28
v_add_f32 v16, v16, v24
v_cvt_pk_bf16_f32 v17, v16, v16
ds_write_b16 v5, v17 offset:{LCC}
v_and_b32 v18, 0xffff0000, v17
v_sub_f32 v18, v16, v18
v_cvt_pk_bf16_f32 v18, v18, v18
ds_write_b16 v5, v18 offset:{LCC+64}
s_waitcnt lgkmcnt(0)
ds_read_b128 v[224:227], v6 offset:{LCC}
s_waitcnt lgkmcnt(0)''')
    mfma12(a, 128, 224, 176)
    out12(a, 128, 16, 248)
    a.label('LA_nov')
    a(f'''v_lshlrev_b32 v4, 2, v0
s_mul_i32 s40, s47, 3
s_add_u32 s40, s40, s3
s_lshl_b32 s40, s40, 10
s_lshl_b32 s42, s41, 8
s_add_u32 s40, s40, s42
s_add_u32 s40, s40, {H5}
v_lshl_add_u32 v5, v1, 2, s40''')
    a.bar()
    a.wave_is('lt', 3, 'Lfin')
    for w in range(6): a(f'ds_read_b32 v{16+w}, v4 offset:{LVP + 768*w}')
    a('s_waitcnt lgkmcnt(0)')
    tree(a, range(16, 22))
    a(f'global_store_dword v5, v16, {WS} sc1')
    a.stamp('h5pub')
    a(f'''s_add_u32 s40, s44, s3
s_cmp_eq_u32 s40, 0
s_cbranch_scc0 Lfin
v_mov_b32 v5, {TAG}
global_store_dword v12, v5, {WS} sc1''')

DEFAULTS = dict(code_last=0x1000, stamps=False, warm_loads=2, sl_pr=1, sl_pr3=4, sl_h1=3, sl_h1b=2, sl_h2=4, sl_h3=2, sl_aux=2, sl_h4s=2, sl_h5=2, sl_h6=3, sl_h7=2, sl_x2=4, sl_lw=1, lw_cnt=4, dma1=3, sl_top2=4, pre_h7=12, early_late=1, sl_pr2=1, sl_dma2=0, m_h2=0, m_h6=0, k_h2=255, pre_aux=8, swap=0, sl_a80=30, pre_h1=0, tlb=0, e_nt=0, pv_nt=0, uk1=0, ew_cnt=4, sl_el=2, pre_side=12, sl_side=2, sl_uv=20, pre_h4s=16, sl_top=6,
    probe_h1b=0, post_h1b=1, probe_h2=1, post_h2=0, probe_h3=1, post_h3=0, probe_aux=0, post_aux=2, probe_h5=0, post_h5=1, probe_h6=0, post_h6=1, probe_h7=1, post_h7=0)

def generate(**kw):
    P = dict(DEFAULTS); P.update(kw)
    a = G(P)
    a(f'''s_cmp_ge_u32 s2, 256
s_cbranch_scc1 Lend
s_load_dwordx16 s[4:19], s[0:1], 0
{'s_xor_b32 s2, s2, 128' if P['swap'] else 's_nop 0'}
s_load_dwordx8 s[20:27], s[0:1], 64
s_load_dwordx4 s[28:31], s[0:1], 96
s_getpc_b64 s[36:37]
Lpc:
v_lshrrev_b32 v4, 6, v0
v_and_b32 v1, 63, v0
v_readfirstlane_b32 s3, v4
v_and_b32 v2, 15, v0
v_lshrrev_b32 v3, 4, v1''')
    if P['stamps']:
        for i in range(21): a(f's_mov_b64 s[{60+2*i}:{61+2*i}], 0')
    if P.get('dbgtime') or P.get('padto'): a('s_memrealtime s[60:61]')
    a('s_cmp_lt_u32 s2, 128\ns_cbranch_scc1 LB')
    role_A(a)
    namesA = a.stnames; a.stnames = []
    a.label('LB')
    role_B(a)
    namesB = a.stnames; a.stnames = namesA
    role_A2(a)
    a('s_branch Lfin')
    namesA = a.stnames; a.stnames = namesB
    role_B2(a)
    namesB = a.stnames
    a.label('Lfin')
    if P['stamps']:
        a(f'''s_waitcnt lgkmcnt(0)
s_lshl_b32 s40, s2, 3
s_add_u32 s40, s40, s3
s_lshl_b32 s40, s40, 7
s_add_u32 s40, s40, {STAMP}
v_mov_b32 v4, s40''')
        for i in range(21): a(f'v_mov_b32 v5, s{60+2*i}\nglobal_store_dword v4, v5, {WS} offset:{4*i}')
    if P.get('dbgtime'):
        a(f'''s_memrealtime s[62:63]
s_cmp_eq_u32 s3, 7
s_cbranch_scc0 Lend
s_and_b32 s40, s2, 31
s_cmp_eq_u32 s40, 31
s_cbranch_scc0 Lend
s_waitcnt lgkmcnt(0)
s_lshr_b32 s40, s2, 5
s_lshl_b32 s40, s40, 3
v_mov_b32 v4, s40
v_mov_b32 v6, s60
v_mov_b32 v7, s62
s_mov_b64 exec, 1
global_store_dwordx2 v4, v[6:7], s[28:29]''')
    if P.get('padto'):
        a(f'''s_add_u32 s40, s2, s3
s_cmp_eq_u32 s40, 0
s_cbranch_scc0 Lend
Lpad:
s_memrealtime s[62:63]
s_waitcnt lgkmcnt(0)
s_sub_u32 s40, s62, s60
s_cmp_lt_u32 s40, {P['padto']}
s_cbranch_scc1 Lpad''')
    a.label('Lend')
    a('s_endpgm')
    a.raw('Lcode_end:')
    hdr = open(f'cdna_kernels/{NAME}.s.ref').read().split('; Override launch')[0]
    lds = MISC + 8192 + 256
    txt = hdr + f'''; @launch grid=(256,1,1) block=(512,1,1) lds={lds}
.amdgcn_target "amdgcn-amd-amdhsa--gfx950"
.text
.globl {NAME}_kernel
.p2align 8
.type {NAME}_kernel,@function
.set CODE_LAST, {P['code_last']:#x}
{NAME}_kernel:
''' + a.text() + f'''.section .rodata,"a"
.p2align 6
.amdhsa_kernel {NAME}_kernel
  .amdhsa_next_free_vgpr 256
  .amdhsa_next_free_sgpr 102
  .amdhsa_accum_offset 256
  .amdhsa_group_segment_fixed_size 0
  .amdhsa_kernarg_size 112
  .amdhsa_user_sgpr_count 2
  .amdhsa_user_sgpr_kernarg_segment_ptr 1
  .amdhsa_system_sgpr_workgroup_id_x 1
  .amdhsa_float_denorm_mode_32 3
.end_amdhsa_kernel
'''
    return txt, namesB, namesA

if __name__ == '__main__':
    import json
    out = sys.argv[1]
    kw = {}
    for x in sys.argv[2:]:
        k, v = x.split('='); kw[k] = int(v)
    import subprocess, re
    txt, nb, na = generate(**kw)
    open('_g.s', 'w').write(txt)
    subprocess.check_call(['clang', '-x', 'assembler', '-target', 'amdgcn-amd-amdhsa', '-mcpu=gfx950', '-c', '_g.s', '-o', '_g.o'])
    h = subprocess.check_output(['llvm-objdump', '-h', '_g.o'], text=True)
    size = int(re.search(r'\.text\s+([0-9a-f]+)', h).group(1), 16)
    kw['code_last'] = size - 0x30 - 4
    assert size <= 32768 * kw.get('warm_loads', 1)
    txt, nb, na = generate(**kw)
    print('code bytes', size)
    open(out, 'w').write(txt)
    json.dump({'B': nb, 'A': na}, open(out + '.names.json', 'w'))
```

```python
import sys, struct
sys.path.insert(0, 'gen')
from asmlib import *
NAME = 'adaLN_cond__compressed_kv_cla__dense_activation_relu__decode'

EPOCH, READY, H1, H1B, H2, H3, AUX, H4S, H5 = 0x0, 0x1000, 0x2000, 0x120000, 0x58000, 0x68000, 0x1A0000, 0x88000, 0xE8000
H6, MODR, H7F, H7X, H4, STAMP = 0x100000, 0x108000, 0x110000, 0x111000, 0x200000, 0x4000000
H7Y = 0x110000
H4G, HDR, MB = 0x880000, 0x1FA000, 0x78000
DB3, DB4, ELIST, SIDE = 0x1E0000, 0x1E4000, 0x1F8000, 0x18000
X, CKV, WQ, WUK, WUV, WO, W1, W2, CC, WMOD, OUT, WS = [f's[{i}:{i+1}]' for i in (4, 6, 8, 10, 12, 14, 18, 20, 22, 24, 26, 30)]
TAG, SPIN, PLO, PHI = 's32', 's33', 's34', 's35'
SPINMAX = 200000
def f2u(x): return struct.unpack('<I', struct.pack('<f', x))[0]
L2E = f2u(1.4426950408889634)
L2E_LO = f2u(1.4426950408889634 - struct.unpack('<f', struct.pack('<f', 1.4426950408889634))[0])
LN2 = f2u(0.6931471805599453)
SCALE = f2u(192 ** -0.5)
NEGINF = 0xff800000

class G(Asm):
    def __init__(self, P):
        super().__init__(); self.P = P; self.nst = 0; self.stnames = []
    def stamp(self, name):
        if not self.P.get('stamps'): return
        if name.startswith('x') != (self.P['stamps'] == 2) and name not in ('start', 'h1pub', 'out', 'wq', 'h1', 'qpub', 'h1b', 'h2pub', 'h5', 'h6pub', 'h6', 'h7pub', 'gath', 'b6', 'h5pub', 'h2', 'qk', 'h3pub', 'pvst', 'auxpub'): return
        i = self.stnames.index(name) if name in self.stnames else None
        if i is None:
            self.stnames.append(name); i = len(self.stnames) - 1
        assert i < 21
        self(f's_memrealtime s[{60+2*i}:{61+2*i}]')
    def rnd(self, d, s):
        self(f'v_cvt_pk_bf16_f32 v{d}, v{s}, v{s}\nv_and_b32 v{d}, 0xffff0000, v{d}')
    def wave_is(self, cond, n, lab):
        self(f's_cmp_{cond}_u32 s3, {n}\ns_cbranch_scc0 {lab}')
    def row_red(self, op, regs):
        for k in (8, 4, 2, 1):
            for r in regs: self(f'{op}_dpp v{r}, v{r}, v{r} row_ror:{k} row_mask:0xf bank_mask:0xf')
    def xrow_red(self, op, r, t):
        self(f'v_mov_b32 v{t}, v{r}\nv_permlane16_swap_b32 v{r}, v{t}\n{op} v{r}, v{r}, v{t}')
        self(f'v_mov_b32 v{t}, v{r}\nv_permlane32_swap_b32 v{r}, v{t}\n{op} v{r}, v{r}, v{t}')
    def wave_red(self, op, r, t):
        self.row_red(op, [r]); self.xrow_red(op, r, t)
    def xrow_tr4(self, r):
        self(f'''v_permlane16_swap_b32 v{r}, v{r+1}
v_permlane16_swap_b32 v{r+2}, v{r+3}
v_add_f32 v{r}, v{r}, v{r+1}
v_add_f32 v{r+2}, v{r+2}, v{r+3}
v_permlane32_swap_b32 v{r}, v{r+2}
v_add_f32 v{r}, v{r}, v{r+2}''')
    def recip(self, d, y, t):
        self(f'v_rcp_f32 v{d}, v{y}\nv_fma_f32 v{t}, -v{y}, v{d}, 1.0\nv_fma_f32 v{d}, v{t}, v{d}, v{d}')
    def div(self, d, x, y, rinv, t):
        self(f'v_mul_f32 v{d}, v{x}, v{rinv}\nv_fma_f32 v{t}, -v{y}, v{d}, v{x}\nv_fma_f32 v{d}, v{t}, v{rinv}, v{d}')
    def silu(self, d, x, t):
        self(f'''v_mul_f32 v{t}, s56, v{x}
v_fma_f32 v{t+1}, v{x}, s56, -v{t}
v_fma_f32 v{t+1}, v{x}, s57, v{t+1}
v_exp_f32 v{t}, -v{t}
v_mul_f32 v{t+1}, s58, v{t+1}
v_fma_f32 v{t}, -v{t}, v{t+1}, v{t}
v_min_f32 v{t}, 0x7f000000, v{t}
v_add_f32 v{t}, 1.0, v{t}''')
        self.recip(t + 1, t, t + 2)
        self.div(t + 3, x, t, t + 1, t + 2)
        self.rnd(d, t + 3)
    def perm_block(self, dst, src, nreg=4, rows=8):
        for e in range(2 * nreg):
            for k in range(rows // 2):
                self(f'v_perm_b32 v{dst + e * (rows // 2) + k}, v{src + (2*k+1) * nreg + (e >> 1)}, v{src + 2*k*nreg + (e >> 1)}, {PHI if e & 1 else PLO}')
    def poll(self, loads, check, sleep=2, pre=None, mid=None):
        top = self.newlabel('Lp'); done = self.newlabel('Ld'); chk = self.newlabel('Lc')
        if pre: self(f's_sleep {pre}')
        if mid:
            loads(); mid(); self(f's_branch {chk}')
        self.label(top)
        loads()
        self.label(chk)
        self('s_waitcnt vmcnt(0)')
        check()
        self(f'''s_cbranch_vccz {done}
s_add_u32 {SPIN}, {SPIN}, 1
s_cmp_gt_u32 {SPIN}, {SPINMAX}
s_cbranch_scc1 {done}
s_sleep {sleep}
s_branch {top}''')
        self.label(done)
    def poll_masked(self, items, t, sleep=2, tag=False):
        top = self.newlabel('Lm'); done = self.newlabel('Lmd')
        for ld, regs in items: self(ld)
        self.label(top)
        self('s_waitcnt vmcnt(0)\ns_mov_b32 s49, 0')
        for ld, regs in items:
            skip = self.newlabel('Lms')
            if tag: self.chk_tag(regs, t)
            else: self.chk_sent(regs, t)
            self(f's_cbranch_vccz {skip}\ns_mov_b64 exec, vcc\n{ld}\ns_mov_b64 exec, -1\ns_mov_b32 s49, 1')
            self.label(skip)
        self(f'''s_cmp_eq_u32 s49, 0
s_cbranch_scc1 {done}
s_add_u32 {SPIN}, {SPIN}, 1
s_cmp_gt_u32 {SPIN}, {SPINMAX}
s_cbranch_scc1 {done}
s_sleep {sleep}
s_branch {top}''')
        self.label(done)
        self('s_waitcnt vmcnt(0)')
    def lds_wait(self, addr, n, off=0, sleep=1, extra=None, t=8):
        top = self.newlabel('Lw'); done = self.newlabel('Lwd')
        self.label(top)
        self(f'ds_read_b32 v{t}, v{addr} offset:{off}')
        if extra: self(extra)
        self(f'''s_waitcnt lgkmcnt(0)
v_cmp_gt_u32 vcc, {n}, v{t}
s_cbranch_vccz {done}
s_add_u32 {SPIN}, {SPIN}, 1
s_cmp_gt_u32 {SPIN}, {SPINMAX}
s_cbranch_scc1 {done}
s_sleep {sleep}
s_branch {top}''')
        self.label(done)
    def probe(self, va, t, off=0, sleep=1, post=None, tag=False, mask=1):
        self.exec_mask(mask)
        def ck():
            if tag: self(f'v_cmp_ne_u32 vcc, {TAG}, v{t}')
            else: self(f'v_cmp_eq_u32 vcc, -1, v{t}')
        self.poll(lambda: self(f'global_load_dword v{t}, v{va}, {WS} offset:{off} sc1'), ck, sleep=sleep)
        self.full()
        if post: self(f's_sleep {post}')
    def chk_sent(self, regs, t):
        regs = list(regs)
        if len(regs) == 1:
            self(f'v_cmp_eq_u32 vcc, -1, v{regs[0]}'); return
        if len(regs) == 2: self(f'v_max_u32 v{t}, v{regs[0]}, v{regs[1]}'); rest = []
        else: self(f'v_max3_u32 v{t}, v{regs[0]}, v{regs[1]}, v{regs[2]}'); rest = regs[3:]
        while rest:
            if len(rest) >= 2: self(f'v_max3_u32 v{t}, v{t}, v{rest[0]}, v{rest[1]}'); rest = rest[2:]
            else: self(f'v_max_u32 v{t}, v{t}, v{rest[0]}'); rest = []
        self(f'v_cmp_eq_u32 vcc, -1, v{t}')
    def chk_tag(self, regs, t):
        regs = list(regs)
        self(f'v_cmp_ne_u32 vcc, {TAG}, v{regs[0]}')
        for r in regs[1:]:
            self(f'v_cmp_ne_u32 s[50:51], {TAG}, v{r}\ns_or_b64 vcc, vcc, s[50:51]')
    def san(self, regs):
        for r in regs: self(f'v_min_u32 v{r}, -2, v{r}')
    def lanes_lt(self, n):
        assert n <= 64
        lo = (1 << min(n, 32)) - 1; hi = (1 << max(n - 32, 0)) - 1
        self(f's_mov_b32 exec_lo, {lo:#x}\ns_mov_b32 exec_hi, {hi:#x}')
    def exec_mask(self, m):
        self(f's_mov_b32 exec_lo, {m & 0xffffffff:#x}\ns_mov_b32 exec_hi, {m >> 32:#x}')
    def full(self): self('s_mov_b64 exec, -1')
    def bar(self): self('s_waitcnt lgkmcnt(0)\ns_barrier')
    def get_tag(self):
        self(f'''v_readfirstlane_b32 {TAG}, v15
s_mul_i32 {TAG}, {TAG}, 0x9E3779B1
s_add_u32 {TAG}, {TAG}, 0x7F4A7C15''')
    def ready_publish(self):
        self('s_getreg_b32 s41x, hwreg(HW_REG_XCC_ID, 0, 4)\ns_waitcnt vmcnt(0)'.replace('s41x', 's51'))
        self.get_tag()
        self(f'''s_lshl_b32 s40, s2, 4
s_add_u32 s40, s40, {READY}
v_mov_b32 v4, s40
v_mov_b32 v6, {TAG}
v_mov_b32 v7, s51''')
        self.lanes_lt(1)
        self(f'global_store_dwordx2 v4, v[6:7], {WS} sc1')
        self.full()
    def st_local(self, mism, *sts):
        far = self.newlabel('Lsf'); done = self.newlabel('Lsd')
        if self.P['local']:
            self(f's_cmp_eq_u64 {mism}, 0\ns_cbranch_scc0 {far}')
            for st in sts: self(st)
            self(f's_branch {done}')
            self.label(far)
        for st in sts: self(st + ' sc1')
        self.label(done)
    def ready_check(self, half, v=8):
        self(f'v_lshlrev_b32 v{v+2}, 4, v1\nv_add_u32 v{v+2}, {READY + 2048*half}, v{v+2}')
        def ld():
            for i in range(2): self(f'global_load_dword v{v+i}, v{v+2}, {WS} offset:{1024*i} sc1')
        self.poll(ld, lambda: self.chk_tag([v, v + 1], 0), sleep=4)
    def gemv2(self, D, A, F, first=True):
        for e in range(8):
            c = '0' if first else vr(D + 4*e, 4)
            self(f'v_mfma_f32_16x16x32_bf16 {vr(D+4*e,4)}, {vr(A,4)}, {vr(F+4*e,4)}, {c}')
    def pack2(self, o, D):
        for i in range(4):
            self(f'v_add_f32_dpp v{o+i}, v{D+4*i+1}, v{D+4*i} row_ror:8 row_mask:0xf bank_mask:0x3')
        for i in range(4):
            self(f'v_add_f32_dpp v{o+i}, v{D+4*(i+4)}, v{D+4*(i+4)+1} row_ror:8 row_mask:0xf bank_mask:0xc')
    def load_rows(self, dst, nreg, va, base, pitch, rows=8, pol='nt', t=None):
        op = {1: 'dword', 2: 'dwordx2', 4: 'dwordx4'}[nreg]
        per = 4095 // pitch + 1 if pitch <= 4095 else 1
        for j in range(rows):
            k = j % per
            self(f'global_load_{op} {vr(dst + j*nreg, nreg)}, v{va}, {base} offset:{k*pitch} {pol}')
            if k == per - 1 and j + 1 < rows: self(f'v_add_u32 v{va}, {per*pitch}, v{va}')

def consts(a):
    a(f'''s_mov_b32 {PLO}, 0x05040100
s_mov_b32 {PHI}, 0x07060302
s_mov_b32 {SPIN}, 0
s_mov_b32 s56, {L2E:#x}
s_mov_b32 s57, {L2E_LO:#x}
s_mov_b32 s58, {LN2:#x}
s_mov_b32 s59, {SCALE:#x}''')

def code_warm(a, v=4):
    n = a.P['warm_loads']
    a(f'''s_lshr_b32 s50, s2, 3
s_lshl_b32 s50, s50, 10
v_lshlrev_b32 v{v}, 4, v1
v_add_u32 v{v}, s50, v{v}
v_min_u32 v{v}, CODE_LAST, v{v}
global_load_dword v14, v{v}, s[36:37]''')
    if n > 1:
        a(f'''v_add_u32 v{v}, 32768, v{v}
v_min_u32 v{v}, CODE_LAST, v{v}
global_load_dword v14, v{v}, s[36:37]''')

CT, SPB, PB, STB, MISC = 0, 98304, 98304 + 34816, 98304 + 34816 + 9216, 98304 + 34816 + 9216 + 1024
def blk2_addr(a, v, srow, pitch, scol):
    a(f'''v_lshrrev_b32 v{v}, 3, v2
v_lshlrev_b32 v{v}, 5, v{v}
v_lshl_add_u32 v{v}, v3, 3, v{v}
v_add_u32 v{v}, {srow}, v{v}
v_mul_u32_u24 v{v}, {pitch}, v{v}
v_and_b32 v{v+1}, 7, v2
v_lshl_add_u32 v{v}, v{v+1}, 4, v{v}
v_add_u32 v{v}, {scol}, v{v}''')
def frag2_addr(a, v, sbase):
    a(f'v_and_b32 v{v}, 1, v2\nv_lshlrev_b32 v{v}, 6, v{v}\nv_lshl_add_u32 v{v}, v3, 4, v{v}\nv_add_u32 v{v}, {sbase}, v{v}')
def pack_addr(a, v, sbase):
    a(f'v_and_b32 v{v}, 7, v2\nv_lshlrev_b32 v{v}, 5, v{v}\nv_lshrrev_b32 v{v+1}, 3, v2\nv_lshl_add_u32 v{v}, v{v+1}, 4, v{v}\nv_add_u32 v{v}, {sbase}, v{v}')
def gemv_out_lds(a, D, base):
    a.pack2(8, D)
    a.lanes_lt(16)
    a('ds_write_b128 v14, v[8:11]')
    a.full()
def gemv_out_prep(a, base):
    a(f's_lshl_b32 s40, s3, 8\ns_add_u32 s40, s40, {base}')
    pack_addr(a, 14, 's40')
def tree(a, regs, stride=1, n=1):
    regs = list(regs)
    while len(regs) > 1:
        nxt = []
        for i in range(0, len(regs) - 1, 2):
            for k in range(n): a(f'v_add_f32 v{regs[i]+k}, v{regs[i]+k}, v{regs[i+1]+k}')
            nxt.append(regs[i])
        if len(regs) & 1: nxt.append(regs[-1])
        regs = nxt
def ln_finish(a, m, v, ri):
    a.rnd(m, m); a.rnd(v, v)
    a(f'v_add_f32 v{v}, {f2u(1e-5):#x}, v{v}')
    a.rnd(v, v)
    a(f'v_sqrt_f32 v{v}, v{v}')
    a.rnd(v, v)
    a.recip(ri, v, ri + 1)
def neg1(a, r=8):
    for i in range(4): a(f'v_mov_b32 v{r+i}, -1')

JP, CP = 3200, 51328
def role_B(a):
    P = a.P
    a(f'''s_and_b32 s39, s2, 7
s_lshr_b32 s38, s2, 3            ; j
s_mul_i32 s55, s38, 43
s_lshr_b32 s55, s55, 7           ; Tp = j/3
s_mul_i32 s40, s55, 3
s_sub_u32 s40, s38, s40          ; cbl
s_lshl_b32 s40, s40, 2
s_mul_i32 s45, s39, 12
s_add_u32 s45, s45, s40
s_lshr_b32 s40, s3, 1
s_add_u32 s45, s45, s40
s_and_b32 s53, s3, 1
s_lshl_b32 s42, s55, 1
s_add_u32 s53, s53, s42          ; T = 2Tp + (w&1)
v_mov_b32 v12, 0
s_lshl_b32 s40, s53, 6
s_lshl_b32 s41, s45, 7''')
    blk2_addr(a, 4, 's40', 12288, 's41')
    a(f'''v_lshlrev_b32 v6, 2, v1
s_lshl_b32 s42, s3, 3
v_and_b32 v7, 7, v1
v_add_u32 v7, s42, v7
v_lshrrev_b32 v8, 5, v1
v_lshl_add_u32 v13, v8, 6, v7
s_min_u32 s40, s55, 4
s_lshl_b32 s40, s40, 7
v_add_u32 v7, s40, v13
v_lshlrev_b32 v7, 1, v7
s_waitcnt lgkmcnt(0)''')
    a.stamp('start')
    for k in range(5): a(f'global_load_dword v{16+k}, v6, {X} offset:{256*k}')
    a(f'global_load_ushort v21, v7, {X}')
    a('s_cmp_lt_u32 s2, 120\ns_cbranch_scc0 LB_nowq')
    a.load_rows(64, 4, 4, WQ, 12288)
    a.label('LB_nowq')
    a(f'global_load_dword v15, v12, {WS} sc1\ns_branch LB2')

def role_B2(a):
    P = a.P
    a.label('LB2')
    a(f'''s_mov_b32 s49, 0
s_mul_i32 s54, s39, 10
s_add_u32 s54, s54, s38
s_add_u32 s40, s2, 0
s_cmp_lt_u32 s38, 10
s_cselect_b32 s54, s54, s40
s_getreg_b32 s16, hwreg(HW_REG_XCC_ID, 0, 4)''')
    a.wave_is('eq', 6, 'LB_not6')
    code_warm(a, 24)
    if P['tlb']:
        a(f'''v_lshlrev_b32 v24, 17, v1
global_load_dword v14, v24, {WS} offset:64 nt''')
    a('s_mov_b32 s49, 1')
    a.label('LB_not6')
    a.wave_is('eq', 7, 'LB_not7')
    neg1(a, 28)
    a(f'''s_mul_i32 s50, s39, 2560
s_lshl_b32 s51, s38, 8
s_add_u32 s50, s50, s51
s_add_u32 s50, s50, {H6}
s_lshl_b32 s51, s54, 8
s_add_u32 s51, s51, {MODR - 104*256}
s_cmp_lt_u32 s54, 104
s_cselect_b32 s50, s50, s51
v_lshl_add_u32 v24, v2, 4, s50
s_cmp_lt_u32 s54, 80
s_cbranch_scc1 LB_c1
s_cmp_lt_u32 s54, 104
s_cbranch_scc0 LB_c1
s_mul_i32 s50, s54, 2560
s_add_u32 s50, s50, {H7Y - 80*2560}
v_lshl_add_u32 v24, v1, 4, s50
global_store_dwordx4 v24, v[28:31], {WS} sc1
global_store_dwordx4 v24, v[28:31], {WS} offset:1024 sc1
v_and_b32 v24, 31, v1
v_lshl_add_u32 v24, v24, 4, s50
v_add_u32 v24, 2048, v24
LB_c1:
global_store_dwordx4 v24, v[28:31], {WS} sc1''')
    a('s_mov_b32 s49, 1')
    a.label('LB_not7')
    a(f'''s_lshl_b32 s46, s2, 6
s_lshl_b32 s41, s3, 3
s_add_u32 s46, s46, s41
s_mul_i32 s46, s46, 1536           ; (64b+8w)*1536
s_and_b32 s47, s3, 1
s_lshl_b32 s47, s47, 3             ; 8*(w&1)
s_mul_i32 s48, s3, 12288
v_cmp_le_u32 vcc, 32, v1
v_add_u32 v56, 64, v1
v_subrev_u32 v57, 32, v1
v_cndmask_b32 v56, v56, v57, vcc
v_cndmask_b32 v58, 0, 1, vcc
v_xor_b32 v56, v56, v58
v_mul_u32_u24 v58, 1536, v58
v_add_u32 v57, 32, v1
v_xor_b32 v57, 1, v57''')
    def dma(lo, hi, other=0):
        for i in range(lo, hi):
            k, j = divmod(i, 3)
            src = ('v1', 'v56', 'v57')[j]
            a(f's_add_u32 s43, s47, {2*k}\nv_xor_b32 v8, s43, {src}')
            a(f's_add_u32 s44, s46, {2*k*1536 + (1536 if j == 2 else 0) + other*32*1536}')
            if j == 1: a('v_lshl_add_u32 v8, v8, 4, v58\nv_add_u32 v8, s44, v8')
            else: a('v_lshl_add_u32 v8, v8, 4, s44')
            a(f's_add_u32 m0, s48, {i*1024 + other*49152}\nglobal_load_lds_dwordx4 v8, {CKV} nt')
    N1 = P['dma1']
    a(f'v_mov_b32 v253, {STB + 520}\nds_write_b32 v253, v12')
    a.bar()
    dma(0, N1)
    consts(a)
    a('s_cmp_ge_u32 s2, 120\ns_cselect_b32 s49, 1, s49\ns_cmp_eq_u32 s49, 0\ns_cbranch_scc1 LB_w8\ns_waitcnt vmcnt(' + str(N1) + ')\nLB_w8:')
    a(f's_waitcnt vmcnt({9+N1})')
    for k in range(5): a(f'v_lshlrev_b32 v{24+2*k}, 16, v{16+k}\nv_and_b32 v{25+2*k}, 0xffff0000, v{16+k}')
    a('v_add_f32 v22, v24, v25')
    for k in range(2, 10): a(f'v_add_f32 v22, v22, v{24+k}')
    a.wave_red('v_add_f32', 22, 23)
    a(f'v_mul_f32 v22, {f2u(1/640):#x}, v22\nv_mov_b32 v23, 0')
    for k in range(10): a(f'v_sub_f32 v{24+k}, v{24+k}, v22\nv_fmac_f32 v23, v{24+k}, v{24+k}')
    a.wave_red('v_add_f32', 23, 24)
    a(f'v_mul_f32 v23, {f2u(1/640):#x}, v23')
    ln_finish(a, 22, 23, 24)
    a('v_lshlrev_b32 v21, 16, v21\nv_sub_f32 v21, v21, v22')
    a.rnd(21, 21)
    a.div(20, 21, 23, 24, 25)
    a.rnd(20, 20)
    a('s_cmp_lt_u32 s2, 120\ns_cbranch_scc0 LB_dma0')
    a(f'''s_lshl_b32 s40, s55, 14
s_lshl_b32 s42, s3, 10
s_add_u32 s40, s40, s42
s_add_u32 s40, s40, {H1}
v_lshl_add_u32 v4, v1, 4, s40
v_add_u32 v9, 8192, v4
v_lshlrev_b32 v5, 1, v13
v_add_u32 v5, {MISC}, v5
s_lshl_b32 s40, s39, 4
s_add_u32 s40, s40, {READY + 2048}
v_lshl_add_u32 v10, v2, 7, s40
s_mul_i32 s40, s45, 43
s_lshr_b32 s40, s40, 7
s_mul_i32 s42, s40, 3
s_sub_u32 s42, s45, s42
s_lshl_b32 s42, s42, 9
s_mul_i32 s40, s40, 15360
s_add_u32 s40, s40, s42
s_mul_i32 s42, s53, 1536
s_add_u32 s40, s40, s42
s_add_u32 s40, s40, {H1B}''')
    pack_addr(a, 6, 0)
    a(f'v_lshlrev_b32 v6, 1, v6\nv_lshl_add_u32 v6, v3, 4, v6\nv_add_u32 v6, s40, v6\nv_cmp_eq_u32 s[42:43], 1, v3')
    a(f's_and_b32 s40, s3, 1\ns_lshl_b32 s40, s40, 7\ns_add_u32 s40, s40, {MISC}')
    frag2_addr(a, 7, 's40')
    a(f's_waitcnt vmcnt({N1})')
    a.stamp('wq')
    a.get_tag()
    a(f'v_mov_b32 v61, {TAG}\nv_mov_b32 v63, {TAG}')
    a.poll(lambda: a(f'global_load_dwordx4 v[16:19], v4, {WS} sc1\nglobal_load_dwordx4 v[24:27], v9, {WS} sc1\nglobal_load_dwordx2 v[28:29], v10, {WS} sc1'),
           lambda: a.chk_tag([17, 19, 25, 27, 28], 8), sleep=P['sl_h1'], pre=P['pre_h1'], mid=lambda: a.perm_block(96, 64))
    a.stamp('h1')
    a('s_setprio 3')
    a('''v_add_f32_dpp v16, v16, v16 row_ror:8 row_mask:0xf bank_mask:0xf
v_add_f32_dpp v18, v18, v18 row_ror:8 row_mask:0xf bank_mask:0xf
v_add_f32_dpp v24, v24, v24 row_ror:8 row_mask:0xf bank_mask:0xf
v_add_f32_dpp v26, v26, v26 row_ror:8 row_mask:0xf bank_mask:0xf
v_cmp_ne_u32 s[50:51], s16, v29
v_permlane16_swap_b32 v16, v18
v_permlane16_swap_b32 v24, v26
v_add_f32 v16, v16, v18
v_add_f32 v24, v24, v26
v_permlane32_swap_b32 v16, v24
v_add_f32 v16, v16, v24
v_mov_b32 v18, v16
v_permlane16_swap_b32 v16, v18''')
    a.rnd(16, 16); a.rnd(18, 18)
    a('v_add_f32 v18, 1.0, v18')
    a.rnd(18, 18)
    a('v_mul_f32 v18, v20, v18')
    a.rnd(18, 18)
    a('v_add_f32 v16, v18, v16\nv_cvt_pk_bf16_f32 v16, v16, v16\nds_write_b16 v5, v16')
    a.bar()
    a('ds_read_b128 v[16:19], v7\ns_waitcnt lgkmcnt(0)')
    a.gemv2(24, 16, 96, True)
    a.pack2(8, 24)
    a('v_cndmask_b32 v60, v8, v10, s[42:43]\nv_cndmask_b32 v62, v9, v11, s[42:43]')
    a.lanes_lt(32)
    a('s_mov_b64 s[16:17], s[50:51]')
    a.st_local('s[16:17]', f'global_store_dwordx4 v6, v[60:63], {WS}')
    a.full()
    a.stamp('qpub')
    a('s_setprio 0\ns_barrier')
    if P['sl_dma2']: a(f's_sleep {P["sl_dma2"]}')
    a('s_branch LB_dma')
    a.label('LB_dma0')
    a.get_tag()
    a(f's_lshl_b32 s40, s39, 4\ns_add_u32 s40, s40, {READY + 2048}\nv_lshl_add_u32 v10, v2, 7, s40')
    a.poll(lambda: a(f'global_load_dwordx2 v[28:29], v10, {WS} sc1'), lambda: a.chk_tag([28], 8), sleep=4)
    a('v_cmp_ne_u32 s[16:17], s16, v29')
    a.label('LB_dma')
    a.wave_is('eq', 7, 'LB_nrp')
    a.ready_publish()
    a.label('LB_nrp')
    def bump():
        a('v_mov_b32 v8, 1\ns_mov_b64 exec, 1\nds_add_u32 v253, v8\ns_mov_b64 exec, -1')
    def ckwait(lab): a.lds_wait(253, 8)
    a.wave_is('lt', 4, 'LB_qa')
    for i in range(N1, 12):
        dma(i, i + 1); dma(i, i + 1, 1)
    a(f'''v_lshrrev_b32 v4, 2, v2            ; rr
v_lshl_add_u32 v4, v3, 3, v4       ; 8g+rr
v_and_b32 v5, 3, v1                ; cc
s_mul_i32 s40, s3, 24
v_add_u32 v5, s40, v5              ; 24w+cc''')
    for t in range(6):
        for sub in range(2):
            a(f'''v_add_u32 v6, {4*sub}, v4
v_and_b32 v7, 15, v6
v_add_u32 v8, {4*t}, v5
v_xor_b32 v7, v7, v8
v_mul_u32_u24 v6, 1536, v6
v_lshl_add_u32 v{40+t*2+sub}, v7, 4, v6''')
    a('s_waitcnt vmcnt(0)')
    bump()
    ckwait('LB_ck0')
    a.stamp('ckv')
    for t in range(6):
        for sub in range(2):
            for hf in range(2):
                for ks in range(2):
                    r = 64 + ((t*2+hf)*2+ks)*4 + 2*sub
                    a(f'ds_read_b64_tr_b16 {vr(r,2)}, v{40+t*2+sub} offset:{ks*49152 + hf*8}')
    a(f'''s_mul_i32 s41, s39, {16*CP}
s_mul_i32 s40, s38, {JP}
s_add_u32 s41, s41, s40
s_mul_i32 s40, s3, 384
s_add_u32 s41, s41, s40
s_add_u32 s41, s41, {H4}
v_bfe_u32 v52, v2, 1, 2
v_mul_u32_u24 v52, {CP}, v52
v_and_b32 v8, 1, v2
v_mul_u32_u24 v8, 1536, v8
v_add3_u32 v52, v52, v8, s41
v_lshl_add_u32 v52, v3, 4, v52
v_lshrrev_b32 v8, 3, v2
v_lshl_add_u32 v52, v8, 6, v52
v_add_u32 v53, {4*CP}, v52
v_add_u32 v54, {8*CP}, v52
v_add_u32 v55, {12*CP}, v52
s_lshl_b32 s40, s39, 14
s_lshl_b32 s41, s38, 6
s_add_u32 s40, s40, s41
s_lshl_b32 s41, s3, 4
s_add_u32 s40, s40, s41
s_add_u32 s40, s40, {AUX}
v_lshl_add_u32 v56, v2, 10, s40
v_lshlrev_b32 v57, 5, v2
v_add_u32 v57, {STB}, v57
s_branch LB_noqk''')
    a.label('LB_qa')
    a('s_sub_u32 s45, s3, 4\ns_mul_i32 s40, s45, 24\nv_add_u32 v5, s40, v3\nv_mul_u32_u24 v4, 1536, v2')
    for s_ in range(6):
        a(f'v_add_u32 v6, {4*s_}, v5\nv_xor_b32 v6, v6, v2\nv_lshl_add_u32 v{240+2*s_}, v6, 4, v4\nv_add_u32 v{241+2*s_}, 49152, v{240+2*s_}')
    a(f'''s_mul_i32 s40, s45, 12288
s_add_u32 s40, s40, {H2}
v_lshlrev_b32 v4, 6, v2
v_lshl_add_u32 v4, v3, 4, v4
v_add_u32 v4, s40, v4
v_add_u32 v5, 4096, v4
v_add_u32 v6, 8192, v4
s_and_b32 s41, s2, 3
s_lshl_b32 s41, s41, 6
s_add_u32 s40, s40, s41
s_add_u32 s40, s40, 10240
v_lshl_add_u32 v9, v1, 8, s40
s_mul_i32 s40, s45, {32*272}
s_add_u32 s40, s40, {SPB}
v_mul_u32_u24 v7, 272, v2
v_lshl_add_u32 v7, v3, 4, v7
v_add_u32 v7, s40, v7
s_mov_b32 s52, 0
s_waitcnt vmcnt(0)''')
    bump()
    a.ready_check(1, 10)
    a('v_mov_b32 v12, 0\nv_mov_b32 v10, 0')
    def cf():
        for kt in range(4):
            for s_ in range(6):
                a(f'ds_read_b128 {vr(64+(kt*6+s_)*4,4)}, v{240 + 2*s_ + (kt >> 1)} offset:{(kt & 1)*24576}')
    a(f'''LB_q0:
s_mov_b64 exec, {P['k_h2']}
global_load_dword v10, v9, {WS} sc1
s_mov_b64 exec, -1
s_cmp_eq_u32 s52, 0
s_cbranch_scc0 LB_q1
ds_read_b32 v8, v253
s_waitcnt lgkmcnt(0)
v_cmp_gt_u32 vcc, 8, v8
s_cbranch_vccnz LB_q1
s_mov_b32 s52, 1''')
    cf()
    a(f'''LB_q1:
s_waitcnt vmcnt(0)
v_cmp_eq_u32 vcc, -1, v10
s_cbranch_vccz LB_h2go
s_add_u32 {SPIN}, {SPIN}, 1
s_cmp_gt_u32 {SPIN}, {SPINMAX}
s_cbranch_scc1 LB_h2go
s_sleep {P['sl_pr2']}
s_branch LB_q0
LB_h2go:''')
    if P['post_h2']: a(f's_sleep {P["post_h2"]}')
    def ld():
        for i in range(12): a(f'global_load_dwordx4 {vr(16+4*i,4)}, v{4 + i//4}, {WS} offset:{(i%4)*1024} sc1')
    def mid():
        a('s_cmp_eq_u32 s52, 0\ns_cbranch_scc0 LB_q2')
        ckwait('LB_ck1')
        cf()
        a.label('LB_q2')
    a.poll(ld, lambda: a.chk_sent(range(16, 64), 8), sleep=P['sl_h2'], mid=mid)
    a('s_waitcnt lgkmcnt(0)')
    a.stamp('h2')
    a('s_setprio 3')
    for kt in range(4):
        for ht in range(2):
            for s_ in range(6):
                d = 224 + (kt*2+ht)*4
                a(f'v_mfma_f32_16x16x32_bf16 {vr(d,4)}, {vr(64+(kt*6+s_)*4,4)}, {vr(16+(s_*2+ht)*4,4)}, {"0" if s_ == 0 else vr(d,4)}')
        if kt >= 1:
            for ht in range(2): a(f'ds_write_b128 v7, {vr(224+((kt-1)*2+ht)*4,4)} offset:{ht*16*272 + (kt-1)*64}')
    for ht in range(2): a(f'ds_write_b128 v7, {vr(224+(3*2+ht)*4,4)} offset:{ht*16*272 + 3*64}')
    if P['bpf']:
        a(f'''s_mul_i32 s41, s39, {16*CP}
s_mul_i32 s40, s38, {JP}
s_add_u32 s41, s41, s40
s_mul_i32 s40, s45, 384
s_add_u32 s41, s41, s40
s_add_u32 s41, s41, {H4}
v_bfe_u32 v59, v1, 1, 4
v_mul_u32_u24 v59, {CP}, v59
v_and_b32 v8, 1, v1
v_mul_u32_u24 v8, 1536, v8
v_add3_u32 v59, v59, v8, s41
v_lshrrev_b32 v8, 5, v1
v_lshl_add_u32 v59, v8, 7, v59''')
    a.label('LB_noqk')
    a(f'''s_lshl_b32 s40, s3, 2
v_add_u32 v9, s40, v3              ; head = 4w+g
v_mul_u32_u24 v4, 272, v9
v_lshl_add_u32 v4, v2, 4, v4
v_add_u32 v4, {SPB}, v4
v_mul_u32_u24 v5, 144, v9
v_lshl_add_u32 v5, v2, 3, v5
v_add_u32 v5, {PB}, v5
s_lshl_b32 s40, s2, 4
s_add_u32 s40, s40, {H3}
v_lshl_add_u32 v6, v9, 11, s40
v_lshlrev_b32 v7, 4, v9
v_add_u32 v7, {STB}, v7
v_lshlrev_b32 v10, 2, v2           ; 4*kq
v_mov_b32 v45, {TAG}
v_mov_b32 v47, {TAG}
s_lshl_b32 s40, s2, 7
s_add_u32 s40, s40, {DB3}
v_mov_b32 v8, s40
v_cmp_eq_u32 vcc, 1, v1
v_cndmask_b32 v6, v6, v8, vcc
s_cmp_eq_u32 s3, 7
s_cselect_b32 s49, 2, 0
s_or_b32 s49, s49, 0x00010001
v_mov_b32 v58, {STB + 512}
v_mov_b32 v13, 0
ds_write_b64 v58, v[12:13]
ds_write_b32 v58, v12 offset:12''')
    for i in range(4): a(f'v_add_u32 v{40+i}, {i}, v10')
    a.bar()
    a.stamp('qk')
    a('s_setprio 3')
    for i in range(4): a(f'ds_read_b128 {vr(16+4*i,4)}, v4 offset:{8704*i}')
    a(f'''v_mul_u32_u24 v4, 144, v2
v_lshl_add_u32 v4, v3, 4, v4
v_add_u32 v4, {PB}, v4
v_mov_b32 v11, {NEGINF:#x}
s_mov_b32 s40, 0xffffffc0
s_waitcnt lgkmcnt(0)''')
    for i in range(4):
        a(f'v_add_f32 v{16+i}, v{16+i}, v{20+i}\nv_add_f32 v{24+i}, v{24+i}, v{28+i}')
    for i in range(4): a(f'v_add_f32 v{32+i}, v{16+i}, v{24+i}')
    for i in range(4): a(f'v_and_or_b32 v{36+i}, v{32+i}, s40, v{40+i}')
    a('v_max3_f32 v50, v36, v37, v38\nv_max_f32 v50, v50, v39')
    for i in range(4): a(f'v_cvt_pk_bf16_f32 v{32+i}, v{32+i}, v{32+i}')
    a.row_red('v_max_f32', [50])
    a.rnd(44, 50)
    a('v_mul_f32 v44, s59, v44\nv_and_b32 v46, 63, v50')
    a.rnd(44, 44)
    a('s_mov_b32 exec_lo, s49\ns_mov_b32 exec_hi, 0x00010001')
    a(f'global_store_dwordx4 v6, v[44:47], {WS} sc1')
    a.full()
    a.stamp('h3pub')
    if P['bpf']:
        a.wave_is('ge', 4, 'LB_npf')
        pol = ['', 'nt', 'sc1'][P['bpf']] if P['bpf'] < 3 else ''
        a(f'global_load_dword v60, v59, {WS} {pol}\ns_mov_b32 exec_hi, 0\nglobal_load_dword v61, v59, {WS} offset:256 {pol}\ns_mov_b32 exec_hi, -1')
        a.label('LB_npf')
    for i in range(4): a(f'v_and_b32 v{32+i}, 0xffff0000, v{32+i}')
    for i in range(4): a(f'v_mul_f32 v{32+i}, s59, v{32+i}')
    for i in range(4): a.rnd(32 + i, 32 + i)
    for i in range(4):
        a(f'v_cmp_eq_u32 s[{50+2*(i&1)}:{51+2*(i&1)}], v{40+i}, v46\nv_cndmask_b32 v{32+i}, v{32+i}, v11, s[{50+2*(i&1)}:{51+2*(i&1)}]\nv_cndmask_b32 v{24+i}, 0, 1.0, s[{50+2*(i&1)}:{51+2*(i&1)}]')
    a('v_max3_f32 v50, v32, v33, v34\nv_max_f32 v50, v50, v35')
    a.row_red('v_max_f32', [50])
    a('v_sub_f32 v28, v50, v44')
    for i in range(4): a(f'v_sub_f32 v{32+i}, v{32+i}, v50')
    a('v_mul_f32 v28, s56, v28')
    for i in range(4): a(f'v_mul_f32 v{32+i}, s56, v{32+i}')
    a('v_exp_f32 v28, v28')
    for i in range(4): a(f'v_exp_f32 v{32+i}, v{32+i}')
    for i in range(4): a(f'v_fmac_f32 v{24+i}, v{32+i}, v28')
    a(f'''v_cvt_pk_bf16_f32 v36, v24, v25
v_cvt_pk_bf16_f32 v37, v26, v27
ds_write_b64 v5, v[36:37]
v_add_f32 v51, v32, v33
v_add_f32 v49, v34, v35
v_add_f32 v51, v51, v49
v_cvt_pk_bf16_f32 v38, v32, v33
v_cvt_pk_bf16_f32 v39, v34, v35
ds_write_b64 v5, v[38:39] offset:4608
v_mov_b32 v48, v44''')
    a.row_red('v_add_f32', [51])
    a('v_fma_f32 v49, v51, v28, 1.0\nds_write_b128 v7, v[48:51]')
    a.stamp('xa')
    a.bar()
    a.stamp('xb')
    a.wave_is('lt', 4, 'LB_lw')
    for ht in range(2):
        for ks in range(2): a(f'ds_read_b128 {vr(16+(ht*2+ks)*4,4)}, v4 offset:{ht*16*144 + ks*64}')
    a('ds_read2_b32 v[36:37], v57 offset0:1 offset1:5\ns_waitcnt lgkmcnt(1)')
    def unit(i):
        cl, ht = i >> 1, i & 1
        for tp in range(2):
            for hf in range(2):
                d = 160 + (i % 3)*16 + (tp*2+hf)*4
                t = cl*2 + tp
                for ks in range(2):
                    a(f'v_mfma_f32_16x16x32_bf16 {vr(d,4)}, {vr(64+((t*2+hf)*2+ks)*4,4)}, {vr(16+(ht*2+ks)*4,4)}, {"0" if ks == 0 else vr(d,4)}')
    def ust(i, pol):
        cl, ht = i >> 1, i & 1
        d = 160 + (i % 3)*16; o = 208 + (i % 4)*12
        for k in range(4): a(f'v_cvt_pk_bf16_f32 v{o+k}, v{d+2*k}, v{d+2*k+1}')
        for k in range(4): a(f'v_cvt_pk_bf16_f32 v{o+4+k}, v{d+8+2*k}, v{d+8+2*k+1}')
        for k in range(4): a(f'v_mov_b32 v{o+8+k}, v{o+k}')
        for k in range(4): a(f'v_mov_b32_dpp v{o+k}, v{o+4+k} row_ror:8 row_mask:0xf bank_mask:0xc')
        a(f'global_store_dwordx4 v{52+2*ht}, {vr(o,4)}, {WS} offset:{128*cl} {pol}')
        for k in range(4): a(f'v_mov_b32_dpp v{o+4+k}, v{o+8+k} row_ror:8 row_mask:0xf bank_mask:0x3')
        a(f'global_store_dwordx4 v{53+2*ht}, {vr(o+4,4)}, {WS} offset:{128*cl} {pol}')
    def pvloop(pol):
        unit(0)
        for i in range(1, 6):
            unit(i); ust(i - 1, pol)
        ust(5, pol)
    if P['local'] and P['pv_local']:
        a('s_cmp_eq_u64 s[16:17], 0\ns_cbranch_scc0 LB_pvf')
        pvloop('')
        a('s_branch LB_pvd')
        a.label('LB_pvf')
    pvloop('sc1')
    a.label('LB_pvd')
    a(f'v_mov_b32 v8, 1\nv_mov_b32 v33, {TAG}\nv_mov_b32 v32, v36\nv_mov_b32 v34, v37\nv_mov_b32 v35, {TAG}')
    a.lanes_lt(1)
    a('ds_add_u32 v58, v8')
    a.stamp('pvst')
    a.lanes_lt(16)
    a('s_waitcnt vmcnt(0)')
    a.st_local('s[16:17]', f'global_store_dwordx4 v56, v[32:35], {WS}')
    a.lanes_lt(1)
    a('ds_add_u32 v58, v8 offset:12')
    a.full()
    a.stamp('auxpub')
    a(f'''v_lshlrev_b32 v9, 2, v2
v_add_u32 v9, {STB + 576}, v9
s_lshl_b32 s40, s3, 9
s_add_u32 s40, s40, {SIDE}
v_lshlrev_b32 v10, 13, v2
v_lshl_add_u32 v10, v3, 4, v10
v_add_u32 v10, s40, v10
v_lshlrev_b32 v11, 4, v2
v_add_u32 v11, {STB}, v11
''')
    a.lds_wait(58, 1, off=4, extra='ds_read2_b32 v[40:41], v9 offset0:0 offset1:16')
    for ht in range(2):
        a(f'''v_cmp_gt_u32 s[42:43], 4, v{40+ht}
s_cmp_eq_u64 s[42:43], 0
s_cbranch_scc1 LB_cn{ht}
ds_read_b128 v[16:19], v4 offset:{4608 + ht*16*144}
ds_read_b128 v[20:23], v4 offset:{4608 + ht*16*144 + 64}
ds_read_b64 v[44:45], v11 offset:{ht*256 + 8}
v_and_b32 v42, 3, v{40+ht}
v_lshl_add_u32 v42, v42, 11, v10
v_add_u32 v42, {ht*16*8192}, v42
s_waitcnt lgkmcnt(0)''')
        for t in range(6):
            for hf in range(2):
                d = 160 + (t*2+hf)*4
                for ks in range(2):
                    a(f'v_mfma_f32_16x16x32_bf16 {vr(d,4)}, {vr(64+((t*2+hf)*2+ks)*4,4)}, {vr(16+ks*4,4)}, {"0" if ks == 0 else vr(d,4)}')
        for t in range(6):
            for k in range(4): a(f'v_cvt_pk_bf16_f32 v{208+4*t+k}, v{160+8*t+2*k}, v{161+8*t+2*k}')
        a.san(range(208, 232))
        a(f'v_mov_b32 v46, v45\nv_mov_b32 v45, {TAG}\nv_mov_b32 v47, {TAG}\ns_mov_b64 exec, s[42:43]')
        for t in range(6): a(f'global_store_dwordx4 v42, {vr(208+4*t,4)}, {WS} offset:{64*t} sc1')
        a(f's_and_b64 exec, exec, 0xffff\nglobal_store_dwordx4 v42, v[44:47], {WS} offset:384 sc1')
        a.full()
        a.label(f'LB_cn{ht}')
    a('v_mov_b32 v8, 1')
    a.lanes_lt(1)
    a('ds_add_u32 v58, v8')
    a.full()
    a('s_branch LB_lw2')
    a.label('LB_lw')
    a('s_setprio 0')
    a.wave_is('eq', 4, 'LB_lw3')
    a(f'''v_and_b32 v9, 31, v1
v_lshlrev_b32 v10, 2, v9
v_add_u32 v10, {STB + 576}, v10
s_lshl_b32 s40, s39, 4
s_add_u32 s40, s40, s38
s_lshl_b32 s40, s40, 8
s_add_u32 s40, s40, {MB}
v_lshl_add_u32 v9, v9, 3, s40
''')
    a.lds_wait(58, P['ew_cnt'], sleep=2)
    a.poll(lambda: a(f'global_load_dwordx2 v[16:17], v9, {WS} sc1'), lambda: a.chk_tag([17], 8), sleep=P['sl_el'])
    a.stamp('el')
    a('ds_write_b32 v10, v16\nv_mov_b32 v8, 1\nds_write_b32 v58, v8 offset:4')
    a.label('LB_lw2')
    a.lds_wait(58, 8, sleep=P['sl_lw'])
    a('s_branch LB_late')
    a.label('LB_lw3')
    if P['early_late']: a.lds_wait(58, 4, off=12, sleep=P['sl_lw'])
    else: a.lds_wait(58, 8, sleep=P['sl_lw'])
    a.label('LB_late')
    def gate2(): a.lds_wait(58, 8, sleep=P['sl_lw'])
    a('s_cmp_lt_u32 s54, 80\ns_cbranch_scc0 LB_hi')
    a.wave_is('ge', 4, 'LB_wob')
    a(f'''s_mul_i32 s40, s39, 768
s_mul_i32 s41, s45, 192
s_add_u32 s40, s40, s41
s_lshl_b32 s41, s38, 7''')
    blk2_addr(a, 4, 's40', 1280, 's41')
    a(f'v_add_u32 v5, {64*1280}, v4\nv_add_u32 v6, {128*1280}, v4')
    for i in range(3):
        a.load_rows(64 + 32*i, 4, 4 + i, WO, 1280)
        if i == P['early_late'] - 1: gate2()
    a(f'''s_mul_i32 s40, s39, 12
s_mul_i32 s41, s45, 3
s_add_u32 s40, s40, s41
s_lshl_b32 s40, s40, 10
s_add_u32 s40, s40, {H5}
v_lshl_add_u32 v4, v1, 4, s40
s_mul_i32 s40, s45, 384
s_add_u32 s40, s40, {MISC + 4096}
v_lshl_add_u32 v5, v2, 2, v3
v_lshl_add_u32 v5, v5, 1, s40      ; (4p+g)*2''')
    frag2_addr(a, 6, 's40')
    gemv_out_prep(a, MISC + 2048 - 1024)
    for i in range(3):
        a(f's_waitcnt vmcnt({16 - 8*i})')
        a.perm_block(160 + 32*i, 64 + 32*i)
    a.stamp('late')
    if P['probe_h5']: a.probe(4, 8, off=2048, sleep=P['sl_pr'], post=P['post_h5'], mask=0x0001000100010001)
    def ld():
        for i in range(3): a(f'global_load_dwordx4 {vr(16+4*i,4)}, v4, {WS} offset:{1024*i} sc1')
    a.poll(ld, lambda: a.chk_sent(range(16, 28), 8), sleep=P['sl_h5'])
    a.stamp('h5')
    a('s_setprio 3')
    for i in range(3): a.xrow_tr4(16 + 4*i)
    for i in range(3): a(f'v_cvt_pk_bf16_f32 v{16+4*i}, v{16+4*i}, v{16+4*i}\nds_write_b16 v5, v{16+4*i} offset:{128*i}')
    a('s_waitcnt lgkmcnt(0)')
    for i in range(3): a(f'ds_read_b128 {vr(16+4*i,4)}, v6 offset:{128*i}')
    for i in range(3):
        a(f's_waitcnt lgkmcnt({2-i})')
        a.gemv2(64, 16 + 4*i, 160 + 32*i, i == 0)
    gemv_out_lds(a, 64, 0)
    a.label('LB_wob')
    a(f'''v_lshlrev_b32 v4, 4, v2
v_add_u32 v4, {MISC + 2048}, v4
s_mul_i32 s40, s39, 2560
s_lshl_b32 s41, s38, 8
s_add_u32 s40, s40, s41
s_add_u32 s40, s40, {H6}
v_lshl_add_u32 v5, v2, 4, s40''')
    a.bar()
    a.wave_is('eq', 4, 'Lfin')
    for i in range(4): a(f'ds_read_b128 {vr(16+4*i,4)}, v4 offset:{256*i}')
    a('s_waitcnt lgkmcnt(0)')
    tree(a, range(16, 32, 4), n=4)
    a.lanes_lt(16)
    a(f'global_store_dwordx4 v5, v[16:19], {WS} sc1')
    a.full()
    a.stamp('h6pub')
    a('s_branch Lfin')
    a.label('LB_hi')
    a('s_cmp_lt_u32 s54, 104\ns_cbranch_scc0 LB_mr')
    a(f's_sub_u32 s46, s54, 80\ns_lshl_b32 s40, s46, 6\ns_lshl_b32 s41, s3, 7')
    blk2_addr(a, 10, 's40', 1280, 's41')
    a.wave_is('lt', 5, 'LB_f5')
    a(f's_lshl_b32 s40, s3, 7\ns_lshl_b32 s41, s46, 7')
    blk2_addr(a, 4, 's40', 3072, 's41')
    a(f'v_add_u32 v5, {64*3072}, v4\nv_lshlrev_b32 v6, 2, v0\nglobal_load_dword v24, v6, {X}')
    a.load_rows(128, 4, 4, W1, 3072)
    a.load_rows(160, 4, 5, W1, 3072)
    a.load_rows(64, 4, 10, W2, 1280)
    a(f'v_lshlrev_b32 v4, 2, v0\nv_add_u32 v4, {MODR}, v4\nv_add_u32 v5, 2560, v4\ns_waitcnt vmcnt(8)')
    a.perm_block(192, 128)
    a.perm_block(224, 160)
    a('s_waitcnt vmcnt(0)')
    a.stamp('late1')
    a.perm_block(96, 64)
    a.ready_check(0, 36)
    def ld():
        a(f'''global_load_dword v25, v4, {WS} sc1
global_load_dword v26, v4, {WS} offset:1280 sc1
global_load_dword v27, v5, {WS} sc1
global_load_dword v38, v5, {WS} offset:1280 sc1''')
    a.poll(ld, lambda: a.chk_sent([25, 26, 27, 38], 8), sleep=8)
    a(f'''v_lshlrev_b32 v4, 3, v0
v_add_u32 v8, {H6}, v4
v_lshlrev_b32 v28, 16, v24
v_and_b32 v29, 0xffff0000, v24
v_lshlrev_b32 v30, 16, v25
v_and_b32 v31, 0xffff0000, v25
v_lshlrev_b32 v32, 16, v26
v_and_b32 v33, 0xffff0000, v26
v_lshlrev_b32 v34, 16, v27
v_and_b32 v35, 0xffff0000, v27
v_add_f32 v34, 1.0, v34
v_add_f32 v35, 1.0, v35''')
    a.rnd(34, 34); a.rnd(35, 35)
    for i in range(1, 4): a(f'v_add_u32 v{8+i}, {5120*i}, v8')
    a(f'''s_lshl_b32 s40, s3, 3
s_add_u32 s40, s40, {MISC + 8192}
v_mov_b32 v13, s40
s_lshl_b32 s40, s3, 8
s_add_u32 s40, s40, {MISC + 4096}
v_lshl_add_u32 v5, v1, 2, s40''')
    frag2_addr(a, 6, 's40')
    gemv_out_prep(a, MISC)
    a(f'v_mul_u32_u24 v37, 2560, v1\ns_lshl_b32 s40, s3, 9\ns_add_u32 s40, s40, {H6}\nv_add_u32 v37, s40, v37')
    if P['probe_h6']: a.probe(37, 4, sleep=P['sl_pr'], post=P['post_h6'], mask=0xff)
    def ld():
        for i in range(8): a(f'global_load_dwordx2 {vr(40+2*i,2)}, v{8 + i//2}, {WS} offset:{2560*(i%2)} sc1')
    if P['m_h6']:
        a.poll_masked([(f'global_load_dwordx2 {vr(40+2*i,2)}, v{8 + i//2}, {WS} offset:{2560*(i%2)} sc1', range(40+2*i, 42+2*i)) for i in range(8)], 4, sleep=P['sl_h6'])
    else: a.poll(ld, lambda: a.chk_sent(range(40, 56), 4), sleep=P['sl_h6'])
    a.stamp('h6')
    a('s_setprio 3')
    tree(a, range(40, 56, 2), n=2)
    for i in range(2): a.rnd(40 + i, 40 + i)
    for i in range(2): a(f'v_mul_f32 v{40+i}, v{30+i}, v{40+i}')
    for i in range(2): a.rnd(40 + i, 40 + i)
    for i in range(2): a(f'v_add_f32 v{40+i}, v{28+i}, v{40+i}')
    a('''v_cvt_pk_bf16_f32 v36, v40, v41
v_lshlrev_b32 v40, 16, v36
v_and_b32 v41, 0xffff0000, v36
v_readfirstlane_b32 s42, v40
v_subrev_f32 v44, s42, v40
v_subrev_f32 v45, s42, v41
v_add_f32 v42, v44, v45
v_mul_f32 v43, v44, v44
v_fmac_f32 v43, v45, v45''')
    a.row_red('v_add_f32', [42, 43])
    a(f'''v_permlane16_swap_b32 v42, v43
v_add_f32 v42, v42, v43
v_mov_b32 v43, v42
v_permlane32_swap_b32 v42, v43
v_add_f32 v42, v42, v43
v_mov_b32 v43, v42
v_permlane16_swap_b32 v42, v43
v_mul_f32 v42, {f2u(1/128):#x}, v42
v_mul_f32 v44, {f2u(128.0):#x}, v42
v_fma_f32 v43, -v44, v42, v43
v_add_f32 v42, s42, v42
ds_write_b64 v13, v[42:43]
s_branch LB_w1b''')
    a.label('LB_f5')
    a.load_rows(64, 4, 10, W2, 1280)
    if P['early_late'] < 2: gate2()
    a.wave_is('lt', 7, 'LB_f7')
    a(f's_lshl_b32 s40, s46, 6\ns_add_u32 s41, s3, 3\ns_lshl_b32 s41, s41, 7')
    blk2_addr(a, 10, 's40', 1280, 's41')
    a.load_rows(128, 4, 10, W2, 1280)
    a.label('LB_f7')
    a('s_waitcnt vmcnt(0)')
    a.perm_block(96, 64)
    a.perm_block(192, 128)
    a.label('LB_w1b')
    a(f'v_mov_b32 v4, {MISC + 8192}')
    a.bar()
    a('s_setprio 3')
    a.wave_is('lt', 5, 'LB_w1c')
    a(f'''ds_read_b128 v[44:47], v4
ds_read_b128 v[48:51], v4 offset:16
ds_read_b64 v[52:53], v4 offset:32
s_waitcnt lgkmcnt(0)
v_add_f32 v54, v44, v46
v_add_f32 v55, v48, v50
v_add_f32 v56, v45, v47
v_add_f32 v54, v54, v55
v_add_f32 v57, v49, v51
v_add_f32 v54, v54, v52
v_add_f32 v55, v56, v57
v_mul_f32 v54, {f2u(0.2):#x}, v54      ; mean
v_add_f32 v55, v55, v53''')
    for r in (44, 46, 48, 50, 52): a(f'v_sub_f32 v{r}, v{r}, v54')
    a('v_mul_f32 v56, v44, v44\nv_mul_f32 v57, v46, v46\nv_fmac_f32 v56, v48, v48\nv_fmac_f32 v57, v50, v50\nv_fmac_f32 v56, v52, v52\nv_add_f32 v56, v56, v57')
    a(f'v_fmac_f32 v55, {f2u(128.0):#x}, v56\nv_mul_f32 v55, {f2u(1/640):#x}, v55')
    ln_finish(a, 54, 55, 56)
    for i in range(2): a(f'v_sub_f32 v{44+i}, v{40+i}, v54')
    for i in range(2): a.rnd(44 + i, 44 + i)
    for i in range(2): a.div(42 + i, 44 + i, 55, 56, 57 + i)
    for i in range(2): a.rnd(42 + i, 42 + i)
    for i in range(2): a(f'v_mul_f32 v{42+i}, v{42+i}, v{34+i}')
    for i in range(2): a.rnd(42 + i, 42 + i)
    for i in range(2): a(f'v_add_f32 v{42+i}, v{42+i}, v{32+i}')
    a('''v_cvt_pk_bf16_f32 v42, v42, v43
ds_write_b32 v5, v42
s_waitcnt lgkmcnt(0)
ds_read_b128 v[16:19], v6
ds_read_b128 v[20:23], v6 offset:128
s_waitcnt lgkmcnt(1)''')
    a.gemv2(128, 16, 192, True)
    a('s_waitcnt lgkmcnt(0)')
    a.gemv2(128, 20, 224, False)
    gemv_out_lds(a, 128, MISC)
    a.label('LB_w1c')
    a(f'''v_and_b32 v4, 31, v1
v_lshlrev_b32 v5, 2, v4
v_lshlrev_b32 v4, 3, v4
v_add_u32 v4, {MISC}, v4
s_lshl_b32 s40, s3, 7
s_add_u32 s40, s40, {MISC + 6144}
v_add_u32 v5, s40, v5''')
    frag2_addr(a, 6, 's40')
    a(f's_mul_i32 s40, s46, 2560\ns_lshl_b32 s41, s3, 8\ns_add_u32 s40, s40, s41\ns_add_u32 s40, s40, {H7Y}')
    pack_addr(a, 14, 's40')
    a.bar()
    for i in range(5): a(f'ds_read_b64 {vr(16+2*i,2)}, v4 offset:{256*i}')
    a('s_waitcnt lgkmcnt(0)')
    tree(a, range(16, 26, 2), n=2)
    a('''v_max_f32 v16, 0, v16
v_max_f32 v17, 0, v17
v_cvt_pk_bf16_f32 v8, v16, v17
ds_write_b32 v5, v8
s_waitcnt lgkmcnt(0)
ds_read_b128 v[16:19], v6
s_waitcnt lgkmcnt(0)''')
    a.gemv2(64, 16, 96, True)
    a('s_sub_u32 s40, s3, 5\ns_cmp_lt_u32 s40, 2\ns_cbranch_scc0 LB_y1')
    a.gemv2(128, 16, 192, True)
    a.label('LB_y1')
    a.pack2(8, 64)
    a.lanes_lt(16)
    a(f'global_store_dwordx4 v14, v[8:11], {WS} sc1')
    a.full()
    a('s_cbranch_scc0 LB_y2')
    a.pack2(20, 128)
    a.lanes_lt(16)
    a(f'global_store_dwordx4 v14, v[20:23], {WS} offset:768 sc1')
    a.full()
    a.label('LB_y2')
    a.stamp('h7pub')
    a('s_lshr_b32 s40, s46, 2\ns_cmp_eq_u32 s40, s3\ns_cbranch_scc0 Lfin\ns_cmp_lt_u32 s3, 5\ns_cbranch_scc0 Lfin\ns_and_b32 s40, s46, 3\ns_lshl_b32 s40, s40, 4\ns_mov_b64 s[42:43], 0xffff\ns_lshl_b64 exec, s[42:43], s40')
    a(f'v_lshlrev_b32 v4, 3, v0\nv_add_u32 v4, {H7Y}, v4')
    for i in range(1, 12): a(f'v_add_u32 v{16+i}, {5120*i}, v4')
    a(f'''v_mov_b32 v16, v4
v_lshlrev_b32 v5, 2, v0
v_lshlrev_b32 v30, 16, v38
v_and_b32 v31, 0xffff0000, v38''')
    def ld():
        for i in range(24): a(f'global_load_dwordx2 {vr(64+2*i,2)}, v{16 + i//2}, {WS} offset:{2560*(i%2)} sc1')
    a.poll(ld, lambda: a.chk_sent(range(64, 112), 4), sleep=P['sl_h7'], pre=P['pre_h7'])
    a.stamp('h7')
    tree(a, range(64, 112, 2), n=2)
    for i in range(2): a.rnd(64 + i, 64 + i)
    for i in range(2): a(f'v_mul_f32 v{64+i}, v{30+i}, v{64+i}')
    for i in range(2): a.rnd(64 + i, 64 + i)
    for i in range(2): a(f'v_add_f32 v{64+i}, v{40+i}, v{64+i}')
    a(f'v_cvt_pk_bf16_f32 v64, v64, v65\nglobal_store_dword v5, v64, {OUT}\ns_mov_b64 exec, -1')
    a.stamp('out')
    a('s_branch Lfin')
    a.label('LB_mr')
    a('s_cmp_lt_u32 s54, 124\ns_cbranch_scc0 Lfin\ns_sub_u32 s46, s54, 104\ns_add_u32 s45, s3, 3\ns_and_b32 s45, s45, 7\ns_cmp_lt_u32 s45, 5\ns_cbranch_scc0 LB_mrb')
    a(f'''s_lshl_b32 s40, s45, 7
v_lshl_add_u32 v4, v3, 3, s40      ; row = 128w + 8g
v_lshlrev_b32 v6, 1, v4
v_add_u32 v6, {MISC + 4096}, v6
v_mul_u32_u24 v4, 7680, v4
v_lshl_add_u32 v4, v2, 4, v4
s_lshl_b32 s40, s46, 8
s_add_u32 s40, s40, 2560
v_add_u32 v4, s40, v4
s_lshl_b32 s40, s45, 8
v_lshl_add_u32 v7, v1, 2, s40
global_load_dword v16, v7, {CC}
v_add_u32 v7, {MISC + 4096}, v7''')
    for i in range(4):
        a.load_rows(64 + 32*i, 4, 4, WMOD, 7680)
        if i < 3: a(f'v_add_u32 v4, {25*7680}, v4')
        if i == P['early_late'] - 1: gate2()
    a('s_waitcnt vmcnt(32)')
    a('v_lshlrev_b32 v32, 16, v16\nv_and_b32 v33, 0xffff0000, v16')
    a.silu(32, 32, 8); a.silu(33, 33, 8)
    a(f'v_perm_b32 v16, v33, v32, {PHI}\nds_write_b32 v7, v16\ns_waitcnt lgkmcnt(0)')
    for i in range(4): a(f'ds_read_b128 {vr(16+4*i,4)}, v6 offset:{64*i}')
    a('s_waitcnt lgkmcnt(0)')
    a(f'''v_cmp_eq_u32 s[42:43], 1, v3
v_lshlrev_b32 v4, 5, v2
v_lshl_add_u32 v4, v3, 4, v4
s_lshl_b32 s40, s45, 9
s_add_u32 s40, s40, {MISC}
v_add_u32 v4, s40, v4''')
    for i in range(4):
        a(f's_waitcnt vmcnt({24 - 8*i})')
        a.perm_block(192, 64 + 32*i)
        a.gemv2(224, 16 + 4*i, 192, i == 0)
    a.stamp('late2')
    for i in range(4): a(f'v_cndmask_b32 v{8+i}, v{224+4*i}, v{224+4*(i+4)}, s[42:43]')
    a.lanes_lt(32)
    a('ds_write_b128 v4, v[8:11]')
    a.full()
    a.label('LB_mrb')
    a.bar()
    a.wave_is('eq', 2, 'Lfin')
    a(f'v_lshlrev_b32 v4, 3, v1\nv_add_u32 v4, {MISC}, v4')
    for i in range(5): a(f'ds_read_b64 {vr(16+2*i,2)}, v4 offset:{512*i}')
    a(f's_lshl_b32 s40, s46, 8\ns_add_u32 s40, s40, {MODR}\nv_lshl_add_u32 v4, v1, 2, s40\ns_waitcnt lgkmcnt(0)')
    tree(a, range(16, 26, 2), n=2)
    a('v_cvt_pk_bf16_f32 v8, v16, v17')
    a.san([8])
    for i in range(1, 4): a(f'v_mov_b32_dpp v{8+i}, v8 quad_perm:[{i},{i},{i},{i}] row_mask:0xf bank_mask:0xf')
    a.exec_mask(0x1111111111111111)
    a(f'global_store_dwordx4 v4, v[8:11], {WS} sc1')
    a.full()
    a.stamp('mrpub')
    a('s_branch Lfin')

LS1, LQ, LKEY, LEK, LWT, LWP, LFW, LKP = 0, 2816, 3328, 3840, 4096, 4608, 5120, 6144
LRP = LKP + 18432; LCC = LRP + 6144; LVP = LCC + 1024; LQF = LVP + 4608; LSR = LQF + 1024; LFL = LSR + 1536
def load_uk(a, base, off=128, lo=0, hi=8, v=4):
    if lo == hi: return
    a(f'''s_mul_i32 s40, s41, 192
s_lshl_b32 s42, s3, 5
s_add_u32 s40, s40, s42
s_add_u32 s40, s40, {lo}
v_lshl_add_u32 v{v}, v3, 3, s40
v_mul_u32_u24 v{v}, 12288, v{v}
s_mul_i32 s40, s47, 384
v_add_u32 v{v}, s40, v{v}
v_lshl_add_u32 v{v+1}, v2, 3, v{v}
v_lshl_add_u32 v{v}, v2, 4, v{v}''')
    for j in range(lo, hi):
        a(f'global_load_dwordx4 {vr(off+4*j,4)}, v{v}, {base} nt')
        a(f'global_load_dwordx2 {vr(off+32+2*j,2)}, v{v+1}, {base} offset:256 nt')
        if j < hi - 1: a(f'v_add_u32 v{v}, 12288, v{v}\nv_add_u32 v{v+1}, 12288, v{v+1}')
def perm12(a, dst, src=128):
    a.perm_block(dst, src, nreg=4); a.perm_block(dst + 32, src + 32, nreg=2)
def mfma12(a, D, A, F):
    for e in range(12): a(f'v_mfma_f32_16x16x32_bf16 {vr(D+4*e,4)}, {vr(A,4)}, {vr(F+4*e,4)}, 0')
def out12_prep(a, v, lbase):
    a(f's_mul_i32 s40, s3, 768\ns_add_u32 s40, s40, {lbase}\nv_lshl_add_u32 v{v}, v2, 5, s40\nv_lshl_add_u32 v{v+1}, v2, 4, s40')
def out12(a, D, o, v):
    for e in range(12): a(f'v_add_f32 v{o+e}, v{D+4*e}, v{D+4*e+1}')
    a.lanes_lt(16)
    a(f'ds_write_b128 v{v}, {vr(o,4)}\nds_write_b128 v{v}, {vr(o+4,4)} offset:16\nds_write_b128 v{v+1}, {vr(o+8,4)} offset:512')
    a.full()
def weights_out(a, val, lbase, k):
    a(f'''v_cvt_pk_bf16_f32 v8, v{val}, v{val}
ds_write_b16 v4, v8 offset:{lbase + 128*k}
v_and_b32 v9, 0xffff0000, v8
v_sub_f32 v9, v{val}, v9
v_cvt_pk_bf16_f32 v9, v9, v9
ds_write_b16 v4, v9 offset:{lbase + 256 + 128*k}''')

def role_A(a):
    P = a.P
    a(f'''s_and_b32 s44, s2, 7
s_lshl_b32 s44, s44, 4
s_bfe_u32 s40, s2, 0x40003
s_add_u32 s44, s44, s40
s_mul_i32 s39, s44, 205
s_lshr_b32 s39, s39, 11          ; kp = a/10
s_mul_i32 s40, s39, 10
s_sub_u32 s38, s44, s40          ; mg = a%10
s_lshr_b32 s47, s44, 2           ; head
s_and_b32 s41, s44, 3            ; quarter
v_mov_b32 v12, 0
s_mul_i32 s40, s39, 80
s_lshl_b32 s42, s3, 4
s_add_u32 s40, s40, s42
v_lshl_add_u32 v5, v3, 2, s40      ; row0
v_mul_u32_u24 v4, 7680, v5
v_lshrrev_b32 v6, 3, v2
v_mul_u32_u24 v6, 1152, v6
v_lshl_add_u32 v6, v2, 4, v6
s_lshl_b32 s42, s38, 7
v_add3_u32 v4, v4, v6, s42
v_lshlrev_b32 v5, 1, v5
s_waitcnt lgkmcnt(0)''')
    a.stamp('start')
    a.wave_is('lt', 5, 'LA_nos1')
    a('s_cmp_lt_u32 s44, 80\ns_cbranch_scc0 LA_nos1')
    a(f'global_load_dwordx2 v[32:33], v5, {CC}')
    a.load_rows(16, 4, 4, WMOD, 7680, rows=4)
    a(f'global_load_dword v15, v12, {WS} sc1')
    U1 = P['uk1']
    load_uk(a, WUK, hi=U1)
    a.stamp('x1')
    a('s_branch LA2')

def role_A2(a):
    P = a.P; U1 = P['uk1']
    a.label('LA2')
    consts(a)
    a(f'''s_waitcnt vmcnt({5+2*U1})
v_lshlrev_b32 v36, 16, v32
v_and_b32 v37, 0xffff0000, v32
v_lshlrev_b32 v38, 16, v33
v_and_b32 v39, 0xffff0000, v33''')
    a.stamp('x2')
    for i in range(4): a.silu(36 + i, 36 + i, 8)
    a.stamp('x3')
    a(f'''v_perm_b32 v34, v37, v36, {PHI}
v_perm_b32 v35, v39, v38, {PHI}
v_cmp_eq_u32 vcc, 1, v3
v_lshlrev_b32 v4, 5, v2
v_lshl_add_u32 v4, v3, 4, v4
s_lshl_b32 s40, s3, 9
v_add_u32 v4, s40, v4''')
    a(f's_waitcnt vmcnt({1+2*U1})')
    a.stamp('x4')
    for e in range(8):
        for k in range(2):
            a(f'v_perm_b32 v{40+2*e+k}, v{16+(2*k+1)*4+(e>>1)}, v{16+2*k*4+(e>>1)}, {PHI if e & 1 else PLO}')
        a(f'v_mfma_f32_16x16x16_bf16 {vr(64+4*e,4)}, v[34:35], {vr(40+2*e,2)}, 0')
    for i in range(4): a(f'v_cndmask_b32 v{8+i}, v{64+4*i}, v{64+4*(i+4)}, vcc')
    a.lanes_lt(32)
    a('ds_write_b128 v4, v[8:11]')
    a.full()
    a(f's_waitcnt vmcnt({2*U1})')
    a.get_tag()
    a('s_branch LA_b1')
    a.label('LA_nos1')
    a('s_getreg_b32 s16, hwreg(HW_REG_XCC_ID, 0, 4)' if False else 's_nop 0')
    a(f'global_load_dword v15, v12, {WS} sc1')
    a.wave_is('lt', 6, 'LA_nos1b')
    load_uk(a, WUK, hi=U1)
    a.label('LA_nos1b')
    consts(a)
    a.wave_is('eq', 7, 'LA_not7')
    neg1(a)
    a(f'''s_mul_i32 s40, s41, 12288
s_lshr_b32 s42, s47, 4
s_lshl_b32 s42, s42, 10
s_add_u32 s40, s40, s42
s_and_b32 s42, s47, 15
s_lshl_b32 s42, s42, 6
s_add_u32 s40, s40, s42
s_add_u32 s40, s40, {H2}
v_lshrrev_b32 v4, 2, v1
v_min_u32 v4, 5, v4
v_lshlrev_b32 v4, 11, v4
v_and_b32 v5, 3, v1
v_lshl_add_u32 v4, v5, 4, v4
v_add_u32 v4, s40, v4
global_store_dwordx4 v4, v[8:11], {WS} sc1''')
    a.ready_publish()
    a(f'''s_mul_i32 s40, s44, 3072
s_add_u32 s40, s40, {H4S}
v_lshl_add_u32 v4, v1, 4, s40
global_store_dwordx4 v4, v[8:11], {WS} sc1
global_store_dwordx4 v4, v[8:11], {WS} offset:1024 sc1
global_store_dwordx4 v4, v[8:11], {WS} offset:2048 sc1
s_lshl_b32 s40, s47, 13
s_lshl_b32 s42, s41, 9
s_add_u32 s40, s40, s42
s_add_u32 s40, s40, {SIDE}
v_lshrrev_b32 v4, 5, v1
v_lshlrev_b32 v4, 11, v4
v_and_b32 v5, 31, v1
v_lshl_add_u32 v4, v5, 4, v4
v_add_u32 v4, s40, v4
v_add_u32 v5, 4096, v4
global_store_dwordx4 v4, v[8:11], {WS} sc1
global_store_dwordx4 v5, v[8:11], {WS} sc1
s_mul_i32 s40, s44, 6144
s_add_u32 s40, s40, {H4G}
v_lshl_add_u32 v4, v1, 4, s40
v_add_u32 v5, 3072, v4
global_store_dwordx4 v4, v[8:11], {WS} offset:0 sc1
global_store_dwordx4 v4, v[8:11], {WS} offset:1024 sc1
global_store_dwordx4 v4, v[8:11], {WS} offset:2048 sc1
global_store_dwordx4 v5, v[8:11], {WS} offset:0 sc1
global_store_dwordx4 v5, v[8:11], {WS} offset:1024 sc1
global_store_dwordx4 v5, v[8:11], {WS} offset:2048 sc1
s_mul_i32 s40, s47, 3072
s_lshl_b32 s42, s41, 8
s_add_u32 s40, s40, s42
s_add_u32 s40, s40, {H5}
v_min_u32 v4, 2, v3
v_lshlrev_b32 v4, 10, v4
v_lshl_add_u32 v4, v2, 4, v4
v_add_u32 v4, s40, v4
global_store_dwordx4 v4, v[8:11], {WS} sc1''')
    a('s_branch LA_b1')
    a.label('LA_not7')
    a.wave_is('eq', 6, 'LA_b1')
    code_warm(a)
    if P['tlb']:
        a(f'''s_mov_b32 s50, 196608
v_mul_lo_u32 v4, v1, s50
global_load_dword v14, v4, {CKV} nt
v_lshlrev_b32 v4, 17, v1
global_load_dword v14, v4, {WS} offset:64 nt''')
    a.label('LA_b1')
    a(f'''v_lshlrev_b32 v4, 2, v1
s_lshl_b32 s40, s38, 13
s_lshl_b32 s42, s39, 7
s_add_u32 s40, s40, s42
s_add_u32 s40, s40, {H1}
v_lshrrev_b32 v5, 3, v1
v_lshlrev_b32 v5, 10, v5
v_and_b32 v6, 7, v1
v_lshl_add_u32 v5, v6, 4, v5
v_add_u32 v5, s40, v5
v_mov_b32 v9, {TAG}
v_mov_b32 v11, {TAG}''')
    a('s_cmp_lt_u32 s44, 80\ns_cbranch_scc0 LA_u80')
    a.bar()
    a.wave_is('eq', 0, 'LA_uk0')
    for w in range(5): a(f'ds_read2st64_b32 {vr(16+2*w,2)}, v4 offset0:{2*w} offset1:{2*w+1}')
    a(f'''s_waitcnt lgkmcnt(0)
v_add_f32 v16, v16, v18
v_add_f32 v17, v17, v19
v_add_f32 v20, v20, v22
v_add_f32 v21, v21, v23
v_add_f32 v16, v16, v20
v_add_f32 v17, v17, v21
v_add_f32 v8, v16, v24
v_add_f32 v10, v17, v25
global_store_dwordx4 v5, v[8:11], {WS} sc1''')
    a.stamp('h1pub')
    a.label('LA_uk0')
    a('s_barrier\ns_branch LA_uk')
    a.label('LA_u80')
    if P['sl_a80']: a(f's_sleep {P["sl_a80"]}')
    a.label('LA_uk')
    a.wave_is('lt', 6, 'LA_nouk')
    load_uk(a, WUK, lo=U1)
    a.label('LA_nouk')
    a(f'''s_mul_i32 s40, s47, 15360
s_mul_i32 s42, s3, 192
s_add_u32 s40, s40, s42
s_add_u32 s40, s40, {H1B}
v_min_u32 v5, 11, v2
v_mul_u32_u24 v4, 1536, v3
v_lshl_add_u32 v4, v5, 4, v4
v_add_u32 v4, s40, v4
v_add_u32 v7, 6144, v4
v_add_u32 v13, 12288, v4
s_mul_i32 s40, s3, 48
v_and_b32 v8, 1, v3
v_lshl_add_u32 v5, v5, 1, v8
v_lshl_add_u32 v5, v5, 1, s40      ; (24w+2dp+(g&1))*2
v_lshlrev_b32 v40, 5, v2
v_lshlrev_b32 v41, 4, v2
v_lshlrev_b32 v42, 1, v5
s_mul_i32 s40, s41, 6
s_add_u32 s40, s40, s3
s_lshl_b32 s40, s40, 11
s_lshr_b32 s42, s47, 4
s_lshl_b32 s42, s42, 10
s_add_u32 s40, s40, s42
s_and_b32 s42, s47, 15
s_lshl_b32 s42, s42, 6
s_add_u32 s40, s40, s42
s_add_u32 s40, s40, {H2}
v_lshl_add_u32 v6, v3, 4, v2
v_add_u32 v6, s40, v6
s_waitcnt vmcnt(0)''')
    a.get_tag()
    a(f'v_mov_b32 v24, 0\nv_mov_b32 v25, {TAG}\nv_mov_b32 v26, 0\nv_mov_b32 v27, {TAG}')
    a.stamp('uk')
    def U(j, k): n = j*6 + k; return 64 + 2*n if n < 32 else 176 + 2*(n - 32)
    def unp():
        a.wave_is('lt', 6, 'LA_nounp')
        for j in range(8):
            for k in range(6):
                src = 128 + 4*j + k if k < 4 else 160 + 2*j + (k - 4)
                a(f'v_lshlrev_b32 v{U(j,k)}, 16, v{src}\nv_and_b32 v{U(j,k)+1}, 0xffff0000, v{src}')
        a.label('LA_nounp')
    if P['probe_h1b']: a.probe(7, 8, off=4, sleep=P['sl_pr'], post=P['post_h1b'], tag=True, mask=0x0001000100010001)
    def ld():
        a(f'global_load_dwordx4 v[16:19], v4, {WS} sc1\nglobal_load_dwordx4 v[20:23], v7, {WS} sc1')
        a.lanes_lt(32)
        a(f'global_load_dwordx4 v[24:27], v13, {WS} sc1')
        a.full()
    a.poll(ld, lambda: a.chk_tag(range(17, 28, 2), 8), sleep=P['sl_h1b'], mid=unp)
    a.stamp('h1b')
    a('s_setprio 3')
    a(f'''v_add_f32 v16, v16, v20
v_add_f32 v18, v18, v22
v_add_f32 v16, v16, v24
v_add_f32 v18, v18, v26
v_permlane16_swap_b32 v16, v18
v_add_f32 v16, v16, v18
v_mov_b32 v18, v16
v_permlane32_swap_b32 v16, v18
v_add_f32 v16, v16, v18
v_cvt_pk_bf16_f32 v16, v16, v16
v_and_b32 v17, 0xffff0000, v16
ds_write_b32 v42, v17 offset:{LQF}
ds_write_b16 v5, v16 offset:{LQ}''')
    a.bar()
    a.wave_is('lt', 6, 'LA_nos3')
    a(f'ds_read_b128 v[44:47], v40 offset:{LQF}\nds_read_b128 v[48:51], v40 offset:{LQF+16}\nds_read_b128 v[52:55], v41 offset:{LQF+512}')
    for k in range(6):
        if k in (0, 2, 4): a(f's_waitcnt lgkmcnt({2 - k//2})')
        for j in range(8):
            if k == 0: a(f'v_pk_mul_f32 {vr(208+2*j,2)}, {vr(U(j,k),2)}, {vr(44+2*k,2)}')
            else: a(f'v_pk_fma_f32 {vr(208+2*j,2)}, {vr(U(j,k),2)}, {vr(44+2*k,2)}, {vr(208+2*j,2)}')
    for j in range(8): a(f'v_add_f32 v{24+j}, v{208+2*j}, v{209+2*j}')
    for i in range(4): a(f'v_add_f32_dpp v{32+i}, v{24+i}, v{24+i} row_ror:8 row_mask:0xf bank_mask:0x3')
    for i in range(4): a(f'v_add_f32_dpp v{32+i}, v{28+i}, v{28+i} row_ror:8 row_mask:0xf bank_mask:0xc')
    for i in range(2): a(f'v_add_f32_dpp v{36+i}, v{32+i}, v{32+i} row_shl:4 row_mask:0xf bank_mask:0x5')
    for i in range(2): a(f'v_add_f32_dpp v{36+i}, v{34+i}, v{34+i} row_shr:4 row_mask:0xf bank_mask:0xa')
    for qp in ('[2,3,0,1]', '[1,0,3,2]'):
        for i in range(2): a(f'v_add_f32_dpp v{36+i}, v{36+i}, v{36+i} quad_perm:{qp} row_mask:0xf bank_mask:0xf')
    a('v_cvt_pk_bf16_f32 v36, v36, v37')
    a.san([36])
    for i in range(1, 4): a(f'v_mov_b32_dpp v{36+i}, v36 row_shl:{4*i} row_mask:0xf bank_mask:0xf')
    a.exec_mask(0x0001000100010001)
    a(f'global_store_dwordx4 v6, v[36:39], {WS} sc1')
    a.full()
    a.stamp('h2pub')
    a('s_setprio 0')
    a('s_barrier')
    perm12(a, 64)
    if P['sl_uv']: a(f's_sleep {P["sl_uv"]}')
    load_uk(a, WUV)
    a('s_waitcnt vmcnt(0)')
    perm12(a, 176)
    a.stamp('wuv')
    a('s_branch LA_s3d')
    a.label('LA_nos3')
    a(f'v_lshlrev_b32 v4, 2, v1\nds_write_b32 v4, v12 offset:{LWP}\nv_and_b32 v4, 12, v4\nds_write_b32 v4, v12 offset:{LFL}\ns_setprio 0')
    a.bar()
    if P['pv_local'] and P['pf_pol'] < 3:
        if P['sl_pf']: a(f's_sleep {P["sl_pf"]}')
        a(f'''s_mul_i32 s40, s44, {CP}
s_and_b32 s42, s3, 1
s_mul_i32 s42, s42, {200*128}
s_add_u32 s40, s40, s42
s_add_u32 s40, s40, {H4}
v_lshl_add_u32 v4, v1, 7, s40''')
        for i in range(4):
            if i == 3: a.lanes_lt(8)
            a(f'global_load_dword v14, v4, {WS} {["nt", "", "sc1"][P["pf_pol"]]}')
            if i < 3: a('v_add_u32 v4, 8192, v4')
        a.full()
    a.label('LA_s3d')
    def fl_wait(i, lab, n=1): a.lds_wait(12, n, off=LFL + 4*i)
    def fl_set(i): a(f'v_mov_b32 v8, 1\nds_write_b32 v12, v8 offset:{LFL + 4*i}')
    def fl_add(i): a(f'v_mov_b32 v8, 1\ns_mov_b64 exec, 1\nds_add_u32 v12, v8 offset:{LFL + 4*i}\ns_mov_b64 exec, -1')
    def esel(sh, probe):
        a(f'''s_lshl_b32 s40, {sh}, 11
s_add_u32 s40, s40, {H3}
v_lshl_add_u32 v4, v1, 4, s40
s_and_b32 s42, s47, 15
s_lshl_b32 s42, s42, 7
s_add_u32 s42, s42, {DB3}
v_lshl_add_u32 v5, v1, 11, s42
s_mov_b32 s48, {f2u(-1/64):#x}
v_mov_b32 v24, {NEGINF:#x}''')
        if probe: a.probe(5, 8, off=4, sleep=P['sl_pr3'], post=P['post_h3'], tag=True, mask=0xff)
        a.poll(lambda: a(f'global_load_dwordx4 v[28:31], v4, {WS} sc1\nglobal_load_dwordx4 v[32:35], v4, {WS} offset:1024 sc1'),
               lambda: a.chk_tag(range(29, 36, 2), 8), sleep=P['sl_h3'])
        a.stamp('h3')
        a('v_max_f32 v20, v28, v32\nv_mov_b32 v16, v28\nv_mov_b32 v18, v32')
        a.wave_red('v_max_f32', 20, 21)
        a(f'''v_and_b32 v21, 0x7f800000, v20
v_fma_f32 v20, v21, s48, v20
v_cmp_ge_f32 s[50:51], v16, v20
v_cmp_ge_f32 s[52:53], v18, v20
s_bcnt1_i32_b64 s49, s[50:51]
v_mbcnt_lo_u32_b32 v22, s50, 0
v_mbcnt_hi_u32_b32 v22, s51, v22
v_mov_b32 v23, s49
v_mbcnt_lo_u32_b32 v23, s52, v23
v_mbcnt_hi_u32_b32 v23, s53, v23
v_cmp_gt_u32 vcc, 4, v22
s_and_b64 s[50:51], s[50:51], vcc
v_cmp_gt_u32 vcc, 4, v23
s_and_b64 s[52:53], s[52:53], vcc''')
    def l1w():
        a(f'''s_lshr_b32 s40, s44, 4
s_lshl_b32 s42, 0x01010101, s40
s_mov_b32 s43, s42
v_cndmask_b32 v36, 15, v22, s[50:51]
v_cndmask_b32 v38, 15, v23, s[52:53]
v_mov_b32 v37, {TAG}
v_mov_b32 v39, {TAG}
s_lshl_b32 s40, s40, 12
s_lshl_b32 s49, s46, 3
s_add_u32 s40, s40, s49
s_add_u32 s40, s40, {MB}
v_lshrrev_b32 v5, 3, v1
v_lshl_add_u32 v4, v5, 8, s40
s_mov_b64 exec, s[42:43]''')
        a.st_local('s[38:39]', f'global_store_dwordx2 v4, v[36:37], {WS}', f'global_store_dwordx2 v4, v[38:39], {WS} offset:2048')
        a(f'''s_mov_b64 exec, -1
s_andn2_b64 s[50:51], s[42:43], s[50:51]
s_andn2_b64 s[52:53], s[42:43], s[52:53]
v_cndmask_b32 v16, v24, v16, s[50:51]
v_cndmask_b32 v18, v24, v18, s[52:53]
v_max_f32 v20, v16, v18
s_and_b32 s40, s3, 1
s_mul_i32 s49, s40, 96
v_lshrrev_b32 v5, 3, v1
v_lshl_add_u32 v4, v5, 1, s49
s_lshl_b32 s49, s40, 6
v_lshl_add_u32 v5, v5, 2, s49
s_lshl_b32 s49, s40, 2
v_mov_b32 v6, s49''')
        a.wave_red('v_max_f32', 20, 21)
        a(f'''v_sub_f32 v16, v16, v20
v_sub_f32 v18, v18, v20
v_mul_f32 v16, s56, v16
v_mul_f32 v18, s56, v18
v_exp_f32 v16, v16
v_exp_f32 v18, v18
ds_write_b32 v6, v20 offset:{LFW+96}
v_cvt_pk_bf16_f32 v8, v16, v18
v_lshlrev_b32 v9, 16, v8
v_and_b32 v10, 0xffff0000, v8
v_sub_f32 v9, v16, v9
v_sub_f32 v10, v18, v10
v_cvt_pk_bf16_f32 v9, v9, v10
s_mov_b64 exec, s[42:43]
ds_write_b16 v4, v8 offset:{LWP}
ds_write_b16_d16_hi v4, v8 offset:{LWP+16}
ds_write_b16 v4, v9 offset:{LWP+128}
ds_write_b16_d16_hi v4, v9 offset:{LWP+144}
ds_write_b32 v5, v16 offset:{LWT}
ds_write_b32 v5, v18 offset:{LWT+32}
s_mov_b64 exec, -1''')
        fl_add(1)
    a(f'''s_getreg_b32 s16, hwreg(HW_REG_XCC_ID, 0, 4)
s_and_b32 s40, s2, 7
s_lshl_b32 s40, s40, 4
s_add_u32 s40, s40, {READY}
v_and_b32 v4, 31, v1
v_lshl_add_u32 v4, v4, 7, s40''')
    a.poll(lambda: a(f'global_load_dwordx2 v[8:9], v4, {WS} sc1'), lambda: a.chk_tag([8], 10), sleep=4)
    a('v_cmp_ne_u32 s[38:39], s16, v9')
    a('s_and_b32 s46, s44, 15\ns_lshl_b32 s46, s46, 1\ns_and_b32 s40, s3, 1\ns_add_u32 s46, s46, s40')
    a.wave_is('ge', 6, 'LA_n6')
    esel('s46', P['probe_h3'])
    l1w()
    a.label('LA_n6')
    a.wave_is('eq', 5, 'LA_noh3')
    esel('s47', P['probe_h3'])
    a(f'''v_and_b32 v17, 63, v30
v_and_b32 v19, 63, v34
v_lshl_add_u32 v17, v1, 6, v17
v_lshl_add_u32 v19, v1, 6, v19
v_add_u32 v19, 4096, v19
v_lshlrev_b32 v4, 2, v1
v_mov_b32 v25, 999
v_add_u32 v26, 64, v1
v_lshlrev_b32 v22, 2, v22
v_lshlrev_b32 v23, 2, v23
s_mov_b64 exec, 15
ds_write_b32 v4, v17 offset:{LEK}
ds_write_b32 v4, v25 offset:{LEK+16}
s_mov_b64 exec, s[50:51]
ds_write_b32 v22, v17 offset:{LEK}
ds_write_b32 v22, v1 offset:{LEK+16}
s_mov_b64 exec, s[52:53]
ds_write_b32 v23, v19 offset:{LEK}
ds_write_b32 v23, v26 offset:{LEK+16}
s_mov_b64 exec, -1''')
    a.label('LA_noh3')
    a(f'''v_and_b32 v4, 3, v2
v_lshlrev_b32 v4, 2, v4
s_mul_i32 s40, s41, 384
s_lshl_b32 s42, s3, 6
s_add_u32 s42, s40, s42
v_lshl_add_u32 v6, v3, 4, s42
v_and_b32 v7, 31, v1
v_lshl_add_u32 v7, v7, 1, s42
s_movk_i32 s55, 1536''')
    a.bar()
    a.stamp('b3')
    a('s_setprio 3')
    a.wave_is('lt', 6, 'LA_noe')
    a(f'''ds_read_b32 v5, v4 offset:{LEK}
ds_read_b128 v[8:11], v12 offset:{LEK}
s_waitcnt lgkmcnt(1)
v_mad_u32_u24 v5, v5, s55, v6
global_load_dwordx4 v[224:227], v5, {CKV} {'nt' if P['e_nt'] else ''}
s_waitcnt lgkmcnt(0)''')
    for j in range(4): a(f'v_mad_u32_u24 v{8+j}, v{8+j}, s55, v7\nglobal_load_ushort v{232+j}, v{8+j}, {CKV} {"nt" if P["e_nt"] else ""}')
    a(f's_mul_i32 s40, s3, 3072\ns_add_u32 s40, s40, {LKP}\nv_lshl_add_u32 v4, v2, 4, s40\ns_waitcnt vmcnt(4)')
    a.stamp('erow')
    mfma12(a, 16, 224, 64)
    a.lanes_lt(16)
    for e in range(12): a(f'ds_write_b128 v4, {vr(16+4*e,4)} offset:{256*e}')
    a.full()
    a('s_branch LA_b4')
    a.label('LA_noe')
    a.label('LA_g')
    a(f'''s_lshl_b32 s40, s44, 10
s_add_u32 s40, s40, {AUX}
v_lshl_add_u32 v10, v1, 4, s40
s_and_b32 s42, s3, 1
s_mul_i32 s40, s44, {CP}
s_mul_i32 s43, s42, 768
s_add_u32 s40, s40, s43
s_add_u32 s40, s40, {H4}
v_and_b32 v9, 1, v3
v_mul_u32_u24 v4, {8*JP}, v9
v_lshrrev_b32 v11, 1, v3
v_mul_u32_u24 v5, 1536, v11
v_add3_u32 v4, v4, v5, s40
v_lshl_add_u32 v4, v2, 4, v4
v_add_u32 v5, {2*JP}, v4
v_add_u32 v6, {4*JP}, v4
v_add_u32 v7, {6*JP}, v4
v_cmp_eq_u32 s[54:55], 1, v9
s_and_b32 s40, s44, 15
s_mul_i32 s40, s40, 49152
s_lshr_b32 s43, s44, 4
s_mul_i32 s49, s43, 768
s_add_u32 s40, s40, s49
s_add_u32 s40, s40, {H4G}
v_mul_u32_u24 v55, 24576, v11
v_add_u32 v55, s40, v55
s_mul_i32 s40, s42, 384
v_lshl_add_u32 v56, v2, 3, s40
v_lshl_add_u32 v56, v9, 2, v56
s_movk_i32 s49, 683
s_movk_i32 s48, 5376''')
    for k in range(3):
        a(f'''v_add_u32 v57, {128*k}, v56
v_mul_u32_u24 v58, s49, v57
v_lshrrev_b32 v58, 17, v58
v_lshl_add_u32 v57, v57, 2, v55
v_mad_u32_u24 v{52+k}, v58, s48, v57''')
    a(f'''v_lshrrev_b32 v57, 3, v2
v_and_b32 v58, 1, v2
v_lshl_add_u32 v57, v58, 1, v57
v_lshlrev_b32 v57, 6, v57
v_lshl_add_u32 v57, v3, 4, v57
v_lshrrev_b32 v58, 2, v1
v_lshlrev_b32 v58, 2, v58          ; j*4
s_and_b32 s40, s44, 15
s_lshl_b32 s40, s40, 8
s_lshl_b32 s43, s43, 4
s_add_u32 s40, s40, s43
s_add_u32 s40, s40, {HDR}
v_lshl_add_u32 v59, v9, 7, s40
v_lshlrev_b32 v9, 2, v9''')
    a.poll(lambda: a(f'global_load_dwordx4 v[28:31], v10, {WS} sc1'), lambda: a.chk_tag([29, 31], 8), sleep=P['sl_aux'])
    a.stamp('aux')
    for k in range(3):
        for jj in range(8):
            a(f'global_load_dwordx4 {vr(64+32*k+4*jj,4)}, v{4 + (jj >> 1)}, {WS} offset:{(jj & 1)*JP + 256*k} {["sc1", "", "sc0", "nt"][P["g_pol"]]}')
    fl_wait(1, 'x', 2)
    a(f'''ds_read_b128 v[48:51], v57 offset:{LWP}
ds_read2_b32 v[32:33], v58 offset0:{LWT//4 - 1024} offset1:{LWT//4 - 1024 + 16}
ds_read_b32 v60, v9 offset:{LFW+96}
s_waitcnt lgkmcnt(0)
v_mul_f32 v32, v32, v28
v_mul_f32 v33, v33, v30
v_mov_b32 v61, {TAG}
v_mov_b32 v63, {TAG}'''.replace('v58 offset0', 'v62 offset0').replace('ds_read_b128 v[48:51]', 'v_add_u32 v62, 4096, v58\nds_read_b128 v[48:51]'))
    a.row_red('v_add_f32', [32, 33])
    a(f'''v_permlane16_swap_b32 v32, v33
v_add_f32 v32, v32, v33
v_mov_b32 v33, v32
v_permlane32_swap_b32 v32, v33
v_add_f32 v32, v32, v33
v_mul_f32 v62, 0x3e800000, v32
s_waitcnt vmcnt(16)''')
    def fin(k):
        d = 160 + 32*k; o = 28 + 4*k
        for e in range(8): a(f'v_add_f32 v{d+4*e}, v{d+4*e}, v{d+4*e+1}')
        for t in range(4): a(f'v_cndmask_b32 v{o+t}, v{d+4*t}, v{d+4*(t+4)}, s[54:55]')
        a(f'global_store_dwordx4 v{52+k}, {vr(o,4)}, {WS} sc1')
    for k in range(3):
        if k == 1: a('s_waitcnt vmcnt(8)')
        if k == 2:
            a('s_waitcnt vmcnt(0)'); a.stamp('gath'); fl_add(1)
            a(f's_cmp_eq_u32 s3, 6\ns_cbranch_scc0 LA_nh\ns_mov_b64 exec, 0x10001\nglobal_store_dwordx4 v59, v[60:63], {WS} sc1\ns_mov_b64 exec, -1\nLA_nh:')
        for e in range(8):
            f = 16 + 4*(e % 3)
            src = 64 + 32*k
            for kk in range(4):
                a(f'v_perm_b32 v{f+kk}, v{src+(2*kk+1)*4+(e>>1)}, v{src+2*kk*4+(e>>1)}, {PHI if e & 1 else PLO}')
            a(f'v_mfma_f32_16x16x32_bf16 {vr(160+32*k+4*e,4)}, v[48:51], {vr(f,4)}, 0')
    for k in range(3): fin(k)
    a.stamp('gpub')
    a.wave_is('eq', 6, 'LA_w7')
    a('s_branch LA_w6')
    a.label('LA_b4')
    a(f'v_mov_b32 v8, 1\ns_mov_b64 exec, 1\nds_add_u32 v12, v8 offset:{LFL}\ns_mov_b64 exec, -1')
    a.wave_is('lt', 3, 'LA_nopub')
    a(f'v_lshlrev_b32 v6, 4, v0\nv_add_u32 v7, {LKP}, v6\ns_mul_i32 s40, s44, 3072\ns_add_u32 s40, s40, {H4S}\nv_add_u32 v6, s40, v6')
    fl_wait(0, 'LA_f0', 6)
    a.stamp('b4')
    for w in range(6): a(f'ds_read_b128 {vr(16+4*w,4)}, v7 offset:{3072*w}')
    a('s_waitcnt lgkmcnt(0)')
    tree(a, range(16, 40, 4), n=4)
    a.st_local('s[38:39]', f'global_store_dwordx4 v6, v[16:19], {WS}')
    a.stamp('kpub')
    a('s_branch LA_l2')
    a.label('LA_nopub')
    a.wave_is('eq', 5, 'LA_l2')
    a(f'''s_mul_i32 s40, s47, 12288
s_add_u32 s40, s40, {H4S}
v_lshl_add_u32 v4, v1, 4, s40
v_add_u32 v5, 3072, v4
v_add_u32 v6, 6144, v4
v_add_u32 v7, 9216, v4
v_lshl_add_u32 v8, v2, 3, v3
v_lshlrev_b32 v8, 1, v8
v_lshl_add_u32 v9, v2, 2, v3
v_lshlrev_b32 v9, 1, v9
v_lshlrev_b32 v10, 2, v3
ds_read_u16 v64, v8 offset:{LQ}
ds_read_u16 v65, v8 offset:{LQ+8}
ds_read_u16 v66, v9 offset:{LQ+256}
ds_read_b32 v67, v10 offset:{LEK+16}
s_sleep {P['pre_h4s']}''')
    def ld():
        for qq in range(4):
            for k in range(3): a(f'global_load_dwordx4 {vr(16+(qq*3+k)*4,4)}, v{4+qq}, {WS} offset:{1024*k} sc1')
    a.poll(ld, lambda: a.chk_sent(range(16, 64), 9), sleep=P['sl_h4s'])
    a.stamp('h4s')
    a('s_waitcnt lgkmcnt(0)\nv_cmp_gt_u32 s[52:53], 0x80, v67' if False else 's_waitcnt lgkmcnt(0)\ns_movk_i32 s40, 128\nv_cmp_gt_u32 s[52:53], s40, v67')
    for k in range(3): a(f'v_lshlrev_b32 v{64+k}, 16, v{64+k}')
    tree(a, (16, 28, 40, 52), n=12)
    for i in range(12): a.rnd(16 + i, 16 + i)
    for j in range(4):
        a(f'v_mul_f32 v{68+j}, v{16+j}, v64\nv_fmac_f32 v{68+j}, v{20+j}, v65\nv_fmac_f32 v{68+j}, v{24+j}, v66')
    a.row_red('v_add_f32', [68, 69, 70, 71])
    a.xrow_tr4(68)
    a.rnd(68, 68)
    a('v_mul_f32 v68, s59, v68')
    a.rnd(68, 68)
    a(f'v_mov_b32 v21, {NEGINF:#x}\nv_cndmask_b32 v68, v21, v68, s[52:53]\nds_write_b32 v10, v68 offset:{LFW+112}')
    fl_add(2)
    a('s_branch LA_l2')
    a.label('LA_w7')
    a('v_lshlrev_b32 v10, 2, v3\nv_lshlrev_b32 v11, 3, v3')
    a(f'''s_lshl_b32 s40, s47, 7
s_add_u32 s40, s40, {HDR}
v_and_b32 v5, 7, v1
v_lshl_add_u32 v4, v5, 4, s40
v_lshlrev_b32 v5, 2, v5''')
    if P['pre_hdr']: a(f's_sleep {P["pre_hdr"]}')
    a.poll(lambda: a(f'global_load_dwordx4 v[236:239], v4, {WS} sc1'), lambda: a.chk_tag([237, 239], 8), sleep=P['sl_hdr'])
    a.stamp('hdr')
    fl_wait(2, 'LA_f2', 2)
    a(f'''ds_read_b64 v[228:229], v11 offset:{LFW+64}
ds_read_b32 v68, v10 offset:{LFW+112}
s_waitcnt lgkmcnt(0)
v_max3_f32 v69, v68, v228, v236''')
    a.wave_red('v_max_f32', 69, 70)
    a(f'''v_sub_f32 v68, v68, v69
v_sub_f32 v228, v228, v69
v_sub_f32 v236, v236, v69
v_mul_f32 v68, s56, v68
v_mul_f32 v228, s56, v228
v_mul_f32 v236, s56, v236
v_exp_f32 v68, v68
v_exp_f32 v228, v228
v_exp_f32 v236, v236
v_fma_f32 v70, v228, v229, v68
v_mul_f32 v71, v236, v238
v_fmac_f32 v71, 0.5, v70''')
    a.wave_red('v_add_f32', 71, 70)
    a(f'v_mul_f32 v70, {f2u(0.125):#x}, v71')
    a.recip(71, 70, 72)
    a.div(73, 68, 70, 71, 72)
    a.rnd(73, 73)
    a(f'''v_mul_f32 v74, v236, v71
v_mul_f32 v75, v228, v71
ds_write_b32 v10, v73 offset:{LFW}
ds_write_b32 v10, v75 offset:{LFW+16}
ds_write_b32 v5, v74 offset:{LFW+32}''')
    fl_set(3)
    a('s_branch LA_nov')
    a.label('LA_w6')
    a(f'''v_lshlrev_b32 v10, 2, v3
ds_read_b32 v11, v10 offset:{LEK+16}
s_lshl_b32 s40, s47, 13
s_lshl_b32 s42, s41, 9
s_add_u32 s40, s40, s42
s_add_u32 s40, s40, {SIDE}
v_lshl_add_u32 v6, v3, 11, s40
v_lshl_add_u32 v4, v2, 4, v6
v_lshl_add_u32 v5, v2, 3, v6
v_mul_u32_u24 v9, 384, v3
v_lshl_add_u32 v7, v2, 4, v9
v_lshl_add_u32 v9, v2, 3, v9
v_lshlrev_b32 v10, 3, v3
v_mov_b32 v24, {NEGINF:#x}
v_mov_b32 v26, 0
s_movk_i32 s40, 128
s_waitcnt lgkmcnt(0)
v_cmp_gt_u32 s[52:53], s40, v11''')
    for i in range(6): a(f'v_mov_b32 v{16+i}, 0')
    a('s_mov_b64 exec, s[52:53]')
    def ck():
        a.chk_sent(range(16, 22), 8)
        a(f'v_cmp_ne_u32 s[50:51], {TAG}, v25\ns_or_b64 vcc, vcc, s[50:51]\nv_cmp_ne_u32 s[50:51], {TAG}, v27\ns_or_b64 vcc, vcc, s[50:51]')
    a.poll(lambda: a(f'global_load_dwordx4 v[16:19], v4, {WS} sc1\nglobal_load_dwordx2 v[20:21], v5, {WS} offset:256 sc1\nglobal_load_dwordx4 v[24:27], v6, {WS} offset:384 sc1'),
           ck, sleep=P['sl_side'])
    a.full()
    a.stamp('side')
    a(f'v_mov_b32 v25, v26\nds_write_b128 v7, v[16:19] offset:{LSR}\nds_write_b64 v9, v[20:21] offset:{LSR+256}\nds_write_b64 v10, v[24:25] offset:{LFW+64}')
    fl_add(2)
    a('s_branch LA_nov')
    a.label('LA_l2')
    a(f'''s_lshl_b32 s40, s3, 7
v_and_b32 v4, 31, v1
v_lshl_add_u32 v5, v4, 1, s40
s_lshl_b32 s42, s3, 6
v_lshl_add_u32 v7, v4, 1, s42
v_lshl_add_u32 v4, v4, 2, s40
v_lshrrev_b32 v9, 5, v1
v_mul_u32_u24 v10, 3072, v9
v_lshlrev_b32 v9, 4, v9
s_mul_i32 s42, s44, 6144
s_add_u32 s42, s42, {H4G}
v_add3_u32 v4, v4, v10, s42
v_mov_b32 v20, 0
v_mov_b32 v21, 0
v_mov_b32 v22, 0
v_mov_b32 v23, 0''')
    frag2_addr(a, 6, 's40')
    out12_prep(a, 248, LVP)
    fl_wait(1, 'x', 4)
    if P['pre_l2']: a(f's_sleep {P["pre_l2"]}')
    def ld():
        for t in range(4): a(f'global_load_dword v{16+t}, v4, {WS} offset:{768*t} sc1')
    a.poll(ld, lambda: a.chk_sent(range(16, 20), 8), sleep=P['sl_l2'])
    a.stamp('l2')
    for j in range(4): a(f'v_lshlrev_b32 v{232+j}, 16, v{232+j}')
    fl_wait(3, 'x')
    a.stamp('b6')
    for j in range(4): a(f'ds_read_u16_d16_hi v{20+j}, v7 offset:{LSR + 384*j}')
    a(f'ds_read_b128 v[24:27], v12 offset:{LFW}\nds_read_b128 v[28:31], v12 offset:{LFW+16}\nds_read_b128 v[32:35], v9 offset:{LFW+32}')
    a(f'''s_waitcnt lgkmcnt(0)
v_mul_f32 v16, v16, v32
v_mul_f32 v24, v24, v232
v_mul_f32 v28, v28, v20
v_fmac_f32 v16, v17, v33
v_fmac_f32 v24, v25, v233
v_fmac_f32 v28, v29, v21
v_fmac_f32 v16, v18, v34
v_fmac_f32 v24, v26, v234
v_fmac_f32 v28, v30, v22
v_fmac_f32 v16, v19, v35
v_fmac_f32 v24, v27, v235
v_fmac_f32 v28, v31, v23
v_mov_b32 v17, v16
v_add_f32 v24, v24, v28
v_permlane32_swap_b32 v16, v17
v_add3_f32 v16, v16, v17, v24
v_cvt_pk_bf16_f32 v17, v16, v16
ds_write_b16 v5, v17 offset:{LCC}
v_and_b32 v18, 0xffff0000, v17
v_sub_f32 v18, v16, v18
v_cvt_pk_bf16_f32 v18, v18, v18
ds_write_b16 v5, v18 offset:{LCC+64}
s_waitcnt lgkmcnt(0)
ds_read_b128 v[224:227], v6 offset:{LCC}
s_waitcnt lgkmcnt(0)'''.replace('v_add3_f32 v16, v16, v17, v24', 'v_add_f32 v16, v16, v17\nv_add_f32 v16, v16, v24'))
    mfma12(a, 128, 224, 176)
    out12(a, 128, 16, 248)
    a.label('LA_nov')
    a(f'''v_lshlrev_b32 v4, 4, v1
s_mul_i32 s40, s47, 3072
s_lshl_b32 s42, s41, 8
s_add_u32 s40, s40, s42
s_add_u32 s40, s40, {H5}
v_lshlrev_b32 v5, 10, v3
v_lshl_add_u32 v5, v2, 4, v5
v_add_u32 v5, s40, v5''')
    a.bar()
    a.wave_is('eq', 0, 'Lfin')
    for w in range(6): a(f'ds_read_b128 {vr(16+4*w,4)}, v4 offset:{LVP + 768*w}')
    a('s_waitcnt lgkmcnt(0)')
    tree(a, range(16, 40, 4), n=4)
    a.lanes_lt(48)
    a.st_local('s[38:39]', f'global_store_dwordx4 v5, v[16:19], {WS}')
    a.full()
    a.stamp('h5pub')
    a(f'''s_add_u32 s40, s44, s3
s_cmp_eq_u32 s40, 0
s_cbranch_scc0 Lfin
v_mov_b32 v5, {TAG}
global_store_dword v12, v5, {WS} sc1''')

DEFAULTS = dict(code_last=0x1000, stamps=False, warm_loads=2, sl_pr=1, sl_pr3=4, sl_h1=3, sl_h1b=1, sl_h2=4, sl_h3=2, sl_aux=1, sl_h4s=1, sl_h5=1, sl_h6=3, sl_h7=2, sl_x2=4, sl_lw=1, lw_cnt=4, dma1=5, sl_top2=4, pre_h7=12, bpf=0, pf_pol=0, sl_pf=60, pre_hdr=8, pv_local=0, g_pol=0, pre_l2=12, sl_hdr=2, sl_l2=2, local=1, early_late=1, sl_pr2=1, sl_dma2=0, m_h2=0, m_h6=0, k_h2=255, pre_aux=8, swap=0, sl_a80=30, pre_h1=0, tlb=0, e_nt=0, pv_nt=0, uk1=0, ew_cnt=4, sl_el=1, pre_side=12, sl_side=2, sl_uv=20, pre_h4s=4, sl_top=6,
    probe_h1b=0, post_h1b=1, probe_h2=1, post_h2=0, probe_h3=1, post_h3=0, probe_aux=0, post_aux=2, probe_h5=0, post_h5=1, probe_h6=0, post_h6=1, probe_h7=1, post_h7=0)

def generate(**kw):
    P = dict(DEFAULTS); P.update(kw)
    a = G(P)
    a(f'''s_cmp_ge_u32 s2, 256
s_cbranch_scc1 Lend
s_load_dwordx16 s[4:19], s[0:1], 0
{'s_xor_b32 s2, s2, 128' if P['swap'] else 's_nop 0'}
s_load_dwordx8 s[20:27], s[0:1], 64
s_load_dwordx4 s[28:31], s[0:1], 96
s_getpc_b64 s[36:37]
Lpc:
v_lshrrev_b32 v4, 6, v0
v_and_b32 v1, 63, v0
v_readfirstlane_b32 s3, v4
v_and_b32 v2, 15, v0
v_lshrrev_b32 v3, 4, v1''')
    if P['stamps']:
        for i in range(21): a(f's_mov_b64 s[{60+2*i}:{61+2*i}], 0')
    if P.get('dbgtime') or P.get('padto'): a('s_memrealtime s[60:61]')
    a('s_cmp_lt_u32 s2, 128\ns_cbranch_scc1 LB')
    role_A(a)
    namesA = a.stnames; a.stnames = []
    a.label('LB')
    role_B(a)
    namesB = a.stnames; a.stnames = namesA
    role_A2(a)
    a('s_branch Lfin')
    namesA = a.stnames; a.stnames = namesB
    role_B2(a)
    namesB = a.stnames
    a.label('Lfin')
    if P['stamps']:
        a(f'''s_waitcnt lgkmcnt(0)
s_lshl_b32 s40, s2, 3
s_add_u32 s40, s40, s3
s_lshl_b32 s40, s40, 7
s_add_u32 s40, s40, {STAMP}
v_mov_b32 v4, s40''')
        for i in range(21): a(f'v_mov_b32 v5, s{60+2*i}\nglobal_store_dword v4, v5, {WS} offset:{4*i}')
    if P.get('dbgtime'):
        a(f'''s_memrealtime s[62:63]
s_cmp_eq_u32 s3, 7
s_cbranch_scc0 Lend
s_and_b32 s40, s2, 31
s_cmp_eq_u32 s40, 31
s_cbranch_scc0 Lend
s_waitcnt lgkmcnt(0)
s_lshr_b32 s40, s2, 5
s_lshl_b32 s40, s40, 3
v_mov_b32 v4, s40
v_mov_b32 v6, s60
v_mov_b32 v7, s62
s_mov_b64 exec, 1
global_store_dwordx2 v4, v[6:7], s[28:29]''')
    if P.get('padto'):
        a(f'''s_add_u32 s40, s2, s3
s_cmp_eq_u32 s40, 0
s_cbranch_scc0 Lend
Lpad:
s_memrealtime s[62:63]
s_waitcnt lgkmcnt(0)
s_sub_u32 s40, s62, s60
s_cmp_lt_u32 s40, {P['padto']}
s_cbranch_scc1 Lpad''')
    a.label('Lend')
    a('s_endpgm')
    a.raw('Lcode_end:')
    hdr = open(f'cdna_kernels/{NAME}.s.ref').read().split('; Override launch')[0]
    lds = MISC + 8192 + 256
    txt = hdr + f'''; @launch grid=(256,1,1) block=(512,1,1) lds={lds}
.amdgcn_target "amdgcn-amd-amdhsa--gfx950"
.text
.globl {NAME}_kernel
.p2align 8
.type {NAME}_kernel,@function
.set CODE_LAST, {P['code_last']:#x}
{NAME}_kernel:
''' + a.text() + f'''.section .rodata,"a"
.p2align 6
.amdhsa_kernel {NAME}_kernel
  .amdhsa_next_free_vgpr 256
  .amdhsa_next_free_sgpr 102
  .amdhsa_accum_offset 256
  .amdhsa_group_segment_fixed_size 0
  .amdhsa_kernarg_size 112
  .amdhsa_user_sgpr_count 2
  .amdhsa_user_sgpr_kernarg_segment_ptr 1
  .amdhsa_system_sgpr_workgroup_id_x 1
  .amdhsa_float_denorm_mode_32 3
.end_amdhsa_kernel
'''
    return txt, namesB, namesA

if __name__ == '__main__':
    import json
    out = sys.argv[1]
    kw = {}
    for x in sys.argv[2:]:
        k, v = x.split('='); kw[k] = int(v)
    import subprocess, re
    txt, nb, na = generate(**kw)
    open('_g.s', 'w').write(txt)
    subprocess.check_call(['clang', '-x', 'assembler', '-target', 'amdgcn-amd-amdhsa', '-mcpu=gfx950', '-c', '_g.s', '-o', '_g.o'])
    h = subprocess.check_output(['llvm-objdump', '-h', '_g.o'], text=True)
    size = int(re.search(r'\.text\s+([0-9a-f]+)', h).group(1), 16)
    kw['code_last'] = size - 0x30 - 4
    assert size <= 32768 * kw.get('warm_loads', DEFAULTS['warm_loads'])
    txt, nb, na = generate(**kw)
    print('code bytes', size)
    open(out, 'w').write(txt)
    json.dump({'B': nb, 'A': na}, open(out + '.names.json', 'w'))
```

```python
import sys, struct
sys.path.insert(0, 'gen')
from asmlib import *
NAME = 'adaLN_cond__compressed_kv_cla__dense_activation_relu__decode'

EPOCH, READY, H1, H1B, H2, H3, AUX, H4S, H5 = 0x0, 0x1000, 0x2000, 0x120000, 0x58000, 0x68000, 0x1A0000, 0x88000, 0xE8000
H6, MODR, H7F, H7X, H4, STAMP = 0x100000, 0x108000, 0x110000, 0x111000, 0x200000, 0x4000000
H7Y = 0x110000
H4G, HDR, MB = 0x880000, 0x1FA000, 0x78000
DB3, DB4, ELIST, SIDE = 0x1E0000, 0x1E4000, 0x1F8000, 0x18000
X, CKV, WQ, WUK, WUV, WO, W1, W2, CC, WMOD, OUT, WS = [f's[{i}:{i+1}]' for i in (4, 6, 8, 10, 12, 14, 18, 20, 22, 24, 26, 30)]
TAG, SPIN, PLO, PHI = 's32', 's33', 's34', 's35'
SPINMAX = 200000
def f2u(x): return struct.unpack('<I', struct.pack('<f', x))[0]
L2E = f2u(1.4426950408889634)
L2E_LO = f2u(1.4426950408889634 - struct.unpack('<f', struct.pack('<f', 1.4426950408889634))[0])
LN2 = f2u(0.6931471805599453)
SCALE = f2u(192 ** -0.5)
NEGINF = 0xff800000

class G(Asm):
    def __init__(self, P):
        super().__init__(); self.P = P; self.nst = 0; self.stnames = []
    def stamp(self, name):
        if not self.P.get('stamps'): return
        if name.startswith('x') != (self.P['stamps'] == 2) and name not in ('start', 'h1pub', 'out', 'wq', 'h1', 'qpub', 'h1b', 'h2pub', 'h5', 'h6pub', 'h6', 'h7pub', 'gath', 'b6', 'h5pub', 'h2', 'qk', 'h3pub', 'pvst', 'auxpub'): return
        i = self.stnames.index(name) if name in self.stnames else None
        if i is None:
            self.stnames.append(name); i = len(self.stnames) - 1
        assert i < 21
        self(f's_memrealtime s[{60+2*i}:{61+2*i}]')
    def rnd(self, d, s):
        self(f'v_cvt_pk_bf16_f32 v{d}, v{s}, v{s}\nv_and_b32 v{d}, 0xffff0000, v{d}')
    def wave_is(self, cond, n, lab):
        self(f's_cmp_{cond}_u32 s3, {n}\ns_cbranch_scc0 {lab}')
    def row_red(self, op, regs):
        for k in (8, 4, 2, 1):
            for r in regs: self(f'{op}_dpp v{r}, v{r}, v{r} row_ror:{k} row_mask:0xf bank_mask:0xf')
    def xrow_red(self, op, r, t):
        self(f'v_mov_b32 v{t}, v{r}\nv_permlane16_swap_b32 v{r}, v{t}\n{op} v{r}, v{r}, v{t}')
        self(f'v_mov_b32 v{t}, v{r}\nv_permlane32_swap_b32 v{r}, v{t}\n{op} v{r}, v{r}, v{t}')
    def wave_red(self, op, r, t):
        self.row_red(op, [r]); self.xrow_red(op, r, t)
    def xrow_tr4(self, r):
        self(f'''v_permlane16_swap_b32 v{r}, v{r+1}
v_permlane16_swap_b32 v{r+2}, v{r+3}
v_add_f32 v{r}, v{r}, v{r+1}
v_add_f32 v{r+2}, v{r+2}, v{r+3}
v_permlane32_swap_b32 v{r}, v{r+2}
v_add_f32 v{r}, v{r}, v{r+2}''')
    def recip(self, d, y, t):
        self(f'v_rcp_f32 v{d}, v{y}\nv_fma_f32 v{t}, -v{y}, v{d}, 1.0\nv_fma_f32 v{d}, v{t}, v{d}, v{d}')
    def div(self, d, x, y, rinv, t):
        self(f'v_mul_f32 v{d}, v{x}, v{rinv}\nv_fma_f32 v{t}, -v{y}, v{d}, v{x}\nv_fma_f32 v{d}, v{t}, v{rinv}, v{d}')
    def silu(self, d, x, t):
        self(f'''v_mul_f32 v{t}, s56, v{x}
v_fma_f32 v{t+1}, v{x}, s56, -v{t}
v_fma_f32 v{t+1}, v{x}, s57, v{t+1}
v_exp_f32 v{t}, -v{t}
v_mul_f32 v{t+1}, s58, v{t+1}
v_fma_f32 v{t}, -v{t}, v{t+1}, v{t}
v_min_f32 v{t}, 0x7f000000, v{t}
v_add_f32 v{t}, 1.0, v{t}''')
        self.recip(t + 1, t, t + 2)
        self.div(t + 3, x, t, t + 1, t + 2)
        self.rnd(d, t + 3)
    def perm_block(self, dst, src, nreg=4, rows=8):
        for e in range(2 * nreg):
            for k in range(rows // 2):
                self(f'v_perm_b32 v{dst + e * (rows // 2) + k}, v{src + (2*k+1) * nreg + (e >> 1)}, v{src + 2*k*nreg + (e >> 1)}, {PHI if e & 1 else PLO}')
    def poll(self, loads, check, sleep=2, pre=None, mid=None):
        top = self.newlabel('Lp'); done = self.newlabel('Ld'); chk = self.newlabel('Lc')
        if pre: self(f's_sleep {pre}')
        if mid:
            loads(); mid(); self(f's_branch {chk}')
        self.label(top)
        loads()
        self.label(chk)
        self('s_waitcnt vmcnt(0)')
        check()
        self(f'''s_cbranch_vccz {done}
s_add_u32 {SPIN}, {SPIN}, 1
s_cmp_gt_u32 {SPIN}, {SPINMAX}
s_cbranch_scc1 {done}
s_sleep {sleep}
s_branch {top}''')
        self.label(done)
    def poll_masked(self, items, t, sleep=2, tag=False):
        top = self.newlabel('Lm'); done = self.newlabel('Lmd')
        for ld, regs in items: self(ld)
        self.label(top)
        self('s_waitcnt vmcnt(0)\ns_mov_b32 s49, 0')
        for ld, regs in items:
            skip = self.newlabel('Lms')
            if tag: self.chk_tag(regs, t)
            else: self.chk_sent(regs, t)
            self(f's_cbranch_vccz {skip}\ns_mov_b64 exec, vcc\n{ld}\ns_mov_b64 exec, -1\ns_mov_b32 s49, 1')
            self.label(skip)
        self(f'''s_cmp_eq_u32 s49, 0
s_cbranch_scc1 {done}
s_add_u32 {SPIN}, {SPIN}, 1
s_cmp_gt_u32 {SPIN}, {SPINMAX}
s_cbranch_scc1 {done}
s_sleep {sleep}
s_branch {top}''')
        self.label(done)
        self('s_waitcnt vmcnt(0)')
    def lds_wait(self, addr, n, off=0, sleep=1, extra=None, t=8):
        top = self.newlabel('Lw'); done = self.newlabel('Lwd')
        self.label(top)
        self(f'ds_read_b32 v{t}, v{addr} offset:{off}')
        if extra: self(extra)
        self(f'''s_waitcnt lgkmcnt(0)
v_cmp_gt_u32 vcc, {n}, v{t}
s_cbranch_vccz {done}
s_add_u32 {SPIN}, {SPIN}, 1
s_cmp_gt_u32 {SPIN}, {SPINMAX}
s_cbranch_scc1 {done}
s_sleep {sleep}
s_branch {top}''')
        self.label(done)
    def probe(self, va, t, off=0, sleep=1, post=None, tag=False, mask=1):
        self.exec_mask(mask)
        def ck():
            if tag: self(f'v_cmp_ne_u32 vcc, {TAG}, v{t}')
            else: self(f'v_cmp_eq_u32 vcc, -1, v{t}')
        self.poll(lambda: self(f'global_load_dword v{t}, v{va}, {WS} offset:{off} sc1'), ck, sleep=sleep)
        self.full()
        if post: self(f's_sleep {post}')
    def chk_sent(self, regs, t):
        regs = list(regs)
        if len(regs) == 1:
            self(f'v_cmp_eq_u32 vcc, -1, v{regs[0]}'); return
        if len(regs) == 2: self(f'v_max_u32 v{t}, v{regs[0]}, v{regs[1]}'); rest = []
        else: self(f'v_max3_u32 v{t}, v{regs[0]}, v{regs[1]}, v{regs[2]}'); rest = regs[3:]
        while rest:
            if len(rest) >= 2: self(f'v_max3_u32 v{t}, v{t}, v{rest[0]}, v{rest[1]}'); rest = rest[2:]
            else: self(f'v_max_u32 v{t}, v{t}, v{rest[0]}'); rest = []
        self(f'v_cmp_eq_u32 vcc, -1, v{t}')
    def chk_tag(self, regs, t):
        regs = list(regs)
        self(f'v_cmp_ne_u32 vcc, {TAG}, v{regs[0]}')
        for r in regs[1:]:
            self(f'v_cmp_ne_u32 s[50:51], {TAG}, v{r}\ns_or_b64 vcc, vcc, s[50:51]')
    def san(self, regs):
        for r in regs: self(f'v_min_u32 v{r}, -2, v{r}')
    def lanes_lt(self, n):
        assert n <= 64
        lo = (1 << min(n, 32)) - 1; hi = (1 << max(n - 32, 0)) - 1
        self(f's_mov_b32 exec_lo, {lo:#x}\ns_mov_b32 exec_hi, {hi:#x}')
    def exec_mask(self, m):
        self(f's_mov_b32 exec_lo, {m & 0xffffffff:#x}\ns_mov_b32 exec_hi, {m >> 32:#x}')
    def full(self): self('s_mov_b64 exec, -1')
    def bar(self): self('s_waitcnt lgkmcnt(0)\ns_barrier')
    def get_tag(self):
        self(f'''v_readfirstlane_b32 {TAG}, v15
s_mul_i32 {TAG}, {TAG}, 0x9E3779B1
s_add_u32 {TAG}, {TAG}, 0x7F4A7C15''')
    def ready_publish(self):
        self('s_getreg_b32 s41x, hwreg(HW_REG_XCC_ID, 0, 4)\ns_waitcnt vmcnt(0)'.replace('s41x', 's51'))
        self.get_tag()
        self(f'''s_lshl_b32 s40, s2, 4
s_add_u32 s40, s40, {READY}
v_mov_b32 v4, s40
v_mov_b32 v6, {TAG}
v_mov_b32 v7, s51''')
        self.lanes_lt(1)
        self(f'global_store_dwordx2 v4, v[6:7], {WS} sc1')
        self.full()
    def st_local(self, mism, *sts):
        far = self.newlabel('Lsf'); done = self.newlabel('Lsd')
        if self.P['local']:
            self(f's_cmp_eq_u64 {mism}, 0\ns_cbranch_scc0 {far}')
            for st in sts: self(st)
            self(f's_branch {done}')
            self.label(far)
        for st in sts: self(st + ' sc1')
        self.label(done)
    def ready_check(self, half, v=8):
        self(f'v_lshlrev_b32 v{v+2}, 4, v1\nv_add_u32 v{v+2}, {READY + 2048*half}, v{v+2}')
        def ld():
            for i in range(2): self(f'global_load_dword v{v+i}, v{v+2}, {WS} offset:{1024*i} sc1')
        self.poll(ld, lambda: self.chk_tag([v, v + 1], 0), sleep=4)
    def gemv2(self, D, A, F, first=True):
        for e in range(8):
            c = '0' if first else vr(D + 4*e, 4)
            self(f'v_mfma_f32_16x16x32_bf16 {vr(D+4*e,4)}, {vr(A,4)}, {vr(F+4*e,4)}, {c}')
    def pack2(self, o, D):
        for i in range(4):
            self(f'v_add_f32_dpp v{o+i}, v{D+4*i+1}, v{D+4*i} row_ror:8 row_mask:0xf bank_mask:0x3')
        for i in range(4):
            self(f'v_add_f32_dpp v{o+i}, v{D+4*(i+4)}, v{D+4*(i+4)+1} row_ror:8 row_mask:0xf bank_mask:0xc')
    def load_rows(self, dst, nreg, va, base, pitch, rows=8, pol='nt', t=None):
        op = {1: 'dword', 2: 'dwordx2', 4: 'dwordx4'}[nreg]
        per = 4095 // pitch + 1 if pitch <= 4095 else 1
        for j in range(rows):
            k = j % per
            self(f'global_load_{op} {vr(dst + j*nreg, nreg)}, v{va}, {base} offset:{k*pitch} {pol}')
            if k == per - 1 and j + 1 < rows: self(f'v_add_u32 v{va}, {per*pitch}, v{va}')

def consts(a):
    a(f'''s_mov_b32 {PLO}, 0x05040100
s_mov_b32 {PHI}, 0x07060302
s_mov_b32 {SPIN}, 0
s_mov_b32 s56, {L2E:#x}
s_mov_b32 s57, {L2E_LO:#x}
s_mov_b32 s58, {LN2:#x}
s_mov_b32 s59, {SCALE:#x}''')

def code_warm(a, v=4):
    n = a.P['warm_loads']
    a(f'''s_lshr_b32 s50, s2, 3
s_lshl_b32 s50, s50, 10
v_lshlrev_b32 v{v}, 4, v1
v_add_u32 v{v}, s50, v{v}
v_min_u32 v{v}, CODE_LAST, v{v}
global_load_dword v14, v{v}, s[36:37]''')
    if n > 1:
        a(f'''v_add_u32 v{v}, 32768, v{v}
v_min_u32 v{v}, CODE_LAST, v{v}
global_load_dword v14, v{v}, s[36:37]''')

CT, SPB, PB, STB, MISC = 0, 98304, 98304 + 34816, 98304 + 34816 + 9216, 98304 + 34816 + 9216 + 1024
def blk2_addr(a, v, srow, pitch, scol):
    a(f'''v_lshrrev_b32 v{v}, 3, v2
v_lshlrev_b32 v{v}, 5, v{v}
v_lshl_add_u32 v{v}, v3, 3, v{v}
v_add_u32 v{v}, {srow}, v{v}
v_mul_u32_u24 v{v}, {pitch}, v{v}
v_and_b32 v{v+1}, 7, v2
v_lshl_add_u32 v{v}, v{v+1}, 4, v{v}
v_add_u32 v{v}, {scol}, v{v}''')
def frag2_addr(a, v, sbase):
    a(f'v_and_b32 v{v}, 1, v2\nv_lshlrev_b32 v{v}, 6, v{v}\nv_lshl_add_u32 v{v}, v3, 4, v{v}\nv_add_u32 v{v}, {sbase}, v{v}')
def pack_addr(a, v, sbase):
    a(f'v_and_b32 v{v}, 7, v2\nv_lshlrev_b32 v{v}, 5, v{v}\nv_lshrrev_b32 v{v+1}, 3, v2\nv_lshl_add_u32 v{v}, v{v+1}, 4, v{v}\nv_add_u32 v{v}, {sbase}, v{v}')
def gemv_out_lds(a, D, base):
    a.pack2(8, D)
    a.lanes_lt(16)
    a('ds_write_b128 v14, v[8:11]')
    a.full()
def gemv_out_prep(a, base):
    a(f's_lshl_b32 s40, s3, 8\ns_add_u32 s40, s40, {base}')
    pack_addr(a, 14, 's40')
def tree(a, regs, stride=1, n=1):
    regs = list(regs)
    while len(regs) > 1:
        nxt = []
        for i in range(0, len(regs) - 1, 2):
            for k in range(n): a(f'v_add_f32 v{regs[i]+k}, v{regs[i]+k}, v{regs[i+1]+k}')
            nxt.append(regs[i])
        if len(regs) & 1: nxt.append(regs[-1])
        regs = nxt
def ln_finish(a, m, v, ri):
    a.rnd(m, m); a.rnd(v, v)
    a(f'v_add_f32 v{v}, {f2u(1e-5):#x}, v{v}')
    a.rnd(v, v)
    a(f'v_sqrt_f32 v{v}, v{v}')
    a.rnd(v, v)
    a.recip(ri, v, ri + 1)
def neg1(a, r=8):
    for i in range(4): a(f'v_mov_b32 v{r+i}, -1')

JP, CP = 3200, 51328
def role_B(a):
    P = a.P
    a(f'''s_and_b32 s39, s2, 7
s_lshr_b32 s38, s2, 3            ; j
s_mul_i32 s55, s38, 43
s_lshr_b32 s55, s55, 7           ; Tp = j/3
s_mul_i32 s40, s55, 3
s_sub_u32 s40, s38, s40          ; cbl
s_lshl_b32 s40, s40, 2
s_mul_i32 s45, s39, 12
s_add_u32 s45, s45, s40
s_lshr_b32 s40, s3, 1
s_add_u32 s45, s45, s40
s_and_b32 s53, s3, 1
s_lshl_b32 s42, s55, 1
s_add_u32 s53, s53, s42          ; T = 2Tp + (w&1)
v_mov_b32 v12, 0
s_lshl_b32 s40, s53, 6
s_lshl_b32 s41, s45, 7''')
    blk2_addr(a, 4, 's40', 12288, 's41')
    a(f'''v_lshlrev_b32 v6, 2, v1
s_lshl_b32 s42, s3, 3
v_and_b32 v7, 7, v1
v_add_u32 v7, s42, v7
v_lshrrev_b32 v8, 5, v1
v_lshl_add_u32 v13, v8, 6, v7
s_min_u32 s40, s55, 4
s_lshl_b32 s40, s40, 7
v_add_u32 v7, s40, v13
v_lshlrev_b32 v7, 1, v7
s_waitcnt lgkmcnt(0)''')
    a.stamp('start')
    for k in range(5): a(f'global_load_dword v{16+k}, v6, {X} offset:{256*k}')
    a(f'global_load_ushort v21, v7, {X}')
    a('s_cmp_lt_u32 s2, 120\ns_cbranch_scc0 LB_nowq')
    a.load_rows(64, 4, 4, WQ, 12288)
    a.label('LB_nowq')
    a(f'global_load_dword v15, v12, {WS} sc1\ns_branch LB2')

def role_B2(a):
    P = a.P
    a.label('LB2')
    a(f'''s_mov_b32 s49, 0
s_mul_i32 s54, s39, 10
s_add_u32 s54, s54, s38
s_add_u32 s40, s2, 0
s_cmp_lt_u32 s38, 10
s_cselect_b32 s54, s54, s40
s_getreg_b32 s16, hwreg(HW_REG_XCC_ID, 0, 4)''')
    a.wave_is('eq', 6, 'LB_not6')
    code_warm(a, 24)
    if P['tlb']:
        a(f'''v_lshlrev_b32 v24, 17, v1
global_load_dword v14, v24, {WS} offset:64 nt''')
    a('s_mov_b32 s49, 1')
    a.label('LB_not6')
    a.wave_is('eq', 7, 'LB_not7')
    neg1(a, 28)
    a(f'''s_mul_i32 s50, s39, 2560
s_lshl_b32 s51, s38, 8
s_add_u32 s50, s50, s51
s_add_u32 s50, s50, {H6}
s_lshl_b32 s51, s54, 8
s_add_u32 s51, s51, {MODR - 104*256}
s_cmp_lt_u32 s54, 104
s_cselect_b32 s50, s50, s51
v_lshl_add_u32 v24, v2, 4, s50
s_cmp_lt_u32 s54, 80
s_cbranch_scc1 LB_c1
s_cmp_lt_u32 s54, 104
s_cbranch_scc0 LB_c1
s_mul_i32 s50, s54, 2560
s_add_u32 s50, s50, {H7Y - 80*2560}
v_lshl_add_u32 v24, v1, 4, s50
global_store_dwordx4 v24, v[28:31], {WS} sc1
global_store_dwordx4 v24, v[28:31], {WS} offset:1024 sc1
v_and_b32 v24, 31, v1
v_lshl_add_u32 v24, v24, 4, s50
v_add_u32 v24, 2048, v24
LB_c1:
global_store_dwordx4 v24, v[28:31], {WS} sc1''')
    a('s_mov_b32 s49, 1')
    a.label('LB_not7')
    a(f'''s_lshl_b32 s46, s2, 6
s_lshl_b32 s41, s3, 3
s_add_u32 s46, s46, s41
s_mul_i32 s46, s46, 1536           ; (64b+8w)*1536
s_and_b32 s47, s3, 1
s_lshl_b32 s47, s47, 3             ; 8*(w&1)
s_mul_i32 s48, s3, 12288
v_cmp_le_u32 vcc, 32, v1
v_add_u32 v56, 64, v1
v_subrev_u32 v57, 32, v1
v_cndmask_b32 v56, v56, v57, vcc
v_cndmask_b32 v58, 0, 1, vcc
v_xor_b32 v56, v56, v58
v_mul_u32_u24 v58, 1536, v58
v_add_u32 v57, 32, v1
v_xor_b32 v57, 1, v57''')
    def dma(lo, hi, other=0):
        for i in range(lo, hi):
            k, j = divmod(i, 3)
            src = ('v1', 'v56', 'v57')[j]
            a(f's_add_u32 s43, s47, {2*k}\nv_xor_b32 v8, s43, {src}')
            a(f's_add_u32 s44, s46, {2*k*1536 + (1536 if j == 2 else 0) + other*32*1536}')
            if j == 1: a('v_lshl_add_u32 v8, v8, 4, v58\nv_add_u32 v8, s44, v8')
            else: a('v_lshl_add_u32 v8, v8, 4, s44')
            a(f's_add_u32 m0, s48, {i*1024 + other*49152}\nglobal_load_lds_dwordx4 v8, {CKV} nt')
    N1 = P['dma1']
    a(f'v_mov_b32 v253, {STB + 520}\nds_write_b32 v253, v12')
    a.bar()
    dma(0, N1)
    consts(a)
    a('s_cmp_ge_u32 s2, 120\ns_cselect_b32 s49, 1, s49\ns_cmp_eq_u32 s49, 0\ns_cbranch_scc1 LB_w8\ns_waitcnt vmcnt(' + str(N1) + ')\nLB_w8:')
    a(f's_waitcnt vmcnt({9+N1})')
    for k in range(5): a(f'v_lshlrev_b32 v{24+2*k}, 16, v{16+k}\nv_and_b32 v{25+2*k}, 0xffff0000, v{16+k}')
    a('v_add_f32 v22, v24, v25')
    for k in range(2, 10): a(f'v_add_f32 v22, v22, v{24+k}')
    a.wave_red('v_add_f32', 22, 23)
    a(f'v_mul_f32 v22, {f2u(1/640):#x}, v22\nv_mov_b32 v23, 0')
    for k in range(10): a(f'v_sub_f32 v{24+k}, v{24+k}, v22\nv_fmac_f32 v23, v{24+k}, v{24+k}')
    a.wave_red('v_add_f32', 23, 24)
    a(f'v_mul_f32 v23, {f2u(1/640):#x}, v23')
    ln_finish(a, 22, 23, 24)
    a('v_lshlrev_b32 v21, 16, v21\nv_sub_f32 v21, v21, v22')
    a.rnd(21, 21)
    a.div(20, 21, 23, 24, 25)
    a.rnd(20, 20)
    a('s_cmp_lt_u32 s2, 120\ns_cbranch_scc0 LB_dma0')
    a(f'''s_lshl_b32 s40, s55, 14
s_lshl_b32 s42, s3, 10
s_add_u32 s40, s40, s42
s_add_u32 s40, s40, {H1}
v_lshl_add_u32 v4, v1, 4, s40
v_add_u32 v9, 8192, v4
v_lshlrev_b32 v5, 1, v13
v_add_u32 v5, {MISC}, v5
s_lshl_b32 s40, s39, 4
s_add_u32 s40, s40, {READY + 2048}
v_lshl_add_u32 v10, v2, 7, s40
s_mul_i32 s40, s45, 43
s_lshr_b32 s40, s40, 7
s_mul_i32 s42, s40, 3
s_sub_u32 s42, s45, s42
s_lshl_b32 s42, s42, 9
s_mul_i32 s40, s40, 15360
s_add_u32 s40, s40, s42
s_mul_i32 s42, s53, 1536
s_add_u32 s40, s40, s42
s_add_u32 s40, s40, {H1B}''')
    pack_addr(a, 6, 0)
    a(f'v_lshlrev_b32 v6, 1, v6\nv_lshl_add_u32 v6, v3, 4, v6\nv_add_u32 v6, s40, v6\nv_cmp_eq_u32 s[42:43], 1, v3')
    a(f's_and_b32 s40, s3, 1\ns_lshl_b32 s40, s40, 7\ns_add_u32 s40, s40, {MISC}')
    frag2_addr(a, 7, 's40')
    a(f's_waitcnt vmcnt({N1})')
    a.stamp('wq')
    a.get_tag()
    a(f'v_mov_b32 v61, {TAG}\nv_mov_b32 v63, {TAG}')
    a.poll(lambda: a(f'global_load_dwordx4 v[16:19], v4, {WS} sc1\nglobal_load_dwordx4 v[24:27], v9, {WS} sc1\nglobal_load_dwordx2 v[28:29], v10, {WS} sc1'),
           lambda: a.chk_tag([17, 19, 25, 27], 8), sleep=P['sl_h1'], pre=P['pre_h1'], mid=lambda: a.perm_block(96, 64))
    a.stamp('h1')
    a('s_setprio 3')
    a('''v_add_f32_dpp v16, v16, v16 row_ror:8 row_mask:0xf bank_mask:0xf
v_add_f32_dpp v18, v18, v18 row_ror:8 row_mask:0xf bank_mask:0xf
v_add_f32_dpp v24, v24, v24 row_ror:8 row_mask:0xf bank_mask:0xf
v_add_f32_dpp v26, v26, v26 row_ror:8 row_mask:0xf bank_mask:0xf
v_cmp_ne_u32 s[50:51], s16, v29
v_cmp_ne_u32 vcc, s32, v28
s_or_b64 s[50:51], s[50:51], vcc
v_permlane16_swap_b32 v16, v18
v_permlane16_swap_b32 v24, v26
v_add_f32 v16, v16, v18
v_add_f32 v24, v24, v26
v_permlane32_swap_b32 v16, v24
v_add_f32 v16, v16, v24
v_mov_b32 v18, v16
v_permlane16_swap_b32 v16, v18''')
    a.rnd(16, 16); a.rnd(18, 18)
    a('v_add_f32 v18, 1.0, v18')
    a.rnd(18, 18)
    a('v_mul_f32 v18, v20, v18')
    a.rnd(18, 18)
    a('v_add_f32 v16, v18, v16\nv_cvt_pk_bf16_f32 v16, v16, v16\nds_write_b16 v5, v16')
    a.bar()
    a('ds_read_b128 v[16:19], v7\ns_waitcnt lgkmcnt(0)')
    a.gemv2(24, 16, 96, True)
    a.pack2(8, 24)
    a('v_cndmask_b32 v60, v8, v10, s[42:43]\nv_cndmask_b32 v62, v9, v11, s[42:43]')
    a.lanes_lt(32)
    a.st_local('s[50:51]', f'global_store_dwordx4 v6, v[60:63], {WS}')
    a.full()
    a.stamp('qpub')
    a('s_setprio 0\ns_barrier')
    if P['sl_dma2']: a(f's_sleep {P["sl_dma2"]}')
    a('s_branch LB_dma')
    a.label('LB_dma0')
    a.get_tag()
    a.label('LB_dma')
    a.wave_is('eq', 7, 'LB_nrp')
    a.ready_publish()
    a.label('LB_nrp')
    def bump():
        a('v_mov_b32 v8, 1\ns_mov_b64 exec, 1\nds_add_u32 v253, v8\ns_mov_b64 exec, -1')
    def ckwait(lab): a.lds_wait(253, 8)
    if P['dma8']: dma(N1, 12)
    a.wave_is('lt', 4, 'LB_qa')
    if not P['dma8']:
        for i in range(N1, 12):
            dma(i, i + 1); dma(i, i + 1, 1)
    a(f'''v_lshrrev_b32 v4, 2, v2            ; rr
v_lshl_add_u32 v4, v3, 3, v4       ; 8g+rr
v_and_b32 v5, 3, v1                ; cc
s_mul_i32 s40, s3, 24
v_add_u32 v5, s40, v5              ; 24w+cc''')
    for t in range(6):
        for sub in range(2):
            a(f'''v_add_u32 v6, {4*sub}, v4
v_and_b32 v7, 15, v6
v_add_u32 v8, {4*t}, v5
v_xor_b32 v7, v7, v8
v_mul_u32_u24 v6, 1536, v6
v_lshl_add_u32 v{40+t*2+sub}, v7, 4, v6''')
    a('s_waitcnt vmcnt(0)')
    bump()
    a(f's_lshl_b32 s40, s39, 4\ns_add_u32 s40, s40, {READY + 2048}\nv_lshl_add_u32 v10, v2, 7, s40')
    a.poll(lambda: a(f'global_load_dwordx2 v[28:29], v10, {WS} sc1'), lambda: a.chk_tag([28], 8), sleep=4)
    a('v_cmp_ne_u32 s[16:17], s16, v29')
    ckwait('LB_ck0')
    a.stamp('ckv')
    for t in range(6):
        for sub in range(2):
            for hf in range(2):
                for ks in range(2):
                    r = 64 + ((t*2+hf)*2+ks)*4 + 2*sub
                    a(f'ds_read_b64_tr_b16 {vr(r,2)}, v{40+t*2+sub} offset:{ks*49152 + hf*8}')
    a(f'''s_mul_i32 s41, s39, {16*CP}
s_mul_i32 s40, s38, {JP}
s_add_u32 s41, s41, s40
s_mul_i32 s40, s3, 384
s_add_u32 s41, s41, s40
s_add_u32 s41, s41, {H4}
v_mul_u32_u24 v52, {CP}, v3
v_bfe_u32 v8, v1, 3, 1
v_mul_u32_u24 v8, 1536, v8
v_add3_u32 v52, v52, v8, s41
v_and_b32 v8, 7, v1
v_lshl_add_u32 v52, v8, 4, v52
s_mul_i32 s40, s3, 4608
s_add_u32 s40, s40, {SPB}
v_mul_u32_u24 v60, 144, v2
v_lshl_add_u32 v60, v3, 4, v60
v_add_u32 v60, s40, v60
v_lshrrev_b32 v61, 3, v1
v_mul_u32_u24 v61, 144, v61
v_lshl_add_u32 v61, v8, 4, v61
v_add_u32 v61, s40, v61
v_add_u32 v53, {4*CP}, v52
v_add_u32 v54, {8*CP}, v52
v_add_u32 v55, {12*CP}, v52
s_lshl_b32 s40, s39, 14
s_lshl_b32 s41, s38, 6
s_add_u32 s40, s40, s41
s_lshl_b32 s41, s3, 4
s_add_u32 s40, s40, s41
s_add_u32 s40, s40, {AUX}
v_lshl_add_u32 v56, v2, 10, s40
v_lshlrev_b32 v57, 5, v2
v_add_u32 v57, {STB}, v57
s_branch LB_noqk''')
    a.label('LB_qa')
    a('s_sub_u32 s45, s3, 4\ns_mul_i32 s40, s45, 24\nv_add_u32 v5, s40, v3\nv_mul_u32_u24 v4, 1536, v2')
    for s_ in range(6):
        a(f'v_add_u32 v6, {4*s_}, v5\nv_xor_b32 v6, v6, v2\nv_lshl_add_u32 v{240+2*s_}, v6, 4, v4\nv_add_u32 v{241+2*s_}, 49152, v{240+2*s_}')
    a(f'''s_mul_i32 s40, s45, 12288
s_add_u32 s40, s40, {H2}
{'v_lshl_add_u32 v4, v1, 4, s40' if P['h2lay'] else 'v_lshl_add_u32 v4, v2, 6, s40'}
{'s_nop 0' if P['h2lay'] else 'v_lshl_add_u32 v4, v3, 4, v4'}
v_add_u32 v5, 4096, v4
v_add_u32 v6, 8192, v4
s_and_b32 s41, s2, 3
s_lshl_b32 s41, s41, {4 if P['h2lay'] else 6}
s_add_u32 s40, s40, s41
s_add_u32 s40, s40, 10240
v_and_b32 v9, 3, v1
v_lshl_add_u32 v9, v9, {6 if P['h2lay'] else 8}, s40
v_bfe_u32 v8, v1, 2, 1
v_lshl_add_u32 v9, v8, 10, v9
s_mul_i32 s40, s45, {32*272}
s_add_u32 s40, s40, {SPB}
v_mul_u32_u24 v7, 272, v2
v_lshl_add_u32 v7, v3, 4, v7
v_add_u32 v7, s40, v7
s_mov_b32 s52, 0
s_waitcnt vmcnt(0)''')
    bump()
    a.ready_check(1, 10)
    a('v_mov_b32 v12, 0\nv_mov_b32 v10, 0')
    def cf():
        for kt in range(4):
            for s_ in range(6):
                a(f'ds_read_b128 {vr(64+(kt*6+s_)*4,4)}, v{240 + 2*s_ + (kt >> 1)} offset:{(kt & 1)*24576}')
    a(f'''LB_q0:
s_mov_b64 exec, {P['k_h2']}
global_load_dword v10, v9, {WS} sc1
s_mov_b64 exec, -1
s_cmp_eq_u32 s52, 0
s_cbranch_scc0 LB_q1
ds_read_b32 v8, v253
s_waitcnt lgkmcnt(0)
v_cmp_gt_u32 vcc, 8, v8
s_cbranch_vccnz LB_q1
s_mov_b32 s52, 1''')
    cf()
    a(f'''LB_q1:
s_waitcnt vmcnt(0)
v_cmp_eq_u32 vcc, -1, v10
s_cbranch_vccz LB_h2go
s_add_u32 {SPIN}, {SPIN}, 1
s_cmp_gt_u32 {SPIN}, {SPINMAX}
s_cbranch_scc1 LB_h2go
s_sleep {P['sl_pr2']}
s_branch LB_q0
LB_h2go:''')
    if P['post_h2']: a(f's_sleep {P["post_h2"]}')
    def ld():
        for i in range(12): a(f'global_load_dwordx4 {vr(16+4*i,4)}, v{4 + i//4}, {WS} offset:{(i%4)*1024} sc1')
    def mid():
        a('s_cmp_eq_u32 s52, 0\ns_cbranch_scc0 LB_q2')
        ckwait('LB_ck1')
        cf()
        a.label('LB_q2')
    ld(); mid()
    a('s_setprio 3\ns_waitcnt lgkmcnt(0)\ns_branch LB_qm')
    a.label('LB_qr')
    ld()
    a.label('LB_qm')
    for s_ in range(6):
        a(f's_waitcnt vmcnt({10 - 2*s_})')
        if s_ == 5: a.stamp('h2')
        for kt in range(4):
            for ht in range(2):
                d = 224 + (kt*2+ht)*4
                a(f'v_mfma_f32_16x16x32_bf16 {vr(d,4)}, {vr(64+(kt*6+s_)*4,4)}, {vr(16+(s_*2+ht)*4,4)}, {"0" if s_ == 0 else vr(d,4)}')
                if s_ > 0 or True:
                    r = 16 + s_*8 + (kt*2+ht)
                    if kt*2+ht < 4:
                        q = 16 + s_*8 + 2*(kt*2+ht)
                        a(f'v_max_u32 v8, v{q}, v{q+1}' if (s_ == 0 and kt*2+ht == 0) else f'v_max3_u32 v8, v8, v{q}, v{q+1}')
    a(f'''v_cmp_eq_u32 vcc, -1, v8
s_cbranch_vccz LB_qd
s_add_u32 {SPIN}, {SPIN}, 1
s_cmp_gt_u32 {SPIN}, {SPINMAX}
s_cbranch_scc1 LB_qd
s_sleep {P['sl_h2']}
s_branch LB_qr
LB_qd:''')
    for kt in range(4):
        for ht in range(2): a(f'ds_write_b128 v7, {vr(224+(kt*2+ht)*4,4)} offset:{ht*16*272 + kt*64}')
    a.label('LB_noqk')
    a(f'''s_lshl_b32 s40, s3, 2
v_add_u32 v9, s40, v3              ; head = 4w+g
v_mul_u32_u24 v4, 272, v9
v_lshl_add_u32 v4, v2, 4, v4
v_add_u32 v4, {SPB}, v4
v_mul_u32_u24 v5, 144, v9
v_lshl_add_u32 v5, v2, 3, v5
v_add_u32 v5, {PB}, v5
s_lshl_b32 s40, s2, 4
s_add_u32 s40, s40, {H3}
v_lshl_add_u32 v6, v9, 11, s40
v_lshlrev_b32 v7, 4, v9
v_add_u32 v7, {STB}, v7
v_lshlrev_b32 v10, 2, v2           ; 4*kq
v_mov_b32 v45, {TAG}
v_mov_b32 v47, {TAG}
s_lshl_b32 s40, s2, 7
s_add_u32 s40, s40, {DB3}
v_mov_b32 v8, s40
v_cmp_eq_u32 vcc, 1, v1
v_cndmask_b32 v6, v6, v8, vcc
s_cmp_eq_u32 s3, 7
s_cselect_b32 s49, 2, 0
s_or_b32 s49, s49, 0x00010001
v_mov_b32 v58, {STB + 512}
v_mov_b32 v13, 0
ds_write_b64 v58, v[12:13]
ds_write_b32 v58, v12 offset:12
ds_write_b32 v58, v12 offset:16''')
    for i in range(4): a(f'v_add_u32 v{40+i}, {i}, v10')
    a.bar()
    a.stamp('qk')
    a('s_setprio 3')
    for i in range(4): a(f'ds_read_b128 {vr(16+4*i,4)}, v4 offset:{8704*i}')
    a(f'''v_mul_u32_u24 v4, 144, v2
v_lshl_add_u32 v4, v3, 4, v4
v_add_u32 v4, {PB}, v4
v_mov_b32 v11, {NEGINF:#x}
s_mov_b32 s40, 0xffffffc0
s_waitcnt lgkmcnt(0)''')
    for i in (0, 2):
        a(f'v_pk_add_f32 {vr(16+i,2)}, {vr(16+i,2)}, {vr(20+i,2)}\nv_pk_add_f32 {vr(24+i,2)}, {vr(24+i,2)}, {vr(28+i,2)}')
    for i in (0, 2): a(f'v_pk_add_f32 {vr(32+i,2)}, {vr(16+i,2)}, {vr(24+i,2)}')
    for i in range(4): a(f'v_and_or_b32 v{36+i}, v{32+i}, s40, v{40+i}')
    a('v_max3_f32 v50, v36, v37, v38\nv_max_f32 v50, v50, v39')
    a('v_cvt_pk_bf16_f32 v36, v32, v33\nv_cvt_pk_bf16_f32 v37, v34, v35')
    fill = ['v_lshlrev_b32 v32, 16, v36\nv_and_b32 v33, 0xffff0000, v36', 'v_lshlrev_b32 v34, 16, v37\nv_and_b32 v35, 0xffff0000, v37',
            'v_mul_f32 v32, s59, v32\nv_mul_f32 v33, s59, v33', 'v_mul_f32 v34, s59, v34\nv_mul_f32 v35, s59, v35']
    for k, f in zip((8, 4, 2, 1), fill):
        a(f'v_max_f32_dpp v50, v50, v50 row_ror:{k} row_mask:0xf bank_mask:0xf')
        a(f)
    a('''v_cvt_pk_bf16_f32 v44, v50, v50
v_cvt_pk_bf16_f32 v36, v32, v33
v_and_b32 v44, 0xffff0000, v44
v_cvt_pk_bf16_f32 v37, v34, v35
v_mul_f32 v44, s59, v44
v_and_b32 v46, 63, v50
v_cvt_pk_bf16_f32 v44, v44, v44
v_lshlrev_b32 v32, 16, v36
v_and_b32 v44, 0xffff0000, v44
s_mov_b32 exec_lo, s49
s_mov_b32 exec_hi, 0x00010001''')
    a(f'global_store_dwordx4 v6, v[44:47], {WS} sc1')
    a.full()
    a.stamp('h3pub')
    a('''v_and_b32 v33, 0xffff0000, v36
v_lshlrev_b32 v34, 16, v37
v_and_b32 v35, 0xffff0000, v37''')
    for i in range(4): a(f'v_sub_f32 v{24+i}, v{32+i}, v44')
    for i in range(4): a(f'v_mul_f32 v{24+i}, s56, v{24+i}')
    for i in range(4): a(f'v_exp_f32 v{24+i}, v{24+i}')
    a('''v_cvt_pk_bf16_f32 v36, v24, v25
v_cvt_pk_bf16_f32 v37, v26, v27
ds_write_b64 v5, v[36:37]
v_add_f32 v49, v24, v25
v_add_f32 v48, v26, v27
v_add_f32 v49, v49, v48''')
    def deferred():
        for i in range(4):
            a(f'v_cmp_eq_u32 vcc, v{40+i}, v46\nv_cndmask_b32 v{32+i}, v{32+i}, v11, vcc')
        a('v_max3_f32 v50, v32, v33, v34\nv_max_f32 v50, v50, v35')
        for k in (8, 4, 2, 1):
            a(f'v_max_f32_dpp v50, v50, v50 row_ror:{k} row_mask:0xf bank_mask:0xf\nv_add_f32_dpp v49, v49, v49 row_ror:{k} row_mask:0xf bank_mask:0xf')
        for i in range(4): a(f'v_sub_f32 v{32+i}, v{32+i}, v50')
        for i in range(4): a(f'v_mul_f32 v{32+i}, s56, v{32+i}')
        for i in range(4): a(f'v_exp_f32 v{32+i}, v{32+i}')
        a('''v_add_f32 v51, v32, v33
v_add_f32 v48, v34, v35
v_add_f32 v51, v51, v48
v_cvt_pk_bf16_f32 v38, v32, v33
v_cvt_pk_bf16_f32 v39, v34, v35
ds_write_b64 v5, v[38:39] offset:4608
v_mov_b32 v48, v44''')
        a.row_red('v_add_f32', [51])
        a('ds_write_b128 v7, v[48:51]\nv_mov_b32 v8, 1\ns_mov_b64 exec, 1\nds_add_u32 v58, v8 offset:16\ns_mov_b64 exec, -1')
    a.stamp('xa')
    a.bar()
    a.stamp('xb')
    a.wave_is('lt', 4, 'LB_lw')
    for ht in range(2):
        for ks in range(2): a(f'ds_read_b128 {vr(16+(ht*2+ks)*4,4)}, v4 offset:{ht*16*144 + ks*64}')
    a('s_waitcnt lgkmcnt(0)')
    def unit(i):
        cl, ht = i >> 1, i & 1
        for tp in range(2):
            for hf in range(2):
                d = 160 + (i % 3)*16 + (tp*2+hf)*4
                t = cl*2 + tp
                for ks in range(2):
                    a(f'v_mfma_f32_16x16x32_bf16 {vr(d,4)}, {vr(64+((t*2+hf)*2+ks)*4,4)}, {vr(16+(ht*2+ks)*4,4)}, {"0" if ks == 0 else vr(d,4)}')
    def stw(i):
        d = 160 + (i % 3)*16; o = 208 + (i % 2)*8
        for k in range(8): a(f'v_cvt_pk_bf16_f32 v{o+k}, v{d+2*k}, v{d+2*k+1}')
        a(f'ds_write_b128 v60, {vr(o,4)} offset:{(i % 2)*2304}\nds_write_b128 v60, {vr(o+4,4)} offset:{(i % 2)*2304 + 64}')
        o2 = 224 + (i % 3)*8
        a(f'ds_read_b128 {vr(o2,4)}, v61 offset:{(i % 2)*2304}\nds_read_b128 {vr(o2+4,4)}, v61 offset:{(i % 2)*2304 + 1152}')
    def stg(i, pol, n):
        cl, ht = i >> 1, i & 1
        o2 = 224 + (i % 3)*8
        a(f's_waitcnt lgkmcnt({n})')
        a(f'global_store_dwordx4 v{52+2*ht}, {vr(o2,4)}, {WS} offset:{128*cl} {pol}')
        a(f'global_store_dwordx4 v{53+2*ht}, {vr(o2+4,4)}, {WS} offset:{128*cl} {pol}')
    def pvloop(pol):
        unit(0)
        a.stamp('xc')
        unit(1); stw(0)
        for i in range(2, 6):
            unit(i); stw(i - 1); stg(i - 2, pol, 0 if P['stamps'] == 2 else 4)
            if i in (3, 5): a.stamp(f'xd{i}')
        stw(5); stg(4, pol, 0 if P['stamps'] == 2 else 4); stg(5, pol, 0)
    if P['local'] and P['pv_local']:
        a('s_cmp_eq_u64 s[16:17], 0\ns_cbranch_scc0 LB_pvf')
        pvloop('')
        a('s_branch LB_pvd')
        a.label('LB_pvf')
    pvloop('sc1')
    a.label('LB_pvd')
    a('v_mov_b32 v8, 1')
    a.lanes_lt(1)
    a('ds_add_u32 v58, v8')
    a.full()
    a.stamp('pvst')
    deferred()
    a.lds_wait(58, 8, off=16, extra='ds_read2_b32 v[36:37], v57 offset0:1 offset1:5')
    a(f'v_mov_b32 v8, 1\nv_mov_b32 v33, {TAG}\nv_mov_b32 v32, v36\nv_mov_b32 v34, v37\nv_mov_b32 v35, {TAG}')
    a.lanes_lt(16)
    a('s_waitcnt vmcnt(0)')
    a.st_local('s[16:17]', f'global_store_dwordx4 v56, v[32:35], {WS}')
    a.lanes_lt(1)
    a('ds_add_u32 v58, v8 offset:12')
    a.full()
    a.stamp('auxpub')
    a(f'''v_lshlrev_b32 v9, 2, v2
v_add_u32 v9, {STB + 576}, v9
s_lshl_b32 s40, s3, 9
s_add_u32 s40, s40, {SIDE}
v_lshlrev_b32 v10, 13, v2
v_lshl_add_u32 v10, v3, 4, v10
v_add_u32 v10, s40, v10
v_lshlrev_b32 v11, 4, v2
v_add_u32 v11, {STB}, v11
''')
    a.lds_wait(58, 1, off=4, extra='ds_read2_b32 v[40:41], v9 offset0:0 offset1:16')
    for ht in range(2):
        a(f'''v_cmp_gt_u32 s[42:43], 4, v{40+ht}
s_cmp_eq_u64 s[42:43], 0
s_cbranch_scc1 LB_cn{ht}
ds_read_b128 v[16:19], v4 offset:{4608 + ht*16*144}
ds_read_b128 v[20:23], v4 offset:{4608 + ht*16*144 + 64}
ds_read_b64 v[44:45], v11 offset:{ht*256 + 8}
v_and_b32 v42, 3, v{40+ht}
v_lshl_add_u32 v42, v42, 11, v10
v_add_u32 v42, {ht*16*8192}, v42
s_waitcnt lgkmcnt(0)''')
        for t in range(6):
            for hf in range(2):
                d = 160 + (t*2+hf)*4
                for ks in range(2):
                    a(f'v_mfma_f32_16x16x32_bf16 {vr(d,4)}, {vr(64+((t*2+hf)*2+ks)*4,4)}, {vr(16+ks*4,4)}, {"0" if ks == 0 else vr(d,4)}')
        for t in range(6):
            for k in range(4): a(f'v_cvt_pk_bf16_f32 v{208+4*t+k}, v{160+8*t+2*k}, v{161+8*t+2*k}')
        a.san(range(208, 232))
        a(f'v_mov_b32 v46, v45\nv_mov_b32 v45, {TAG}\nv_mov_b32 v47, {TAG}\ns_mov_b64 exec, s[42:43]')
        for t in range(6): a(f'global_store_dwordx4 v42, {vr(208+4*t,4)}, {WS} offset:{64*t} sc1')
        a(f's_and_b64 exec, exec, 0xffff\nglobal_store_dwordx4 v42, v[44:47], {WS} offset:384 sc1')
        a.full()
        a.label(f'LB_cn{ht}')
    a('v_mov_b32 v8, 1')
    a.lanes_lt(1)
    a('ds_add_u32 v58, v8')
    a.full()
    a('s_branch LB_lw2')
    a.label('LB_lw')
    a('s_setprio 0')
    deferred()
    a.wave_is('eq', 4, 'LB_lw3')
    a(f'''v_and_b32 v9, 31, v1
v_lshlrev_b32 v10, 2, v9
v_add_u32 v10, {STB + 576}, v10
s_lshl_b32 s40, s39, 4
s_add_u32 s40, s40, s38
s_lshl_b32 s40, s40, 8
s_add_u32 s40, s40, {MB}
v_lshl_add_u32 v9, v9, 3, s40
''')
    a.lds_wait(58, P['ew_cnt'], sleep=2)
    a.poll(lambda: a(f'global_load_dwordx2 v[16:17], v9, {WS} sc1'), lambda: a.chk_tag([17], 8), sleep=P['sl_el'])
    a.stamp('el')
    a('ds_write_b32 v10, v16\nv_mov_b32 v8, 1\nds_write_b32 v58, v8 offset:4')
    a.label('LB_lw2')
    a.lds_wait(58, 8, sleep=P['sl_lw'])
    a('s_branch LB_late')
    a.label('LB_lw3')
    if P['early_late']: a.lds_wait(58, 4, off=12, sleep=P['sl_lw'])
    else: a.lds_wait(58, 8, sleep=P['sl_lw'])
    a.label('LB_late')
    def gate2(): a.lds_wait(58, 8, sleep=P['sl_lw'])
    a('s_cmp_lt_u32 s54, 80\ns_cbranch_scc0 LB_hi')
    a.wave_is('ge', 4, 'LB_wob')
    a(f'''s_mul_i32 s40, s39, 768
s_mul_i32 s41, s45, 192
s_add_u32 s40, s40, s41
s_lshl_b32 s41, s38, 7''')
    blk2_addr(a, 4, 's40', 1280, 's41')
    a(f'v_add_u32 v5, {64*1280}, v4\nv_add_u32 v6, {128*1280}, v4')
    for i in range(3):
        a.load_rows(64 + 32*i, 4, 4 + i, WO, 1280)
        if i == P['early_late'] - 1: gate2()
    a(f'''s_mul_i32 s40, s39, 12
s_mul_i32 s41, s45, 3
s_add_u32 s40, s40, s41
s_lshl_b32 s40, s40, 10
s_add_u32 s40, s40, {H5}
v_lshl_add_u32 v4, v1, 4, s40
s_mul_i32 s40, s45, 384
s_add_u32 s40, s40, {MISC + 4096}
v_lshl_add_u32 v5, v2, 2, v3
v_lshl_add_u32 v5, v5, 1, s40      ; (4p+g)*2''')
    frag2_addr(a, 6, 's40')
    gemv_out_prep(a, MISC + 2048 - 1024)
    for i in range(3):
        a(f's_waitcnt vmcnt({16 - 8*i})')
        a.perm_block(160 + 32*i, 64 + 32*i)
    a.stamp('late')
    if P['probe_h5']: a.probe(4, 8, off=2048, sleep=P['sl_pr'], post=P['post_h5'], mask=0x0001000100010001)
    def ld():
        for i in range(3): a(f'global_load_dwordx4 {vr(16+4*i,4)}, v4, {WS} offset:{1024*i} sc1')
    a.poll(ld, lambda: a.chk_sent(range(16, 28), 8), sleep=P['sl_h5'])
    a.stamp('h5')
    a('s_setprio 3')
    for i in range(3): a.xrow_tr4(16 + 4*i)
    for i in range(3): a(f'v_cvt_pk_bf16_f32 v{16+4*i}, v{16+4*i}, v{16+4*i}\nds_write_b16 v5, v{16+4*i} offset:{128*i}')
    a('s_waitcnt lgkmcnt(0)')
    for i in range(3): a(f'ds_read_b128 {vr(16+4*i,4)}, v6 offset:{128*i}')
    for i in range(3):
        a(f's_waitcnt lgkmcnt({2-i})')
        a.gemv2(64, 16 + 4*i, 160 + 32*i, i == 0)
    gemv_out_lds(a, 64, 0)
    a.label('LB_wob')
    a(f'''v_lshlrev_b32 v4, 4, v2
v_add_u32 v4, {MISC + 2048}, v4
s_mul_i32 s40, s39, 2560
s_lshl_b32 s41, s38, 8
s_add_u32 s40, s40, s41
s_add_u32 s40, s40, {H6}
v_lshl_add_u32 v5, v2, 4, s40''')
    a.bar()
    a.wave_is('eq', 4, 'Lfin')
    for i in range(4): a(f'ds_read_b128 {vr(16+4*i,4)}, v4 offset:{256*i}')
    a('s_waitcnt lgkmcnt(0)')
    tree(a, range(16, 32, 4), n=4)
    a.lanes_lt(16)
    a(f'global_store_dwordx4 v5, v[16:19], {WS} sc1')
    a.full()
    a.stamp('h6pub')
    a('s_branch Lfin')
    a.label('LB_hi')
    a('s_cmp_lt_u32 s54, 104\ns_cbranch_scc0 LB_mr')
    a(f's_sub_u32 s46, s54, 80\ns_lshl_b32 s40, s46, 6\ns_lshl_b32 s41, s3, 7')
    blk2_addr(a, 10, 's40', 1280, 's41')
    a.wave_is('lt', 5, 'LB_f5')
    a(f's_lshl_b32 s40, s3, 7\ns_lshl_b32 s41, s46, 7')
    blk2_addr(a, 4, 's40', 3072, 's41')
    a(f'v_add_u32 v5, {64*3072}, v4\nv_lshlrev_b32 v6, 2, v0\nglobal_load_dword v24, v6, {X}')
    a.load_rows(128, 4, 4, W1, 3072)
    a.load_rows(160, 4, 5, W1, 3072)
    a.load_rows(64, 4, 10, W2, 1280)
    a(f'v_lshlrev_b32 v4, 2, v0\nv_add_u32 v4, {MODR}, v4\nv_add_u32 v5, 2560, v4\ns_waitcnt vmcnt(8)')
    a.perm_block(192, 128)
    a.perm_block(224, 160)
    a('s_waitcnt vmcnt(0)')
    a.stamp('late1')
    a.perm_block(96, 64)
    a.ready_check(0, 36)
    def ld():
        a(f'''global_load_dword v25, v4, {WS} sc1
global_load_dword v26, v4, {WS} offset:1280 sc1
global_load_dword v27, v5, {WS} sc1
global_load_dword v38, v5, {WS} offset:1280 sc1''')
    a.poll(ld, lambda: a.chk_sent([25, 26, 27, 38], 8), sleep=8)
    a(f'''v_lshlrev_b32 v4, 3, v0
v_add_u32 v8, {H6}, v4
v_lshlrev_b32 v28, 16, v24
v_and_b32 v29, 0xffff0000, v24
v_lshlrev_b32 v30, 16, v25
v_and_b32 v31, 0xffff0000, v25
v_lshlrev_b32 v32, 16, v26
v_and_b32 v33, 0xffff0000, v26
v_lshlrev_b32 v34, 16, v27
v_and_b32 v35, 0xffff0000, v27
v_add_f32 v34, 1.0, v34
v_add_f32 v35, 1.0, v35''')
    a.rnd(34, 34); a.rnd(35, 35)
    for i in range(1, 4): a(f'v_add_u32 v{8+i}, {5120*i}, v8')
    a(f'''s_lshl_b32 s40, s3, 3
s_add_u32 s40, s40, {MISC + 8192}
v_mov_b32 v13, s40
s_lshl_b32 s40, s3, 8
s_add_u32 s40, s40, {MISC + 4096}
v_lshl_add_u32 v5, v1, 2, s40''')
    frag2_addr(a, 6, 's40')
    gemv_out_prep(a, MISC)
    a(f'v_mul_u32_u24 v37, 2560, v1\ns_lshl_b32 s40, s3, 9\ns_add_u32 s40, s40, {H6}\nv_add_u32 v37, s40, v37')
    if P['probe_h6']: a.probe(37, 4, sleep=P['sl_pr'], post=P['post_h6'], mask=0xff)
    def ld():
        for i in range(8): a(f'global_load_dwordx2 {vr(40+2*i,2)}, v{8 + i//2}, {WS} offset:{2560*(i%2)} sc1')
    if P['m_h6']:
        a.poll_masked([(f'global_load_dwordx2 {vr(40+2*i,2)}, v{8 + i//2}, {WS} offset:{2560*(i%2)} sc1', range(40+2*i, 42+2*i)) for i in range(8)], 4, sleep=P['sl_h6'])
    else: a.poll(ld, lambda: a.chk_sent(range(40, 56), 4), sleep=P['sl_h6'])
    a.stamp('h6')
    a('s_setprio 3')
    tree(a, range(40, 56, 2), n=2)
    for i in range(2): a.rnd(40 + i, 40 + i)
    for i in range(2): a(f'v_mul_f32 v{40+i}, v{30+i}, v{40+i}')
    for i in range(2): a.rnd(40 + i, 40 + i)
    for i in range(2): a(f'v_add_f32 v{40+i}, v{28+i}, v{40+i}')
    a('''v_cvt_pk_bf16_f32 v36, v40, v41
v_lshlrev_b32 v40, 16, v36
v_and_b32 v41, 0xffff0000, v36
v_readfirstlane_b32 s42, v40
v_subrev_f32 v44, s42, v40
v_subrev_f32 v45, s42, v41
v_add_f32 v42, v44, v45
v_mul_f32 v43, v44, v44
v_fmac_f32 v43, v45, v45''')
    a.row_red('v_add_f32', [42, 43])
    a(f'''v_permlane16_swap_b32 v42, v43
v_add_f32 v42, v42, v43
v_mov_b32 v43, v42
v_permlane32_swap_b32 v42, v43
v_add_f32 v42, v42, v43
v_mov_b32 v43, v42
v_permlane16_swap_b32 v42, v43
v_mul_f32 v42, {f2u(1/128):#x}, v42
v_mul_f32 v44, {f2u(128.0):#x}, v42
v_fma_f32 v43, -v44, v42, v43
v_add_f32 v42, s42, v42
ds_write_b64 v13, v[42:43]
s_branch LB_w1b''')
    a.label('LB_f5')
    a.load_rows(64, 4, 10, W2, 1280)
    if P['early_late'] < 2: gate2()
    a.wave_is('lt', 7, 'LB_f7')
    a(f's_lshl_b32 s40, s46, 6\ns_add_u32 s41, s3, 3\ns_lshl_b32 s41, s41, 7')
    blk2_addr(a, 10, 's40', 1280, 's41')
    a.load_rows(128, 4, 10, W2, 1280)
    a.label('LB_f7')
    a('s_waitcnt vmcnt(0)')
    a.perm_block(96, 64)
    a.perm_block(192, 128)
    a.label('LB_w1b')
    a(f'v_mov_b32 v4, {MISC + 8192}')
    a.bar()
    a('s_setprio 3')
    a.wave_is('lt', 5, 'LB_w1c')
    a(f'''ds_read_b128 v[44:47], v4
ds_read_b128 v[48:51], v4 offset:16
ds_read_b64 v[52:53], v4 offset:32
s_waitcnt lgkmcnt(0)
v_add_f32 v54, v44, v46
v_add_f32 v55, v48, v50
v_add_f32 v56, v45, v47
v_add_f32 v54, v54, v55
v_add_f32 v57, v49, v51
v_add_f32 v54, v54, v52
v_add_f32 v55, v56, v57
v_mul_f32 v54, {f2u(0.2):#x}, v54      ; mean
v_add_f32 v55, v55, v53''')
    for r in (44, 46, 48, 50, 52): a(f'v_sub_f32 v{r}, v{r}, v54')
    a('v_mul_f32 v56, v44, v44\nv_mul_f32 v57, v46, v46\nv_fmac_f32 v56, v48, v48\nv_fmac_f32 v57, v50, v50\nv_fmac_f32 v56, v52, v52\nv_add_f32 v56, v56, v57')
    a(f'v_fmac_f32 v55, {f2u(128.0):#x}, v56\nv_mul_f32 v55, {f2u(1/640):#x}, v55')
    ln_finish(a, 54, 55, 56)
    for i in range(2): a(f'v_sub_f32 v{44+i}, v{40+i}, v54')
    for i in range(2): a.rnd(44 + i, 44 + i)
    for i in range(2): a.div(42 + i, 44 + i, 55, 56, 57 + i)
    for i in range(2): a.rnd(42 + i, 42 + i)
    for i in range(2): a(f'v_mul_f32 v{42+i}, v{42+i}, v{34+i}')
    for i in range(2): a.rnd(42 + i, 42 + i)
    for i in range(2): a(f'v_add_f32 v{42+i}, v{42+i}, v{32+i}')
    a('''v_cvt_pk_bf16_f32 v42, v42, v43
ds_write_b32 v5, v42
s_waitcnt lgkmcnt(0)
ds_read_b128 v[16:19], v6
ds_read_b128 v[20:23], v6 offset:128
s_waitcnt lgkmcnt(1)''')
    a.gemv2(128, 16, 192, True)
    a('s_waitcnt lgkmcnt(0)')
    a.gemv2(128, 20, 224, False)
    gemv_out_lds(a, 128, MISC)
    a.label('LB_w1c')
    a(f'''v_and_b32 v4, 31, v1
v_lshlrev_b32 v5, 2, v4
v_lshlrev_b32 v4, 3, v4
v_add_u32 v4, {MISC}, v4
s_lshl_b32 s40, s3, 7
s_add_u32 s40, s40, {MISC + 6144}
v_add_u32 v5, s40, v5''')
    frag2_addr(a, 6, 's40')
    a(f's_mul_i32 s40, s46, 2560\ns_lshl_b32 s41, s3, 8\ns_add_u32 s40, s40, s41\ns_add_u32 s40, s40, {H7Y}')
    pack_addr(a, 14, 's40')
    a.bar()
    for i in range(5): a(f'ds_read_b64 {vr(16+2*i,2)}, v4 offset:{256*i}')
    a('s_waitcnt lgkmcnt(0)')
    tree(a, range(16, 26, 2), n=2)
    a('''v_max_f32 v16, 0, v16
v_max_f32 v17, 0, v17
v_cvt_pk_bf16_f32 v8, v16, v17
ds_write_b32 v5, v8
s_waitcnt lgkmcnt(0)
ds_read_b128 v[16:19], v6
s_waitcnt lgkmcnt(0)''')
    a.gemv2(64, 16, 96, True)
    a('s_sub_u32 s40, s3, 5\ns_cmp_lt_u32 s40, 2\ns_cbranch_scc0 LB_y1')
    a.gemv2(128, 16, 192, True)
    a.label('LB_y1')
    a.pack2(8, 64)
    a.lanes_lt(16)
    a(f'global_store_dwordx4 v14, v[8:11], {WS} sc1')
    a.full()
    a('s_cbranch_scc0 LB_y2')
    a.pack2(20, 128)
    a.lanes_lt(16)
    a(f'global_store_dwordx4 v14, v[20:23], {WS} offset:768 sc1')
    a.full()
    a.label('LB_y2')
    a.stamp('h7pub')
    a('s_lshr_b32 s40, s46, 2\ns_cmp_eq_u32 s40, s3\ns_cbranch_scc0 Lfin\ns_cmp_lt_u32 s3, 5\ns_cbranch_scc0 Lfin\ns_and_b32 s40, s46, 3\ns_lshl_b32 s40, s40, 4\ns_mov_b64 s[42:43], 0xffff\ns_lshl_b64 exec, s[42:43], s40')
    a(f'v_lshlrev_b32 v4, 3, v0\nv_add_u32 v4, {H7Y}, v4')
    for i in range(1, 12): a(f'v_add_u32 v{16+i}, {5120*i}, v4')
    a(f'''v_mov_b32 v16, v4
v_lshlrev_b32 v5, 2, v0
v_lshlrev_b32 v30, 16, v38
v_and_b32 v31, 0xffff0000, v38''')
    def ld():
        for i in range(24): a(f'global_load_dwordx2 {vr(64+2*i,2)}, v{16 + i//2}, {WS} offset:{2560*(i%2)} sc1')
    a.poll(ld, lambda: a.chk_sent(range(64, 112), 4), sleep=P['sl_h7'], pre=P['pre_h7'])
    a.stamp('h7')
    tree(a, range(64, 112, 2), n=2)
    for i in range(2): a.rnd(64 + i, 64 + i)
    for i in range(2): a(f'v_mul_f32 v{64+i}, v{30+i}, v{64+i}')
    for i in range(2): a.rnd(64 + i, 64 + i)
    for i in range(2): a(f'v_add_f32 v{64+i}, v{40+i}, v{64+i}')
    a(f'v_cvt_pk_bf16_f32 v64, v64, v65\nglobal_store_dword v5, v64, {OUT}\ns_mov_b64 exec, -1')
    a.stamp('out')
    a('s_branch Lfin')
    a.label('LB_mr')
    a('s_cmp_lt_u32 s54, 124\ns_cbranch_scc0 Lfin\ns_sub_u32 s46, s54, 104\ns_add_u32 s45, s3, 3\ns_and_b32 s45, s45, 7\ns_cmp_lt_u32 s45, 5\ns_cbranch_scc0 LB_mrb')
    a(f'''s_lshl_b32 s40, s45, 7
v_lshl_add_u32 v4, v3, 3, s40      ; row = 128w + 8g
v_lshlrev_b32 v6, 1, v4
v_add_u32 v6, {MISC + 4096}, v6
v_mul_u32_u24 v4, 7680, v4
v_lshl_add_u32 v4, v2, 4, v4
s_lshl_b32 s40, s46, 8
s_add_u32 s40, s40, 2560
v_add_u32 v4, s40, v4
s_lshl_b32 s40, s45, 8
v_lshl_add_u32 v7, v1, 2, s40
global_load_dword v16, v7, {CC}
v_add_u32 v7, {MISC + 4096}, v7''')
    for i in range(4):
        a.load_rows(64 + 32*i, 4, 4, WMOD, 7680)
        if i < 3: a(f'v_add_u32 v4, {25*7680}, v4')
        if i == P['early_late'] - 1: gate2()
    a('s_waitcnt vmcnt(32)')
    a('v_lshlrev_b32 v32, 16, v16\nv_and_b32 v33, 0xffff0000, v16')
    a.silu(32, 32, 8); a.silu(33, 33, 8)
    a(f'v_perm_b32 v16, v33, v32, {PHI}\nds_write_b32 v7, v16\ns_waitcnt lgkmcnt(0)')
    for i in range(4): a(f'ds_read_b128 {vr(16+4*i,4)}, v6 offset:{64*i}')
    a('s_waitcnt lgkmcnt(0)')
    a(f'''v_cmp_eq_u32 s[42:43], 1, v3
v_lshlrev_b32 v4, 5, v2
v_lshl_add_u32 v4, v3, 4, v4
s_lshl_b32 s40, s45, 9
s_add_u32 s40, s40, {MISC}
v_add_u32 v4, s40, v4''')
    for i in range(4):
        a(f's_waitcnt vmcnt({24 - 8*i})')
        a.perm_block(192, 64 + 32*i)
        a.gemv2(224, 16 + 4*i, 192, i == 0)
    a.stamp('late2')
    for i in range(4): a(f'v_cndmask_b32 v{8+i}, v{224+4*i}, v{224+4*(i+4)}, s[42:43]')
    a.lanes_lt(32)
    a('ds_write_b128 v4, v[8:11]')
    a.full()
    a.label('LB_mrb')
    a.bar()
    a.wave_is('eq', 2, 'Lfin')
    a(f'v_lshlrev_b32 v4, 3, v1\nv_add_u32 v4, {MISC}, v4')
    for i in range(5): a(f'ds_read_b64 {vr(16+2*i,2)}, v4 offset:{512*i}')
    a(f's_lshl_b32 s40, s46, 8\ns_add_u32 s40, s40, {MODR}\nv_lshl_add_u32 v4, v1, 2, s40\ns_waitcnt lgkmcnt(0)')
    tree(a, range(16, 26, 2), n=2)
    a('v_cvt_pk_bf16_f32 v8, v16, v17')
    a.san([8])
    for i in range(1, 4): a(f'v_mov_b32_dpp v{8+i}, v8 quad_perm:[{i},{i},{i},{i}] row_mask:0xf bank_mask:0xf')
    a.exec_mask(0x1111111111111111)
    a(f'global_store_dwordx4 v4, v[8:11], {WS} sc1')
    a.full()
    a.stamp('mrpub')
    a('s_branch Lfin')

LS1, LQ, LKEY, LEK, LWT, LWP, LFW, LKP = 0, 2816, 3328, 3840, 4096, 4608, 5120, 6144
LRP = LKP + 18432; LCC = LRP + 6144; LVP = LCC + 1024; LQF = LVP + 4608; LSR = LQF + 1024; LFL = LSR + 1536
def load_uk(a, base, off=128, lo=0, hi=8, v=4):
    if lo == hi: return
    a(f'''s_mul_i32 s40, s41, 192
s_lshl_b32 s42, s3, 5
s_add_u32 s40, s40, s42
s_add_u32 s40, s40, {lo}
v_lshl_add_u32 v{v}, v3, 3, s40
v_mul_u32_u24 v{v}, 12288, v{v}
s_mul_i32 s40, s47, 384
v_add_u32 v{v}, s40, v{v}
v_lshl_add_u32 v{v+1}, v2, 3, v{v}
v_lshl_add_u32 v{v}, v2, 4, v{v}''')
    for j in range(lo, hi):
        a(f'global_load_dwordx4 {vr(off+4*j,4)}, v{v}, {base} nt')
        a(f'global_load_dwordx2 {vr(off+32+2*j,2)}, v{v+1}, {base} offset:256 nt')
        if j < hi - 1: a(f'v_add_u32 v{v}, 12288, v{v}\nv_add_u32 v{v+1}, 12288, v{v+1}')
def perm12(a, dst, src=128):
    a.perm_block(dst, src, nreg=4); a.perm_block(dst + 32, src + 32, nreg=2)
def mfma12(a, D, A, F):
    for e in range(12): a(f'v_mfma_f32_16x16x32_bf16 {vr(D+4*e,4)}, {vr(A,4)}, {vr(F+4*e,4)}, 0')
def out12_prep(a, v, lbase):
    a(f's_mul_i32 s40, s3, 768\ns_add_u32 s40, s40, {lbase}\nv_lshl_add_u32 v{v}, v2, 5, s40\nv_lshl_add_u32 v{v+1}, v2, 4, s40')
def out12(a, D, o, v):
    for e in range(12): a(f'v_add_f32 v{o+e}, v{D+4*e}, v{D+4*e+1}')
    a.lanes_lt(16)
    a(f'ds_write_b128 v{v}, {vr(o,4)}\nds_write_b128 v{v}, {vr(o+4,4)} offset:16\nds_write_b128 v{v+1}, {vr(o+8,4)} offset:512')
    a.full()
def weights_out(a, val, lbase, k):
    a(f'''v_cvt_pk_bf16_f32 v8, v{val}, v{val}
ds_write_b16 v4, v8 offset:{lbase + 128*k}
v_and_b32 v9, 0xffff0000, v8
v_sub_f32 v9, v{val}, v9
v_cvt_pk_bf16_f32 v9, v9, v9
ds_write_b16 v4, v9 offset:{lbase + 256 + 128*k}''')

def role_A(a):
    P = a.P
    a(f'''s_and_b32 s44, s2, 7
s_lshl_b32 s44, s44, 4
s_bfe_u32 s40, s2, 0x40003
s_add_u32 s44, s44, s40
s_mul_i32 s39, s44, 205
s_lshr_b32 s39, s39, 11          ; kp = a/10
s_mul_i32 s40, s39, 10
s_sub_u32 s38, s44, s40          ; mg = a%10
s_lshr_b32 s47, s44, 2           ; head
s_and_b32 s41, s44, 3            ; quarter
v_mov_b32 v12, 0
s_mul_i32 s40, s39, 80
s_lshl_b32 s42, s3, 4
s_add_u32 s40, s40, s42
v_lshl_add_u32 v5, v3, 2, s40      ; row0
v_mul_u32_u24 v4, 7680, v5
v_lshrrev_b32 v6, 3, v2
v_mul_u32_u24 v6, 1152, v6
v_lshl_add_u32 v6, v2, 4, v6
s_lshl_b32 s42, s38, 7
v_add3_u32 v4, v4, v6, s42
v_lshlrev_b32 v5, 1, v5
s_waitcnt lgkmcnt(0)''')
    a.stamp('start')
    a.wave_is('lt', 5, 'LA_nos1')
    a('s_cmp_lt_u32 s44, 80\ns_cbranch_scc0 LA_nos1')
    a(f'global_load_dwordx2 v[32:33], v5, {CC}')
    a.load_rows(16, 4, 4, WMOD, 7680, rows=4)
    a(f'global_load_dword v15, v12, {WS} sc1')
    U1 = P['uk1']
    load_uk(a, WUK, hi=U1)
    a.stamp('x1')
    a('s_branch LA2')

def role_A2(a):
    P = a.P; U1 = P['uk1']
    a.label('LA2')
    consts(a)
    a(f'''s_waitcnt vmcnt({5+2*U1})
v_lshlrev_b32 v36, 16, v32
v_and_b32 v37, 0xffff0000, v32
v_lshlrev_b32 v38, 16, v33
v_and_b32 v39, 0xffff0000, v33''')
    a.stamp('x2')
    for i in range(4): a.silu(36 + i, 36 + i, 8)
    a.stamp('x3')
    a(f'''v_perm_b32 v34, v37, v36, {PHI}
v_perm_b32 v35, v39, v38, {PHI}
v_cmp_eq_u32 vcc, 1, v3
v_lshlrev_b32 v4, 5, v2
v_lshl_add_u32 v4, v3, 4, v4
s_lshl_b32 s40, s3, 9
v_add_u32 v4, s40, v4''')
    a(f's_waitcnt vmcnt({1+2*U1})')
    a.stamp('x4')
    for e in range(8):
        for k in range(2):
            a(f'v_perm_b32 v{40+2*e+k}, v{16+(2*k+1)*4+(e>>1)}, v{16+2*k*4+(e>>1)}, {PHI if e & 1 else PLO}')
        a(f'v_mfma_f32_16x16x16_bf16 {vr(64+4*e,4)}, v[34:35], {vr(40+2*e,2)}, 0')
    for i in range(4): a(f'v_cndmask_b32 v{8+i}, v{64+4*i}, v{64+4*(i+4)}, vcc')
    a.lanes_lt(32)
    a('ds_write_b128 v4, v[8:11]')
    a.full()
    a(f's_waitcnt vmcnt({2*U1})')
    a.get_tag()
    a('s_branch LA_b1')
    a.label('LA_nos1')
    a('s_getreg_b32 s16, hwreg(HW_REG_XCC_ID, 0, 4)' if False else 's_nop 0')
    a(f'global_load_dword v15, v12, {WS} sc1')
    a.wave_is('lt', 6, 'LA_nos1b')
    load_uk(a, WUK, hi=U1)
    a.label('LA_nos1b')
    consts(a)
    a.wave_is('eq', 7, 'LA_not7')
    neg1(a)
    a(f'''s_mul_i32 s40, s41, 12288
s_lshr_b32 s42, s47, 4
s_lshl_b32 s42, s42, 10
s_add_u32 s40, s40, s42
s_and_b32 s42, s47, 15
s_lshl_b32 s42, s42, {4 if P['h2lay'] else 6}
s_add_u32 s40, s40, s42
s_add_u32 s40, s40, {H2}
v_lshrrev_b32 v4, 2, v1
v_min_u32 v4, 5, v4
v_lshlrev_b32 v4, 11, v4
v_and_b32 v5, 3, v1
v_lshl_add_u32 v4, v5, {8 if P['h2lay'] else 4}, v4
v_add_u32 v4, s40, v4
global_store_dwordx4 v4, v[8:11], {WS} sc1''')
    a.ready_publish()
    a(f'''s_mul_i32 s40, s44, 3072
s_add_u32 s40, s40, {H4S}
v_lshl_add_u32 v4, v1, 4, s40
global_store_dwordx4 v4, v[8:11], {WS} sc1
global_store_dwordx4 v4, v[8:11], {WS} offset:1024 sc1
global_store_dwordx4 v4, v[8:11], {WS} offset:2048 sc1
s_lshl_b32 s40, s47, 13
s_lshl_b32 s42, s41, 9
s_add_u32 s40, s40, s42
s_add_u32 s40, s40, {SIDE}
v_lshrrev_b32 v4, 5, v1
v_lshlrev_b32 v4, 11, v4
v_and_b32 v5, 31, v1
v_lshl_add_u32 v4, v5, 4, v4
v_add_u32 v4, s40, v4
v_add_u32 v5, 4096, v4
global_store_dwordx4 v4, v[8:11], {WS} sc1
global_store_dwordx4 v5, v[8:11], {WS} sc1
s_mul_i32 s40, s44, 6144
s_add_u32 s40, s40, {H4G}
v_lshl_add_u32 v4, v1, 4, s40
v_add_u32 v5, 3072, v4
global_store_dwordx4 v4, v[8:11], {WS} offset:0 sc1
global_store_dwordx4 v4, v[8:11], {WS} offset:1024 sc1
global_store_dwordx4 v4, v[8:11], {WS} offset:2048 sc1
global_store_dwordx4 v5, v[8:11], {WS} offset:0 sc1
global_store_dwordx4 v5, v[8:11], {WS} offset:1024 sc1
global_store_dwordx4 v5, v[8:11], {WS} offset:2048 sc1
s_mul_i32 s40, s47, 3072
s_lshl_b32 s42, s41, 8
s_add_u32 s40, s40, s42
s_add_u32 s40, s40, {H5}
v_min_u32 v4, 2, v3
v_lshlrev_b32 v4, 10, v4
v_lshl_add_u32 v4, v2, 4, v4
v_add_u32 v4, s40, v4
global_store_dwordx4 v4, v[8:11], {WS} sc1''')
    a('s_branch LA_b1')
    a.label('LA_not7')
    a.wave_is('eq', 6, 'LA_b1')
    code_warm(a)
    if P['tlb']:
        a(f'''s_mov_b32 s50, 196608
v_mul_lo_u32 v4, v1, s50
global_load_dword v14, v4, {CKV} nt
v_lshlrev_b32 v4, 17, v1
global_load_dword v14, v4, {WS} offset:64 nt''')
    a.label('LA_b1')
    a(f'''v_lshlrev_b32 v4, 2, v1
s_lshl_b32 s40, s38, 13
s_lshl_b32 s42, s39, 7
s_add_u32 s40, s40, s42
s_add_u32 s40, s40, {H1}
v_lshrrev_b32 v5, 3, v1
v_lshlrev_b32 v5, 10, v5
v_and_b32 v6, 7, v1
v_lshl_add_u32 v5, v6, 4, v5
v_add_u32 v5, s40, v5
v_mov_b32 v9, {TAG}
v_mov_b32 v11, {TAG}''')
    a('s_cmp_lt_u32 s44, 80\ns_cbranch_scc0 LA_u80')
    a.bar()
    a.wave_is('eq', 0, 'LA_uk0')
    for w in range(5): a(f'ds_read2st64_b32 {vr(16+2*w,2)}, v4 offset0:{2*w} offset1:{2*w+1}')
    a(f'''s_waitcnt lgkmcnt(0)
v_add_f32 v16, v16, v18
v_add_f32 v17, v17, v19
v_add_f32 v20, v20, v22
v_add_f32 v21, v21, v23
v_add_f32 v16, v16, v20
v_add_f32 v17, v17, v21
v_add_f32 v8, v16, v24
v_add_f32 v10, v17, v25
global_store_dwordx4 v5, v[8:11], {WS} sc1''')
    a.stamp('h1pub')
    a.label('LA_uk0')
    a('s_barrier\ns_branch LA_uk')
    a.label('LA_u80')
    if P['sl_a80']: a(f's_sleep {P["sl_a80"]}')
    a.label('LA_uk')
    a.wave_is('lt', 6, 'LA_nouk')
    load_uk(a, WUK, lo=U1)
    a.label('LA_nouk')
    a(f'''s_mul_i32 s40, s47, 15360
s_mul_i32 s42, s3, 192
s_add_u32 s40, s40, s42
s_add_u32 s40, s40, {H1B}
v_min_u32 v5, 11, v2
v_mul_u32_u24 v4, 1536, v3
v_lshl_add_u32 v4, v5, 4, v4
v_add_u32 v4, s40, v4
v_add_u32 v7, 6144, v4
v_add_u32 v13, 12288, v4
s_mul_i32 s40, s3, 48
v_and_b32 v8, 1, v3
v_lshl_add_u32 v5, v5, 1, v8
v_lshl_add_u32 v5, v5, 1, s40      ; (24w+2dp+(g&1))*2
v_lshlrev_b32 v40, 5, v2
v_lshlrev_b32 v41, 4, v2
v_lshlrev_b32 v42, 1, v5
s_mul_i32 s40, s41, 6
s_add_u32 s40, s40, s3
s_lshl_b32 s40, s40, 11
s_lshr_b32 s42, s47, 4
s_lshl_b32 s42, s42, 10
s_add_u32 s40, s40, s42
s_and_b32 s42, s47, 15
s_lshl_b32 s42, s42, {4 if P['h2lay'] else 6}
s_add_u32 s40, s40, s42
s_add_u32 s40, s40, {H2}
v_lshl_add_u32 v6, v3, {8 if P['h2lay'] else 4}, s40
s_waitcnt vmcnt(0)''')
    a.get_tag()
    a(f'v_mov_b32 v24, 0\nv_mov_b32 v25, {TAG}\nv_mov_b32 v26, 0\nv_mov_b32 v27, {TAG}')
    a.stamp('uk')
    def U(j, k): n = j*6 + k; return 64 + 2*n if n < 32 else 176 + 2*(n - 32)
    def unp():
        a.wave_is('lt', 6, 'LA_nounp')
        for j in range(8):
            for k in range(6):
                src = 128 + 4*j + k if k < 4 else 160 + 2*j + (k - 4)
                a(f'v_lshlrev_b32 v{U(j,k)}, 16, v{src}\nv_and_b32 v{U(j,k)+1}, 0xffff0000, v{src}')
        a.label('LA_nounp')
    if P['probe_h1b']: a.probe(7, 8, off=4, sleep=P['sl_pr'], post=P['post_h1b'], tag=True, mask=0x0001000100010001)
    def ld():
        a(f'global_load_dwordx4 v[16:19], v4, {WS} sc1\nglobal_load_dwordx4 v[20:23], v7, {WS} sc1')
        a.lanes_lt(32)
        a(f'global_load_dwordx4 v[24:27], v13, {WS} sc1')
        a.full()
    a.poll(ld, lambda: a.chk_tag(range(17, 28, 2), 8), sleep=P['sl_h1b'], mid=unp)
    a.stamp('h1b')
    a('s_setprio 3')
    a(f'''v_add_f32 v16, v16, v20
v_add_f32 v18, v18, v22
v_add_f32 v16, v16, v24
v_add_f32 v18, v18, v26
v_permlane16_swap_b32 v16, v18
v_add_f32 v16, v16, v18
v_mov_b32 v18, v16
v_permlane32_swap_b32 v16, v18
v_add_f32 v16, v16, v18
v_cvt_pk_bf16_f32 v16, v16, v16
v_and_b32 v17, 0xffff0000, v16
ds_write_b32 v42, v17 offset:{LQF}
ds_write_b16 v5, v16 offset:{LQ}''')
    a.bar()
    a.wave_is('lt', 6, 'LA_nos3')
    a(f'ds_read_b128 v[44:47], v40 offset:{LQF}\nds_read_b128 v[48:51], v40 offset:{LQF+16}\nds_read_b128 v[52:55], v41 offset:{LQF+512}')
    for k in range(6):
        if k in (0, 2, 4): a(f's_waitcnt lgkmcnt({2 - k//2})')
        for j in range(8):
            if k == 0: a(f'v_pk_mul_f32 {vr(208+2*j,2)}, {vr(U(j,k),2)}, {vr(44+2*k,2)}')
            else: a(f'v_pk_fma_f32 {vr(208+2*j,2)}, {vr(U(j,k),2)}, {vr(44+2*k,2)}, {vr(208+2*j,2)}')
    for j in range(8): a(f'v_add_f32 v{24+j}, v{208+2*j}, v{209+2*j}')
    for i in range(4): a(f'v_add_f32_dpp v{32+i}, v{24+i}, v{24+i} row_ror:8 row_mask:0xf bank_mask:0x3')
    for i in range(4): a(f'v_add_f32_dpp v{32+i}, v{28+i}, v{28+i} row_ror:8 row_mask:0xf bank_mask:0xc')
    for i in range(2): a(f'v_add_f32_dpp v{36+i}, v{32+i}, v{32+i} row_shl:4 row_mask:0xf bank_mask:0x5')
    for i in range(2): a(f'v_add_f32_dpp v{36+i}, v{34+i}, v{34+i} row_shr:4 row_mask:0xf bank_mask:0xa')
    for qp in ('[2,3,0,1]', '[1,0,3,2]'):
        for i in range(2): a(f'v_add_f32_dpp v{36+i}, v{36+i}, v{36+i} quad_perm:{qp} row_mask:0xf bank_mask:0xf')
    a('v_cvt_pk_bf16_f32 v36, v36, v37')
    a.san([36])
    for i in range(1, 4): a(f'v_mov_b32_dpp v{36+i}, v36 row_shl:{4*i} row_mask:0xf bank_mask:0xf')
    a.exec_mask(0x0001000100010001)
    a(f'global_store_dwordx4 v6, v[36:39], {WS} sc1')
    a.full()
    a.stamp('h2pub')
    a('s_setprio 0')
    a('s_barrier')
    perm12(a, 64)
    if P['sl_uv']: a(f's_sleep {P["sl_uv"]}')
    load_uk(a, WUV)
    a('s_waitcnt vmcnt(0)')
    perm12(a, 176)
    a.stamp('wuv')
    a('s_branch LA_s3d')
    a.label('LA_nos3')
    a(f'v_lshlrev_b32 v4, 2, v1\nds_write_b32 v4, v12 offset:{LWP}\nv_and_b32 v4, 12, v4\nds_write_b32 v4, v12 offset:{LFL}\ns_setprio 0')
    a.bar()
    if P['pv_local'] and P['pf_pol'] < 3:
        if P['sl_pf']: a(f's_sleep {P["sl_pf"]}')
        a(f'''s_mul_i32 s40, s44, {CP}
s_and_b32 s42, s3, 1
s_mul_i32 s42, s42, {200*128}
s_add_u32 s40, s40, s42
s_add_u32 s40, s40, {H4}
v_lshl_add_u32 v4, v1, 7, s40''')
        for i in range(4):
            if i == 3: a.lanes_lt(8)
            a(f'global_load_dword v14, v4, {WS} {["nt", "", "sc1"][P["pf_pol"]]}')
            if i < 3: a('v_add_u32 v4, 8192, v4')
        a.full()
    a.label('LA_s3d')
    def fl_wait(i, lab, n=1): a.lds_wait(12, n, off=LFL + 4*i)
    def fl_set(i): a(f'v_mov_b32 v8, 1\nds_write_b32 v12, v8 offset:{LFL + 4*i}')
    def fl_add(i): a(f'v_mov_b32 v8, 1\ns_mov_b64 exec, 1\nds_add_u32 v12, v8 offset:{LFL + 4*i}\ns_mov_b64 exec, -1')
    def esel(sh, probe):
        a(f'''s_lshl_b32 s40, {sh}, 11
s_add_u32 s40, s40, {H3}
v_lshl_add_u32 v4, v1, 4, s40
s_and_b32 s42, s47, 15
s_lshl_b32 s42, s42, 7
s_add_u32 s42, s42, {DB3}
v_lshl_add_u32 v5, v1, 11, s42
s_mov_b32 s48, {f2u(-1/64):#x}
v_mov_b32 v24, {NEGINF:#x}''')
        if probe: a.probe(5, 8, off=4, sleep=P['sl_pr3'], post=P['post_h3'], tag=True, mask=0xff)
        a.poll(lambda: a(f'global_load_dwordx4 v[28:31], v4, {WS} sc1\nglobal_load_dwordx4 v[32:35], v4, {WS} offset:1024 sc1'),
               lambda: a.chk_tag(range(29, 36, 2), 8), sleep=P['sl_h3'])
        a.stamp('h3')
        a('v_max_f32 v20, v28, v32\nv_mov_b32 v16, v28\nv_mov_b32 v18, v32')
        a.wave_red('v_max_f32', 20, 21)
        a(f'''v_and_b32 v21, 0x7f800000, v20
v_fma_f32 v20, v21, s48, v20
v_cmp_ge_f32 s[50:51], v16, v20
v_cmp_ge_f32 s[52:53], v18, v20
s_bcnt1_i32_b64 s49, s[50:51]
v_mbcnt_lo_u32_b32 v22, s50, 0
v_mbcnt_hi_u32_b32 v22, s51, v22
v_mov_b32 v23, s49
v_mbcnt_lo_u32_b32 v23, s52, v23
v_mbcnt_hi_u32_b32 v23, s53, v23
v_cmp_gt_u32 vcc, 4, v22
s_and_b64 s[50:51], s[50:51], vcc
v_cmp_gt_u32 vcc, 4, v23
s_and_b64 s[52:53], s[52:53], vcc''')
    def l1w():
        a(f'''s_lshr_b32 s40, s44, 4
s_lshl_b32 s42, 0x01010101, s40
s_mov_b32 s43, s42
v_cndmask_b32 v36, 15, v22, s[50:51]
v_cndmask_b32 v38, 15, v23, s[52:53]
v_mov_b32 v37, {TAG}
v_mov_b32 v39, {TAG}
s_lshl_b32 s40, s40, 12
s_lshl_b32 s49, s46, 3
s_add_u32 s40, s40, s49
s_add_u32 s40, s40, {MB}
v_lshrrev_b32 v5, 3, v1
v_lshl_add_u32 v4, v5, 8, s40
s_mov_b64 exec, s[42:43]''')
        a.st_local('s[38:39]', f'global_store_dwordx2 v4, v[36:37], {WS}', f'global_store_dwordx2 v4, v[38:39], {WS} offset:2048')
        a(f'''s_mov_b64 exec, -1
s_andn2_b64 s[50:51], s[42:43], s[50:51]
s_andn2_b64 s[52:53], s[42:43], s[52:53]
v_cndmask_b32 v16, v24, v16, s[50:51]
v_cndmask_b32 v18, v24, v18, s[52:53]
v_max_f32 v20, v16, v18
s_and_b32 s40, s3, 1
s_mul_i32 s49, s40, 96
v_lshrrev_b32 v5, 3, v1
v_lshl_add_u32 v4, v5, 1, s49
s_lshl_b32 s49, s40, 6
v_lshl_add_u32 v5, v5, 2, s49
s_lshl_b32 s49, s40, 2
v_mov_b32 v6, s49''')
        a.wave_red('v_max_f32', 20, 21)
        a(f'''v_sub_f32 v16, v16, v20
v_sub_f32 v18, v18, v20
v_mul_f32 v16, s56, v16
v_mul_f32 v18, s56, v18
v_exp_f32 v16, v16
v_exp_f32 v18, v18
ds_write_b32 v6, v20 offset:{LFW+96}
v_cvt_pk_bf16_f32 v8, v16, v18
v_lshlrev_b32 v9, 16, v8
v_and_b32 v10, 0xffff0000, v8
v_sub_f32 v9, v16, v9
v_sub_f32 v10, v18, v10
v_cvt_pk_bf16_f32 v9, v9, v10
s_mov_b64 exec, s[42:43]
ds_write_b16 v4, v8 offset:{LWP}
ds_write_b16_d16_hi v4, v8 offset:{LWP+16}
ds_write_b16 v4, v9 offset:{LWP+128}
ds_write_b16_d16_hi v4, v9 offset:{LWP+144}
ds_write_b32 v5, v16 offset:{LWT}
ds_write_b32 v5, v18 offset:{LWT+32}
s_mov_b64 exec, -1''')
        fl_add(1)
    a(f'''s_getreg_b32 s16, hwreg(HW_REG_XCC_ID, 0, 4)
s_and_b32 s40, s2, 7
s_lshl_b32 s40, s40, 4
s_add_u32 s40, s40, {READY}
v_and_b32 v4, 31, v1
v_lshl_add_u32 v4, v4, 7, s40''')
    a.poll(lambda: a(f'global_load_dwordx2 v[8:9], v4, {WS} sc1'), lambda: a.chk_tag([8], 10), sleep=4)
    a('v_cmp_ne_u32 s[38:39], s16, v9')
    a('s_and_b32 s46, s44, 15\ns_lshl_b32 s46, s46, 1\ns_and_b32 s40, s3, 1\ns_add_u32 s46, s46, s40')
    a.wave_is('ge', 6, 'LA_n6')
    esel('s46', P['probe_h3'])
    l1w()
    a.label('LA_n6')
    a.wave_is('eq', 5, 'LA_noh3')
    esel('s47', P['probe_h3'])
    a(f'''v_and_b32 v17, 63, v30
v_and_b32 v19, 63, v34
v_lshl_add_u32 v17, v1, 6, v17
v_lshl_add_u32 v19, v1, 6, v19
v_add_u32 v19, 4096, v19
v_lshlrev_b32 v4, 2, v1
v_mov_b32 v25, 999
v_add_u32 v26, 64, v1
v_lshlrev_b32 v22, 2, v22
v_lshlrev_b32 v23, 2, v23
s_mov_b64 exec, 15
ds_write_b32 v4, v17 offset:{LEK}
ds_write_b32 v4, v25 offset:{LEK+16}
s_mov_b64 exec, s[50:51]
ds_write_b32 v22, v17 offset:{LEK}
ds_write_b32 v22, v1 offset:{LEK+16}
s_mov_b64 exec, s[52:53]
ds_write_b32 v23, v19 offset:{LEK}
ds_write_b32 v23, v26 offset:{LEK+16}
s_mov_b64 exec, -1''')
    a.label('LA_noh3')
    a(f'''v_and_b32 v4, 3, v2
v_lshlrev_b32 v4, 2, v4
s_mul_i32 s40, s41, 384
s_lshl_b32 s42, s3, 6
s_add_u32 s42, s40, s42
v_lshl_add_u32 v6, v3, 4, s42
v_and_b32 v7, 31, v1
v_lshl_add_u32 v7, v7, 1, s42
s_movk_i32 s55, 1536''')
    a.bar()
    a.stamp('b3')
    a('s_setprio 3')
    a.wave_is('lt', 6, 'LA_noe')
    a(f'''ds_read_b32 v5, v4 offset:{LEK}
ds_read_b128 v[8:11], v12 offset:{LEK}
s_waitcnt lgkmcnt(1)
v_mad_u32_u24 v5, v5, s55, v6
global_load_dwordx4 v[224:227], v5, {CKV} {'nt' if P['e_nt'] else ''}
s_waitcnt lgkmcnt(0)''')
    for j in range(4): a(f'v_mad_u32_u24 v{8+j}, v{8+j}, s55, v7\nglobal_load_ushort v{232+j}, v{8+j}, {CKV} {"nt" if P["e_nt"] else ""}')
    a(f's_mul_i32 s40, s3, 3072\ns_add_u32 s40, s40, {LKP}\nv_lshl_add_u32 v4, v2, 4, s40\ns_waitcnt vmcnt(4)')
    a.stamp('erow')
    mfma12(a, 16, 224, 64)
    a.lanes_lt(16)
    for e in range(12): a(f'ds_write_b128 v4, {vr(16+4*e,4)} offset:{256*e}')
    a.full()
    a('s_branch LA_b4')
    a.label('LA_noe')
    a.label('LA_g')
    a(f'''s_lshl_b32 s40, s44, 10
s_add_u32 s40, s40, {AUX}
v_lshl_add_u32 v10, v1, 4, s40
s_and_b32 s42, s3, 1
s_mul_i32 s40, s44, {CP}
s_mul_i32 s43, s42, 768
s_add_u32 s40, s40, s43
s_add_u32 s40, s40, {H4}
v_and_b32 v9, 1, v3
v_mul_u32_u24 v4, {8*JP}, v9
v_lshrrev_b32 v11, 1, v3
v_mul_u32_u24 v5, 1536, v11
v_add3_u32 v4, v4, v5, s40
v_lshl_add_u32 v4, v2, 4, v4
v_add_u32 v5, {2*JP}, v4
v_add_u32 v6, {4*JP}, v4
v_add_u32 v7, {6*JP}, v4
v_cmp_eq_u32 s[54:55], 1, v9
s_and_b32 s40, s44, 15
s_mul_i32 s40, s40, 49152
s_lshr_b32 s43, s44, 4
s_mul_i32 s49, s43, 768
s_add_u32 s40, s40, s49
s_add_u32 s40, s40, {H4G}
v_mul_u32_u24 v55, 24576, v11
v_add_u32 v55, s40, v55
s_mul_i32 s40, s42, 384
v_lshl_add_u32 v56, v2, 3, s40
v_lshl_add_u32 v56, v9, 2, v56
s_movk_i32 s49, 683
s_movk_i32 s48, 5376''')
    for k in range(3):
        a(f'''v_add_u32 v57, {128*k}, v56
v_mul_u32_u24 v58, s49, v57
v_lshrrev_b32 v58, 17, v58
v_lshl_add_u32 v57, v57, 2, v55
v_mad_u32_u24 v{52+k}, v58, s48, v57''')
    a(f'''v_lshrrev_b32 v57, 3, v2
v_and_b32 v58, 1, v2
v_lshl_add_u32 v57, v58, 1, v57
v_lshlrev_b32 v57, 6, v57
v_lshl_add_u32 v57, v3, 4, v57
v_lshrrev_b32 v58, 2, v1
v_lshlrev_b32 v58, 2, v58          ; j*4
s_and_b32 s40, s44, 15
s_lshl_b32 s40, s40, 8
s_lshl_b32 s43, s43, 4
s_add_u32 s40, s40, s43
s_add_u32 s40, s40, {HDR}
v_lshl_add_u32 v59, v9, 7, s40
v_lshlrev_b32 v9, 2, v9''')
    a.poll(lambda: a(f'global_load_dwordx4 v[28:31], v10, {WS} sc1'), lambda: a.chk_tag([29, 31], 8), sleep=P['sl_aux'])
    a.stamp('aux')
    for k in range(3):
        for jj in range(8):
            a(f'global_load_dwordx4 {vr(64+32*k+4*jj,4)}, v{4 + (jj >> 1)}, {WS} offset:{(jj & 1)*JP + 256*k} {["sc1", "", "sc0", "nt"][P["g_pol"]]}')
    fl_wait(1, 'x', 2)
    a(f'''ds_read_b128 v[48:51], v57 offset:{LWP}
ds_read2_b32 v[32:33], v58 offset0:{LWT//4 - 1024} offset1:{LWT//4 - 1024 + 16}
ds_read_b32 v60, v9 offset:{LFW+96}
s_waitcnt lgkmcnt(0)
v_mul_f32 v32, v32, v28
v_mul_f32 v33, v33, v30
v_mov_b32 v61, {TAG}
v_mov_b32 v63, {TAG}'''.replace('v58 offset0', 'v62 offset0').replace('ds_read_b128 v[48:51]', 'v_add_u32 v62, 4096, v58\nds_read_b128 v[48:51]'))
    a.row_red('v_add_f32', [32, 33])
    a(f'''v_permlane16_swap_b32 v32, v33
v_add_f32 v32, v32, v33
v_mov_b32 v33, v32
v_permlane32_swap_b32 v32, v33
v_add_f32 v32, v32, v33
v_mul_f32 v62, 0x3e800000, v32
s_waitcnt vmcnt(16)''')
    def fin(k):
        d = 160 + 32*k; o = 28 + 4*k
        for e in range(8): a(f'v_add_f32 v{d+4*e}, v{d+4*e}, v{d+4*e+1}')
        for t in range(4): a(f'v_cndmask_b32 v{o+t}, v{d+4*t}, v{d+4*(t+4)}, s[54:55]')
        a(f'global_store_dwordx4 v{52+k}, {vr(o,4)}, {WS} sc1')
    for k in range(3):
        if k == 1: a('s_waitcnt vmcnt(8)')
        if k == 2:
            a('s_waitcnt vmcnt(0)'); a.stamp('gath'); fl_add(1)
            a(f's_cmp_eq_u32 s3, 6\ns_cbranch_scc0 LA_nh\ns_mov_b64 exec, 0x10001\nglobal_store_dwordx4 v59, v[60:63], {WS} sc1\ns_mov_b64 exec, -1\nLA_nh:')
        for e in range(8):
            f = 16 + 4*(e % 3)
            src = 64 + 32*k
            for kk in range(4):
                a(f'v_perm_b32 v{f+kk}, v{src+(2*kk+1)*4+(e>>1)}, v{src+2*kk*4+(e>>1)}, {PHI if e & 1 else PLO}')
            a(f'v_mfma_f32_16x16x32_bf16 {vr(160+32*k+4*e,4)}, v[48:51], {vr(f,4)}, 0')
    for k in range(3): fin(k)
    a.stamp('gpub')
    a.wave_is('eq', 6, 'LA_w7')
    a('s_branch LA_w6')
    a.label('LA_b4')
    a(f'v_mov_b32 v8, 1\ns_mov_b64 exec, 1\nds_add_u32 v12, v8 offset:{LFL}\ns_mov_b64 exec, -1')
    a.wave_is('lt', 3, 'LA_nopub')
    a(f'v_lshlrev_b32 v6, 4, v0\nv_add_u32 v7, {LKP}, v6\ns_mul_i32 s40, s44, 3072\ns_add_u32 s40, s40, {H4S}\nv_add_u32 v6, s40, v6')
    fl_wait(0, 'LA_f0', 6)
    a.stamp('b4')
    for w in range(6): a(f'ds_read_b128 {vr(16+4*w,4)}, v7 offset:{3072*w}')
    a('s_waitcnt lgkmcnt(0)')
    tree(a, range(16, 40, 4), n=4)
    a.st_local('s[38:39]', f'global_store_dwordx4 v6, v[16:19], {WS}')
    a.stamp('kpub')
    a('s_branch LA_l2')
    a.label('LA_nopub')
    a.wave_is('eq', 5, 'LA_l2')
    a(f'''s_mul_i32 s40, s47, 12288
s_add_u32 s40, s40, {H4S}
v_lshl_add_u32 v4, v1, 4, s40
v_add_u32 v5, 3072, v4
v_add_u32 v6, 6144, v4
v_add_u32 v7, 9216, v4
v_lshl_add_u32 v8, v2, 3, v3
v_lshlrev_b32 v8, 1, v8
v_lshl_add_u32 v9, v2, 2, v3
v_lshlrev_b32 v9, 1, v9
v_lshlrev_b32 v10, 2, v3
ds_read_u16 v64, v8 offset:{LQ}
ds_read_u16 v65, v8 offset:{LQ+8}
ds_read_u16 v66, v9 offset:{LQ+256}
ds_read_b32 v67, v10 offset:{LEK+16}
s_sleep {P['pre_h4s']}''')
    def ld():
        for qq in range(4):
            for k in range(3): a(f'global_load_dwordx4 {vr(16+(qq*3+k)*4,4)}, v{4+qq}, {WS} offset:{1024*k} sc1')
    a.poll(ld, lambda: a.chk_sent(range(16, 64), 9), sleep=P['sl_h4s'])
    a.stamp('h4s')
    a('s_waitcnt lgkmcnt(0)\nv_cmp_gt_u32 s[52:53], 0x80, v67' if False else 's_waitcnt lgkmcnt(0)\ns_movk_i32 s40, 128\nv_cmp_gt_u32 s[52:53], s40, v67')
    for k in range(3): a(f'v_lshlrev_b32 v{64+k}, 16, v{64+k}')
    tree(a, (16, 28, 40, 52), n=12)
    for i in range(12): a.rnd(16 + i, 16 + i)
    for j in range(4):
        a(f'v_mul_f32 v{68+j}, v{16+j}, v64\nv_fmac_f32 v{68+j}, v{20+j}, v65\nv_fmac_f32 v{68+j}, v{24+j}, v66')
    a.row_red('v_add_f32', [68, 69, 70, 71])
    a.xrow_tr4(68)
    a.rnd(68, 68)
    a('v_mul_f32 v68, s59, v68')
    a.rnd(68, 68)
    a(f'v_mov_b32 v21, {NEGINF:#x}\nv_cndmask_b32 v68, v21, v68, s[52:53]\nds_write_b32 v10, v68 offset:{LFW+112}')
    fl_add(2)
    a('s_branch LA_l2')
    a.label('LA_w7')
    a('v_lshlrev_b32 v10, 2, v3\nv_lshlrev_b32 v11, 3, v3')
    a(f'''s_lshl_b32 s40, s47, 7
s_add_u32 s40, s40, {HDR}
v_and_b32 v5, 7, v1
v_lshl_add_u32 v4, v5, 4, s40
v_lshlrev_b32 v5, 2, v5''')
    if P['pre_hdr']: a(f's_sleep {P["pre_hdr"]}')
    a.poll(lambda: a(f'global_load_dwordx4 v[236:239], v4, {WS} sc1'), lambda: a.chk_tag([237, 239], 8), sleep=P['sl_hdr'])
    a.stamp('hdr')
    fl_wait(2, 'LA_f2', 2)
    a(f'''ds_read_b64 v[228:229], v11 offset:{LFW+64}
ds_read_b32 v68, v10 offset:{LFW+112}
s_waitcnt lgkmcnt(0)
v_max3_f32 v69, v68, v228, v236''')
    a.wave_red('v_max_f32', 69, 70)
    a(f'''v_sub_f32 v68, v68, v69
v_sub_f32 v228, v228, v69
v_sub_f32 v236, v236, v69
v_mul_f32 v68, s56, v68
v_mul_f32 v228, s56, v228
v_mul_f32 v236, s56, v236
v_exp_f32 v68, v68
v_exp_f32 v228, v228
v_exp_f32 v236, v236
v_fma_f32 v70, v228, v229, v68
v_mul_f32 v71, v236, v238
v_fmac_f32 v71, 0.5, v70''')
    a.wave_red('v_add_f32', 71, 70)
    a(f'v_mul_f32 v70, {f2u(0.125):#x}, v71')
    a.recip(71, 70, 72)
    a.div(73, 68, 70, 71, 72)
    a.rnd(73, 73)
    a(f'''v_mul_f32 v74, v236, v71
v_mul_f32 v75, v228, v71
ds_write_b32 v10, v73 offset:{LFW}
ds_write_b32 v10, v75 offset:{LFW+16}
ds_write_b32 v5, v74 offset:{LFW+32}''')
    fl_set(3)
    a('s_branch LA_nov')
    a.label('LA_w6')
    a(f'''v_lshlrev_b32 v10, 2, v3
ds_read_b32 v11, v10 offset:{LEK+16}
s_lshl_b32 s40, s47, 13
s_lshl_b32 s42, s41, 9
s_add_u32 s40, s40, s42
s_add_u32 s40, s40, {SIDE}
v_lshl_add_u32 v6, v3, 11, s40
v_lshl_add_u32 v4, v2, 4, v6
v_lshl_add_u32 v5, v2, 3, v6
v_mul_u32_u24 v9, 384, v3
v_lshl_add_u32 v7, v2, 4, v9
v_lshl_add_u32 v9, v2, 3, v9
v_lshlrev_b32 v10, 3, v3
v_mov_b32 v24, {NEGINF:#x}
v_mov_b32 v26, 0
s_movk_i32 s40, 128
s_waitcnt lgkmcnt(0)
v_cmp_gt_u32 s[52:53], s40, v11''')
    for i in range(6): a(f'v_mov_b32 v{16+i}, 0')
    a('s_mov_b64 exec, s[52:53]')
    def ck():
        a.chk_sent(range(16, 22), 8)
        a(f'v_cmp_ne_u32 s[50:51], {TAG}, v25\ns_or_b64 vcc, vcc, s[50:51]\nv_cmp_ne_u32 s[50:51], {TAG}, v27\ns_or_b64 vcc, vcc, s[50:51]')
    a.poll(lambda: a(f'global_load_dwordx4 v[16:19], v4, {WS} sc1\nglobal_load_dwordx2 v[20:21], v5, {WS} offset:256 sc1\nglobal_load_dwordx4 v[24:27], v6, {WS} offset:384 sc1'),
           ck, sleep=P['sl_side'])
    a.full()
    a.stamp('side')
    a(f'v_mov_b32 v25, v26\nds_write_b128 v7, v[16:19] offset:{LSR}\nds_write_b64 v9, v[20:21] offset:{LSR+256}\nds_write_b64 v10, v[24:25] offset:{LFW+64}')
    fl_add(2)
    a('s_branch LA_nov')
    a.label('LA_l2')
    a(f'''s_lshl_b32 s40, s3, 7
v_and_b32 v4, 31, v1
v_lshl_add_u32 v5, v4, 1, s40
s_lshl_b32 s42, s3, 6
v_lshl_add_u32 v7, v4, 1, s42
v_lshl_add_u32 v4, v4, 2, s40
v_lshrrev_b32 v9, 5, v1
v_mul_u32_u24 v10, 3072, v9
v_lshlrev_b32 v9, 4, v9
s_mul_i32 s42, s44, 6144
s_add_u32 s42, s42, {H4G}
v_add3_u32 v4, v4, v10, s42
v_mov_b32 v20, 0
v_mov_b32 v21, 0
v_mov_b32 v22, 0
v_mov_b32 v23, 0''')
    frag2_addr(a, 6, 's40')
    out12_prep(a, 248, LVP)
    fl_wait(1, 'x', 4)
    if P['pre_l2']: a(f's_sleep {P["pre_l2"]}')
    def ld():
        for t in range(4): a(f'global_load_dword v{16+t}, v4, {WS} offset:{768*t} sc1')
    a.poll(ld, lambda: a.chk_sent(range(16, 20), 8), sleep=P['sl_l2'])
    a.stamp('l2')
    for j in range(4): a(f'v_lshlrev_b32 v{232+j}, 16, v{232+j}')
    fl_wait(3, 'x')
    a.stamp('b6')
    for j in range(4): a(f'ds_read_u16_d16_hi v{20+j}, v7 offset:{LSR + 384*j}')
    a(f'ds_read_b128 v[24:27], v12 offset:{LFW}\nds_read_b128 v[28:31], v12 offset:{LFW+16}\nds_read_b128 v[32:35], v9 offset:{LFW+32}')
    a(f'''s_waitcnt lgkmcnt(0)
v_mul_f32 v16, v16, v32
v_mul_f32 v24, v24, v232
v_mul_f32 v28, v28, v20
v_fmac_f32 v16, v17, v33
v_fmac_f32 v24, v25, v233
v_fmac_f32 v28, v29, v21
v_fmac_f32 v16, v18, v34
v_fmac_f32 v24, v26, v234
v_fmac_f32 v28, v30, v22
v_fmac_f32 v16, v19, v35
v_fmac_f32 v24, v27, v235
v_fmac_f32 v28, v31, v23
v_mov_b32 v17, v16
v_add_f32 v24, v24, v28
v_permlane32_swap_b32 v16, v17
v_add3_f32 v16, v16, v17, v24
v_cvt_pk_bf16_f32 v17, v16, v16
ds_write_b16 v5, v17 offset:{LCC}
v_and_b32 v18, 0xffff0000, v17
v_sub_f32 v18, v16, v18
v_cvt_pk_bf16_f32 v18, v18, v18
ds_write_b16 v5, v18 offset:{LCC+64}
s_waitcnt lgkmcnt(0)
ds_read_b128 v[224:227], v6 offset:{LCC}
s_waitcnt lgkmcnt(0)'''.replace('v_add3_f32 v16, v16, v17, v24', 'v_add_f32 v16, v16, v17\nv_add_f32 v16, v16, v24'))
    mfma12(a, 128, 224, 176)
    out12(a, 128, 16, 248)
    a.label('LA_nov')
    a(f'''v_lshlrev_b32 v4, 4, v1
s_mul_i32 s40, s47, 3072
s_lshl_b32 s42, s41, 8
s_add_u32 s40, s40, s42
s_add_u32 s40, s40, {H5}
v_lshlrev_b32 v5, 10, v3
v_lshl_add_u32 v5, v2, 4, v5
v_add_u32 v5, s40, v5''')
    a.bar()
    a.wave_is('eq', 0, 'Lfin')
    for w in range(6): a(f'ds_read_b128 {vr(16+4*w,4)}, v4 offset:{LVP + 768*w}')
    a('s_waitcnt lgkmcnt(0)')
    tree(a, range(16, 40, 4), n=4)
    a.lanes_lt(48)
    a.st_local('s[38:39]', f'global_store_dwordx4 v5, v[16:19], {WS}')
    a.full()
    a.stamp('h5pub')
    a(f'''s_add_u32 s40, s44, s3
s_cmp_eq_u32 s40, 0
s_cbranch_scc0 Lfin
v_mov_b32 v5, {TAG}
global_store_dword v12, v5, {WS} sc1''')

DEFAULTS = dict(code_last=0x1000, stamps=False, warm_loads=2, sl_pr=1, sl_pr3=4, sl_h1=3, sl_h1b=1, sl_h2=4, sl_h3=2, sl_aux=1, sl_h4s=1, sl_h5=1, sl_h6=3, sl_h7=2, sl_x2=4, sl_lw=1, lw_cnt=4, dma1=5, sl_top2=4, pre_h7=12, h2lay=0, dma8=0, bpf=0, pf_pol=2, sl_pf=10, pre_hdr=8, pv_local=0, g_pol=0, pre_l2=12, sl_hdr=2, sl_l2=2, local=1, early_late=1, sl_pr2=4, sl_dma2=0, m_h2=0, m_h6=0, k_h2=255, pre_aux=8, swap=0, sl_a80=30, pre_h1=0, tlb=0, e_nt=0, pv_nt=0, uk1=0, ew_cnt=4, sl_el=1, pre_side=12, sl_side=2, sl_uv=20, pre_h4s=4, sl_top=6,
    probe_h1b=0, post_h1b=1, probe_h2=1, post_h2=0, probe_h3=1, post_h3=0, probe_aux=0, post_aux=2, probe_h5=0, post_h5=1, probe_h6=0, post_h6=1, probe_h7=1, post_h7=0)

def generate(**kw):
    P = dict(DEFAULTS); P.update(kw)
    a = G(P)
    a(f'''s_cmp_ge_u32 s2, 256
s_cbranch_scc1 Lend
s_load_dwordx16 s[4:19], s[0:1], 0
{'s_xor_b32 s2, s2, 128' if P['swap'] else 's_nop 0'}
s_load_dwordx8 s[20:27], s[0:1], 64
s_load_dwordx4 s[28:31], s[0:1], 96
s_getpc_b64 s[36:37]
Lpc:
v_lshrrev_b32 v4, 6, v0
v_and_b32 v1, 63, v0
v_readfirstlane_b32 s3, v4
v_and_b32 v2, 15, v0
v_lshrrev_b32 v3, 4, v1''')
    if P['stamps']:
        for i in range(21): a(f's_mov_b64 s[{60+2*i}:{61+2*i}], 0')
    if P.get('dbgtime') or P.get('padto'): a('s_memrealtime s[60:61]')
    a('s_cmp_lt_u32 s2, 128\ns_cbranch_scc1 LB')
    role_A(a)
    namesA = a.stnames; a.stnames = []
    a.label('LB')
    role_B(a)
    namesB = a.stnames; a.stnames = namesA
    role_A2(a)
    a('s_branch Lfin')
    namesA = a.stnames; a.stnames = namesB
    role_B2(a)
    namesB = a.stnames
    a.label('Lfin')
    if P['stamps']:
        a(f'''s_waitcnt lgkmcnt(0)
s_lshl_b32 s40, s2, 3
s_add_u32 s40, s40, s3
s_lshl_b32 s40, s40, 7
s_add_u32 s40, s40, {STAMP}
v_mov_b32 v4, s40''')
        for i in range(21): a(f'v_mov_b32 v5, s{60+2*i}\nglobal_store_dword v4, v5, {WS} offset:{4*i}')
    if P.get('dbgtime'):
        a(f'''s_memrealtime s[62:63]
s_cmp_eq_u32 s3, 7
s_cbranch_scc0 Lend
s_and_b32 s40, s2, 31
s_cmp_eq_u32 s40, 31
s_cbranch_scc0 Lend
s_waitcnt lgkmcnt(0)
s_lshr_b32 s40, s2, 5
s_lshl_b32 s40, s40, 3
v_mov_b32 v4, s40
v_mov_b32 v6, s60
v_mov_b32 v7, s62
s_mov_b64 exec, 1
global_store_dwordx2 v4, v[6:7], s[28:29]''')
    if P.get('padto'):
        a(f'''s_add_u32 s40, s2, s3
s_cmp_eq_u32 s40, 0
s_cbranch_scc0 Lend
Lpad:
s_memrealtime s[62:63]
s_waitcnt lgkmcnt(0)
s_sub_u32 s40, s62, s60
s_cmp_lt_u32 s40, {P['padto']}
s_cbranch_scc1 Lpad''')
    a.label('Lend')
    a('s_endpgm')
    a.raw('Lcode_end:')
    hdr = open(f'cdna_kernels/{NAME}.s.ref').read().split('; Override launch')[0]
    lds = MISC + 8192 + 256
    txt = hdr + f'''; @launch grid=(256,1,1) block=(512,1,1) lds={lds}
.amdgcn_target "amdgcn-amd-amdhsa--gfx950"
.text
.globl {NAME}_kernel
.p2align 8
.type {NAME}_kernel,@function
.set CODE_LAST, {P['code_last']:#x}
{NAME}_kernel:
''' + a.text() + f'''.section .rodata,"a"
.p2align 6
.amdhsa_kernel {NAME}_kernel
  .amdhsa_next_free_vgpr 256
  .amdhsa_next_free_sgpr 102
  .amdhsa_accum_offset 256
  .amdhsa_group_segment_fixed_size 0
  .amdhsa_kernarg_size 112
  .amdhsa_user_sgpr_count 2
  .amdhsa_user_sgpr_kernarg_segment_ptr 1
  .amdhsa_system_sgpr_workgroup_id_x 1
  .amdhsa_float_denorm_mode_32 3
.end_amdhsa_kernel
'''
    return txt, namesB, namesA

if __name__ == '__main__':
    import json
    out = sys.argv[1]
    kw = {}
    for x in sys.argv[2:]:
        k, v = x.split('='); kw[k] = int(v)
    import subprocess, re
    txt, nb, na = generate(**kw)
    open('_g.s', 'w').write(txt)
    subprocess.check_call(['clang', '-x', 'assembler', '-target', 'amdgcn-amd-amdhsa', '-mcpu=gfx950', '-c', '_g.s', '-o', '_g.o'])
    h = subprocess.check_output(['llvm-objdump', '-h', '_g.o'], text=True)
    size = int(re.search(r'\.text\s+([0-9a-f]+)', h).group(1), 16)
    kw['code_last'] = size - 0x30 - 4
    assert size <= 32768 * kw.get('warm_loads', DEFAULTS['warm_loads'])
    txt, nb, na = generate(**kw)
    print('code bytes', size)
    open(out, 'w').write(txt)
    json.dump({'B': nb, 'A': na}, open(out + '.names.json', 'w'))
```

```python
import sys, struct
sys.path.insert(0, 'gen')
from asmlib import *
NAME = 'adaLN_cond__compressed_kv_cla__dense_activation_relu__decode'

EPOCH, READY, H1, H1B, H2, H3, AUX, H4S, H5 = 0x0, 0x1000, 0x2000, 0x120000, 0x58000, 0x68000, 0x1A0000, 0x88000, 0xE8000
H6, MODR, H7F, H7X, H4, STAMP = 0x100000, 0x108000, 0x110000, 0x111000, 0x200000, 0x4000000
H7Y = 0x110000
H4G, HDR, MB = 0x880000, 0x1FA000, 0x78000
DB3, DB4, ELIST, SIDE = 0x1E0000, 0x1E4000, 0x1F8000, 0x18000
X, CKV, WQ, WUK, WUV, WO, W1, W2, CC, WMOD, OUT, WS = [f's[{i}:{i+1}]' for i in (4, 6, 8, 10, 12, 14, 18, 20, 22, 24, 26, 30)]
TAG, SPIN, PLO, PHI = 's32', 's33', 's34', 's35'
SPINMAX = 200000
def f2u(x): return struct.unpack('<I', struct.pack('<f', x))[0]
L2E = f2u(1.4426950408889634)
L2E_LO = f2u(1.4426950408889634 - struct.unpack('<f', struct.pack('<f', 1.4426950408889634))[0])
LN2 = f2u(0.6931471805599453)
SCALE = f2u(192 ** -0.5)
NEGINF = 0xff800000

class G(Asm):
    def __init__(self, P):
        super().__init__(); self.P = P; self.nst = 0; self.stnames = []
    def stamp(self, name):
        if not self.P.get('stamps'): return
        if name.startswith('x') != (self.P['stamps'] == 2) and name not in ('start', 'h1pub', 'out', 'wq', 'h1', 'qpub', 'h1b', 'h2pub', 'h5', 'h6pub', 'h6', 'h7pub', 'gath', 'b6', 'h5pub', 'h2', 'qk', 'h3pub', 'pvst', 'auxpub'): return
        i = self.stnames.index(name) if name in self.stnames else None
        if i is None:
            self.stnames.append(name); i = len(self.stnames) - 1
        assert i < 21
        self(f's_memrealtime s[{60+2*i}:{61+2*i}]')
    def rnd(self, d, s):
        self(f'v_cvt_pk_bf16_f32 v{d}, v{s}, v{s}\nv_and_b32 v{d}, 0xffff0000, v{d}')
    def wave_is(self, cond, n, lab):
        self(f's_cmp_{cond}_u32 s3, {n}\ns_cbranch_scc0 {lab}')
    def row_red(self, op, regs):
        for k in (8, 4, 2, 1):
            for r in regs: self(f'{op}_dpp v{r}, v{r}, v{r} row_ror:{k} row_mask:0xf bank_mask:0xf')
    def xrow_red(self, op, r, t):
        self(f'v_mov_b32 v{t}, v{r}\nv_permlane16_swap_b32 v{r}, v{t}\n{op} v{r}, v{r}, v{t}')
        self(f'v_mov_b32 v{t}, v{r}\nv_permlane32_swap_b32 v{r}, v{t}\n{op} v{r}, v{r}, v{t}')
    def wave_red(self, op, r, t):
        self.row_red(op, [r]); self.xrow_red(op, r, t)
    def xrow_tr4(self, r):
        self(f'''v_permlane16_swap_b32 v{r}, v{r+1}
v_permlane16_swap_b32 v{r+2}, v{r+3}
v_add_f32 v{r}, v{r}, v{r+1}
v_add_f32 v{r+2}, v{r+2}, v{r+3}
v_permlane32_swap_b32 v{r}, v{r+2}
v_add_f32 v{r}, v{r}, v{r+2}''')
    def recip(self, d, y, t):
        self(f'v_rcp_f32 v{d}, v{y}\nv_fma_f32 v{t}, -v{y}, v{d}, 1.0\nv_fma_f32 v{d}, v{t}, v{d}, v{d}')
    def div(self, d, x, y, rinv, t):
        self(f'v_mul_f32 v{d}, v{x}, v{rinv}\nv_fma_f32 v{t}, -v{y}, v{d}, v{x}\nv_fma_f32 v{d}, v{t}, v{rinv}, v{d}')
    def silu(self, d, x, t):
        self(f'''v_mul_f32 v{t}, s56, v{x}
v_fma_f32 v{t+1}, v{x}, s56, -v{t}
v_fma_f32 v{t+1}, v{x}, s57, v{t+1}
v_exp_f32 v{t}, -v{t}
v_mul_f32 v{t+1}, s58, v{t+1}
v_fma_f32 v{t}, -v{t}, v{t+1}, v{t}
v_min_f32 v{t}, 0x7f000000, v{t}
v_add_f32 v{t}, 1.0, v{t}''')
        self.recip(t + 1, t, t + 2)
        self.div(t + 3, x, t, t + 1, t + 2)
        self.rnd(d, t + 3)
    def perm_block(self, dst, src, nreg=4, rows=8):
        for e in range(2 * nreg):
            for k in range(rows // 2):
                self(f'v_perm_b32 v{dst + e * (rows // 2) + k}, v{src + (2*k+1) * nreg + (e >> 1)}, v{src + 2*k*nreg + (e >> 1)}, {PHI if e & 1 else PLO}')
    def poll(self, loads, check, sleep=2, pre=None, mid=None):
        top = self.newlabel('Lp'); done = self.newlabel('Ld'); chk = self.newlabel('Lc')
        if pre: self(f's_sleep {pre}')
        if mid:
            loads(); mid(); self(f's_branch {chk}')
        self.label(top)
        loads()
        self.label(chk)
        self('s_waitcnt vmcnt(0)')
        check()
        self(f'''s_cbranch_vccz {done}
s_add_u32 {SPIN}, {SPIN}, 1
s_cmp_gt_u32 {SPIN}, {SPINMAX}
s_cbranch_scc1 {done}
s_sleep {sleep}
s_branch {top}''')
        self.label(done)
    def poll_masked(self, items, t, sleep=2, tag=False):
        top = self.newlabel('Lm'); done = self.newlabel('Lmd')
        for ld, regs in items: self(ld)
        self.label(top)
        self('s_waitcnt vmcnt(0)\ns_mov_b32 s49, 0')
        for ld, regs in items:
            skip = self.newlabel('Lms')
            if tag: self.chk_tag(regs, t)
            else: self.chk_sent(regs, t)
            self(f's_cbranch_vccz {skip}\ns_mov_b64 exec, vcc\n{ld}\ns_mov_b64 exec, -1\ns_mov_b32 s49, 1')
            self.label(skip)
        self(f'''s_cmp_eq_u32 s49, 0
s_cbranch_scc1 {done}
s_add_u32 {SPIN}, {SPIN}, 1
s_cmp_gt_u32 {SPIN}, {SPINMAX}
s_cbranch_scc1 {done}
s_sleep {sleep}
s_branch {top}''')
        self.label(done)
        self('s_waitcnt vmcnt(0)')
    def lds_wait(self, addr, n, off=0, sleep=1, extra=None, t=8):
        top = self.newlabel('Lw'); done = self.newlabel('Lwd')
        self.label(top)
        self(f'ds_read_b32 v{t}, v{addr} offset:{off}')
        if extra: self(extra)
        self(f'''s_waitcnt lgkmcnt(0)
v_cmp_gt_u32 vcc, {n}, v{t}
s_cbranch_vccz {done}
s_add_u32 {SPIN}, {SPIN}, 1
s_cmp_gt_u32 {SPIN}, {SPINMAX}
s_cbranch_scc1 {done}
s_sleep {sleep}
s_branch {top}''')
        self.label(done)
    def probe(self, va, t, off=0, sleep=1, post=None, tag=False, mask=1):
        self.exec_mask(mask)
        def ck():
            if tag: self(f'v_cmp_ne_u32 vcc, {TAG}, v{t}')
            else: self(f'v_cmp_eq_u32 vcc, -1, v{t}')
        self.poll(lambda: self(f'global_load_dword v{t}, v{va}, {WS} offset:{off} sc1'), ck, sleep=sleep)
        self.full()
        if post: self(f's_sleep {post}')
    def chk_sent(self, regs, t):
        regs = list(regs)
        if len(regs) == 1:
            self(f'v_cmp_eq_u32 vcc, -1, v{regs[0]}'); return
        if len(regs) == 2: self(f'v_max_u32 v{t}, v{regs[0]}, v{regs[1]}'); rest = []
        else: self(f'v_max3_u32 v{t}, v{regs[0]}, v{regs[1]}, v{regs[2]}'); rest = regs[3:]
        while rest:
            if len(rest) >= 2: self(f'v_max3_u32 v{t}, v{t}, v{rest[0]}, v{rest[1]}'); rest = rest[2:]
            else: self(f'v_max_u32 v{t}, v{t}, v{rest[0]}'); rest = []
        self(f'v_cmp_eq_u32 vcc, -1, v{t}')
    def chk_tag(self, regs, t):
        regs = list(regs)
        self(f'v_cmp_ne_u32 vcc, {TAG}, v{regs[0]}')
        for r in regs[1:]:
            self(f'v_cmp_ne_u32 s[50:51], {TAG}, v{r}\ns_or_b64 vcc, vcc, s[50:51]')
    def san(self, regs):
        for r in regs: self(f'v_min_u32 v{r}, -2, v{r}')
    def lanes_lt(self, n):
        assert n <= 64
        lo = (1 << min(n, 32)) - 1; hi = (1 << max(n - 32, 0)) - 1
        self(f's_mov_b32 exec_lo, {lo:#x}\ns_mov_b32 exec_hi, {hi:#x}')
    def exec_mask(self, m):
        self(f's_mov_b32 exec_lo, {m & 0xffffffff:#x}\ns_mov_b32 exec_hi, {m >> 32:#x}')
    def full(self): self('s_mov_b64 exec, -1')
    def bar(self): self('s_waitcnt lgkmcnt(0)\ns_barrier')
    def get_tag(self):
        self(f'''v_readfirstlane_b32 {TAG}, v15
s_mul_i32 {TAG}, {TAG}, 0x9E3779B1
s_add_u32 {TAG}, {TAG}, 0x7F4A7C15''')
    def ready_publish(self):
        self('s_getreg_b32 s41x, hwreg(HW_REG_XCC_ID, 0, 4)\ns_waitcnt vmcnt(0)'.replace('s41x', 's51'))
        self.get_tag()
        self(f'''s_lshl_b32 s40, s2, 4
s_add_u32 s40, s40, {READY}
v_mov_b32 v4, s40
v_mov_b32 v6, {TAG}
v_mov_b32 v7, s51''')
        self.lanes_lt(1)
        self(f'global_store_dwordx2 v4, v[6:7], {WS} sc1')
        self.full()
    def st_local(self, mism, *sts):
        far = self.newlabel('Lsf'); done = self.newlabel('Lsd')
        if self.P['local']:
            self(f's_cmp_eq_u64 {mism}, 0\ns_cbranch_scc0 {far}')
            for st in sts: self(st)
            self(f's_branch {done}')
            self.label(far)
        for st in sts: self(st + ' sc1')
        self.label(done)
    def ready_check(self, half, v=8):
        self(f'v_lshlrev_b32 v{v+2}, 4, v1\nv_add_u32 v{v+2}, {READY + 2048*half}, v{v+2}')
        def ld():
            for i in range(2): self(f'global_load_dword v{v+i}, v{v+2}, {WS} offset:{1024*i} sc1')
        self.poll(ld, lambda: self.chk_tag([v, v + 1], 0), sleep=4)
    def gemv2(self, D, A, F, first=True):
        for e in range(8):
            c = '0' if first else vr(D + 4*e, 4)
            self(f'v_mfma_f32_16x16x32_bf16 {vr(D+4*e,4)}, {vr(A,4)}, {vr(F+4*e,4)}, {c}')
    def pack2(self, o, D):
        for i in range(4):
            self(f'v_add_f32_dpp v{o+i}, v{D+4*i+1}, v{D+4*i} row_ror:8 row_mask:0xf bank_mask:0x3')
        for i in range(4):
            self(f'v_add_f32_dpp v{o+i}, v{D+4*(i+4)}, v{D+4*(i+4)+1} row_ror:8 row_mask:0xf bank_mask:0xc')
    def load_rows(self, dst, nreg, va, base, pitch, rows=8, pol='nt', t=None):
        op = {1: 'dword', 2: 'dwordx2', 4: 'dwordx4'}[nreg]
        per = 4095 // pitch + 1 if pitch <= 4095 else 1
        for j in range(rows):
            k = j % per
            self(f'global_load_{op} {vr(dst + j*nreg, nreg)}, v{va}, {base} offset:{k*pitch} {pol}')
            if k == per - 1 and j + 1 < rows: self(f'v_add_u32 v{va}, {per*pitch}, v{va}')

def consts(a):
    a(f'''s_mov_b32 {PLO}, 0x05040100
s_mov_b32 {PHI}, 0x07060302
s_mov_b32 {SPIN}, 0
s_mov_b32 s56, {L2E:#x}
s_mov_b32 s57, {L2E_LO:#x}
s_mov_b32 s58, {LN2:#x}
s_mov_b32 s59, {SCALE:#x}''')

def code_warm(a, v=4):
    n = a.P['warm_loads']
    a(f'''s_lshr_b32 s50, s2, 3
s_lshl_b32 s50, s50, 10
v_lshlrev_b32 v{v}, 4, v1
v_add_u32 v{v}, s50, v{v}
v_min_u32 v{v}, CODE_LAST, v{v}
global_load_dword v14, v{v}, s[36:37]''')
    if n > 1:
        a(f'''v_add_u32 v{v}, 32768, v{v}
v_min_u32 v{v}, CODE_LAST, v{v}
global_load_dword v14, v{v}, s[36:37]''')

CT, SPB, PB, STB, MISC = 0, 98304, 98304 + 34816, 98304 + 34816 + 9216, 98304 + 34816 + 9216 + 1024
def blk2_addr(a, v, srow, pitch, scol):
    a(f'''v_lshrrev_b32 v{v}, 3, v2
v_lshlrev_b32 v{v}, 5, v{v}
v_lshl_add_u32 v{v}, v3, 3, v{v}
v_add_u32 v{v}, {srow}, v{v}
v_mul_u32_u24 v{v}, {pitch}, v{v}
v_and_b32 v{v+1}, 7, v2
v_lshl_add_u32 v{v}, v{v+1}, 4, v{v}
v_add_u32 v{v}, {scol}, v{v}''')
def frag2_addr(a, v, sbase):
    a(f'v_and_b32 v{v}, 1, v2\nv_lshlrev_b32 v{v}, 6, v{v}\nv_lshl_add_u32 v{v}, v3, 4, v{v}\nv_add_u32 v{v}, {sbase}, v{v}')
def pack_addr(a, v, sbase):
    a(f'v_and_b32 v{v}, 7, v2\nv_lshlrev_b32 v{v}, 5, v{v}\nv_lshrrev_b32 v{v+1}, 3, v2\nv_lshl_add_u32 v{v}, v{v+1}, 4, v{v}\nv_add_u32 v{v}, {sbase}, v{v}')
def gemv_out_lds(a, D, base):
    a.pack2(8, D)
    a.lanes_lt(16)
    a('ds_write_b128 v14, v[8:11]')
    a.full()
def gemv_out_prep(a, base):
    a(f's_lshl_b32 s40, s3, 8\ns_add_u32 s40, s40, {base}')
    pack_addr(a, 14, 's40')
def tree(a, regs, stride=1, n=1):
    regs = list(regs)
    while len(regs) > 1:
        nxt = []
        for i in range(0, len(regs) - 1, 2):
            for k in range(n): a(f'v_add_f32 v{regs[i]+k}, v{regs[i]+k}, v{regs[i+1]+k}')
            nxt.append(regs[i])
        if len(regs) & 1: nxt.append(regs[-1])
        regs = nxt
def ln_finish(a, m, v, ri):
    a.rnd(m, m); a.rnd(v, v)
    a(f'v_add_f32 v{v}, {f2u(1e-5):#x}, v{v}')
    a.rnd(v, v)
    a(f'v_sqrt_f32 v{v}, v{v}')
    a.rnd(v, v)
    a.recip(ri, v, ri + 1)
def neg1(a, r=8):
    for i in range(4): a(f'v_mov_b32 v{r+i}, -1')

JP, CP = 3200, 51328
def role_B(a):
    P = a.P
    a(f'''s_and_b32 s39, s2, 7
s_lshr_b32 s38, s2, 3            ; j
s_mul_i32 s55, s38, 43
s_lshr_b32 s55, s55, 7           ; Tp = j/3
s_mul_i32 s40, s55, 3
s_sub_u32 s40, s38, s40          ; cbl
s_lshl_b32 s40, s40, 2
s_mul_i32 s45, s39, 12
s_add_u32 s45, s45, s40
s_lshr_b32 s40, s3, 1
s_add_u32 s45, s45, s40
s_and_b32 s53, s3, 1
s_lshl_b32 s42, s55, 1
s_add_u32 s53, s53, s42          ; T = 2Tp + (w&1)
v_mov_b32 v12, 0
s_lshl_b32 s40, s53, 6
s_lshl_b32 s41, s45, 7''')
    blk2_addr(a, 4, 's40', 12288, 's41')
    a(f'''v_lshlrev_b32 v6, 2, v1
s_lshl_b32 s42, s3, 3
v_and_b32 v7, 7, v1
v_add_u32 v7, s42, v7
v_lshrrev_b32 v8, 5, v1
v_lshl_add_u32 v13, v8, 6, v7
s_min_u32 s40, s55, 4
s_lshl_b32 s40, s40, 7
v_add_u32 v7, s40, v13
v_lshlrev_b32 v7, 1, v7
s_waitcnt lgkmcnt(0)''')
    a.stamp('start')
    for k in range(5): a(f'global_load_dword v{16+k}, v6, {X} offset:{256*k}')
    a(f'global_load_ushort v21, v7, {X}')
    a('s_cmp_lt_u32 s2, 120\ns_cbranch_scc0 LB_nowq')
    a.load_rows(64, 4, 4, WQ, 12288)
    a.label('LB_nowq')
    a(f'global_load_dword v15, v12, {WS} sc1\ns_branch LB2')

def role_B2(a):
    P = a.P
    a.label('LB2')
    a(f'''s_mov_b32 s49, 0
s_mul_i32 s54, s39, 10
s_add_u32 s54, s54, s38
s_add_u32 s40, s2, 0
s_cmp_lt_u32 s38, 10
s_cselect_b32 s54, s54, s40
s_getreg_b32 s16, hwreg(HW_REG_XCC_ID, 0, 4)''')
    a.wave_is('eq', 6, 'LB_not6')
    code_warm(a, 24)
    if P['tlb']:
        a(f'''v_lshlrev_b32 v24, 17, v1
global_load_dword v14, v24, {WS} offset:64 nt''')
    a('s_mov_b32 s49, 1')
    a.label('LB_not6')
    a.wave_is('eq', 7, 'LB_not7')
    neg1(a, 28)
    a(f'''s_mul_i32 s50, s39, 2560
s_lshl_b32 s51, s38, 8
s_add_u32 s50, s50, s51
s_add_u32 s50, s50, {H6}
s_lshl_b32 s51, s54, 8
s_add_u32 s51, s51, {MODR - 104*256}
s_cmp_lt_u32 s54, 104
s_cselect_b32 s50, s50, s51
v_lshl_add_u32 v24, v2, 4, s50
s_cmp_lt_u32 s54, 80
s_cbranch_scc1 LB_c1
s_cmp_lt_u32 s54, 104
s_cbranch_scc0 LB_c1
s_mul_i32 s50, s54, 2560
s_add_u32 s50, s50, {H7Y - 80*2560}
v_lshl_add_u32 v24, v1, 4, s50
global_store_dwordx4 v24, v[28:31], {WS} sc1
global_store_dwordx4 v24, v[28:31], {WS} offset:1024 sc1
v_and_b32 v24, 31, v1
v_lshl_add_u32 v24, v24, 4, s50
v_add_u32 v24, 2048, v24
LB_c1:
global_store_dwordx4 v24, v[28:31], {WS} sc1''')
    a('s_mov_b32 s49, 1')
    a.label('LB_not7')
    a(f'''s_lshl_b32 s46, s2, 6
s_lshl_b32 s41, s3, 3
s_add_u32 s46, s46, s41
s_mul_i32 s46, s46, 1536           ; (64b+8w)*1536
s_and_b32 s47, s3, 1
s_lshl_b32 s47, s47, 3             ; 8*(w&1)
s_mul_i32 s48, s3, 12288
v_cmp_le_u32 vcc, 32, v1
v_add_u32 v56, 64, v1
v_subrev_u32 v57, 32, v1
v_cndmask_b32 v56, v56, v57, vcc
v_cndmask_b32 v58, 0, 1, vcc
v_xor_b32 v56, v56, v58
v_mul_u32_u24 v58, 1536, v58
v_add_u32 v57, 32, v1
v_xor_b32 v57, 1, v57''')
    def dma(lo, hi, other=0):
        for i in range(lo, hi):
            k, j = divmod(i, 3)
            src = ('v1', 'v56', 'v57')[j]
            a(f's_add_u32 s43, s47, {2*k}\nv_xor_b32 v8, s43, {src}')
            a(f's_add_u32 s44, s46, {2*k*1536 + (1536 if j == 2 else 0) + other*32*1536}')
            if j == 1: a('v_lshl_add_u32 v8, v8, 4, v58\nv_add_u32 v8, s44, v8')
            else: a('v_lshl_add_u32 v8, v8, 4, s44')
            a(f's_add_u32 m0, s48, {i*1024 + other*49152}\nglobal_load_lds_dwordx4 v8, {CKV} nt')
    N1 = P['dma1']
    a(f'v_mov_b32 v253, {STB + 520}\nds_write_b32 v253, v12')
    a.bar()
    dma(0, N1)
    consts(a)
    a('s_cmp_ge_u32 s2, 120\ns_cselect_b32 s49, 1, s49\ns_cmp_eq_u32 s49, 0\ns_cbranch_scc1 LB_w8\ns_waitcnt vmcnt(' + str(N1) + ')\nLB_w8:')
    a(f's_waitcnt vmcnt({9+N1})')
    for k in range(5): a(f'v_lshlrev_b32 v{24+2*k}, 16, v{16+k}\nv_and_b32 v{25+2*k}, 0xffff0000, v{16+k}')
    a('v_add_f32 v22, v24, v25')
    for k in range(2, 10): a(f'v_add_f32 v22, v22, v{24+k}')
    a.wave_red('v_add_f32', 22, 23)
    a(f'v_mul_f32 v22, {f2u(1/640):#x}, v22\nv_mov_b32 v23, 0')
    for k in range(10): a(f'v_sub_f32 v{24+k}, v{24+k}, v22\nv_fmac_f32 v23, v{24+k}, v{24+k}')
    a.wave_red('v_add_f32', 23, 24)
    a(f'v_mul_f32 v23, {f2u(1/640):#x}, v23')
    ln_finish(a, 22, 23, 24)
    a('v_lshlrev_b32 v21, 16, v21\nv_sub_f32 v21, v21, v22')
    a.rnd(21, 21)
    a.div(20, 21, 23, 24, 25)
    a.rnd(20, 20)
    a('s_cmp_lt_u32 s2, 120\ns_cbranch_scc0 LB_dma0')
    a(f'''s_lshl_b32 s40, s55, 14
s_lshl_b32 s42, s3, 10
s_add_u32 s40, s40, s42
s_add_u32 s40, s40, {H1}
v_lshl_add_u32 v4, v1, 4, s40
v_add_u32 v9, 8192, v4
v_lshlrev_b32 v5, 1, v13
v_add_u32 v5, {MISC}, v5
s_lshl_b32 s40, s39, 4
s_add_u32 s40, s40, {READY + 2048}
v_lshl_add_u32 v10, v2, 7, s40
s_mul_i32 s40, s45, 43
s_lshr_b32 s40, s40, 7
s_mul_i32 s42, s40, 3
s_sub_u32 s42, s45, s42
s_lshl_b32 s42, s42, 9
s_mul_i32 s40, s40, 15360
s_add_u32 s40, s40, s42
s_mul_i32 s42, s53, 1536
s_add_u32 s40, s40, s42
s_add_u32 s40, s40, {H1B}''')
    pack_addr(a, 6, 0)
    a(f'v_lshlrev_b32 v6, 1, v6\nv_lshl_add_u32 v6, v3, 4, v6\nv_add_u32 v6, s40, v6\nv_cmp_eq_u32 s[42:43], 1, v3')
    a(f's_and_b32 s40, s3, 1\ns_lshl_b32 s40, s40, 7\ns_add_u32 s40, s40, {MISC}')
    frag2_addr(a, 7, 's40')
    a(f's_waitcnt vmcnt({N1})')
    a.stamp('wq')
    a.get_tag()
    a(f'v_mov_b32 v61, {TAG}\nv_mov_b32 v63, {TAG}')
    a.poll(lambda: a(f'global_load_dwordx4 v[16:19], v4, {WS} sc1\nglobal_load_dwordx4 v[24:27], v9, {WS} sc1\nglobal_load_dwordx2 v[28:29], v10, {WS} sc1'),
           lambda: a.chk_tag([17, 19, 25, 27, 28], 8), sleep=P['sl_h1'], pre=P['pre_h1'], mid=lambda: a.perm_block(96, 64))
    a.stamp('h1')
    a('s_setprio 3')
    a('''v_add_f32_dpp v16, v16, v16 row_ror:8 row_mask:0xf bank_mask:0xf
v_add_f32_dpp v18, v18, v18 row_ror:8 row_mask:0xf bank_mask:0xf
v_add_f32_dpp v24, v24, v24 row_ror:8 row_mask:0xf bank_mask:0xf
v_add_f32_dpp v26, v26, v26 row_ror:8 row_mask:0xf bank_mask:0xf
v_cmp_ne_u32 s[50:51], s16, v29
v_permlane16_swap_b32 v16, v18
v_permlane16_swap_b32 v24, v26
v_add_f32 v16, v16, v18
v_add_f32 v24, v24, v26
v_permlane32_swap_b32 v16, v24
v_add_f32 v16, v16, v24
v_mov_b32 v18, v16
v_permlane16_swap_b32 v16, v18''')
    a.rnd(16, 16); a.rnd(18, 18)
    a('v_add_f32 v18, 1.0, v18')
    a.rnd(18, 18)
    a('v_mul_f32 v18, v20, v18')
    a.rnd(18, 18)
    a('v_add_f32 v16, v18, v16\nv_cvt_pk_bf16_f32 v16, v16, v16\nds_write_b16 v5, v16')
    a.bar()
    a('ds_read_b128 v[16:19], v7\ns_waitcnt lgkmcnt(0)')
    a.gemv2(24, 16, 96, True)
    a.pack2(8, 24)
    a('v_cndmask_b32 v60, v8, v10, s[42:43]\nv_cndmask_b32 v62, v9, v11, s[42:43]')
    a.lanes_lt(32)
    a('s_mov_b64 s[16:17], s[50:51]')
    a.st_local('s[16:17]', f'global_store_dwordx4 v6, v[60:63], {WS}')
    a.full()
    a.stamp('qpub')
    a('s_setprio 0\ns_barrier')
    if P['sl_dma2']: a(f's_sleep {P["sl_dma2"]}')
    a('s_branch LB_dma')
    a.label('LB_dma0')
    a.get_tag()
    a(f's_lshl_b32 s40, s39, 4\ns_add_u32 s40, s40, {READY + 2048}\nv_lshl_add_u32 v10, v2, 7, s40')
    a.poll(lambda: a(f'global_load_dwordx2 v[28:29], v10, {WS} sc1'), lambda: a.chk_tag([28], 8), sleep=4)
    a('v_cmp_ne_u32 s[16:17], s16, v29')
    a.label('LB_dma')
    a.wave_is('eq', 7, 'LB_nrp')
    a.ready_publish()
    a.label('LB_nrp')
    def bump():
        a('v_mov_b32 v8, 1\ns_mov_b64 exec, 1\nds_add_u32 v253, v8\ns_mov_b64 exec, -1')
    def ckwait(lab): a.lds_wait(253, 8)
    a.wave_is('lt', 4, 'LB_qa')
    for i in range(N1, 12):
        dma(i, i + 1); dma(i, i + 1, 1)
    a(f'''v_lshrrev_b32 v4, 2, v2            ; rr
v_lshl_add_u32 v4, v3, 3, v4       ; 8g+rr
v_and_b32 v5, 3, v1                ; cc
s_mul_i32 s40, s3, 24
v_add_u32 v5, s40, v5              ; 24w+cc''')
    for t in range(6):
        for sub in range(2):
            a(f'''v_add_u32 v6, {4*sub}, v4
v_and_b32 v7, 15, v6
v_add_u32 v8, {4*t}, v5
v_xor_b32 v7, v7, v8
v_mul_u32_u24 v6, 1536, v6
v_lshl_add_u32 v{40+t*2+sub}, v7, 4, v6''')
    a('s_waitcnt vmcnt(0)')
    bump()
    ckwait('LB_ck0')
    a.stamp('ckv')
    for t in range(6):
        for sub in range(2):
            for hf in range(2):
                for ks in range(2):
                    r = 64 + ((t*2+hf)*2+ks)*4 + 2*sub
                    a(f'ds_read_b64_tr_b16 {vr(r,2)}, v{40+t*2+sub} offset:{ks*49152 + hf*8}')
    a(f'''s_mul_i32 s41, s39, {16*CP}
s_mul_i32 s40, s38, {JP}
s_add_u32 s41, s41, s40
s_mul_i32 s40, s3, 384
s_add_u32 s41, s41, s40
s_add_u32 s41, s41, {H4}
v_bfe_u32 v52, v2, 1, 2
v_mul_u32_u24 v52, {CP}, v52
v_and_b32 v8, 1, v2
v_mul_u32_u24 v8, 1536, v8
v_add3_u32 v52, v52, v8, s41
v_lshl_add_u32 v52, v3, 4, v52
v_lshrrev_b32 v8, 3, v2
v_lshl_add_u32 v52, v8, 6, v52
v_add_u32 v53, {4*CP}, v52
v_add_u32 v54, {8*CP}, v52
v_add_u32 v55, {12*CP}, v52
s_lshl_b32 s40, s39, 14
s_lshl_b32 s41, s38, 6
s_add_u32 s40, s40, s41
s_lshl_b32 s41, s3, 4
s_add_u32 s40, s40, s41
s_add_u32 s40, s40, {AUX}
v_lshl_add_u32 v56, v2, 10, s40
v_lshlrev_b32 v57, 5, v2
v_add_u32 v57, {STB}, v57
s_branch LB_noqk''')
    a.label('LB_qa')
    a('s_sub_u32 s45, s3, 4\ns_mul_i32 s40, s45, 24\nv_add_u32 v5, s40, v3\nv_mul_u32_u24 v4, 1536, v2')
    for s_ in range(6):
        a(f'v_add_u32 v6, {4*s_}, v5\nv_xor_b32 v6, v6, v2\nv_lshl_add_u32 v{240+2*s_}, v6, 4, v4\nv_add_u32 v{241+2*s_}, 49152, v{240+2*s_}')
    a(f'''s_mul_i32 s40, s45, 12288
s_add_u32 s40, s40, {H2}
v_lshlrev_b32 v4, 6, v2
v_lshl_add_u32 v4, v3, 4, v4
v_add_u32 v4, s40, v4
v_add_u32 v5, 4096, v4
v_add_u32 v6, 8192, v4
s_and_b32 s41, s2, 3
s_lshl_b32 s41, s41, 6
s_add_u32 s40, s40, s41
s_add_u32 s40, s40, 10240
v_lshl_add_u32 v9, v1, 8, s40
s_mul_i32 s40, s45, {32*272}
s_add_u32 s40, s40, {SPB}
v_mul_u32_u24 v7, 272, v2
v_lshl_add_u32 v7, v3, 4, v7
v_add_u32 v7, s40, v7
s_mov_b32 s52, 0
s_waitcnt vmcnt(0)''')
    bump()
    a.ready_check(1, 10)
    a('v_mov_b32 v12, 0\nv_mov_b32 v10, 0')
    def cf():
        for kt in range(4):
            for s_ in range(6):
                a(f'ds_read_b128 {vr(64+(kt*6+s_)*4,4)}, v{240 + 2*s_ + (kt >> 1)} offset:{(kt & 1)*24576}')
    a(f'''LB_q0:
s_mov_b64 exec, {P['k_h2']}
global_load_dword v10, v9, {WS} sc1
s_mov_b64 exec, -1
s_cmp_eq_u32 s52, 0
s_cbranch_scc0 LB_q1
ds_read_b32 v8, v253
s_waitcnt lgkmcnt(0)
v_cmp_gt_u32 vcc, 8, v8
s_cbranch_vccnz LB_q1
s_mov_b32 s52, 1''')
    cf()
    a(f'''LB_q1:
s_waitcnt vmcnt(0)
v_cmp_eq_u32 vcc, -1, v10
s_cbranch_vccz LB_h2go
s_add_u32 {SPIN}, {SPIN}, 1
s_cmp_gt_u32 {SPIN}, {SPINMAX}
s_cbranch_scc1 LB_h2go
s_sleep {P['sl_pr2']}
s_branch LB_q0
LB_h2go:''')
    if P['post_h2']: a(f's_sleep {P["post_h2"]}')
    def ld():
        for i in range(12): a(f'global_load_dwordx4 {vr(16+4*i,4)}, v{4 + i//4}, {WS} offset:{(i%4)*1024} sc1')
    def mid():
        a('s_cmp_eq_u32 s52, 0\ns_cbranch_scc0 LB_q2')
        ckwait('LB_ck1')
        cf()
        a.label('LB_q2')
    a.poll(ld, lambda: a.chk_sent(range(16, 64), 8), sleep=P['sl_h2'], mid=mid)
    a('s_waitcnt lgkmcnt(0)')
    a.stamp('h2')
    a('s_setprio 3')
    for kt in range(4):
        for ht in range(2):
            for s_ in range(6):
                d = 224 + (kt*2+ht)*4
                a(f'v_mfma_f32_16x16x32_bf16 {vr(d,4)}, {vr(64+(kt*6+s_)*4,4)}, {vr(16+(s_*2+ht)*4,4)}, {"0" if s_ == 0 else vr(d,4)}')
        if kt >= 1:
            for ht in range(2): a(f'ds_write_b128 v7, {vr(224+((kt-1)*2+ht)*4,4)} offset:{ht*16*272 + (kt-1)*64}')
    for ht in range(2): a(f'ds_write_b128 v7, {vr(224+(3*2+ht)*4,4)} offset:{ht*16*272 + 3*64}')
    if P['bpf']:
        a(f'''s_mul_i32 s41, s39, {16*CP}
s_mul_i32 s40, s38, {JP}
s_add_u32 s41, s41, s40
s_mul_i32 s40, s45, 384
s_add_u32 s41, s41, s40
s_add_u32 s41, s41, {H4}
v_bfe_u32 v59, v1, 1, 4
v_mul_u32_u24 v59, {CP}, v59
v_and_b32 v8, 1, v1
v_mul_u32_u24 v8, 1536, v8
v_add3_u32 v59, v59, v8, s41
v_lshrrev_b32 v8, 5, v1
v_lshl_add_u32 v59, v8, 7, v59''')
    a.label('LB_noqk')
    a(f'''s_lshl_b32 s40, s3, 2
v_add_u32 v9, s40, v3              ; head = 4w+g
v_mul_u32_u24 v4, 272, v9
v_lshl_add_u32 v4, v2, 4, v4
v_add_u32 v4, {SPB}, v4
v_mul_u32_u24 v5, 144, v9
v_lshl_add_u32 v5, v2, 3, v5
v_add_u32 v5, {PB}, v5
s_lshl_b32 s40, s2, 4
s_add_u32 s40, s40, {H3}
v_lshl_add_u32 v6, v9, 11, s40
v_lshlrev_b32 v7, 4, v9
v_add_u32 v7, {STB}, v7
v_lshlrev_b32 v10, 2, v2           ; 4*kq
v_mov_b32 v45, {TAG}
v_mov_b32 v47, {TAG}
s_lshl_b32 s40, s2, 7
s_add_u32 s40, s40, {DB3}
v_mov_b32 v8, s40
v_cmp_eq_u32 vcc, 1, v1
v_cndmask_b32 v6, v6, v8, vcc
s_cmp_eq_u32 s3, 7
s_cselect_b32 s49, 2, 0
s_or_b32 s49, s49, 0x00010001
v_mov_b32 v58, {STB + 512}
v_mov_b32 v13, 0
ds_write_b64 v58, v[12:13]
ds_write_b32 v58, v12 offset:12''')
    for i in range(4): a(f'v_add_u32 v{40+i}, {i}, v10')
    a.bar()
    a.stamp('qk')
    a('s_setprio 3')
    for i in range(4): a(f'ds_read_b128 {vr(16+4*i,4)}, v4 offset:{8704*i}')
    a(f'''v_mul_u32_u24 v4, 144, v2
v_lshl_add_u32 v4, v3, 4, v4
v_add_u32 v4, {PB}, v4
v_mov_b32 v11, {NEGINF:#x}
s_mov_b32 s40, 0xffffffc0
s_waitcnt lgkmcnt(0)''')
    for i in range(4):
        a(f'v_add_f32 v{16+i}, v{16+i}, v{20+i}\nv_add_f32 v{24+i}, v{24+i}, v{28+i}')
    for i in range(4): a(f'v_add_f32 v{32+i}, v{16+i}, v{24+i}')
    for i in range(4): a(f'v_and_or_b32 v{36+i}, v{32+i}, s40, v{40+i}')
    a('v_max3_f32 v50, v36, v37, v38\nv_max_f32 v50, v50, v39')
    for i in range(4): a(f'v_cvt_pk_bf16_f32 v{32+i}, v{32+i}, v{32+i}')
    a.row_red('v_max_f32', [50])
    a.rnd(44, 50)
    a('v_mul_f32 v44, s59, v44\nv_and_b32 v46, 63, v50')
    a.rnd(44, 44)
    a('s_mov_b32 exec_lo, s49\ns_mov_b32 exec_hi, 0x00010001')
    a(f'global_store_dwordx4 v6, v[44:47], {WS} sc1')
    a.full()
    a.stamp('h3pub')
    if P['bpf']:
        a.wave_is('ge', 4, 'LB_npf')
        pol = ['', 'nt', 'sc1'][P['bpf']] if P['bpf'] < 3 else ''
        a(f'global_load_dword v60, v59, {WS} {pol}\ns_mov_b32 exec_hi, 0\nglobal_load_dword v61, v59, {WS} offset:256 {pol}\ns_mov_b32 exec_hi, -1')
        a.label('LB_npf')
    for i in range(4): a(f'v_and_b32 v{32+i}, 0xffff0000, v{32+i}')
    for i in range(4): a(f'v_mul_f32 v{32+i}, s59, v{32+i}')
    for i in range(4): a.rnd(32 + i, 32 + i)
    for i in range(4):
        a(f'v_cmp_eq_u32 s[{50+2*(i&1)}:{51+2*(i&1)}], v{40+i}, v46\nv_cndmask_b32 v{32+i}, v{32+i}, v11, s[{50+2*(i&1)}:{51+2*(i&1)}]\nv_cndmask_b32 v{24+i}, 0, 1.0, s[{50+2*(i&1)}:{51+2*(i&1)}]')
    a('v_max3_f32 v50, v32, v33, v34\nv_max_f32 v50, v50, v35')
    a.row_red('v_max_f32', [50])
    a('v_sub_f32 v28, v50, v44')
    for i in range(4): a(f'v_sub_f32 v{32+i}, v{32+i}, v50')
    a('v_mul_f32 v28, s56, v28')
    for i in range(4): a(f'v_mul_f32 v{32+i}, s56, v{32+i}')
    a('v_exp_f32 v28, v28')
    for i in range(4): a(f'v_exp_f32 v{32+i}, v{32+i}')
    for i in range(4): a(f'v_fmac_f32 v{24+i}, v{32+i}, v28')
    a(f'''v_cvt_pk_bf16_f32 v36, v24, v25
v_cvt_pk_bf16_f32 v37, v26, v27
ds_write_b64 v5, v[36:37]
v_add_f32 v51, v32, v33
v_add_f32 v49, v34, v35
v_add_f32 v51, v51, v49
v_cvt_pk_bf16_f32 v38, v32, v33
v_cvt_pk_bf16_f32 v39, v34, v35
ds_write_b64 v5, v[38:39] offset:4608
v_mov_b32 v48, v44''')
    a.row_red('v_add_f32', [51])
    a('v_fma_f32 v49, v51, v28, 1.0\nds_write_b128 v7, v[48:51]')
    a.stamp('xa')
    a.bar()
    a.stamp('xb')
    a.wave_is('lt', 4, 'LB_lw')
    for ht in range(2):
        for ks in range(2): a(f'ds_read_b128 {vr(16+(ht*2+ks)*4,4)}, v4 offset:{ht*16*144 + ks*64}')
    a('ds_read2_b32 v[36:37], v57 offset0:1 offset1:5\ns_waitcnt lgkmcnt(1)')
    def unit(i):
        cl, ht = i >> 1, i & 1
        for tp in range(2):
            for hf in range(2):
                d = 160 + (i % 3)*16 + (tp*2+hf)*4
                t = cl*2 + tp
                for ks in range(2):
                    a(f'v_mfma_f32_16x16x32_bf16 {vr(d,4)}, {vr(64+((t*2+hf)*2+ks)*4,4)}, {vr(16+(ht*2+ks)*4,4)}, {"0" if ks == 0 else vr(d,4)}')
    def ust(i, pol):
        cl, ht = i >> 1, i & 1
        d = 160 + (i % 3)*16; o = 208 + (i % 4)*12
        for k in range(4): a(f'v_cvt_pk_bf16_f32 v{o+k}, v{d+2*k}, v{d+2*k+1}')
        for k in range(4): a(f'v_cvt_pk_bf16_f32 v{o+4+k}, v{d+8+2*k}, v{d+8+2*k+1}')
        for k in range(4): a(f'v_mov_b32 v{o+8+k}, v{o+k}')
        for k in range(4): a(f'v_mov_b32_dpp v{o+k}, v{o+4+k} row_ror:8 row_mask:0xf bank_mask:0xc')
        a(f'global_store_dwordx4 v{52+2*ht}, {vr(o,4)}, {WS} offset:{128*cl} {pol}')
        for k in range(4): a(f'v_mov_b32_dpp v{o+4+k}, v{o+8+k} row_ror:8 row_mask:0xf bank_mask:0x3')
        a(f'global_store_dwordx4 v{53+2*ht}, {vr(o+4,4)}, {WS} offset:{128*cl} {pol}')
    def pvloop(pol):
        unit(0)
        a.stamp('xc')
        for i in range(1, 6):
            unit(i); ust(i - 1, pol)
            if i in (1, 3, 5): a.stamp(f'xd{i}')
        ust(5, pol)
    if P['local'] and P['pv_local']:
        a('s_cmp_eq_u64 s[16:17], 0\ns_cbranch_scc0 LB_pvf')
        pvloop('')
        a('s_branch LB_pvd')
        a.label('LB_pvf')
    pvloop('sc1')
    a.label('LB_pvd')
    a(f'v_mov_b32 v8, 1\nv_mov_b32 v33, {TAG}\nv_mov_b32 v32, v36\nv_mov_b32 v34, v37\nv_mov_b32 v35, {TAG}')
    a.lanes_lt(1)
    a('ds_add_u32 v58, v8')
    a.stamp('pvst')
    a.lanes_lt(16)
    a('s_waitcnt vmcnt(0)')
    a.st_local('s[16:17]', f'global_store_dwordx4 v56, v[32:35], {WS}')
    a.lanes_lt(1)
    a('ds_add_u32 v58, v8 offset:12')
    a.full()
    a.stamp('auxpub')
    a(f'''v_lshlrev_b32 v9, 2, v2
v_add_u32 v9, {STB + 576}, v9
s_lshl_b32 s40, s3, 9
s_add_u32 s40, s40, {SIDE}
v_lshlrev_b32 v10, 13, v2
v_lshl_add_u32 v10, v3, 4, v10
v_add_u32 v10, s40, v10
v_lshlrev_b32 v11, 4, v2
v_add_u32 v11, {STB}, v11
''')
    a.lds_wait(58, 1, off=4, extra='ds_read2_b32 v[40:41], v9 offset0:0 offset1:16')
    for ht in range(2):
        a(f'''v_cmp_gt_u32 s[42:43], 4, v{40+ht}
s_cmp_eq_u64 s[42:43], 0
s_cbranch_scc1 LB_cn{ht}
ds_read_b128 v[16:19], v4 offset:{4608 + ht*16*144}
ds_read_b128 v[20:23], v4 offset:{4608 + ht*16*144 + 64}
ds_read_b64 v[44:45], v11 offset:{ht*256 + 8}
v_and_b32 v42, 3, v{40+ht}
v_lshl_add_u32 v42, v42, 11, v10
v_add_u32 v42, {ht*16*8192}, v42
s_waitcnt lgkmcnt(0)''')
        for t in range(6):
            for hf in range(2):
                d = 160 + (t*2+hf)*4
                for ks in range(2):
                    a(f'v_mfma_f32_16x16x32_bf16 {vr(d,4)}, {vr(64+((t*2+hf)*2+ks)*4,4)}, {vr(16+ks*4,4)}, {"0" if ks == 0 else vr(d,4)}')
        for t in range(6):
            for k in range(4): a(f'v_cvt_pk_bf16_f32 v{208+4*t+k}, v{160+8*t+2*k}, v{161+8*t+2*k}')
        a.san(range(208, 232))
        a(f'v_mov_b32 v46, v45\nv_mov_b32 v45, {TAG}\nv_mov_b32 v47, {TAG}\ns_mov_b64 exec, s[42:43]')
        for t in range(6): a(f'global_store_dwordx4 v42, {vr(208+4*t,4)}, {WS} offset:{64*t} sc1')
        a(f's_and_b64 exec, exec, 0xffff\nglobal_store_dwordx4 v42, v[44:47], {WS} offset:384 sc1')
        a.full()
        a.label(f'LB_cn{ht}')
    a('v_mov_b32 v8, 1')
    a.lanes_lt(1)
    a('ds_add_u32 v58, v8')
    a.full()
    a('s_branch LB_lw2')
    a.label('LB_lw')
    a('s_setprio 0')
    a.wave_is('eq', 4, 'LB_lw3')
    a(f'''v_and_b32 v9, 31, v1
v_lshlrev_b32 v10, 2, v9
v_add_u32 v10, {STB + 576}, v10
s_lshl_b32 s40, s39, 4
s_add_u32 s40, s40, s38
s_lshl_b32 s40, s40, 8
s_add_u32 s40, s40, {MB}
v_lshl_add_u32 v9, v9, 3, s40
''')
    a.lds_wait(58, P['ew_cnt'], sleep=2)
    a.poll(lambda: a(f'global_load_dwordx2 v[16:17], v9, {WS} sc1'), lambda: a.chk_tag([17], 8), sleep=P['sl_el'])
    a.stamp('el')
    a('ds_write_b32 v10, v16\nv_mov_b32 v8, 1\nds_write_b32 v58, v8 offset:4')
    a.label('LB_lw2')
    a.lds_wait(58, 8, sleep=P['sl_lw'])
    a('s_branch LB_late')
    a.label('LB_lw3')
    if P['early_late']: a.lds_wait(58, 4, off=12, sleep=P['sl_lw'])
    else: a.lds_wait(58, 8, sleep=P['sl_lw'])
    a.label('LB_late')
    def gate2(): a.lds_wait(58, 8, sleep=P['sl_lw'])
    a('s_cmp_lt_u32 s54, 80\ns_cbranch_scc0 LB_hi')
    a.wave_is('ge', 4, 'LB_wob')
    a(f'''s_mul_i32 s40, s39, 768
s_mul_i32 s41, s45, 192
s_add_u32 s40, s40, s41
s_lshl_b32 s41, s38, 7''')
    blk2_addr(a, 4, 's40', 1280, 's41')
    a(f'v_add_u32 v5, {64*1280}, v4\nv_add_u32 v6, {128*1280}, v4')
    for i in range(3):
        a.load_rows(64 + 32*i, 4, 4 + i, WO, 1280)
        if i == P['early_late'] - 1: gate2()
    a(f'''s_mul_i32 s40, s39, 12
s_mul_i32 s41, s45, 3
s_add_u32 s40, s40, s41
s_lshl_b32 s40, s40, 10
s_add_u32 s40, s40, {H5}
v_lshl_add_u32 v4, v1, 4, s40
s_mul_i32 s40, s45, 384
s_add_u32 s40, s40, {MISC + 4096}
v_lshl_add_u32 v5, v2, 2, v3
v_lshl_add_u32 v5, v5, 1, s40      ; (4p+g)*2''')
    frag2_addr(a, 6, 's40')
    gemv_out_prep(a, MISC + 2048 - 1024)
    for i in range(3):
        a(f's_waitcnt vmcnt({16 - 8*i})')
        a.perm_block(160 + 32*i, 64 + 32*i)
    a.stamp('late')
    if P['probe_h5']: a.probe(4, 8, off=2048, sleep=P['sl_pr'], post=P['post_h5'], mask=0x0001000100010001)
    def ld():
        for i in range(3): a(f'global_load_dwordx4 {vr(16+4*i,4)}, v4, {WS} offset:{1024*i} sc1')
    a.poll(ld, lambda: a.chk_sent(range(16, 28), 8), sleep=P['sl_h5'])
    a.stamp('h5')
    a('s_setprio 3')
    for i in range(3): a.xrow_tr4(16 + 4*i)
    for i in range(3): a(f'v_cvt_pk_bf16_f32 v{16+4*i}, v{16+4*i}, v{16+4*i}\nds_write_b16 v5, v{16+4*i} offset:{128*i}')
    a('s_waitcnt lgkmcnt(0)')
    for i in range(3): a(f'ds_read_b128 {vr(16+4*i,4)}, v6 offset:{128*i}')
    for i in range(3):
        a(f's_waitcnt lgkmcnt({2-i})')
        a.gemv2(64, 16 + 4*i, 160 + 32*i, i == 0)
    gemv_out_lds(a, 64, 0)
    a.label('LB_wob')
    a(f'''v_lshlrev_b32 v4, 4, v2
v_add_u32 v4, {MISC + 2048}, v4
s_mul_i32 s40, s39, 2560
s_lshl_b32 s41, s38, 8
s_add_u32 s40, s40, s41
s_add_u32 s40, s40, {H6}
v_lshl_add_u32 v5, v2, 4, s40''')
    a.bar()
    a.wave_is('eq', 4, 'Lfin')
    for i in range(4): a(f'ds_read_b128 {vr(16+4*i,4)}, v4 offset:{256*i}')
    a('s_waitcnt lgkmcnt(0)')
    tree(a, range(16, 32, 4), n=4)
    a.lanes_lt(16)
    a(f'global_store_dwordx4 v5, v[16:19], {WS} sc1')
    a.full()
    a.stamp('h6pub')
    a('s_branch Lfin')
    a.label('LB_hi')
    a('s_cmp_lt_u32 s54, 104\ns_cbranch_scc0 LB_mr')
    a(f's_sub_u32 s46, s54, 80\ns_lshl_b32 s40, s46, 6\ns_lshl_b32 s41, s3, 7')
    blk2_addr(a, 10, 's40', 1280, 's41')
    a.wave_is('lt', 5, 'LB_f5')
    a(f's_lshl_b32 s40, s3, 7\ns_lshl_b32 s41, s46, 7')
    blk2_addr(a, 4, 's40', 3072, 's41')
    a(f'v_add_u32 v5, {64*3072}, v4\nv_lshlrev_b32 v6, 2, v0\nglobal_load_dword v24, v6, {X}')
    a.load_rows(128, 4, 4, W1, 3072)
    a.load_rows(160, 4, 5, W1, 3072)
    a.load_rows(64, 4, 10, W2, 1280)
    a(f'v_lshlrev_b32 v4, 2, v0\nv_add_u32 v4, {MODR}, v4\nv_add_u32 v5, 2560, v4\ns_waitcnt vmcnt(8)')
    a.perm_block(192, 128)
    a.perm_block(224, 160)
    a('s_waitcnt vmcnt(0)')
    a.stamp('late1')
    a.perm_block(96, 64)
    a.ready_check(0, 36)
    def ld():
        a(f'''global_load_dword v25, v4, {WS} sc1
global_load_dword v26, v4, {WS} offset:1280 sc1
global_load_dword v27, v5, {WS} sc1
global_load_dword v38, v5, {WS} offset:1280 sc1''')
    a.poll(ld, lambda: a.chk_sent([25, 26, 27, 38], 8), sleep=8)
    a(f'''v_lshlrev_b32 v4, 3, v0
v_add_u32 v8, {H6}, v4
v_lshlrev_b32 v28, 16, v24
v_and_b32 v29, 0xffff0000, v24
v_lshlrev_b32 v30, 16, v25
v_and_b32 v31, 0xffff0000, v25
v_lshlrev_b32 v32, 16, v26
v_and_b32 v33, 0xffff0000, v26
v_lshlrev_b32 v34, 16, v27
v_and_b32 v35, 0xffff0000, v27
v_add_f32 v34, 1.0, v34
v_add_f32 v35, 1.0, v35''')
    a.rnd(34, 34); a.rnd(35, 35)
    for i in range(1, 4): a(f'v_add_u32 v{8+i}, {5120*i}, v8')
    a(f'''s_lshl_b32 s40, s3, 3
s_add_u32 s40, s40, {MISC + 8192}
v_mov_b32 v13, s40
s_lshl_b32 s40, s3, 8
s_add_u32 s40, s40, {MISC + 4096}
v_lshl_add_u32 v5, v1, 2, s40''')
    frag2_addr(a, 6, 's40')
    gemv_out_prep(a, MISC)
    a(f'v_mul_u32_u24 v37, 2560, v1\ns_lshl_b32 s40, s3, 9\ns_add_u32 s40, s40, {H6}\nv_add_u32 v37, s40, v37')
    if P['probe_h6']: a.probe(37, 4, sleep=P['sl_pr'], post=P['post_h6'], mask=0xff)
    def ld():
        for i in range(8): a(f'global_load_dwordx2 {vr(40+2*i,2)}, v{8 + i//2}, {WS} offset:{2560*(i%2)} sc1')
    if P['m_h6']:
        a.poll_masked([(f'global_load_dwordx2 {vr(40+2*i,2)}, v{8 + i//2}, {WS} offset:{2560*(i%2)} sc1', range(40+2*i, 42+2*i)) for i in range(8)], 4, sleep=P['sl_h6'])
    else: a.poll(ld, lambda: a.chk_sent(range(40, 56), 4), sleep=P['sl_h6'])
    a.stamp('h6')
    a('s_setprio 3')
    tree(a, range(40, 56, 2), n=2)
    for i in range(2): a.rnd(40 + i, 40 + i)
    for i in range(2): a(f'v_mul_f32 v{40+i}, v{30+i}, v{40+i}')
    for i in range(2): a.rnd(40 + i, 40 + i)
    for i in range(2): a(f'v_add_f32 v{40+i}, v{28+i}, v{40+i}')
    a('''v_cvt_pk_bf16_f32 v36, v40, v41
v_lshlrev_b32 v40, 16, v36
v_and_b32 v41, 0xffff0000, v36
v_readfirstlane_b32 s42, v40
v_subrev_f32 v44, s42, v40
v_subrev_f32 v45, s42, v41
v_add_f32 v42, v44, v45
v_mul_f32 v43, v44, v44
v_fmac_f32 v43, v45, v45''')
    a.row_red('v_add_f32', [42, 43])
    a(f'''v_permlane16_swap_b32 v42, v43
v_add_f32 v42, v42, v43
v_mov_b32 v43, v42
v_permlane32_swap_b32 v42, v43
v_add_f32 v42, v42, v43
v_mov_b32 v43, v42
v_permlane16_swap_b32 v42, v43
v_mul_f32 v42, {f2u(1/128):#x}, v42
v_mul_f32 v44, {f2u(128.0):#x}, v42
v_fma_f32 v43, -v44, v42, v43
v_add_f32 v42, s42, v42
ds_write_b64 v13, v[42:43]
s_branch LB_w1b''')
    a.label('LB_f5')
    a.load_rows(64, 4, 10, W2, 1280)
    if P['early_late'] < 2: gate2()
    a.wave_is('lt', 7, 'LB_f7')
    a(f's_lshl_b32 s40, s46, 6\ns_add_u32 s41, s3, 3\ns_lshl_b32 s41, s41, 7')
    blk2_addr(a, 10, 's40', 1280, 's41')
    a.load_rows(128, 4, 10, W2, 1280)
    a.label('LB_f7')
    a('s_waitcnt vmcnt(0)')
    a.perm_block(96, 64)
    a.perm_block(192, 128)
    a.label('LB_w1b')
    a(f'v_mov_b32 v4, {MISC + 8192}')
    a.bar()
    a('s_setprio 3')
    a.wave_is('lt', 5, 'LB_w1c')
    a(f'''ds_read_b128 v[44:47], v4
ds_read_b128 v[48:51], v4 offset:16
ds_read_b64 v[52:53], v4 offset:32
s_waitcnt lgkmcnt(0)
v_add_f32 v54, v44, v46
v_add_f32 v55, v48, v50
v_add_f32 v56, v45, v47
v_add_f32 v54, v54, v55
v_add_f32 v57, v49, v51
v_add_f32 v54, v54, v52
v_add_f32 v55, v56, v57
v_mul_f32 v54, {f2u(0.2):#x}, v54      ; mean
v_add_f32 v55, v55, v53''')
    for r in (44, 46, 48, 50, 52): a(f'v_sub_f32 v{r}, v{r}, v54')
    a('v_mul_f32 v56, v44, v44\nv_mul_f32 v57, v46, v46\nv_fmac_f32 v56, v48, v48\nv_fmac_f32 v57, v50, v50\nv_fmac_f32 v56, v52, v52\nv_add_f32 v56, v56, v57')
    a(f'v_fmac_f32 v55, {f2u(128.0):#x}, v56\nv_mul_f32 v55, {f2u(1/640):#x}, v55')
    ln_finish(a, 54, 55, 56)
    for i in range(2): a(f'v_sub_f32 v{44+i}, v{40+i}, v54')
    for i in range(2): a.rnd(44 + i, 44 + i)
    for i in range(2): a.div(42 + i, 44 + i, 55, 56, 57 + i)
    for i in range(2): a.rnd(42 + i, 42 + i)
    for i in range(2): a(f'v_mul_f32 v{42+i}, v{42+i}, v{34+i}')
    for i in range(2): a.rnd(42 + i, 42 + i)
    for i in range(2): a(f'v_add_f32 v{42+i}, v{42+i}, v{32+i}')
    a('''v_cvt_pk_bf16_f32 v42, v42, v43
ds_write_b32 v5, v42
s_waitcnt lgkmcnt(0)
ds_read_b128 v[16:19], v6
ds_read_b128 v[20:23], v6 offset:128
s_waitcnt lgkmcnt(1)''')
    a.gemv2(128, 16, 192, True)
    a('s_waitcnt lgkmcnt(0)')
    a.gemv2(128, 20, 224, False)
    gemv_out_lds(a, 128, MISC)
    a.label('LB_w1c')
    a(f'''v_and_b32 v4, 31, v1
v_lshlrev_b32 v5, 2, v4
v_lshlrev_b32 v4, 3, v4
v_add_u32 v4, {MISC}, v4
s_lshl_b32 s40, s3, 7
s_add_u32 s40, s40, {MISC + 6144}
v_add_u32 v5, s40, v5''')
    frag2_addr(a, 6, 's40')
    a(f's_mul_i32 s40, s46, 2560\ns_lshl_b32 s41, s3, 8\ns_add_u32 s40, s40, s41\ns_add_u32 s40, s40, {H7Y}')
    pack_addr(a, 14, 's40')
    a.bar()
    for i in range(5): a(f'ds_read_b64 {vr(16+2*i,2)}, v4 offset:{256*i}')
    a('s_waitcnt lgkmcnt(0)')
    tree(a, range(16, 26, 2), n=2)
    a('''v_max_f32 v16, 0, v16
v_max_f32 v17, 0, v17
v_cvt_pk_bf16_f32 v8, v16, v17
ds_write_b32 v5, v8
s_waitcnt lgkmcnt(0)
ds_read_b128 v[16:19], v6
s_waitcnt lgkmcnt(0)''')
    a.gemv2(64, 16, 96, True)
    a('s_sub_u32 s40, s3, 5\ns_cmp_lt_u32 s40, 2\ns_cbranch_scc0 LB_y1')
    a.gemv2(128, 16, 192, True)
    a.label('LB_y1')
    a.pack2(8, 64)
    a.lanes_lt(16)
    a(f'global_store_dwordx4 v14, v[8:11], {WS} sc1')
    a.full()
    a('s_cbranch_scc0 LB_y2')
    a.pack2(20, 128)
    a.lanes_lt(16)
    a(f'global_store_dwordx4 v14, v[20:23], {WS} offset:768 sc1')
    a.full()
    a.label('LB_y2')
    a.stamp('h7pub')
    a('s_lshr_b32 s40, s46, 2\ns_cmp_eq_u32 s40, s3\ns_cbranch_scc0 Lfin\ns_cmp_lt_u32 s3, 5\ns_cbranch_scc0 Lfin\ns_and_b32 s40, s46, 3\ns_lshl_b32 s40, s40, 4\ns_mov_b64 s[42:43], 0xffff\ns_lshl_b64 exec, s[42:43], s40')
    a(f'v_lshlrev_b32 v4, 3, v0\nv_add_u32 v4, {H7Y}, v4')
    for i in range(1, 12): a(f'v_add_u32 v{16+i}, {5120*i}, v4')
    a(f'''v_mov_b32 v16, v4
v_lshlrev_b32 v5, 2, v0
v_lshlrev_b32 v30, 16, v38
v_and_b32 v31, 0xffff0000, v38''')
    def ld():
        for i in range(24): a(f'global_load_dwordx2 {vr(64+2*i,2)}, v{16 + i//2}, {WS} offset:{2560*(i%2)} sc1')
    a.poll(ld, lambda: a.chk_sent(range(64, 112), 4), sleep=P['sl_h7'], pre=P['pre_h7'])
    a.stamp('h7')
    tree(a, range(64, 112, 2), n=2)
    for i in range(2): a.rnd(64 + i, 64 + i)
    for i in range(2): a(f'v_mul_f32 v{64+i}, v{30+i}, v{64+i}')
    for i in range(2): a.rnd(64 + i, 64 + i)
    for i in range(2): a(f'v_add_f32 v{64+i}, v{40+i}, v{64+i}')
    a(f'v_cvt_pk_bf16_f32 v64, v64, v65\nglobal_store_dword v5, v64, {OUT}\ns_mov_b64 exec, -1')
    a.stamp('out')
    a('s_branch Lfin')
    a.label('LB_mr')
    a('s_cmp_lt_u32 s54, 124\ns_cbranch_scc0 Lfin\ns_sub_u32 s46, s54, 104\ns_add_u32 s45, s3, 3\ns_and_b32 s45, s45, 7\ns_cmp_lt_u32 s45, 5\ns_cbranch_scc0 LB_mrb')
    a(f'''s_lshl_b32 s40, s45, 7
v_lshl_add_u32 v4, v3, 3, s40      ; row = 128w + 8g
v_lshlrev_b32 v6, 1, v4
v_add_u32 v6, {MISC + 4096}, v6
v_mul_u32_u24 v4, 7680, v4
v_lshl_add_u32 v4, v2, 4, v4
s_lshl_b32 s40, s46, 8
s_add_u32 s40, s40, 2560
v_add_u32 v4, s40, v4
s_lshl_b32 s40, s45, 8
v_lshl_add_u32 v7, v1, 2, s40
global_load_dword v16, v7, {CC}
v_add_u32 v7, {MISC + 4096}, v7''')
    for i in range(4):
        a.load_rows(64 + 32*i, 4, 4, WMOD, 7680)
        if i < 3: a(f'v_add_u32 v4, {25*7680}, v4')
        if i == P['early_late'] - 1: gate2()
    a('s_waitcnt vmcnt(32)')
    a('v_lshlrev_b32 v32, 16, v16\nv_and_b32 v33, 0xffff0000, v16')
    a.silu(32, 32, 8); a.silu(33, 33, 8)
    a(f'v_perm_b32 v16, v33, v32, {PHI}\nds_write_b32 v7, v16\ns_waitcnt lgkmcnt(0)')
    for i in range(4): a(f'ds_read_b128 {vr(16+4*i,4)}, v6 offset:{64*i}')
    a('s_waitcnt lgkmcnt(0)')
    a(f'''v_cmp_eq_u32 s[42:43], 1, v3
v_lshlrev_b32 v4, 5, v2
v_lshl_add_u32 v4, v3, 4, v4
s_lshl_b32 s40, s45, 9
s_add_u32 s40, s40, {MISC}
v_add_u32 v4, s40, v4''')
    for i in range(4):
        a(f's_waitcnt vmcnt({24 - 8*i})')
        a.perm_block(192, 64 + 32*i)
        a.gemv2(224, 16 + 4*i, 192, i == 0)
    a.stamp('late2')
    for i in range(4): a(f'v_cndmask_b32 v{8+i}, v{224+4*i}, v{224+4*(i+4)}, s[42:43]')
    a.lanes_lt(32)
    a('ds_write_b128 v4, v[8:11]')
    a.full()
    a.label('LB_mrb')
    a.bar()
    a.wave_is('eq', 2, 'Lfin')
    a(f'v_lshlrev_b32 v4, 3, v1\nv_add_u32 v4, {MISC}, v4')
    for i in range(5): a(f'ds_read_b64 {vr(16+2*i,2)}, v4 offset:{512*i}')
    a(f's_lshl_b32 s40, s46, 8\ns_add_u32 s40, s40, {MODR}\nv_lshl_add_u32 v4, v1, 2, s40\ns_waitcnt lgkmcnt(0)')
    tree(a, range(16, 26, 2), n=2)
    a('v_cvt_pk_bf16_f32 v8, v16, v17')
    a.san([8])
    for i in range(1, 4): a(f'v_mov_b32_dpp v{8+i}, v8 quad_perm:[{i},{i},{i},{i}] row_mask:0xf bank_mask:0xf')
    a.exec_mask(0x1111111111111111)
    a(f'global_store_dwordx4 v4, v[8:11], {WS} sc1')
    a.full()
    a.stamp('mrpub')
    a('s_branch Lfin')

LS1, LQ, LKEY, LEK, LWT, LWP, LFW, LKP = 0, 2816, 3328, 3840, 4096, 4608, 5120, 6144
LRP = LKP + 18432; LCC = LRP + 6144; LVP = LCC + 1024; LQF = LVP + 4608; LSR = LQF + 1024; LFL = LSR + 1536
def load_uk(a, base, off=128, lo=0, hi=8, v=4):
    if lo == hi: return
    a(f'''s_mul_i32 s40, s41, 192
s_lshl_b32 s42, s3, 5
s_add_u32 s40, s40, s42
s_add_u32 s40, s40, {lo}
v_lshl_add_u32 v{v}, v3, 3, s40
v_mul_u32_u24 v{v}, 12288, v{v}
s_mul_i32 s40, s47, 384
v_add_u32 v{v}, s40, v{v}
v_lshl_add_u32 v{v+1}, v2, 3, v{v}
v_lshl_add_u32 v{v}, v2, 4, v{v}''')
    for j in range(lo, hi):
        a(f'global_load_dwordx4 {vr(off+4*j,4)}, v{v}, {base} nt')
        a(f'global_load_dwordx2 {vr(off+32+2*j,2)}, v{v+1}, {base} offset:256 nt')
        if j < hi - 1: a(f'v_add_u32 v{v}, 12288, v{v}\nv_add_u32 v{v+1}, 12288, v{v+1}')
def perm12(a, dst, src=128):
    a.perm_block(dst, src, nreg=4); a.perm_block(dst + 32, src + 32, nreg=2)
def mfma12(a, D, A, F):
    for e in range(12): a(f'v_mfma_f32_16x16x32_bf16 {vr(D+4*e,4)}, {vr(A,4)}, {vr(F+4*e,4)}, 0')
def out12_prep(a, v, lbase):
    a(f's_mul_i32 s40, s3, 768\ns_add_u32 s40, s40, {lbase}\nv_lshl_add_u32 v{v}, v2, 5, s40\nv_lshl_add_u32 v{v+1}, v2, 4, s40')
def out12(a, D, o, v):
    for e in range(12): a(f'v_add_f32 v{o+e}, v{D+4*e}, v{D+4*e+1}')
    a.lanes_lt(16)
    a(f'ds_write_b128 v{v}, {vr(o,4)}\nds_write_b128 v{v}, {vr(o+4,4)} offset:16\nds_write_b128 v{v+1}, {vr(o+8,4)} offset:512')
    a.full()
def weights_out(a, val, lbase, k):
    a(f'''v_cvt_pk_bf16_f32 v8, v{val}, v{val}
ds_write_b16 v4, v8 offset:{lbase + 128*k}
v_and_b32 v9, 0xffff0000, v8
v_sub_f32 v9, v{val}, v9
v_cvt_pk_bf16_f32 v9, v9, v9
ds_write_b16 v4, v9 offset:{lbase + 256 + 128*k}''')

def role_A(a):
    P = a.P
    a(f'''s_and_b32 s44, s2, 7
s_lshl_b32 s44, s44, 4
s_bfe_u32 s40, s2, 0x40003
s_add_u32 s44, s44, s40
s_mul_i32 s39, s44, 205
s_lshr_b32 s39, s39, 11          ; kp = a/10
s_mul_i32 s40, s39, 10
s_sub_u32 s38, s44, s40          ; mg = a%10
s_lshr_b32 s47, s44, 2           ; head
s_and_b32 s41, s44, 3            ; quarter
v_mov_b32 v12, 0
s_mul_i32 s40, s39, 80
s_lshl_b32 s42, s3, 4
s_add_u32 s40, s40, s42
v_lshl_add_u32 v5, v3, 2, s40      ; row0
v_mul_u32_u24 v4, 7680, v5
v_lshrrev_b32 v6, 3, v2
v_mul_u32_u24 v6, 1152, v6
v_lshl_add_u32 v6, v2, 4, v6
s_lshl_b32 s42, s38, 7
v_add3_u32 v4, v4, v6, s42
v_lshlrev_b32 v5, 1, v5
s_waitcnt lgkmcnt(0)''')
    a.stamp('start')
    a.wave_is('lt', 5, 'LA_nos1')
    a('s_cmp_lt_u32 s44, 80\ns_cbranch_scc0 LA_nos1')
    a(f'global_load_dwordx2 v[32:33], v5, {CC}')
    a.load_rows(16, 4, 4, WMOD, 7680, rows=4)
    a(f'global_load_dword v15, v12, {WS} sc1')
    U1 = P['uk1']
    load_uk(a, WUK, hi=U1)
    a.stamp('x1')
    a('s_branch LA2')

def role_A2(a):
    P = a.P; U1 = P['uk1']
    a.label('LA2')
    consts(a)
    a(f'''s_waitcnt vmcnt({5+2*U1})
v_lshlrev_b32 v36, 16, v32
v_and_b32 v37, 0xffff0000, v32
v_lshlrev_b32 v38, 16, v33
v_and_b32 v39, 0xffff0000, v33''')
    a.stamp('x2')
    for i in range(4): a.silu(36 + i, 36 + i, 8)
    a.stamp('x3')
    a(f'''v_perm_b32 v34, v37, v36, {PHI}
v_perm_b32 v35, v39, v38, {PHI}
v_cmp_eq_u32 vcc, 1, v3
v_lshlrev_b32 v4, 5, v2
v_lshl_add_u32 v4, v3, 4, v4
s_lshl_b32 s40, s3, 9
v_add_u32 v4, s40, v4''')
    a(f's_waitcnt vmcnt({1+2*U1})')
    a.stamp('x4')
    for e in range(8):
        for k in range(2):
            a(f'v_perm_b32 v{40+2*e+k}, v{16+(2*k+1)*4+(e>>1)}, v{16+2*k*4+(e>>1)}, {PHI if e & 1 else PLO}')
        a(f'v_mfma_f32_16x16x16_bf16 {vr(64+4*e,4)}, v[34:35], {vr(40+2*e,2)}, 0')
    for i in range(4): a(f'v_cndmask_b32 v{8+i}, v{64+4*i}, v{64+4*(i+4)}, vcc')
    a.lanes_lt(32)
    a('ds_write_b128 v4, v[8:11]')
    a.full()
    a(f's_waitcnt vmcnt({2*U1})')
    a.get_tag()
    a('s_branch LA_b1')
    a.label('LA_nos1')
    a('s_getreg_b32 s16, hwreg(HW_REG_XCC_ID, 0, 4)' if False else 's_nop 0')
    a(f'global_load_dword v15, v12, {WS} sc1')
    a.wave_is('lt', 6, 'LA_nos1b')
    load_uk(a, WUK, hi=U1)
    a.label('LA_nos1b')
    consts(a)
    a.wave_is('eq', 7, 'LA_not7')
    neg1(a)
    a(f'''s_mul_i32 s40, s41, 12288
s_lshr_b32 s42, s47, 4
s_lshl_b32 s42, s42, 10
s_add_u32 s40, s40, s42
s_and_b32 s42, s47, 15
s_lshl_b32 s42, s42, 6
s_add_u32 s40, s40, s42
s_add_u32 s40, s40, {H2}
v_lshrrev_b32 v4, 2, v1
v_min_u32 v4, 5, v4
v_lshlrev_b32 v4, 11, v4
v_and_b32 v5, 3, v1
v_lshl_add_u32 v4, v5, 4, v4
v_add_u32 v4, s40, v4
global_store_dwordx4 v4, v[8:11], {WS} sc1''')
    a.ready_publish()
    a(f'''s_mul_i32 s40, s44, 3072
s_add_u32 s40, s40, {H4S}
v_lshl_add_u32 v4, v1, 4, s40
global_store_dwordx4 v4, v[8:11], {WS} sc1
global_store_dwordx4 v4, v[8:11], {WS} offset:1024 sc1
global_store_dwordx4 v4, v[8:11], {WS} offset:2048 sc1
s_lshl_b32 s40, s47, 13
s_lshl_b32 s42, s41, 9
s_add_u32 s40, s40, s42
s_add_u32 s40, s40, {SIDE}
v_lshrrev_b32 v4, 5, v1
v_lshlrev_b32 v4, 11, v4
v_and_b32 v5, 31, v1
v_lshl_add_u32 v4, v5, 4, v4
v_add_u32 v4, s40, v4
v_add_u32 v5, 4096, v4
global_store_dwordx4 v4, v[8:11], {WS} sc1
global_store_dwordx4 v5, v[8:11], {WS} sc1
s_mul_i32 s40, s44, 6144
s_add_u32 s40, s40, {H4G}
v_lshl_add_u32 v4, v1, 4, s40
v_add_u32 v5, 3072, v4
global_store_dwordx4 v4, v[8:11], {WS} offset:0 sc1
global_store_dwordx4 v4, v[8:11], {WS} offset:1024 sc1
global_store_dwordx4 v4, v[8:11], {WS} offset:2048 sc1
global_store_dwordx4 v5, v[8:11], {WS} offset:0 sc1
global_store_dwordx4 v5, v[8:11], {WS} offset:1024 sc1
global_store_dwordx4 v5, v[8:11], {WS} offset:2048 sc1
s_mul_i32 s40, s47, 3072
s_lshl_b32 s42, s41, 8
s_add_u32 s40, s40, s42
s_add_u32 s40, s40, {H5}
v_min_u32 v4, 2, v3
v_lshlrev_b32 v4, 10, v4
v_lshl_add_u32 v4, v2, 4, v4
v_add_u32 v4, s40, v4
global_store_dwordx4 v4, v[8:11], {WS} sc1''')
    a('s_branch LA_b1')
    a.label('LA_not7')
    a.wave_is('eq', 6, 'LA_b1')
    code_warm(a)
    if P['tlb']:
        a(f'''s_mov_b32 s50, 196608
v_mul_lo_u32 v4, v1, s50
global_load_dword v14, v4, {CKV} nt
v_lshlrev_b32 v4, 17, v1
global_load_dword v14, v4, {WS} offset:64 nt''')
    a.label('LA_b1')
    a(f'''v_lshlrev_b32 v4, 2, v1
s_lshl_b32 s40, s38, 13
s_lshl_b32 s42, s39, 7
s_add_u32 s40, s40, s42
s_add_u32 s40, s40, {H1}
v_lshrrev_b32 v5, 3, v1
v_lshlrev_b32 v5, 10, v5
v_and_b32 v6, 7, v1
v_lshl_add_u32 v5, v6, 4, v5
v_add_u32 v5, s40, v5
v_mov_b32 v9, {TAG}
v_mov_b32 v11, {TAG}''')
    a('s_cmp_lt_u32 s44, 80\ns_cbranch_scc0 LA_u80')
    a.bar()
    a.wave_is('eq', 0, 'LA_uk0')
    for w in range(5): a(f'ds_read2st64_b32 {vr(16+2*w,2)}, v4 offset0:{2*w} offset1:{2*w+1}')
    a(f'''s_waitcnt lgkmcnt(0)
v_add_f32 v16, v16, v18
v_add_f32 v17, v17, v19
v_add_f32 v20, v20, v22
v_add_f32 v21, v21, v23
v_add_f32 v16, v16, v20
v_add_f32 v17, v17, v21
v_add_f32 v8, v16, v24
v_add_f32 v10, v17, v25
global_store_dwordx4 v5, v[8:11], {WS} sc1''')
    a.stamp('h1pub')
    a.label('LA_uk0')
    a('s_barrier\ns_branch LA_uk')
    a.label('LA_u80')
    if P['sl_a80']: a(f's_sleep {P["sl_a80"]}')
    a.label('LA_uk')
    a.wave_is('lt', 6, 'LA_nouk')
    load_uk(a, WUK, lo=U1)
    a.label('LA_nouk')
    a(f'''s_mul_i32 s40, s47, 15360
s_mul_i32 s42, s3, 192
s_add_u32 s40, s40, s42
s_add_u32 s40, s40, {H1B}
v_min_u32 v5, 11, v2
v_mul_u32_u24 v4, 1536, v3
v_lshl_add_u32 v4, v5, 4, v4
v_add_u32 v4, s40, v4
v_add_u32 v7, 6144, v4
v_add_u32 v13, 12288, v4
s_mul_i32 s40, s3, 48
v_and_b32 v8, 1, v3
v_lshl_add_u32 v5, v5, 1, v8
v_lshl_add_u32 v5, v5, 1, s40      ; (24w+2dp+(g&1))*2
v_lshlrev_b32 v40, 5, v2
v_lshlrev_b32 v41, 4, v2
v_lshlrev_b32 v42, 1, v5
s_mul_i32 s40, s41, 6
s_add_u32 s40, s40, s3
s_lshl_b32 s40, s40, 11
s_lshr_b32 s42, s47, 4
s_lshl_b32 s42, s42, 10
s_add_u32 s40, s40, s42
s_and_b32 s42, s47, 15
s_lshl_b32 s42, s42, 6
s_add_u32 s40, s40, s42
s_add_u32 s40, s40, {H2}
v_lshl_add_u32 v6, v3, 4, v2
v_add_u32 v6, s40, v6
s_waitcnt vmcnt(0)''')
    a.get_tag()
    a(f'v_mov_b32 v24, 0\nv_mov_b32 v25, {TAG}\nv_mov_b32 v26, 0\nv_mov_b32 v27, {TAG}')
    a.stamp('uk')
    def U(j, k): n = j*6 + k; return 64 + 2*n if n < 32 else 176 + 2*(n - 32)
    def unp():
        a.wave_is('lt', 6, 'LA_nounp')
        for j in range(8):
            for k in range(6):
                src = 128 + 4*j + k if k < 4 else 160 + 2*j + (k - 4)
                a(f'v_lshlrev_b32 v{U(j,k)}, 16, v{src}\nv_and_b32 v{U(j,k)+1}, 0xffff0000, v{src}')
        a.label('LA_nounp')
    if P['probe_h1b']: a.probe(7, 8, off=4, sleep=P['sl_pr'], post=P['post_h1b'], tag=True, mask=0x0001000100010001)
    def ld():
        a(f'global_load_dwordx4 v[16:19], v4, {WS} sc1\nglobal_load_dwordx4 v[20:23], v7, {WS} sc1')
        a.lanes_lt(32)
        a(f'global_load_dwordx4 v[24:27], v13, {WS} sc1')
        a.full()
    a.poll(ld, lambda: a.chk_tag(range(17, 28, 2), 8), sleep=P['sl_h1b'], mid=unp)
    a.stamp('h1b')
    a('s_setprio 3')
    a(f'''v_add_f32 v16, v16, v20
v_add_f32 v18, v18, v22
v_add_f32 v16, v16, v24
v_add_f32 v18, v18, v26
v_permlane16_swap_b32 v16, v18
v_add_f32 v16, v16, v18
v_mov_b32 v18, v16
v_permlane32_swap_b32 v16, v18
v_add_f32 v16, v16, v18
v_cvt_pk_bf16_f32 v16, v16, v16
v_and_b32 v17, 0xffff0000, v16
ds_write_b32 v42, v17 offset:{LQF}
ds_write_b16 v5, v16 offset:{LQ}''')
    a.bar()
    a.wave_is('lt', 6, 'LA_nos3')
    a(f'ds_read_b128 v[44:47], v40 offset:{LQF}\nds_read_b128 v[48:51], v40 offset:{LQF+16}\nds_read_b128 v[52:55], v41 offset:{LQF+512}')
    for k in range(6):
        if k in (0, 2, 4): a(f's_waitcnt lgkmcnt({2 - k//2})')
        for j in range(8):
            if k == 0: a(f'v_pk_mul_f32 {vr(208+2*j,2)}, {vr(U(j,k),2)}, {vr(44+2*k,2)}')
            else: a(f'v_pk_fma_f32 {vr(208+2*j,2)}, {vr(U(j,k),2)}, {vr(44+2*k,2)}, {vr(208+2*j,2)}')
    for j in range(8): a(f'v_add_f32 v{24+j}, v{208+2*j}, v{209+2*j}')
    for i in range(4): a(f'v_add_f32_dpp v{32+i}, v{24+i}, v{24+i} row_ror:8 row_mask:0xf bank_mask:0x3')
    for i in range(4): a(f'v_add_f32_dpp v{32+i}, v{28+i}, v{28+i} row_ror:8 row_mask:0xf bank_mask:0xc')
    for i in range(2): a(f'v_add_f32_dpp v{36+i}, v{32+i}, v{32+i} row_shl:4 row_mask:0xf bank_mask:0x5')
    for i in range(2): a(f'v_add_f32_dpp v{36+i}, v{34+i}, v{34+i} row_shr:4 row_mask:0xf bank_mask:0xa')
    for qp in ('[2,3,0,1]', '[1,0,3,2]'):
        for i in range(2): a(f'v_add_f32_dpp v{36+i}, v{36+i}, v{36+i} quad_perm:{qp} row_mask:0xf bank_mask:0xf')
    a('v_cvt_pk_bf16_f32 v36, v36, v37')
    a.san([36])
    for i in range(1, 4): a(f'v_mov_b32_dpp v{36+i}, v36 row_shl:{4*i} row_mask:0xf bank_mask:0xf')
    a.exec_mask(0x0001000100010001)
    a(f'global_store_dwordx4 v6, v[36:39], {WS} sc1')
    a.full()
    a.stamp('h2pub')
    a('s_setprio 0')
    a('s_barrier')
    perm12(a, 64)
    if P['sl_uv']: a(f's_sleep {P["sl_uv"]}')
    load_uk(a, WUV)
    a('s_waitcnt vmcnt(0)')
    perm12(a, 176)
    a.stamp('wuv')
    a('s_branch LA_s3d')
    a.label('LA_nos3')
    a(f'v_lshlrev_b32 v4, 2, v1\nds_write_b32 v4, v12 offset:{LWP}\nv_and_b32 v4, 12, v4\nds_write_b32 v4, v12 offset:{LFL}\ns_setprio 0')
    a.bar()
    if P['pv_local'] and P['pf_pol'] < 3:
        if P['sl_pf']: a(f's_sleep {P["sl_pf"]}')
        a(f'''s_mul_i32 s40, s44, {CP}
s_and_b32 s42, s3, 1
s_mul_i32 s42, s42, {200*128}
s_add_u32 s40, s40, s42
s_add_u32 s40, s40, {H4}
v_lshl_add_u32 v4, v1, 7, s40''')
        for i in range(4):
            if i == 3: a.lanes_lt(8)
            a(f'global_load_dword v14, v4, {WS} {["nt", "", "sc1"][P["pf_pol"]]}')
            if i < 3: a('v_add_u32 v4, 8192, v4')
        a.full()
    a.label('LA_s3d')
    def fl_wait(i, lab, n=1): a.lds_wait(12, n, off=LFL + 4*i)
    def fl_set(i): a(f'v_mov_b32 v8, 1\nds_write_b32 v12, v8 offset:{LFL + 4*i}')
    def fl_add(i): a(f'v_mov_b32 v8, 1\ns_mov_b64 exec, 1\nds_add_u32 v12, v8 offset:{LFL + 4*i}\ns_mov_b64 exec, -1')
    def esel(sh, probe):
        a(f'''s_lshl_b32 s40, {sh}, 11
s_add_u32 s40, s40, {H3}
v_lshl_add_u32 v4, v1, 4, s40
s_and_b32 s42, s47, 15
s_lshl_b32 s42, s42, 7
s_add_u32 s42, s42, {DB3}
v_lshl_add_u32 v5, v1, 11, s42
s_mov_b32 s48, {f2u(-1/64):#x}
v_mov_b32 v24, {NEGINF:#x}''')
        if probe: a.probe(5, 8, off=4, sleep=P['sl_pr3'], post=P['post_h3'], tag=True, mask=0xff)
        a.poll(lambda: a(f'global_load_dwordx4 v[28:31], v4, {WS} sc1\nglobal_load_dwordx4 v[32:35], v4, {WS} offset:1024 sc1'),
               lambda: a.chk_tag(range(29, 36, 2), 8), sleep=P['sl_h3'])
        a.stamp('h3')
        a('v_max_f32 v20, v28, v32\nv_mov_b32 v16, v28\nv_mov_b32 v18, v32')
        a.wave_red('v_max_f32', 20, 21)
        a(f'''v_and_b32 v21, 0x7f800000, v20
v_fma_f32 v20, v21, s48, v20
v_cmp_ge_f32 s[50:51], v16, v20
v_cmp_ge_f32 s[52:53], v18, v20
s_bcnt1_i32_b64 s49, s[50:51]
v_mbcnt_lo_u32_b32 v22, s50, 0
v_mbcnt_hi_u32_b32 v22, s51, v22
v_mov_b32 v23, s49
v_mbcnt_lo_u32_b32 v23, s52, v23
v_mbcnt_hi_u32_b32 v23, s53, v23
v_cmp_gt_u32 vcc, 4, v22
s_and_b64 s[50:51], s[50:51], vcc
v_cmp_gt_u32 vcc, 4, v23
s_and_b64 s[52:53], s[52:53], vcc''')
    def l1w():
        a(f'''s_lshr_b32 s40, s44, 4
s_lshl_b32 s42, 0x01010101, s40
s_mov_b32 s43, s42
v_cndmask_b32 v36, 15, v22, s[50:51]
v_cndmask_b32 v38, 15, v23, s[52:53]
v_mov_b32 v37, {TAG}
v_mov_b32 v39, {TAG}
s_lshl_b32 s40, s40, 12
s_lshl_b32 s49, s46, 3
s_add_u32 s40, s40, s49
s_add_u32 s40, s40, {MB}
v_lshrrev_b32 v5, 3, v1
v_lshl_add_u32 v4, v5, 8, s40
s_mov_b64 exec, s[42:43]''')
        a.st_local('s[38:39]', f'global_store_dwordx2 v4, v[36:37], {WS}', f'global_store_dwordx2 v4, v[38:39], {WS} offset:2048')
        a(f'''s_mov_b64 exec, -1
s_andn2_b64 s[50:51], s[42:43], s[50:51]
s_andn2_b64 s[52:53], s[42:43], s[52:53]
v_cndmask_b32 v16, v24, v16, s[50:51]
v_cndmask_b32 v18, v24, v18, s[52:53]
v_max_f32 v20, v16, v18
s_and_b32 s40, s3, 1
s_mul_i32 s49, s40, 96
v_lshrrev_b32 v5, 3, v1
v_lshl_add_u32 v4, v5, 1, s49
s_lshl_b32 s49, s40, 6
v_lshl_add_u32 v5, v5, 2, s49
s_lshl_b32 s49, s40, 2
v_mov_b32 v6, s49''')
        a.wave_red('v_max_f32', 20, 21)
        a(f'''v_sub_f32 v16, v16, v20
v_sub_f32 v18, v18, v20
v_mul_f32 v16, s56, v16
v_mul_f32 v18, s56, v18
v_exp_f32 v16, v16
v_exp_f32 v18, v18
ds_write_b32 v6, v20 offset:{LFW+96}
v_cvt_pk_bf16_f32 v8, v16, v18
v_lshlrev_b32 v9, 16, v8
v_and_b32 v10, 0xffff0000, v8
v_sub_f32 v9, v16, v9
v_sub_f32 v10, v18, v10
v_cvt_pk_bf16_f32 v9, v9, v10
s_mov_b64 exec, s[42:43]
ds_write_b16 v4, v8 offset:{LWP}
ds_write_b16_d16_hi v4, v8 offset:{LWP+16}
ds_write_b16 v4, v9 offset:{LWP+128}
ds_write_b16_d16_hi v4, v9 offset:{LWP+144}
ds_write_b32 v5, v16 offset:{LWT}
ds_write_b32 v5, v18 offset:{LWT+32}
s_mov_b64 exec, -1''')
        fl_add(1)
    a(f'''s_getreg_b32 s16, hwreg(HW_REG_XCC_ID, 0, 4)
s_and_b32 s40, s2, 7
s_lshl_b32 s40, s40, 4
s_add_u32 s40, s40, {READY}
v_and_b32 v4, 31, v1
v_lshl_add_u32 v4, v4, 7, s40''')
    a.poll(lambda: a(f'global_load_dwordx2 v[8:9], v4, {WS} sc1'), lambda: a.chk_tag([8], 10), sleep=4)
    a('v_cmp_ne_u32 s[38:39], s16, v9')
    a('s_and_b32 s46, s44, 15\ns_lshl_b32 s46, s46, 1\ns_and_b32 s40, s3, 1\ns_add_u32 s46, s46, s40')
    a.wave_is('ge', 6, 'LA_n6')
    esel('s46', P['probe_h3'])
    l1w()
    a.label('LA_n6')
    a.wave_is('eq', 5, 'LA_noh3')
    esel('s47', P['probe_h3'])
    a(f'''v_and_b32 v17, 63, v30
v_and_b32 v19, 63, v34
v_lshl_add_u32 v17, v1, 6, v17
v_lshl_add_u32 v19, v1, 6, v19
v_add_u32 v19, 4096, v19
v_lshlrev_b32 v4, 2, v1
v_mov_b32 v25, 999
v_add_u32 v26, 64, v1
v_lshlrev_b32 v22, 2, v22
v_lshlrev_b32 v23, 2, v23
s_mov_b64 exec, 15
ds_write_b32 v4, v17 offset:{LEK}
ds_write_b32 v4, v25 offset:{LEK+16}
s_mov_b64 exec, s[50:51]
ds_write_b32 v22, v17 offset:{LEK}
ds_write_b32 v22, v1 offset:{LEK+16}
s_mov_b64 exec, s[52:53]
ds_write_b32 v23, v19 offset:{LEK}
ds_write_b32 v23, v26 offset:{LEK+16}
s_mov_b64 exec, -1''')
    a.label('LA_noh3')
    a(f'''v_and_b32 v4, 3, v2
v_lshlrev_b32 v4, 2, v4
s_mul_i32 s40, s41, 384
s_lshl_b32 s42, s3, 6
s_add_u32 s42, s40, s42
v_lshl_add_u32 v6, v3, 4, s42
v_and_b32 v7, 31, v1
v_lshl_add_u32 v7, v7, 1, s42
s_movk_i32 s55, 1536''')
    a.bar()
    a.stamp('b3')
    a('s_setprio 3')
    a.wave_is('lt', 6, 'LA_noe')
    a(f'''ds_read_b32 v5, v4 offset:{LEK}
ds_read_b128 v[8:11], v12 offset:{LEK}
s_waitcnt lgkmcnt(1)
v_mad_u32_u24 v5, v5, s55, v6
global_load_dwordx4 v[224:227], v5, {CKV} {'nt' if P['e_nt'] else ''}
s_waitcnt lgkmcnt(0)''')
    for j in range(4): a(f'v_mad_u32_u24 v{8+j}, v{8+j}, s55, v7\nglobal_load_ushort v{232+j}, v{8+j}, {CKV} {"nt" if P["e_nt"] else ""}')
    a(f's_mul_i32 s40, s3, 3072\ns_add_u32 s40, s40, {LKP}\nv_lshl_add_u32 v4, v2, 4, s40\ns_waitcnt vmcnt(4)')
    a.stamp('erow')
    mfma12(a, 16, 224, 64)
    a.lanes_lt(16)
    for e in range(12): a(f'ds_write_b128 v4, {vr(16+4*e,4)} offset:{256*e}')
    a.full()
    a('s_branch LA_b4')
    a.label('LA_noe')
    a.label('LA_g')
    a(f'''s_lshl_b32 s40, s44, 10
s_add_u32 s40, s40, {AUX}
v_lshl_add_u32 v10, v1, 4, s40
s_and_b32 s42, s3, 1
s_mul_i32 s40, s44, {CP}
s_mul_i32 s43, s42, 768
s_add_u32 s40, s40, s43
s_add_u32 s40, s40, {H4}
v_and_b32 v9, 1, v3
v_mul_u32_u24 v4, {8*JP}, v9
v_lshrrev_b32 v11, 1, v3
v_mul_u32_u24 v5, 1536, v11
v_add3_u32 v4, v4, v5, s40
v_lshl_add_u32 v4, v2, 4, v4
v_add_u32 v5, {2*JP}, v4
v_add_u32 v6, {4*JP}, v4
v_add_u32 v7, {6*JP}, v4
v_cmp_eq_u32 s[54:55], 1, v9
s_and_b32 s40, s44, 15
s_mul_i32 s40, s40, 49152
s_lshr_b32 s43, s44, 4
s_mul_i32 s49, s43, 768
s_add_u32 s40, s40, s49
s_add_u32 s40, s40, {H4G}
v_mul_u32_u24 v55, 24576, v11
v_add_u32 v55, s40, v55
s_mul_i32 s40, s42, 384
v_lshl_add_u32 v56, v2, 3, s40
v_lshl_add_u32 v56, v9, 2, v56
s_movk_i32 s49, 683
s_movk_i32 s48, 5376''')
    for k in range(3):
        a(f'''v_add_u32 v57, {128*k}, v56
v_mul_u32_u24 v58, s49, v57
v_lshrrev_b32 v58, 17, v58
v_lshl_add_u32 v57, v57, 2, v55
v_mad_u32_u24 v{52+k}, v58, s48, v57''')
    a(f'''v_lshrrev_b32 v57, 3, v2
v_and_b32 v58, 1, v2
v_lshl_add_u32 v57, v58, 1, v57
v_lshlrev_b32 v57, 6, v57
v_lshl_add_u32 v57, v3, 4, v57
v_lshrrev_b32 v58, 2, v1
v_lshlrev_b32 v58, 2, v58          ; j*4
s_and_b32 s40, s44, 15
s_lshl_b32 s40, s40, 8
s_lshl_b32 s43, s43, 4
s_add_u32 s40, s40, s43
s_add_u32 s40, s40, {HDR}
v_lshl_add_u32 v59, v9, 7, s40
v_lshlrev_b32 v9, 2, v9''')
    a.poll(lambda: a(f'global_load_dwordx4 v[28:31], v10, {WS} sc1'), lambda: a.chk_tag([29, 31], 8), sleep=P['sl_aux'])
    a.stamp('aux')
    for k in range(3):
        for jj in range(8):
            a(f'global_load_dwordx4 {vr(64+32*k+4*jj,4)}, v{4 + (jj >> 1)}, {WS} offset:{(jj & 1)*JP + 256*k} {["sc1", "", "sc0", "nt"][P["g_pol"]]}')
    fl_wait(1, 'x', 2)
    a(f'''ds_read_b128 v[48:51], v57 offset:{LWP}
ds_read2_b32 v[32:33], v58 offset0:{LWT//4 - 1024} offset1:{LWT//4 - 1024 + 16}
ds_read_b32 v60, v9 offset:{LFW+96}
s_waitcnt lgkmcnt(0)
v_mul_f32 v32, v32, v28
v_mul_f32 v33, v33, v30
v_mov_b32 v61, {TAG}
v_mov_b32 v63, {TAG}'''.replace('v58 offset0', 'v62 offset0').replace('ds_read_b128 v[48:51]', 'v_add_u32 v62, 4096, v58\nds_read_b128 v[48:51]'))
    a.row_red('v_add_f32', [32, 33])
    a(f'''v_permlane16_swap_b32 v32, v33
v_add_f32 v32, v32, v33
v_mov_b32 v33, v32
v_permlane32_swap_b32 v32, v33
v_add_f32 v32, v32, v33
v_mul_f32 v62, 0x3e800000, v32
s_waitcnt vmcnt(16)''')
    def fin(k):
        d = 160 + 32*k; o = 28 + 4*k
        for e in range(8): a(f'v_add_f32 v{d+4*e}, v{d+4*e}, v{d+4*e+1}')
        for t in range(4): a(f'v_cndmask_b32 v{o+t}, v{d+4*t}, v{d+4*(t+4)}, s[54:55]')
        a(f'global_store_dwordx4 v{52+k}, {vr(o,4)}, {WS} sc1')
    for k in range(3):
        if k == 1: a('s_waitcnt vmcnt(8)')
        if k == 2:
            a('s_waitcnt vmcnt(0)'); a.stamp('gath'); fl_add(1)
            a(f's_cmp_eq_u32 s3, 6\ns_cbranch_scc0 LA_nh\ns_mov_b64 exec, 0x10001\nglobal_store_dwordx4 v59, v[60:63], {WS} sc1\ns_mov_b64 exec, -1\nLA_nh:')
        for e in range(8):
            f = 16 + 4*(e % 3)
            src = 64 + 32*k
            for kk in range(4):
                a(f'v_perm_b32 v{f+kk}, v{src+(2*kk+1)*4+(e>>1)}, v{src+2*kk*4+(e>>1)}, {PHI if e & 1 else PLO}')
            a(f'v_mfma_f32_16x16x32_bf16 {vr(160+32*k+4*e,4)}, v[48:51], {vr(f,4)}, 0')
    for k in range(3): fin(k)
    a.stamp('gpub')
    a.wave_is('eq', 6, 'LA_w7')
    a('s_branch LA_w6')
    a.label('LA_b4')
    a(f'v_mov_b32 v8, 1\ns_mov_b64 exec, 1\nds_add_u32 v12, v8 offset:{LFL}\ns_mov_b64 exec, -1')
    a.wave_is('lt', 3, 'LA_nopub')
    a(f'v_lshlrev_b32 v6, 4, v0\nv_add_u32 v7, {LKP}, v6\ns_mul_i32 s40, s44, 3072\ns_add_u32 s40, s40, {H4S}\nv_add_u32 v6, s40, v6')
    fl_wait(0, 'LA_f0', 6)
    a.stamp('b4')
    for w in range(6): a(f'ds_read_b128 {vr(16+4*w,4)}, v7 offset:{3072*w}')
    a('s_waitcnt lgkmcnt(0)')
    tree(a, range(16, 40, 4), n=4)
    a.st_local('s[38:39]', f'global_store_dwordx4 v6, v[16:19], {WS}')
    a.stamp('kpub')
    a('s_branch LA_l2')
    a.label('LA_nopub')
    a.wave_is('eq', 5, 'LA_l2')
    a(f'''s_mul_i32 s40, s47, 12288
s_add_u32 s40, s40, {H4S}
v_lshl_add_u32 v4, v1, 4, s40
v_add_u32 v5, 3072, v4
v_add_u32 v6, 6144, v4
v_add_u32 v7, 9216, v4
v_lshl_add_u32 v8, v2, 3, v3
v_lshlrev_b32 v8, 1, v8
v_lshl_add_u32 v9, v2, 2, v3
v_lshlrev_b32 v9, 1, v9
v_lshlrev_b32 v10, 2, v3
ds_read_u16 v64, v8 offset:{LQ}
ds_read_u16 v65, v8 offset:{LQ+8}
ds_read_u16 v66, v9 offset:{LQ+256}
ds_read_b32 v67, v10 offset:{LEK+16}
s_sleep {P['pre_h4s']}''')
    def ld():
        for qq in range(4):
            for k in range(3): a(f'global_load_dwordx4 {vr(16+(qq*3+k)*4,4)}, v{4+qq}, {WS} offset:{1024*k} sc1')
    a.poll(ld, lambda: a.chk_sent(range(16, 64), 9), sleep=P['sl_h4s'])
    a.stamp('h4s')
    a('s_waitcnt lgkmcnt(0)\nv_cmp_gt_u32 s[52:53], 0x80, v67' if False else 's_waitcnt lgkmcnt(0)\ns_movk_i32 s40, 128\nv_cmp_gt_u32 s[52:53], s40, v67')
    for k in range(3): a(f'v_lshlrev_b32 v{64+k}, 16, v{64+k}')
    tree(a, (16, 28, 40, 52), n=12)
    for i in range(12): a.rnd(16 + i, 16 + i)
    for j in range(4):
        a(f'v_mul_f32 v{68+j}, v{16+j}, v64\nv_fmac_f32 v{68+j}, v{20+j}, v65\nv_fmac_f32 v{68+j}, v{24+j}, v66')
    a.row_red('v_add_f32', [68, 69, 70, 71])
    a.xrow_tr4(68)
    a.rnd(68, 68)
    a('v_mul_f32 v68, s59, v68')
    a.rnd(68, 68)
    a(f'v_mov_b32 v21, {NEGINF:#x}\nv_cndmask_b32 v68, v21, v68, s[52:53]\nds_write_b32 v10, v68 offset:{LFW+112}')
    fl_add(2)
    a('s_branch LA_l2')
    a.label('LA_w7')
    a('v_lshlrev_b32 v10, 2, v3\nv_lshlrev_b32 v11, 3, v3')
    a(f'''s_lshl_b32 s40, s47, 7
s_add_u32 s40, s40, {HDR}
v_and_b32 v5, 7, v1
v_lshl_add_u32 v4, v5, 4, s40
v_lshlrev_b32 v5, 2, v5''')
    if P['pre_hdr']: a(f's_sleep {P["pre_hdr"]}')
    a.poll(lambda: a(f'global_load_dwordx4 v[236:239], v4, {WS} sc1'), lambda: a.chk_tag([237, 239], 8), sleep=P['sl_hdr'])
    a.stamp('hdr')
    fl_wait(2, 'LA_f2', 2)
    a(f'''ds_read_b64 v[228:229], v11 offset:{LFW+64}
ds_read_b32 v68, v10 offset:{LFW+112}
s_waitcnt lgkmcnt(0)
v_max3_f32 v69, v68, v228, v236''')
    a.wave_red('v_max_f32', 69, 70)
    a(f'''v_sub_f32 v68, v68, v69
v_sub_f32 v228, v228, v69
v_sub_f32 v236, v236, v69
v_mul_f32 v68, s56, v68
v_mul_f32 v228, s56, v228
v_mul_f32 v236, s56, v236
v_exp_f32 v68, v68
v_exp_f32 v228, v228
v_exp_f32 v236, v236
v_fma_f32 v70, v228, v229, v68
v_mul_f32 v71, v236, v238
v_fmac_f32 v71, 0.5, v70''')
    a.wave_red('v_add_f32', 71, 70)
    a(f'v_mul_f32 v70, {f2u(0.125):#x}, v71')
    a.recip(71, 70, 72)
    a.div(73, 68, 70, 71, 72)
    a.rnd(73, 73)
    a(f'''v_mul_f32 v74, v236, v71
v_mul_f32 v75, v228, v71
ds_write_b32 v10, v73 offset:{LFW}
ds_write_b32 v10, v75 offset:{LFW+16}
ds_write_b32 v5, v74 offset:{LFW+32}''')
    fl_set(3)
    a('s_branch LA_nov')
    a.label('LA_w6')
    a(f'''v_lshlrev_b32 v10, 2, v3
ds_read_b32 v11, v10 offset:{LEK+16}
s_lshl_b32 s40, s47, 13
s_lshl_b32 s42, s41, 9
s_add_u32 s40, s40, s42
s_add_u32 s40, s40, {SIDE}
v_lshl_add_u32 v6, v3, 11, s40
v_lshl_add_u32 v4, v2, 4, v6
v_lshl_add_u32 v5, v2, 3, v6
v_mul_u32_u24 v9, 384, v3
v_lshl_add_u32 v7, v2, 4, v9
v_lshl_add_u32 v9, v2, 3, v9
v_lshlrev_b32 v10, 3, v3
v_mov_b32 v24, {NEGINF:#x}
v_mov_b32 v26, 0
s_movk_i32 s40, 128
s_waitcnt lgkmcnt(0)
v_cmp_gt_u32 s[52:53], s40, v11''')
    for i in range(6): a(f'v_mov_b32 v{16+i}, 0')
    a('s_mov_b64 exec, s[52:53]')
    def ck():
        a.chk_sent(range(16, 22), 8)
        a(f'v_cmp_ne_u32 s[50:51], {TAG}, v25\ns_or_b64 vcc, vcc, s[50:51]\nv_cmp_ne_u32 s[50:51], {TAG}, v27\ns_or_b64 vcc, vcc, s[50:51]')
    a.poll(lambda: a(f'global_load_dwordx4 v[16:19], v4, {WS} sc1\nglobal_load_dwordx2 v[20:21], v5, {WS} offset:256 sc1\nglobal_load_dwordx4 v[24:27], v6, {WS} offset:384 sc1'),
           ck, sleep=P['sl_side'])
    a.full()
    a.stamp('side')
    a(f'v_mov_b32 v25, v26\nds_write_b128 v7, v[16:19] offset:{LSR}\nds_write_b64 v9, v[20:21] offset:{LSR+256}\nds_write_b64 v10, v[24:25] offset:{LFW+64}')
    fl_add(2)
    a('s_branch LA_nov')
    a.label('LA_l2')
    a(f'''s_lshl_b32 s40, s3, 7
v_and_b32 v4, 31, v1
v_lshl_add_u32 v5, v4, 1, s40
s_lshl_b32 s42, s3, 6
v_lshl_add_u32 v7, v4, 1, s42
v_lshl_add_u32 v4, v4, 2, s40
v_lshrrev_b32 v9, 5, v1
v_mul_u32_u24 v10, 3072, v9
v_lshlrev_b32 v9, 4, v9
s_mul_i32 s42, s44, 6144
s_add_u32 s42, s42, {H4G}
v_add3_u32 v4, v4, v10, s42
v_mov_b32 v20, 0
v_mov_b32 v21, 0
v_mov_b32 v22, 0
v_mov_b32 v23, 0''')
    frag2_addr(a, 6, 's40')
    out12_prep(a, 248, LVP)
    fl_wait(1, 'x', 4)
    if P['pre_l2']: a(f's_sleep {P["pre_l2"]}')
    def ld():
        for t in range(4): a(f'global_load_dword v{16+t}, v4, {WS} offset:{768*t} sc1')
    a.poll(ld, lambda: a.chk_sent(range(16, 20), 8), sleep=P['sl_l2'])
    a.stamp('l2')
    for j in range(4): a(f'v_lshlrev_b32 v{232+j}, 16, v{232+j}')
    fl_wait(3, 'x')
    a.stamp('b6')
    for j in range(4): a(f'ds_read_u16_d16_hi v{20+j}, v7 offset:{LSR + 384*j}')
    a(f'ds_read_b128 v[24:27], v12 offset:{LFW}\nds_read_b128 v[28:31], v12 offset:{LFW+16}\nds_read_b128 v[32:35], v9 offset:{LFW+32}')
    a(f'''s_waitcnt lgkmcnt(0)
v_mul_f32 v16, v16, v32
v_mul_f32 v24, v24, v232
v_mul_f32 v28, v28, v20
v_fmac_f32 v16, v17, v33
v_fmac_f32 v24, v25, v233
v_fmac_f32 v28, v29, v21
v_fmac_f32 v16, v18, v34
v_fmac_f32 v24, v26, v234
v_fmac_f32 v28, v30, v22
v_fmac_f32 v16, v19, v35
v_fmac_f32 v24, v27, v235
v_fmac_f32 v28, v31, v23
v_mov_b32 v17, v16
v_add_f32 v24, v24, v28
v_permlane32_swap_b32 v16, v17
v_add3_f32 v16, v16, v17, v24
v_cvt_pk_bf16_f32 v17, v16, v16
ds_write_b16 v5, v17 offset:{LCC}
v_and_b32 v18, 0xffff0000, v17
v_sub_f32 v18, v16, v18
v_cvt_pk_bf16_f32 v18, v18, v18
ds_write_b16 v5, v18 offset:{LCC+64}
s_waitcnt lgkmcnt(0)
ds_read_b128 v[224:227], v6 offset:{LCC}
s_waitcnt lgkmcnt(0)'''.replace('v_add3_f32 v16, v16, v17, v24', 'v_add_f32 v16, v16, v17\nv_add_f32 v16, v16, v24'))
    mfma12(a, 128, 224, 176)
    out12(a, 128, 16, 248)
    a.label('LA_nov')
    a(f'''v_lshlrev_b32 v4, 4, v1
s_mul_i32 s40, s47, 3072
s_lshl_b32 s42, s41, 8
s_add_u32 s40, s40, s42
s_add_u32 s40, s40, {H5}
v_lshlrev_b32 v5, 10, v3
v_lshl_add_u32 v5, v2, 4, v5
v_add_u32 v5, s40, v5''')
    a.bar()
    a.wave_is('eq', 0, 'Lfin')
    for w in range(6): a(f'ds_read_b128 {vr(16+4*w,4)}, v4 offset:{LVP + 768*w}')
    a('s_waitcnt lgkmcnt(0)')
    tree(a, range(16, 40, 4), n=4)
    a.lanes_lt(48)
    a.st_local('s[38:39]', f'global_store_dwordx4 v5, v[16:19], {WS}')
    a.full()
    a.stamp('h5pub')
    a(f'''s_add_u32 s40, s44, s3
s_cmp_eq_u32 s40, 0
s_cbranch_scc0 Lfin
v_mov_b32 v5, {TAG}
global_store_dword v12, v5, {WS} sc1''')

DEFAULTS = dict(code_last=0x1000, stamps=False, warm_loads=2, sl_pr=1, sl_pr3=4, sl_h1=3, sl_h1b=1, sl_h2=4, sl_h3=2, sl_aux=1, sl_h4s=1, sl_h5=1, sl_h6=3, sl_h7=2, sl_x2=4, sl_lw=1, lw_cnt=4, dma1=5, sl_top2=4, pre_h7=12, bpf=0, pf_pol=2, sl_pf=20, pre_hdr=8, pv_local=1, g_pol=0, pre_l2=12, sl_hdr=2, sl_l2=2, local=1, early_late=1, sl_pr2=1, sl_dma2=0, m_h2=0, m_h6=0, k_h2=255, pre_aux=8, swap=0, sl_a80=30, pre_h1=0, tlb=0, e_nt=0, pv_nt=0, uk1=0, ew_cnt=4, sl_el=1, pre_side=12, sl_side=2, sl_uv=40, pre_h4s=4, sl_top=6,
    probe_h1b=0, post_h1b=1, probe_h2=1, post_h2=0, probe_h3=1, post_h3=0, probe_aux=0, post_aux=2, probe_h5=0, post_h5=1, probe_h6=0, post_h6=1, probe_h7=1, post_h7=0)

def generate(**kw):
    P = dict(DEFAULTS); P.update(kw)
    a = G(P)
    a(f'''s_cmp_ge_u32 s2, 256
s_cbranch_scc1 Lend
s_load_dwordx16 s[4:19], s[0:1], 0
{'s_xor_b32 s2, s2, 128' if P['swap'] else 's_nop 0'}
s_load_dwordx8 s[20:27], s[0:1], 64
s_load_dwordx4 s[28:31], s[0:1], 96
s_getpc_b64 s[36:37]
Lpc:
v_lshrrev_b32 v4, 6, v0
v_and_b32 v1, 63, v0
v_readfirstlane_b32 s3, v4
v_and_b32 v2, 15, v0
v_lshrrev_b32 v3, 4, v1''')
    if P['stamps']:
        for i in range(21): a(f's_mov_b64 s[{60+2*i}:{61+2*i}], 0')
    if P.get('dbgtime') or P.get('padto'): a('s_memrealtime s[60:61]')
    a('s_cmp_lt_u32 s2, 128\ns_cbranch_scc1 LB')
    role_A(a)
    namesA = a.stnames; a.stnames = []
    a.label('LB')
    role_B(a)
    namesB = a.stnames; a.stnames = namesA
    role_A2(a)
    a('s_branch Lfin')
    namesA = a.stnames; a.stnames = namesB
    role_B2(a)
    namesB = a.stnames
    a.label('Lfin')
    if P['stamps']:
        a(f'''s_waitcnt lgkmcnt(0)
s_lshl_b32 s40, s2, 3
s_add_u32 s40, s40, s3
s_lshl_b32 s40, s40, 7
s_add_u32 s40, s40, {STAMP}
v_mov_b32 v4, s40''')
        for i in range(21): a(f'v_mov_b32 v5, s{60+2*i}\nglobal_store_dword v4, v5, {WS} offset:{4*i}')
    if P.get('dbgtime'):
        a(f'''s_memrealtime s[62:63]
s_cmp_eq_u32 s3, 7
s_cbranch_scc0 Lend
s_and_b32 s40, s2, 31
s_cmp_eq_u32 s40, 31
s_cbranch_scc0 Lend
s_waitcnt lgkmcnt(0)
s_lshr_b32 s40, s2, 5
s_lshl_b32 s40, s40, 3
v_mov_b32 v4, s40
v_mov_b32 v6, s60
v_mov_b32 v7, s62
s_mov_b64 exec, 1
global_store_dwordx2 v4, v[6:7], s[28:29]''')
    if P.get('padto'):
        a(f'''s_add_u32 s40, s2, s3
s_cmp_eq_u32 s40, 0
s_cbranch_scc0 Lend
Lpad:
s_memrealtime s[62:63]
s_waitcnt lgkmcnt(0)
s_sub_u32 s40, s62, s60
s_cmp_lt_u32 s40, {P['padto']}
s_cbranch_scc1 Lpad''')
    a.label('Lend')
    a('s_endpgm')
    a.raw('Lcode_end:')
    hdr = open(f'cdna_kernels/{NAME}.s.ref').read().split('; Override launch')[0]
    lds = MISC + 8192 + 256
    txt = hdr + f'''; @launch grid=(256,1,1) block=(512,1,1) lds={lds}
.amdgcn_target "amdgcn-amd-amdhsa--gfx950"
.text
.globl {NAME}_kernel
.p2align 8
.type {NAME}_kernel,@function
.set CODE_LAST, {P['code_last']:#x}
{NAME}_kernel:
''' + a.text() + f'''.section .rodata,"a"
.p2align 6
.amdhsa_kernel {NAME}_kernel
  .amdhsa_next_free_vgpr 256
  .amdhsa_next_free_sgpr 102
  .amdhsa_accum_offset 256
  .amdhsa_group_segment_fixed_size 0
  .amdhsa_kernarg_size 112
  .amdhsa_user_sgpr_count 2
  .amdhsa_user_sgpr_kernarg_segment_ptr 1
  .amdhsa_system_sgpr_workgroup_id_x 1
  .amdhsa_float_denorm_mode_32 3
.end_amdhsa_kernel
'''
    return txt, namesB, namesA

if __name__ == '__main__':
    import json
    out = sys.argv[1]
    kw = {}
    for x in sys.argv[2:]:
        k, v = x.split('='); kw[k] = int(v)
    import subprocess, re
    txt, nb, na = generate(**kw)
    open('_g.s', 'w').write(txt)
    subprocess.check_call(['clang', '-x', 'assembler', '-target', 'amdgcn-amd-amdhsa', '-mcpu=gfx950', '-c', '_g.s', '-o', '_g.o'])
    h = subprocess.check_output(['llvm-objdump', '-h', '_g.o'], text=True)
    size = int(re.search(r'\.text\s+([0-9a-f]+)', h).group(1), 16)
    kw['code_last'] = size - 0x30 - 4
    assert size <= 32768 * kw.get('warm_loads', DEFAULTS['warm_loads'])
    txt, nb, na = generate(**kw)
    print('code bytes', size)
    open(out, 'w').write(txt)
    json.dump({'B': nb, 'A': na}, open(out + '.names.json', 'w'))
```

```python
import sys, struct
sys.path.insert(0, 'gen')
from asmlib import *
NAME = 'adaLN_cond__compressed_kv_cla__dense_activation_relu__decode'

EPOCH, READY, H1, H1B, H2, H3, AUX, H4S, H5 = 0x0, 0x1000, 0x2000, 0x120000, 0x58000, 0x68000, 0x1A0000, 0x88000, 0xE8000
H6, MODR, H7F, H7X, H4, STAMP = 0x100000, 0x108000, 0x110000, 0x111000, 0x200000, 0x4000000
H7Y = 0x110000
H4G, HDR, MB = 0x880000, 0x1FA000, 0x78000
DB3, DB4, ELIST, SIDE = 0x1E0000, 0x1E4000, 0x1F8000, 0x18000
X, CKV, WQ, WUK, WUV, WO, W1, W2, CC, WMOD, OUT, WS = [f's[{i}:{i+1}]' for i in (4, 6, 8, 10, 12, 14, 18, 20, 22, 24, 26, 30)]
TAG, SPIN, PLO, PHI = 's32', 's33', 's34', 's35'
SPINMAX = 200000
def f2u(x): return struct.unpack('<I', struct.pack('<f', x))[0]
L2E = f2u(1.4426950408889634)
L2E_LO = f2u(1.4426950408889634 - struct.unpack('<f', struct.pack('<f', 1.4426950408889634))[0])
LN2 = f2u(0.6931471805599453)
SCALE = f2u(192 ** -0.5)
NEGINF = 0xff800000

class G(Asm):
    def __init__(self, P):
        super().__init__(); self.P = P; self.nst = 0; self.stnames = []
    def stamp(self, name):
        if not self.P.get('stamps'): return
        if name in ('wq', 'b4', 'hdr', 'erow'): return
        if name.startswith('x') != (self.P['stamps'] == 2) and name not in ('start', 'h1pub', 'out', 'wq', 'h1', 'qpub', 'h1b', 'h2pub', 'h5', 'h6pub', 'h6', 'h7pub', 'gath', 'b6', 'h5pub', 'h2', 'qk', 'h3pub', 'pvst', 'auxpub'): return
        i = self.stnames.index(name) if name in self.stnames else None
        if i is None:
            self.stnames.append(name); i = len(self.stnames) - 1
        assert i < 21
        self(f's_memrealtime s[{60+2*i}:{61+2*i}]')
    def rnd(self, d, s):
        self(f'v_cvt_pk_bf16_f32 v{d}, v{s}, v{s}\nv_and_b32 v{d}, 0xffff0000, v{d}')
    def wave_is(self, cond, n, lab):
        self(f's_cmp_{cond}_u32 s3, {n}\ns_cbranch_scc0 {lab}')
    def row_red(self, op, regs):
        for k in (8, 4, 2, 1):
            for r in regs: self(f'{op}_dpp v{r}, v{r}, v{r} row_ror:{k} row_mask:0xf bank_mask:0xf')
    def xrow_red(self, op, r, t):
        self(f'v_mov_b32 v{t}, v{r}\nv_permlane16_swap_b32 v{r}, v{t}\n{op} v{r}, v{r}, v{t}')
        self(f'v_mov_b32 v{t}, v{r}\nv_permlane32_swap_b32 v{r}, v{t}\n{op} v{r}, v{r}, v{t}')
    def wave_red(self, op, r, t):
        self.row_red(op, [r]); self.xrow_red(op, r, t)
    def xrow_tr4(self, r):
        self(f'''v_permlane16_swap_b32 v{r}, v{r+1}
v_permlane16_swap_b32 v{r+2}, v{r+3}
v_add_f32 v{r}, v{r}, v{r+1}
v_add_f32 v{r+2}, v{r+2}, v{r+3}
v_permlane32_swap_b32 v{r}, v{r+2}
v_add_f32 v{r}, v{r}, v{r+2}''')
    def recip(self, d, y, t):
        self(f'v_rcp_f32 v{d}, v{y}\nv_fma_f32 v{t}, -v{y}, v{d}, 1.0\nv_fma_f32 v{d}, v{t}, v{d}, v{d}')
    def div(self, d, x, y, rinv, t):
        self(f'v_mul_f32 v{d}, v{x}, v{rinv}\nv_fma_f32 v{t}, -v{y}, v{d}, v{x}\nv_fma_f32 v{d}, v{t}, v{rinv}, v{d}')
    def silu(self, d, x, t):
        self(f'''v_mul_f32 v{t}, s56, v{x}
v_fma_f32 v{t+1}, v{x}, s56, -v{t}
v_fma_f32 v{t+1}, v{x}, s57, v{t+1}
v_exp_f32 v{t}, -v{t}
v_mul_f32 v{t+1}, s58, v{t+1}
v_fma_f32 v{t}, -v{t}, v{t+1}, v{t}
v_min_f32 v{t}, 0x7f000000, v{t}
v_add_f32 v{t}, 1.0, v{t}''')
        self.recip(t + 1, t, t + 2)
        self.div(t + 3, x, t, t + 1, t + 2)
        self.rnd(d, t + 3)
    def perm_block(self, dst, src, nreg=4, rows=8):
        for e in range(2 * nreg):
            for k in range(rows // 2):
                self(f'v_perm_b32 v{dst + e * (rows // 2) + k}, v{src + (2*k+1) * nreg + (e >> 1)}, v{src + 2*k*nreg + (e >> 1)}, {PHI if e & 1 else PLO}')
    def poll(self, loads, check, sleep=2, pre=None, mid=None):
        top = self.newlabel('Lp'); done = self.newlabel('Ld'); chk = self.newlabel('Lc')
        if pre: self(f's_sleep {pre}')
        if mid:
            loads(); mid(); self(f's_branch {chk}')
        self.label(top)
        loads()
        self.label(chk)
        self('s_waitcnt vmcnt(0)')
        check()
        self(f'''s_cbranch_vccz {done}
s_add_u32 {SPIN}, {SPIN}, 1
s_cmp_gt_u32 {SPIN}, {SPINMAX}
s_cbranch_scc1 {done}
s_sleep {sleep}
s_branch {top}''')
        self.label(done)
    def poll_masked(self, items, t, sleep=2, tag=False):
        top = self.newlabel('Lm'); done = self.newlabel('Lmd')
        for ld, regs in items: self(ld)
        self.label(top)
        self('s_waitcnt vmcnt(0)\ns_mov_b32 s49, 0')
        for ld, regs in items:
            skip = self.newlabel('Lms')
            if tag: self.chk_tag(regs, t)
            else: self.chk_sent(regs, t)
            self(f's_cbranch_vccz {skip}\ns_mov_b64 exec, vcc\n{ld}\ns_mov_b64 exec, -1\ns_mov_b32 s49, 1')
            self.label(skip)
        self(f'''s_cmp_eq_u32 s49, 0
s_cbranch_scc1 {done}
s_add_u32 {SPIN}, {SPIN}, 1
s_cmp_gt_u32 {SPIN}, {SPINMAX}
s_cbranch_scc1 {done}
s_sleep {sleep}
s_branch {top}''')
        self.label(done)
        self('s_waitcnt vmcnt(0)')
    def lds_wait(self, addr, n, off=0, sleep=1, extra=None, t=8):
        top = self.newlabel('Lw'); done = self.newlabel('Lwd')
        self.label(top)
        self(f'ds_read_b32 v{t}, v{addr} offset:{off}')
        if extra: self(extra)
        self(f'''s_waitcnt lgkmcnt(0)
v_cmp_gt_u32 vcc, {n}, v{t}
s_cbranch_vccz {done}
s_add_u32 {SPIN}, {SPIN}, 1
s_cmp_gt_u32 {SPIN}, {SPINMAX}
s_cbranch_scc1 {done}
s_sleep {sleep}
s_branch {top}''')
        self.label(done)
    def probe(self, va, t, off=0, sleep=1, post=None, tag=False, mask=1):
        self.exec_mask(mask)
        def ck():
            if tag: self(f'v_cmp_ne_u32 vcc, {TAG}, v{t}')
            else: self(f'v_cmp_eq_u32 vcc, -1, v{t}')
        self.poll(lambda: self(f'global_load_dword v{t}, v{va}, {WS} offset:{off} sc1'), ck, sleep=sleep)
        self.full()
        if post: self(f's_sleep {post}')
    def chk_sent(self, regs, t):
        regs = list(regs)
        if len(regs) == 1:
            self(f'v_cmp_eq_u32 vcc, -1, v{regs[0]}'); return
        if len(regs) == 2: self(f'v_max_u32 v{t}, v{regs[0]}, v{regs[1]}'); rest = []
        else: self(f'v_max3_u32 v{t}, v{regs[0]}, v{regs[1]}, v{regs[2]}'); rest = regs[3:]
        while rest:
            if len(rest) >= 2: self(f'v_max3_u32 v{t}, v{t}, v{rest[0]}, v{rest[1]}'); rest = rest[2:]
            else: self(f'v_max_u32 v{t}, v{t}, v{rest[0]}'); rest = []
        self(f'v_cmp_eq_u32 vcc, -1, v{t}')
    def chk_tag(self, regs, t):
        regs = list(regs)
        self(f'v_cmp_ne_u32 vcc, {TAG}, v{regs[0]}')
        for r in regs[1:]:
            self(f'v_cmp_ne_u32 s[50:51], {TAG}, v{r}\ns_or_b64 vcc, vcc, s[50:51]')
    def san(self, regs):
        for r in regs: self(f'v_min_u32 v{r}, -2, v{r}')
    def lanes_lt(self, n):
        assert n <= 64
        lo = (1 << min(n, 32)) - 1; hi = (1 << max(n - 32, 0)) - 1
        self(f's_mov_b32 exec_lo, {lo:#x}\ns_mov_b32 exec_hi, {hi:#x}')
    def exec_mask(self, m):
        self(f's_mov_b32 exec_lo, {m & 0xffffffff:#x}\ns_mov_b32 exec_hi, {m >> 32:#x}')
    def full(self): self('s_mov_b64 exec, -1')
    def bar(self): self('s_waitcnt lgkmcnt(0)\ns_barrier')
    def get_tag(self):
        self(f'''v_readfirstlane_b32 {TAG}, v15
s_mul_i32 {TAG}, {TAG}, 0x9E3779B1
s_add_u32 {TAG}, {TAG}, 0x7F4A7C15''')
    def ready_publish(self):
        self('s_getreg_b32 s41x, hwreg(HW_REG_XCC_ID, 0, 4)\ns_waitcnt vmcnt(0)'.replace('s41x', 's51'))
        self.get_tag()
        self(f'''s_lshl_b32 s40, s2, 4
s_add_u32 s40, s40, {READY}
v_mov_b32 v4, s40
v_mov_b32 v6, {TAG}
v_mov_b32 v7, s51''')
        self.lanes_lt(1)
        self(f'global_store_dwordx2 v4, v[6:7], {WS} sc1')
        self.full()
    def st_local(self, mism, *sts):
        far = self.newlabel('Lsf'); done = self.newlabel('Lsd')
        if self.P['local']:
            self(f's_cmp_eq_u64 {mism}, 0\ns_cbranch_scc0 {far}')
            for st in sts: self(st)
            self(f's_branch {done}')
            self.label(far)
        for st in sts: self(st + ' sc1')
        self.label(done)
    def ready_check(self, half, v=8):
        self(f'v_lshlrev_b32 v{v+2}, 4, v1\nv_add_u32 v{v+2}, {READY + 2048*half}, v{v+2}')
        def ld():
            for i in range(2): self(f'global_load_dword v{v+i}, v{v+2}, {WS} offset:{1024*i} sc1')
        self.poll(ld, lambda: self.chk_tag([v, v + 1], 0), sleep=4)
    def gemv2(self, D, A, F, first=True):
        for e in range(8):
            c = '0' if first else vr(D + 4*e, 4)
            self(f'v_mfma_f32_16x16x32_bf16 {vr(D+4*e,4)}, {vr(A,4)}, {vr(F+4*e,4)}, {c}')
    def pack2(self, o, D):
        for i in range(4):
            self(f'v_add_f32_dpp v{o+i}, v{D+4*i+1}, v{D+4*i} row_ror:8 row_mask:0xf bank_mask:0x3')
        for i in range(4):
            self(f'v_add_f32_dpp v{o+i}, v{D+4*(i+4)}, v{D+4*(i+4)+1} row_ror:8 row_mask:0xf bank_mask:0xc')
    def load_rows(self, dst, nreg, va, base, pitch, rows=8, pol='nt', t=None):
        op = {1: 'dword', 2: 'dwordx2', 4: 'dwordx4'}[nreg]
        per = 4095 // pitch + 1 if pitch <= 4095 else 1
        for j in range(rows):
            k = j % per
            self(f'global_load_{op} {vr(dst + j*nreg, nreg)}, v{va}, {base} offset:{k*pitch} {pol}')
            if k == per - 1 and j + 1 < rows: self(f'v_add_u32 v{va}, {per*pitch}, v{va}')

def consts(a):
    a(f'''s_mov_b32 {PLO}, 0x05040100
s_mov_b32 {PHI}, 0x07060302
s_mov_b32 {SPIN}, 0
s_mov_b32 s56, {L2E:#x}
s_mov_b32 s57, {L2E_LO:#x}
s_mov_b32 s58, {LN2:#x}
s_mov_b32 s59, {SCALE:#x}''')

def code_warm(a, v=4):
    n = a.P['warm_loads']
    a(f'''s_lshr_b32 s50, s2, 3
s_lshl_b32 s50, s50, 10
v_lshlrev_b32 v{v}, 4, v1
v_add_u32 v{v}, s50, v{v}
v_min_u32 v{v}, CODE_LAST, v{v}
global_load_dword v14, v{v}, s[36:37]''')
    if n > 1:
        a(f'''v_add_u32 v{v}, 32768, v{v}
v_min_u32 v{v}, CODE_LAST, v{v}
global_load_dword v14, v{v}, s[36:37]''')

CT, SPB, PB, STB, MISC = 0, 98304, 98304 + 34816, 98304 + 34816 + 9216, 98304 + 34816 + 9216 + 1024
def blk2_addr(a, v, srow, pitch, scol):
    a(f'''v_lshrrev_b32 v{v}, 3, v2
v_lshlrev_b32 v{v}, 5, v{v}
v_lshl_add_u32 v{v}, v3, 3, v{v}
v_add_u32 v{v}, {srow}, v{v}
v_mul_u32_u24 v{v}, {pitch}, v{v}
v_and_b32 v{v+1}, 7, v2
v_lshl_add_u32 v{v}, v{v+1}, 4, v{v}
v_add_u32 v{v}, {scol}, v{v}''')
def frag2_addr(a, v, sbase):
    a(f'v_and_b32 v{v}, 1, v2\nv_lshlrev_b32 v{v}, 6, v{v}\nv_lshl_add_u32 v{v}, v3, 4, v{v}\nv_add_u32 v{v}, {sbase}, v{v}')
def pack_addr(a, v, sbase):
    a(f'v_and_b32 v{v}, 7, v2\nv_lshlrev_b32 v{v}, 5, v{v}\nv_lshrrev_b32 v{v+1}, 3, v2\nv_lshl_add_u32 v{v}, v{v+1}, 4, v{v}\nv_add_u32 v{v}, {sbase}, v{v}')
def gemv_out_lds(a, D, base):
    a.pack2(8, D)
    a.lanes_lt(16)
    a('ds_write_b128 v14, v[8:11]')
    a.full()
def gemv_out_prep(a, base):
    a(f's_lshl_b32 s40, s3, 8\ns_add_u32 s40, s40, {base}')
    pack_addr(a, 14, 's40')
def tree(a, regs, stride=1, n=1):
    regs = list(regs)
    while len(regs) > 1:
        nxt = []
        for i in range(0, len(regs) - 1, 2):
            for k in range(n): a(f'v_add_f32 v{regs[i]+k}, v{regs[i]+k}, v{regs[i+1]+k}')
            nxt.append(regs[i])
        if len(regs) & 1: nxt.append(regs[-1])
        regs = nxt
def ln_finish(a, m, v, ri):
    a.rnd(m, m); a.rnd(v, v)
    a(f'v_add_f32 v{v}, {f2u(1e-5):#x}, v{v}')
    a.rnd(v, v)
    a(f'v_sqrt_f32 v{v}, v{v}')
    a.rnd(v, v)
    a.recip(ri, v, ri + 1)
def neg1(a, r=8):
    for i in range(4): a(f'v_mov_b32 v{r+i}, -1')

JP, CP = 3200, 51328
def role_B(a):
    P = a.P
    a(f'''s_and_b32 s39, s2, 7
s_lshr_b32 s38, s2, 3            ; j
s_mul_i32 s55, s38, 43
s_lshr_b32 s55, s55, 7           ; Tp = j/3
s_mul_i32 s40, s55, 3
s_sub_u32 s40, s38, s40          ; cbl
s_lshl_b32 s40, s40, 2
s_mul_i32 s45, s39, 12
s_add_u32 s45, s45, s40
s_lshr_b32 s40, s3, 1
s_add_u32 s45, s45, s40
s_and_b32 s53, s3, 1
s_lshl_b32 s42, s55, 1
s_add_u32 s53, s53, s42          ; T = 2Tp + (w&1)
v_mov_b32 v12, 0
s_lshl_b32 s40, s53, 6
s_lshl_b32 s41, s45, 7''')
    blk2_addr(a, 4, 's40', 12288, 's41')
    a(f'''v_lshlrev_b32 v6, 2, v1
s_lshl_b32 s42, s3, 3
v_and_b32 v7, 7, v1
v_add_u32 v7, s42, v7
v_lshrrev_b32 v8, 5, v1
v_lshl_add_u32 v13, v8, 6, v7
s_min_u32 s40, s55, 4
s_lshl_b32 s40, s40, 7
v_add_u32 v7, s40, v13
v_lshlrev_b32 v7, 1, v7
s_waitcnt lgkmcnt(0)''')
    a.stamp('start')
    for k in range(5): a(f'global_load_dword v{16+k}, v6, {X} offset:{256*k}')
    a(f'global_load_ushort v21, v7, {X}')
    a('s_cmp_lt_u32 s2, 120\ns_cbranch_scc0 LB_nowq')
    a.load_rows(64, 4, 4, WQ, 12288)
    a.label('LB_nowq')
    a(f'global_load_dword v15, v12, {WS} sc1\ns_branch LB2')

def role_B2(a):
    P = a.P
    a.label('LB2')
    a(f'''s_mov_b32 s49, 0
s_mul_i32 s54, s39, 10
s_add_u32 s54, s54, s38
s_add_u32 s40, s2, 0
s_cmp_lt_u32 s38, 10
s_cselect_b32 s54, s54, s40
s_getreg_b32 s16, hwreg(HW_REG_XCC_ID, 0, 4)''')
    a.wave_is('eq', 6, 'LB_not6')
    code_warm(a, 24)
    if P['tlb']:
        a(f'''v_lshlrev_b32 v24, 17, v1
global_load_dword v14, v24, {WS} offset:64 nt''')
    a('s_mov_b32 s49, 1')
    a.label('LB_not6')
    a.wave_is('eq', 7, 'LB_not7')
    neg1(a, 28)
    a(f'''s_mul_i32 s50, s39, 2560
s_lshl_b32 s51, s38, 8
s_add_u32 s50, s50, s51
s_add_u32 s50, s50, {H6}
s_lshl_b32 s51, s54, 8
s_add_u32 s51, s51, {MODR - 104*256}
s_cmp_lt_u32 s54, 104
s_cselect_b32 s50, s50, s51
v_lshl_add_u32 v24, v2, 4, s50
s_cmp_lt_u32 s54, 80
s_cbranch_scc1 LB_c1
s_cmp_lt_u32 s54, 104
s_cbranch_scc0 LB_c1
s_mul_i32 s50, s54, 2560
s_add_u32 s50, s50, {H7Y - 80*2560}
v_lshl_add_u32 v24, v1, 4, s50
global_store_dwordx4 v24, v[28:31], {WS} sc1
global_store_dwordx4 v24, v[28:31], {WS} offset:1024 sc1
v_and_b32 v24, 31, v1
v_lshl_add_u32 v24, v24, 4, s50
v_add_u32 v24, 2048, v24
LB_c1:
global_store_dwordx4 v24, v[28:31], {WS} sc1''')
    a('s_mov_b32 s49, 1')
    a.label('LB_not7')
    a(f'''s_lshl_b32 s46, s2, 6
s_lshl_b32 s41, s3, 3
s_add_u32 s46, s46, s41
s_mul_i32 s46, s46, 1536           ; (64b+8w)*1536
s_and_b32 s47, s3, 1
s_lshl_b32 s47, s47, 3             ; 8*(w&1)
s_mul_i32 s48, s3, 12288
v_cmp_le_u32 vcc, 32, v1
v_add_u32 v56, 64, v1
v_subrev_u32 v57, 32, v1
v_cndmask_b32 v56, v56, v57, vcc
v_cndmask_b32 v58, 0, 1, vcc
v_xor_b32 v56, v56, v58
v_mul_u32_u24 v58, 1536, v58
v_add_u32 v57, 32, v1
v_xor_b32 v57, 1, v57''')
    def dma(lo, hi, other=0):
        for i in range(lo, hi):
            k, j = divmod(i, 3)
            src = ('v1', 'v56', 'v57')[j]
            a(f's_add_u32 s43, s47, {2*k}\nv_xor_b32 v8, s43, {src}')
            a(f's_add_u32 s44, s46, {2*k*1536 + (1536 if j == 2 else 0) + other*32*1536}')
            if j == 1: a('v_lshl_add_u32 v8, v8, 4, v58\nv_add_u32 v8, s44, v8')
            else: a('v_lshl_add_u32 v8, v8, 4, s44')
            a(f's_add_u32 m0, s48, {i*1024 + other*49152}\nglobal_load_lds_dwordx4 v8, {CKV} nt')
    N1 = P['dma1']
    a(f'v_mov_b32 v253, {STB + 520}\nds_write_b32 v253, v12')
    a.bar()
    dma(0, N1)
    consts(a)
    a('s_cmp_ge_u32 s2, 120\ns_cselect_b32 s49, 1, s49\ns_cmp_eq_u32 s49, 0\ns_cbranch_scc1 LB_w8\ns_waitcnt vmcnt(' + str(N1) + ')\nLB_w8:')
    a(f's_waitcnt vmcnt({9+N1})')
    for k in range(5): a(f'v_lshlrev_b32 v{24+2*k}, 16, v{16+k}\nv_and_b32 v{25+2*k}, 0xffff0000, v{16+k}')
    a('v_add_f32 v22, v24, v25')
    for k in range(2, 10): a(f'v_add_f32 v22, v22, v{24+k}')
    a.wave_red('v_add_f32', 22, 23)
    a(f'v_mul_f32 v22, {f2u(1/640):#x}, v22\nv_mov_b32 v23, 0')
    for k in range(10): a(f'v_sub_f32 v{24+k}, v{24+k}, v22\nv_fmac_f32 v23, v{24+k}, v{24+k}')
    a.wave_red('v_add_f32', 23, 24)
    a(f'v_mul_f32 v23, {f2u(1/640):#x}, v23')
    ln_finish(a, 22, 23, 24)
    a('v_lshlrev_b32 v21, 16, v21\nv_sub_f32 v21, v21, v22')
    a.rnd(21, 21)
    a.div(20, 21, 23, 24, 25)
    a.rnd(20, 20)
    a('s_cmp_lt_u32 s2, 120\ns_cbranch_scc0 LB_dma0')
    a(f'''s_lshl_b32 s40, s55, 14
s_lshl_b32 s42, s3, 10
s_add_u32 s40, s40, s42
s_add_u32 s40, s40, {H1}
v_lshl_add_u32 v4, v1, 4, s40
v_add_u32 v9, 8192, v4
v_lshlrev_b32 v5, 1, v13
v_add_u32 v5, {MISC}, v5
s_lshl_b32 s40, s39, 4
s_add_u32 s40, s40, {READY + 2048}
v_lshl_add_u32 v10, v2, 7, s40
s_mul_i32 s40, s45, 43
s_lshr_b32 s40, s40, 7
s_mul_i32 s42, s40, 3
s_sub_u32 s42, s45, s42
s_lshl_b32 s42, s42, 9
s_mul_i32 s40, s40, 15360
s_add_u32 s40, s40, s42
s_mul_i32 s42, s53, 1536
s_add_u32 s40, s40, s42
s_add_u32 s40, s40, {H1B}''')
    pack_addr(a, 6, 0)
    a(f'v_lshlrev_b32 v6, 1, v6\nv_lshl_add_u32 v6, v3, 4, v6\nv_add_u32 v6, s40, v6\nv_cmp_eq_u32 s[42:43], 1, v3')
    a(f's_and_b32 s40, s3, 1\ns_lshl_b32 s40, s40, 7\ns_add_u32 s40, s40, {MISC}')
    frag2_addr(a, 7, 's40')
    a(f's_waitcnt vmcnt({N1})')
    a.stamp('wq')
    a.get_tag()
    a(f'v_mov_b32 v61, {TAG}\nv_mov_b32 v63, {TAG}')
    a.poll(lambda: a(f'global_load_dwordx4 v[16:19], v4, {WS} sc1\nglobal_load_dwordx4 v[24:27], v9, {WS} sc1\nglobal_load_dwordx2 v[28:29], v10, {WS} sc1'),
           lambda: a.chk_tag([17, 19, 25, 27], 8), sleep=P['sl_h1'], pre=P['pre_h1'], mid=lambda: a.perm_block(96, 64))
    a.stamp('h1')
    a('s_setprio 3')
    a('''v_add_f32_dpp v16, v16, v16 row_ror:8 row_mask:0xf bank_mask:0xf
v_add_f32_dpp v18, v18, v18 row_ror:8 row_mask:0xf bank_mask:0xf
v_add_f32_dpp v24, v24, v24 row_ror:8 row_mask:0xf bank_mask:0xf
v_add_f32_dpp v26, v26, v26 row_ror:8 row_mask:0xf bank_mask:0xf
v_cmp_ne_u32 s[50:51], s16, v29
v_cmp_ne_u32 vcc, s32, v28
s_or_b64 s[50:51], s[50:51], vcc
v_permlane16_swap_b32 v16, v18
v_permlane16_swap_b32 v24, v26
v_add_f32 v16, v16, v18
v_add_f32 v24, v24, v26
v_permlane32_swap_b32 v16, v24
v_add_f32 v16, v16, v24
v_mov_b32 v18, v16
v_permlane16_swap_b32 v16, v18''')
    a.rnd(16, 16); a.rnd(18, 18)
    a('v_add_f32 v18, 1.0, v18')
    a.rnd(18, 18)
    a('v_mul_f32 v18, v20, v18')
    a.rnd(18, 18)
    a('v_add_f32 v16, v18, v16\nv_cvt_pk_bf16_f32 v16, v16, v16\nds_write_b16 v5, v16')
    a.bar()
    a('ds_read_b128 v[16:19], v7\ns_waitcnt lgkmcnt(0)')
    a.gemv2(24, 16, 96, True)
    a.pack2(8, 24)
    a('v_cndmask_b32 v60, v8, v10, s[42:43]\nv_cndmask_b32 v62, v9, v11, s[42:43]')
    a.lanes_lt(32)
    a.st_local('s[50:51]', f'global_store_dwordx4 v6, v[60:63], {WS}')
    a.full()
    a.stamp('qpub')
    a('s_setprio 0\ns_barrier')
    if P['sl_dma2']: a(f's_sleep {P["sl_dma2"]}')
    a('s_branch LB_dma')
    a.label('LB_dma0')
    a.get_tag()
    a.label('LB_dma')
    a.wave_is('eq', 7, 'LB_nrp')
    a.ready_publish()
    a.label('LB_nrp')
    def bump():
        a('v_mov_b32 v8, 1\ns_mov_b64 exec, 1\nds_add_u32 v253, v8\ns_mov_b64 exec, -1')
    def ckwait(lab): a.lds_wait(253, 8)
    if P['dma8']: dma(N1, 12)
    a.wave_is('lt', 4, 'LB_qa')
    if not P['dma8']:
        for i in range(N1, 12):
            dma(i, i + 1); dma(i, i + 1, 1)
    a(f'''v_lshrrev_b32 v4, 2, v2            ; rr
v_lshl_add_u32 v4, v3, 3, v4       ; 8g+rr
v_and_b32 v5, 3, v1                ; cc
s_mul_i32 s40, s3, 24
v_add_u32 v5, s40, v5              ; 24w+cc''')
    for t in range(6):
        for sub in range(2):
            a(f'''v_add_u32 v6, {4*sub}, v4
v_and_b32 v7, 15, v6
v_add_u32 v8, {4*t}, v5
v_xor_b32 v7, v7, v8
v_mul_u32_u24 v6, 1536, v6
v_lshl_add_u32 v{40+t*2+sub}, v7, 4, v6''')
    a('s_waitcnt vmcnt(0)')
    bump()
    a(f's_lshl_b32 s40, s39, 4\ns_add_u32 s40, s40, {READY + 2048}\nv_lshl_add_u32 v10, v2, 7, s40')
    a.poll(lambda: a(f'global_load_dwordx2 v[28:29], v10, {WS} sc1'), lambda: a.chk_tag([28], 8), sleep=4)
    a('v_cmp_ne_u32 s[16:17], s16, v29')
    ckwait('LB_ck0')
    a.stamp('ckv')
    for t in range(6):
        for sub in range(2):
            for hf in range(2):
                for ks in range(2):
                    r = 64 + ((t*2+hf)*2+ks)*4 + 2*sub
                    a(f'ds_read_b64_tr_b16 {vr(r,2)}, v{40+t*2+sub} offset:{ks*49152 + hf*8}')
    a(f'''s_mul_i32 s41, s39, {16*CP}
s_mul_i32 s40, s38, {JP}
s_add_u32 s41, s41, s40
s_mul_i32 s40, s3, 384
s_add_u32 s41, s41, s40
s_add_u32 s41, s41, {H4}
v_mul_u32_u24 v52, {CP}, v3
v_bfe_u32 v8, v1, 3, 1
v_mul_u32_u24 v8, 1536, v8
v_add3_u32 v52, v52, v8, s41
v_and_b32 v8, 7, v1
v_lshl_add_u32 v52, v8, 4, v52
s_mul_i32 s40, s3, 4608
s_add_u32 s40, s40, {SPB}
v_mul_u32_u24 v60, 144, v2
v_lshl_add_u32 v60, v3, 4, v60
v_add_u32 v60, s40, v60
v_lshrrev_b32 v61, 3, v1
v_mul_u32_u24 v61, 144, v61
v_lshl_add_u32 v61, v8, 4, v61
v_add_u32 v61, s40, v61
v_add_u32 v53, {4*CP}, v52
v_add_u32 v54, {8*CP}, v52
v_add_u32 v55, {12*CP}, v52
s_lshl_b32 s40, s39, 14
s_lshl_b32 s41, s38, 6
s_add_u32 s40, s40, s41
s_lshl_b32 s41, s3, 4
s_add_u32 s40, s40, s41
s_add_u32 s40, s40, {AUX}
v_lshl_add_u32 v56, v2, 10, s40
v_lshlrev_b32 v57, 5, v2
v_add_u32 v57, {STB}, v57
s_branch LB_noqk''')
    a.label('LB_qa')
    a('s_sub_u32 s45, s3, 4\ns_mul_i32 s40, s45, 24\nv_add_u32 v5, s40, v3\nv_mul_u32_u24 v4, 1536, v2')
    for s_ in range(6):
        a(f'v_add_u32 v6, {4*s_}, v5\nv_xor_b32 v6, v6, v2\nv_lshl_add_u32 v{240+2*s_}, v6, 4, v4\nv_add_u32 v{241+2*s_}, 49152, v{240+2*s_}')
    a(f'''s_mul_i32 s40, s45, 12288
s_add_u32 s40, s40, {H2}
{'v_lshl_add_u32 v4, v1, 4, s40' if P['h2lay'] else 'v_lshl_add_u32 v4, v2, 6, s40'}
{'s_nop 0' if P['h2lay'] else 'v_lshl_add_u32 v4, v3, 4, v4'}
v_add_u32 v5, 4096, v4
v_add_u32 v6, 8192, v4
s_and_b32 s41, s2, 3
s_lshl_b32 s41, s41, {4 if P['h2lay'] else 6}
s_add_u32 s40, s40, s41
s_add_u32 s40, s40, 10240
v_and_b32 v9, 3, v1
v_lshl_add_u32 v9, v9, {6 if P['h2lay'] else 8}, s40
v_bfe_u32 v8, v1, 2, 1
v_lshl_add_u32 v9, v8, 10, v9
s_mul_i32 s40, s45, {32*272}
s_add_u32 s40, s40, {SPB}
v_mul_u32_u24 v7, 272, v2
v_lshl_add_u32 v7, v3, 4, v7
v_add_u32 v7, s40, v7
s_mov_b32 s52, 0
s_waitcnt vmcnt(0)''')
    bump()
    a.ready_check(1, 10)
    a('v_mov_b32 v12, 0\nv_mov_b32 v10, 0')
    def cf():
        for kt in range(4):
            for s_ in range(6):
                a(f'ds_read_b128 {vr(64+(kt*6+s_)*4,4)}, v{240 + 2*s_ + (kt >> 1)} offset:{(kt & 1)*24576}')
    a(f'''LB_q0:
s_mov_b64 exec, {P['k_h2']}
global_load_dword v10, v9, {WS} sc1
s_mov_b64 exec, -1
s_cmp_eq_u32 s52, 0
s_cbranch_scc0 LB_q1
ds_read_b32 v8, v253
s_waitcnt lgkmcnt(0)
v_cmp_gt_u32 vcc, 8, v8
s_cbranch_vccnz LB_q1
s_mov_b32 s52, 1''')
    cf()
    a(f'''LB_q1:
s_waitcnt vmcnt(0)
v_cmp_eq_u32 vcc, -1, v10
s_cbranch_vccz LB_h2go
s_add_u32 {SPIN}, {SPIN}, 1
s_cmp_gt_u32 {SPIN}, {SPINMAX}
s_cbranch_scc1 LB_h2go
s_sleep {P['sl_pr2']}
s_branch LB_q0
LB_h2go:''')
    if P['post_h2']: a(f's_sleep {P["post_h2"]}')
    def ld():
        for i in range(12): a(f'global_load_dwordx4 {vr(16+4*i,4)}, v{4 + i//4}, {WS} offset:{(i%4)*1024} sc1')
    def mid():
        a('s_cmp_eq_u32 s52, 0\ns_cbranch_scc0 LB_q2')
        ckwait('LB_ck1')
        cf()
        a.label('LB_q2')
    ld(); mid()
    a('s_setprio 3\ns_waitcnt lgkmcnt(0)\ns_branch LB_qm')
    a.label('LB_qr')
    ld()
    a.label('LB_qm')
    for s_ in range(6):
        a(f's_waitcnt vmcnt({10 - 2*s_})')
        if s_ == 5: a.stamp('h2')
        for kt in range(4):
            for ht in range(2):
                d = 224 + (kt*2+ht)*4
                a(f'v_mfma_f32_16x16x32_bf16 {vr(d,4)}, {vr(64+(kt*6+s_)*4,4)}, {vr(16+(s_*2+ht)*4,4)}, {"0" if s_ == 0 else vr(d,4)}')
                if s_ > 0 or True:
                    r = 16 + s_*8 + (kt*2+ht)
                    if kt*2+ht < 4:
                        q = 16 + s_*8 + 2*(kt*2+ht)
                        a(f'v_max_u32 v8, v{q}, v{q+1}' if (s_ == 0 and kt*2+ht == 0) else f'v_max3_u32 v8, v8, v{q}, v{q+1}')
    a(f'''v_cmp_eq_u32 vcc, -1, v8
s_cbranch_vccz LB_qd
s_add_u32 {SPIN}, {SPIN}, 1
s_cmp_gt_u32 {SPIN}, {SPINMAX}
s_cbranch_scc1 LB_qd
s_sleep {P['sl_h2']}
s_branch LB_qr
LB_qd:''')
    for kt in range(4):
        for ht in range(2): a(f'ds_write_b128 v7, {vr(224+(kt*2+ht)*4,4)} offset:{ht*16*272 + kt*64}')
    a.label('LB_noqk')
    a(f'''s_lshl_b32 s40, s3, 2
v_add_u32 v9, s40, v3              ; head = 4w+g
v_mul_u32_u24 v4, 272, v9
v_lshl_add_u32 v4, v2, 4, v4
v_add_u32 v4, {SPB}, v4
v_mul_u32_u24 v5, 144, v9
v_lshl_add_u32 v5, v2, 3, v5
v_add_u32 v5, {PB}, v5
s_lshl_b32 s40, s2, 4
s_add_u32 s40, s40, {H3}
v_lshl_add_u32 v6, v9, 11, s40
v_lshlrev_b32 v7, 4, v9
v_add_u32 v7, {STB}, v7
v_lshlrev_b32 v10, 2, v2           ; 4*kq
v_mov_b32 v45, {TAG}
v_mov_b32 v47, {TAG}
s_lshl_b32 s40, s2, 7
s_add_u32 s40, s40, {DB3}
v_mov_b32 v8, s40
v_cmp_eq_u32 vcc, 1, v1
v_cndmask_b32 v6, v6, v8, vcc
s_cmp_eq_u32 s3, 7
s_cselect_b32 s49, 2, 0
s_or_b32 s49, s49, 0x00010001
v_mov_b32 v58, {STB + 512}
v_mov_b32 v13, 0
ds_write_b64 v58, v[12:13]
ds_write_b32 v58, v12 offset:12
ds_write_b32 v58, v12 offset:16''')
    for i in range(4): a(f'v_add_u32 v{40+i}, {i}, v10')
    a.bar()
    a.stamp('qk')
    a('s_setprio 3')
    for i in range(4): a(f'ds_read_b128 {vr(16+4*i,4)}, v4 offset:{8704*i}')
    a(f'''v_mul_u32_u24 v4, 144, v2
v_lshl_add_u32 v4, v3, 4, v4
v_add_u32 v4, {PB}, v4
v_mov_b32 v11, {NEGINF:#x}
s_mov_b32 s40, 0xffffffc0
s_waitcnt lgkmcnt(0)''')
    for i in (0, 2):
        a(f'v_pk_add_f32 {vr(16+i,2)}, {vr(16+i,2)}, {vr(20+i,2)}\nv_pk_add_f32 {vr(24+i,2)}, {vr(24+i,2)}, {vr(28+i,2)}')
    for i in (0, 2): a(f'v_pk_add_f32 {vr(32+i,2)}, {vr(16+i,2)}, {vr(24+i,2)}')
    for i in range(4): a(f'v_and_or_b32 v{36+i}, v{32+i}, s40, v{40+i}')
    a('v_max3_f32 v50, v36, v37, v38\nv_max_f32 v50, v50, v39')
    a('v_cvt_pk_bf16_f32 v36, v32, v33\nv_cvt_pk_bf16_f32 v37, v34, v35')
    fill = ['v_lshlrev_b32 v32, 16, v36\nv_and_b32 v33, 0xffff0000, v36', 'v_lshlrev_b32 v34, 16, v37\nv_and_b32 v35, 0xffff0000, v37',
            'v_mul_f32 v32, s59, v32\nv_mul_f32 v33, s59, v33', 'v_mul_f32 v34, s59, v34\nv_mul_f32 v35, s59, v35']
    for k, f in zip((8, 4, 2, 1), fill):
        a(f'v_max_f32_dpp v50, v50, v50 row_ror:{k} row_mask:0xf bank_mask:0xf')
        a(f)
    a('''v_cvt_pk_bf16_f32 v44, v50, v50
v_cvt_pk_bf16_f32 v36, v32, v33
v_and_b32 v44, 0xffff0000, v44
v_cvt_pk_bf16_f32 v37, v34, v35
v_mul_f32 v44, s59, v44
v_and_b32 v46, 63, v50
v_cvt_pk_bf16_f32 v44, v44, v44
v_lshlrev_b32 v32, 16, v36
v_and_b32 v44, 0xffff0000, v44
s_mov_b32 exec_lo, s49
s_mov_b32 exec_hi, 0x00010001''')
    a(f'global_store_dwordx4 v6, v[44:47], {WS} sc1')
    a.full()
    a.stamp('h3pub')
    a('''v_and_b32 v33, 0xffff0000, v36
v_lshlrev_b32 v34, 16, v37
v_and_b32 v35, 0xffff0000, v37''')
    for i in range(4): a(f'v_sub_f32 v{24+i}, v{32+i}, v44')
    for i in range(4): a(f'v_mul_f32 v{24+i}, s56, v{24+i}')
    for i in range(4): a(f'v_exp_f32 v{24+i}, v{24+i}')
    a('''v_cvt_pk_bf16_f32 v36, v24, v25
v_cvt_pk_bf16_f32 v37, v26, v27
ds_write_b64 v5, v[36:37]
v_add_f32 v49, v24, v25
v_add_f32 v48, v26, v27
v_add_f32 v49, v49, v48''')
    def deferred():
        for i in range(4):
            a(f'v_cmp_eq_u32 vcc, v{40+i}, v46\nv_cndmask_b32 v{32+i}, v{32+i}, v11, vcc')
        a('v_max3_f32 v50, v32, v33, v34\nv_max_f32 v50, v50, v35')
        for k in (8, 4, 2, 1):
            a(f'v_max_f32_dpp v50, v50, v50 row_ror:{k} row_mask:0xf bank_mask:0xf\nv_add_f32_dpp v49, v49, v49 row_ror:{k} row_mask:0xf bank_mask:0xf')
        for i in range(4): a(f'v_sub_f32 v{32+i}, v{32+i}, v50')
        for i in range(4): a(f'v_mul_f32 v{32+i}, s56, v{32+i}')
        for i in range(4): a(f'v_exp_f32 v{32+i}, v{32+i}')
        a('''v_add_f32 v51, v32, v33
v_add_f32 v48, v34, v35
v_add_f32 v51, v51, v48
v_cvt_pk_bf16_f32 v38, v32, v33
v_cvt_pk_bf16_f32 v39, v34, v35
ds_write_b64 v5, v[38:39] offset:4608
v_mov_b32 v48, v44''')
        a.row_red('v_add_f32', [51])
        a('ds_write_b128 v7, v[48:51]\nv_mov_b32 v8, 1\ns_mov_b64 exec, 1\nds_add_u32 v58, v8 offset:16\ns_mov_b64 exec, -1')
    a.stamp('xa')
    a.bar()
    a.stamp('xb')
    a.wave_is('lt', 4, 'LB_lw')
    for ht in range(2):
        for ks in range(2): a(f'ds_read_b128 {vr(16+(ht*2+ks)*4,4)}, v4 offset:{ht*16*144 + ks*64}')
    a('s_waitcnt lgkmcnt(0)')
    def unit(i):
        cl, ht = i >> 1, i & 1
        for tp in range(2):
            for hf in range(2):
                d = 160 + (i % 3)*16 + (tp*2+hf)*4
                t = cl*2 + tp
                for ks in range(2):
                    a(f'v_mfma_f32_16x16x32_bf16 {vr(d,4)}, {vr(64+((t*2+hf)*2+ks)*4,4)}, {vr(16+(ht*2+ks)*4,4)}, {"0" if ks == 0 else vr(d,4)}')
    def stw(i):
        d = 160 + (i % 3)*16; o = 208 + (i % 2)*8
        for k in range(8): a(f'v_cvt_pk_bf16_f32 v{o+k}, v{d+2*k}, v{d+2*k+1}')
        a(f'ds_write_b128 v60, {vr(o,4)} offset:{(i % 2)*2304}\nds_write_b128 v60, {vr(o+4,4)} offset:{(i % 2)*2304 + 64}')
        o2 = 224 + (i % 3)*8
        a(f'ds_read_b128 {vr(o2,4)}, v61 offset:{(i % 2)*2304}\nds_read_b128 {vr(o2+4,4)}, v61 offset:{(i % 2)*2304 + 1152}')
    def stg(i, pol, n):
        cl, ht = i >> 1, i & 1
        o2 = 224 + (i % 3)*8
        a(f's_waitcnt lgkmcnt({n})')
        a(f'global_store_dwordx4 v{52+2*ht}, {vr(o2,4)}, {WS} offset:{128*cl} {pol}')
        a(f'global_store_dwordx4 v{53+2*ht}, {vr(o2+4,4)}, {WS} offset:{128*cl} {pol}')
    def pvloop(pol):
        unit(0)
        a.stamp('xc')
        unit(1); stw(0)
        for i in range(2, 6):
            unit(i); stw(i - 1); stg(i - 2, pol, 0 if P['stamps'] == 2 else 4)
            if i in (3, 5): a.stamp(f'xd{i}')
        stw(5); stg(4, pol, 0 if P['stamps'] == 2 else 4); stg(5, pol, 0)
    if P['local'] and P['pv_local']:
        a('s_cmp_eq_u64 s[16:17], 0\ns_cbranch_scc0 LB_pvf')
        pvloop('')
        a('s_branch LB_pvd')
        a.label('LB_pvf')
    pvloop('sc1')
    a.label('LB_pvd')
    a('v_mov_b32 v8, 1')
    a.lanes_lt(1)
    a('ds_add_u32 v58, v8')
    a.full()
    a.stamp('pvst')
    deferred()
    a.lds_wait(58, 8, off=16, extra='ds_read2_b32 v[36:37], v57 offset0:1 offset1:5')
    a(f'v_mov_b32 v8, 1\nv_mov_b32 v33, {TAG}\nv_mov_b32 v32, v36\nv_mov_b32 v34, v37\nv_mov_b32 v35, {TAG}')
    a.lanes_lt(16)
    a('s_waitcnt vmcnt(0)')
    a.st_local('s[16:17]', f'global_store_dwordx4 v56, v[32:35], {WS}')
    a.lanes_lt(1)
    a('ds_add_u32 v58, v8 offset:12')
    a.full()
    a.stamp('auxpub')
    a(f'''v_lshlrev_b32 v9, 2, v2
v_add_u32 v9, {STB + 576}, v9
s_lshl_b32 s40, s3, 9
s_add_u32 s40, s40, {SIDE}
v_lshlrev_b32 v10, 13, v2
v_lshl_add_u32 v10, v3, 4, v10
v_add_u32 v10, s40, v10
v_lshlrev_b32 v11, 4, v2
v_add_u32 v11, {STB}, v11
''')
    a.lds_wait(58, 1, off=4, extra='ds_read2_b32 v[40:41], v9 offset0:0 offset1:16')
    for ht in range(2):
        a(f'''v_cmp_gt_u32 s[42:43], 4, v{40+ht}
s_cmp_eq_u64 s[42:43], 0
s_cbranch_scc1 LB_cn{ht}
ds_read_b128 v[16:19], v4 offset:{4608 + ht*16*144}
ds_read_b128 v[20:23], v4 offset:{4608 + ht*16*144 + 64}
ds_read_b64 v[44:45], v11 offset:{ht*256 + 8}
v_and_b32 v42, 3, v{40+ht}
v_lshl_add_u32 v42, v42, 11, v10
v_add_u32 v42, {ht*16*8192}, v42
s_waitcnt lgkmcnt(0)''')
        for t in range(6):
            for hf in range(2):
                d = 160 + (t*2+hf)*4
                for ks in range(2):
                    a(f'v_mfma_f32_16x16x32_bf16 {vr(d,4)}, {vr(64+((t*2+hf)*2+ks)*4,4)}, {vr(16+ks*4,4)}, {"0" if ks == 0 else vr(d,4)}')
        for t in range(6):
            for k in range(4): a(f'v_cvt_pk_bf16_f32 v{208+4*t+k}, v{160+8*t+2*k}, v{161+8*t+2*k}')
        a.san(range(208, 232))
        a(f'v_mov_b32 v46, v45\nv_mov_b32 v45, {TAG}\nv_mov_b32 v47, {TAG}\ns_mov_b64 exec, s[42:43]')
        for t in range(6): a(f'global_store_dwordx4 v42, {vr(208+4*t,4)}, {WS} offset:{64*t} sc1')
        a(f's_and_b64 exec, exec, 0xffff\nglobal_store_dwordx4 v42, v[44:47], {WS} offset:384 sc1')
        a.full()
        a.label(f'LB_cn{ht}')
    a('v_mov_b32 v8, 1')
    a.lanes_lt(1)
    a('ds_add_u32 v58, v8')
    a.full()
    a('s_branch LB_lw2')
    a.label('LB_lw')
    a('s_setprio 0')
    deferred()
    a.wave_is('eq', 4, 'LB_lw3')
    a(f'''v_and_b32 v9, 31, v1
v_lshlrev_b32 v10, 2, v9
v_add_u32 v10, {STB + 576}, v10
s_lshl_b32 s40, s39, 4
s_add_u32 s40, s40, s38
s_lshl_b32 s40, s40, 8
s_add_u32 s40, s40, {MB}
v_lshl_add_u32 v9, v9, 3, s40
''')
    a.lds_wait(58, P['ew_cnt'], sleep=2)
    a.poll(lambda: a(f'global_load_dwordx2 v[16:17], v9, {WS} sc1'), lambda: a.chk_tag([17], 8), sleep=P['sl_el'])
    a.stamp('el')
    a('ds_write_b32 v10, v16\nv_mov_b32 v8, 1\nds_write_b32 v58, v8 offset:4')
    a.label('LB_lw2')
    a.lds_wait(58, 8, sleep=P['sl_lw'])
    a('s_branch LB_late')
    a.label('LB_lw3')
    if P['early_late']: a.lds_wait(58, 4, off=12, sleep=P['sl_lw'])
    else: a.lds_wait(58, 8, sleep=P['sl_lw'])
    a.label('LB_late')
    def gate2(): a.lds_wait(58, 8, sleep=P['sl_lw'])
    a('s_cmp_lt_u32 s54, 80\ns_cbranch_scc0 LB_hi')
    a.wave_is('ge', 4, 'LB_wob')
    a(f'''s_mul_i32 s40, s39, 768
s_mul_i32 s41, s45, 192
s_add_u32 s40, s40, s41
s_lshl_b32 s41, s38, 7''')
    blk2_addr(a, 4, 's40', 1280, 's41')
    a(f'v_add_u32 v5, {64*1280}, v4\nv_add_u32 v6, {128*1280}, v4')
    for i in range(3):
        a.load_rows(64 + 32*i, 4, 4 + i, WO, 1280)
        if i == P['early_late'] - 1: gate2()
    a(f'''s_mul_i32 s40, s39, 12
s_mul_i32 s41, s45, 3
s_add_u32 s40, s40, s41
s_lshl_b32 s40, s40, 10
s_add_u32 s40, s40, {H5}
v_lshl_add_u32 v4, v1, 4, s40
s_mul_i32 s40, s45, 384
s_add_u32 s40, s40, {MISC + 4096}
v_lshl_add_u32 v5, v2, 2, v3
v_lshl_add_u32 v5, v5, 1, s40      ; (4p+g)*2''')
    frag2_addr(a, 6, 's40')
    gemv_out_prep(a, MISC + 2048 - 1024)
    for i in range(3):
        a(f's_waitcnt vmcnt({16 - 8*i})')
        a.perm_block(160 + 32*i, 64 + 32*i)
    a.stamp('late')
    if P['probe_h5']: a.probe(4, 8, off=2048, sleep=P['sl_pr'], post=P['post_h5'], mask=0x0001000100010001)
    def ld():
        for i in range(3): a(f'global_load_dwordx4 {vr(16+4*i,4)}, v4, {WS} offset:{1024*i} sc1')
    a.poll(ld, lambda: a.chk_sent(range(16, 28), 8), sleep=P['sl_h5'])
    a.stamp('h5')
    a('s_setprio 3')
    for i in range(3): a.xrow_tr4(16 + 4*i)
    for i in range(3): a(f'v_cvt_pk_bf16_f32 v{16+4*i}, v{16+4*i}, v{16+4*i}\nds_write_b16 v5, v{16+4*i} offset:{128*i}')
    a('s_waitcnt lgkmcnt(0)')
    for i in range(3): a(f'ds_read_b128 {vr(16+4*i,4)}, v6 offset:{128*i}')
    for i in range(3):
        a(f's_waitcnt lgkmcnt({2-i})')
        a.gemv2(64, 16 + 4*i, 160 + 32*i, i == 0)
    gemv_out_lds(a, 64, 0)
    a.label('LB_wob')
    a(f'''v_lshlrev_b32 v4, 4, v2
v_add_u32 v4, {MISC + 2048}, v4
s_mul_i32 s40, s39, 2560
s_lshl_b32 s41, s38, 8
s_add_u32 s40, s40, s41
s_add_u32 s40, s40, {H6}
v_lshl_add_u32 v5, v2, 4, s40''')
    a.bar()
    a.wave_is('eq', 4, 'Lfin')
    for i in range(4): a(f'ds_read_b128 {vr(16+4*i,4)}, v4 offset:{256*i}')
    a('s_waitcnt lgkmcnt(0)')
    tree(a, range(16, 32, 4), n=4)
    a.lanes_lt(16)
    a(f'global_store_dwordx4 v5, v[16:19], {WS} sc1')
    a.full()
    a.stamp('h6pub')
    a('s_branch Lfin')
    a.label('LB_hi')
    a('s_cmp_lt_u32 s54, 104\ns_cbranch_scc0 LB_mr')
    a(f's_sub_u32 s46, s54, 80\ns_lshl_b32 s40, s46, 6\ns_lshl_b32 s41, s3, 7')
    blk2_addr(a, 10, 's40', 1280, 's41')
    a.wave_is('lt', 5, 'LB_f5')
    a(f's_lshl_b32 s40, s3, 7\ns_lshl_b32 s41, s46, 7')
    blk2_addr(a, 4, 's40', 3072, 's41')
    a(f'v_add_u32 v5, {64*3072}, v4\nv_lshlrev_b32 v6, 2, v0\nglobal_load_dword v24, v6, {X}')
    a.load_rows(128, 4, 4, W1, 3072)
    a.load_rows(160, 4, 5, W1, 3072)
    a.load_rows(64, 4, 10, W2, 1280)
    a(f'v_lshlrev_b32 v4, 2, v0\nv_add_u32 v4, {MODR}, v4\nv_add_u32 v5, 2560, v4\ns_waitcnt vmcnt(8)')
    a.perm_block(192, 128)
    a.perm_block(224, 160)
    a('s_waitcnt vmcnt(0)')
    a.stamp('late1')
    a.perm_block(96, 64)
    a.ready_check(0, 36)
    def ld():
        a(f'''global_load_dword v25, v4, {WS} sc1
global_load_dword v26, v4, {WS} offset:1280 sc1
global_load_dword v27, v5, {WS} sc1
global_load_dword v38, v5, {WS} offset:1280 sc1''')
    a.poll(ld, lambda: a.chk_sent([25, 26, 27, 38], 8), sleep=8)
    a(f'''v_lshlrev_b32 v4, 3, v0
v_add_u32 v8, {H6}, v4
v_lshlrev_b32 v28, 16, v24
v_and_b32 v29, 0xffff0000, v24
v_lshlrev_b32 v30, 16, v25
v_and_b32 v31, 0xffff0000, v25
v_lshlrev_b32 v32, 16, v26
v_and_b32 v33, 0xffff0000, v26
v_lshlrev_b32 v34, 16, v27
v_and_b32 v35, 0xffff0000, v27
v_add_f32 v34, 1.0, v34
v_add_f32 v35, 1.0, v35''')
    a.rnd(34, 34); a.rnd(35, 35)
    for i in range(1, 4): a(f'v_add_u32 v{8+i}, {5120*i}, v8')
    a(f'''s_lshl_b32 s40, s3, 3
s_add_u32 s40, s40, {MISC + 8192}
v_mov_b32 v13, s40
s_lshl_b32 s40, s3, 8
s_add_u32 s40, s40, {MISC + 4096}
v_lshl_add_u32 v5, v1, 2, s40''')
    frag2_addr(a, 6, 's40')
    gemv_out_prep(a, MISC)
    a(f'v_mul_u32_u24 v37, 2560, v1\ns_lshl_b32 s40, s3, 9\ns_add_u32 s40, s40, {H6}\nv_add_u32 v37, s40, v37')
    if P['probe_h6']: a.probe(37, 4, sleep=P['sl_pr'], post=P['post_h6'], mask=0xff)
    def ld():
        for i in range(8): a(f'global_load_dwordx2 {vr(40+2*i,2)}, v{8 + i//2}, {WS} offset:{2560*(i%2)} sc1')
    if P['m_h6']:
        a.poll_masked([(f'global_load_dwordx2 {vr(40+2*i,2)}, v{8 + i//2}, {WS} offset:{2560*(i%2)} sc1', range(40+2*i, 42+2*i)) for i in range(8)], 4, sleep=P['sl_h6'])
    else: a.poll(ld, lambda: a.chk_sent(range(40, 56), 4), sleep=P['sl_h6'])
    a.stamp('h6')
    a('s_setprio 3')
    tree(a, range(40, 56, 2), n=2)
    for i in range(2): a.rnd(40 + i, 40 + i)
    for i in range(2): a(f'v_mul_f32 v{40+i}, v{30+i}, v{40+i}')
    for i in range(2): a.rnd(40 + i, 40 + i)
    for i in range(2): a(f'v_add_f32 v{40+i}, v{28+i}, v{40+i}')
    a('''v_cvt_pk_bf16_f32 v36, v40, v41
v_lshlrev_b32 v40, 16, v36
v_and_b32 v41, 0xffff0000, v36
v_readfirstlane_b32 s42, v40
v_subrev_f32 v44, s42, v40
v_subrev_f32 v45, s42, v41
v_add_f32 v42, v44, v45
v_mul_f32 v43, v44, v44
v_fmac_f32 v43, v45, v45''')
    a.row_red('v_add_f32', [42, 43])
    a(f'''v_permlane16_swap_b32 v42, v43
v_add_f32 v42, v42, v43
v_mov_b32 v43, v42
v_permlane32_swap_b32 v42, v43
v_add_f32 v42, v42, v43
v_mov_b32 v43, v42
v_permlane16_swap_b32 v42, v43
v_mul_f32 v42, {f2u(1/128):#x}, v42
v_mul_f32 v44, {f2u(128.0):#x}, v42
v_fma_f32 v43, -v44, v42, v43
v_add_f32 v42, s42, v42
ds_write_b64 v13, v[42:43]
s_branch LB_w1b''')
    a.label('LB_f5')
    a.load_rows(64, 4, 10, W2, 1280)
    if P['early_late'] < 2: gate2()
    a.wave_is('lt', 7, 'LB_f7')
    a(f's_lshl_b32 s40, s46, 6\ns_add_u32 s41, s3, 3\ns_lshl_b32 s41, s41, 7')
    blk2_addr(a, 10, 's40', 1280, 's41')
    a.load_rows(128, 4, 10, W2, 1280)
    a.label('LB_f7')
    a('s_waitcnt vmcnt(0)')
    a.perm_block(96, 64)
    a.perm_block(192, 128)
    a.label('LB_w1b')
    a(f'v_mov_b32 v4, {MISC + 8192}')
    a.bar()
    a('s_setprio 3')
    a.wave_is('lt', 5, 'LB_w1c')
    a(f'''ds_read_b128 v[44:47], v4
ds_read_b128 v[48:51], v4 offset:16
ds_read_b64 v[52:53], v4 offset:32
s_waitcnt lgkmcnt(0)
v_add_f32 v54, v44, v46
v_add_f32 v55, v48, v50
v_add_f32 v56, v45, v47
v_add_f32 v54, v54, v55
v_add_f32 v57, v49, v51
v_add_f32 v54, v54, v52
v_add_f32 v55, v56, v57
v_mul_f32 v54, {f2u(0.2):#x}, v54      ; mean
v_add_f32 v55, v55, v53''')
    for r in (44, 46, 48, 50, 52): a(f'v_sub_f32 v{r}, v{r}, v54')
    a('v_mul_f32 v56, v44, v44\nv_mul_f32 v57, v46, v46\nv_fmac_f32 v56, v48, v48\nv_fmac_f32 v57, v50, v50\nv_fmac_f32 v56, v52, v52\nv_add_f32 v56, v56, v57')
    a(f'v_fmac_f32 v55, {f2u(128.0):#x}, v56\nv_mul_f32 v55, {f2u(1/640):#x}, v55')
    ln_finish(a, 54, 55, 56)
    for i in range(2): a(f'v_sub_f32 v{44+i}, v{40+i}, v54')
    for i in range(2): a.rnd(44 + i, 44 + i)
    for i in range(2): a.div(42 + i, 44 + i, 55, 56, 57 + i)
    for i in range(2): a.rnd(42 + i, 42 + i)
    for i in range(2): a(f'v_mul_f32 v{42+i}, v{42+i}, v{34+i}')
    for i in range(2): a.rnd(42 + i, 42 + i)
    for i in range(2): a(f'v_add_f32 v{42+i}, v{42+i}, v{32+i}')
    a('''v_cvt_pk_bf16_f32 v42, v42, v43
ds_write_b32 v5, v42
s_waitcnt lgkmcnt(0)
ds_read_b128 v[16:19], v6
ds_read_b128 v[20:23], v6 offset:128
s_waitcnt lgkmcnt(1)''')
    a.gemv2(128, 16, 192, True)
    a('s_waitcnt lgkmcnt(0)')
    a.gemv2(128, 20, 224, False)
    gemv_out_lds(a, 128, MISC)
    a.label('LB_w1c')
    a(f'''v_and_b32 v4, 31, v1
v_lshlrev_b32 v5, 2, v4
v_lshlrev_b32 v4, 3, v4
v_add_u32 v4, {MISC}, v4
s_lshl_b32 s40, s3, 7
s_add_u32 s40, s40, {MISC + 6144}
v_add_u32 v5, s40, v5''')
    frag2_addr(a, 6, 's40')
    a(f's_mul_i32 s40, s46, 2560\ns_lshl_b32 s41, s3, 8\ns_add_u32 s40, s40, s41\ns_add_u32 s40, s40, {H7Y}')
    pack_addr(a, 14, 's40')
    a.bar()
    for i in range(5): a(f'ds_read_b64 {vr(16+2*i,2)}, v4 offset:{256*i}')
    a('s_waitcnt lgkmcnt(0)')
    tree(a, range(16, 26, 2), n=2)
    a('''v_max_f32 v16, 0, v16
v_max_f32 v17, 0, v17
v_cvt_pk_bf16_f32 v8, v16, v17
ds_write_b32 v5, v8
s_waitcnt lgkmcnt(0)
ds_read_b128 v[16:19], v6
s_waitcnt lgkmcnt(0)''')
    a.gemv2(64, 16, 96, True)
    a('s_sub_u32 s40, s3, 5\ns_cmp_lt_u32 s40, 2\ns_cbranch_scc0 LB_y1')
    a.gemv2(128, 16, 192, True)
    a.label('LB_y1')
    a.pack2(8, 64)
    a.lanes_lt(16)
    a(f'global_store_dwordx4 v14, v[8:11], {WS} sc1')
    a.full()
    a('s_cbranch_scc0 LB_y2')
    a.pack2(20, 128)
    a.lanes_lt(16)
    a(f'global_store_dwordx4 v14, v[20:23], {WS} offset:768 sc1')
    a.full()
    a.label('LB_y2')
    a.stamp('h7pub')
    a('s_lshr_b32 s40, s46, 2\ns_cmp_eq_u32 s40, s3\ns_cbranch_scc0 Lfin\ns_cmp_lt_u32 s3, 5\ns_cbranch_scc0 Lfin\ns_and_b32 s40, s46, 3\ns_lshl_b32 s40, s40, 4\ns_mov_b64 s[42:43], 0xffff\ns_lshl_b64 exec, s[42:43], s40')
    a(f'v_lshlrev_b32 v4, 3, v0\nv_add_u32 v4, {H7Y}, v4')
    for i in range(1, 12): a(f'v_add_u32 v{16+i}, {5120*i}, v4')
    a(f'''v_mov_b32 v16, v4
v_lshlrev_b32 v5, 2, v0
v_lshlrev_b32 v30, 16, v38
v_and_b32 v31, 0xffff0000, v38''')
    def ld():
        for i in range(24): a(f'global_load_dwordx2 {vr(64+2*i,2)}, v{16 + i//2}, {WS} offset:{2560*(i%2)} sc1')
    a.poll(ld, lambda: a.chk_sent(range(64, 112), 4), sleep=P['sl_h7'], pre=P['pre_h7'])
    a.stamp('h7')
    tree(a, range(64, 112, 2), n=2)
    for i in range(2): a.rnd(64 + i, 64 + i)
    for i in range(2): a(f'v_mul_f32 v{64+i}, v{30+i}, v{64+i}')
    for i in range(2): a.rnd(64 + i, 64 + i)
    for i in range(2): a(f'v_add_f32 v{64+i}, v{40+i}, v{64+i}')
    a(f'v_cvt_pk_bf16_f32 v64, v64, v65\nglobal_store_dword v5, v64, {OUT}\ns_mov_b64 exec, -1')
    a.stamp('out')
    a('s_branch Lfin')
    a.label('LB_mr')
    a('s_cmp_lt_u32 s54, 124\ns_cbranch_scc0 Lfin\ns_sub_u32 s46, s54, 104\ns_add_u32 s45, s3, 3\ns_and_b32 s45, s45, 7\ns_cmp_lt_u32 s45, 5\ns_cbranch_scc0 LB_mrb')
    a(f'''s_lshl_b32 s40, s45, 7
v_lshl_add_u32 v4, v3, 3, s40      ; row = 128w + 8g
v_lshlrev_b32 v6, 1, v4
v_add_u32 v6, {MISC + 4096}, v6
v_mul_u32_u24 v4, 7680, v4
v_lshl_add_u32 v4, v2, 4, v4
s_lshl_b32 s40, s46, 8
s_add_u32 s40, s40, 2560
v_add_u32 v4, s40, v4
s_lshl_b32 s40, s45, 8
v_lshl_add_u32 v7, v1, 2, s40
global_load_dword v16, v7, {CC}
v_add_u32 v7, {MISC + 4096}, v7''')
    for i in range(4):
        a.load_rows(64 + 32*i, 4, 4, WMOD, 7680)
        if i < 3: a(f'v_add_u32 v4, {25*7680}, v4')
        if i == P['early_late'] - 1: gate2()
    a('s_waitcnt vmcnt(32)')
    a('v_lshlrev_b32 v32, 16, v16\nv_and_b32 v33, 0xffff0000, v16')
    a.silu(32, 32, 8); a.silu(33, 33, 8)
    a(f'v_perm_b32 v16, v33, v32, {PHI}\nds_write_b32 v7, v16\ns_waitcnt lgkmcnt(0)')
    for i in range(4): a(f'ds_read_b128 {vr(16+4*i,4)}, v6 offset:{64*i}')
    a('s_waitcnt lgkmcnt(0)')
    a(f'''v_cmp_eq_u32 s[42:43], 1, v3
v_lshlrev_b32 v4, 5, v2
v_lshl_add_u32 v4, v3, 4, v4
s_lshl_b32 s40, s45, 9
s_add_u32 s40, s40, {MISC}
v_add_u32 v4, s40, v4''')
    for i in range(4):
        a(f's_waitcnt vmcnt({24 - 8*i})')
        a.perm_block(192, 64 + 32*i)
        a.gemv2(224, 16 + 4*i, 192, i == 0)
    a.stamp('late2')
    for i in range(4): a(f'v_cndmask_b32 v{8+i}, v{224+4*i}, v{224+4*(i+4)}, s[42:43]')
    a.lanes_lt(32)
    a('ds_write_b128 v4, v[8:11]')
    a.full()
    a.label('LB_mrb')
    a.bar()
    a.wave_is('eq', 2, 'Lfin')
    a(f'v_lshlrev_b32 v4, 3, v1\nv_add_u32 v4, {MISC}, v4')
    for i in range(5): a(f'ds_read_b64 {vr(16+2*i,2)}, v4 offset:{512*i}')
    a(f's_lshl_b32 s40, s46, 8\ns_add_u32 s40, s40, {MODR}\nv_lshl_add_u32 v4, v1, 2, s40\ns_waitcnt lgkmcnt(0)')
    tree(a, range(16, 26, 2), n=2)
    a('v_cvt_pk_bf16_f32 v8, v16, v17')
    a.san([8])
    for i in range(1, 4): a(f'v_mov_b32_dpp v{8+i}, v8 quad_perm:[{i},{i},{i},{i}] row_mask:0xf bank_mask:0xf')
    a.exec_mask(0x1111111111111111)
    a(f'global_store_dwordx4 v4, v[8:11], {WS} sc1')
    a.full()
    a.stamp('mrpub')
    a('s_branch Lfin')

LS1, LQ, LKEY, LEK, LWT, LWP, LFW, LKP = 0, 2816, 3328, 3840, 4096, 4608, 5120, 6144
LRP = LKP + 18432; LCC = LRP + 6144; LVP = LCC + 1024; LQF = LVP + 4608; LSR = LQF + 1024; LFL = LSR + 1536
def load_uk(a, base, off=128, lo=0, hi=8, v=4, rm=None):
    if lo == hi: return
    rm = rm or (lambda j: (off + 4*j, off + 32 + 2*j))
    a(f'''s_mul_i32 s40, s41, 192
s_lshl_b32 s42, s3, 5
s_add_u32 s40, s40, s42
s_add_u32 s40, s40, {lo}
v_lshl_add_u32 v{v}, v3, 3, s40
v_mul_u32_u24 v{v}, 12288, v{v}
s_mul_i32 s40, s47, 384
v_add_u32 v{v}, s40, v{v}
v_lshl_add_u32 v{v+1}, v2, 3, v{v}
v_lshl_add_u32 v{v}, v2, 4, v{v}''')
    for j in range(lo, hi):
        a(f'global_load_dwordx4 {vr(rm(j)[0],4)}, v{v}, {base} nt')
        a(f'global_load_dwordx2 {vr(rm(j)[1],2)}, v{v+1}, {base} offset:256 nt')
        if j < hi - 1: a(f'v_add_u32 v{v}, 12288, v{v}\nv_add_u32 v{v+1}, 12288, v{v+1}')
def perm12(a, dst, src=128, rm=None):
    rm = rm or (lambda j: (src + 4*j, src + 32 + 2*j))
    for e in range(12):
        w, ee = (0, e) if e < 8 else (1, e - 8)
        for k in range(4):
            a(f'v_perm_b32 v{dst+4*e+k}, v{rm(2*k+1)[w]+(ee>>1)}, v{rm(2*k)[w]+(ee>>1)}, {PHI if ee & 1 else PLO}')
def mfma12(a, D, A, F):
    for e in range(12): a(f'v_mfma_f32_16x16x32_bf16 {vr(D+4*e,4)}, {vr(A,4)}, {vr(F+4*e,4)}, 0')
def out12_prep(a, v, lbase):
    a(f's_mul_i32 s40, s3, 768\ns_add_u32 s40, s40, {lbase}\nv_lshl_add_u32 v{v}, v2, 5, s40\nv_lshl_add_u32 v{v+1}, v2, 4, s40')
def out12(a, D, o, v):
    for e in range(12): a(f'v_add_f32 v{o+e}, v{D+4*e}, v{D+4*e+1}')
    a.lanes_lt(16)
    a(f'ds_write_b128 v{v}, {vr(o,4)}\nds_write_b128 v{v}, {vr(o+4,4)} offset:16\nds_write_b128 v{v+1}, {vr(o+8,4)} offset:512')
    a.full()
def weights_out(a, val, lbase, k):
    a(f'''v_cvt_pk_bf16_f32 v8, v{val}, v{val}
ds_write_b16 v4, v8 offset:{lbase + 128*k}
v_and_b32 v9, 0xffff0000, v8
v_sub_f32 v9, v{val}, v9
v_cvt_pk_bf16_f32 v9, v9, v9
ds_write_b16 v4, v9 offset:{lbase + 256 + 128*k}''')

def role_A(a):
    P = a.P
    a(f'''s_and_b32 s44, s2, 7
s_lshl_b32 s44, s44, 4
s_bfe_u32 s40, s2, 0x40003
s_add_u32 s44, s44, s40
s_xor_b32 s43, s44, {P['s1x']}
s_cmp_lt_u32 s44, 64
s_cselect_b32 s43, s44, s43
s_mul_i32 s39, s43, 205
s_lshr_b32 s39, s39, 11          ; kp
s_mul_i32 s40, s39, 10
s_sub_u32 s38, s43, s40          ; mg
s_lshr_b32 s47, s44, 2           ; head
s_and_b32 s41, s44, 3            ; quarter
v_mov_b32 v12, 0
s_mul_i32 s40, s39, 80
s_lshl_b32 s42, s3, 4
s_add_u32 s40, s40, s42
v_lshl_add_u32 v5, v3, 2, s40      ; row0
v_mul_u32_u24 v4, 7680, v5
v_lshrrev_b32 v6, 3, v2
v_mul_u32_u24 v6, 1152, v6
v_lshl_add_u32 v6, v2, 4, v6
s_lshl_b32 s42, s38, 7
v_add3_u32 v4, v4, v6, s42
v_lshlrev_b32 v5, 1, v5
s_waitcnt lgkmcnt(0)''')
    a.stamp('start')
    a.wave_is('lt', 5, 'LA_nos1')
    a('s_cmp_lt_u32 s39, 8\ns_cbranch_scc0 LA_nos1')
    a(f'global_load_dwordx2 v[32:33], v5, {CC}')
    a.load_rows(16, 4, 4, WMOD, 7680, rows=4)
    a(f'global_load_dword v15, v12, {WS} sc1')
    U1 = P['uk1']
    load_uk(a, WUK, hi=U1)
    a.stamp('x1')
    a('s_branch LA2')

def role_A2(a):
    P = a.P; U1 = P['uk1']
    a.label('LA2')
    consts(a)
    a(f'''s_waitcnt vmcnt({5+2*U1})
v_lshlrev_b32 v36, 16, v32
v_and_b32 v37, 0xffff0000, v32
v_lshlrev_b32 v38, 16, v33
v_and_b32 v39, 0xffff0000, v33''')
    a.stamp('x2')
    for i in range(4): a.silu(36 + i, 36 + i, 8)
    a.stamp('x3')
    a(f'''v_perm_b32 v34, v37, v36, {PHI}
v_perm_b32 v35, v39, v38, {PHI}
v_cmp_eq_u32 vcc, 1, v3
v_lshlrev_b32 v4, 5, v2
v_lshl_add_u32 v4, v3, 4, v4
s_lshl_b32 s40, s3, 9
v_add_u32 v4, s40, v4''')
    a(f's_waitcnt vmcnt({1+2*U1})')
    a.stamp('x4')
    for e in range(8):
        for k in range(2):
            a(f'v_perm_b32 v{40+2*e+k}, v{16+(2*k+1)*4+(e>>1)}, v{16+2*k*4+(e>>1)}, {PHI if e & 1 else PLO}')
        a(f'v_mfma_f32_16x16x16_bf16 {vr(64+4*e,4)}, v[34:35], {vr(40+2*e,2)}, 0')
    for i in range(4): a(f'v_cndmask_b32 v{8+i}, v{64+4*i}, v{64+4*(i+4)}, vcc')
    a.lanes_lt(32)
    a('ds_write_b128 v4, v[8:11]')
    a.full()
    a(f's_waitcnt vmcnt({2*U1})')
    a.get_tag()
    a('s_branch LA_b1')
    a.label('LA_nos1')
    a('s_getreg_b32 s16, hwreg(HW_REG_XCC_ID, 0, 4)' if False else 's_nop 0')
    a(f'global_load_dword v15, v12, {WS} sc1')
    a.wave_is('lt', 6, 'LA_nos1b')
    load_uk(a, WUK, hi=U1)
    a.label('LA_nos1b')
    consts(a)
    a.wave_is('eq', 7, 'LA_not7')
    neg1(a)
    a(f'''s_mul_i32 s40, s41, 12288
s_lshr_b32 s42, s47, 4
s_lshl_b32 s42, s42, 10
s_add_u32 s40, s40, s42
s_and_b32 s42, s47, 15
s_lshl_b32 s42, s42, {4 if P['h2lay'] else 6}
s_add_u32 s40, s40, s42
s_add_u32 s40, s40, {H2}
v_lshrrev_b32 v4, 2, v1
v_min_u32 v4, 5, v4
v_lshlrev_b32 v4, 11, v4
v_and_b32 v5, 3, v1
v_lshl_add_u32 v4, v5, {8 if P['h2lay'] else 4}, v4
v_add_u32 v4, s40, v4
global_store_dwordx4 v4, v[8:11], {WS} sc1''')
    a.ready_publish()
    a(f'''s_mul_i32 s40, s44, 3072
s_add_u32 s40, s40, {H4S}
v_lshl_add_u32 v4, v1, 4, s40
global_store_dwordx4 v4, v[8:11], {WS} sc1
global_store_dwordx4 v4, v[8:11], {WS} offset:1024 sc1
global_store_dwordx4 v4, v[8:11], {WS} offset:2048 sc1
s_lshl_b32 s40, s47, 13
s_lshl_b32 s42, s41, 9
s_add_u32 s40, s40, s42
s_add_u32 s40, s40, {SIDE}
v_lshrrev_b32 v4, 5, v1
v_lshlrev_b32 v4, 11, v4
v_and_b32 v5, 31, v1
v_lshl_add_u32 v4, v5, 4, v4
v_add_u32 v4, s40, v4
v_add_u32 v5, 4096, v4
global_store_dwordx4 v4, v[8:11], {WS} sc1
global_store_dwordx4 v5, v[8:11], {WS} sc1
s_mul_i32 s40, s44, 6144
s_add_u32 s40, s40, {H4G}
v_lshl_add_u32 v4, v1, 4, s40
v_add_u32 v5, 3072, v4
global_store_dwordx4 v4, v[8:11], {WS} offset:0 sc1
global_store_dwordx4 v4, v[8:11], {WS} offset:1024 sc1
global_store_dwordx4 v4, v[8:11], {WS} offset:2048 sc1
global_store_dwordx4 v5, v[8:11], {WS} offset:0 sc1
global_store_dwordx4 v5, v[8:11], {WS} offset:1024 sc1
global_store_dwordx4 v5, v[8:11], {WS} offset:2048 sc1
s_mul_i32 s40, s47, 3072
s_lshl_b32 s42, s41, 8
s_add_u32 s40, s40, s42
s_add_u32 s40, s40, {H5}
v_min_u32 v4, 2, v3
v_lshlrev_b32 v4, 10, v4
v_lshl_add_u32 v4, v2, 4, v4
v_add_u32 v4, s40, v4
global_store_dwordx4 v4, v[8:11], {WS} sc1''')
    a('s_branch LA_b1')
    a.label('LA_not7')
    a.wave_is('eq', 6, 'LA_b1')
    code_warm(a)
    if P['tlb']:
        a(f'''s_mov_b32 s50, 196608
v_mul_lo_u32 v4, v1, s50
global_load_dword v14, v4, {CKV} nt
v_lshlrev_b32 v4, 17, v1
global_load_dword v14, v4, {WS} offset:64 nt''')
    a.label('LA_b1')
    a(f'''v_lshlrev_b32 v4, 2, v1
s_lshl_b32 s40, s38, 13
s_lshl_b32 s42, s39, 7
s_add_u32 s40, s40, s42
s_add_u32 s40, s40, {H1}
v_lshrrev_b32 v5, 3, v1
v_lshlrev_b32 v5, 10, v5
v_and_b32 v6, 7, v1
v_lshl_add_u32 v5, v6, 4, v5
v_add_u32 v5, s40, v5
v_mov_b32 v9, {TAG}
v_mov_b32 v11, {TAG}''')
    a('s_cmp_lt_u32 s39, 8\ns_cbranch_scc0 LA_u80')
    a.bar()
    a.wave_is('eq', 0, 'LA_uk0')
    for w in range(5): a(f'ds_read2st64_b32 {vr(16+2*w,2)}, v4 offset0:{2*w} offset1:{2*w+1}')
    a(f'''s_waitcnt lgkmcnt(0)
v_add_f32 v16, v16, v18
v_add_f32 v17, v17, v19
v_add_f32 v20, v20, v22
v_add_f32 v21, v21, v23
v_add_f32 v16, v16, v20
v_add_f32 v17, v17, v21
v_add_f32 v8, v16, v24
v_add_f32 v10, v17, v25
global_store_dwordx4 v5, v[8:11], {WS} sc1''')
    a.stamp('h1pub')
    a.label('LA_uk0')
    a('s_barrier\ns_branch LA_uk')
    a.label('LA_u80')
    if P['sl_a80']: a(f's_sleep {P["sl_a80"]}')
    a.label('LA_uk')
    a.wave_is('lt', 6, 'LA_nouk')
    load_uk(a, WUK, lo=U1)
    V1 = P['uv1']
    rmv = lambda j: (224 + 4*j, 244 + 2*j) if j < V1 else (128 + 4*j, 160 + 2*j)
    load_uk(a, WUV, hi=V1, rm=rmv)
    a.label('LA_nouk')
    a(f'''s_mul_i32 s40, s47, 15360
s_mul_i32 s42, s3, 192
s_add_u32 s40, s40, s42
s_add_u32 s40, s40, {H1B}
v_min_u32 v5, 11, v2
v_mul_u32_u24 v4, 1536, v3
v_lshl_add_u32 v4, v5, 4, v4
v_add_u32 v4, s40, v4
v_add_u32 v7, 6144, v4
v_add_u32 v13, 12288, v4
s_mul_i32 s40, s3, 48
v_and_b32 v8, 1, v3
v_lshl_add_u32 v5, v5, 1, v8
v_lshl_add_u32 v5, v5, 1, s40      ; (24w+2dp+(g&1))*2
v_lshlrev_b32 v40, 5, v2
v_lshlrev_b32 v41, 4, v2
v_lshlrev_b32 v42, 1, v5
s_mul_i32 s40, s41, 6
s_add_u32 s40, s40, s3
s_lshl_b32 s40, s40, 11
s_lshr_b32 s42, s47, 4
s_lshl_b32 s42, s42, 10
s_add_u32 s40, s40, s42
s_and_b32 s42, s47, 15
s_lshl_b32 s42, s42, {4 if P['h2lay'] else 6}
s_add_u32 s40, s40, s42
s_add_u32 s40, s40, {H2}
v_lshl_add_u32 v6, v3, {8 if P['h2lay'] else 4}, s40
s_waitcnt vmcnt(0)''')
    a.get_tag()
    a(f'v_mov_b32 v24, 0\nv_mov_b32 v25, {TAG}\nv_mov_b32 v26, 0\nv_mov_b32 v27, {TAG}')
    a.stamp('uk')
    def U(j, k): n = j*6 + k; return 64 + 2*n if n < 32 else 176 + 2*(n - 32)
    def unp():
        a.wave_is('lt', 6, 'LA_nounp')
        for j in range(8):
            for k in range(6):
                src = 128 + 4*j + k if k < 4 else 160 + 2*j + (k - 4)
                a(f'v_lshlrev_b32 v{U(j,k)}, 16, v{src}\nv_and_b32 v{U(j,k)+1}, 0xffff0000, v{src}')
        a.label('LA_nounp')
    if P['probe_h1b']: a.probe(7, 8, off=4, sleep=P['sl_pr'], post=P['post_h1b'], tag=True, mask=0x0001000100010001)
    def ld():
        a(f'global_load_dwordx4 v[16:19], v4, {WS} sc1\nglobal_load_dwordx4 v[20:23], v7, {WS} sc1')
        a.lanes_lt(32)
        a(f'global_load_dwordx4 v[24:27], v13, {WS} sc1')
        a.full()
    a.poll(ld, lambda: a.chk_tag(range(17, 28, 2), 8), sleep=P['sl_h1b'], mid=unp)
    a.stamp('h1b')
    a('s_setprio 3')
    a(f'''v_add_f32 v16, v16, v20
v_add_f32 v18, v18, v22
v_add_f32 v16, v16, v24
v_add_f32 v18, v18, v26
v_permlane16_swap_b32 v16, v18
v_add_f32 v16, v16, v18
v_mov_b32 v18, v16
v_permlane32_swap_b32 v16, v18
v_add_f32 v16, v16, v18
v_cvt_pk_bf16_f32 v16, v16, v16
v_and_b32 v17, 0xffff0000, v16
ds_write_b32 v42, v17 offset:{LQF}
ds_write_b16 v5, v16 offset:{LQ}''')
    a.bar()
    a.wave_is('lt', 6, 'LA_nos3')
    a(f'ds_read_b128 v[44:47], v40 offset:{LQF}\nds_read_b128 v[48:51], v40 offset:{LQF+16}\nds_read_b128 v[52:55], v41 offset:{LQF+512}')
    for k in range(6):
        if k in (0, 2, 4): a(f's_waitcnt lgkmcnt({2 - k//2})')
        for j in range(8):
            if k == 0: a(f'v_pk_mul_f32 {vr(208+2*j,2)}, {vr(U(j,k),2)}, {vr(44+2*k,2)}')
            else: a(f'v_pk_fma_f32 {vr(208+2*j,2)}, {vr(U(j,k),2)}, {vr(44+2*k,2)}, {vr(208+2*j,2)}')
    for j in range(8): a(f'v_add_f32 v{24+j}, v{208+2*j}, v{209+2*j}')
    for i in range(4): a(f'v_add_f32_dpp v{32+i}, v{24+i}, v{24+i} row_ror:8 row_mask:0xf bank_mask:0x3')
    for i in range(4): a(f'v_add_f32_dpp v{32+i}, v{28+i}, v{28+i} row_ror:8 row_mask:0xf bank_mask:0xc')
    for i in range(2): a(f'v_add_f32_dpp v{36+i}, v{32+i}, v{32+i} row_shl:4 row_mask:0xf bank_mask:0x5')
    for i in range(2): a(f'v_add_f32_dpp v{36+i}, v{34+i}, v{34+i} row_shr:4 row_mask:0xf bank_mask:0xa')
    for qp in ('[2,3,0,1]', '[1,0,3,2]'):
        for i in range(2): a(f'v_add_f32_dpp v{36+i}, v{36+i}, v{36+i} quad_perm:{qp} row_mask:0xf bank_mask:0xf')
    a('v_cvt_pk_bf16_f32 v36, v36, v37')
    a.san([36])
    for i in range(1, 4): a(f'v_mov_b32_dpp v{36+i}, v36 row_shl:{4*i} row_mask:0xf bank_mask:0xf')
    a.exec_mask(0x0001000100010001)
    a(f'global_store_dwordx4 v6, v[36:39], {WS} sc1')
    a.full()
    a.stamp('h2pub')
    a('s_setprio 0')
    a('s_barrier')
    perm12(a, 64)
    if P['sl_uv']:
        if P['uv_ad']: a(f's_cmp_lt_u32 {SPIN}, {P["uv_ad"]}\ns_cbranch_scc1 LA_nsl')
        a(f's_sleep {P["sl_uv"]}')
        a.label('LA_nsl')
    load_uk(a, WUV, lo=V1, rm=rmv)
    a('s_waitcnt vmcnt(0)')
    perm12(a, 176, rm=rmv)
    a.stamp('wuv')
    a('s_branch LA_s3d')
    a.label('LA_nos3')
    a(f'v_lshlrev_b32 v4, 2, v1\nds_write_b32 v4, v12 offset:{LWP}\nv_and_b32 v4, 12, v4\nds_write_b32 v4, v12 offset:{LFL}\ns_setprio 0')
    a.bar()
    if P['pv_local'] and P['pf_pol'] < 3:
        if P['sl_pf']: a(f's_sleep {P["sl_pf"]}')
        a(f'''s_mul_i32 s40, s44, {CP}
s_and_b32 s42, s3, 1
s_mul_i32 s42, s42, {200*128}
s_add_u32 s40, s40, s42
s_add_u32 s40, s40, {H4}
v_lshl_add_u32 v4, v1, 7, s40''')
        for i in range(4):
            if i == 3: a.lanes_lt(8)
            a(f'global_load_dword v14, v4, {WS} {["nt", "", "sc1"][P["pf_pol"]]}')
            if i < 3: a('v_add_u32 v4, 8192, v4')
        a.full()
    a.label('LA_s3d')
    def fl_wait(i, lab, n=1): a.lds_wait(12, n, off=LFL + 4*i)
    def fl_set(i): a(f'v_mov_b32 v8, 1\nds_write_b32 v12, v8 offset:{LFL + 4*i}')
    def fl_add(i): a(f'v_mov_b32 v8, 1\ns_mov_b64 exec, 1\nds_add_u32 v12, v8 offset:{LFL + 4*i}\ns_mov_b64 exec, -1')
    def l2addr(v):
        a(f'''s_lshl_b32 s40, s3, 7
s_mul_i32 s42, s44, 6144
s_add_u32 s42, s42, s40
s_add_u32 s42, s42, {H4G}
v_and_b32 v{v}, 31, v1
v_lshrrev_b32 v{v+1}, 5, v1
v_mul_u32_u24 v{v+1}, 3072, v{v+1}
v_lshl_add_u32 v{v}, v{v}, 2, s42
v_add_u32 v{v}, v{v}, v{v+1}''')
    def esel(sh, probe):
        a(f'''s_lshl_b32 s40, {sh}, 11
s_add_u32 s40, s40, {H3}
v_lshl_add_u32 v4, v1, 4, s40
s_and_b32 s42, s47, 15
s_lshl_b32 s42, s42, 7
s_add_u32 s42, s42, {DB3}
v_lshl_add_u32 v5, v1, 11, s42
s_mov_b32 s48, {f2u(-1/64):#x}
v_mov_b32 v24, {NEGINF:#x}''')
        if probe: a.probe(5, 8, off=4, sleep=P['sl_pr3'], post=P['post_h3'], tag=True, mask=0xff)
        a.poll(lambda: a(f'global_load_dwordx4 v[28:31], v4, {WS} sc1\nglobal_load_dwordx4 v[32:35], v4, {WS} offset:1024 sc1'),
               lambda: a.chk_tag(range(29, 36, 2), 8), sleep=P['sl_h3'])
        a.stamp('h3')
        a('v_max_f32 v20, v28, v32\nv_mov_b32 v16, v28\nv_mov_b32 v18, v32')
        a.wave_red('v_max_f32', 20, 21)
        a(f'''v_and_b32 v21, 0x7f800000, v20
v_fma_f32 v20, v21, s48, v20
v_cmp_ge_f32 s[50:51], v16, v20
v_cmp_ge_f32 s[52:53], v18, v20
s_bcnt1_i32_b64 s49, s[50:51]
v_mbcnt_lo_u32_b32 v22, s50, 0
v_mbcnt_hi_u32_b32 v22, s51, v22
v_mov_b32 v23, s49
v_mbcnt_lo_u32_b32 v23, s52, v23
v_mbcnt_hi_u32_b32 v23, s53, v23
v_cmp_gt_u32 vcc, 4, v22
s_and_b64 s[50:51], s[50:51], vcc
v_cmp_gt_u32 vcc, 4, v23
s_and_b64 s[52:53], s[52:53], vcc''')
    def l1w():
        a(f'''s_lshr_b32 s40, s44, 4
s_lshl_b32 s42, 0x01010101, s40
s_mov_b32 s43, s42
v_cndmask_b32 v36, 15, v22, s[50:51]
v_cndmask_b32 v38, 15, v23, s[52:53]
v_mov_b32 v37, {TAG}
v_mov_b32 v39, {TAG}
s_lshl_b32 s40, s40, 12
s_lshl_b32 s49, s46, 3
s_add_u32 s40, s40, s49
s_add_u32 s40, s40, {MB}
v_lshrrev_b32 v5, 3, v1
v_lshl_add_u32 v4, v5, 8, s40
s_mov_b64 exec, s[42:43]''')
        a.st_local('s[38:39]', f'global_store_dwordx2 v4, v[36:37], {WS}', f'global_store_dwordx2 v4, v[38:39], {WS} offset:2048')
        a(f'''s_mov_b64 exec, -1
s_andn2_b64 s[50:51], s[42:43], s[50:51]
s_andn2_b64 s[52:53], s[42:43], s[52:53]
v_cndmask_b32 v16, v24, v16, s[50:51]
v_cndmask_b32 v18, v24, v18, s[52:53]
v_max_f32 v20, v16, v18
s_and_b32 s40, s3, 1
s_mul_i32 s49, s40, 96
v_lshrrev_b32 v5, 3, v1
v_lshl_add_u32 v4, v5, 1, s49
s_lshl_b32 s49, s40, 6
v_lshl_add_u32 v5, v5, 2, s49
s_lshl_b32 s49, s40, 2
v_mov_b32 v6, s49''')
        a.wave_red('v_max_f32', 20, 21)
        a(f'''v_sub_f32 v16, v16, v20
v_sub_f32 v18, v18, v20
v_mul_f32 v16, s56, v16
v_mul_f32 v18, s56, v18
v_exp_f32 v16, v16
v_exp_f32 v18, v18
ds_write_b32 v6, v20 offset:{LFW+96}
v_cvt_pk_bf16_f32 v8, v16, v18
v_lshlrev_b32 v9, 16, v8
v_and_b32 v10, 0xffff0000, v8
v_sub_f32 v9, v16, v9
v_sub_f32 v10, v18, v10
v_cvt_pk_bf16_f32 v9, v9, v10
s_mov_b64 exec, s[42:43]
ds_write_b16 v4, v8 offset:{LWP}
ds_write_b16_d16_hi v4, v8 offset:{LWP+16}
ds_write_b16 v4, v9 offset:{LWP+128}
ds_write_b16_d16_hi v4, v9 offset:{LWP+144}
ds_write_b32 v5, v16 offset:{LWT}
ds_write_b32 v5, v18 offset:{LWT+32}
s_mov_b64 exec, -1''')
        fl_add(1)
    a(f'''s_getreg_b32 s16, hwreg(HW_REG_XCC_ID, 0, 4)
s_and_b32 s40, s2, 7
s_lshl_b32 s40, s40, 4
s_add_u32 s40, s40, {READY}
v_and_b32 v4, 31, v1
v_lshl_add_u32 v4, v4, 7, s40''')
    a.poll(lambda: a(f'global_load_dwordx2 v[8:9], v4, {WS} sc1'), lambda: a.chk_tag([8], 10), sleep=4)
    a('v_cmp_ne_u32 s[38:39], s16, v9')
    a('s_and_b32 s46, s44, 15\ns_lshl_b32 s46, s46, 1\ns_and_b32 s40, s3, 1\ns_add_u32 s46, s46, s40')
    a.wave_is('ge', 6, 'LA_n6')
    esel('s46', P['probe_h3'])
    l1w()
    a.label('LA_n6')
    a.wave_is('eq', 5, 'LA_noh3')
    esel('s47', P['probe_h3'])
    a(f'''v_and_b32 v17, 63, v30
v_and_b32 v19, 63, v34
v_lshl_add_u32 v17, v1, 6, v17
v_lshl_add_u32 v19, v1, 6, v19
v_add_u32 v19, 4096, v19
v_lshlrev_b32 v4, 2, v1
v_mov_b32 v25, 999
v_add_u32 v26, 64, v1
v_lshlrev_b32 v22, 2, v22
v_lshlrev_b32 v23, 2, v23
s_mov_b64 exec, 15
ds_write_b32 v4, v17 offset:{LEK}
ds_write_b32 v4, v25 offset:{LEK+16}
s_mov_b64 exec, s[50:51]
ds_write_b32 v22, v17 offset:{LEK}
ds_write_b32 v22, v1 offset:{LEK+16}
s_mov_b64 exec, s[52:53]
ds_write_b32 v23, v19 offset:{LEK}
ds_write_b32 v23, v26 offset:{LEK+16}
s_mov_b64 exec, -1''')
    a.label('LA_noh3')
    a(f'''v_and_b32 v4, 3, v2
v_lshlrev_b32 v4, 2, v4
s_mul_i32 s40, s41, 384
s_lshl_b32 s42, s3, 6
s_add_u32 s42, s40, s42
v_lshl_add_u32 v6, v3, 4, s42
v_and_b32 v7, 31, v1
v_lshl_add_u32 v7, v7, 1, s42
s_movk_i32 s55, 1536''')
    a.bar()
    a.stamp('b3')
    a('s_setprio 3')
    a.wave_is('lt', 6, 'LA_noe')
    a(f'''ds_read_b32 v5, v4 offset:{LEK}
ds_read_b128 v[8:11], v12 offset:{LEK}
s_waitcnt lgkmcnt(1)
v_mad_u32_u24 v5, v5, s55, v6
global_load_dwordx4 v[224:227], v5, {CKV} {'nt' if P['e_nt'] else ''}
s_waitcnt lgkmcnt(0)''')
    for j in range(4): a(f'v_mad_u32_u24 v{8+j}, v{8+j}, s55, v7\nglobal_load_ushort v{232+j}, v{8+j}, {CKV} {"nt" if P["e_nt"] else ""}')
    a(f's_mul_i32 s40, s3, 3072\ns_add_u32 s40, s40, {LKP}\nv_lshl_add_u32 v4, v1, 4, s40\ns_waitcnt vmcnt(4)')
    a.stamp('erow')
    mfma12(a, 16, 224, 64)
    for t in range(3):
        d = 16 + 16*t
        for r in range(4): a(f'v_permlane16_swap_b32 v{d+r}, v{d+4+r}\nv_permlane16_swap_b32 v{d+8+r}, v{d+12+r}')
        for r in range(4): a(f'v_permlane32_swap_b32 v{d+r}, v{d+8+r}')
        a(f'ds_write_b128 v4, {vr(d,4)} offset:{1024*t}')
    a('s_branch LA_b4')
    a.label('LA_noe')
    a.label('LA_g')
    a(f'''s_lshl_b32 s40, s44, 10
s_add_u32 s40, s40, {AUX}
v_lshl_add_u32 v10, v1, 4, s40
s_and_b32 s42, s3, 1
s_mul_i32 s40, s44, {CP}
s_mul_i32 s43, s42, 768
s_add_u32 s40, s40, s43
s_add_u32 s40, s40, {H4}
v_and_b32 v9, 1, v3
v_mul_u32_u24 v4, {8*JP}, v9
v_lshrrev_b32 v11, 1, v3
v_mul_u32_u24 v5, 1536, v11
v_add3_u32 v4, v4, v5, s40
v_lshl_add_u32 v4, v2, 4, v4
v_add_u32 v5, {2*JP}, v4
v_add_u32 v6, {4*JP}, v4
v_add_u32 v7, {6*JP}, v4
v_cmp_eq_u32 s[54:55], 1, v9
s_and_b32 s40, s44, 15
s_mul_i32 s40, s40, 49152
s_lshr_b32 s43, s44, 4
s_mul_i32 s49, s43, 768
s_add_u32 s40, s40, s49
s_add_u32 s40, s40, {H4G}
v_mul_u32_u24 v55, 24576, v11
v_add_u32 v55, s40, v55
s_mul_i32 s40, s42, 384
v_lshl_add_u32 v56, v2, 3, s40
v_lshl_add_u32 v56, v9, 2, v56
s_movk_i32 s49, 683
s_movk_i32 s48, 5376''')
    for k in range(3):
        a(f'''v_add_u32 v57, {128*k}, v56
v_mul_u32_u24 v58, s49, v57
v_lshrrev_b32 v58, 17, v58
v_lshl_add_u32 v57, v57, 2, v55
v_mad_u32_u24 v{52+k}, v58, s48, v57''')
    a(f'''v_lshrrev_b32 v57, 3, v2
v_and_b32 v58, 1, v2
v_lshl_add_u32 v57, v58, 1, v57
v_lshlrev_b32 v57, 6, v57
v_lshl_add_u32 v57, v3, 4, v57
v_lshrrev_b32 v58, 2, v1
v_lshlrev_b32 v58, 2, v58          ; j*4
s_and_b32 s40, s44, 15
s_lshl_b32 s40, s40, 8
s_lshl_b32 s43, s43, 4
s_add_u32 s40, s40, s43
s_add_u32 s40, s40, {HDR}
v_lshl_add_u32 v59, v9, 7, s40
v_lshlrev_b32 v9, 2, v9''')
    a.poll(lambda: a(f'global_load_dwordx4 v[28:31], v10, {WS} sc1'), lambda: a.chk_tag([29, 31], 8), sleep=P['sl_aux'])
    a.stamp('aux')
    for k in range(3):
        for jj in range(8):
            a(f'global_load_dwordx4 {vr(64+32*k+4*jj,4)}, v{4 + (jj >> 1)}, {WS} offset:{(jj & 1)*JP + 256*k} {["sc1", "", "sc0", "nt"][P["g_pol"]]}')
    fl_wait(1, 'x', 2)
    a(f'''ds_read_b128 v[48:51], v57 offset:{LWP}
ds_read2_b32 v[32:33], v58 offset0:{LWT//4 - 1024} offset1:{LWT//4 - 1024 + 16}
ds_read_b32 v60, v9 offset:{LFW+96}
s_waitcnt lgkmcnt(0)
v_mul_f32 v32, v32, v28
v_mul_f32 v33, v33, v30
v_mov_b32 v61, {TAG}
v_mov_b32 v63, {TAG}'''.replace('v58 offset0', 'v62 offset0').replace('ds_read_b128 v[48:51]', 'v_add_u32 v62, 4096, v58\nds_read_b128 v[48:51]'))
    a.row_red('v_add_f32', [32, 33])
    a(f'''v_permlane16_swap_b32 v32, v33
v_add_f32 v32, v32, v33
v_mov_b32 v33, v32
v_permlane32_swap_b32 v32, v33
v_add_f32 v32, v32, v33
v_mul_f32 v62, 0x3e800000, v32
s_waitcnt vmcnt(16)''')
    def fin(k):
        d = 160 + 32*k; o = 28 + 4*k
        for e in range(8): a(f'v_add_f32 v{d+4*e}, v{d+4*e}, v{d+4*e+1}')
        for t in range(4): a(f'v_cndmask_b32 v{o+t}, v{d+4*t}, v{d+4*(t+4)}, s[54:55]')
        a(f'global_store_dwordx4 v{52+k}, {vr(o,4)}, {WS} sc1')
    for k in range(3):
        if k == 1: a('s_waitcnt vmcnt(8)')
        if k == 2:
            a('s_waitcnt vmcnt(0)'); a.stamp('gath'); fl_add(1)
            a(f's_cmp_eq_u32 s3, 6\ns_cbranch_scc0 LA_nh\ns_mov_b64 exec, 0x10001\nglobal_store_dwordx4 v59, v[60:63], {WS} sc1\ns_mov_b64 exec, -1\nLA_nh:')
        for e in range(8):
            f = 16 + 4*(e % 3)
            src = 64 + 32*k
            for kk in range(4):
                a(f'v_perm_b32 v{f+kk}, v{src+(2*kk+1)*4+(e>>1)}, v{src+2*kk*4+(e>>1)}, {PHI if e & 1 else PLO}')
            a(f'v_mfma_f32_16x16x32_bf16 {vr(160+32*k+4*e,4)}, v[48:51], {vr(f,4)}, 0')
    for k in range(3): fin(k)
    a.stamp('gpub')
    a.wave_is('eq', 6, 'LA_w7')
    a('s_branch LA_w6')
    a.label('LA_b4')
    a(f'v_mov_b32 v8, 1\ns_mov_b64 exec, 1\nds_add_u32 v12, v8 offset:{LFL}\ns_mov_b64 exec, -1')
    a.wave_is('lt', 3, 'LA_nopub')
    a(f'v_lshlrev_b32 v6, 4, v0\nv_add_u32 v7, {LKP}, v6\ns_mul_i32 s40, s44, 3072\ns_add_u32 s40, s40, {H4S}\nv_add_u32 v6, s40, v6')
    fl_wait(0, 'LA_f0', 6)
    a.stamp('b4')
    for w in range(6): a(f'ds_read_b128 {vr(16+4*w,4)}, v7 offset:{3072*w}')
    a('s_waitcnt lgkmcnt(0)')
    tree(a, range(16, 40, 4), n=4)
    a.st_local('s[38:39]', f'global_store_dwordx4 v6, v[16:19], {WS}')
    a.stamp('kpub')
    a('s_branch LA_l2')
    a.label('LA_nopub')
    a.wave_is('eq', 5, 'LA_l2')
    a(f'''s_mul_i32 s40, s47, 12288
s_add_u32 s40, s40, {H4S}
v_lshl_add_u32 v4, v1, 4, s40
v_add_u32 v5, 3072, v4
v_add_u32 v6, 6144, v4
v_add_u32 v7, 9216, v4
v_lshl_add_u32 v8, v2, 3, v3
v_lshlrev_b32 v8, 1, v8
v_lshl_add_u32 v9, v2, 2, v3
v_lshlrev_b32 v9, 1, v9
v_lshlrev_b32 v10, 2, v3
ds_read_u16 v64, v8 offset:{LQ}
ds_read_u16 v65, v8 offset:{LQ+8}
ds_read_u16 v66, v9 offset:{LQ+256}
ds_read_b32 v67, v10 offset:{LEK+16}
s_sleep {P['pre_h4s']}''')
    def ld():
        for qq in range(4):
            for k in range(3): a(f'global_load_dwordx4 {vr(16+(qq*3+k)*4,4)}, v{4+qq}, {WS} offset:{1024*k} sc1')
    a.poll(ld, lambda: a.chk_sent(range(16, 64), 9), sleep=P['sl_h4s'])
    l2addr(76)
    for t in range(4): a(f'global_load_dword v{80+t}, v76, {WS} offset:{768*t} sc1')
    a.stamp('h4s')
    a('s_waitcnt lgkmcnt(0)\nv_cmp_gt_u32 s[52:53], 0x80, v67' if False else 's_waitcnt lgkmcnt(0)\ns_movk_i32 s40, 128\nv_cmp_gt_u32 s[52:53], s40, v67')
    for k in range(3): a(f'v_lshlrev_b32 v{64+k}, 16, v{64+k}')
    tree(a, (16, 28, 40, 52), n=12)
    for i in range(12): a.rnd(16 + i, 16 + i)
    for j in range(4):
        a(f'v_mul_f32 v{68+j}, v{16+j}, v64\nv_fmac_f32 v{68+j}, v{20+j}, v65\nv_fmac_f32 v{68+j}, v{24+j}, v66')
    a.row_red('v_add_f32', [68, 69, 70, 71])
    a.xrow_tr4(68)
    a.rnd(68, 68)
    a('v_mul_f32 v68, s59, v68')
    a.rnd(68, 68)
    a(f'v_mov_b32 v21, {NEGINF:#x}\nv_cndmask_b32 v68, v21, v68, s[52:53]\nds_write_b32 v10, v68 offset:{LFW+112}')
    fl_add(2)
    a('s_waitcnt vmcnt(0)')
    a.chk_sent(range(80, 84), 8)
    a('s_mov_b64 s[52:53], vcc\ns_branch LA_l2b')
    a.label('LA_w7')
    a('v_lshlrev_b32 v10, 2, v3\nv_lshlrev_b32 v11, 3, v3')
    a(f'''s_lshl_b32 s40, s47, 7
s_add_u32 s40, s40, {HDR}
v_and_b32 v5, 7, v1
v_lshl_add_u32 v4, v5, 4, s40
v_lshlrev_b32 v5, 2, v5''')
    if P['pre_hdr']: a(f's_sleep {P["pre_hdr"]}')
    a.poll(lambda: a(f'global_load_dwordx4 v[236:239], v4, {WS} sc1'), lambda: a.chk_tag([237, 239], 8), sleep=P['sl_hdr'])
    a.stamp('hdr')
    fl_wait(2, 'LA_f2', 2)
    a(f'''ds_read_b64 v[228:229], v11 offset:{LFW+64}
ds_read_b32 v68, v10 offset:{LFW+112}
s_waitcnt lgkmcnt(0)
v_max3_f32 v69, v68, v228, v236''')
    a.wave_red('v_max_f32', 69, 70)
    a(f'''v_sub_f32 v68, v68, v69
v_sub_f32 v228, v228, v69
v_sub_f32 v236, v236, v69
v_mul_f32 v68, s56, v68
v_mul_f32 v228, s56, v228
v_mul_f32 v236, s56, v236
v_exp_f32 v68, v68
v_exp_f32 v228, v228
v_exp_f32 v236, v236
v_fma_f32 v70, v228, v229, v68
v_mul_f32 v71, v236, v238
v_fmac_f32 v71, 0.5, v70''')
    a.wave_red('v_add_f32', 71, 70)
    a(f'v_mul_f32 v70, {f2u(0.125):#x}, v71')
    a.recip(71, 70, 72)
    a.div(73, 68, 70, 71, 72)
    a.rnd(73, 73)
    a(f'''v_mul_f32 v74, v236, v71
v_mul_f32 v75, v228, v71
ds_write_b32 v10, v73 offset:{LFW}
ds_write_b32 v10, v75 offset:{LFW+16}
ds_write_b32 v5, v74 offset:{LFW+32}''')
    fl_set(3)
    a('s_branch LA_nov')
    a.label('LA_w6')
    a(f'''v_lshlrev_b32 v10, 2, v3
ds_read_b32 v11, v10 offset:{LEK+16}
s_lshl_b32 s40, s47, 13
s_lshl_b32 s42, s41, 9
s_add_u32 s40, s40, s42
s_add_u32 s40, s40, {SIDE}
v_lshl_add_u32 v6, v3, 11, s40
v_lshl_add_u32 v4, v2, 4, v6
v_lshl_add_u32 v5, v2, 3, v6
v_mul_u32_u24 v9, 384, v3
v_lshl_add_u32 v7, v2, 4, v9
v_lshl_add_u32 v9, v2, 3, v9
v_lshlrev_b32 v10, 3, v3
v_mov_b32 v24, {NEGINF:#x}
v_mov_b32 v26, 0
s_movk_i32 s40, 128
s_waitcnt lgkmcnt(0)
v_cmp_gt_u32 s[52:53], s40, v11''')
    for i in range(6): a(f'v_mov_b32 v{16+i}, 0')
    a('s_mov_b64 exec, s[52:53]')
    def ck():
        a.chk_sent(range(16, 22), 8)
        a(f'v_cmp_ne_u32 s[50:51], {TAG}, v25\ns_or_b64 vcc, vcc, s[50:51]\nv_cmp_ne_u32 s[50:51], {TAG}, v27\ns_or_b64 vcc, vcc, s[50:51]')
    a.poll(lambda: a(f'global_load_dwordx4 v[16:19], v4, {WS} sc1\nglobal_load_dwordx2 v[20:21], v5, {WS} offset:256 sc1\nglobal_load_dwordx4 v[24:27], v6, {WS} offset:384 sc1'),
           ck, sleep=P['sl_side'])
    a.full()
    a.stamp('side')
    a(f'v_mov_b32 v25, v26\nds_write_b128 v7, v[16:19] offset:{LSR}\nds_write_b64 v9, v[20:21] offset:{LSR+256}\nds_write_b64 v10, v[24:25] offset:{LFW+64}')
    fl_add(2)
    a('s_branch LA_nov')
    a.label('LA_l2')
    a('s_mov_b64 s[52:53], -1')
    a.label('LA_l2b')
    a(f'''s_lshl_b32 s40, s3, 7
v_and_b32 v4, 31, v1
v_lshl_add_u32 v5, v4, 1, s40
s_lshl_b32 s42, s3, 6
v_lshl_add_u32 v7, v4, 1, s42
v_lshl_add_u32 v4, v4, 2, s40
v_lshrrev_b32 v9, 5, v1
v_mul_u32_u24 v10, 3072, v9
v_lshlrev_b32 v9, 4, v9
s_mul_i32 s42, s44, 6144
s_add_u32 s42, s42, {H4G}
v_add3_u32 v4, v4, v10, s42
v_mov_b32 v20, 0
v_mov_b32 v21, 0
v_mov_b32 v22, 0
v_mov_b32 v23, 0''')
    frag2_addr(a, 6, 's40')
    out12_prep(a, 248, LVP)
    for t in range(4): a(f'v_mov_b32 v{16+t}, v{80+t}')
    a('s_cmp_eq_u64 s[52:53], 0\ns_cbranch_scc1 LA_l2c')
    fl_wait(1, 'x', 4)
    if P['pre_l2']: a(f's_sleep {P["pre_l2"]}')
    def ld():
        for t in range(4): a(f'global_load_dword v{16+t}, v4, {WS} offset:{768*t} sc1')
    a.poll(ld, lambda: a.chk_sent(range(16, 20), 8), sleep=P['sl_l2'])
    a.label('LA_l2c')
    a.stamp('l2')
    for j in range(4): a(f'v_lshlrev_b32 v{232+j}, 16, v{232+j}')
    fl_wait(3, 'x')
    a.stamp('b6')
    for j in range(4): a(f'ds_read_u16_d16_hi v{20+j}, v7 offset:{LSR + 384*j}')
    a(f'ds_read_b128 v[24:27], v12 offset:{LFW}\nds_read_b128 v[28:31], v12 offset:{LFW+16}\nds_read_b128 v[32:35], v9 offset:{LFW+32}')
    a(f'''s_waitcnt lgkmcnt(0)
v_mul_f32 v16, v16, v32
v_mul_f32 v24, v24, v232
v_mul_f32 v28, v28, v20
v_fmac_f32 v16, v17, v33
v_fmac_f32 v24, v25, v233
v_fmac_f32 v28, v29, v21
v_fmac_f32 v16, v18, v34
v_fmac_f32 v24, v26, v234
v_fmac_f32 v28, v30, v22
v_fmac_f32 v16, v19, v35
v_fmac_f32 v24, v27, v235
v_fmac_f32 v28, v31, v23
v_mov_b32 v17, v16
v_add_f32 v24, v24, v28
v_permlane32_swap_b32 v16, v17
v_add3_f32 v16, v16, v17, v24
v_cvt_pk_bf16_f32 v17, v16, v16
ds_write_b16 v5, v17 offset:{LCC}
v_and_b32 v18, 0xffff0000, v17
v_sub_f32 v18, v16, v18
v_cvt_pk_bf16_f32 v18, v18, v18
ds_write_b16 v5, v18 offset:{LCC+64}
s_waitcnt lgkmcnt(0)
ds_read_b128 v[224:227], v6 offset:{LCC}
s_waitcnt lgkmcnt(0)'''.replace('v_add3_f32 v16, v16, v17, v24', 'v_add_f32 v16, v16, v17\nv_add_f32 v16, v16, v24'))
    mfma12(a, 128, 224, 176)
    out12(a, 128, 16, 248)
    a.label('LA_nov')
    a(f'''v_lshlrev_b32 v4, 4, v1
s_mul_i32 s40, s47, 3072
s_lshl_b32 s42, s41, 8
s_add_u32 s40, s40, s42
s_add_u32 s40, s40, {H5}
v_lshlrev_b32 v5, 10, v3
v_lshl_add_u32 v5, v2, 4, v5
v_add_u32 v5, s40, v5''')
    a.bar()
    a.wave_is('eq', 0, 'Lfin')
    for w in range(6): a(f'ds_read_b128 {vr(16+4*w,4)}, v4 offset:{LVP + 768*w}')
    a('s_waitcnt lgkmcnt(0)')
    tree(a, range(16, 40, 4), n=4)
    a.lanes_lt(48)
    a.st_local('s[38:39]', f'global_store_dwordx4 v5, v[16:19], {WS}')
    a.full()
    a.stamp('h5pub')
    a(f'''s_add_u32 s40, s44, s3
s_cmp_eq_u32 s40, 0
s_cbranch_scc0 Lfin
v_mov_b32 v5, {TAG}
global_store_dword v12, v5, {WS} sc1''')

DEFAULTS = dict(code_last=0x1000, stamps=False, warm_loads=2, sl_pr=1, sl_pr3=4, sl_h1=3, sl_h1b=1, sl_h2=4, sl_h3=2, sl_aux=1, sl_h4s=1, sl_h5=1, sl_h6=3, sl_h7=2, sl_x2=4, sl_lw=1, lw_cnt=4, dma1=5, sl_top2=4, pre_h7=12, s1x=32, rot=0, uv_ad=0, sl_dma=0, sl_b80=0, uv1=0, h2lay=0, dma8=0, bpf=0, pf_pol=2, sl_pf=10, pre_hdr=8, pv_local=0, g_pol=0, pre_l2=6, sl_hdr=2, sl_l2=2, local=1, early_late=1, sl_pr2=4, sl_dma2=0, m_h2=0, m_h6=0, k_h2=255, pre_aux=8, swap=0, sl_a80=30, pre_h1=0, tlb=0, e_nt=0, pv_nt=0, uk1=0, ew_cnt=4, sl_el=1, pre_side=12, sl_side=2, sl_uv=20, pre_h4s=4, sl_top=6,
    probe_h1b=0, post_h1b=1, probe_h2=1, post_h2=0, probe_h3=1, post_h3=0, probe_aux=0, post_aux=2, probe_h5=0, post_h5=1, probe_h6=0, post_h6=1, probe_h7=1, post_h7=0)

def generate(**kw):
    P = dict(DEFAULTS); P.update(kw)
    a = G(P)
    a(f'''s_cmp_ge_u32 s2, 256
s_cbranch_scc1 Lend
s_load_dwordx16 s[4:19], s[0:1], 0
{'s_xor_b32 s2, s2, 128' if P['swap'] else 's_nop 0'}
s_load_dwordx8 s[20:27], s[0:1], 64
{f's_add_u32 s3, s2, {P["rot"]}' if P['rot'] else ''}
{'s_and_b32 s3, s3, 7' if P['rot'] else ''}
{'s_andn2_b32 s2, s2, 7' if P['rot'] else ''}
{'s_or_b32 s2, s2, s3' if P['rot'] else ''}
s_load_dwordx4 s[28:31], s[0:1], 96
s_getpc_b64 s[36:37]
Lpc:
v_lshrrev_b32 v4, 6, v0
v_and_b32 v1, 63, v0
v_readfirstlane_b32 s3, v4
v_and_b32 v2, 15, v0
v_lshrrev_b32 v3, 4, v1''')
    if P['stamps']:
        for i in range(21): a(f's_mov_b64 s[{60+2*i}:{61+2*i}], 0')
    if P.get('dbgtime') or P.get('padto'): a('s_memrealtime s[60:61]')
    a('s_cmp_lt_u32 s2, 128\ns_cbranch_scc1 LB')
    role_A(a)
    namesA = a.stnames; a.stnames = []
    a.label('LB')
    role_B(a)
    namesB = a.stnames; a.stnames = namesA
    role_A2(a)
    a('s_branch Lfin')
    namesA = a.stnames; a.stnames = namesB
    role_B2(a)
    namesB = a.stnames
    a.label('Lfin')
    if P['stamps']:
        a(f'''s_waitcnt lgkmcnt(0)
s_lshl_b32 s40, s2, 3
s_add_u32 s40, s40, s3
s_lshl_b32 s40, s40, 7
s_add_u32 s40, s40, {STAMP}
v_mov_b32 v4, s40''')
        for i in range(21): a(f'v_mov_b32 v5, s{60+2*i}\nglobal_store_dword v4, v5, {WS} offset:{4*i}')
    if P.get('dbgtime'):
        a(f'''s_memrealtime s[62:63]
s_cmp_eq_u32 s3, 7
s_cbranch_scc0 Lend
s_and_b32 s40, s2, 31
s_cmp_eq_u32 s40, 31
s_cbranch_scc0 Lend
s_waitcnt lgkmcnt(0)
s_lshr_b32 s40, s2, 5
s_lshl_b32 s40, s40, 3
v_mov_b32 v4, s40
v_mov_b32 v6, s60
v_mov_b32 v7, s62
s_mov_b64 exec, 1
global_store_dwordx2 v4, v[6:7], s[28:29]''')
    if P.get('padto'):
        a(f'''s_add_u32 s40, s2, s3
s_cmp_eq_u32 s40, 0
s_cbranch_scc0 Lend
Lpad:
s_memrealtime s[62:63]
s_waitcnt lgkmcnt(0)
s_sub_u32 s40, s62, s60
s_cmp_lt_u32 s40, {P['padto']}
s_cbranch_scc1 Lpad''')
    a.label('Lend')
    a('s_endpgm')
    a.raw('Lcode_end:')
    hdr = open(f'cdna_kernels/{NAME}.s.ref').read().split('; Override launch')[0]
    lds = MISC + 8192 + 256
    txt = hdr + f'''; @launch grid=(256,1,1) block=(512,1,1) lds={lds}
.amdgcn_target "amdgcn-amd-amdhsa--gfx950"
.text
.globl {NAME}_kernel
.p2align 8
.type {NAME}_kernel,@function
.set CODE_LAST, {P['code_last']:#x}
{NAME}_kernel:
''' + a.text() + f'''.section .rodata,"a"
.p2align 6
.amdhsa_kernel {NAME}_kernel
  .amdhsa_next_free_vgpr 256
  .amdhsa_next_free_sgpr 102
  .amdhsa_accum_offset 256
  .amdhsa_group_segment_fixed_size 0
  .amdhsa_kernarg_size 112
  .amdhsa_user_sgpr_count 2
  .amdhsa_user_sgpr_kernarg_segment_ptr 1
  .amdhsa_system_sgpr_workgroup_id_x 1
  .amdhsa_float_denorm_mode_32 3
.end_amdhsa_kernel
'''
    return txt, namesB, namesA

if __name__ == '__main__':
    import json
    out = sys.argv[1]
    kw = {}
    for x in sys.argv[2:]:
        k, v = x.split('='); kw[k] = int(v)
    import subprocess, re
    txt, nb, na = generate(**kw)
    open('_g.s', 'w').write(txt)
    subprocess.check_call(['clang', '-x', 'assembler', '-target', 'amdgcn-amd-amdhsa', '-mcpu=gfx950', '-c', '_g.s', '-o', '_g.o'])
    h = subprocess.check_output(['llvm-objdump', '-h', '_g.o'], text=True)
    size = int(re.search(r'\.text\s+([0-9a-f]+)', h).group(1), 16)
    kw['code_last'] = size - 0x40 - 4
    assert size <= 32768 * kw.get('warm_loads', DEFAULTS['warm_loads'])
    txt, nb, na = generate(**kw)
    print('code bytes', size)
    open(out, 'w').write(txt)
    json.dump({'B': nb, 'A': na}, open(out + '.names.json', 'w'))
```

```python
import sys, struct
sys.path.insert(0, 'gen')
from asmlib import *
NAME = 'adaLN_cond__compressed_kv_cla__dense_activation_relu__decode'

EPOCH, READY, H1, H1B, H2, H3, AUX, H4S, H5 = 0x0, 0x1000, 0x2000, 0x120000, 0x58000, 0x68000, 0x1A0000, 0x88000, 0xE8000
H6, MODR, H7F, H7X, H4, STAMP = 0x100000, 0x108000, 0x110000, 0x111000, 0x200000, 0x4000000
H7Y = 0x110000
H4G, HDR, MB = 0x880000, 0x1FA000, 0x78000
DB3, DB4, ELIST, SIDE = 0x1E0000, 0x1E4000, 0x1F8000, 0x18000
X, CKV, WQ, WUK, WUV, WO, W1, W2, CC, WMOD, OUT, WS = [f's[{i}:{i+1}]' for i in (4, 6, 8, 10, 12, 14, 18, 20, 22, 24, 26, 30)]
TAG, SPIN, PLO, PHI = 's32', 's33', 's34', 's35'
SPINMAX = 200000
def f2u(x): return struct.unpack('<I', struct.pack('<f', x))[0]
L2E = f2u(1.4426950408889634)
L2E_LO = f2u(1.4426950408889634 - struct.unpack('<f', struct.pack('<f', 1.4426950408889634))[0])
LN2 = f2u(0.6931471805599453)
SCALE = f2u(192 ** -0.5)
NEGINF = 0xff800000

class G(Asm):
    def __init__(self, P):
        super().__init__(); self.P = P; self.nst = 0; self.stnames = []
    def stamp(self, name):
        if not self.P.get('stamps'): return
        if name in ('wq', 'b4', 'hdr', 'erow'): return
        if name.startswith('x') != (self.P['stamps'] == 2) and name not in ('start', 'h1pub', 'out', 'wq', 'h1', 'qpub', 'h1b', 'h2pub', 'h5', 'h6pub', 'h6', 'h7pub', 'gath', 'b6', 'h5pub', 'h2', 'qk', 'h3pub', 'pvst', 'auxpub'): return
        i = self.stnames.index(name) if name in self.stnames else None
        if i is None:
            self.stnames.append(name); i = len(self.stnames) - 1
        assert i < 21
        self(f's_memrealtime s[{60+2*i}:{61+2*i}]')
    def rnd(self, d, s):
        self(f'v_cvt_pk_bf16_f32 v{d}, v{s}, v{s}\nv_and_b32 v{d}, 0xffff0000, v{d}')
    def wave_is(self, cond, n, lab):
        self(f's_cmp_{cond}_u32 s3, {n}\ns_cbranch_scc0 {lab}')
    def row_red(self, op, regs):
        for k in (8, 4, 2, 1):
            for r in regs: self(f'{op}_dpp v{r}, v{r}, v{r} row_ror:{k} row_mask:0xf bank_mask:0xf')
    def xrow_red(self, op, r, t):
        self(f'v_mov_b32 v{t}, v{r}\nv_permlane16_swap_b32 v{r}, v{t}\n{op} v{r}, v{r}, v{t}')
        self(f'v_mov_b32 v{t}, v{r}\nv_permlane32_swap_b32 v{r}, v{t}\n{op} v{r}, v{r}, v{t}')
    def wave_red(self, op, r, t):
        self.row_red(op, [r]); self.xrow_red(op, r, t)
    def xrow_tr4(self, r):
        self(f'''v_permlane16_swap_b32 v{r}, v{r+1}
v_permlane16_swap_b32 v{r+2}, v{r+3}
v_add_f32 v{r}, v{r}, v{r+1}
v_add_f32 v{r+2}, v{r+2}, v{r+3}
v_permlane32_swap_b32 v{r}, v{r+2}
v_add_f32 v{r}, v{r}, v{r+2}''')
    def recip(self, d, y, t):
        self(f'v_rcp_f32 v{d}, v{y}\nv_fma_f32 v{t}, -v{y}, v{d}, 1.0\nv_fma_f32 v{d}, v{t}, v{d}, v{d}')
    def div(self, d, x, y, rinv, t):
        self(f'v_mul_f32 v{d}, v{x}, v{rinv}\nv_fma_f32 v{t}, -v{y}, v{d}, v{x}\nv_fma_f32 v{d}, v{t}, v{rinv}, v{d}')
    def silu(self, d, x, t):
        self(f'''v_mul_f32 v{t}, s56, v{x}
v_fma_f32 v{t+1}, v{x}, s56, -v{t}
v_fma_f32 v{t+1}, v{x}, s57, v{t+1}
v_exp_f32 v{t}, -v{t}
v_mul_f32 v{t+1}, s58, v{t+1}
v_fma_f32 v{t}, -v{t}, v{t+1}, v{t}
v_min_f32 v{t}, 0x7f000000, v{t}
v_add_f32 v{t}, 1.0, v{t}''')
        self.recip(t + 1, t, t + 2)
        self.div(t + 3, x, t, t + 1, t + 2)
        self.rnd(d, t + 3)
    def perm_block(self, dst, src, nreg=4, rows=8):
        for e in range(2 * nreg):
            for k in range(rows // 2):
                self(f'v_perm_b32 v{dst + e * (rows // 2) + k}, v{src + (2*k+1) * nreg + (e >> 1)}, v{src + 2*k*nreg + (e >> 1)}, {PHI if e & 1 else PLO}')
    def poll(self, loads, check, sleep=2, pre=None, mid=None):
        top = self.newlabel('Lp'); done = self.newlabel('Ld'); chk = self.newlabel('Lc')
        if pre: self(f's_sleep {pre}')
        if mid:
            loads(); mid(); self(f's_branch {chk}')
        self.label(top)
        loads()
        self.label(chk)
        self('s_waitcnt vmcnt(0)')
        check()
        self(f'''s_cbranch_vccz {done}
s_add_u32 {SPIN}, {SPIN}, 1
s_cmp_gt_u32 {SPIN}, {SPINMAX}
s_cbranch_scc1 {done}
s_sleep {sleep}
s_branch {top}''')
        self.label(done)
    def poll_masked(self, items, t, sleep=2, tag=False):
        top = self.newlabel('Lm'); done = self.newlabel('Lmd')
        for ld, regs in items: self(ld)
        self.label(top)
        self('s_waitcnt vmcnt(0)\ns_mov_b32 s49, 0')
        for ld, regs in items:
            skip = self.newlabel('Lms')
            if tag: self.chk_tag(regs, t)
            else: self.chk_sent(regs, t)
            self(f's_cbranch_vccz {skip}\ns_mov_b64 exec, vcc\n{ld}\ns_mov_b64 exec, -1\ns_mov_b32 s49, 1')
            self.label(skip)
        self(f'''s_cmp_eq_u32 s49, 0
s_cbranch_scc1 {done}
s_add_u32 {SPIN}, {SPIN}, 1
s_cmp_gt_u32 {SPIN}, {SPINMAX}
s_cbranch_scc1 {done}
s_sleep {sleep}
s_branch {top}''')
        self.label(done)
        self('s_waitcnt vmcnt(0)')
    def lds_wait(self, addr, n, off=0, sleep=1, extra=None, t=8):
        top = self.newlabel('Lw'); done = self.newlabel('Lwd')
        self.label(top)
        self(f'ds_read_b32 v{t}, v{addr} offset:{off}')
        if extra: self(extra)
        self(f'''s_waitcnt lgkmcnt(0)
v_cmp_gt_u32 vcc, {n}, v{t}
s_cbranch_vccz {done}
s_add_u32 {SPIN}, {SPIN}, 1
s_cmp_gt_u32 {SPIN}, {SPINMAX}
s_cbranch_scc1 {done}
s_sleep {sleep}
s_branch {top}''')
        self.label(done)
    def probe(self, va, t, off=0, sleep=1, post=None, tag=False, mask=1):
        self.exec_mask(mask)
        def ck():
            if tag: self(f'v_cmp_ne_u32 vcc, {TAG}, v{t}')
            else: self(f'v_cmp_eq_u32 vcc, -1, v{t}')
        self.poll(lambda: self(f'global_load_dword v{t}, v{va}, {WS} offset:{off} sc1'), ck, sleep=sleep)
        self.full()
        if post: self(f's_sleep {post}')
    def chk_sent(self, regs, t):
        regs = list(regs)
        if len(regs) == 1:
            self(f'v_cmp_eq_u32 vcc, -1, v{regs[0]}'); return
        if len(regs) == 2: self(f'v_max_u32 v{t}, v{regs[0]}, v{regs[1]}'); rest = []
        else: self(f'v_max3_u32 v{t}, v{regs[0]}, v{regs[1]}, v{regs[2]}'); rest = regs[3:]
        while rest:
            if len(rest) >= 2: self(f'v_max3_u32 v{t}, v{t}, v{rest[0]}, v{rest[1]}'); rest = rest[2:]
            else: self(f'v_max_u32 v{t}, v{t}, v{rest[0]}'); rest = []
        self(f'v_cmp_eq_u32 vcc, -1, v{t}')
    def chk_tag(self, regs, t):
        regs = list(regs)
        self(f'v_cmp_ne_u32 vcc, {TAG}, v{regs[0]}')
        for r in regs[1:]:
            self(f'v_cmp_ne_u32 s[50:51], {TAG}, v{r}\ns_or_b64 vcc, vcc, s[50:51]')
    def san(self, regs):
        for r in regs: self(f'v_min_u32 v{r}, -2, v{r}')
    def lanes_lt(self, n):
        assert n <= 64
        lo = (1 << min(n, 32)) - 1; hi = (1 << max(n - 32, 0)) - 1
        self(f's_mov_b32 exec_lo, {lo:#x}\ns_mov_b32 exec_hi, {hi:#x}')
    def exec_mask(self, m):
        self(f's_mov_b32 exec_lo, {m & 0xffffffff:#x}\ns_mov_b32 exec_hi, {m >> 32:#x}')
    def full(self): self('s_mov_b64 exec, -1')
    def bar(self): self('s_waitcnt lgkmcnt(0)\ns_barrier')
    def get_tag(self):
        self(f'''v_readfirstlane_b32 {TAG}, v15
s_mul_i32 {TAG}, {TAG}, 0x9E3779B1
s_add_u32 {TAG}, {TAG}, 0x7F4A7C15''')
    def ready_publish(self):
        self('s_getreg_b32 s41x, hwreg(HW_REG_XCC_ID, 0, 4)\ns_waitcnt vmcnt(0)'.replace('s41x', 's51'))
        self.get_tag()
        self(f'''s_lshl_b32 s40, s2, 4
s_add_u32 s40, s40, {READY}
v_mov_b32 v4, s40
v_mov_b32 v6, {TAG}
v_mov_b32 v7, s51''')
        self.lanes_lt(1)
        self(f'global_store_dwordx2 v4, v[6:7], {WS} sc1')
        self.full()
    def st_local(self, mism, *sts):
        far = self.newlabel('Lsf'); done = self.newlabel('Lsd')
        if self.P['local']:
            self(f's_cmp_eq_u64 {mism}, 0\ns_cbranch_scc0 {far}')
            for st in sts: self(st)
            self(f's_branch {done}')
            self.label(far)
        for st in sts: self(st + ' sc1')
        self.label(done)
    def ready_check(self, half, v=8):
        self(f'v_lshlrev_b32 v{v+2}, 4, v1\nv_add_u32 v{v+2}, {READY + 2048*half}, v{v+2}')
        def ld():
            for i in range(2): self(f'global_load_dword v{v+i}, v{v+2}, {WS} offset:{1024*i} sc1')
        self.poll(ld, lambda: self.chk_tag([v, v + 1], 0), sleep=4)
    def gemv2(self, D, A, F, first=True):
        for e in range(8):
            c = '0' if first else vr(D + 4*e, 4)
            self(f'v_mfma_f32_16x16x32_bf16 {vr(D+4*e,4)}, {vr(A,4)}, {vr(F+4*e,4)}, {c}')
    def pack2(self, o, D):
        for i in range(4):
            self(f'v_add_f32_dpp v{o+i}, v{D+4*i+1}, v{D+4*i} row_ror:8 row_mask:0xf bank_mask:0x3')
        for i in range(4):
            self(f'v_add_f32_dpp v{o+i}, v{D+4*(i+4)}, v{D+4*(i+4)+1} row_ror:8 row_mask:0xf bank_mask:0xc')
    def load_rows(self, dst, nreg, va, base, pitch, rows=8, pol='nt', t=None):
        op = {1: 'dword', 2: 'dwordx2', 4: 'dwordx4'}[nreg]
        per = 4095 // pitch + 1 if pitch <= 4095 else 1
        for j in range(rows):
            k = j % per
            self(f'global_load_{op} {vr(dst + j*nreg, nreg)}, v{va}, {base} offset:{k*pitch} {pol}')
            if k == per - 1 and j + 1 < rows: self(f'v_add_u32 v{va}, {per*pitch}, v{va}')

def consts(a):
    a(f'''s_mov_b32 {PLO}, 0x05040100
s_mov_b32 {PHI}, 0x07060302
s_mov_b32 {SPIN}, 0
s_mov_b32 s56, {L2E:#x}
s_mov_b32 s57, {L2E_LO:#x}
s_mov_b32 s58, {LN2:#x}
s_mov_b32 s59, {SCALE:#x}''')

def code_warm(a, v=4):
    n = a.P['warm_loads']
    a(f'''s_lshr_b32 s50, s2, 3
s_lshl_b32 s50, s50, 10
v_lshlrev_b32 v{v}, 4, v1
v_add_u32 v{v}, s50, v{v}
v_min_u32 v{v}, CODE_LAST, v{v}
global_load_dword v14, v{v}, s[36:37]''')
    if n > 1:
        a(f'''v_add_u32 v{v}, 32768, v{v}
v_min_u32 v{v}, CODE_LAST, v{v}
global_load_dword v14, v{v}, s[36:37]''')

CT, SPB, PB, STB, MISC = 0, 98304, 98304 + 34816, 98304 + 34816 + 9216, 98304 + 34816 + 9216 + 1024
def blk2_addr(a, v, srow, pitch, scol):
    a(f'''v_lshrrev_b32 v{v}, 3, v2
v_lshlrev_b32 v{v}, 5, v{v}
v_lshl_add_u32 v{v}, v3, 3, v{v}
v_add_u32 v{v}, {srow}, v{v}
v_mul_u32_u24 v{v}, {pitch}, v{v}
v_and_b32 v{v+1}, 7, v2
v_lshl_add_u32 v{v}, v{v+1}, 4, v{v}
v_add_u32 v{v}, {scol}, v{v}''')
def frag2_addr(a, v, sbase):
    a(f'v_and_b32 v{v}, 1, v2\nv_lshlrev_b32 v{v}, 6, v{v}\nv_lshl_add_u32 v{v}, v3, 4, v{v}\nv_add_u32 v{v}, {sbase}, v{v}')
def pack_addr(a, v, sbase):
    a(f'v_and_b32 v{v}, 7, v2\nv_lshlrev_b32 v{v}, 5, v{v}\nv_lshrrev_b32 v{v+1}, 3, v2\nv_lshl_add_u32 v{v}, v{v+1}, 4, v{v}\nv_add_u32 v{v}, {sbase}, v{v}')
def gemv_out_lds(a, D, base):
    a.pack2(8, D)
    a.lanes_lt(16)
    a('ds_write_b128 v14, v[8:11]')
    a.full()
def gemv_out_prep(a, base):
    a(f's_lshl_b32 s40, s3, 8\ns_add_u32 s40, s40, {base}')
    pack_addr(a, 14, 's40')
def tree(a, regs, stride=1, n=1):
    regs = list(regs)
    while len(regs) > 1:
        nxt = []
        for i in range(0, len(regs) - 1, 2):
            for k in range(n): a(f'v_add_f32 v{regs[i]+k}, v{regs[i]+k}, v{regs[i+1]+k}')
            nxt.append(regs[i])
        if len(regs) & 1: nxt.append(regs[-1])
        regs = nxt
def ln_finish(a, m, v, ri):
    a.rnd(m, m); a.rnd(v, v)
    a(f'v_add_f32 v{v}, {f2u(1e-5):#x}, v{v}')
    a.rnd(v, v)
    a(f'v_sqrt_f32 v{v}, v{v}')
    a.rnd(v, v)
    a.recip(ri, v, ri + 1)
def neg1(a, r=8):
    for i in range(4): a(f'v_mov_b32 v{r+i}, -1')

JP, CP = 3200, 51328
def role_B(a):
    P = a.P
    a(f'''s_and_b32 s39, s2, 7
s_lshr_b32 s38, s2, 3            ; j
s_mul_i32 s55, s38, 43
s_lshr_b32 s55, s55, 7           ; Tp = j/3
s_mul_i32 s40, s55, 3
s_sub_u32 s40, s38, s40          ; cbl
s_lshl_b32 s40, s40, 2
s_mul_i32 s45, s39, 12
s_add_u32 s45, s45, s40
s_lshr_b32 s40, s3, 1
s_add_u32 s45, s45, s40
s_and_b32 s53, s3, 1
s_lshl_b32 s42, s55, 1
s_add_u32 s53, s53, s42          ; T = 2Tp + (w&1)
v_mov_b32 v12, 0
s_lshl_b32 s40, s53, 6
s_lshl_b32 s41, s45, 7''')
    blk2_addr(a, 4, 's40', 12288, 's41')
    a(f'''v_lshlrev_b32 v6, 2, v1
s_lshl_b32 s42, s3, 3
v_and_b32 v7, 7, v1
v_add_u32 v7, s42, v7
v_lshrrev_b32 v8, 5, v1
v_lshl_add_u32 v13, v8, 6, v7
s_min_u32 s40, s55, 4
s_lshl_b32 s40, s40, 7
v_add_u32 v7, s40, v13
v_lshlrev_b32 v7, 1, v7
s_waitcnt lgkmcnt(0)''')
    a.stamp('start')
    for k in range(5): a(f'global_load_dword v{16+k}, v6, {X} offset:{256*k}')
    a(f'global_load_ushort v21, v7, {X}')
    a('s_cmp_lt_u32 s2, 120\ns_cbranch_scc0 LB_nowq')
    a.load_rows(64, 4, 4, WQ, 12288)
    a.label('LB_nowq')
    a(f'global_load_dword v15, v12, {WS} sc1\ns_branch LB2')

def role_B2(a):
    P = a.P
    a.label('LB2')
    a(f'''s_mov_b32 s49, 0
s_mul_i32 s54, s39, 10
s_add_u32 s54, s54, s38
s_add_u32 s40, s2, 0
s_cmp_lt_u32 s38, 10
s_cselect_b32 s54, s54, s40
s_getreg_b32 s16, hwreg(HW_REG_XCC_ID, 0, 4)''')
    a.wave_is('eq', 6, 'LB_not6')
    code_warm(a, 24)
    if P['tlb']:
        a(f'''v_lshlrev_b32 v24, 17, v1
global_load_dword v14, v24, {WS} offset:64 nt''')
    a('s_mov_b32 s49, 1')
    a.label('LB_not6')
    a.wave_is('eq', 7, 'LB_not7')
    neg1(a, 28)
    a(f'''s_mul_i32 s50, s39, 2560
s_lshl_b32 s51, s38, 8
s_add_u32 s50, s50, s51
s_add_u32 s50, s50, {H6}
s_lshl_b32 s51, s54, 8
s_add_u32 s51, s51, {MODR - 104*256}
s_cmp_lt_u32 s54, 104
s_cselect_b32 s50, s50, s51
v_lshl_add_u32 v24, v2, 4, s50
s_cmp_lt_u32 s54, 80
s_cbranch_scc1 LB_c1
s_cmp_lt_u32 s54, 104
s_cbranch_scc0 LB_c1
s_mul_i32 s50, s54, 2560
s_add_u32 s50, s50, {H7Y - 80*2560}
v_lshl_add_u32 v24, v1, 4, s50
global_store_dwordx4 v24, v[28:31], {WS} sc1
global_store_dwordx4 v24, v[28:31], {WS} offset:1024 sc1
v_and_b32 v24, 31, v1
v_lshl_add_u32 v24, v24, 4, s50
v_add_u32 v24, 2048, v24
LB_c1:
global_store_dwordx4 v24, v[28:31], {WS} sc1''')
    a('s_mov_b32 s49, 1')
    a.label('LB_not7')
    a(f'''s_lshl_b32 s46, s2, 6
s_lshl_b32 s41, s3, 3
s_add_u32 s46, s46, s41
s_mul_i32 s46, s46, 1536           ; (64b+8w)*1536
s_and_b32 s47, s3, 1
s_lshl_b32 s47, s47, 3             ; 8*(w&1)
s_mul_i32 s48, s3, 12288
v_cmp_le_u32 vcc, 32, v1
v_add_u32 v56, 64, v1
v_subrev_u32 v57, 32, v1
v_cndmask_b32 v56, v56, v57, vcc
v_cndmask_b32 v58, 0, 1, vcc
v_xor_b32 v56, v56, v58
v_mul_u32_u24 v58, 1536, v58
v_add_u32 v57, 32, v1
v_xor_b32 v57, 1, v57''')
    def dma(lo, hi, other=0):
        for i in range(lo, hi):
            k, j = divmod(i, 3)
            src = ('v1', 'v56', 'v57')[j]
            a(f's_add_u32 s43, s47, {2*k}\nv_xor_b32 v8, s43, {src}')
            a(f's_add_u32 s44, s46, {2*k*1536 + (1536 if j == 2 else 0) + other*32*1536}')
            if j == 1: a('v_lshl_add_u32 v8, v8, 4, v58\nv_add_u32 v8, s44, v8')
            else: a('v_lshl_add_u32 v8, v8, 4, s44')
            a(f's_add_u32 m0, s48, {i*1024 + other*49152}\nglobal_load_lds_dwordx4 v8, {CKV} nt')
    N1 = P['dma1']
    a(f'v_mov_b32 v253, {STB + 520}\nds_write_b32 v253, v12')
    a.bar()
    N0 = min(P['dma0'], N1)
    def early(lab): a(f's_cmp_lt_u32 s39, {P["gsplit"]}\ns_cbranch_scc0 {lab}')
    def vw(base):
        if N0 == N1: a(f's_waitcnt vmcnt({base+N1})'); return
        l1 = a.newlabel('Lv'); l2 = a.newlabel('Lv')
        early(l1); a(f's_waitcnt vmcnt({base+N1})\ns_branch {l2}'); a.label(l1); a(f's_waitcnt vmcnt({base+N0})'); a.label(l2)
    dma(0, N0)
    if N0 < N1:
        early('LB_d0'); dma(N0, N1); a.label('LB_d0')
    consts(a)
    a('s_cmp_ge_u32 s2, 120\ns_cselect_b32 s49, 1, s49\ns_cmp_eq_u32 s49, 0\ns_cbranch_scc1 LB_w8')
    vw(0)
    a.label('LB_w8')
    vw(9)
    for k in range(5): a(f'v_lshlrev_b32 v{24+2*k}, 16, v{16+k}\nv_and_b32 v{25+2*k}, 0xffff0000, v{16+k}')
    a('v_add_f32 v22, v24, v25')
    for k in range(2, 10): a(f'v_add_f32 v22, v22, v{24+k}')
    a.wave_red('v_add_f32', 22, 23)
    a(f'v_mul_f32 v22, {f2u(1/640):#x}, v22\nv_mov_b32 v23, 0')
    for k in range(10): a(f'v_sub_f32 v{24+k}, v{24+k}, v22\nv_fmac_f32 v23, v{24+k}, v{24+k}')
    a.wave_red('v_add_f32', 23, 24)
    a(f'v_mul_f32 v23, {f2u(1/640):#x}, v23')
    ln_finish(a, 22, 23, 24)
    a('v_lshlrev_b32 v21, 16, v21\nv_sub_f32 v21, v21, v22')
    a.rnd(21, 21)
    a.div(20, 21, 23, 24, 25)
    a.rnd(20, 20)
    a('s_cmp_lt_u32 s2, 120\ns_cbranch_scc0 LB_dma0')
    a(f'''s_lshl_b32 s40, s55, 14
s_lshl_b32 s42, s3, 10
s_add_u32 s40, s40, s42
s_add_u32 s40, s40, {H1}
v_lshl_add_u32 v4, v1, 4, s40
v_add_u32 v9, 8192, v4
v_lshlrev_b32 v5, 1, v13
v_add_u32 v5, {MISC}, v5
s_lshl_b32 s40, s39, 4
s_add_u32 s40, s40, {READY + 2048}
v_lshl_add_u32 v10, v2, 7, s40
s_mul_i32 s40, s45, 43
s_lshr_b32 s40, s40, 7
s_mul_i32 s42, s40, 3
s_sub_u32 s42, s45, s42
s_lshl_b32 s42, s42, 9
s_mul_i32 s40, s40, 15360
s_add_u32 s40, s40, s42
s_mul_i32 s42, s53, 1536
s_add_u32 s40, s40, s42
s_add_u32 s40, s40, {H1B}''')
    pack_addr(a, 6, 0)
    a(f'v_lshlrev_b32 v6, 1, v6\nv_lshl_add_u32 v6, v3, 4, v6\nv_add_u32 v6, s40, v6\nv_cmp_eq_u32 s[42:43], 1, v3')
    a(f's_and_b32 s40, s3, 1\ns_lshl_b32 s40, s40, 7\ns_add_u32 s40, s40, {MISC}')
    frag2_addr(a, 7, 's40')
    vw(0)
    a.stamp('wq')
    a.get_tag()
    a(f'v_mov_b32 v61, {TAG}\nv_mov_b32 v63, {TAG}')
    a.poll(lambda: a(f'global_load_dwordx4 v[16:19], v4, {WS} sc1\nglobal_load_dwordx4 v[24:27], v9, {WS} sc1\nglobal_load_dwordx2 v[28:29], v10, {WS} sc1'),
           lambda: a.chk_tag([17, 19, 25, 27], 8), sleep=P['sl_h1'], pre=P['pre_h1'], mid=lambda: a.perm_block(96, 64))
    a.stamp('h1')
    a('s_setprio 3')
    a('''v_add_f32_dpp v16, v16, v16 row_ror:8 row_mask:0xf bank_mask:0xf
v_add_f32_dpp v18, v18, v18 row_ror:8 row_mask:0xf bank_mask:0xf
v_add_f32_dpp v24, v24, v24 row_ror:8 row_mask:0xf bank_mask:0xf
v_add_f32_dpp v26, v26, v26 row_ror:8 row_mask:0xf bank_mask:0xf
v_cmp_ne_u32 s[50:51], s16, v29
v_cmp_ne_u32 vcc, s32, v28
s_or_b64 s[50:51], s[50:51], vcc
v_permlane16_swap_b32 v16, v18
v_permlane16_swap_b32 v24, v26
v_add_f32 v16, v16, v18
v_add_f32 v24, v24, v26
v_permlane32_swap_b32 v16, v24
v_add_f32 v16, v16, v24
v_mov_b32 v18, v16
v_permlane16_swap_b32 v16, v18''')
    a.rnd(16, 16); a.rnd(18, 18)
    a('v_add_f32 v18, 1.0, v18')
    a.rnd(18, 18)
    a('v_mul_f32 v18, v20, v18')
    a.rnd(18, 18)
    a('v_add_f32 v16, v18, v16\nv_cvt_pk_bf16_f32 v16, v16, v16\nds_write_b16 v5, v16')
    a.bar()
    a('ds_read_b128 v[16:19], v7\ns_waitcnt lgkmcnt(0)')
    a.gemv2(24, 16, 96, True)
    a.pack2(8, 24)
    a('v_cndmask_b32 v60, v8, v10, s[42:43]\nv_cndmask_b32 v62, v9, v11, s[42:43]')
    a.lanes_lt(32)
    a.st_local('s[50:51]', f'global_store_dwordx4 v6, v[60:63], {WS}')
    a.full()
    a.stamp('qpub')
    a('s_setprio 0\ns_barrier')
    if P['sl_dma2']: a(f's_sleep {P["sl_dma2"]}')
    a('s_branch LB_dma')
    a.label('LB_dma0')
    a.get_tag()
    a.label('LB_dma')
    a.wave_is('eq', 7, 'LB_nrp')
    a.ready_publish()
    a.label('LB_nrp')
    def bump():
        a('v_mov_b32 v8, 1\ns_mov_b64 exec, 1\nds_add_u32 v253, v8\ns_mov_b64 exec, -1')
    def ckwait(lab): a.lds_wait(253, 8)
    if P['dma8']: dma(N1, 12)
    a.wave_is('lt', 4, 'LB_qa')
    if N0 < N1:
        a(f's_cmp_lt_u32 s39, {P["gsplit"]}\ns_cbranch_scc1 LB_d1')
        for i in range(N0, N1):
            dma(i, i + 1); dma(i, i + 1, 1)
        a.label('LB_d1')
    if not P['dma8']:
        for i in range(N1, 12):
            dma(i, i + 1); dma(i, i + 1, 1)
    a(f'''v_lshrrev_b32 v4, 2, v2            ; rr
v_lshl_add_u32 v4, v3, 3, v4       ; 8g+rr
v_and_b32 v5, 3, v1                ; cc
s_mul_i32 s40, s3, 24
v_add_u32 v5, s40, v5              ; 24w+cc''')
    for t in range(6):
        for sub in range(2):
            a(f'''v_add_u32 v6, {4*sub}, v4
v_and_b32 v7, 15, v6
v_add_u32 v8, {4*t}, v5
v_xor_b32 v7, v7, v8
v_mul_u32_u24 v6, 1536, v6
v_lshl_add_u32 v{40+t*2+sub}, v7, 4, v6''')
    a('s_waitcnt vmcnt(0)')
    bump()
    a(f's_lshl_b32 s40, s39, 4\ns_add_u32 s40, s40, {READY + 2048}\nv_lshl_add_u32 v10, v2, 7, s40')
    a.poll(lambda: a(f'global_load_dwordx2 v[28:29], v10, {WS} sc1'), lambda: a.chk_tag([28], 8), sleep=4)
    a('v_cmp_ne_u32 s[16:17], s16, v29')
    ckwait('LB_ck0')
    a.stamp('ckv')
    for t in range(6):
        for sub in range(2):
            for hf in range(2):
                for ks in range(2):
                    r = 64 + ((t*2+hf)*2+ks)*4 + 2*sub
                    a(f'ds_read_b64_tr_b16 {vr(r,2)}, v{40+t*2+sub} offset:{ks*49152 + hf*8}')
    a(f'''s_mul_i32 s41, s2, 384
s_mul_i32 s40, s3, 49152
s_add_u32 s41, s41, s40
s_add_u32 s41, s41, {H4}
s_mov_b32 s40, 196608
v_lshrrev_b32 v61, 3, v1
v_mul_lo_u32 v52, v61, s40
v_and_b32 v8, 7, v1
v_lshl_add_u32 v52, v8, 4, v52
v_add_u32 v52, s41, v52
s_mul_i32 s40, s3, 4608
s_add_u32 s40, s40, {SPB}
v_mul_u32_u24 v60, 144, v2
v_lshl_add_u32 v60, v3, 4, v60
v_add_u32 v60, s40, v60
v_mul_u32_u24 v61, 144, v61
v_lshl_add_u32 v61, v8, 4, v61
v_add_u32 v61, s40, v61
v_add_u32 v53, {8*196608}, v52
v_add_u32 v54, {16*196608}, v52
v_add_u32 v55, {24*196608}, v52
s_lshl_b32 s40, s3, 11
s_lshl_b32 s41, s2, 4
s_add_u32 s40, s40, s41
s_add_u32 s40, s40, {AUX}
v_lshl_add_u32 v56, v1, 13, s40
v_and_b32 v57, 31, v1
v_lshlrev_b32 v57, 4, v57
v_add_u32 v57, {STB}, v57
s_branch LB_noqk''')
    a.label('LB_qa')
    a('s_sub_u32 s45, s3, 4\ns_mul_i32 s40, s45, 24\nv_add_u32 v5, s40, v3\nv_mul_u32_u24 v4, 1536, v2')
    for s_ in range(6):
        a(f'v_add_u32 v6, {4*s_}, v5\nv_xor_b32 v6, v6, v2\nv_lshl_add_u32 v{240+2*s_}, v6, 4, v4\nv_add_u32 v{241+2*s_}, 49152, v{240+2*s_}')
    a(f'''s_mul_i32 s40, s45, 12288
s_add_u32 s40, s40, {H2}
{'v_lshl_add_u32 v4, v1, 4, s40' if P['h2lay'] else 'v_lshl_add_u32 v4, v2, 6, s40'}
{'s_nop 0' if P['h2lay'] else 'v_lshl_add_u32 v4, v3, 4, v4'}
v_add_u32 v5, 4096, v4
v_add_u32 v6, 8192, v4
s_and_b32 s41, s2, 3
s_lshl_b32 s41, s41, {4 if P['h2lay'] else 6}
s_add_u32 s40, s40, s41
s_add_u32 s40, s40, 10240
v_and_b32 v9, 3, v1
v_lshl_add_u32 v9, v9, {6 if P['h2lay'] else 8}, s40
v_bfe_u32 v8, v1, 2, 1
v_lshl_add_u32 v9, v8, 10, v9
s_mul_i32 s40, s45, {32*272}
s_add_u32 s40, s40, {SPB}
v_mul_u32_u24 v7, 272, v2
v_lshl_add_u32 v7, v3, 4, v7
v_add_u32 v7, s40, v7
s_mov_b32 s52, 0
s_waitcnt vmcnt(0)''')
    bump()
    a.ready_check(1, 10)
    a('v_mov_b32 v12, 0\nv_mov_b32 v10, 0')
    def cf():
        for kt in range(4):
            for s_ in range(6):
                a(f'ds_read_b128 {vr(64+(kt*6+s_)*4,4)}, v{240 + 2*s_ + (kt >> 1)} offset:{(kt & 1)*24576}')
    a(f'''LB_q0:
s_mov_b64 exec, {P['k_h2']}
global_load_dword v10, v9, {WS} sc1
s_mov_b64 exec, -1
s_cmp_eq_u32 s52, 0
s_cbranch_scc0 LB_q1
ds_read_b32 v8, v253
s_waitcnt lgkmcnt(0)
v_cmp_gt_u32 vcc, 8, v8
s_cbranch_vccnz LB_q1
s_mov_b32 s52, 1''')
    cf()
    a(f'''LB_q1:
s_waitcnt vmcnt(0)
v_cmp_eq_u32 vcc, -1, v10
s_cbranch_vccz LB_h2go
s_add_u32 {SPIN}, {SPIN}, 1
s_cmp_gt_u32 {SPIN}, {SPINMAX}
s_cbranch_scc1 LB_h2go
s_sleep {P['sl_pr2']}
s_branch LB_q0
LB_h2go:''')
    if P['post_h2']: a(f's_sleep {P["post_h2"]}')
    def ld():
        for i in range(12): a(f'global_load_dwordx4 {vr(16+4*i,4)}, v{4 + i//4}, {WS} offset:{(i%4)*1024} sc1')
    def mid():
        a('s_cmp_eq_u32 s52, 0\ns_cbranch_scc0 LB_q2')
        ckwait('LB_ck1')
        cf()
        a.label('LB_q2')
    ld(); mid()
    a('s_setprio 3\ns_waitcnt lgkmcnt(0)\ns_branch LB_qm')
    a.label('LB_qr')
    ld()
    a.label('LB_qm')
    for s_ in range(6):
        a(f's_waitcnt vmcnt({10 - 2*s_})')
        if s_ == 5: a.stamp('h2')
        for kt in range(4):
            for ht in range(2):
                d = 224 + (kt*2+ht)*4
                a(f'v_mfma_f32_16x16x32_bf16 {vr(d,4)}, {vr(64+(kt*6+s_)*4,4)}, {vr(16+(s_*2+ht)*4,4)}, {"0" if s_ == 0 else vr(d,4)}')
                if s_ > 0 or True:
                    r = 16 + s_*8 + (kt*2+ht)
                    if kt*2+ht < 4:
                        q = 16 + s_*8 + 2*(kt*2+ht)
                        a(f'v_max_u32 v8, v{q}, v{q+1}' if (s_ == 0 and kt*2+ht == 0) else f'v_max3_u32 v8, v8, v{q}, v{q+1}')
    a(f'''v_cmp_eq_u32 vcc, -1, v8
s_cbranch_vccz LB_qd
s_add_u32 {SPIN}, {SPIN}, 1
s_cmp_gt_u32 {SPIN}, {SPINMAX}
s_cbranch_scc1 LB_qd
s_sleep {P['sl_h2']}
s_branch LB_qr
LB_qd:''')
    for kt in range(4):
        for ht in range(2): a(f'ds_write_b128 v7, {vr(224+(kt*2+ht)*4,4)} offset:{ht*16*272 + kt*64}')
    a.label('LB_noqk')
    a(f'''s_lshl_b32 s40, s3, 2
v_add_u32 v9, s40, v3              ; head = 4w+g
v_mul_u32_u24 v4, 272, v9
v_lshl_add_u32 v4, v2, 4, v4
v_add_u32 v4, {SPB}, v4
v_mul_u32_u24 v5, 144, v9
v_lshl_add_u32 v5, v2, 3, v5
v_add_u32 v5, {PB}, v5
s_lshl_b32 s40, s2, 4
s_add_u32 s40, s40, {H3}
v_lshl_add_u32 v6, v9, 11, s40
v_lshlrev_b32 v7, 4, v9
v_add_u32 v7, {STB}, v7
v_lshlrev_b32 v10, 2, v2           ; 4*kq
v_mov_b32 v45, {TAG}
v_mov_b32 v47, {TAG}
s_lshl_b32 s40, s2, 7
s_add_u32 s40, s40, {DB3}
v_mov_b32 v8, s40
v_cmp_eq_u32 vcc, 1, v1
v_cndmask_b32 v6, v6, v8, vcc
s_cmp_eq_u32 s3, 7
s_cselect_b32 s49, 2, 0
s_or_b32 s49, s49, 0x00010001
v_mov_b32 v58, {STB + 512}
v_mov_b32 v13, 0
ds_write_b64 v58, v[12:13]
ds_write_b32 v58, v12 offset:12
ds_write_b32 v58, v12 offset:16''')
    for i in range(4): a(f'v_add_u32 v{40+i}, {i}, v10')
    a.bar()
    a.stamp('qk')
    a('s_setprio 3')
    for i in range(4): a(f'ds_read_b128 {vr(16+4*i,4)}, v4 offset:{8704*i}')
    a(f'''v_mul_u32_u24 v4, 144, v2
v_lshl_add_u32 v4, v3, 4, v4
v_add_u32 v4, {PB}, v4
v_mov_b32 v11, {NEGINF:#x}
s_mov_b32 s40, 0xffffffc0
s_waitcnt lgkmcnt(0)''')
    for i in (0, 2):
        a(f'v_pk_add_f32 {vr(16+i,2)}, {vr(16+i,2)}, {vr(20+i,2)}\nv_pk_add_f32 {vr(24+i,2)}, {vr(24+i,2)}, {vr(28+i,2)}')
    for i in (0, 2): a(f'v_pk_add_f32 {vr(32+i,2)}, {vr(16+i,2)}, {vr(24+i,2)}')
    for i in range(4): a(f'v_and_or_b32 v{36+i}, v{32+i}, s40, v{40+i}')
    a('v_max3_f32 v50, v36, v37, v38\nv_max_f32 v50, v50, v39')
    a('v_cvt_pk_bf16_f32 v36, v32, v33\nv_cvt_pk_bf16_f32 v37, v34, v35')
    fill = ['v_lshlrev_b32 v32, 16, v36\nv_and_b32 v33, 0xffff0000, v36', 'v_lshlrev_b32 v34, 16, v37\nv_and_b32 v35, 0xffff0000, v37',
            'v_mul_f32 v32, s59, v32\nv_mul_f32 v33, s59, v33', 'v_mul_f32 v34, s59, v34\nv_mul_f32 v35, s59, v35']
    for k, f in zip((8, 4, 2, 1), fill):
        a(f'v_max_f32_dpp v50, v50, v50 row_ror:{k} row_mask:0xf bank_mask:0xf')
        a(f)
    a('''v_cvt_pk_bf16_f32 v44, v50, v50
v_cvt_pk_bf16_f32 v36, v32, v33
v_and_b32 v44, 0xffff0000, v44
v_cvt_pk_bf16_f32 v37, v34, v35
v_mul_f32 v44, s59, v44
v_and_b32 v46, 63, v50
v_cvt_pk_bf16_f32 v44, v44, v44
v_lshlrev_b32 v32, 16, v36
v_and_b32 v44, 0xffff0000, v44
s_mov_b32 exec_lo, s49
s_mov_b32 exec_hi, 0x00010001''')
    a(f'global_store_dwordx4 v6, v[44:47], {WS} sc1')
    a.full()
    a.stamp('h3pub')
    a('''v_and_b32 v33, 0xffff0000, v36
v_lshlrev_b32 v34, 16, v37
v_and_b32 v35, 0xffff0000, v37''')
    for i in range(4): a(f'v_sub_f32 v{24+i}, v{32+i}, v44')
    for i in range(4): a(f'v_mul_f32 v{24+i}, s56, v{24+i}')
    for i in range(4): a(f'v_exp_f32 v{24+i}, v{24+i}')
    a('''v_cvt_pk_bf16_f32 v36, v24, v25
v_cvt_pk_bf16_f32 v37, v26, v27
ds_write_b64 v5, v[36:37]
v_add_f32 v49, v24, v25
v_add_f32 v48, v26, v27
v_add_f32 v49, v49, v48''')
    def deferred():
        for i in range(4):
            a(f'v_cmp_eq_u32 vcc, v{40+i}, v46\nv_cndmask_b32 v{32+i}, v{32+i}, v11, vcc')
        a('v_max3_f32 v50, v32, v33, v34\nv_max_f32 v50, v50, v35')
        for k in (8, 4, 2, 1):
            a(f'v_max_f32_dpp v50, v50, v50 row_ror:{k} row_mask:0xf bank_mask:0xf\nv_add_f32_dpp v49, v49, v49 row_ror:{k} row_mask:0xf bank_mask:0xf')
        for i in range(4): a(f'v_sub_f32 v{32+i}, v{32+i}, v50')
        for i in range(4): a(f'v_mul_f32 v{32+i}, s56, v{32+i}')
        for i in range(4): a(f'v_exp_f32 v{32+i}, v{32+i}')
        a('''v_add_f32 v51, v32, v33
v_add_f32 v48, v34, v35
v_add_f32 v51, v51, v48
v_cvt_pk_bf16_f32 v38, v32, v33
v_cvt_pk_bf16_f32 v39, v34, v35
ds_write_b64 v5, v[38:39] offset:4608
v_mov_b32 v48, v44''')
        a.row_red('v_add_f32', [51])
        a('ds_write_b128 v7, v[48:51]\nv_mov_b32 v8, 1\ns_mov_b64 exec, 1\nds_add_u32 v58, v8 offset:16\ns_mov_b64 exec, -1')
    a.stamp('xa')
    a.bar()
    a.stamp('xb')
    a.wave_is('lt', 4, 'LB_lw')
    for ht in range(2):
        for ks in range(2): a(f'ds_read_b128 {vr(16+(ht*2+ks)*4,4)}, v4 offset:{ht*16*144 + ks*64}')
    a('s_waitcnt lgkmcnt(0)')
    def unit(i):
        cl, ht = i >> 1, i & 1
        for tp in range(2):
            for hf in range(2):
                d = 160 + (i % 3)*16 + (tp*2+hf)*4
                t = cl*2 + tp
                for ks in range(2):
                    a(f'v_mfma_f32_16x16x32_bf16 {vr(d,4)}, {vr(64+((t*2+hf)*2+ks)*4,4)}, {vr(16+(ht*2+ks)*4,4)}, {"0" if ks == 0 else vr(d,4)}')
    def stw(i):
        d = 160 + (i % 3)*16; o = 208 + (i % 2)*8
        for k in range(8): a(f'v_cvt_pk_bf16_f32 v{o+k}, v{d+2*k}, v{d+2*k+1}')
        a(f'ds_write_b128 v60, {vr(o,4)} offset:{(i % 2)*2304}\nds_write_b128 v60, {vr(o+4,4)} offset:{(i % 2)*2304 + 64}')
        o2 = 224 + (i % 3)*8
        a(f'ds_read_b128 {vr(o2,4)}, v61 offset:{(i % 2)*2304}\nds_read_b128 {vr(o2+4,4)}, v61 offset:{(i % 2)*2304 + 1152}')
    def stg(i, pol, n):
        cl, ht = i >> 1, i & 1
        o2 = 224 + (i % 3)*8
        a(f's_waitcnt lgkmcnt({n})')
        a(f'global_store_dwordx4 v{52+2*ht}, {vr(o2,4)}, {WS} offset:{128*cl} {pol}')
        a(f'global_store_dwordx4 v{53+2*ht}, {vr(o2+4,4)}, {WS} offset:{128*cl} {pol}')
    def pvloop(pol):
        unit(0)
        a.stamp('xc')
        unit(1); stw(0)
        for i in range(2, 6):
            unit(i); stw(i - 1); stg(i - 2, pol, 0 if P['stamps'] == 2 else 4)
            if i in (3, 5): a.stamp(f'xd{i}')
        stw(5); stg(4, pol, 0 if P['stamps'] == 2 else 4); stg(5, pol, 0)
    if P['local'] and P['pv_local']:
        a('s_cmp_eq_u64 s[16:17], 0\ns_cbranch_scc0 LB_pvf')
        pvloop('')
        a('s_branch LB_pvd')
        a.label('LB_pvf')
    pvloop('sc1')
    a.label('LB_pvd')
    a('v_mov_b32 v8, 1')
    a.lanes_lt(1)
    a('ds_add_u32 v58, v8')
    a.full()
    a.stamp('pvst')
    deferred()
    a.lds_wait(58, 8, off=16, extra='ds_read_b64 v[36:37], v57')
    a(f'v_mov_b32 v8, 1\nv_mov_b32 v33, {TAG}\nv_mov_b32 v32, v36\nv_mov_b32 v34, v37\nv_mov_b32 v35, {TAG}')
    a.lanes_lt(32)
    a(f's_waitcnt vmcnt(0)\nglobal_store_dwordx4 v56, v[32:35], {WS} sc1')
    a.lanes_lt(1)
    a('ds_add_u32 v58, v8 offset:12')
    a.full()
    a.stamp('auxpub')
    a(f'''v_lshlrev_b32 v9, 2, v2
v_add_u32 v9, {STB + 576}, v9
s_lshl_b32 s40, s3, 9
s_add_u32 s40, s40, {SIDE}
v_lshlrev_b32 v10, 13, v2
v_lshl_add_u32 v10, v3, 4, v10
v_add_u32 v10, s40, v10
v_lshlrev_b32 v11, 4, v2
v_add_u32 v11, {STB}, v11
''')
    a.lds_wait(58, 1, off=4, extra='ds_read2_b32 v[40:41], v9 offset0:0 offset1:16')
    for ht in range(2):
        a(f'''v_cmp_gt_u32 s[42:43], 4, v{40+ht}
s_cmp_eq_u64 s[42:43], 0
s_cbranch_scc1 LB_cn{ht}
ds_read_b128 v[16:19], v4 offset:{4608 + ht*16*144}
ds_read_b128 v[20:23], v4 offset:{4608 + ht*16*144 + 64}
ds_read_b64 v[44:45], v11 offset:{ht*256 + 8}
v_and_b32 v42, 3, v{40+ht}
v_lshl_add_u32 v42, v42, 11, v10
v_add_u32 v42, {ht*16*8192}, v42
s_waitcnt lgkmcnt(0)''')
        for t in range(6):
            for hf in range(2):
                d = 160 + (t*2+hf)*4
                for ks in range(2):
                    a(f'v_mfma_f32_16x16x32_bf16 {vr(d,4)}, {vr(64+((t*2+hf)*2+ks)*4,4)}, {vr(16+ks*4,4)}, {"0" if ks == 0 else vr(d,4)}')
        for t in range(6):
            for k in range(4): a(f'v_cvt_pk_bf16_f32 v{208+4*t+k}, v{160+8*t+2*k}, v{161+8*t+2*k}')
        a.san(range(208, 232))
        a(f'v_mov_b32 v46, v45\nv_mov_b32 v45, {TAG}\nv_mov_b32 v47, {TAG}\ns_mov_b64 exec, s[42:43]')
        for t in range(6): a(f'global_store_dwordx4 v42, {vr(208+4*t,4)}, {WS} offset:{64*t} sc1')
        a(f's_and_b64 exec, exec, 0xffff\nglobal_store_dwordx4 v42, v[44:47], {WS} offset:384 sc1')
        a.full()
        a.label(f'LB_cn{ht}')
    a('v_mov_b32 v8, 1')
    a.lanes_lt(1)
    a('ds_add_u32 v58, v8')
    a.full()
    a('s_branch LB_lw2')
    a.label('LB_lw')
    a('s_setprio 0')
    deferred()
    a.wave_is('eq', 4, 'LB_lw3')
    a(f'''v_and_b32 v9, 31, v1
v_lshlrev_b32 v10, 2, v9
v_add_u32 v10, {STB + 576}, v10
s_lshl_b32 s40, s39, 4
s_add_u32 s40, s40, s38
s_lshl_b32 s40, s40, 8
s_add_u32 s40, s40, {MB}
v_lshl_add_u32 v9, v9, 3, s40
''')
    a.lds_wait(58, P['ew_cnt'], sleep=2)
    a.poll(lambda: a(f'global_load_dwordx2 v[16:17], v9, {WS} sc1'), lambda: a.chk_tag([17], 8), sleep=P['sl_el'])
    a.stamp('el')
    a('ds_write_b32 v10, v16\nv_mov_b32 v8, 1\nds_write_b32 v58, v8 offset:4')
    a.label('LB_lw2')
    a.lds_wait(58, 8, sleep=P['sl_lw'])
    a('s_branch LB_late')
    a.label('LB_lw3')
    if P['early_late']: a.lds_wait(58, 4, off=12, sleep=P['sl_lw'])
    else: a.lds_wait(58, 8, sleep=P['sl_lw'])
    a.label('LB_late')
    def gate2(): a.lds_wait(58, 8, sleep=P['sl_lw'])
    a('s_cmp_lt_u32 s54, 80\ns_cbranch_scc0 LB_hi')
    a.wave_is('ge', 4, 'LB_wob')
    a(f'''s_mul_i32 s40, s39, 768
s_mul_i32 s41, s45, 192
s_add_u32 s40, s40, s41
s_lshl_b32 s41, s38, 7''')
    blk2_addr(a, 4, 's40', 1280, 's41')
    a(f'v_add_u32 v5, {64*1280}, v4\nv_add_u32 v6, {128*1280}, v4')
    for i in range(3):
        a.load_rows(64 + 32*i, 4, 4 + i, WO, 1280)
        if i == P['early_late'] - 1: gate2()
    a(f'''s_mul_i32 s40, s39, 12
s_mul_i32 s41, s45, 3
s_add_u32 s40, s40, s41
s_lshl_b32 s40, s40, 10
s_add_u32 s40, s40, {H5}
v_lshl_add_u32 v4, v1, 4, s40
s_mul_i32 s40, s45, 384
s_add_u32 s40, s40, {MISC + 4096}
v_lshl_add_u32 v5, v2, 2, v3
v_lshl_add_u32 v5, v5, 1, s40      ; (4p+g)*2''')
    frag2_addr(a, 6, 's40')
    gemv_out_prep(a, MISC + 2048 - 1024)
    for i in range(3):
        a(f's_waitcnt vmcnt({16 - 8*i})')
        a.perm_block(160 + 32*i, 64 + 32*i)
    a.stamp('late')
    if P['probe_h5']: a.probe(4, 8, off=2048, sleep=P['sl_pr'], post=P['post_h5'], mask=0x0001000100010001)
    def ld():
        for i in range(3): a(f'global_load_dwordx4 {vr(16+4*i,4)}, v4, {WS} offset:{1024*i} sc1')
    a.poll(ld, lambda: a.chk_sent(range(16, 28), 8), sleep=P['sl_h5'])
    a.stamp('h5')
    a('s_setprio 3')
    for i in range(3): a.xrow_tr4(16 + 4*i)
    for i in range(3): a(f'v_cvt_pk_bf16_f32 v{16+4*i}, v{16+4*i}, v{16+4*i}\nds_write_b16 v5, v{16+4*i} offset:{128*i}')
    a('s_waitcnt lgkmcnt(0)')
    for i in range(3): a(f'ds_read_b128 {vr(16+4*i,4)}, v6 offset:{128*i}')
    for i in range(3):
        a(f's_waitcnt lgkmcnt({2-i})')
        a.gemv2(64, 16 + 4*i, 160 + 32*i, i == 0)
    gemv_out_lds(a, 64, 0)
    a.label('LB_wob')
    a(f'''v_lshlrev_b32 v4, 4, v2
v_add_u32 v4, {MISC + 2048}, v4
s_mul_i32 s40, s39, 2560
s_lshl_b32 s41, s38, 8
s_add_u32 s40, s40, s41
s_add_u32 s40, s40, {H6}
v_lshl_add_u32 v5, v2, 4, s40''')
    a.bar()
    a.wave_is('eq', 4, 'Lfin')
    for i in range(4): a(f'ds_read_b128 {vr(16+4*i,4)}, v4 offset:{256*i}')
    a('s_waitcnt lgkmcnt(0)')
    tree(a, range(16, 32, 4), n=4)
    a.lanes_lt(16)
    a(f'global_store_dwordx4 v5, v[16:19], {WS} sc1')
    a.full()
    a.stamp('h6pub')
    a('s_branch Lfin')
    a.label('LB_hi')
    a('s_cmp_lt_u32 s54, 104\ns_cbranch_scc0 LB_mr')
    a(f's_sub_u32 s46, s54, 80\ns_lshl_b32 s40, s46, 6\ns_lshl_b32 s41, s3, 7')
    blk2_addr(a, 10, 's40', 1280, 's41')
    a.wave_is('lt', 5, 'LB_f5')
    a(f's_lshl_b32 s40, s3, 7\ns_lshl_b32 s41, s46, 7')
    blk2_addr(a, 4, 's40', 3072, 's41')
    a(f'v_add_u32 v5, {64*3072}, v4\nv_lshlrev_b32 v6, 2, v0\nglobal_load_dword v24, v6, {X}')
    a.load_rows(128, 4, 4, W1, 3072)
    a.load_rows(160, 4, 5, W1, 3072)
    a.load_rows(64, 4, 10, W2, 1280)
    a(f'v_lshlrev_b32 v4, 2, v0\nv_add_u32 v4, {MODR}, v4\nv_add_u32 v5, 2560, v4\ns_waitcnt vmcnt(8)')
    a.perm_block(192, 128)
    a.perm_block(224, 160)
    a('s_waitcnt vmcnt(0)')
    a.stamp('late1')
    a.perm_block(96, 64)
    a.ready_check(0, 36)
    def ld():
        a(f'''global_load_dword v25, v4, {WS} sc1
global_load_dword v26, v4, {WS} offset:1280 sc1
global_load_dword v27, v5, {WS} sc1
global_load_dword v38, v5, {WS} offset:1280 sc1''')
    a.poll(ld, lambda: a.chk_sent([25, 26, 27, 38], 8), sleep=8)
    a(f'''v_lshlrev_b32 v4, 3, v0
v_add_u32 v8, {H6}, v4
v_lshlrev_b32 v28, 16, v24
v_and_b32 v29, 0xffff0000, v24
v_lshlrev_b32 v30, 16, v25
v_and_b32 v31, 0xffff0000, v25
v_lshlrev_b32 v32, 16, v26
v_and_b32 v33, 0xffff0000, v26
v_lshlrev_b32 v34, 16, v27
v_and_b32 v35, 0xffff0000, v27
v_add_f32 v34, 1.0, v34
v_add_f32 v35, 1.0, v35''')
    a.rnd(34, 34); a.rnd(35, 35)
    for i in range(1, 4): a(f'v_add_u32 v{8+i}, {5120*i}, v8')
    a(f'''s_lshl_b32 s40, s3, 3
s_add_u32 s40, s40, {MISC + 8192}
v_mov_b32 v13, s40
s_lshl_b32 s40, s3, 8
s_add_u32 s40, s40, {MISC + 4096}
v_lshl_add_u32 v5, v1, 2, s40''')
    frag2_addr(a, 6, 's40')
    gemv_out_prep(a, MISC)
    a(f'v_mul_u32_u24 v37, 2560, v1\ns_lshl_b32 s40, s3, 9\ns_add_u32 s40, s40, {H6}\nv_add_u32 v37, s40, v37')
    if P['probe_h6']: a.probe(37, 4, sleep=P['sl_pr'], post=P['post_h6'], mask=0xff)
    def ld():
        for i in range(8): a(f'global_load_dwordx2 {vr(40+2*i,2)}, v{8 + i//2}, {WS} offset:{2560*(i%2)} sc1')
    if P['m_h6']:
        a.poll_masked([(f'global_load_dwordx2 {vr(40+2*i,2)}, v{8 + i//2}, {WS} offset:{2560*(i%2)} sc1', range(40+2*i, 42+2*i)) for i in range(8)], 4, sleep=P['sl_h6'])
    else: a.poll(ld, lambda: a.chk_sent(range(40, 56), 4), sleep=P['sl_h6'])
    a.stamp('h6')
    a('s_setprio 3')
    tree(a, range(40, 56, 2), n=2)
    for i in range(2): a.rnd(40 + i, 40 + i)
    for i in range(2): a(f'v_mul_f32 v{40+i}, v{30+i}, v{40+i}')
    for i in range(2): a.rnd(40 + i, 40 + i)
    for i in range(2): a(f'v_add_f32 v{40+i}, v{28+i}, v{40+i}')
    a('''v_cvt_pk_bf16_f32 v36, v40, v41
v_lshlrev_b32 v40, 16, v36
v_and_b32 v41, 0xffff0000, v36
v_readfirstlane_b32 s42, v40
v_subrev_f32 v44, s42, v40
v_subrev_f32 v45, s42, v41
v_add_f32 v42, v44, v45
v_mul_f32 v43, v44, v44
v_fmac_f32 v43, v45, v45''')
    a.row_red('v_add_f32', [42, 43])
    a(f'''v_permlane16_swap_b32 v42, v43
v_add_f32 v42, v42, v43
v_mov_b32 v43, v42
v_permlane32_swap_b32 v42, v43
v_add_f32 v42, v42, v43
v_mov_b32 v43, v42
v_permlane16_swap_b32 v42, v43
v_mul_f32 v42, {f2u(1/128):#x}, v42
v_mul_f32 v44, {f2u(128.0):#x}, v42
v_fma_f32 v43, -v44, v42, v43
v_add_f32 v42, s42, v42
ds_write_b64 v13, v[42:43]
s_branch LB_w1b''')
    a.label('LB_f5')
    a.load_rows(64, 4, 10, W2, 1280)
    if P['early_late'] < 2: gate2()
    a.wave_is('lt', 7, 'LB_f7')
    a(f's_lshl_b32 s40, s46, 6\ns_add_u32 s41, s3, 3\ns_lshl_b32 s41, s41, 7')
    blk2_addr(a, 10, 's40', 1280, 's41')
    a.load_rows(128, 4, 10, W2, 1280)
    a.label('LB_f7')
    a('s_waitcnt vmcnt(0)')
    a.perm_block(96, 64)
    a.perm_block(192, 128)
    a.label('LB_w1b')
    a(f'v_mov_b32 v4, {MISC + 8192}')
    a.bar()
    a('s_setprio 3')
    a.wave_is('lt', 5, 'LB_w1c')
    a(f'''ds_read_b128 v[44:47], v4
ds_read_b128 v[48:51], v4 offset:16
ds_read_b64 v[52:53], v4 offset:32
s_waitcnt lgkmcnt(0)
v_add_f32 v54, v44, v46
v_add_f32 v55, v48, v50
v_add_f32 v56, v45, v47
v_add_f32 v54, v54, v55
v_add_f32 v57, v49, v51
v_add_f32 v54, v54, v52
v_add_f32 v55, v56, v57
v_mul_f32 v54, {f2u(0.2):#x}, v54      ; mean
v_add_f32 v55, v55, v53''')
    for r in (44, 46, 48, 50, 52): a(f'v_sub_f32 v{r}, v{r}, v54')
    a('v_mul_f32 v56, v44, v44\nv_mul_f32 v57, v46, v46\nv_fmac_f32 v56, v48, v48\nv_fmac_f32 v57, v50, v50\nv_fmac_f32 v56, v52, v52\nv_add_f32 v56, v56, v57')
    a(f'v_fmac_f32 v55, {f2u(128.0):#x}, v56\nv_mul_f32 v55, {f2u(1/640):#x}, v55')
    ln_finish(a, 54, 55, 56)
    for i in range(2): a(f'v_sub_f32 v{44+i}, v{40+i}, v54')
    for i in range(2): a.rnd(44 + i, 44 + i)
    for i in range(2): a.div(42 + i, 44 + i, 55, 56, 57 + i)
    for i in range(2): a.rnd(42 + i, 42 + i)
    for i in range(2): a(f'v_mul_f32 v{42+i}, v{42+i}, v{34+i}')
    for i in range(2): a.rnd(42 + i, 42 + i)
    for i in range(2): a(f'v_add_f32 v{42+i}, v{42+i}, v{32+i}')
    a('''v_cvt_pk_bf16_f32 v42, v42, v43
ds_write_b32 v5, v42
s_waitcnt lgkmcnt(0)
ds_read_b128 v[16:19], v6
ds_read_b128 v[20:23], v6 offset:128
s_waitcnt lgkmcnt(1)''')
    a.gemv2(128, 16, 192, True)
    a('s_waitcnt lgkmcnt(0)')
    a.gemv2(128, 20, 224, False)
    gemv_out_lds(a, 128, MISC)
    a.label('LB_w1c')
    a(f'''v_and_b32 v4, 31, v1
v_lshlrev_b32 v5, 2, v4
v_lshlrev_b32 v4, 3, v4
v_add_u32 v4, {MISC}, v4
s_lshl_b32 s40, s3, 7
s_add_u32 s40, s40, {MISC + 6144}
v_add_u32 v5, s40, v5''')
    frag2_addr(a, 6, 's40')
    a(f's_mul_i32 s40, s46, 2560\ns_lshl_b32 s41, s3, 8\ns_add_u32 s40, s40, s41\ns_add_u32 s40, s40, {H7Y}')
    pack_addr(a, 14, 's40')
    a.bar()
    for i in range(5): a(f'ds_read_b64 {vr(16+2*i,2)}, v4 offset:{256*i}')
    a('s_waitcnt lgkmcnt(0)')
    tree(a, range(16, 26, 2), n=2)
    a('''v_max_f32 v16, 0, v16
v_max_f32 v17, 0, v17
v_cvt_pk_bf16_f32 v8, v16, v17
ds_write_b32 v5, v8
s_waitcnt lgkmcnt(0)
ds_read_b128 v[16:19], v6
s_waitcnt lgkmcnt(0)''')
    a.gemv2(64, 16, 96, True)
    a('s_sub_u32 s40, s3, 5\ns_cmp_lt_u32 s40, 2\ns_cbranch_scc0 LB_y1')
    a.gemv2(128, 16, 192, True)
    a.label('LB_y1')
    a.pack2(8, 64)
    a.lanes_lt(16)
    a(f'global_store_dwordx4 v14, v[8:11], {WS} sc1')
    a.full()
    a('s_cbranch_scc0 LB_y2')
    a.pack2(20, 128)
    a.lanes_lt(16)
    a(f'global_store_dwordx4 v14, v[20:23], {WS} offset:768 sc1')
    a.full()
    a.label('LB_y2')
    a.stamp('h7pub')
    a('s_lshr_b32 s40, s46, 2\ns_cmp_eq_u32 s40, s3\ns_cbranch_scc0 Lfin\ns_cmp_lt_u32 s3, 5\ns_cbranch_scc0 Lfin\ns_and_b32 s40, s46, 3\ns_lshl_b32 s40, s40, 4\ns_mov_b64 s[42:43], 0xffff\ns_lshl_b64 exec, s[42:43], s40')
    a(f'v_lshlrev_b32 v4, 3, v0\nv_add_u32 v4, {H7Y}, v4')
    for i in range(1, 12): a(f'v_add_u32 v{16+i}, {5120*i}, v4')
    a(f'''v_mov_b32 v16, v4
v_lshlrev_b32 v5, 2, v0
v_lshlrev_b32 v30, 16, v38
v_and_b32 v31, 0xffff0000, v38''')
    def ld():
        for i in range(24): a(f'global_load_dwordx2 {vr(64+2*i,2)}, v{16 + i//2}, {WS} offset:{2560*(i%2)} sc1')
    a.poll(ld, lambda: a.chk_sent(range(64, 112), 4), sleep=P['sl_h7'], pre=P['pre_h7'])
    a.stamp('h7')
    tree(a, range(64, 112, 2), n=2)
    for i in range(2): a.rnd(64 + i, 64 + i)
    for i in range(2): a(f'v_mul_f32 v{64+i}, v{30+i}, v{64+i}')
    for i in range(2): a.rnd(64 + i, 64 + i)
    for i in range(2): a(f'v_add_f32 v{64+i}, v{40+i}, v{64+i}')
    a(f'v_cvt_pk_bf16_f32 v64, v64, v65\nglobal_store_dword v5, v64, {OUT}\ns_mov_b64 exec, -1')
    a.stamp('out')
    a('s_branch Lfin')
    a.label('LB_mr')
    a('s_cmp_lt_u32 s54, 124\ns_cbranch_scc0 Lfin\ns_sub_u32 s46, s54, 104\ns_add_u32 s45, s3, 3\ns_and_b32 s45, s45, 7\ns_cmp_lt_u32 s45, 5\ns_cbranch_scc0 LB_mrb')
    a(f'''s_lshl_b32 s40, s45, 7
v_lshl_add_u32 v4, v3, 3, s40      ; row = 128w + 8g
v_lshlrev_b32 v6, 1, v4
v_add_u32 v6, {MISC + 4096}, v6
v_mul_u32_u24 v4, 7680, v4
v_lshl_add_u32 v4, v2, 4, v4
s_lshl_b32 s40, s46, 8
s_add_u32 s40, s40, 2560
v_add_u32 v4, s40, v4
s_lshl_b32 s40, s45, 8
v_lshl_add_u32 v7, v1, 2, s40
global_load_dword v16, v7, {CC}
v_add_u32 v7, {MISC + 4096}, v7''')
    for i in range(4):
        a.load_rows(64 + 32*i, 4, 4, WMOD, 7680)
        if i < 3: a(f'v_add_u32 v4, {25*7680}, v4')
        if i == P['early_late'] - 1: gate2()
    a('s_waitcnt vmcnt(32)')
    a('v_lshlrev_b32 v32, 16, v16\nv_and_b32 v33, 0xffff0000, v16')
    a.silu(32, 32, 8); a.silu(33, 33, 8)
    a(f'v_perm_b32 v16, v33, v32, {PHI}\nds_write_b32 v7, v16\ns_waitcnt lgkmcnt(0)')
    for i in range(4): a(f'ds_read_b128 {vr(16+4*i,4)}, v6 offset:{64*i}')
    a('s_waitcnt lgkmcnt(0)')
    a(f'''v_cmp_eq_u32 s[42:43], 1, v3
v_lshlrev_b32 v4, 5, v2
v_lshl_add_u32 v4, v3, 4, v4
s_lshl_b32 s40, s45, 9
s_add_u32 s40, s40, {MISC}
v_add_u32 v4, s40, v4''')
    for i in range(4):
        a(f's_waitcnt vmcnt({24 - 8*i})')
        a.perm_block(192, 64 + 32*i)
        a.gemv2(224, 16 + 4*i, 192, i == 0)
    a.stamp('late2')
    for i in range(4): a(f'v_cndmask_b32 v{8+i}, v{224+4*i}, v{224+4*(i+4)}, s[42:43]')
    a.lanes_lt(32)
    a('ds_write_b128 v4, v[8:11]')
    a.full()
    a.label('LB_mrb')
    a.bar()
    a.wave_is('eq', 2, 'Lfin')
    a(f'v_lshlrev_b32 v4, 3, v1\nv_add_u32 v4, {MISC}, v4')
    for i in range(5): a(f'ds_read_b64 {vr(16+2*i,2)}, v4 offset:{512*i}')
    a(f's_lshl_b32 s40, s46, 8\ns_add_u32 s40, s40, {MODR}\nv_lshl_add_u32 v4, v1, 2, s40\ns_waitcnt lgkmcnt(0)')
    tree(a, range(16, 26, 2), n=2)
    a('v_cvt_pk_bf16_f32 v8, v16, v17')
    a.san([8])
    for i in range(1, 4): a(f'v_mov_b32_dpp v{8+i}, v8 quad_perm:[{i},{i},{i},{i}] row_mask:0xf bank_mask:0xf')
    a.exec_mask(0x1111111111111111)
    a(f'global_store_dwordx4 v4, v[8:11], {WS} sc1')
    a.full()
    a.stamp('mrpub')
    a('s_branch Lfin')

LS1, LQ, LKEY, LEK, LWT, LWP, LFW, LKP = 0, 2816, 3328, 3840, 4096, 4608, 5120, 6144
LRP = LKP + 18432; LCC = LRP + 6144; LVP = LCC + 1024; LQF = LVP + 4608; LSR = LQF + 1024; LFL = LSR + 1536
def load_uk(a, base, off=128, lo=0, hi=8, v=4, rm=None):
    if lo == hi: return
    rm = rm or (lambda j: (off + 4*j, off + 32 + 2*j))
    a(f'''s_mul_i32 s40, s41, 192
s_lshl_b32 s42, s3, 5
s_add_u32 s40, s40, s42
s_add_u32 s40, s40, {lo}
v_lshl_add_u32 v{v}, v3, 3, s40
v_mul_u32_u24 v{v}, 12288, v{v}
s_mul_i32 s40, s47, 384
v_add_u32 v{v}, s40, v{v}
v_lshl_add_u32 v{v+1}, v2, 3, v{v}
v_lshl_add_u32 v{v}, v2, 4, v{v}''')
    for j in range(lo, hi):
        a(f'global_load_dwordx4 {vr(rm(j)[0],4)}, v{v}, {base} nt')
        a(f'global_load_dwordx2 {vr(rm(j)[1],2)}, v{v+1}, {base} offset:256 nt')
        if j < hi - 1: a(f'v_add_u32 v{v}, 12288, v{v}\nv_add_u32 v{v+1}, 12288, v{v+1}')
def perm12(a, dst, src=128, rm=None):
    rm = rm or (lambda j: (src + 4*j, src + 32 + 2*j))
    for e in range(12):
        w, ee = (0, e) if e < 8 else (1, e - 8)
        for k in range(4):
            a(f'v_perm_b32 v{dst+4*e+k}, v{rm(2*k+1)[w]+(ee>>1)}, v{rm(2*k)[w]+(ee>>1)}, {PHI if ee & 1 else PLO}')
def mfma12(a, D, A, F):
    for e in range(12): a(f'v_mfma_f32_16x16x32_bf16 {vr(D+4*e,4)}, {vr(A,4)}, {vr(F+4*e,4)}, 0')
def out12_prep(a, v, lbase):
    a(f's_mul_i32 s40, s3, 768\ns_add_u32 s40, s40, {lbase}\nv_lshl_add_u32 v{v}, v2, 5, s40\nv_lshl_add_u32 v{v+1}, v2, 4, s40')
def out12(a, D, o, v):
    for e in range(12): a(f'v_add_f32 v{o+e}, v{D+4*e}, v{D+4*e+1}')
    a.lanes_lt(16)
    a(f'ds_write_b128 v{v}, {vr(o,4)}\nds_write_b128 v{v}, {vr(o+4,4)} offset:16\nds_write_b128 v{v+1}, {vr(o+8,4)} offset:512')
    a.full()
def weights_out(a, val, lbase, k):
    a(f'''v_cvt_pk_bf16_f32 v8, v{val}, v{val}
ds_write_b16 v4, v8 offset:{lbase + 128*k}
v_and_b32 v9, 0xffff0000, v8
v_sub_f32 v9, v{val}, v9
v_cvt_pk_bf16_f32 v9, v9, v9
ds_write_b16 v4, v9 offset:{lbase + 256 + 128*k}''')

def role_A(a):
    P = a.P
    a(f'''s_and_b32 s44, s2, 7
s_lshl_b32 s44, s44, 4
s_bfe_u32 s40, s2, 0x40003
s_add_u32 s44, s44, s40
s_xor_b32 s43, s44, {P['s1x']}
s_cmp_lt_u32 s44, 64
s_cselect_b32 s43, s44, s43
s_mul_i32 s39, s43, 205
s_lshr_b32 s39, s39, 11          ; kp
s_mul_i32 s40, s39, 10
s_sub_u32 s38, s43, s40          ; mg
s_lshr_b32 s47, s44, 2           ; head
s_and_b32 s41, s44, 3            ; quarter
v_mov_b32 v12, 0
s_mul_i32 s40, s39, 80
s_lshl_b32 s42, s3, 4
s_add_u32 s40, s40, s42
v_lshl_add_u32 v5, v3, 2, s40      ; row0
v_mul_u32_u24 v4, 7680, v5
v_lshrrev_b32 v6, 3, v2
v_mul_u32_u24 v6, 1152, v6
v_lshl_add_u32 v6, v2, 4, v6
s_lshl_b32 s42, s38, 7
v_add3_u32 v4, v4, v6, s42
v_lshlrev_b32 v5, 1, v5
s_waitcnt lgkmcnt(0)''')
    a.stamp('start')
    a.wave_is('lt', 5, 'LA_nos1')
    a('s_cmp_lt_u32 s39, 8\ns_cbranch_scc0 LA_nos1')
    a(f'global_load_dwordx2 v[32:33], v5, {CC}')
    a.load_rows(16, 4, 4, WMOD, 7680, rows=4)
    a(f'global_load_dword v15, v12, {WS} sc1')
    U1 = P['uk1']
    load_uk(a, WUK, hi=U1)
    a.stamp('x1')
    a('s_branch LA2')

def role_A2(a):
    P = a.P; U1 = P['uk1']
    a.label('LA2')
    consts(a)
    a(f'''s_waitcnt vmcnt({5+2*U1})
v_lshlrev_b32 v36, 16, v32
v_and_b32 v37, 0xffff0000, v32
v_lshlrev_b32 v38, 16, v33
v_and_b32 v39, 0xffff0000, v33''')
    a.stamp('x2')
    for i in range(4): a.silu(36 + i, 36 + i, 8)
    a.stamp('x3')
    a(f'''v_perm_b32 v34, v37, v36, {PHI}
v_perm_b32 v35, v39, v38, {PHI}
v_cmp_eq_u32 vcc, 1, v3
v_lshlrev_b32 v4, 5, v2
v_lshl_add_u32 v4, v3, 4, v4
s_lshl_b32 s40, s3, 9
v_add_u32 v4, s40, v4''')
    a(f's_waitcnt vmcnt({1+2*U1})')
    a.stamp('x4')
    for e in range(8):
        for k in range(2):
            a(f'v_perm_b32 v{40+2*e+k}, v{16+(2*k+1)*4+(e>>1)}, v{16+2*k*4+(e>>1)}, {PHI if e & 1 else PLO}')
        a(f'v_mfma_f32_16x16x16_bf16 {vr(64+4*e,4)}, v[34:35], {vr(40+2*e,2)}, 0')
    for i in range(4): a(f'v_cndmask_b32 v{8+i}, v{64+4*i}, v{64+4*(i+4)}, vcc')
    a.lanes_lt(32)
    a('ds_write_b128 v4, v[8:11]')
    a.full()
    a(f's_waitcnt vmcnt({2*U1})')
    a.get_tag()
    a('s_branch LA_b1')
    a.label('LA_nos1')
    a('s_getreg_b32 s16, hwreg(HW_REG_XCC_ID, 0, 4)' if False else 's_nop 0')
    a(f'global_load_dword v15, v12, {WS} sc1')
    a.wave_is('lt', 6, 'LA_nos1b')
    load_uk(a, WUK, hi=U1)
    a.label('LA_nos1b')
    consts(a)
    a.wave_is('eq', 7, 'LA_not7')
    neg1(a)
    a(f'''s_mul_i32 s40, s41, 12288
s_lshr_b32 s42, s47, 4
s_lshl_b32 s42, s42, 10
s_add_u32 s40, s40, s42
s_and_b32 s42, s47, 15
s_lshl_b32 s42, s42, {4 if P['h2lay'] else 6}
s_add_u32 s40, s40, s42
s_add_u32 s40, s40, {H2}
v_lshrrev_b32 v4, 2, v1
v_min_u32 v4, 5, v4
v_lshlrev_b32 v4, 11, v4
v_and_b32 v5, 3, v1
v_lshl_add_u32 v4, v5, {8 if P['h2lay'] else 4}, v4
v_add_u32 v4, s40, v4
global_store_dwordx4 v4, v[8:11], {WS} sc1''')
    a.ready_publish()
    a(f'''s_mul_i32 s40, s44, 3072
s_add_u32 s40, s40, {H4S}
v_lshl_add_u32 v4, v1, 4, s40
global_store_dwordx4 v4, v[8:11], {WS} sc1
global_store_dwordx4 v4, v[8:11], {WS} offset:1024 sc1
global_store_dwordx4 v4, v[8:11], {WS} offset:2048 sc1
s_lshl_b32 s40, s47, 13
s_lshl_b32 s42, s41, 9
s_add_u32 s40, s40, s42
s_add_u32 s40, s40, {SIDE}
v_lshrrev_b32 v4, 5, v1
v_lshlrev_b32 v4, 11, v4
v_and_b32 v5, 31, v1
v_lshl_add_u32 v4, v5, 4, v4
v_add_u32 v4, s40, v4
v_add_u32 v5, 4096, v4
global_store_dwordx4 v4, v[8:11], {WS} sc1
global_store_dwordx4 v5, v[8:11], {WS} sc1
s_mul_i32 s40, s47, 3072
s_lshl_b32 s42, s41, 8
s_add_u32 s40, s40, s42
s_add_u32 s40, s40, {H5}
v_min_u32 v4, 2, v3
v_lshlrev_b32 v4, 10, v4
v_lshl_add_u32 v4, v2, 4, v4
v_add_u32 v4, s40, v4
global_store_dwordx4 v4, v[8:11], {WS} sc1''')
    a('s_branch LA_b1')
    a.label('LA_not7')
    a.wave_is('eq', 6, 'LA_b1')
    code_warm(a)
    if P['tlb']:
        a(f'''s_mov_b32 s50, 196608
v_mul_lo_u32 v4, v1, s50
global_load_dword v14, v4, {CKV} nt
v_lshlrev_b32 v4, 17, v1
global_load_dword v14, v4, {WS} offset:64 nt''')
    a.label('LA_b1')
    a(f'''v_lshlrev_b32 v4, 2, v1
s_lshl_b32 s40, s38, 13
s_lshl_b32 s42, s39, 7
s_add_u32 s40, s40, s42
s_add_u32 s40, s40, {H1}
v_lshrrev_b32 v5, 3, v1
v_lshlrev_b32 v5, 10, v5
v_and_b32 v6, 7, v1
v_lshl_add_u32 v5, v6, 4, v5
v_add_u32 v5, s40, v5
v_mov_b32 v9, {TAG}
v_mov_b32 v11, {TAG}''')
    a('s_cmp_lt_u32 s39, 8\ns_cbranch_scc0 LA_u80')
    a.bar()
    a.wave_is('eq', 0, 'LA_uk0')
    for w in range(5): a(f'ds_read2st64_b32 {vr(16+2*w,2)}, v4 offset0:{2*w} offset1:{2*w+1}')
    a(f'''s_waitcnt lgkmcnt(0)
v_add_f32 v16, v16, v18
v_add_f32 v17, v17, v19
v_add_f32 v20, v20, v22
v_add_f32 v21, v21, v23
v_add_f32 v16, v16, v20
v_add_f32 v17, v17, v21
v_add_f32 v8, v16, v24
v_add_f32 v10, v17, v25
global_store_dwordx4 v5, v[8:11], {WS} sc1''')
    a.stamp('h1pub')
    a.label('LA_uk0')
    a('s_barrier\ns_branch LA_uk')
    a.label('LA_u80')
    if P['sl_a80']: a(f's_sleep {P["sl_a80"]}')
    a.label('LA_uk')
    a.wave_is('lt', 6, 'LA_nouk')
    load_uk(a, WUK, lo=U1)
    V1 = P['uv1']
    rmv = lambda j: (224 + 4*j, 244 + 2*j) if j < V1 else (128 + 4*j, 160 + 2*j)
    load_uk(a, WUV, hi=V1, rm=rmv)
    a.label('LA_nouk')
    a(f'''s_mul_i32 s40, s47, 15360
s_mul_i32 s42, s3, 192
s_add_u32 s40, s40, s42
s_add_u32 s40, s40, {H1B}
v_min_u32 v5, 11, v2
v_mul_u32_u24 v4, 1536, v3
v_lshl_add_u32 v4, v5, 4, v4
v_add_u32 v4, s40, v4
v_add_u32 v7, 6144, v4
v_add_u32 v13, 12288, v4
s_mul_i32 s40, s3, 48
v_and_b32 v8, 1, v3
v_lshl_add_u32 v5, v5, 1, v8
v_lshl_add_u32 v5, v5, 1, s40      ; (24w+2dp+(g&1))*2
v_lshlrev_b32 v40, 5, v2
v_lshlrev_b32 v41, 4, v2
v_lshlrev_b32 v42, 1, v5
s_mul_i32 s40, s41, 6
s_add_u32 s40, s40, s3
s_lshl_b32 s40, s40, 11
s_lshr_b32 s42, s47, 4
s_lshl_b32 s42, s42, 10
s_add_u32 s40, s40, s42
s_and_b32 s42, s47, 15
s_lshl_b32 s42, s42, {4 if P['h2lay'] else 6}
s_add_u32 s40, s40, s42
s_add_u32 s40, s40, {H2}
v_lshl_add_u32 v6, v3, {8 if P['h2lay'] else 4}, s40
s_waitcnt vmcnt(0)''')
    a.get_tag()
    a(f'v_mov_b32 v24, 0\nv_mov_b32 v25, {TAG}\nv_mov_b32 v26, 0\nv_mov_b32 v27, {TAG}')
    a.stamp('uk')
    def U(j, k): n = j*6 + k; return 64 + 2*n if n < 32 else 176 + 2*(n - 32)
    def unp():
        a.wave_is('lt', 6, 'LA_nounp')
        for j in range(8):
            for k in range(6):
                src = 128 + 4*j + k if k < 4 else 160 + 2*j + (k - 4)
                a(f'v_lshlrev_b32 v{U(j,k)}, 16, v{src}\nv_and_b32 v{U(j,k)+1}, 0xffff0000, v{src}')
        a.label('LA_nounp')
    if P['probe_h1b']: a.probe(7, 8, off=4, sleep=P['sl_pr'], post=P['post_h1b'], tag=True, mask=0x0001000100010001)
    def ld():
        a(f'global_load_dwordx4 v[16:19], v4, {WS} sc1\nglobal_load_dwordx4 v[20:23], v7, {WS} sc1')
        a.lanes_lt(32)
        a(f'global_load_dwordx4 v[24:27], v13, {WS} sc1')
        a.full()
    a.poll(ld, lambda: a.chk_tag(range(17, 28, 2), 8), sleep=P['sl_h1b'], mid=unp)
    a.stamp('h1b')
    a('s_setprio 3')
    a(f'''v_add_f32 v16, v16, v20
v_add_f32 v18, v18, v22
v_add_f32 v16, v16, v24
v_add_f32 v18, v18, v26
v_permlane16_swap_b32 v16, v18
v_add_f32 v16, v16, v18
v_mov_b32 v18, v16
v_permlane32_swap_b32 v16, v18
v_add_f32 v16, v16, v18
v_cvt_pk_bf16_f32 v16, v16, v16
v_and_b32 v17, 0xffff0000, v16
ds_write_b32 v42, v17 offset:{LQF}
ds_write_b16 v5, v16 offset:{LQ}''')
    a.bar()
    a.wave_is('lt', 6, 'LA_nos3')
    a(f'ds_read_b128 v[44:47], v40 offset:{LQF}\nds_read_b128 v[48:51], v40 offset:{LQF+16}\nds_read_b128 v[52:55], v41 offset:{LQF+512}')
    for k in range(6):
        if k in (0, 2, 4): a(f's_waitcnt lgkmcnt({2 - k//2})')
        for j in range(8):
            if k == 0: a(f'v_pk_mul_f32 {vr(208+2*j,2)}, {vr(U(j,k),2)}, {vr(44+2*k,2)}')
            else: a(f'v_pk_fma_f32 {vr(208+2*j,2)}, {vr(U(j,k),2)}, {vr(44+2*k,2)}, {vr(208+2*j,2)}')
    for j in range(8): a(f'v_add_f32 v{24+j}, v{208+2*j}, v{209+2*j}')
    for i in range(4): a(f'v_add_f32_dpp v{32+i}, v{24+i}, v{24+i} row_ror:8 row_mask:0xf bank_mask:0x3')
    for i in range(4): a(f'v_add_f32_dpp v{32+i}, v{28+i}, v{28+i} row_ror:8 row_mask:0xf bank_mask:0xc')
    for i in range(2): a(f'v_add_f32_dpp v{36+i}, v{32+i}, v{32+i} row_shl:4 row_mask:0xf bank_mask:0x5')
    for i in range(2): a(f'v_add_f32_dpp v{36+i}, v{34+i}, v{34+i} row_shr:4 row_mask:0xf bank_mask:0xa')
    for qp in ('[2,3,0,1]', '[1,0,3,2]'):
        for i in range(2): a(f'v_add_f32_dpp v{36+i}, v{36+i}, v{36+i} quad_perm:{qp} row_mask:0xf bank_mask:0xf')
    a('v_cvt_pk_bf16_f32 v36, v36, v37')
    a.san([36])
    for i in range(1, 4): a(f'v_mov_b32_dpp v{36+i}, v36 row_shl:{4*i} row_mask:0xf bank_mask:0xf')
    a.exec_mask(0x0001000100010001)
    a(f'global_store_dwordx4 v6, v[36:39], {WS} sc1')
    a.full()
    a.stamp('h2pub')
    a('s_setprio 0')
    a('s_barrier')
    perm12(a, 64)
    if P['sl_uv']:
        if P['uv_ad']: a(f's_cmp_lt_u32 {SPIN}, {P["uv_ad"]}\ns_cbranch_scc1 LA_nsl')
        a(f's_sleep {P["sl_uv"]}')
        a.label('LA_nsl')
    load_uk(a, WUV, lo=V1, rm=rmv)
    a('s_waitcnt vmcnt(0)')
    perm12(a, 176, rm=rmv)
    a.stamp('wuv')
    a('s_branch LA_s3d')
    a.label('LA_nos3')
    a(f'v_lshlrev_b32 v4, 2, v1\nds_write_b32 v4, v12 offset:{LWP}\nv_and_b32 v4, 12, v4\nds_write_b32 v4, v12 offset:{LFL}\nv_mov_b32 v8, {NEGINF:#x}\nv_mov_b32 v9, 0\nds_write_b64 v12, v[8:9] offset:{LFW+112}\nds_write_b64 v12, v[8:9] offset:{LFW+120}\ns_setprio 0')
    a.bar()
    if P['pv_local'] and P['pf_pol'] < 3:
        if P['sl_pf']: a(f's_sleep {P["sl_pf"]}')
        a(f'''s_mul_i32 s40, s44, {CP}
s_and_b32 s42, s3, 1
s_mul_i32 s42, s42, {200*128}
s_add_u32 s40, s40, s42
s_add_u32 s40, s40, {H4}
v_lshl_add_u32 v4, v1, 7, s40''')
        for i in range(4):
            if i == 3: a.lanes_lt(8)
            a(f'global_load_dword v14, v4, {WS} {["nt", "", "sc1"][P["pf_pol"]]}')
            if i < 3: a('v_add_u32 v4, 8192, v4')
        a.full()
    a.label('LA_s3d')
    def fl_wait(i, lab, n=1): a.lds_wait(12, n, off=LFL + 4*i)
    def fl_set(i): a(f'v_mov_b32 v8, 1\nds_write_b32 v12, v8 offset:{LFL + 4*i}')
    def fl_add(i): a(f'v_mov_b32 v8, 1\ns_mov_b64 exec, 1\nds_add_u32 v12, v8 offset:{LFL + 4*i}\ns_mov_b64 exec, -1')
    def l2addr(v):
        a(f'''s_lshl_b32 s40, s3, 7
s_mul_i32 s42, s44, 6144
s_add_u32 s42, s42, s40
s_add_u32 s42, s42, {H4G}
v_and_b32 v{v}, 31, v1
v_lshrrev_b32 v{v+1}, 5, v1
v_mul_u32_u24 v{v+1}, 3072, v{v+1}
v_lshl_add_u32 v{v}, v{v}, 2, s42
v_add_u32 v{v}, v{v}, v{v+1}''')
    def esel(sh, probe):
        a(f'''s_lshl_b32 s40, {sh}, 11
s_add_u32 s40, s40, {H3}
v_lshl_add_u32 v4, v1, 4, s40
s_and_b32 s42, s47, 15
s_lshl_b32 s42, s42, 7
s_add_u32 s42, s42, {DB3}
v_lshl_add_u32 v5, v1, 11, s42
s_mov_b32 s48, {f2u(-1/64):#x}
v_mov_b32 v24, {NEGINF:#x}''')
        if probe: a.probe(5, 8, off=4, sleep=P['sl_pr3'], post=P['post_h3'], tag=True, mask=0xff)
        a.poll(lambda: a(f'global_load_dwordx4 v[28:31], v4, {WS} sc1\nglobal_load_dwordx4 v[32:35], v4, {WS} offset:1024 sc1'),
               lambda: a.chk_tag(range(29, 36, 2), 8), sleep=P['sl_h3'])
        a.stamp('h3')
        a('v_max_f32 v20, v28, v32\nv_mov_b32 v16, v28\nv_mov_b32 v18, v32')
        a.wave_red('v_max_f32', 20, 21)
        a(f'''v_and_b32 v21, 0x7f800000, v20
v_fma_f32 v20, v21, s48, v20
v_cmp_ge_f32 s[50:51], v16, v20
v_cmp_ge_f32 s[52:53], v18, v20
s_bcnt1_i32_b64 s49, s[50:51]
v_mbcnt_lo_u32_b32 v22, s50, 0
v_mbcnt_hi_u32_b32 v22, s51, v22
v_mov_b32 v23, s49
v_mbcnt_lo_u32_b32 v23, s52, v23
v_mbcnt_hi_u32_b32 v23, s53, v23
v_cmp_gt_u32 vcc, 4, v22
s_and_b64 s[50:51], s[50:51], vcc
v_cmp_gt_u32 vcc, 4, v23
s_and_b64 s[52:53], s[52:53], vcc''')
    def l1w():
        a(f'''s_lshr_b32 s40, s44, 4
s_lshl_b32 s42, 0x01010101, s40
s_mov_b32 s43, s42
v_cndmask_b32 v36, 15, v22, s[50:51]
v_cndmask_b32 v38, 15, v23, s[52:53]
v_mov_b32 v37, {TAG}
v_mov_b32 v39, {TAG}
s_lshl_b32 s40, s40, 12
s_lshl_b32 s49, s46, 3
s_add_u32 s40, s40, s49
s_add_u32 s40, s40, {MB}
v_lshrrev_b32 v5, 3, v1
v_lshl_add_u32 v4, v5, 8, s40
s_mov_b64 exec, s[42:43]''')
        a.st_local('s[38:39]', f'global_store_dwordx2 v4, v[36:37], {WS}', f'global_store_dwordx2 v4, v[38:39], {WS} offset:2048')
        a('s_mov_b64 exec, -1')
    a(f'''s_getreg_b32 s16, hwreg(HW_REG_XCC_ID, 0, 4)
s_and_b32 s40, s2, 7
s_lshl_b32 s40, s40, 4
s_add_u32 s40, s40, {READY}
v_and_b32 v4, 31, v1
v_lshl_add_u32 v4, v4, 7, s40''')
    a.poll(lambda: a(f'global_load_dwordx2 v[8:9], v4, {WS} sc1'), lambda: a.chk_tag([8], 10), sleep=4)
    a('v_cmp_ne_u32 s[38:39], s16, v9')
    a('s_and_b32 s46, s44, 15\ns_lshl_b32 s46, s46, 1\ns_and_b32 s40, s3, 1\ns_add_u32 s46, s46, s40')
    a.wave_is('ge', 6, 'LA_n6')
    esel('s46', P['probe_h3'])
    l1w()
    a.label('LA_n6')
    a.wave_is('eq', 5, 'LA_noh3')
    esel('s47', P['probe_h3'])
    a(f'''v_and_b32 v17, 63, v30
v_and_b32 v19, 63, v34
v_lshl_add_u32 v17, v1, 6, v17
v_lshl_add_u32 v19, v1, 6, v19
v_add_u32 v19, 4096, v19
v_lshlrev_b32 v4, 2, v1
v_mov_b32 v25, 999
v_add_u32 v26, 64, v1
v_lshlrev_b32 v22, 2, v22
v_lshlrev_b32 v23, 2, v23
s_mov_b64 exec, 15
ds_write_b32 v4, v17 offset:{LEK}
ds_write_b32 v4, v25 offset:{LEK+16}
s_mov_b64 exec, s[50:51]
ds_write_b32 v22, v17 offset:{LEK}
ds_write_b32 v22, v1 offset:{LEK+16}
s_mov_b64 exec, s[52:53]
ds_write_b32 v23, v19 offset:{LEK}
ds_write_b32 v23, v26 offset:{LEK+16}
s_mov_b64 exec, -1''')
    a.label('LA_noh3')
    a(f'''v_and_b32 v4, 3, v2
v_lshlrev_b32 v4, 2, v4
s_mul_i32 s40, s41, 384
s_lshl_b32 s42, s3, 6
s_add_u32 s42, s40, s42
v_lshl_add_u32 v6, v3, 4, s42
v_and_b32 v7, 31, v1
v_lshl_add_u32 v7, v7, 1, s42
s_movk_i32 s55, 1536''')
    a.bar()
    a.stamp('b3')
    a('s_setprio 3')
    a.wave_is('lt', 6, 'LA_noe')
    a(f'''ds_read_b32 v5, v4 offset:{LEK}
ds_read_b128 v[8:11], v12 offset:{LEK}
s_waitcnt lgkmcnt(1)
v_mad_u32_u24 v5, v5, s55, v6
global_load_dwordx4 v[224:227], v5, {CKV} {'nt' if P['e_nt'] else ''}
s_waitcnt lgkmcnt(0)''')
    for j in range(4): a(f'v_mad_u32_u24 v{8+j}, v{8+j}, s55, v7\nglobal_load_ushort v{232+j}, v{8+j}, {CKV} {"nt" if P["e_nt"] else ""}')
    a(f's_mul_i32 s40, s3, 3072\ns_add_u32 s40, s40, {LKP}\nv_lshl_add_u32 v4, v1, 4, s40\ns_waitcnt vmcnt(4)')
    a.stamp('erow')
    mfma12(a, 16, 224, 64)
    for t in range(3):
        d = 16 + 16*t
        for r in range(4): a(f'v_permlane16_swap_b32 v{d+r}, v{d+4+r}\nv_permlane16_swap_b32 v{d+8+r}, v{d+12+r}')
        for r in range(4): a(f'v_permlane32_swap_b32 v{d+r}, v{d+8+r}')
        a(f'ds_write_b128 v4, {vr(d,4)} offset:{1024*t}')
    a('s_branch LA_b4')
    a.label('LA_noe')
    a.label('LA_g')
    a(f'''s_setprio 1
s_and_b32 s42, s3, 1
s_mul_i32 s40, s42, 768
s_add_u32 s40, s40, {LRP}
v_lshl_add_u32 v248, v2, 5, s40
v_lshl_add_u32 v249, v2, 4, s40
s_lshl_b32 s40, s42, 8
s_add_u32 s40, s40, {LWP}
v_and_b32 v250, 1, v2
v_lshlrev_b32 v250, 7, v250
v_lshl_add_u32 v250, v3, 4, v250
v_add_u32 v250, s40, v250
v_lshl_add_u32 v251, v1, 1, s40
s_lshl_b32 s43, s42, 6
v_add_u32 v7, s43, v1
s_lshl_b32 s40, s44, 11
s_add_u32 s40, s40, {AUX}
v_lshl_add_u32 v6, v7, 4, s40
ds_read_b128 v[24:27], v12 offset:{LEK+16}
s_lshl_b32 s40, s44, 7
s_add_u32 s40, s40, s43
v_lshl_add_u32 v4, v3, 3, s40
v_mul_u32_u24 v4, 384, v4
v_add_u32 v4, {H4}, v4
v_lshl_add_u32 v5, v2, 3, v4
v_lshl_add_u32 v4, v2, 4, v4
v_add_u32 v10, {32*384}, v4
v_add_u32 v11, {32*384}, v5
s_mov_b64 s[52:53], 0
s_mov_b32 s48, 0x01010101
v_mov_b32 v22, {NEGINF:#x}
s_lshl_b32 s40, s42, 3
v_mov_b32 v23, s40
s_waitcnt lgkmcnt(0)
v_cmp_eq_u32 s[54:55], v24, v7''')
    for j in range(1, 4): a(f'v_cmp_eq_u32 vcc, v{24+j}, v7\ns_or_b64 s[54:55], s[54:55], vcc')
    a(f's_sleep {P["pre_aux"]}')
    a.label('LA_g0')
    a(f'''global_load_dwordx4 v[28:31], v6, {WS} sc1
s_waitcnt vmcnt(0)
v_cmp_eq_u32 vcc, {TAG}, v29
v_cmp_eq_u32 s[50:51], {TAG}, v31
s_and_b64 s[50:51], s[50:51], vcc
s_andn2_b64 s[42:43], s[50:51], s[52:53]
s_mov_b64 s[52:53], s[50:51]
s_cbranch_scc0 LA_gn''')
    for b in range(2):
        for j in range(8):
            a(f'''s_lshr_b32 s40, s{42+b}, {j}
s_and_b32 s40, s40, s48
s_cbranch_scc0 LA_gs{b}_{j}
s_and_b32 s38, s40, 0x101
s_lshr_b32 s39, s40, 16
s_mul_i32 s38, s38, 0x101
s_mul_i32 s39, s39, 0x101
s_and_b32 s38, s38, 0x10001
s_and_b32 s39, s39, 0x10001
s_mul_i32 exec_lo, s38, 0xffff
s_mul_i32 exec_hi, s39, 0xffff
global_load_dwordx4 {vr(64+48*b+4*j,4)}, v{4+6*b}, {WS} offset:{384*j} sc1
global_load_dwordx2 {vr(96+48*b+2*j,2)}, v{5+6*b}, {WS} offset:{384*j+256} sc1
LA_gs{b}_{j}:''')
    a(f'''s_mov_b64 exec, -1
s_cmp_eq_u64 s[52:53], -1
s_cbranch_scc1 LA_g1
LA_gn:
s_add_u32 {SPIN}, {SPIN}, 1
s_cmp_gt_u32 {SPIN}, {SPINMAX}
s_cbranch_scc1 LA_g1
s_sleep {P['sl_aux']}
s_branch LA_g0
LA_g1:''')
    a.stamp('aux')
    a('s_setprio 3\nv_cndmask_b32 v16, v28, v22, s[54:55]\nv_mov_b32 v20, v16')
    a.wave_red('v_max_f32', 20, 21)
    a(f'''v_sub_f32 v16, v16, v20
v_mul_f32 v16, s56, v16
v_exp_f32 v16, v16
v_cvt_pk_bf16_f32 v8, v16, v16
v_mul_f32 v21, v16, v30
ds_write_b16 v251, v8
v_and_b32 v9, 0xffff0000, v8
v_sub_f32 v9, v16, v9
v_cvt_pk_bf16_f32 v9, v9, v9
ds_write_b16 v251, v9 offset:128
s_waitcnt lgkmcnt(0)
ds_read_b128 v[224:227], v250
ds_read_b128 v[228:231], v250 offset:64''')
    a.wave_red('v_add_f32', 21, 22)
    a(f'v_mov_b32 v8, 1\nds_write_b64 v23, v[20:21] offset:{LFW+96}\ns_mov_b64 exec, 1\nds_add_u32 v12, v8 offset:{LFL+8}\ns_mov_b64 exec, -1\ns_waitcnt vmcnt(0) lgkmcnt(0)')
    a.stamp('gath')
    for b in range(2):
        for e in range(12):
            nreg, src, ee = (4, 64 + 48*b, e) if e < 8 else (2, 96 + 48*b, e - 8)
            f = 16 + 4*(e % 6) + 24*b
            for k in range(4):
                a(f'v_perm_b32 v{f+k}, v{src+(2*k+1)*nreg+(ee>>1)}, v{src+2*k*nreg+(ee>>1)}, {PHI if ee & 1 else PLO}')
            a(f'v_mfma_f32_16x16x32_bf16 {vr(160+4*e,4)}, {vr(224+4*b,4)}, {vr(f,4)}, {"0" if b == 0 else vr(160+4*e,4)}')
    out12(a, 160, 16, 248)
    fl_add(3)
    a.wave_is('eq', 6, 'LA_w7')
    a('s_branch LA_nov')
    a.label('LA_b4')
    a(f'v_mov_b32 v8, 1\ns_mov_b64 exec, 1\nds_add_u32 v12, v8 offset:{LFL}\ns_mov_b64 exec, -1')
    a.wave_is('lt', 3, 'LA_nopub')
    a(f'v_lshlrev_b32 v6, 4, v0\nv_add_u32 v7, {LKP}, v6\ns_mul_i32 s40, s44, 3072\ns_add_u32 s40, s40, {H4S}\nv_add_u32 v6, s40, v6')
    fl_wait(0, 'LA_f0', 6)
    a.stamp('b4')
    for w in range(6): a(f'ds_read_b128 {vr(16+4*w,4)}, v7 offset:{3072*w}')
    a('s_waitcnt lgkmcnt(0)')
    tree(a, range(16, 40, 4), n=4)
    a.st_local('s[38:39]', f'global_store_dwordx4 v6, v[16:19], {WS}')
    a.stamp('kpub')
    a('s_branch LA_l2')
    a.label('LA_nopub')
    a.wave_is('eq', 5, 'LA_w6')
    a(f'''s_mul_i32 s40, s47, 12288
s_add_u32 s40, s40, {H4S}
v_lshl_add_u32 v4, v1, 4, s40
v_add_u32 v5, 3072, v4
v_add_u32 v6, 6144, v4
v_add_u32 v7, 9216, v4
v_lshl_add_u32 v8, v2, 3, v3
v_lshlrev_b32 v8, 1, v8
v_lshl_add_u32 v9, v2, 2, v3
v_lshlrev_b32 v9, 1, v9
v_lshlrev_b32 v10, 2, v3
ds_read_u16 v64, v8 offset:{LQ}
ds_read_u16 v65, v8 offset:{LQ+8}
ds_read_u16 v66, v9 offset:{LQ+256}
ds_read_b32 v67, v10 offset:{LEK+16}
s_sleep {P['pre_h4s']}''')
    def ld():
        for qq in range(4):
            for k in range(3): a(f'global_load_dwordx4 {vr(16+(qq*3+k)*4,4)}, v{4+qq}, {WS} offset:{1024*k} sc1')
    a.poll(ld, lambda: a.chk_sent(range(16, 64), 9), sleep=P['sl_h4s'])

    a.stamp('h4s')
    a('s_waitcnt lgkmcnt(0)\nv_cmp_gt_u32 s[52:53], 0x80, v67' if False else 's_waitcnt lgkmcnt(0)\ns_movk_i32 s40, 128\nv_cmp_gt_u32 s[52:53], s40, v67')
    for k in range(3): a(f'v_lshlrev_b32 v{64+k}, 16, v{64+k}')
    tree(a, (16, 28, 40, 52), n=12)
    for i in range(12): a.rnd(16 + i, 16 + i)
    for j in range(4):
        a(f'v_mul_f32 v{68+j}, v{16+j}, v64\nv_fmac_f32 v{68+j}, v{20+j}, v65\nv_fmac_f32 v{68+j}, v{24+j}, v66')
    a.row_red('v_add_f32', [68, 69, 70, 71])
    a.xrow_tr4(68)
    a.rnd(68, 68)
    a('v_mul_f32 v68, s59, v68')
    a.rnd(68, 68)
    a(f'v_mov_b32 v21, {NEGINF:#x}\nv_cndmask_b32 v68, v21, v68, s[52:53]\nds_write_b32 v10, v68 offset:{LFW+128}')
    fl_add(2)
    a('s_branch LA_l2')
    a.label('LA_w7')
    a('v_lshlrev_b32 v10, 2, v3\nv_lshlrev_b32 v11, 3, v3')
    fl_wait(2, 'LA_f2', 4)
    a(f'''ds_read_b64 v[228:229], v11 offset:{LFW+64}
ds_read_b32 v68, v10 offset:{LFW+128}
ds_read_b64 v[230:231], v11 offset:{LFW+96}
s_waitcnt lgkmcnt(0)
v_max3_f32 v69, v68, v228, v230''')
    a.xrow_red('v_max_f32', 69, 70)
    a(f'''v_sub_f32 v68, v68, v69
v_sub_f32 v228, v228, v69
v_sub_f32 v230, v230, v69
v_mul_f32 v68, s56, v68
v_mul_f32 v228, s56, v228
v_mul_f32 v230, s56, v230
v_exp_f32 v68, v68
v_exp_f32 v228, v228
v_exp_f32 v230, v230
v_fma_f32 v70, v228, v229, v68
v_fmac_f32 v70, v230, v231''')
    a.xrow_red('v_add_f32', 70, 71)
    a.recip(71, 70, 72)
    a.div(73, 68, 70, 71, 72)
    a.rnd(73, 73)
    a(f'''v_mul_f32 v74, v230, v71
v_mul_f32 v75, v228, v71
ds_write_b32 v10, v73 offset:{LFW}
ds_write_b32 v10, v75 offset:{LFW+16}
ds_write_b32 v10, v74 offset:{LFW+32}''')
    fl_add(3)
    a('s_branch LA_nov')
    a.label('LA_w6')
    a.wave_is('eq', 4, 'LA_l2')
    a(f'''v_lshlrev_b32 v10, 2, v3
ds_read_b32 v11, v10 offset:{LEK+16}
s_lshl_b32 s40, s47, 13
s_lshl_b32 s42, s41, 9
s_add_u32 s40, s40, s42
s_add_u32 s40, s40, {SIDE}
v_lshl_add_u32 v6, v3, 11, s40
v_lshl_add_u32 v4, v2, 4, v6
v_lshl_add_u32 v5, v2, 3, v6
v_mul_u32_u24 v9, 384, v3
v_lshl_add_u32 v7, v2, 4, v9
v_lshl_add_u32 v9, v2, 3, v9
v_lshlrev_b32 v10, 3, v3
v_mov_b32 v24, {NEGINF:#x}
v_mov_b32 v26, 0
s_movk_i32 s40, 128
s_waitcnt lgkmcnt(0)
v_cmp_gt_u32 s[52:53], s40, v11''')
    for i in range(6): a(f'v_mov_b32 v{16+i}, 0')
    a(f's_sleep {P["pre_side"]}\ns_mov_b64 exec, s[52:53]')
    def ck():
        a.chk_sent(range(16, 22), 8)
        a(f'v_cmp_ne_u32 s[50:51], {TAG}, v25\ns_or_b64 vcc, vcc, s[50:51]\nv_cmp_ne_u32 s[50:51], {TAG}, v27\ns_or_b64 vcc, vcc, s[50:51]')
    a.poll(lambda: a(f'global_load_dwordx4 v[16:19], v4, {WS} sc1\nglobal_load_dwordx2 v[20:21], v5, {WS} offset:256 sc1\nglobal_load_dwordx4 v[24:27], v6, {WS} offset:384 sc1'),
           ck, sleep=P['sl_side'])
    a.full()
    a.stamp('side')
    a(f'v_mov_b32 v25, v26\nds_write_b128 v7, v[16:19] offset:{LSR}\nds_write_b64 v9, v[20:21] offset:{LSR+256}\nds_write_b64 v10, v[24:25] offset:{LFW+64}')
    fl_add(2)
    a.label('LA_l2')
    a(f'''s_lshl_b32 s40, s3, 7
v_and_b32 v4, 31, v1
v_lshl_add_u32 v5, v4, 1, s40
s_lshl_b32 s42, s3, 6
v_lshl_add_u32 v7, v4, 1, s42
v_lshl_add_u32 v4, v4, 2, s40
v_mov_b32 v20, 0
v_mov_b32 v21, 0
v_mov_b32 v22, 0
v_mov_b32 v23, 0''')
    frag2_addr(a, 6, 's40')
    out12_prep(a, 248, LVP)
    a('s_waitcnt vmcnt(0)')
    for j in range(4): a(f'v_lshlrev_b32 v{232+j}, 16, v{232+j}')
    fl_wait(3, 'x', 3)
    a.stamp('b6')
    for w in range(2): a(f'ds_read_b32 v{16+w}, v4 offset:{LRP + 768*w}')
    for j in range(4): a(f'ds_read_u16_d16_hi v{20+j}, v7 offset:{LSR + 384*j}')
    a(f'ds_read_b128 v[24:27], v12 offset:{LFW}\nds_read_b128 v[28:31], v12 offset:{LFW+16}\nds_read_b64 v[32:33], v12 offset:{LFW+32}')
    a(f'''s_waitcnt lgkmcnt(0)
v_mul_f32 v16, v16, v32
v_mul_f32 v24, v24, v232
v_mul_f32 v28, v28, v20
v_fmac_f32 v16, v17, v33
v_fmac_f32 v24, v25, v233
v_fmac_f32 v28, v29, v21
v_fmac_f32 v24, v26, v234
v_fmac_f32 v28, v30, v22
v_fmac_f32 v24, v27, v235
v_fmac_f32 v28, v31, v23
v_add_f32 v24, v24, v28
v_add_f32 v16, v16, v24
v_cvt_pk_bf16_f32 v17, v16, v16
ds_write_b16 v5, v17 offset:{LCC}
v_and_b32 v18, 0xffff0000, v17
v_sub_f32 v18, v16, v18
v_cvt_pk_bf16_f32 v18, v18, v18
ds_write_b16 v5, v18 offset:{LCC+64}
s_waitcnt lgkmcnt(0)
ds_read_b128 v[224:227], v6 offset:{LCC}
s_waitcnt lgkmcnt(0)''')
    mfma12(a, 128, 224, 176)
    out12(a, 128, 16, 248)
    a.label('LA_nov')
    a(f'''v_lshlrev_b32 v4, 4, v1
s_mul_i32 s40, s47, 3072
s_lshl_b32 s42, s41, 8
s_add_u32 s40, s40, s42
s_add_u32 s40, s40, {H5}
v_lshlrev_b32 v5, 10, v3
v_lshl_add_u32 v5, v2, 4, v5
v_add_u32 v5, s40, v5''')
    a.bar()
    a.wave_is('eq', 0, 'Lfin')
    for w in range(6): a(f'ds_read_b128 {vr(16+4*w,4)}, v4 offset:{LVP + 768*w}')
    a('s_waitcnt lgkmcnt(0)')
    tree(a, range(16, 40, 4), n=4)
    a.lanes_lt(48)
    a.st_local('s[38:39]', f'global_store_dwordx4 v5, v[16:19], {WS}')
    a.full()
    a.stamp('h5pub')
    a(f'''s_add_u32 s40, s44, s3
s_cmp_eq_u32 s40, 0
s_cbranch_scc0 Lfin
v_mov_b32 v5, {TAG}
global_store_dword v12, v5, {WS} sc1''')

DEFAULTS = dict(code_last=0x1000, stamps=False, warm_loads=2, sl_pr=1, sl_pr3=4, sl_h1=3, sl_h1b=1, sl_h2=4, sl_h3=2, sl_aux=1, sl_h4s=1, sl_h5=1, sl_h6=3, sl_h7=2, sl_x2=4, sl_lw=1, lw_cnt=4, dma1=5, sl_top2=4, pre_h7=12, dma0=12, gsplit=4, s1x=0, rot=0, uv_ad=0, sl_dma=0, sl_b80=0, uv1=0, h2lay=0, dma8=0, bpf=0, pf_pol=2, sl_pf=10, pre_hdr=8, pv_local=0, g_pol=0, pre_l2=6, sl_hdr=2, sl_l2=2, local=1, early_late=1, sl_pr2=4, sl_dma2=0, m_h2=0, m_h6=0, k_h2=255, pre_aux=8, swap=0, sl_a80=30, pre_h1=0, tlb=0, e_nt=0, pv_nt=0, uk1=0, ew_cnt=4, sl_el=1, pre_side=12, sl_side=2, sl_uv=20, pre_h4s=4, sl_top=6,
    probe_h1b=0, post_h1b=1, probe_h2=1, post_h2=0, probe_h3=1, post_h3=0, probe_aux=0, post_aux=2, probe_h5=0, post_h5=1, probe_h6=0, post_h6=1, probe_h7=1, post_h7=0)

def generate(**kw):
    P = dict(DEFAULTS); P.update(kw)
    a = G(P)
    a(f'''s_cmp_ge_u32 s2, 256
s_cbranch_scc1 Lend
s_load_dwordx16 s[4:19], s[0:1], 0
{'s_xor_b32 s2, s2, 128' if P['swap'] else 's_nop 0'}
s_load_dwordx8 s[20:27], s[0:1], 64
{f's_add_u32 s3, s2, {P["rot"]}' if P['rot'] else ''}
{'s_and_b32 s3, s3, 7' if P['rot'] else ''}
{'s_andn2_b32 s2, s2, 7' if P['rot'] else ''}
{'s_or_b32 s2, s2, s3' if P['rot'] else ''}
s_load_dwordx4 s[28:31], s[0:1], 96
s_getpc_b64 s[36:37]
Lpc:
v_lshrrev_b32 v4, 6, v0
v_and_b32 v1, 63, v0
v_readfirstlane_b32 s3, v4
v_and_b32 v2, 15, v0
v_lshrrev_b32 v3, 4, v1''')
    if P['stamps']:
        for i in range(21): a(f's_mov_b64 s[{60+2*i}:{61+2*i}], 0')
    if P.get('dbgtime') or P.get('padto'): a('s_memrealtime s[60:61]')
    a('s_cmp_lt_u32 s2, 128\ns_cbranch_scc1 LB')
    role_A(a)
    namesA = a.stnames; a.stnames = []
    a.label('LB')
    role_B(a)
    namesB = a.stnames; a.stnames = namesA
    role_A2(a)
    a('s_branch Lfin')
    namesA = a.stnames; a.stnames = namesB
    role_B2(a)
    namesB = a.stnames
    a.label('Lfin')
    if P['stamps']:
        a(f'''s_waitcnt lgkmcnt(0)
s_lshl_b32 s40, s2, 3
s_add_u32 s40, s40, s3
s_lshl_b32 s40, s40, 7
s_add_u32 s40, s40, {STAMP}
v_mov_b32 v4, s40''')
        for i in range(21): a(f'v_mov_b32 v5, s{60+2*i}\nglobal_store_dword v4, v5, {WS} offset:{4*i}')
    if P.get('dbgtime'):
        a(f'''s_memrealtime s[62:63]
s_cmp_eq_u32 s3, 7
s_cbranch_scc0 Lend
s_and_b32 s40, s2, 31
s_cmp_eq_u32 s40, 31
s_cbranch_scc0 Lend
s_waitcnt lgkmcnt(0)
s_lshr_b32 s40, s2, 5
s_lshl_b32 s40, s40, 3
v_mov_b32 v4, s40
v_mov_b32 v6, s60
v_mov_b32 v7, s62
s_mov_b64 exec, 1
global_store_dwordx2 v4, v[6:7], s[28:29]''')
    if P.get('padto'):
        a(f'''s_add_u32 s40, s2, s3
s_cmp_eq_u32 s40, 0
s_cbranch_scc0 Lend
Lpad:
s_memrealtime s[62:63]
s_waitcnt lgkmcnt(0)
s_sub_u32 s40, s62, s60
s_cmp_lt_u32 s40, {P['padto']}
s_cbranch_scc1 Lpad''')
    a.label('Lend')
    a('s_endpgm')
    a.raw('Lcode_end:')
    hdr = open(f'cdna_kernels/{NAME}.s.ref').read().split('; Override launch')[0]
    lds = MISC + 8192 + 256
    doc = '''; One persistent launch, 256 workgroups (one per CU), two roles:
; so that the bf16 rounding of the scores follows the reference; their tile partials are re-sent without that key.
; Hand-offs go through d_ws: {value,tag} granules (tag derived from an epoch word in d_ws), or slots cleared to
'''
    txt = hdr + f'''; @launch grid=(256,1,1) block=(512,1,1) lds={lds}
''' + doc + f'''.amdgcn_target "amdgcn-amd-amdhsa--gfx950"
.text
.globl {NAME}_kernel
.p2align 8
.type {NAME}_kernel,@function
.set CODE_LAST, {P['code_last']:#x}
{NAME}_kernel:
''' + a.text() + f'''.section .rodata,"a"
.p2align 6
.amdhsa_kernel {NAME}_kernel
  .amdhsa_next_free_vgpr 256
  .amdhsa_next_free_sgpr 102
  .amdhsa_accum_offset 256
  .amdhsa_group_segment_fixed_size 0
  .amdhsa_kernarg_size 112
  .amdhsa_user_sgpr_count 2
  .amdhsa_user_sgpr_kernarg_segment_ptr 1
  .amdhsa_system_sgpr_workgroup_id_x 1
  .amdhsa_float_denorm_mode_32 3
.end_amdhsa_kernel
'''
    return txt, namesB, namesA

if __name__ == '__main__':
    import json
    out = sys.argv[1]
    kw = {}
    for x in sys.argv[2:]:
        k, v = x.split('='); kw[k] = int(v)
    import subprocess, re
    txt, nb, na = generate(**kw)
    open('_g.s', 'w').write(txt)
    subprocess.check_call(['clang', '-x', 'assembler', '-target', 'amdgcn-amd-amdhsa', '-mcpu=gfx950', '-c', '_g.s', '-o', '_g.o'])
    h = subprocess.check_output(['llvm-objdump', '-h', '_g.o'], text=True)
    size = int(re.search(r'\.text\s+([0-9a-f]+)', h).group(1), 16)
    kw['code_last'] = size - 0x40 - 4
    assert size <= 32768 * kw.get('warm_loads', DEFAULTS['warm_loads'])
    txt, nb, na = generate(**kw)
    print('code bytes', size)
    open(out, 'w').write(txt)
    json.dump({'B': nb, 'A': na}, open(out + '.names.json', 'w'))
```

```python
import sys, struct
sys.path.insert(0, 'gen')
from asmlib import *
NAME = 'adaLN_cond__compressed_kv_cla__dense_activation_relu__decode'

EPOCH, READY, H1, H1B, H2, H3, AUX, H4S, H5 = 0x0, 0x1000, 0x2000, 0x120000, 0x58000, 0x68000, 0x1A0000, 0x88000, 0xE8000
H6, MODR, H7F, H7X, H4, STAMP = 0x100000, 0x108000, 0x110000, 0x111000, 0x200000, 0x4000000
H7Y = 0x110000
H4G, HDR, MB = 0x880000, 0x1FA000, 0x78000
DB3, DB4, ELIST, SIDE = 0x1E0000, 0x1E4000, 0x1F8000, 0x18000
X, CKV, WQ, WUK, WUV, WO, W1, W2, CC, WMOD, OUT, WS = [f's[{i}:{i+1}]' for i in (4, 6, 8, 10, 12, 14, 18, 20, 22, 24, 26, 30)]
TAG, SPIN, PLO, PHI = 's32', 's33', 's34', 's35'
SPINMAX = 200000
def f2u(x): return struct.unpack('<I', struct.pack('<f', x))[0]
L2E = f2u(1.4426950408889634)
L2E_LO = f2u(1.4426950408889634 - struct.unpack('<f', struct.pack('<f', 1.4426950408889634))[0])
LN2 = f2u(0.6931471805599453)
SCALE = f2u(192 ** -0.5)
NEGINF = 0xff800000

class G(Asm):
    def __init__(self, P):
        super().__init__(); self.P = P; self.nst = 0; self.stnames = []
    def stamp(self, name):
        if not self.P.get('stamps'): return
        if name in ('wq', 'b4', 'hdr', 'erow'): return
        if name.startswith('x') != (self.P['stamps'] == 2) and name not in ('start', 'h1pub', 'out', 'wq', 'h1', 'qpub', 'h1b', 'h2pub', 'h5', 'h6pub', 'h6', 'h7pub', 'gath', 'b6', 'h5pub', 'h2', 'qk', 'h3pub', 'pvst', 'auxpub'): return
        i = self.stnames.index(name) if name in self.stnames else None
        if i is None:
            self.stnames.append(name); i = len(self.stnames) - 1
        assert i < 21
        self(f's_memrealtime s[{60+2*i}:{61+2*i}]')
    def rnd(self, d, s):
        self(f'v_cvt_pk_bf16_f32 v{d}, v{s}, v{s}\nv_and_b32 v{d}, 0xffff0000, v{d}')
    def wave_is(self, cond, n, lab):
        self(f's_cmp_{cond}_u32 s3, {n}\ns_cbranch_scc0 {lab}')
    def row_red(self, op, regs):
        for k in (8, 4, 2, 1):
            for r in regs: self(f'{op}_dpp v{r}, v{r}, v{r} row_ror:{k} row_mask:0xf bank_mask:0xf')
    def xrow_red(self, op, r, t):
        self(f'v_mov_b32 v{t}, v{r}\nv_permlane16_swap_b32 v{r}, v{t}\n{op} v{r}, v{r}, v{t}')
        self(f'v_mov_b32 v{t}, v{r}\nv_permlane32_swap_b32 v{r}, v{t}\n{op} v{r}, v{r}, v{t}')
    def wave_red(self, op, r, t):
        self.row_red(op, [r]); self.xrow_red(op, r, t)
    def xrow_tr4(self, r):
        self(f'''v_permlane16_swap_b32 v{r}, v{r+1}
v_permlane16_swap_b32 v{r+2}, v{r+3}
v_add_f32 v{r}, v{r}, v{r+1}
v_add_f32 v{r+2}, v{r+2}, v{r+3}
v_permlane32_swap_b32 v{r}, v{r+2}
v_add_f32 v{r}, v{r}, v{r+2}''')
    def recip(self, d, y, t):
        self(f'v_rcp_f32 v{d}, v{y}\nv_fma_f32 v{t}, -v{y}, v{d}, 1.0\nv_fma_f32 v{d}, v{t}, v{d}, v{d}')
    def div(self, d, x, y, rinv, t):
        self(f'v_mul_f32 v{d}, v{x}, v{rinv}\nv_fma_f32 v{t}, -v{y}, v{d}, v{x}\nv_fma_f32 v{d}, v{t}, v{rinv}, v{d}')
    def silu(self, d, x, t):
        self(f'''v_mul_f32 v{t}, s56, v{x}
v_fma_f32 v{t+1}, v{x}, s56, -v{t}
v_fma_f32 v{t+1}, v{x}, s57, v{t+1}
v_exp_f32 v{t}, -v{t}
v_mul_f32 v{t+1}, s58, v{t+1}
v_fma_f32 v{t}, -v{t}, v{t+1}, v{t}
v_min_f32 v{t}, 0x7f000000, v{t}
v_add_f32 v{t}, 1.0, v{t}''')
        self.recip(t + 1, t, t + 2)
        self.div(t + 3, x, t, t + 1, t + 2)
        self.rnd(d, t + 3)
    def perm_block(self, dst, src, nreg=4, rows=8):
        for e in range(2 * nreg):
            for k in range(rows // 2):
                self(f'v_perm_b32 v{dst + e * (rows // 2) + k}, v{src + (2*k+1) * nreg + (e >> 1)}, v{src + 2*k*nreg + (e >> 1)}, {PHI if e & 1 else PLO}')
    def poll(self, loads, check, sleep=2, pre=None, mid=None):
        top = self.newlabel('Lp'); done = self.newlabel('Ld'); chk = self.newlabel('Lc')
        if pre: self(f's_sleep {pre}')
        if mid:
            loads(); mid(); self(f's_branch {chk}')
        self.label(top)
        loads()
        self.label(chk)
        self('s_waitcnt vmcnt(0)')
        check()
        self(f'''s_cbranch_vccz {done}
s_add_u32 {SPIN}, {SPIN}, 1
s_cmp_gt_u32 {SPIN}, {SPINMAX}
s_cbranch_scc1 {done}
s_sleep {sleep}
s_branch {top}''')
        self.label(done)
    def poll_masked(self, items, t, sleep=2, tag=False):
        top = self.newlabel('Lm'); done = self.newlabel('Lmd')
        for ld, regs in items: self(ld)
        self.label(top)
        self('s_waitcnt vmcnt(0)\ns_mov_b32 s49, 0')
        for ld, regs in items:
            skip = self.newlabel('Lms')
            if tag: self.chk_tag(regs, t)
            else: self.chk_sent(regs, t)
            self(f's_cbranch_vccz {skip}\ns_mov_b64 exec, vcc\n{ld}\ns_mov_b64 exec, -1\ns_mov_b32 s49, 1')
            self.label(skip)
        self(f'''s_cmp_eq_u32 s49, 0
s_cbranch_scc1 {done}
s_add_u32 {SPIN}, {SPIN}, 1
s_cmp_gt_u32 {SPIN}, {SPINMAX}
s_cbranch_scc1 {done}
s_sleep {sleep}
s_branch {top}''')
        self.label(done)
        self('s_waitcnt vmcnt(0)')
    def lds_wait(self, addr, n, off=0, sleep=1, extra=None, t=8):
        top = self.newlabel('Lw'); done = self.newlabel('Lwd')
        self.label(top)
        self(f'ds_read_b32 v{t}, v{addr} offset:{off}')
        if extra: self(extra)
        self(f'''s_waitcnt lgkmcnt(0)
v_cmp_gt_u32 vcc, {n}, v{t}
s_cbranch_vccz {done}
s_add_u32 {SPIN}, {SPIN}, 1
s_cmp_gt_u32 {SPIN}, {SPINMAX}
s_cbranch_scc1 {done}
s_sleep {sleep}
s_branch {top}''')
        self.label(done)
    def probe(self, va, t, off=0, sleep=1, post=None, tag=False, mask=1):
        self.exec_mask(mask)
        def ck():
            if tag: self(f'v_cmp_ne_u32 vcc, {TAG}, v{t}')
            else: self(f'v_cmp_eq_u32 vcc, -1, v{t}')
        self.poll(lambda: self(f'global_load_dword v{t}, v{va}, {WS} offset:{off} sc1'), ck, sleep=sleep)
        self.full()
        if post: self(f's_sleep {post}')
    def chk_sent(self, regs, t):
        regs = list(regs)
        if len(regs) == 1:
            self(f'v_cmp_eq_u32 vcc, -1, v{regs[0]}'); return
        if len(regs) == 2: self(f'v_max_u32 v{t}, v{regs[0]}, v{regs[1]}'); rest = []
        else: self(f'v_max3_u32 v{t}, v{regs[0]}, v{regs[1]}, v{regs[2]}'); rest = regs[3:]
        while rest:
            if len(rest) >= 2: self(f'v_max3_u32 v{t}, v{t}, v{rest[0]}, v{rest[1]}'); rest = rest[2:]
            else: self(f'v_max_u32 v{t}, v{t}, v{rest[0]}'); rest = []
        self(f'v_cmp_eq_u32 vcc, -1, v{t}')
    def chk_tag(self, regs, t):
        regs = list(regs)
        self(f'v_cmp_ne_u32 vcc, {TAG}, v{regs[0]}')
        for r in regs[1:]:
            self(f'v_cmp_ne_u32 s[50:51], {TAG}, v{r}\ns_or_b64 vcc, vcc, s[50:51]')
    def san(self, regs):
        for r in regs: self(f'v_min_u32 v{r}, -2, v{r}')
    def lanes_lt(self, n):
        assert n <= 64
        lo = (1 << min(n, 32)) - 1; hi = (1 << max(n - 32, 0)) - 1
        self(f's_mov_b32 exec_lo, {lo:#x}\ns_mov_b32 exec_hi, {hi:#x}')
    def exec_mask(self, m):
        self(f's_mov_b32 exec_lo, {m & 0xffffffff:#x}\ns_mov_b32 exec_hi, {m >> 32:#x}')
    def full(self): self('s_mov_b64 exec, -1')
    def bar(self): self('s_waitcnt lgkmcnt(0)\ns_barrier')
    def get_tag(self):
        self(f'''v_readfirstlane_b32 {TAG}, v15
s_mul_i32 {TAG}, {TAG}, 0x9E3779B1
s_add_u32 {TAG}, {TAG}, 0x7F4A7C15''')
    def ready_publish(self):
        self('s_getreg_b32 s41x, hwreg(HW_REG_XCC_ID, 0, 4)\ns_waitcnt vmcnt(0)'.replace('s41x', 's51'))
        self.get_tag()
        self(f'''s_lshl_b32 s40, s2, 4
s_add_u32 s40, s40, {READY}
v_mov_b32 v4, s40
v_mov_b32 v6, {TAG}
v_mov_b32 v7, s51''')
        self.lanes_lt(1)
        self(f'global_store_dwordx2 v4, v[6:7], {WS} sc1')
        self.full()
    def st_local(self, mism, *sts):
        far = self.newlabel('Lsf'); done = self.newlabel('Lsd')
        if self.P['local']:
            self(f's_cmp_eq_u64 {mism}, 0\ns_cbranch_scc0 {far}')
            for st in sts: self(st)
            self(f's_branch {done}')
            self.label(far)
        for st in sts: self(st + ' sc1')
        self.label(done)
    def ready_check(self, half, v=8):
        self(f'v_lshlrev_b32 v{v+2}, 4, v1\nv_add_u32 v{v+2}, {READY + 2048*half}, v{v+2}')
        def ld():
            for i in range(2): self(f'global_load_dword v{v+i}, v{v+2}, {WS} offset:{1024*i} sc1')
        self.poll(ld, lambda: self.chk_tag([v, v + 1], 0), sleep=4)
    def gemv2(self, D, A, F, first=True):
        for e in range(8):
            c = '0' if first else vr(D + 4*e, 4)
            self(f'v_mfma_f32_16x16x32_bf16 {vr(D+4*e,4)}, {vr(A,4)}, {vr(F+4*e,4)}, {c}')
    def pack2(self, o, D):
        for i in range(4):
            self(f'v_add_f32_dpp v{o+i}, v{D+4*i+1}, v{D+4*i} row_ror:8 row_mask:0xf bank_mask:0x3')
        for i in range(4):
            self(f'v_add_f32_dpp v{o+i}, v{D+4*(i+4)}, v{D+4*(i+4)+1} row_ror:8 row_mask:0xf bank_mask:0xc')
    def load_rows(self, dst, nreg, va, base, pitch, rows=8, pol='nt', t=None):
        op = {1: 'dword', 2: 'dwordx2', 4: 'dwordx4'}[nreg]
        per = 4095 // pitch + 1 if pitch <= 4095 else 1
        for j in range(rows):
            k = j % per
            self(f'global_load_{op} {vr(dst + j*nreg, nreg)}, v{va}, {base} offset:{k*pitch} {pol}')
            if k == per - 1 and j + 1 < rows: self(f'v_add_u32 v{va}, {per*pitch}, v{va}')

def consts(a):
    a(f'''s_mov_b32 {PLO}, 0x05040100
s_mov_b32 {PHI}, 0x07060302
s_mov_b32 {SPIN}, 0
s_mov_b32 s56, {L2E:#x}
s_mov_b32 s57, {L2E_LO:#x}
s_mov_b32 s58, {LN2:#x}
s_mov_b32 s59, {SCALE:#x}''')

def code_warm(a, v=4):
    n = a.P['warm_loads']
    a(f'''s_lshr_b32 s50, s2, 3
s_lshl_b32 s50, s50, 10
v_lshlrev_b32 v{v}, 4, v1
v_add_u32 v{v}, s50, v{v}
v_min_u32 v{v}, CODE_LAST, v{v}
global_load_dword v14, v{v}, s[36:37]''')
    if n > 1:
        a(f'''v_add_u32 v{v}, 32768, v{v}
v_min_u32 v{v}, CODE_LAST, v{v}
global_load_dword v14, v{v}, s[36:37]''')

CT, SPB, PB, STB, MISC = 0, 98304, 98304 + 34816, 98304 + 34816 + 9216, 98304 + 34816 + 9216 + 1024
def blk2_addr(a, v, srow, pitch, scol):
    a(f'''v_lshrrev_b32 v{v}, 3, v2
v_lshlrev_b32 v{v}, 5, v{v}
v_lshl_add_u32 v{v}, v3, 3, v{v}
v_add_u32 v{v}, {srow}, v{v}
v_mul_u32_u24 v{v}, {pitch}, v{v}
v_and_b32 v{v+1}, 7, v2
v_lshl_add_u32 v{v}, v{v+1}, 4, v{v}
v_add_u32 v{v}, {scol}, v{v}''')
def frag2_addr(a, v, sbase):
    a(f'v_and_b32 v{v}, 1, v2\nv_lshlrev_b32 v{v}, 6, v{v}\nv_lshl_add_u32 v{v}, v3, 4, v{v}\nv_add_u32 v{v}, {sbase}, v{v}')
def pack_addr(a, v, sbase):
    a(f'v_and_b32 v{v}, 7, v2\nv_lshlrev_b32 v{v}, 5, v{v}\nv_lshrrev_b32 v{v+1}, 3, v2\nv_lshl_add_u32 v{v}, v{v+1}, 4, v{v}\nv_add_u32 v{v}, {sbase}, v{v}')
def gemv_out_lds(a, D, base):
    a.pack2(8, D)
    a.lanes_lt(16)
    a('ds_write_b128 v14, v[8:11]')
    a.full()
def gemv_out_prep(a, base):
    a(f's_lshl_b32 s40, s3, 8\ns_add_u32 s40, s40, {base}')
    pack_addr(a, 14, 's40')
def tree(a, regs, stride=1, n=1):
    regs = list(regs)
    while len(regs) > 1:
        nxt = []
        for i in range(0, len(regs) - 1, 2):
            for k in range(n): a(f'v_add_f32 v{regs[i]+k}, v{regs[i]+k}, v{regs[i+1]+k}')
            nxt.append(regs[i])
        if len(regs) & 1: nxt.append(regs[-1])
        regs = nxt
def ln_finish(a, m, v, ri):
    a.rnd(m, m); a.rnd(v, v)
    a(f'v_add_f32 v{v}, {f2u(1e-5):#x}, v{v}')
    a.rnd(v, v)
    a(f'v_sqrt_f32 v{v}, v{v}')
    a.rnd(v, v)
    a.recip(ri, v, ri + 1)
def neg1(a, r=8):
    for i in range(4): a(f'v_mov_b32 v{r+i}, -1')

JP, CP = 3200, 51328
def role_B(a):
    P = a.P
    a(f'''s_and_b32 s39, s2, 7
s_lshr_b32 s38, s2, 3            ; j
s_mul_i32 s55, s38, 43
s_lshr_b32 s55, s55, 7           ; Tp = j/3
s_mul_i32 s40, s55, 3
s_sub_u32 s40, s38, s40          ; cbl
s_lshl_b32 s40, s40, 2
s_mul_i32 s45, s39, 12
s_add_u32 s45, s45, s40
s_lshr_b32 s40, s3, 1
s_add_u32 s45, s45, s40
s_and_b32 s53, s3, 1
s_lshl_b32 s42, s55, 1
s_add_u32 s53, s53, s42          ; T = 2Tp + (w&1)
v_mov_b32 v12, 0
s_lshl_b32 s40, s53, 6
s_lshl_b32 s41, s45, 7''')
    blk2_addr(a, 4, 's40', 12288, 's41')
    a(f'''v_lshlrev_b32 v6, 2, v1
s_lshl_b32 s42, s3, 3
v_and_b32 v7, 7, v1
v_add_u32 v7, s42, v7
v_lshrrev_b32 v8, 5, v1
v_lshl_add_u32 v13, v8, 6, v7
s_min_u32 s40, s55, 4
s_lshl_b32 s40, s40, 7
v_add_u32 v7, s40, v13
v_lshlrev_b32 v7, 1, v7
s_waitcnt lgkmcnt(0)''')
    a.stamp('start')
    for k in range(5): a(f'global_load_dword v{16+k}, v6, {X} offset:{256*k}')
    a(f'global_load_ushort v21, v7, {X}')
    a('s_cmp_lt_u32 s2, 120\ns_cbranch_scc0 LB_nowq')
    a.load_rows(64, 4, 4, WQ, 12288)
    a.label('LB_nowq')
    a(f'global_load_dword v15, v12, {WS} sc1\ns_branch LB2')

def role_B2(a):
    P = a.P
    a.label('LB2')
    a(f'''s_mov_b32 s49, 0
s_mul_i32 s54, s39, 10
s_add_u32 s54, s54, s38
s_add_u32 s40, s2, 0
s_cmp_lt_u32 s38, 10
s_cselect_b32 s54, s54, s40
s_getreg_b32 s16, hwreg(HW_REG_XCC_ID, 0, 4)''')
    a.wave_is('eq', 6, 'LB_not6')
    code_warm(a, 24)
    if P['tlb']:
        a(f'''v_lshlrev_b32 v24, 17, v1
global_load_dword v14, v24, {WS} offset:64 nt''')
    a('s_mov_b32 s49, 1')
    a.label('LB_not6')
    a.wave_is('eq', 7, 'LB_not7')
    neg1(a, 28)
    a(f'''s_mul_i32 s50, s39, 2560
s_lshl_b32 s51, s38, 8
s_add_u32 s50, s50, s51
s_add_u32 s50, s50, {H6}
s_lshl_b32 s51, s54, 8
s_add_u32 s51, s51, {MODR - 104*256}
s_cmp_lt_u32 s54, 104
s_cselect_b32 s50, s50, s51
v_lshl_add_u32 v24, v2, 4, s50
s_cmp_lt_u32 s54, 80
s_cbranch_scc1 LB_c1
s_cmp_lt_u32 s54, 104
s_cbranch_scc0 LB_c1
s_mul_i32 s50, s54, 2560
s_add_u32 s50, s50, {H7Y - 80*2560}
v_lshl_add_u32 v24, v1, 4, s50
global_store_dwordx4 v24, v[28:31], {WS} sc1
global_store_dwordx4 v24, v[28:31], {WS} offset:1024 sc1
v_and_b32 v24, 31, v1
v_lshl_add_u32 v24, v24, 4, s50
v_add_u32 v24, 2048, v24
LB_c1:
global_store_dwordx4 v24, v[28:31], {WS} sc1''')
    a('s_mov_b32 s49, 1')
    a.label('LB_not7')
    a(f'''s_lshl_b32 s46, s2, 6
s_lshl_b32 s41, s3, 3
s_add_u32 s46, s46, s41
s_mul_i32 s46, s46, 1536           ; (64b+8w)*1536
s_and_b32 s47, s3, 1
s_lshl_b32 s47, s47, 3             ; 8*(w&1)
s_mul_i32 s48, s3, 12288
v_cmp_le_u32 vcc, 32, v1
v_add_u32 v56, 64, v1
v_subrev_u32 v57, 32, v1
v_cndmask_b32 v56, v56, v57, vcc
v_cndmask_b32 v58, 0, 1, vcc
v_xor_b32 v56, v56, v58
v_mul_u32_u24 v58, 1536, v58
v_add_u32 v57, 32, v1
v_xor_b32 v57, 1, v57''')
    def dma(lo, hi, other=0):
        for i in range(lo, hi):
            k, j = divmod(i, 3)
            src = ('v1', 'v56', 'v57')[j]
            a(f's_add_u32 s43, s47, {2*k}\nv_xor_b32 v8, s43, {src}')
            a(f's_add_u32 s44, s46, {2*k*1536 + (1536 if j == 2 else 0) + other*32*1536}')
            if j == 1: a('v_lshl_add_u32 v8, v8, 4, v58\nv_add_u32 v8, s44, v8')
            else: a('v_lshl_add_u32 v8, v8, 4, s44')
            a(f's_add_u32 m0, s48, {i*1024 + other*49152}\nglobal_load_lds_dwordx4 v8, {CKV} nt')
    N1 = P['dma1']
    a(f'v_mov_b32 v253, {STB + 520}\nds_write_b32 v253, v12')
    a.bar()
    N0 = min(P['dma0'], N1)
    def early(lab): a(f's_cmp_lt_u32 s39, {P["gsplit"]}\ns_cbranch_scc0 {lab}')
    def vw(base):
        if N0 == N1: a(f's_waitcnt vmcnt({base+N1})'); return
        l1 = a.newlabel('Lv'); l2 = a.newlabel('Lv')
        early(l1); a(f's_waitcnt vmcnt({base+N1})\ns_branch {l2}'); a.label(l1); a(f's_waitcnt vmcnt({base+N0})'); a.label(l2)
    dma(0, N0)
    if N0 < N1:
        early('LB_d0'); dma(N0, N1); a.label('LB_d0')
    consts(a)
    a('s_cmp_ge_u32 s2, 120\ns_cselect_b32 s49, 1, s49\ns_cmp_eq_u32 s49, 0\ns_cbranch_scc1 LB_w8')
    vw(0)
    a.label('LB_w8')
    vw(9)
    for k in range(5): a(f'v_lshlrev_b32 v{24+2*k}, 16, v{16+k}\nv_and_b32 v{25+2*k}, 0xffff0000, v{16+k}')
    a('v_add_f32 v22, v24, v25')
    for k in range(2, 10): a(f'v_add_f32 v22, v22, v{24+k}')
    a.wave_red('v_add_f32', 22, 23)
    a(f'v_mul_f32 v22, {f2u(1/640):#x}, v22\nv_mov_b32 v23, 0')
    for k in range(10): a(f'v_sub_f32 v{24+k}, v{24+k}, v22\nv_fmac_f32 v23, v{24+k}, v{24+k}')
    a.wave_red('v_add_f32', 23, 24)
    a(f'v_mul_f32 v23, {f2u(1/640):#x}, v23')
    ln_finish(a, 22, 23, 24)
    a('v_lshlrev_b32 v21, 16, v21\nv_sub_f32 v21, v21, v22')
    a.rnd(21, 21)
    a.div(20, 21, 23, 24, 25)
    a.rnd(20, 20)
    a('s_cmp_lt_u32 s2, 120\ns_cbranch_scc0 LB_dma0')
    a(f'''s_lshl_b32 s40, s55, 14
s_lshl_b32 s42, s3, 10
s_add_u32 s40, s40, s42
s_add_u32 s40, s40, {H1}
v_lshl_add_u32 v4, v1, 4, s40
v_add_u32 v9, 8192, v4
v_lshlrev_b32 v5, 1, v13
v_add_u32 v5, {MISC}, v5
s_lshl_b32 s40, s39, 4
s_add_u32 s40, s40, {READY + 2048}
v_lshl_add_u32 v10, v2, 7, s40
s_mul_i32 s40, s45, 43
s_lshr_b32 s40, s40, 7
s_mul_i32 s42, s40, 3
s_sub_u32 s42, s45, s42
s_lshl_b32 s42, s42, 9
s_mul_i32 s40, s40, 15360
s_add_u32 s40, s40, s42
s_mul_i32 s42, s53, 1536
s_add_u32 s40, s40, s42
s_add_u32 s40, s40, {H1B}''')
    pack_addr(a, 6, 0)
    a(f'v_lshlrev_b32 v6, 1, v6\nv_lshl_add_u32 v6, v3, 4, v6\nv_add_u32 v6, s40, v6\nv_cmp_eq_u32 s[42:43], 1, v3')
    a(f's_and_b32 s40, s3, 1\ns_lshl_b32 s40, s40, 7\ns_add_u32 s40, s40, {MISC}')
    frag2_addr(a, 7, 's40')
    vw(0)
    a.stamp('wq')
    a.get_tag()
    a(f'v_mov_b32 v61, {TAG}\nv_mov_b32 v63, {TAG}')
    a.poll(lambda: a(f'global_load_dwordx4 v[16:19], v4, {WS} sc1\nglobal_load_dwordx4 v[24:27], v9, {WS} sc1\nglobal_load_dwordx2 v[28:29], v10, {WS} sc1'),
           lambda: a.chk_tag([17, 19, 25, 27], 8), sleep=P['sl_h1'], pre=P['pre_h1'], mid=lambda: a.perm_block(96, 64))
    a.stamp('h1')
    a('s_setprio 3')
    a('''v_add_f32_dpp v16, v16, v16 row_ror:8 row_mask:0xf bank_mask:0xf
v_add_f32_dpp v18, v18, v18 row_ror:8 row_mask:0xf bank_mask:0xf
v_add_f32_dpp v24, v24, v24 row_ror:8 row_mask:0xf bank_mask:0xf
v_add_f32_dpp v26, v26, v26 row_ror:8 row_mask:0xf bank_mask:0xf
v_cmp_ne_u32 s[50:51], s16, v29
v_cmp_ne_u32 vcc, s32, v28
s_or_b64 s[50:51], s[50:51], vcc
v_permlane16_swap_b32 v16, v18
v_permlane16_swap_b32 v24, v26
v_add_f32 v16, v16, v18
v_add_f32 v24, v24, v26
v_permlane32_swap_b32 v16, v24
v_add_f32 v16, v16, v24
v_mov_b32 v18, v16
v_permlane16_swap_b32 v16, v18''')
    a.rnd(16, 16); a.rnd(18, 18)
    a('v_add_f32 v18, 1.0, v18')
    a.rnd(18, 18)
    a('v_mul_f32 v18, v20, v18')
    a.rnd(18, 18)
    a('v_add_f32 v16, v18, v16\nv_cvt_pk_bf16_f32 v16, v16, v16\nds_write_b16 v5, v16')
    a.bar()
    a('ds_read_b128 v[16:19], v7\ns_waitcnt lgkmcnt(0)')
    a.gemv2(24, 16, 96, True)
    a.pack2(8, 24)
    a('v_cndmask_b32 v60, v8, v10, s[42:43]\nv_cndmask_b32 v62, v9, v11, s[42:43]')
    a.lanes_lt(32)
    a.st_local('s[50:51]', f'global_store_dwordx4 v6, v[60:63], {WS}')
    a.full()
    a.stamp('qpub')
    a('s_setprio 0\ns_barrier')
    if P['sl_dma2']: a(f's_sleep {P["sl_dma2"]}')
    a('s_branch LB_dma')
    a.label('LB_dma0')
    a.get_tag()
    a.label('LB_dma')
    a.wave_is('eq', 7, 'LB_nrp')
    a.ready_publish()
    a.label('LB_nrp')
    def bump():
        a('v_mov_b32 v8, 1\ns_mov_b64 exec, 1\nds_add_u32 v253, v8\ns_mov_b64 exec, -1')
    def ckwait(lab): a.lds_wait(253, 8)
    if P['dma8']: dma(N1, 12)
    a.wave_is('lt', 4, 'LB_qa')
    if N0 < N1:
        a(f's_cmp_lt_u32 s39, {P["gsplit"]}\ns_cbranch_scc1 LB_d1')
        for i in range(N0, N1):
            dma(i, i + 1); dma(i, i + 1, 1)
        a.label('LB_d1')
    if not P['dma8']:
        for i in range(N1, 12):
            dma(i, i + 1); dma(i, i + 1, 1)
    a(f'''v_lshrrev_b32 v4, 2, v2            ; rr
v_lshl_add_u32 v4, v3, 3, v4       ; 8g+rr
v_and_b32 v5, 3, v1                ; cc
s_mul_i32 s40, s3, 24
v_add_u32 v5, s40, v5              ; 24w+cc''')
    for t in range(6):
        for sub in range(2):
            a(f'''v_add_u32 v6, {4*sub}, v4
v_and_b32 v7, 15, v6
v_add_u32 v8, {4*t}, v5
v_xor_b32 v7, v7, v8
v_mul_u32_u24 v6, 1536, v6
v_lshl_add_u32 v{40+t*2+sub}, v7, 4, v6''')
    a('s_waitcnt vmcnt(0)')
    bump()
    a(f's_lshl_b32 s40, s39, 4\ns_add_u32 s40, s40, {READY + 2048}\nv_lshl_add_u32 v10, v2, 7, s40')
    a.poll(lambda: a(f'global_load_dwordx2 v[28:29], v10, {WS} sc1'), lambda: a.chk_tag([28], 8), sleep=4)
    a('v_cmp_ne_u32 s[16:17], s16, v29')
    ckwait('LB_ck0')
    a.stamp('ckv')
    for t in range(6):
        for sub in range(2):
            for hf in range(2):
                for ks in range(2):
                    r = 64 + ((t*2+hf)*2+ks)*4 + 2*sub
                    a(f'ds_read_b64_tr_b16 {vr(r,2)}, v{40+t*2+sub} offset:{ks*49152 + hf*8}')
    a(f'''s_mul_i32 s41, s2, 384
s_mul_i32 s40, s3, 49152
s_add_u32 s41, s41, s40
s_add_u32 s41, s41, {H4}
s_mov_b32 s40, 196608
v_lshrrev_b32 v61, 3, v1
v_mul_lo_u32 v52, v61, s40
v_and_b32 v8, 7, v1
v_lshl_add_u32 v52, v8, 4, v52
v_add_u32 v52, s41, v52
s_mul_i32 s40, s3, 4608
s_add_u32 s40, s40, {SPB}
v_mul_u32_u24 v60, 144, v2
v_lshl_add_u32 v60, v3, 4, v60
v_add_u32 v60, s40, v60
v_mul_u32_u24 v61, 144, v61
v_lshl_add_u32 v61, v8, 4, v61
v_add_u32 v61, s40, v61
v_add_u32 v53, {8*196608}, v52
v_add_u32 v54, {16*196608}, v52
v_add_u32 v55, {24*196608}, v52
s_lshl_b32 s40, s3, 11
s_lshl_b32 s41, s2, 4
s_add_u32 s40, s40, s41
s_add_u32 s40, s40, {AUX}
v_lshl_add_u32 v56, v1, 13, s40
v_and_b32 v57, 31, v1
v_lshlrev_b32 v57, 4, v57
v_add_u32 v57, {STB}, v57
s_branch LB_noqk''')
    a.label('LB_qa')
    a('s_sub_u32 s45, s3, 4\ns_mul_i32 s40, s45, 24\nv_add_u32 v5, s40, v3\nv_mul_u32_u24 v4, 1536, v2')
    for s_ in range(6):
        a(f'v_add_u32 v6, {4*s_}, v5\nv_xor_b32 v6, v6, v2\nv_lshl_add_u32 v{240+2*s_}, v6, 4, v4\nv_add_u32 v{241+2*s_}, 49152, v{240+2*s_}')
    a(f'''s_mul_i32 s40, s45, 12288
s_add_u32 s40, s40, {H2}
{'v_lshl_add_u32 v4, v1, 4, s40' if P['h2lay'] else 'v_lshl_add_u32 v4, v2, 6, s40'}
{'s_nop 0' if P['h2lay'] else 'v_lshl_add_u32 v4, v3, 4, v4'}
v_add_u32 v5, 4096, v4
v_add_u32 v6, 8192, v4
s_and_b32 s41, s2, 3
s_lshl_b32 s41, s41, {4 if P['h2lay'] else 6}
s_add_u32 s40, s40, s41
s_add_u32 s40, s40, 10240
v_and_b32 v9, 3, v1
v_lshl_add_u32 v9, v9, {6 if P['h2lay'] else 8}, s40
v_bfe_u32 v8, v1, 2, 1
v_lshl_add_u32 v9, v8, 10, v9
s_mul_i32 s40, s45, {32*272}
s_add_u32 s40, s40, {SPB}
v_mul_u32_u24 v7, 272, v2
v_lshl_add_u32 v7, v3, 4, v7
v_add_u32 v7, s40, v7
s_mov_b32 s52, 0
s_waitcnt vmcnt(0)''')
    bump()
    a.ready_check(1, 10)
    a('v_mov_b32 v12, 0\nv_mov_b32 v10, 0')
    def cf():
        for kt in range(4):
            for s_ in range(6):
                a(f'ds_read_b128 {vr(64+(kt*6+s_)*4,4)}, v{240 + 2*s_ + (kt >> 1)} offset:{(kt & 1)*24576}')
    a(f'''LB_q0:
s_mov_b64 exec, {P['k_h2']}
global_load_dword v10, v9, {WS} sc1
s_mov_b64 exec, -1
s_cmp_eq_u32 s52, 0
s_cbranch_scc0 LB_q1
ds_read_b32 v8, v253
s_waitcnt lgkmcnt(0)
v_cmp_gt_u32 vcc, 8, v8
s_cbranch_vccnz LB_q1
s_mov_b32 s52, 1''')
    cf()
    a(f'''LB_q1:
s_waitcnt vmcnt(0)
v_cmp_eq_u32 vcc, -1, v10
s_cbranch_vccz LB_h2go
s_add_u32 {SPIN}, {SPIN}, 1
s_cmp_gt_u32 {SPIN}, {SPINMAX}
s_cbranch_scc1 LB_h2go
s_sleep {P['sl_pr2']}
s_branch LB_q0
LB_h2go:''')
    if P['post_h2']: a(f's_sleep {P["post_h2"]}')
    def ld():
        for i in range(12): a(f'global_load_dwordx4 {vr(16+4*i,4)}, v{4 + i//4}, {WS} offset:{(i%4)*1024} sc1')
    def mid():
        a('s_cmp_eq_u32 s52, 0\ns_cbranch_scc0 LB_q2')
        ckwait('LB_ck1')
        cf()
        a.label('LB_q2')
    ld(); mid()
    a('s_setprio 3\ns_waitcnt lgkmcnt(0)\ns_branch LB_qm')
    a.label('LB_qr')
    ld()
    a.label('LB_qm')
    for s_ in range(6):
        a(f's_waitcnt vmcnt({10 - 2*s_})')
        if s_ == 5: a.stamp('h2')
        for kt in range(4):
            for ht in range(2):
                d = 224 + (kt*2+ht)*4
                a(f'v_mfma_f32_16x16x32_bf16 {vr(d,4)}, {vr(64+(kt*6+s_)*4,4)}, {vr(16+(s_*2+ht)*4,4)}, {"0" if s_ == 0 else vr(d,4)}')
                if s_ > 0 or True:
                    r = 16 + s_*8 + (kt*2+ht)
                    if kt*2+ht < 4:
                        q = 16 + s_*8 + 2*(kt*2+ht)
                        a(f'v_max_u32 v8, v{q}, v{q+1}' if (s_ == 0 and kt*2+ht == 0) else f'v_max3_u32 v8, v8, v{q}, v{q+1}')
    a(f'''v_cmp_eq_u32 vcc, -1, v8
s_cbranch_vccz LB_qd
s_add_u32 {SPIN}, {SPIN}, 1
s_cmp_gt_u32 {SPIN}, {SPINMAX}
s_cbranch_scc1 LB_qd
s_sleep {P['sl_h2']}
s_branch LB_qr
LB_qd:''')
    for kt in range(4):
        for ht in range(2): a(f'ds_write_b128 v7, {vr(224+(kt*2+ht)*4,4)} offset:{ht*16*272 + kt*64}')
    a.label('LB_noqk')
    a(f'''s_lshl_b32 s40, s3, 2
v_add_u32 v9, s40, v3              ; head = 4w+g
v_mul_u32_u24 v4, 272, v9
v_lshl_add_u32 v4, v2, 4, v4
v_add_u32 v4, {SPB}, v4
v_mul_u32_u24 v5, 144, v9
v_lshl_add_u32 v5, v2, 3, v5
v_add_u32 v5, {PB}, v5
s_lshl_b32 s40, s2, 4
s_add_u32 s40, s40, {H3}
v_lshl_add_u32 v6, v9, 11, s40
v_lshlrev_b32 v7, 4, v9
v_add_u32 v7, {STB}, v7
v_lshlrev_b32 v10, 2, v2           ; 4*kq
v_mov_b32 v45, {TAG}
v_mov_b32 v47, {TAG}
s_lshl_b32 s40, s2, 7
s_add_u32 s40, s40, {DB3}
v_mov_b32 v8, s40
v_cmp_eq_u32 vcc, 1, v1
v_cndmask_b32 v6, v6, v8, vcc
s_cmp_eq_u32 s3, 7
s_cselect_b32 s49, 2, 0
s_or_b32 s49, s49, 0x00010001
v_mov_b32 v58, {STB + 512}
v_mov_b32 v13, 0
ds_write_b64 v58, v[12:13]
ds_write_b32 v58, v12 offset:12
ds_write_b32 v58, v12 offset:16''')
    for i in range(4): a(f'v_add_u32 v{40+i}, {i}, v10')
    a.bar()
    a.stamp('qk')
    a('s_setprio 3')
    for i in range(4): a(f'ds_read_b128 {vr(16+4*i,4)}, v4 offset:{8704*i}')
    a(f'''v_mul_u32_u24 v4, 144, v2
v_lshl_add_u32 v4, v3, 4, v4
v_add_u32 v4, {PB}, v4
v_mov_b32 v11, {NEGINF:#x}
s_mov_b32 s40, 0xffffffc0
s_waitcnt lgkmcnt(0)''')
    for i in (0, 2):
        a(f'v_pk_add_f32 {vr(16+i,2)}, {vr(16+i,2)}, {vr(20+i,2)}\nv_pk_add_f32 {vr(24+i,2)}, {vr(24+i,2)}, {vr(28+i,2)}')
    for i in (0, 2): a(f'v_pk_add_f32 {vr(32+i,2)}, {vr(16+i,2)}, {vr(24+i,2)}')
    for i in range(4): a(f'v_and_or_b32 v{36+i}, v{32+i}, s40, v{40+i}')
    a('v_max3_f32 v50, v36, v37, v38\nv_max_f32 v50, v50, v39')
    a('v_cvt_pk_bf16_f32 v36, v32, v33\nv_cvt_pk_bf16_f32 v37, v34, v35')
    fill = ['v_lshlrev_b32 v32, 16, v36\nv_and_b32 v33, 0xffff0000, v36', 'v_lshlrev_b32 v34, 16, v37\nv_and_b32 v35, 0xffff0000, v37',
            'v_mul_f32 v32, s59, v32\nv_mul_f32 v33, s59, v33', 'v_mul_f32 v34, s59, v34\nv_mul_f32 v35, s59, v35']
    for k, f in zip((8, 4, 2, 1), fill):
        a(f'v_max_f32_dpp v50, v50, v50 row_ror:{k} row_mask:0xf bank_mask:0xf')
        a(f)
    a('''v_cvt_pk_bf16_f32 v44, v50, v50
v_cvt_pk_bf16_f32 v36, v32, v33
v_and_b32 v44, 0xffff0000, v44
v_cvt_pk_bf16_f32 v37, v34, v35
v_mul_f32 v44, s59, v44
v_and_b32 v46, 63, v50
v_cvt_pk_bf16_f32 v44, v44, v44
v_lshlrev_b32 v32, 16, v36
v_and_b32 v44, 0xffff0000, v44
s_mov_b32 exec_lo, s49
s_mov_b32 exec_hi, 0x00010001''')
    a(f'global_store_dwordx4 v6, v[44:47], {WS} sc1')
    a.full()
    a.stamp('h3pub')
    a('''v_and_b32 v33, 0xffff0000, v36
v_lshlrev_b32 v34, 16, v37
v_and_b32 v35, 0xffff0000, v37''')
    for i in range(4): a(f'v_sub_f32 v{24+i}, v{32+i}, v44')
    for i in range(4): a(f'v_mul_f32 v{24+i}, s56, v{24+i}')
    for i in range(4): a(f'v_exp_f32 v{24+i}, v{24+i}')
    a('''v_cvt_pk_bf16_f32 v36, v24, v25
v_cvt_pk_bf16_f32 v37, v26, v27
ds_write_b64 v5, v[36:37]
v_add_f32 v49, v24, v25
v_add_f32 v48, v26, v27
v_add_f32 v49, v49, v48''')
    def deferred():
        for i in range(4):
            a(f'v_cmp_eq_u32 vcc, v{40+i}, v46\nv_cndmask_b32 v{32+i}, v{32+i}, v11, vcc')
        a('v_max3_f32 v50, v32, v33, v34\nv_max_f32 v50, v50, v35')
        for k in (8, 4, 2, 1):
            a(f'v_max_f32_dpp v50, v50, v50 row_ror:{k} row_mask:0xf bank_mask:0xf\nv_add_f32_dpp v49, v49, v49 row_ror:{k} row_mask:0xf bank_mask:0xf')
        for i in range(4): a(f'v_sub_f32 v{32+i}, v{32+i}, v50')
        for i in range(4): a(f'v_mul_f32 v{32+i}, s56, v{32+i}')
        for i in range(4): a(f'v_exp_f32 v{32+i}, v{32+i}')
        a('''v_add_f32 v51, v32, v33
v_add_f32 v48, v34, v35
v_add_f32 v51, v51, v48
v_cvt_pk_bf16_f32 v38, v32, v33
v_cvt_pk_bf16_f32 v39, v34, v35
ds_write_b64 v5, v[38:39] offset:4608
v_mov_b32 v48, v44''')
        a.row_red('v_add_f32', [51])
        a('ds_write_b128 v7, v[48:51]\nv_mov_b32 v8, 1\ns_mov_b64 exec, 1\nds_add_u32 v58, v8 offset:16\ns_mov_b64 exec, -1')
    a.stamp('xa')
    a.bar()
    a.stamp('xb')
    a.wave_is('lt', 4, 'LB_lw')
    for ht in range(2):
        for ks in range(2): a(f'ds_read_b128 {vr(16+(ht*2+ks)*4,4)}, v4 offset:{ht*16*144 + ks*64}')
    a('s_waitcnt lgkmcnt(0)')
    def unit(i):
        cl, ht = i >> 1, i & 1
        for tp in range(2):
            for hf in range(2):
                d = 160 + (i % 3)*16 + (tp*2+hf)*4
                t = cl*2 + tp
                for ks in range(2):
                    a(f'v_mfma_f32_16x16x32_bf16 {vr(d,4)}, {vr(64+((t*2+hf)*2+ks)*4,4)}, {vr(16+(ht*2+ks)*4,4)}, {"0" if ks == 0 else vr(d,4)}')
    def stw(i):
        d = 160 + (i % 3)*16; o = 208 + (i % 2)*8
        for k in range(8): a(f'v_cvt_pk_bf16_f32 v{o+k}, v{d+2*k}, v{d+2*k+1}')
        a(f'ds_write_b128 v60, {vr(o,4)} offset:{(i % 2)*2304}\nds_write_b128 v60, {vr(o+4,4)} offset:{(i % 2)*2304 + 64}')
        o2 = 224 + (i % 3)*8
        a(f'ds_read_b128 {vr(o2,4)}, v61 offset:{(i % 2)*2304}\nds_read_b128 {vr(o2+4,4)}, v61 offset:{(i % 2)*2304 + 1152}')
    def stg(i, pol, n):
        cl, ht = i >> 1, i & 1
        o2 = 224 + (i % 3)*8
        a(f's_waitcnt lgkmcnt({n})')
        a(f'global_store_dwordx4 v{52+2*ht}, {vr(o2,4)}, {WS} offset:{128*cl} {pol}')
        a(f'global_store_dwordx4 v{53+2*ht}, {vr(o2+4,4)}, {WS} offset:{128*cl} {pol}')
    def pvloop(pol):
        unit(0)
        a.stamp('xc')
        unit(1); stw(0)
        for i in range(2, 6):
            unit(i); stw(i - 1); stg(i - 2, pol, 0 if P['stamps'] == 2 else 4)
            if i in (3, 5): a.stamp(f'xd{i}')
        stw(5); stg(4, pol, 0 if P['stamps'] == 2 else 4); stg(5, pol, 0)
    if P['local'] and P['pv_local']:
        a('s_cmp_eq_u64 s[16:17], 0\ns_cbranch_scc0 LB_pvf')
        pvloop('')
        a('s_branch LB_pvd')
        a.label('LB_pvf')
    pvloop('sc1')
    a.label('LB_pvd')
    a('v_mov_b32 v8, 1')
    a.lanes_lt(1)
    a('ds_add_u32 v58, v8')
    a.full()
    a.stamp('pvst')
    deferred()
    a.lds_wait(58, 8, off=16, extra='ds_read_b64 v[36:37], v57')
    a(f'v_mov_b32 v8, 1\nv_mov_b32 v33, {TAG}\nv_mov_b32 v32, v36\nv_mov_b32 v34, v37\nv_mov_b32 v35, {TAG}')
    a.lanes_lt(32)
    a(f's_waitcnt vmcnt(0)\nglobal_store_dwordx4 v56, v[32:35], {WS} sc1')
    a.lanes_lt(1)
    a('ds_add_u32 v58, v8 offset:12')
    a.full()
    a.stamp('auxpub')
    a(f'''v_lshlrev_b32 v9, 2, v2
v_add_u32 v9, {STB + 576}, v9
s_lshl_b32 s40, s3, 9
s_add_u32 s40, s40, {SIDE}
v_lshlrev_b32 v10, 13, v2
v_lshl_add_u32 v10, v3, 4, v10
v_add_u32 v10, s40, v10
v_lshlrev_b32 v11, 4, v2
v_add_u32 v11, {STB}, v11
''')
    a.lds_wait(58, 1, off=4, extra='ds_read2_b32 v[40:41], v9 offset0:0 offset1:16')
    for ht in range(2):
        a(f'''v_cmp_gt_u32 s[42:43], 4, v{40+ht}
s_cmp_eq_u64 s[42:43], 0
s_cbranch_scc1 LB_cn{ht}
ds_read_b128 v[16:19], v4 offset:{4608 + ht*16*144}
ds_read_b128 v[20:23], v4 offset:{4608 + ht*16*144 + 64}
ds_read_b64 v[44:45], v11 offset:{ht*256 + 8}
v_and_b32 v42, 3, v{40+ht}
v_lshl_add_u32 v42, v42, 11, v10
v_add_u32 v42, {ht*16*8192}, v42
s_waitcnt lgkmcnt(0)''')
        for t in range(6):
            for hf in range(2):
                d = 160 + (t*2+hf)*4
                for ks in range(2):
                    a(f'v_mfma_f32_16x16x32_bf16 {vr(d,4)}, {vr(64+((t*2+hf)*2+ks)*4,4)}, {vr(16+ks*4,4)}, {"0" if ks == 0 else vr(d,4)}')
        for t in range(6):
            for k in range(4): a(f'v_cvt_pk_bf16_f32 v{208+4*t+k}, v{160+8*t+2*k}, v{161+8*t+2*k}')
        a.san(range(208, 232))
        a(f'v_mov_b32 v46, v45\nv_mov_b32 v45, {TAG}\nv_mov_b32 v47, {TAG}\ns_mov_b64 exec, s[42:43]')
        for t in range(6): a(f'global_store_dwordx4 v42, {vr(208+4*t,4)}, {WS} offset:{64*t} sc1')
        a(f's_and_b64 exec, exec, 0xffff\nglobal_store_dwordx4 v42, v[44:47], {WS} offset:384 sc1')
        a.full()
        a.label(f'LB_cn{ht}')
    a('v_mov_b32 v8, 1')
    a.lanes_lt(1)
    a('ds_add_u32 v58, v8')
    a.full()
    a('s_branch LB_lw2')
    a.label('LB_lw')
    a('s_setprio 0')
    deferred()
    a.wave_is('eq', 4, 'LB_lw3')
    a(f'''v_and_b32 v9, 31, v1
v_lshlrev_b32 v10, 2, v9
v_add_u32 v10, {STB + 576}, v10
s_lshl_b32 s40, s39, 4
s_add_u32 s40, s40, s38
s_lshl_b32 s40, s40, 8
s_add_u32 s40, s40, {MB}
v_lshl_add_u32 v9, v9, 3, s40
''')
    a.lds_wait(58, P['ew_cnt'], sleep=2)
    a.poll(lambda: a(f'global_load_dwordx2 v[16:17], v9, {WS} sc1'), lambda: a.chk_tag([17], 8), sleep=P['sl_el'])
    a.stamp('el')
    a('ds_write_b32 v10, v16\nv_mov_b32 v8, 1\nds_write_b32 v58, v8 offset:4')
    a.label('LB_lw2')
    a.lds_wait(58, 8, sleep=P['sl_lw'])
    a('s_branch LB_late')
    a.label('LB_lw3')
    if P['early_late']: a.lds_wait(58, 4, off=12, sleep=P['sl_lw'])
    else: a.lds_wait(58, 8, sleep=P['sl_lw'])
    a.label('LB_late')
    def gate2(): a.lds_wait(58, 8, sleep=P['sl_lw'])
    a('s_cmp_lt_u32 s54, 80\ns_cbranch_scc0 LB_hi')
    a.wave_is('ge', 4, 'LB_wob')
    a(f'''s_mul_i32 s40, s39, 768
s_mul_i32 s41, s45, 192
s_add_u32 s40, s40, s41
s_lshl_b32 s41, s38, 7''')
    blk2_addr(a, 4, 's40', 1280, 's41')
    a(f'v_add_u32 v5, {64*1280}, v4\nv_add_u32 v6, {128*1280}, v4')
    for i in range(3):
        a.load_rows(64 + 32*i, 4, 4 + i, WO, 1280)
        if i == P['early_late'] - 1: gate2()
    a(f'''s_mul_i32 s40, s39, 12
s_mul_i32 s41, s45, 3
s_add_u32 s40, s40, s41
s_lshl_b32 s40, s40, 10
s_add_u32 s40, s40, {H5}
v_lshl_add_u32 v4, v1, 4, s40
s_mul_i32 s40, s45, 384
s_add_u32 s40, s40, {MISC + 4096}
v_lshl_add_u32 v5, v2, 2, v3
v_lshl_add_u32 v5, v5, 1, s40      ; (4p+g)*2''')
    frag2_addr(a, 6, 's40')
    gemv_out_prep(a, MISC + 2048 - 1024)
    for i in range(3):
        a(f's_waitcnt vmcnt({16 - 8*i})')
        a.perm_block(160 + 32*i, 64 + 32*i)
    a.stamp('late')
    if P['probe_h5']: a.probe(4, 8, off=2048, sleep=P['sl_pr'], post=P['post_h5'], mask=0x0001000100010001)
    def ld():
        for i in range(3): a(f'global_load_dwordx4 {vr(16+4*i,4)}, v4, {WS} offset:{1024*i} sc1')
    a.poll(ld, lambda: a.chk_sent(range(16, 28), 8), sleep=P['sl_h5'])
    a.stamp('h5')
    a('s_setprio 3')
    for i in range(3): a.xrow_tr4(16 + 4*i)
    for i in range(3): a(f'v_cvt_pk_bf16_f32 v{16+4*i}, v{16+4*i}, v{16+4*i}\nds_write_b16 v5, v{16+4*i} offset:{128*i}')
    a('s_waitcnt lgkmcnt(0)')
    for i in range(3): a(f'ds_read_b128 {vr(16+4*i,4)}, v6 offset:{128*i}')
    for i in range(3):
        a(f's_waitcnt lgkmcnt({2-i})')
        a.gemv2(64, 16 + 4*i, 160 + 32*i, i == 0)
    gemv_out_lds(a, 64, 0)
    a.label('LB_wob')
    a(f'''v_lshlrev_b32 v4, 4, v2
v_add_u32 v4, {MISC + 2048}, v4
s_mul_i32 s40, s39, 2560
s_lshl_b32 s41, s38, 8
s_add_u32 s40, s40, s41
s_add_u32 s40, s40, {H6}
v_lshl_add_u32 v5, v2, 4, s40''')
    a.bar()
    a.wave_is('eq', 4, 'Lfin')
    for i in range(4): a(f'ds_read_b128 {vr(16+4*i,4)}, v4 offset:{256*i}')
    a('s_waitcnt lgkmcnt(0)')
    tree(a, range(16, 32, 4), n=4)
    a.lanes_lt(16)
    a(f'global_store_dwordx4 v5, v[16:19], {WS} sc1')
    a.full()
    a.stamp('h6pub')
    a('s_branch Lfin')
    a.label('LB_hi')
    a('s_cmp_lt_u32 s54, 104\ns_cbranch_scc0 LB_mr')
    a(f's_sub_u32 s46, s54, 80\ns_lshl_b32 s40, s46, 6\ns_lshl_b32 s41, s3, 7')
    blk2_addr(a, 10, 's40', 1280, 's41')
    a.wave_is('lt', 5, 'LB_f5')
    a(f's_lshl_b32 s40, s3, 7\ns_lshl_b32 s41, s46, 7')
    blk2_addr(a, 4, 's40', 3072, 's41')
    a(f'v_add_u32 v5, {64*3072}, v4\nv_lshlrev_b32 v6, 2, v0\nglobal_load_dword v24, v6, {X}')
    a.load_rows(128, 4, 4, W1, 3072)
    a.load_rows(160, 4, 5, W1, 3072)
    a.load_rows(64, 4, 10, W2, 1280)
    a(f'v_lshlrev_b32 v4, 2, v0\nv_add_u32 v4, {MODR}, v4\nv_add_u32 v5, 2560, v4\ns_waitcnt vmcnt(8)')
    a.perm_block(192, 128)
    a.perm_block(224, 160)
    a('s_waitcnt vmcnt(0)')
    a.stamp('late1')
    a.perm_block(96, 64)
    a.ready_check(0, 36)
    def ld():
        a(f'''global_load_dword v25, v4, {WS} sc1
global_load_dword v26, v4, {WS} offset:1280 sc1
global_load_dword v27, v5, {WS} sc1
global_load_dword v38, v5, {WS} offset:1280 sc1''')
    a.poll(ld, lambda: a.chk_sent([25, 26, 27, 38], 8), sleep=8)
    a(f'''v_lshlrev_b32 v4, 3, v0
v_add_u32 v8, {H6}, v4
v_lshlrev_b32 v28, 16, v24
v_and_b32 v29, 0xffff0000, v24
v_lshlrev_b32 v30, 16, v25
v_and_b32 v31, 0xffff0000, v25
v_lshlrev_b32 v32, 16, v26
v_and_b32 v33, 0xffff0000, v26
v_lshlrev_b32 v34, 16, v27
v_and_b32 v35, 0xffff0000, v27
v_add_f32 v34, 1.0, v34
v_add_f32 v35, 1.0, v35''')
    a.rnd(34, 34); a.rnd(35, 35)
    for i in range(1, 4): a(f'v_add_u32 v{8+i}, {5120*i}, v8')
    a(f'''s_lshl_b32 s40, s3, 3
s_add_u32 s40, s40, {MISC + 8192}
v_mov_b32 v13, s40
s_lshl_b32 s40, s3, 8
s_add_u32 s40, s40, {MISC + 4096}
v_lshl_add_u32 v5, v1, 2, s40''')
    frag2_addr(a, 6, 's40')
    gemv_out_prep(a, MISC)
    a(f'v_mul_u32_u24 v37, 2560, v1\ns_lshl_b32 s40, s3, 9\ns_add_u32 s40, s40, {H6}\nv_add_u32 v37, s40, v37')
    if P['probe_h6']: a.probe(37, 4, sleep=P['sl_pr'], post=P['post_h6'], mask=0xff)
    def ld():
        for i in range(8): a(f'global_load_dwordx2 {vr(40+2*i,2)}, v{8 + i//2}, {WS} offset:{2560*(i%2)} sc1')
    if P['m_h6']:
        a.poll_masked([(f'global_load_dwordx2 {vr(40+2*i,2)}, v{8 + i//2}, {WS} offset:{2560*(i%2)} sc1', range(40+2*i, 42+2*i)) for i in range(8)], 4, sleep=P['sl_h6'])
    else: a.poll(ld, lambda: a.chk_sent(range(40, 56), 4), sleep=P['sl_h6'])
    a.stamp('h6')
    a('s_setprio 3')
    tree(a, range(40, 56, 2), n=2)
    for i in range(2): a.rnd(40 + i, 40 + i)
    for i in range(2): a(f'v_mul_f32 v{40+i}, v{30+i}, v{40+i}')
    for i in range(2): a.rnd(40 + i, 40 + i)
    for i in range(2): a(f'v_add_f32 v{40+i}, v{28+i}, v{40+i}')
    a('''v_cvt_pk_bf16_f32 v36, v40, v41
v_lshlrev_b32 v40, 16, v36
v_and_b32 v41, 0xffff0000, v36
v_readfirstlane_b32 s42, v40
v_subrev_f32 v44, s42, v40
v_subrev_f32 v45, s42, v41
v_add_f32 v42, v44, v45
v_mul_f32 v43, v44, v44
v_fmac_f32 v43, v45, v45''')
    a.row_red('v_add_f32', [42, 43])
    a(f'''v_permlane16_swap_b32 v42, v43
v_add_f32 v42, v42, v43
v_mov_b32 v43, v42
v_permlane32_swap_b32 v42, v43
v_add_f32 v42, v42, v43
v_mov_b32 v43, v42
v_permlane16_swap_b32 v42, v43
v_mul_f32 v42, {f2u(1/128):#x}, v42
v_mul_f32 v44, {f2u(128.0):#x}, v42
v_fma_f32 v43, -v44, v42, v43
v_add_f32 v42, s42, v42
ds_write_b64 v13, v[42:43]
s_branch LB_w1b''')
    a.label('LB_f5')
    a.load_rows(64, 4, 10, W2, 1280)
    if P['early_late'] < 2: gate2()
    a.wave_is('lt', 7, 'LB_f7')
    a(f's_lshl_b32 s40, s46, 6\ns_add_u32 s41, s3, 3\ns_lshl_b32 s41, s41, 7')
    blk2_addr(a, 10, 's40', 1280, 's41')
    a.load_rows(128, 4, 10, W2, 1280)
    a.label('LB_f7')
    a('s_waitcnt vmcnt(0)')
    a.perm_block(96, 64)
    a.perm_block(192, 128)
    a.label('LB_w1b')
    a(f'v_mov_b32 v4, {MISC + 8192}')
    a.bar()
    a('s_setprio 3')
    a.wave_is('lt', 5, 'LB_w1c')
    a(f'''ds_read_b128 v[44:47], v4
ds_read_b128 v[48:51], v4 offset:16
ds_read_b64 v[52:53], v4 offset:32
s_waitcnt lgkmcnt(0)
v_add_f32 v54, v44, v46
v_add_f32 v55, v48, v50
v_add_f32 v56, v45, v47
v_add_f32 v54, v54, v55
v_add_f32 v57, v49, v51
v_add_f32 v54, v54, v52
v_add_f32 v55, v56, v57
v_mul_f32 v54, {f2u(0.2):#x}, v54      ; mean
v_add_f32 v55, v55, v53''')
    for r in (44, 46, 48, 50, 52): a(f'v_sub_f32 v{r}, v{r}, v54')
    a('v_mul_f32 v56, v44, v44\nv_mul_f32 v57, v46, v46\nv_fmac_f32 v56, v48, v48\nv_fmac_f32 v57, v50, v50\nv_fmac_f32 v56, v52, v52\nv_add_f32 v56, v56, v57')
    a(f'v_fmac_f32 v55, {f2u(128.0):#x}, v56\nv_mul_f32 v55, {f2u(1/640):#x}, v55')
    ln_finish(a, 54, 55, 56)
    for i in range(2): a(f'v_sub_f32 v{44+i}, v{40+i}, v54')
    for i in range(2): a.rnd(44 + i, 44 + i)
    for i in range(2): a.div(42 + i, 44 + i, 55, 56, 57 + i)
    for i in range(2): a.rnd(42 + i, 42 + i)
    for i in range(2): a(f'v_mul_f32 v{42+i}, v{42+i}, v{34+i}')
    for i in range(2): a.rnd(42 + i, 42 + i)
    for i in range(2): a(f'v_add_f32 v{42+i}, v{42+i}, v{32+i}')
    a('''v_cvt_pk_bf16_f32 v42, v42, v43
ds_write_b32 v5, v42
s_waitcnt lgkmcnt(0)
ds_read_b128 v[16:19], v6
ds_read_b128 v[20:23], v6 offset:128
s_waitcnt lgkmcnt(1)''')
    a.gemv2(128, 16, 192, True)
    a('s_waitcnt lgkmcnt(0)')
    a.gemv2(128, 20, 224, False)
    gemv_out_lds(a, 128, MISC)
    a.label('LB_w1c')
    a(f'''v_and_b32 v4, 31, v1
v_lshlrev_b32 v5, 2, v4
v_lshlrev_b32 v4, 3, v4
v_add_u32 v4, {MISC}, v4
s_lshl_b32 s40, s3, 7
s_add_u32 s40, s40, {MISC + 6144}
v_add_u32 v5, s40, v5''')
    frag2_addr(a, 6, 's40')
    a(f's_mul_i32 s40, s46, 2560\ns_lshl_b32 s41, s3, 8\ns_add_u32 s40, s40, s41\ns_add_u32 s40, s40, {H7Y}')
    pack_addr(a, 14, 's40')
    a.bar()
    for i in range(5): a(f'ds_read_b64 {vr(16+2*i,2)}, v4 offset:{256*i}')
    a('s_waitcnt lgkmcnt(0)')
    tree(a, range(16, 26, 2), n=2)
    a('''v_max_f32 v16, 0, v16
v_max_f32 v17, 0, v17
v_cvt_pk_bf16_f32 v8, v16, v17
ds_write_b32 v5, v8
s_waitcnt lgkmcnt(0)
ds_read_b128 v[16:19], v6
s_waitcnt lgkmcnt(0)''')
    a.gemv2(64, 16, 96, True)
    a('s_sub_u32 s40, s3, 5\ns_cmp_lt_u32 s40, 2\ns_cbranch_scc0 LB_y1')
    a.gemv2(128, 16, 192, True)
    a.label('LB_y1')
    a.pack2(8, 64)
    a.lanes_lt(16)
    a(f'global_store_dwordx4 v14, v[8:11], {WS} sc1')
    a.full()
    a('s_cbranch_scc0 LB_y2')
    a.pack2(20, 128)
    a.lanes_lt(16)
    a(f'global_store_dwordx4 v14, v[20:23], {WS} offset:768 sc1')
    a.full()
    a.label('LB_y2')
    a.stamp('h7pub')
    a('s_lshr_b32 s40, s46, 2\ns_cmp_eq_u32 s40, s3\ns_cbranch_scc0 Lfin\ns_cmp_lt_u32 s3, 5\ns_cbranch_scc0 Lfin\ns_and_b32 s40, s46, 3\ns_lshl_b32 s40, s40, 4\ns_mov_b64 s[42:43], 0xffff\ns_lshl_b64 exec, s[42:43], s40')
    a(f'v_lshlrev_b32 v4, 3, v0\nv_add_u32 v4, {H7Y}, v4')
    for i in range(1, 12): a(f'v_add_u32 v{16+i}, {5120*i}, v4')
    a(f'''v_mov_b32 v16, v4
v_lshlrev_b32 v5, 2, v0
v_lshlrev_b32 v30, 16, v38
v_and_b32 v31, 0xffff0000, v38''')
    def ld():
        for i in range(24): a(f'global_load_dwordx2 {vr(64+2*i,2)}, v{16 + i//2}, {WS} offset:{2560*(i%2)} sc1')
    a.poll(ld, lambda: a.chk_sent(range(64, 112), 4), sleep=P['sl_h7'], pre=P['pre_h7'])
    a.stamp('h7')
    tree(a, range(64, 112, 2), n=2)
    for i in range(2): a.rnd(64 + i, 64 + i)
    for i in range(2): a(f'v_mul_f32 v{64+i}, v{30+i}, v{64+i}')
    for i in range(2): a.rnd(64 + i, 64 + i)
    for i in range(2): a(f'v_add_f32 v{64+i}, v{40+i}, v{64+i}')
    a(f'v_cvt_pk_bf16_f32 v64, v64, v65\nglobal_store_dword v5, v64, {OUT}\ns_mov_b64 exec, -1')
    a.stamp('out')
    a('s_branch Lfin')
    a.label('LB_mr')
    a('s_cmp_lt_u32 s54, 124\ns_cbranch_scc0 Lfin\ns_sub_u32 s46, s54, 104\ns_add_u32 s45, s3, 3\ns_and_b32 s45, s45, 7\ns_cmp_lt_u32 s45, 5\ns_cbranch_scc0 LB_mrb')
    a(f'''s_lshl_b32 s40, s45, 7
v_lshl_add_u32 v4, v3, 3, s40      ; row = 128w + 8g
v_lshlrev_b32 v6, 1, v4
v_add_u32 v6, {MISC + 4096}, v6
v_mul_u32_u24 v4, 7680, v4
v_lshl_add_u32 v4, v2, 4, v4
s_lshl_b32 s40, s46, 8
s_add_u32 s40, s40, 2560
v_add_u32 v4, s40, v4
s_lshl_b32 s40, s45, 8
v_lshl_add_u32 v7, v1, 2, s40
global_load_dword v16, v7, {CC}
v_add_u32 v7, {MISC + 4096}, v7''')
    for i in range(4):
        a.load_rows(64 + 32*i, 4, 4, WMOD, 7680)
        if i < 3: a(f'v_add_u32 v4, {25*7680}, v4')
        if i == P['early_late'] - 1: gate2()
    a('s_waitcnt vmcnt(32)')
    a('v_lshlrev_b32 v32, 16, v16\nv_and_b32 v33, 0xffff0000, v16')
    a.silu(32, 32, 8); a.silu(33, 33, 8)
    a(f'v_perm_b32 v16, v33, v32, {PHI}\nds_write_b32 v7, v16\ns_waitcnt lgkmcnt(0)')
    for i in range(4): a(f'ds_read_b128 {vr(16+4*i,4)}, v6 offset:{64*i}')
    a('s_waitcnt lgkmcnt(0)')
    a(f'''v_cmp_eq_u32 s[42:43], 1, v3
v_lshlrev_b32 v4, 5, v2
v_lshl_add_u32 v4, v3, 4, v4
s_lshl_b32 s40, s45, 9
s_add_u32 s40, s40, {MISC}
v_add_u32 v4, s40, v4''')
    for i in range(4):
        a(f's_waitcnt vmcnt({24 - 8*i})')
        a.perm_block(192, 64 + 32*i)
        a.gemv2(224, 16 + 4*i, 192, i == 0)
    a.stamp('late2')
    for i in range(4): a(f'v_cndmask_b32 v{8+i}, v{224+4*i}, v{224+4*(i+4)}, s[42:43]')
    a.lanes_lt(32)
    a('ds_write_b128 v4, v[8:11]')
    a.full()
    a.label('LB_mrb')
    a.bar()
    a.wave_is('eq', 2, 'Lfin')
    a(f'v_lshlrev_b32 v4, 3, v1\nv_add_u32 v4, {MISC}, v4')
    for i in range(5): a(f'ds_read_b64 {vr(16+2*i,2)}, v4 offset:{512*i}')
    a(f's_lshl_b32 s40, s46, 8\ns_add_u32 s40, s40, {MODR}\nv_lshl_add_u32 v4, v1, 2, s40\ns_waitcnt lgkmcnt(0)')
    tree(a, range(16, 26, 2), n=2)
    a('v_cvt_pk_bf16_f32 v8, v16, v17')
    a.san([8])
    for i in range(1, 4): a(f'v_mov_b32_dpp v{8+i}, v8 quad_perm:[{i},{i},{i},{i}] row_mask:0xf bank_mask:0xf')
    a.exec_mask(0x1111111111111111)
    a(f'global_store_dwordx4 v4, v[8:11], {WS} sc1')
    a.full()
    a.stamp('mrpub')
    a('s_branch Lfin')

LS1, LQ, LKEY, LEK, LWT, LWP, LFW, LKP = 0, 2816, 3328, 3840, 4096, 4608, 5120, 6144
LRP = LKP + 18432; LCC = LRP + 6144; LVP = LCC + 1024; LQF = LVP + 4608; LSR = LQF + 1024; LFL = LSR + 1536
def load_uk(a, base, off=128, lo=0, hi=8, v=4, rm=None):
    if lo == hi: return
    rm = rm or (lambda j: (off + 4*j, off + 32 + 2*j))
    a(f'''s_mul_i32 s40, s41, 192
s_lshl_b32 s42, s3, 5
s_add_u32 s40, s40, s42
s_add_u32 s40, s40, {lo}
v_lshl_add_u32 v{v}, v3, 3, s40
v_mul_u32_u24 v{v}, 12288, v{v}
s_mul_i32 s40, s47, 384
v_add_u32 v{v}, s40, v{v}
v_lshl_add_u32 v{v+1}, v2, 3, v{v}
v_lshl_add_u32 v{v}, v2, 4, v{v}''')
    for j in range(lo, hi):
        a(f'global_load_dwordx4 {vr(rm(j)[0],4)}, v{v}, {base} nt')
        a(f'global_load_dwordx2 {vr(rm(j)[1],2)}, v{v+1}, {base} offset:256 nt')
        if j < hi - 1: a(f'v_add_u32 v{v}, 12288, v{v}\nv_add_u32 v{v+1}, 12288, v{v+1}')
def perm12(a, dst, src=128, rm=None):
    rm = rm or (lambda j: (src + 4*j, src + 32 + 2*j))
    for e in range(12):
        w, ee = (0, e) if e < 8 else (1, e - 8)
        for k in range(4):
            a(f'v_perm_b32 v{dst+4*e+k}, v{rm(2*k+1)[w]+(ee>>1)}, v{rm(2*k)[w]+(ee>>1)}, {PHI if ee & 1 else PLO}')
def mfma12(a, D, A, F):
    for e in range(12): a(f'v_mfma_f32_16x16x32_bf16 {vr(D+4*e,4)}, {vr(A,4)}, {vr(F+4*e,4)}, 0')
def out12_prep(a, v, lbase):
    a(f's_mul_i32 s40, s3, 768\ns_add_u32 s40, s40, {lbase}\nv_lshl_add_u32 v{v}, v2, 5, s40\nv_lshl_add_u32 v{v+1}, v2, 4, s40')
def out12(a, D, o, v):
    for e in range(12): a(f'v_add_f32 v{o+e}, v{D+4*e}, v{D+4*e+1}')
    a.lanes_lt(16)
    a(f'ds_write_b128 v{v}, {vr(o,4)}\nds_write_b128 v{v}, {vr(o+4,4)} offset:16\nds_write_b128 v{v+1}, {vr(o+8,4)} offset:512')
    a.full()
def weights_out(a, val, lbase, k):
    a(f'''v_cvt_pk_bf16_f32 v8, v{val}, v{val}
ds_write_b16 v4, v8 offset:{lbase + 128*k}
v_and_b32 v9, 0xffff0000, v8
v_sub_f32 v9, v{val}, v9
v_cvt_pk_bf16_f32 v9, v9, v9
ds_write_b16 v4, v9 offset:{lbase + 256 + 128*k}''')

def role_A(a):
    P = a.P
    a(f'''s_and_b32 s44, s2, 7
s_lshl_b32 s44, s44, 4
s_bfe_u32 s40, s2, 0x40003
s_add_u32 s44, s44, s40
s_xor_b32 s43, s44, {P['s1x']}
s_cmp_lt_u32 s44, 64
s_cselect_b32 s43, s44, s43
s_mul_i32 s39, s43, 205
s_lshr_b32 s39, s39, 11          ; kp
s_mul_i32 s40, s39, 10
s_sub_u32 s38, s43, s40          ; mg
s_lshr_b32 s47, s44, 2           ; head
s_and_b32 s41, s44, 3            ; quarter
v_mov_b32 v12, 0
s_mul_i32 s40, s39, 80
s_lshl_b32 s42, s3, 4
s_add_u32 s40, s40, s42
v_lshl_add_u32 v5, v3, 2, s40      ; row0
v_mul_u32_u24 v4, 7680, v5
v_lshrrev_b32 v6, 3, v2
v_mul_u32_u24 v6, 1152, v6
v_lshl_add_u32 v6, v2, 4, v6
s_lshl_b32 s42, s38, 7
v_add3_u32 v4, v4, v6, s42
v_lshlrev_b32 v5, 1, v5
s_waitcnt lgkmcnt(0)''')
    a.stamp('start')
    a.wave_is('lt', 5, 'LA_nos1')
    a('s_cmp_lt_u32 s39, 8\ns_cbranch_scc0 LA_nos1')
    a(f'global_load_dwordx2 v[32:33], v5, {CC}')
    a.load_rows(16, 4, 4, WMOD, 7680, rows=4)
    a(f'global_load_dword v15, v12, {WS} sc1')
    U1 = P['uk1']
    load_uk(a, WUK, hi=U1)
    a.stamp('x1')
    a('s_branch LA2')

def role_A2(a):
    P = a.P; U1 = P['uk1']
    a.label('LA2')
    consts(a)
    a(f'''s_waitcnt vmcnt({5+2*U1})
v_lshlrev_b32 v36, 16, v32
v_and_b32 v37, 0xffff0000, v32
v_lshlrev_b32 v38, 16, v33
v_and_b32 v39, 0xffff0000, v33''')
    a.stamp('x2')
    for i in range(4): a.silu(36 + i, 36 + i, 8)
    a.stamp('x3')
    a(f'''v_perm_b32 v34, v37, v36, {PHI}
v_perm_b32 v35, v39, v38, {PHI}
v_cmp_eq_u32 vcc, 1, v3
v_lshlrev_b32 v4, 5, v2
v_lshl_add_u32 v4, v3, 4, v4
s_lshl_b32 s40, s3, 9
v_add_u32 v4, s40, v4''')
    a(f's_waitcnt vmcnt({1+2*U1})')
    a.stamp('x4')
    for e in range(8):
        for k in range(2):
            a(f'v_perm_b32 v{40+2*e+k}, v{16+(2*k+1)*4+(e>>1)}, v{16+2*k*4+(e>>1)}, {PHI if e & 1 else PLO}')
        a(f'v_mfma_f32_16x16x16_bf16 {vr(64+4*e,4)}, v[34:35], {vr(40+2*e,2)}, 0')
    for i in range(4): a(f'v_cndmask_b32 v{8+i}, v{64+4*i}, v{64+4*(i+4)}, vcc')
    a.lanes_lt(32)
    a('ds_write_b128 v4, v[8:11]')
    a.full()
    a(f's_waitcnt vmcnt({2*U1})')
    a.get_tag()
    a('s_branch LA_b1')
    a.label('LA_nos1')
    a('s_getreg_b32 s16, hwreg(HW_REG_XCC_ID, 0, 4)' if False else 's_nop 0')
    a(f'global_load_dword v15, v12, {WS} sc1')
    a.wave_is('lt', 6, 'LA_nos1b')
    load_uk(a, WUK, hi=U1)
    a.label('LA_nos1b')
    consts(a)
    a.wave_is('eq', 7, 'LA_not7')
    neg1(a)
    a(f'''s_mul_i32 s40, s41, 12288
s_lshr_b32 s42, s47, 4
s_lshl_b32 s42, s42, 10
s_add_u32 s40, s40, s42
s_and_b32 s42, s47, 15
s_lshl_b32 s42, s42, {4 if P['h2lay'] else 6}
s_add_u32 s40, s40, s42
s_add_u32 s40, s40, {H2}
v_lshrrev_b32 v4, 2, v1
v_min_u32 v4, 5, v4
v_lshlrev_b32 v4, 11, v4
v_and_b32 v5, 3, v1
v_lshl_add_u32 v4, v5, {8 if P['h2lay'] else 4}, v4
v_add_u32 v4, s40, v4
global_store_dwordx4 v4, v[8:11], {WS} sc1''')
    a.ready_publish()
    a(f'''s_mul_i32 s40, s44, 3072
s_add_u32 s40, s40, {H4S}
v_lshl_add_u32 v4, v1, 4, s40
global_store_dwordx4 v4, v[8:11], {WS} sc1
global_store_dwordx4 v4, v[8:11], {WS} offset:1024 sc1
global_store_dwordx4 v4, v[8:11], {WS} offset:2048 sc1
s_lshl_b32 s40, s47, 13
s_lshl_b32 s42, s41, 9
s_add_u32 s40, s40, s42
s_add_u32 s40, s40, {SIDE}
v_lshrrev_b32 v4, 5, v1
v_lshlrev_b32 v4, 11, v4
v_and_b32 v5, 31, v1
v_lshl_add_u32 v4, v5, 4, v4
v_add_u32 v4, s40, v4
v_add_u32 v5, 4096, v4
global_store_dwordx4 v4, v[8:11], {WS} sc1
global_store_dwordx4 v5, v[8:11], {WS} sc1
s_mul_i32 s40, s47, 3072
s_lshl_b32 s42, s41, 8
s_add_u32 s40, s40, s42
s_add_u32 s40, s40, {H5}
v_min_u32 v4, 2, v3
v_lshlrev_b32 v4, 10, v4
v_lshl_add_u32 v4, v2, 4, v4
v_add_u32 v4, s40, v4
global_store_dwordx4 v4, v[8:11], {WS} sc1''')
    a('s_branch LA_b1')
    a.label('LA_not7')
    a.wave_is('eq', 6, 'LA_b1')
    code_warm(a)
    if P['tlb']:
        a(f'''s_mov_b32 s50, 196608
v_mul_lo_u32 v4, v1, s50
global_load_dword v14, v4, {CKV} nt
v_lshlrev_b32 v4, 17, v1
global_load_dword v14, v4, {WS} offset:64 nt''')
    a.label('LA_b1')
    a(f'''v_lshlrev_b32 v4, 2, v1
s_lshl_b32 s40, s38, 13
s_lshl_b32 s42, s39, 7
s_add_u32 s40, s40, s42
s_add_u32 s40, s40, {H1}
v_lshrrev_b32 v5, 3, v1
v_lshlrev_b32 v5, 10, v5
v_and_b32 v6, 7, v1
v_lshl_add_u32 v5, v6, 4, v5
v_add_u32 v5, s40, v5
v_mov_b32 v9, {TAG}
v_mov_b32 v11, {TAG}''')
    a('s_cmp_lt_u32 s39, 8\ns_cbranch_scc0 LA_u80')
    a.bar()
    a.wave_is('eq', 0, 'LA_uk0')
    for w in range(5): a(f'ds_read2st64_b32 {vr(16+2*w,2)}, v4 offset0:{2*w} offset1:{2*w+1}')
    a(f'''s_waitcnt lgkmcnt(0)
v_add_f32 v16, v16, v18
v_add_f32 v17, v17, v19
v_add_f32 v20, v20, v22
v_add_f32 v21, v21, v23
v_add_f32 v16, v16, v20
v_add_f32 v17, v17, v21
v_add_f32 v8, v16, v24
v_add_f32 v10, v17, v25
global_store_dwordx4 v5, v[8:11], {WS} sc1''')
    a.stamp('h1pub')
    a.label('LA_uk0')
    a('s_barrier\ns_branch LA_uk')
    a.label('LA_u80')
    if P['sl_a80']: a(f's_sleep {P["sl_a80"]}')
    a.label('LA_uk')
    a.wave_is('lt', 6, 'LA_nouk')
    load_uk(a, WUK, lo=U1)
    V1 = P['uv1']
    rmv = lambda j: (224 + 4*j, 244 + 2*j) if j < V1 else (128 + 4*j, 160 + 2*j)
    load_uk(a, WUV, hi=V1, rm=rmv)
    a.label('LA_nouk')
    a(f'''s_mul_i32 s40, s47, 15360
s_mul_i32 s42, s3, 192
s_add_u32 s40, s40, s42
s_add_u32 s40, s40, {H1B}
v_min_u32 v5, 11, v2
v_mul_u32_u24 v4, 1536, v3
v_lshl_add_u32 v4, v5, 4, v4
v_add_u32 v4, s40, v4
v_add_u32 v7, 6144, v4
v_add_u32 v13, 12288, v4
s_mul_i32 s40, s3, 48
v_and_b32 v8, 1, v3
v_lshl_add_u32 v5, v5, 1, v8
v_lshl_add_u32 v5, v5, 1, s40      ; (24w+2dp+(g&1))*2
v_lshlrev_b32 v40, 5, v2
v_lshlrev_b32 v41, 4, v2
v_lshlrev_b32 v42, 1, v5
s_mul_i32 s40, s41, 6
s_add_u32 s40, s40, s3
s_lshl_b32 s40, s40, 11
s_lshr_b32 s42, s47, 4
s_lshl_b32 s42, s42, 10
s_add_u32 s40, s40, s42
s_and_b32 s42, s47, 15
s_lshl_b32 s42, s42, {4 if P['h2lay'] else 6}
s_add_u32 s40, s40, s42
s_add_u32 s40, s40, {H2}
v_lshl_add_u32 v6, v3, {8 if P['h2lay'] else 4}, s40
s_waitcnt vmcnt(0)''')
    a.get_tag()
    a(f'v_mov_b32 v24, 0\nv_mov_b32 v25, {TAG}\nv_mov_b32 v26, 0\nv_mov_b32 v27, {TAG}')
    a.stamp('uk')
    def U(j, k): n = j*6 + k; return 64 + 2*n if n < 32 else 176 + 2*(n - 32)
    def unp():
        a.wave_is('lt', 6, 'LA_nounp')
        for j in range(8):
            for k in range(6):
                src = 128 + 4*j + k if k < 4 else 160 + 2*j + (k - 4)
                a(f'v_lshlrev_b32 v{U(j,k)}, 16, v{src}\nv_and_b32 v{U(j,k)+1}, 0xffff0000, v{src}')
        a.label('LA_nounp')
    if P['probe_h1b']: a.probe(7, 8, off=4, sleep=P['sl_pr'], post=P['post_h1b'], tag=True, mask=0x0001000100010001)
    def ld():
        a(f'global_load_dwordx4 v[16:19], v4, {WS} sc1\nglobal_load_dwordx4 v[20:23], v7, {WS} sc1')
        a.lanes_lt(32)
        a(f'global_load_dwordx4 v[24:27], v13, {WS} sc1')
        a.full()
    a.poll(ld, lambda: a.chk_tag(range(17, 28, 2), 8), sleep=P['sl_h1b'], mid=unp)
    a.stamp('h1b')
    a('s_setprio 3')
    a(f'''v_add_f32 v16, v16, v20
v_add_f32 v18, v18, v22
v_add_f32 v16, v16, v24
v_add_f32 v18, v18, v26
v_permlane16_swap_b32 v16, v18
v_add_f32 v16, v16, v18
v_mov_b32 v18, v16
v_permlane32_swap_b32 v16, v18
v_add_f32 v16, v16, v18
v_cvt_pk_bf16_f32 v16, v16, v16
v_and_b32 v17, 0xffff0000, v16
ds_write_b32 v42, v17 offset:{LQF}
ds_write_b16 v5, v16 offset:{LQ}''')
    a.bar()
    a.wave_is('lt', 6, 'LA_nos3')
    a(f'ds_read_b128 v[44:47], v40 offset:{LQF}\nds_read_b128 v[48:51], v40 offset:{LQF+16}\nds_read_b128 v[52:55], v41 offset:{LQF+512}')
    for k in range(6):
        if k in (0, 2, 4): a(f's_waitcnt lgkmcnt({2 - k//2})')
        for j in range(8):
            if k == 0: a(f'v_pk_mul_f32 {vr(208+2*j,2)}, {vr(U(j,k),2)}, {vr(44+2*k,2)}')
            else: a(f'v_pk_fma_f32 {vr(208+2*j,2)}, {vr(U(j,k),2)}, {vr(44+2*k,2)}, {vr(208+2*j,2)}')
    for j in range(8): a(f'v_add_f32 v{24+j}, v{208+2*j}, v{209+2*j}')
    for i in range(4): a(f'v_add_f32_dpp v{32+i}, v{24+i}, v{24+i} row_ror:8 row_mask:0xf bank_mask:0x3')
    for i in range(4): a(f'v_add_f32_dpp v{32+i}, v{28+i}, v{28+i} row_ror:8 row_mask:0xf bank_mask:0xc')
    for i in range(2): a(f'v_add_f32_dpp v{36+i}, v{32+i}, v{32+i} row_shl:4 row_mask:0xf bank_mask:0x5')
    for i in range(2): a(f'v_add_f32_dpp v{36+i}, v{34+i}, v{34+i} row_shr:4 row_mask:0xf bank_mask:0xa')
    for qp in ('[2,3,0,1]', '[1,0,3,2]'):
        for i in range(2): a(f'v_add_f32_dpp v{36+i}, v{36+i}, v{36+i} quad_perm:{qp} row_mask:0xf bank_mask:0xf')
    a('v_cvt_pk_bf16_f32 v36, v36, v37')
    a.san([36])
    for i in range(1, 4): a(f'v_mov_b32_dpp v{36+i}, v36 row_shl:{4*i} row_mask:0xf bank_mask:0xf')
    a.exec_mask(0x0001000100010001)
    a(f'global_store_dwordx4 v6, v[36:39], {WS} sc1')
    a.full()
    a.stamp('h2pub')
    a('s_setprio 0')
    a('s_barrier')
    perm12(a, 64)
    if P['sl_uv']:
        if P['uv_ad']: a(f's_cmp_lt_u32 {SPIN}, {P["uv_ad"]}\ns_cbranch_scc1 LA_nsl')
        a(f's_sleep {P["sl_uv"]}')
        a.label('LA_nsl')
    load_uk(a, WUV, lo=V1, rm=rmv)
    a('s_waitcnt vmcnt(0)')
    perm12(a, 176, rm=rmv)
    a.stamp('wuv')
    a('s_branch LA_s3d')
    a.label('LA_nos3')
    a(f'v_lshlrev_b32 v4, 2, v1\nds_write_b32 v4, v12 offset:{LWP}\nv_and_b32 v4, 12, v4\nds_write_b32 v4, v12 offset:{LFL}\nv_mov_b32 v8, {NEGINF:#x}\nv_mov_b32 v9, 0\nds_write_b64 v12, v[8:9] offset:{LFW+112}\nds_write_b64 v12, v[8:9] offset:{LFW+120}\ns_setprio 0')
    a.bar()
    if P['pv_local'] and P['pf_pol'] < 3:
        if P['sl_pf']: a(f's_sleep {P["sl_pf"]}')
        a(f'''s_mul_i32 s40, s44, {CP}
s_and_b32 s42, s3, 1
s_mul_i32 s42, s42, {200*128}
s_add_u32 s40, s40, s42
s_add_u32 s40, s40, {H4}
v_lshl_add_u32 v4, v1, 7, s40''')
        for i in range(4):
            if i == 3: a.lanes_lt(8)
            a(f'global_load_dword v14, v4, {WS} {["nt", "", "sc1"][P["pf_pol"]]}')
            if i < 3: a('v_add_u32 v4, 8192, v4')
        a.full()
    a.label('LA_s3d')
    def fl_wait(i, lab, n=1): a.lds_wait(12, n, off=LFL + 4*i)
    def fl_set(i): a(f'v_mov_b32 v8, 1\nds_write_b32 v12, v8 offset:{LFL + 4*i}')
    def fl_add(i): a(f'v_mov_b32 v8, 1\ns_mov_b64 exec, 1\nds_add_u32 v12, v8 offset:{LFL + 4*i}\ns_mov_b64 exec, -1')
    def l2addr(v):
        a(f'''s_lshl_b32 s40, s3, 7
s_mul_i32 s42, s44, 6144
s_add_u32 s42, s42, s40
s_add_u32 s42, s42, {H4G}
v_and_b32 v{v}, 31, v1
v_lshrrev_b32 v{v+1}, 5, v1
v_mul_u32_u24 v{v+1}, 3072, v{v+1}
v_lshl_add_u32 v{v}, v{v}, 2, s42
v_add_u32 v{v}, v{v}, v{v+1}''')
    def esel(sh, probe):
        a(f'''s_lshl_b32 s40, {sh}, 11
s_add_u32 s40, s40, {H3}
v_lshl_add_u32 v4, v1, 4, s40
s_and_b32 s42, s47, 15
s_lshl_b32 s42, s42, 7
s_add_u32 s42, s42, {DB3}
v_lshl_add_u32 v5, v1, 11, s42
s_mov_b32 s48, {f2u(-1/64):#x}
v_mov_b32 v24, {NEGINF:#x}''')
        if probe: a.probe(5, 8, off=4, sleep=P['sl_pr3'], post=P['post_h3'], tag=True, mask=0xff)
        a.poll(lambda: a(f'global_load_dwordx4 v[28:31], v4, {WS} sc1\nglobal_load_dwordx4 v[32:35], v4, {WS} offset:1024 sc1'),
               lambda: a.chk_tag(range(29, 36, 2), 8), sleep=P['sl_h3'])
        a.stamp('h3')
        a('v_max_f32 v20, v28, v32\nv_mov_b32 v16, v28\nv_mov_b32 v18, v32')
        a.wave_red('v_max_f32', 20, 21)
        a(f'''v_and_b32 v21, 0x7f800000, v20
v_fma_f32 v20, v21, s48, v20
v_cmp_ge_f32 s[50:51], v16, v20
v_cmp_ge_f32 s[52:53], v18, v20
s_bcnt1_i32_b64 s49, s[50:51]
v_mbcnt_lo_u32_b32 v22, s50, 0
v_mbcnt_hi_u32_b32 v22, s51, v22
v_mov_b32 v23, s49
v_mbcnt_lo_u32_b32 v23, s52, v23
v_mbcnt_hi_u32_b32 v23, s53, v23
v_cmp_gt_u32 vcc, 4, v22
s_and_b64 s[50:51], s[50:51], vcc
v_cmp_gt_u32 vcc, 4, v23
s_and_b64 s[52:53], s[52:53], vcc''')
    def l1w():
        a(f'''s_lshr_b32 s40, s44, 4
s_lshl_b32 s42, 0x01010101, s40
s_mov_b32 s43, s42
v_cndmask_b32 v36, 15, v22, s[50:51]
v_cndmask_b32 v38, 15, v23, s[52:53]
v_mov_b32 v37, {TAG}
v_mov_b32 v39, {TAG}
s_lshl_b32 s40, s40, 12
s_lshl_b32 s49, s46, 3
s_add_u32 s40, s40, s49
s_add_u32 s40, s40, {MB}
v_lshrrev_b32 v5, 3, v1
v_lshl_add_u32 v4, v5, 8, s40
s_mov_b64 exec, s[42:43]''')
        a.st_local('s[38:39]', f'global_store_dwordx2 v4, v[36:37], {WS}', f'global_store_dwordx2 v4, v[38:39], {WS} offset:2048')
        a('s_mov_b64 exec, -1')
    a(f'''s_getreg_b32 s16, hwreg(HW_REG_XCC_ID, 0, 4)
s_and_b32 s40, s2, 7
s_lshl_b32 s40, s40, 4
s_add_u32 s40, s40, {READY}
v_and_b32 v4, 31, v1
v_lshl_add_u32 v4, v4, 7, s40''')
    a.poll(lambda: a(f'global_load_dwordx2 v[8:9], v4, {WS} sc1'), lambda: a.chk_tag([8], 10), sleep=4)
    a('v_cmp_ne_u32 s[38:39], s16, v9')
    a('s_and_b32 s46, s44, 15\ns_lshl_b32 s46, s46, 1\ns_and_b32 s40, s3, 1\ns_add_u32 s46, s46, s40')
    a.wave_is('ge', 6, 'LA_n6')
    esel('s46', P['probe_h3'])
    l1w()
    a.label('LA_n6')
    a.wave_is('eq', 5, 'LA_noh3')
    esel('s47', P['probe_h3'])
    a(f'''v_and_b32 v17, 63, v30
v_and_b32 v19, 63, v34
v_lshl_add_u32 v17, v1, 6, v17
v_lshl_add_u32 v19, v1, 6, v19
v_add_u32 v19, 4096, v19
v_lshlrev_b32 v4, 2, v1
v_mov_b32 v25, 999
v_add_u32 v26, 64, v1
v_lshlrev_b32 v22, 2, v22
v_lshlrev_b32 v23, 2, v23
s_mov_b64 exec, 15
ds_write_b32 v4, v17 offset:{LEK}
ds_write_b32 v4, v25 offset:{LEK+16}
s_mov_b64 exec, s[50:51]
ds_write_b32 v22, v17 offset:{LEK}
ds_write_b32 v22, v1 offset:{LEK+16}
s_mov_b64 exec, s[52:53]
ds_write_b32 v23, v19 offset:{LEK}
ds_write_b32 v23, v26 offset:{LEK+16}
s_mov_b64 exec, -1''')
    a.label('LA_noh3')
    a(f'''v_and_b32 v4, 3, v2
v_lshlrev_b32 v4, 2, v4
s_mul_i32 s40, s41, 384
s_lshl_b32 s42, s3, 6
s_add_u32 s42, s40, s42
v_lshl_add_u32 v6, v3, 4, s42
v_and_b32 v7, 31, v1
v_lshl_add_u32 v7, v7, 1, s42
s_movk_i32 s55, 1536''')
    a.bar()
    a.stamp('b3')
    a('s_setprio 3')
    a.wave_is('lt', 6, 'LA_noe')
    a(f'''ds_read_b32 v5, v4 offset:{LEK}
ds_read_b128 v[8:11], v12 offset:{LEK}
s_waitcnt lgkmcnt(1)
v_mad_u32_u24 v5, v5, s55, v6
global_load_dwordx4 v[224:227], v5, {CKV} {'nt' if P['e_nt'] else ''}
s_waitcnt lgkmcnt(0)''')
    for j in range(4): a(f'v_mad_u32_u24 v{8+j}, v{8+j}, s55, v7\nglobal_load_ushort v{232+j}, v{8+j}, {CKV} {"nt" if P["e_nt"] else ""}')
    a(f's_mul_i32 s40, s3, 3072\ns_add_u32 s40, s40, {LKP}\nv_lshl_add_u32 v4, v1, 4, s40\ns_waitcnt vmcnt(4)')
    a.stamp('erow')
    mfma12(a, 16, 224, 64)
    for t in range(3):
        d = 16 + 16*t
        for r in range(4): a(f'v_permlane16_swap_b32 v{d+r}, v{d+4+r}\nv_permlane16_swap_b32 v{d+8+r}, v{d+12+r}')
        for r in range(4): a(f'v_permlane32_swap_b32 v{d+r}, v{d+8+r}')
        a(f'ds_write_b128 v4, {vr(d,4)} offset:{1024*t}')
    a('s_branch LA_b4')
    a.label('LA_noe')
    a.label('LA_g')
    a(f'''s_setprio 1
s_and_b32 s42, s3, 1
s_mul_i32 s40, s42, 768
s_add_u32 s40, s40, {LRP}
v_lshl_add_u32 v248, v2, 5, s40
v_lshl_add_u32 v249, v2, 4, s40
s_lshl_b32 s40, s42, 8
s_add_u32 s40, s40, {LWP}
v_and_b32 v250, 1, v2
v_lshlrev_b32 v250, 7, v250
v_lshl_add_u32 v250, v3, 4, v250
v_add_u32 v250, s40, v250
v_lshl_add_u32 v251, v1, 1, s40
s_lshl_b32 s43, s42, 6
v_add_u32 v7, s43, v1
s_lshl_b32 s40, s44, 11
s_add_u32 s40, s40, {AUX}
v_lshl_add_u32 v6, v7, 4, s40
ds_read_b128 v[24:27], v12 offset:{LEK+16}
s_lshl_b32 s40, s44, 7
s_add_u32 s40, s40, s43
v_lshl_add_u32 v4, v3, 3, s40
v_mul_u32_u24 v4, 384, v4
v_add_u32 v4, {H4}, v4
v_lshl_add_u32 v5, v2, 3, v4
v_lshl_add_u32 v4, v2, 4, v4
v_add_u32 v10, {32*384}, v4
v_add_u32 v11, {32*384}, v5
s_mov_b64 s[52:53], 0
s_mov_b32 s48, 0x01010101
v_mov_b32 v22, {NEGINF:#x}
s_lshl_b32 s40, s42, 3
v_mov_b32 v23, s40
s_waitcnt lgkmcnt(0)
v_cmp_eq_u32 s[54:55], v24, v7''')
    for j in range(1, 4): a(f'v_cmp_eq_u32 vcc, v{24+j}, v7\ns_or_b64 s[54:55], s[54:55], vcc')
    a(f's_sleep {P["pre_aux"]}')
    a.label('LA_g0')
    a(f'''global_load_dwordx4 v[28:31], v6, {WS} sc1
s_waitcnt vmcnt(0)
v_cmp_eq_u32 vcc, {TAG}, v29
v_cmp_eq_u32 s[50:51], {TAG}, v31
s_and_b64 s[50:51], s[50:51], vcc
s_andn2_b64 s[42:43], s[50:51], s[52:53]
s_mov_b64 s[52:53], s[50:51]
s_cbranch_scc0 LA_gn''')
    for b in range(2):
        for j in range(8):
            a(f'''s_lshr_b32 s40, s{42+b}, {j}
s_and_b32 s40, s40, s48
s_cbranch_scc0 LA_gs{b}_{j}
s_and_b32 s38, s40, 0x101
s_lshr_b32 s39, s40, 16
s_mul_i32 s38, s38, 0x101
s_mul_i32 s39, s39, 0x101
s_and_b32 s38, s38, 0x10001
s_and_b32 s39, s39, 0x10001
s_mul_i32 exec_lo, s38, 0xffff
s_mul_i32 exec_hi, s39, 0xffff
global_load_dwordx4 {vr(64+48*b+4*j,4)}, v{4+6*b}, {WS} offset:{384*j} sc1
global_load_dwordx2 {vr(96+48*b+2*j,2)}, v{5+6*b}, {WS} offset:{384*j+256} sc1
LA_gs{b}_{j}:''')
    a(f'''s_mov_b64 exec, -1
s_cmp_eq_u64 s[52:53], -1
s_cbranch_scc1 LA_g1
LA_gn:
s_add_u32 {SPIN}, {SPIN}, 1
s_cmp_gt_u32 {SPIN}, {SPINMAX}
s_cbranch_scc1 LA_g1
s_sleep {P['sl_aux']}
s_branch LA_g0
LA_g1:''')
    a.stamp('aux')
    a('s_setprio 3\nv_cndmask_b32 v16, v28, v22, s[54:55]\nv_mov_b32 v20, v16')
    a.wave_red('v_max_f32', 20, 21)
    a(f'''v_sub_f32 v16, v16, v20
v_mul_f32 v16, s56, v16
v_exp_f32 v16, v16
v_cvt_pk_bf16_f32 v8, v16, v16
v_mul_f32 v21, v16, v30
ds_write_b16 v251, v8
v_and_b32 v9, 0xffff0000, v8
v_sub_f32 v9, v16, v9
v_cvt_pk_bf16_f32 v9, v9, v9
ds_write_b16 v251, v9 offset:128
s_waitcnt lgkmcnt(0)
ds_read_b128 v[224:227], v250
ds_read_b128 v[228:231], v250 offset:64''')
    a.wave_red('v_add_f32', 21, 22)
    a(f'v_mov_b32 v8, 1\nds_write_b64 v23, v[20:21] offset:{LFW+96}\ns_mov_b64 exec, 1\nds_add_u32 v12, v8 offset:{LFL+8}\ns_mov_b64 exec, -1\ns_waitcnt vmcnt(0) lgkmcnt(0)')
    a.stamp('gath')
    for b in range(2):
        for e in range(12):
            nreg, src, ee = (4, 64 + 48*b, e) if e < 8 else (2, 96 + 48*b, e - 8)
            f = 16 + 4*(e % 6) + 24*b
            for k in range(4):
                a(f'v_perm_b32 v{f+k}, v{src+(2*k+1)*nreg+(ee>>1)}, v{src+2*k*nreg+(ee>>1)}, {PHI if ee & 1 else PLO}')
            a(f'v_mfma_f32_16x16x32_bf16 {vr(160+4*e,4)}, {vr(224+4*b,4)}, {vr(f,4)}, {"0" if b == 0 else vr(160+4*e,4)}')
    out12(a, 160, 16, 248)
    fl_add(3)
    a.wave_is('eq', 6, 'LA_w7')
    a('s_branch LA_nov')
    a.label('LA_b4')
    a(f'v_mov_b32 v8, 1\ns_mov_b64 exec, 1\nds_add_u32 v12, v8 offset:{LFL}\ns_mov_b64 exec, -1')
    a.wave_is('lt', 3, 'LA_nopub')
    a(f'v_lshlrev_b32 v6, 4, v0\nv_add_u32 v7, {LKP}, v6\ns_mul_i32 s40, s44, 3072\ns_add_u32 s40, s40, {H4S}\nv_add_u32 v6, s40, v6')
    fl_wait(0, 'LA_f0', 6)
    a.stamp('b4')
    for w in range(6): a(f'ds_read_b128 {vr(16+4*w,4)}, v7 offset:{3072*w}')
    a('s_waitcnt lgkmcnt(0)')
    tree(a, range(16, 40, 4), n=4)
    a.st_local('s[38:39]', f'global_store_dwordx4 v6, v[16:19], {WS}')
    a.stamp('kpub')
    a('s_branch LA_l2')
    a.label('LA_nopub')
    a.wave_is('eq', 5, 'LA_w6')
    a(f'''s_mul_i32 s40, s47, 12288
s_add_u32 s40, s40, {H4S}
v_lshl_add_u32 v4, v1, 4, s40
v_add_u32 v5, 3072, v4
v_add_u32 v6, 6144, v4
v_add_u32 v7, 9216, v4
v_lshl_add_u32 v8, v2, 3, v3
v_lshlrev_b32 v8, 1, v8
v_lshl_add_u32 v9, v2, 2, v3
v_lshlrev_b32 v9, 1, v9
v_lshlrev_b32 v10, 2, v3
ds_read_u16 v64, v8 offset:{LQ}
ds_read_u16 v65, v8 offset:{LQ+8}
ds_read_u16 v66, v9 offset:{LQ+256}
ds_read_b32 v67, v10 offset:{LEK+16}
s_sleep {P['pre_h4s']}''')
    def ld():
        for qq in range(4):
            for k in range(3): a(f'global_load_dwordx4 {vr(16+(qq*3+k)*4,4)}, v{4+qq}, {WS} offset:{1024*k} sc1')
    a.poll(ld, lambda: a.chk_sent(range(16, 64), 9), sleep=P['sl_h4s'])

    a.stamp('h4s')
    a('s_waitcnt lgkmcnt(0)\nv_cmp_gt_u32 s[52:53], 0x80, v67' if False else 's_waitcnt lgkmcnt(0)\ns_movk_i32 s40, 128\nv_cmp_gt_u32 s[52:53], s40, v67')
    for k in range(3): a(f'v_lshlrev_b32 v{64+k}, 16, v{64+k}')
    tree(a, (16, 28, 40, 52), n=12)
    for i in range(12): a.rnd(16 + i, 16 + i)
    for j in range(4):
        a(f'v_mul_f32 v{68+j}, v{16+j}, v64\nv_fmac_f32 v{68+j}, v{20+j}, v65\nv_fmac_f32 v{68+j}, v{24+j}, v66')
    a.row_red('v_add_f32', [68, 69, 70, 71])
    a.xrow_tr4(68)
    a.rnd(68, 68)
    a('v_mul_f32 v68, s59, v68')
    a.rnd(68, 68)
    a(f'v_mov_b32 v21, {NEGINF:#x}\nv_cndmask_b32 v68, v21, v68, s[52:53]\nds_write_b32 v10, v68 offset:{LFW+128}')
    fl_add(2)
    a('s_branch LA_l2')
    a.label('LA_w7')
    a('v_lshlrev_b32 v10, 2, v3\nv_lshlrev_b32 v11, 3, v3')
    fl_wait(2, 'LA_f2', 4)
    a(f'''ds_read_b64 v[228:229], v11 offset:{LFW+64}
ds_read_b32 v68, v10 offset:{LFW+128}
ds_read_b64 v[230:231], v11 offset:{LFW+96}
s_waitcnt lgkmcnt(0)
v_max3_f32 v69, v68, v228, v230''')
    a.xrow_red('v_max_f32', 69, 70)
    a(f'''v_sub_f32 v68, v68, v69
v_sub_f32 v228, v228, v69
v_sub_f32 v230, v230, v69
v_mul_f32 v68, s56, v68
v_mul_f32 v228, s56, v228
v_mul_f32 v230, s56, v230
v_exp_f32 v68, v68
v_exp_f32 v228, v228
v_exp_f32 v230, v230
v_fma_f32 v70, v228, v229, v68
v_fmac_f32 v70, v230, v231''')
    a.xrow_red('v_add_f32', 70, 71)
    a.recip(71, 70, 72)
    a.div(73, 68, 70, 71, 72)
    a.rnd(73, 73)
    a(f'''v_mul_f32 v74, v230, v71
v_mul_f32 v75, v228, v71
ds_write_b32 v10, v73 offset:{LFW}
ds_write_b32 v10, v75 offset:{LFW+16}
ds_write_b32 v10, v74 offset:{LFW+32}''')
    fl_add(3)
    a('s_branch LA_nov')
    a.label('LA_w6')
    a.wave_is('eq', 4, 'LA_l2')
    a(f'''v_lshlrev_b32 v10, 2, v3
ds_read_b32 v11, v10 offset:{LEK+16}
s_lshl_b32 s40, s47, 13
s_lshl_b32 s42, s41, 9
s_add_u32 s40, s40, s42
s_add_u32 s40, s40, {SIDE}
v_lshl_add_u32 v6, v3, 11, s40
v_lshl_add_u32 v4, v2, 4, v6
v_lshl_add_u32 v5, v2, 3, v6
v_mul_u32_u24 v9, 384, v3
v_lshl_add_u32 v7, v2, 4, v9
v_lshl_add_u32 v9, v2, 3, v9
v_lshlrev_b32 v10, 3, v3
v_mov_b32 v24, {NEGINF:#x}
v_mov_b32 v26, 0
s_movk_i32 s40, 128
s_waitcnt lgkmcnt(0)
v_cmp_gt_u32 s[52:53], s40, v11''')
    for i in range(6): a(f'v_mov_b32 v{16+i}, 0')
    a(f's_sleep {P["pre_side"]}\ns_mov_b64 exec, s[52:53]')
    def ck():
        a.chk_sent(range(16, 22), 8)
        a(f'v_cmp_ne_u32 s[50:51], {TAG}, v25\ns_or_b64 vcc, vcc, s[50:51]\nv_cmp_ne_u32 s[50:51], {TAG}, v27\ns_or_b64 vcc, vcc, s[50:51]')
    a.poll(lambda: a(f'global_load_dwordx4 v[16:19], v4, {WS} sc1\nglobal_load_dwordx2 v[20:21], v5, {WS} offset:256 sc1\nglobal_load_dwordx4 v[24:27], v6, {WS} offset:384 sc1'),
           ck, sleep=P['sl_side'])
    a.full()
    a.stamp('side')
    a(f'v_mov_b32 v25, v26\nds_write_b128 v7, v[16:19] offset:{LSR}\nds_write_b64 v9, v[20:21] offset:{LSR+256}\nds_write_b64 v10, v[24:25] offset:{LFW+64}')
    fl_add(2)
    a.label('LA_l2')
    a(f'''s_lshl_b32 s40, s3, 7
v_and_b32 v4, 31, v1
v_lshl_add_u32 v5, v4, 1, s40
s_lshl_b32 s42, s3, 6
v_lshl_add_u32 v7, v4, 1, s42
v_lshl_add_u32 v4, v4, 2, s40
v_mov_b32 v20, 0
v_mov_b32 v21, 0
v_mov_b32 v22, 0
v_mov_b32 v23, 0''')
    frag2_addr(a, 6, 's40')
    out12_prep(a, 248, LVP)
    a('s_waitcnt vmcnt(0)')
    for j in range(4): a(f'v_lshlrev_b32 v{232+j}, 16, v{232+j}')
    fl_wait(3, 'x', 3)
    a.stamp('b6')
    for w in range(2): a(f'ds_read_b32 v{16+w}, v4 offset:{LRP + 768*w}')
    for j in range(4): a(f'ds_read_u16_d16_hi v{20+j}, v7 offset:{LSR + 384*j}')
    a(f'ds_read_b128 v[24:27], v12 offset:{LFW}\nds_read_b128 v[28:31], v12 offset:{LFW+16}\nds_read_b64 v[32:33], v12 offset:{LFW+32}')
    a(f'''s_waitcnt lgkmcnt(0)
v_mul_f32 v16, v16, v32
v_mul_f32 v24, v24, v232
v_mul_f32 v28, v28, v20
v_fmac_f32 v16, v17, v33
v_fmac_f32 v24, v25, v233
v_fmac_f32 v28, v29, v21
v_fmac_f32 v24, v26, v234
v_fmac_f32 v28, v30, v22
v_fmac_f32 v24, v27, v235
v_fmac_f32 v28, v31, v23
v_add_f32 v24, v24, v28
v_add_f32 v16, v16, v24
v_cvt_pk_bf16_f32 v17, v16, v16
ds_write_b16 v5, v17 offset:{LCC}
v_and_b32 v18, 0xffff0000, v17
v_sub_f32 v18, v16, v18
v_cvt_pk_bf16_f32 v18, v18, v18
ds_write_b16 v5, v18 offset:{LCC+64}
s_waitcnt lgkmcnt(0)
ds_read_b128 v[224:227], v6 offset:{LCC}
s_waitcnt lgkmcnt(0)''')
    mfma12(a, 128, 224, 176)
    out12(a, 128, 16, 248)
    a.label('LA_nov')
    a(f'''v_lshlrev_b32 v4, 4, v1
s_mul_i32 s40, s47, 3072
s_lshl_b32 s42, s41, 8
s_add_u32 s40, s40, s42
s_add_u32 s40, s40, {H5}
v_lshlrev_b32 v5, 10, v3
v_lshl_add_u32 v5, v2, 4, v5
v_add_u32 v5, s40, v5''')
    a.bar()
    a.wave_is('eq', 0, 'Lfin')
    for w in range(6): a(f'ds_read_b128 {vr(16+4*w,4)}, v4 offset:{LVP + 768*w}')
    a('s_waitcnt lgkmcnt(0)')
    tree(a, range(16, 40, 4), n=4)
    a.lanes_lt(48)
    a.st_local('s[38:39]', f'global_store_dwordx4 v5, v[16:19], {WS}')
    a.full()
    a.stamp('h5pub')
    a(f'''s_add_u32 s40, s44, s3
s_cmp_eq_u32 s40, 0
s_cbranch_scc0 Lfin
v_mov_b32 v5, {TAG}
global_store_dword v12, v5, {WS} sc1''')

DEFAULTS = dict(code_last=0x1000, stamps=False, warm_loads=2, sl_pr=1, sl_pr3=4, sl_h1=3, sl_h1b=1, sl_h2=4, sl_h3=2, sl_aux=2, sl_h4s=1, sl_h5=1, sl_h6=3, sl_h7=2, sl_x2=4, sl_lw=1, lw_cnt=4, dma1=5, sl_top2=4, pre_h7=12, dma0=12, gsplit=4, s1x=0, rot=0, uv_ad=0, sl_dma=0, sl_b80=0, uv1=0, h2lay=0, dma8=0, bpf=0, pf_pol=2, sl_pf=10, pre_hdr=8, pv_local=0, g_pol=0, pre_l2=6, sl_hdr=2, sl_l2=2, local=1, early_late=1, sl_pr2=4, sl_dma2=0, m_h2=0, m_h6=0, k_h2=255, pre_aux=24, swap=0, sl_a80=30, pre_h1=0, tlb=0, e_nt=0, pv_nt=0, uk1=0, ew_cnt=4, sl_el=1, pre_side=20, sl_side=2, sl_uv=20, pre_h4s=4, sl_top=6,
    probe_h1b=0, post_h1b=1, probe_h2=1, post_h2=0, probe_h3=1, post_h3=0, probe_aux=0, post_aux=2, probe_h5=0, post_h5=1, probe_h6=0, post_h6=1, probe_h7=1, post_h7=0)

def generate(**kw):
    P = dict(DEFAULTS); P.update(kw)
    a = G(P)
    a(f'''s_cmp_ge_u32 s2, 256
s_cbranch_scc1 Lend
s_load_dwordx16 s[4:19], s[0:1], 0
{'s_xor_b32 s2, s2, 128' if P['swap'] else 's_nop 0'}
s_load_dwordx8 s[20:27], s[0:1], 64
{f's_add_u32 s3, s2, {P["rot"]}' if P['rot'] else ''}
{'s_and_b32 s3, s3, 7' if P['rot'] else ''}
{'s_andn2_b32 s2, s2, 7' if P['rot'] else ''}
{'s_or_b32 s2, s2, s3' if P['rot'] else ''}
s_load_dwordx4 s[28:31], s[0:1], 96
s_getpc_b64 s[36:37]
Lpc:
v_lshrrev_b32 v4, 6, v0
v_and_b32 v1, 63, v0
v_readfirstlane_b32 s3, v4
v_and_b32 v2, 15, v0
v_lshrrev_b32 v3, 4, v1''')
    if P['stamps']:
        for i in range(21): a(f's_mov_b64 s[{60+2*i}:{61+2*i}], 0')
    if P.get('dbgtime') or P.get('padto'): a('s_memrealtime s[60:61]')
    a('s_cmp_lt_u32 s2, 128\ns_cbranch_scc1 LB')
    role_A(a)
    namesA = a.stnames; a.stnames = []
    a.label('LB')
    role_B(a)
    namesB = a.stnames; a.stnames = namesA
    role_A2(a)
    a('s_branch Lfin')
    namesA = a.stnames; a.stnames = namesB
    role_B2(a)
    namesB = a.stnames
    a.label('Lfin')
    if P['stamps']:
        a(f'''s_waitcnt lgkmcnt(0)
s_lshl_b32 s40, s2, 3
s_add_u32 s40, s40, s3
s_lshl_b32 s40, s40, 7
s_add_u32 s40, s40, {STAMP}
v_mov_b32 v4, s40''')
        for i in range(21): a(f'v_mov_b32 v5, s{60+2*i}\nglobal_store_dword v4, v5, {WS} offset:{4*i}')
    if P.get('dbgtime'):
        a(f'''s_memrealtime s[62:63]
s_cmp_eq_u32 s3, 7
s_cbranch_scc0 Lend
s_and_b32 s40, s2, 31
s_cmp_eq_u32 s40, 31
s_cbranch_scc0 Lend
s_waitcnt lgkmcnt(0)
s_lshr_b32 s40, s2, 5
s_lshl_b32 s40, s40, 3
v_mov_b32 v4, s40
v_mov_b32 v6, s60
v_mov_b32 v7, s62
s_mov_b64 exec, 1
global_store_dwordx2 v4, v[6:7], s[28:29]''')
    if P.get('padto'):
        a(f'''s_add_u32 s40, s2, s3
s_cmp_eq_u32 s40, 0
s_cbranch_scc0 Lend
Lpad:
s_memrealtime s[62:63]
s_waitcnt lgkmcnt(0)
s_sub_u32 s40, s62, s60
s_cmp_lt_u32 s40, {P['padto']}
s_cbranch_scc1 Lpad''')
    a.label('Lend')
    a('s_endpgm')
    a.raw('Lcode_end:')
    hdr = open(f'cdna_kernels/{NAME}.s.ref').read().split('; Override launch')[0]
    lds = MISC + 8192 + 256
    doc = '''; One persistent launch, 256 workgroups (one per CU), two roles:
; so that the bf16 rounding of the scores follows the reference; their tile partials are re-sent without that key.
; Hand-offs go through d_ws: {value,tag} granules (tag derived from an epoch word in d_ws), or slots cleared to
'''
    txt = hdr + f'''; @launch grid=(256,1,1) block=(512,1,1) lds={lds}
''' + doc + f'''.amdgcn_target "amdgcn-amd-amdhsa--gfx950"
.text
.globl {NAME}_kernel
.p2align 8
.type {NAME}_kernel,@function
.set CODE_LAST, {P['code_last']:#x}
{NAME}_kernel:
''' + a.text() + f'''.section .rodata,"a"
.p2align 6
.amdhsa_kernel {NAME}_kernel
  .amdhsa_next_free_vgpr 256
  .amdhsa_next_free_sgpr 102
  .amdhsa_accum_offset 256
  .amdhsa_group_segment_fixed_size 0
  .amdhsa_kernarg_size 112
  .amdhsa_user_sgpr_count 2
  .amdhsa_user_sgpr_kernarg_segment_ptr 1
  .amdhsa_system_sgpr_workgroup_id_x 1
  .amdhsa_float_denorm_mode_32 3
.end_amdhsa_kernel
'''
    return txt, namesB, namesA

if __name__ == '__main__':
    import json
    out = sys.argv[1]
    kw = {}
    for x in sys.argv[2:]:
        k, v = x.split('='); kw[k] = int(v)
    import subprocess, re
    txt, nb, na = generate(**kw)
    open('_g.s', 'w').write(txt)
    subprocess.check_call(['clang', '-x', 'assembler', '-target', 'amdgcn-amd-amdhsa', '-mcpu=gfx950', '-c', '_g.s', '-o', '_g.o'])
    h = subprocess.check_output(['llvm-objdump', '-h', '_g.o'], text=True)
    size = int(re.search(r'\.text\s+([0-9a-f]+)', h).group(1), 16)
    kw['code_last'] = size - 0x40 - 4
    assert size <= 32768 * kw.get('warm_loads', DEFAULTS['warm_loads'])
    txt, nb, na = generate(**kw)
    print('code bytes', size)
    open(out, 'w').write(txt)
    json.dump({'B': nb, 'A': na}, open(out + '.names.json', 'w'))
```

```python
import sys, struct
sys.path.insert(0, 'gen')
from asmlib import *
NAME = 'adaLN_cond__compressed_kv_cla__dense_activation_relu__decode'

EPOCH, READY, H1, H1B, H2, H3, AUX, H4S, H5 = 0x0, 0x1000, 0x2000, 0x120000, 0x58000, 0x68000, 0x1A0000, 0x88000, 0xE8000
H6, MODR, H7F, H7X, H4, STAMP = 0x100000, 0x108000, 0x110000, 0x111000, 0x200000, 0x4000000
H7Y = 0x110000
H4G, HDR, MB = 0x880000, 0x1FA000, 0x78000
DB3, DB4, ELIST, SIDE = 0x1E0000, 0x1E4000, 0x1F8000, 0x18000
X, CKV, WQ, WUK, WUV, WO, W1, W2, CC, WMOD, OUT, WS = [f's[{i}:{i+1}]' for i in (4, 6, 8, 10, 12, 14, 18, 20, 22, 24, 26, 30)]
TAG, SPIN, PLO, PHI = 's32', 's33', 's34', 's35'
SPINMAX = 200000
def f2u(x): return struct.unpack('<I', struct.pack('<f', x))[0]
L2E = f2u(1.4426950408889634)
L2E_LO = f2u(1.4426950408889634 - struct.unpack('<f', struct.pack('<f', 1.4426950408889634))[0])
LN2 = f2u(0.6931471805599453)
SCALE = f2u(192 ** -0.5)
NEGINF = 0xff800000

class G(Asm):
    def __init__(self, P):
        super().__init__(); self.P = P; self.nst = 0; self.stnames = []
    def stamp(self, name):
        if not self.P.get('stamps'): return
        if name in ('wq', 'b4', 'hdr', 'erow'): return
        if name.startswith('x') != (self.P['stamps'] == 2) and name not in ('start', 'h1pub', 'out', 'wq', 'h1', 'qpub', 'h1b', 'h2pub', 'h5', 'h6pub', 'h6', 'h7pub', 'gath', 'b6', 'h5pub', 'h2', 'qk', 'h3pub', 'pvst', 'auxpub'): return
        i = self.stnames.index(name) if name in self.stnames else None
        if i is None:
            self.stnames.append(name); i = len(self.stnames) - 1
        assert i < 21
        self(f's_memrealtime s[{60+2*i}:{61+2*i}]')
    def rnd(self, d, s):
        self(f'v_cvt_pk_bf16_f32 v{d}, v{s}, v{s}\nv_and_b32 v{d}, 0xffff0000, v{d}')
    def wave_is(self, cond, n, lab):
        self(f's_cmp_{cond}_u32 s3, {n}\ns_cbranch_scc0 {lab}')
    def row_red(self, op, regs):
        for k in (8, 4, 2, 1):
            for r in regs: self(f'{op}_dpp v{r}, v{r}, v{r} row_ror:{k} row_mask:0xf bank_mask:0xf')
    def xrow_red(self, op, r, t):
        self(f'v_mov_b32 v{t}, v{r}\nv_permlane16_swap_b32 v{r}, v{t}\n{op} v{r}, v{r}, v{t}')
        self(f'v_mov_b32 v{t}, v{r}\nv_permlane32_swap_b32 v{r}, v{t}\n{op} v{r}, v{r}, v{t}')
    def wave_red(self, op, r, t):
        self.row_red(op, [r]); self.xrow_red(op, r, t)
    def xrow_tr4(self, r):
        self(f'''v_permlane16_swap_b32 v{r}, v{r+1}
v_permlane16_swap_b32 v{r+2}, v{r+3}
v_add_f32 v{r}, v{r}, v{r+1}
v_add_f32 v{r+2}, v{r+2}, v{r+3}
v_permlane32_swap_b32 v{r}, v{r+2}
v_add_f32 v{r}, v{r}, v{r+2}''')
    def recip(self, d, y, t):
        self(f'v_rcp_f32 v{d}, v{y}\nv_fma_f32 v{t}, -v{y}, v{d}, 1.0\nv_fma_f32 v{d}, v{t}, v{d}, v{d}')
    def div(self, d, x, y, rinv, t):
        self(f'v_mul_f32 v{d}, v{x}, v{rinv}\nv_fma_f32 v{t}, -v{y}, v{d}, v{x}\nv_fma_f32 v{d}, v{t}, v{rinv}, v{d}')
    def silu(self, d, x, t):
        self(f'''v_mul_f32 v{t}, s56, v{x}
v_fma_f32 v{t+1}, v{x}, s56, -v{t}
v_fma_f32 v{t+1}, v{x}, s57, v{t+1}
v_exp_f32 v{t}, -v{t}
v_mul_f32 v{t+1}, s58, v{t+1}
v_fma_f32 v{t}, -v{t}, v{t+1}, v{t}
v_min_f32 v{t}, 0x7f000000, v{t}
v_add_f32 v{t}, 1.0, v{t}''')
        self.recip(t + 1, t, t + 2)
        self.div(t + 3, x, t, t + 1, t + 2)
        self.rnd(d, t + 3)
    def perm_block(self, dst, src, nreg=4, rows=8):
        for e in range(2 * nreg):
            for k in range(rows // 2):
                self(f'v_perm_b32 v{dst + e * (rows // 2) + k}, v{src + (2*k+1) * nreg + (e >> 1)}, v{src + 2*k*nreg + (e >> 1)}, {PHI if e & 1 else PLO}')
    def poll(self, loads, check, sleep=2, pre=None, mid=None):
        top = self.newlabel('Lp'); done = self.newlabel('Ld'); chk = self.newlabel('Lc')
        if pre: self(f's_sleep {pre}')
        if mid:
            loads(); mid(); self(f's_branch {chk}')
        self.label(top)
        loads()
        self.label(chk)
        self('s_waitcnt vmcnt(0)')
        check()
        self(f'''s_cbranch_vccz {done}
s_add_u32 {SPIN}, {SPIN}, 1
s_cmp_gt_u32 {SPIN}, {SPINMAX}
s_cbranch_scc1 {done}
s_sleep {sleep}
s_branch {top}''')
        self.label(done)
    def poll_masked(self, items, t, sleep=2, tag=False):
        top = self.newlabel('Lm'); done = self.newlabel('Lmd')
        for ld, regs in items: self(ld)
        self.label(top)
        self('s_waitcnt vmcnt(0)\ns_mov_b32 s49, 0')
        for ld, regs in items:
            skip = self.newlabel('Lms')
            if tag: self.chk_tag(regs, t)
            else: self.chk_sent(regs, t)
            self(f's_cbranch_vccz {skip}\ns_mov_b64 exec, vcc\n{ld}\ns_mov_b64 exec, -1\ns_mov_b32 s49, 1')
            self.label(skip)
        self(f'''s_cmp_eq_u32 s49, 0
s_cbranch_scc1 {done}
s_add_u32 {SPIN}, {SPIN}, 1
s_cmp_gt_u32 {SPIN}, {SPINMAX}
s_cbranch_scc1 {done}
s_sleep {sleep}
s_branch {top}''')
        self.label(done)
        self('s_waitcnt vmcnt(0)')
    def lds_wait(self, addr, n, off=0, sleep=1, extra=None, t=8):
        top = self.newlabel('Lw'); done = self.newlabel('Lwd')
        self.label(top)
        self(f'ds_read_b32 v{t}, v{addr} offset:{off}')
        if extra: self(extra)
        self(f'''s_waitcnt lgkmcnt(0)
v_cmp_gt_u32 vcc, {n}, v{t}
s_cbranch_vccz {done}
s_add_u32 {SPIN}, {SPIN}, 1
s_cmp_gt_u32 {SPIN}, {SPINMAX}
s_cbranch_scc1 {done}
s_sleep {sleep}
s_branch {top}''')
        self.label(done)
    def probe(self, va, t, off=0, sleep=1, post=None, tag=False, mask=1):
        self.exec_mask(mask)
        def ck():
            if tag: self(f'v_cmp_ne_u32 vcc, {TAG}, v{t}')
            else: self(f'v_cmp_eq_u32 vcc, -1, v{t}')
        self.poll(lambda: self(f'global_load_dword v{t}, v{va}, {WS} offset:{off} sc1'), ck, sleep=sleep)
        self.full()
        if post: self(f's_sleep {post}')
    def chk_sent(self, regs, t):
        regs = list(regs)
        if len(regs) == 1:
            self(f'v_cmp_eq_u32 vcc, -1, v{regs[0]}'); return
        if len(regs) == 2: self(f'v_max_u32 v{t}, v{regs[0]}, v{regs[1]}'); rest = []
        else: self(f'v_max3_u32 v{t}, v{regs[0]}, v{regs[1]}, v{regs[2]}'); rest = regs[3:]
        while rest:
            if len(rest) >= 2: self(f'v_max3_u32 v{t}, v{t}, v{rest[0]}, v{rest[1]}'); rest = rest[2:]
            else: self(f'v_max_u32 v{t}, v{t}, v{rest[0]}'); rest = []
        self(f'v_cmp_eq_u32 vcc, -1, v{t}')
    def chk_tag(self, regs, t):
        regs = list(regs)
        self(f'v_cmp_ne_u32 vcc, {TAG}, v{regs[0]}')
        for r in regs[1:]:
            self(f'v_cmp_ne_u32 s[50:51], {TAG}, v{r}\ns_or_b64 vcc, vcc, s[50:51]')
    def san(self, regs):
        for r in regs: self(f'v_min_u32 v{r}, -2, v{r}')
    def lanes_lt(self, n):
        assert n <= 64
        lo = (1 << min(n, 32)) - 1; hi = (1 << max(n - 32, 0)) - 1
        self(f's_mov_b32 exec_lo, {lo:#x}\ns_mov_b32 exec_hi, {hi:#x}')
    def exec_mask(self, m):
        self(f's_mov_b32 exec_lo, {m & 0xffffffff:#x}\ns_mov_b32 exec_hi, {m >> 32:#x}')
    def full(self): self('s_mov_b64 exec, -1')
    def bar(self): self('s_waitcnt lgkmcnt(0)\ns_barrier')
    def get_tag(self):
        self(f'''v_readfirstlane_b32 {TAG}, v15
s_mul_i32 {TAG}, {TAG}, 0x9E3779B1
s_add_u32 {TAG}, {TAG}, 0x7F4A7C15''')
    def ready_publish(self):
        self('s_getreg_b32 s41x, hwreg(HW_REG_XCC_ID, 0, 4)\ns_waitcnt vmcnt(0)'.replace('s41x', 's51'))
        self.get_tag()
        self(f'''s_lshl_b32 s40, s2, 4
s_add_u32 s40, s40, {READY}
v_mov_b32 v4, s40
v_mov_b32 v6, {TAG}
v_mov_b32 v7, s51''')
        self.lanes_lt(1)
        self(f'global_store_dwordx2 v4, v[6:7], {WS} sc1')
        self.full()
    def st_local(self, mism, *sts):
        far = self.newlabel('Lsf'); done = self.newlabel('Lsd')
        if self.P['local']:
            self(f's_cmp_eq_u64 {mism}, 0\ns_cbranch_scc0 {far}')
            for st in sts: self(st)
            self(f's_branch {done}')
            self.label(far)
        for st in sts: self(st + ' sc1')
        self.label(done)
    def ready_check(self, half, v=8):
        self(f'v_lshlrev_b32 v{v+2}, 4, v1\nv_add_u32 v{v+2}, {READY + 2048*half}, v{v+2}')
        def ld():
            for i in range(2): self(f'global_load_dword v{v+i}, v{v+2}, {WS} offset:{1024*i} sc1')
        self.poll(ld, lambda: self.chk_tag([v, v + 1], 0), sleep=4)
    def gemv2(self, D, A, F, first=True):
        for e in range(8):
            c = '0' if first else vr(D + 4*e, 4)
            self(f'v_mfma_f32_16x16x32_bf16 {vr(D+4*e,4)}, {vr(A,4)}, {vr(F+4*e,4)}, {c}')
    def pack2(self, o, D):
        for i in range(4):
            self(f'v_add_f32_dpp v{o+i}, v{D+4*i+1}, v{D+4*i} row_ror:8 row_mask:0xf bank_mask:0x3')
        for i in range(4):
            self(f'v_add_f32_dpp v{o+i}, v{D+4*(i+4)}, v{D+4*(i+4)+1} row_ror:8 row_mask:0xf bank_mask:0xc')
    def load_rows(self, dst, nreg, va, base, pitch, rows=8, pol='nt', t=None):
        op = {1: 'dword', 2: 'dwordx2', 4: 'dwordx4'}[nreg]
        per = 4095 // pitch + 1 if pitch <= 4095 else 1
        for j in range(rows):
            k = j % per
            self(f'global_load_{op} {vr(dst + j*nreg, nreg)}, v{va}, {base} offset:{k*pitch} {pol}')
            if k == per - 1 and j + 1 < rows: self(f'v_add_u32 v{va}, {per*pitch}, v{va}')

def consts(a):
    a(f'''s_mov_b32 {PLO}, 0x05040100
s_mov_b32 {PHI}, 0x07060302
s_mov_b32 {SPIN}, 0
s_mov_b32 s56, {L2E:#x}
s_mov_b32 s57, {L2E_LO:#x}
s_mov_b32 s58, {LN2:#x}
s_mov_b32 s59, {SCALE:#x}''')

def code_warm(a, v=4):
    n = a.P['warm_loads']
    a(f'''s_lshr_b32 s50, s2, 3
s_lshl_b32 s50, s50, 10
v_lshlrev_b32 v{v}, 4, v1
v_add_u32 v{v}, s50, v{v}
v_min_u32 v{v}, CODE_LAST, v{v}
global_load_dword v14, v{v}, s[36:37]''')
    if n > 1:
        a(f'''v_add_u32 v{v}, 32768, v{v}
v_min_u32 v{v}, CODE_LAST, v{v}
global_load_dword v14, v{v}, s[36:37]''')

CT, SPB, PB, STB, MISC = 0, 98304, 98304 + 34816, 98304 + 34816 + 9216, 98304 + 34816 + 9216 + 1024
def blk2_addr(a, v, srow, pitch, scol):
    a(f'''v_lshrrev_b32 v{v}, 3, v2
v_lshlrev_b32 v{v}, 5, v{v}
v_lshl_add_u32 v{v}, v3, 3, v{v}
v_add_u32 v{v}, {srow}, v{v}
v_mul_u32_u24 v{v}, {pitch}, v{v}
v_and_b32 v{v+1}, 7, v2
v_lshl_add_u32 v{v}, v{v+1}, 4, v{v}
v_add_u32 v{v}, {scol}, v{v}''')
def frag2_addr(a, v, sbase):
    a(f'v_and_b32 v{v}, 1, v2\nv_lshlrev_b32 v{v}, 6, v{v}\nv_lshl_add_u32 v{v}, v3, 4, v{v}\nv_add_u32 v{v}, {sbase}, v{v}')
def pack_addr(a, v, sbase):
    a(f'v_and_b32 v{v}, 7, v2\nv_lshlrev_b32 v{v}, 5, v{v}\nv_lshrrev_b32 v{v+1}, 3, v2\nv_lshl_add_u32 v{v}, v{v+1}, 4, v{v}\nv_add_u32 v{v}, {sbase}, v{v}')
def gemv_out_lds(a, D, base):
    a.pack2(8, D)
    a.lanes_lt(16)
    a('ds_write_b128 v14, v[8:11]')
    a.full()
def gemv_out_prep(a, base):
    a(f's_lshl_b32 s40, s3, 8\ns_add_u32 s40, s40, {base}')
    pack_addr(a, 14, 's40')
def tree(a, regs, stride=1, n=1):
    regs = list(regs)
    while len(regs) > 1:
        nxt = []
        for i in range(0, len(regs) - 1, 2):
            for k in range(n): a(f'v_add_f32 v{regs[i]+k}, v{regs[i]+k}, v{regs[i+1]+k}')
            nxt.append(regs[i])
        if len(regs) & 1: nxt.append(regs[-1])
        regs = nxt
def ln_finish(a, m, v, ri):
    a.rnd(m, m); a.rnd(v, v)
    a(f'v_add_f32 v{v}, {f2u(1e-5):#x}, v{v}')
    a.rnd(v, v)
    a(f'v_sqrt_f32 v{v}, v{v}')
    a.rnd(v, v)
    a.recip(ri, v, ri + 1)
def neg1(a, r=8):
    for i in range(4): a(f'v_mov_b32 v{r+i}, -1')

JP, CP = 3200, 51328
def role_B(a):
    P = a.P
    a(f'''s_and_b32 s39, s2, 7
s_lshr_b32 s38, s2, 3            ; j
s_mul_i32 s55, s38, 43
s_lshr_b32 s55, s55, 7           ; Tp = j/3
s_mul_i32 s40, s55, 3
s_sub_u32 s40, s38, s40          ; cbl
s_lshl_b32 s40, s40, 2
s_mul_i32 s45, s39, 12
s_add_u32 s45, s45, s40
s_lshr_b32 s40, s3, 1
s_add_u32 s45, s45, s40
s_and_b32 s53, s3, 1
s_lshl_b32 s42, s55, 1
s_add_u32 s53, s53, s42          ; T = 2Tp + (w&1)
v_mov_b32 v12, 0
s_lshl_b32 s40, s53, 6
s_lshl_b32 s41, s45, 7''')
    blk2_addr(a, 4, 's40', 12288, 's41')
    a(f'''v_lshlrev_b32 v6, 2, v1
s_lshl_b32 s42, s3, 3
v_and_b32 v7, 7, v1
v_add_u32 v7, s42, v7
v_lshrrev_b32 v8, 5, v1
v_lshl_add_u32 v13, v8, 6, v7
s_min_u32 s40, s55, 4
s_lshl_b32 s40, s40, 7
v_add_u32 v7, s40, v13
v_lshlrev_b32 v7, 1, v7
s_waitcnt lgkmcnt(0)''')
    a.stamp('start')
    for k in range(5): a(f'global_load_dword v{16+k}, v6, {X} offset:{256*k}')
    a(f'global_load_ushort v21, v7, {X}')
    a('s_cmp_lt_u32 s2, 120\ns_cbranch_scc0 LB_nowq')
    a.load_rows(64, 4, 4, WQ, 12288)
    a.label('LB_nowq')
    a(f'global_load_dword v15, v12, {WS} sc1\ns_branch LB2')

def role_B2(a):
    P = a.P
    a.label('LB2')
    a(f'''s_mov_b32 s49, 0
s_mul_i32 s54, s39, 10
s_add_u32 s54, s54, s38
s_add_u32 s40, s2, 0
s_cmp_lt_u32 s38, 10
s_cselect_b32 s54, s54, s40
s_getreg_b32 s16, hwreg(HW_REG_XCC_ID, 0, 4)''')
    a.wave_is('eq', 6, 'LB_not6')
    code_warm(a, 24)
    if P['tlb']:
        a(f'''v_lshlrev_b32 v24, 17, v1
global_load_dword v14, v24, {WS} offset:64 nt''')
    a('s_mov_b32 s49, 1')
    a.label('LB_not6')
    a.wave_is('eq', 7, 'LB_not7')
    neg1(a, 28)
    a(f'''s_mul_i32 s50, s39, 2560
s_lshl_b32 s51, s38, 8
s_add_u32 s50, s50, s51
s_add_u32 s50, s50, {H6}
s_lshl_b32 s51, s54, 8
s_add_u32 s51, s51, {MODR - 104*256}
s_cmp_lt_u32 s54, 104
s_cselect_b32 s50, s50, s51
v_lshl_add_u32 v24, v2, 4, s50
s_cmp_lt_u32 s54, 80
s_cbranch_scc1 LB_c1
s_cmp_lt_u32 s54, 104
s_cbranch_scc0 LB_c1
s_mul_i32 s50, s54, 2560
s_add_u32 s50, s50, {H7Y - 80*2560}
v_lshl_add_u32 v24, v1, 4, s50
global_store_dwordx4 v24, v[28:31], {WS} sc1
global_store_dwordx4 v24, v[28:31], {WS} offset:1024 sc1
v_and_b32 v24, 31, v1
v_lshl_add_u32 v24, v24, 4, s50
v_add_u32 v24, 2048, v24
LB_c1:
global_store_dwordx4 v24, v[28:31], {WS} sc1''')
    a('s_mov_b32 s49, 1')
    a.label('LB_not7')
    a(f'''s_lshl_b32 s46, s2, 6
s_lshl_b32 s41, s3, 3
s_add_u32 s46, s46, s41
s_mul_i32 s46, s46, 1536           ; (64b+8w)*1536
s_and_b32 s47, s3, 1
s_lshl_b32 s47, s47, 3             ; 8*(w&1)
s_mul_i32 s48, s3, 12288
v_cmp_le_u32 vcc, 32, v1
v_add_u32 v56, 64, v1
v_subrev_u32 v57, 32, v1
v_cndmask_b32 v56, v56, v57, vcc
v_cndmask_b32 v58, 0, 1, vcc
v_xor_b32 v56, v56, v58
v_mul_u32_u24 v58, 1536, v58
v_add_u32 v57, 32, v1
v_xor_b32 v57, 1, v57''')
    def dma(lo, hi, other=0):
        for i in range(lo, hi):
            k, j = divmod(i, 3)
            src = ('v1', 'v56', 'v57')[j]
            a(f's_add_u32 s43, s47, {2*k}\nv_xor_b32 v8, s43, {src}')
            a(f's_add_u32 s44, s46, {2*k*1536 + (1536 if j == 2 else 0) + other*32*1536}')
            if j == 1: a('v_lshl_add_u32 v8, v8, 4, v58\nv_add_u32 v8, s44, v8')
            else: a('v_lshl_add_u32 v8, v8, 4, s44')
            a(f's_add_u32 m0, s48, {i*1024 + other*49152}\nglobal_load_lds_dwordx4 v8, {CKV} nt')
    N1 = P['dma1']
    a(f'v_mov_b32 v253, {STB + 520}\nds_write_b32 v253, v12')
    a.bar()
    N0 = min(P['dma0'], N1)
    def early(lab): a(f's_cmp_lt_u32 s39, {P["gsplit"]}\ns_cbranch_scc0 {lab}')
    def vw(base):
        if N0 == N1: a(f's_waitcnt vmcnt({base+N1})'); return
        l1 = a.newlabel('Lv'); l2 = a.newlabel('Lv')
        early(l1); a(f's_waitcnt vmcnt({base+N1})\ns_branch {l2}'); a.label(l1); a(f's_waitcnt vmcnt({base+N0})'); a.label(l2)
    dma(0, N0)
    if N0 < N1:
        early('LB_d0'); dma(N0, N1); a.label('LB_d0')
    consts(a)
    a('s_cmp_ge_u32 s2, 120\ns_cselect_b32 s49, 1, s49\ns_cmp_eq_u32 s49, 0\ns_cbranch_scc1 LB_w8')
    vw(0)
    a.label('LB_w8')
    vw(9)
    for k in range(5): a(f'v_lshlrev_b32 v{24+2*k}, 16, v{16+k}\nv_and_b32 v{25+2*k}, 0xffff0000, v{16+k}')
    a('v_add_f32 v22, v24, v25')
    for k in range(2, 10): a(f'v_add_f32 v22, v22, v{24+k}')
    a.wave_red('v_add_f32', 22, 23)
    a(f'v_mul_f32 v22, {f2u(1/640):#x}, v22\nv_mov_b32 v23, 0')
    for k in range(10): a(f'v_sub_f32 v{24+k}, v{24+k}, v22\nv_fmac_f32 v23, v{24+k}, v{24+k}')
    a.wave_red('v_add_f32', 23, 24)
    a(f'v_mul_f32 v23, {f2u(1/640):#x}, v23')
    ln_finish(a, 22, 23, 24)
    a('v_lshlrev_b32 v21, 16, v21\nv_sub_f32 v21, v21, v22')
    a.rnd(21, 21)
    a.div(20, 21, 23, 24, 25)
    a.rnd(20, 20)
    a('s_cmp_lt_u32 s2, 120\ns_cbranch_scc0 LB_dma0')
    a(f'''s_lshl_b32 s40, s55, 14
s_lshl_b32 s42, s3, 10
s_add_u32 s40, s40, s42
s_add_u32 s40, s40, {H1}
v_lshl_add_u32 v4, v1, 4, s40
v_add_u32 v9, 8192, v4
v_lshlrev_b32 v5, 1, v13
v_add_u32 v5, {MISC}, v5
s_lshl_b32 s40, s39, 4
s_add_u32 s40, s40, {READY + 2048}
v_lshl_add_u32 v10, v2, 7, s40
s_mul_i32 s40, s45, 43
s_lshr_b32 s40, s40, 7
s_mul_i32 s42, s40, 3
s_sub_u32 s42, s45, s42
s_lshl_b32 s42, s42, 9
s_mul_i32 s40, s40, 15360
s_add_u32 s40, s40, s42
s_mul_i32 s42, s53, 1536
s_add_u32 s40, s40, s42
s_add_u32 s40, s40, {H1B}''')
    pack_addr(a, 6, 0)
    a(f'v_lshlrev_b32 v6, 1, v6\nv_lshl_add_u32 v6, v3, 4, v6\nv_add_u32 v6, s40, v6\nv_cmp_eq_u32 s[42:43], 1, v3')
    a(f's_and_b32 s40, s3, 1\ns_lshl_b32 s40, s40, 7\ns_add_u32 s40, s40, {MISC}')
    frag2_addr(a, 7, 's40')
    vw(0)
    a.stamp('wq')
    a.get_tag()
    a(f'v_mov_b32 v61, {TAG}\nv_mov_b32 v63, {TAG}')
    a.poll(lambda: a(f'global_load_dwordx4 v[16:19], v4, {WS} sc1\nglobal_load_dwordx4 v[24:27], v9, {WS} sc1\nglobal_load_dwordx2 v[28:29], v10, {WS} sc1'),
           lambda: a.chk_tag([17, 19, 25, 27], 8), sleep=P['sl_h1'], pre=P['pre_h1'], mid=lambda: a.perm_block(96, 64))
    a.stamp('h1')
    a('s_setprio 3')
    a('''v_add_f32_dpp v16, v16, v16 row_ror:8 row_mask:0xf bank_mask:0xf
v_add_f32_dpp v18, v18, v18 row_ror:8 row_mask:0xf bank_mask:0xf
v_add_f32_dpp v24, v24, v24 row_ror:8 row_mask:0xf bank_mask:0xf
v_add_f32_dpp v26, v26, v26 row_ror:8 row_mask:0xf bank_mask:0xf
v_cmp_ne_u32 s[50:51], s16, v29
v_cmp_ne_u32 vcc, s32, v28
s_or_b64 s[50:51], s[50:51], vcc
v_permlane16_swap_b32 v16, v18
v_permlane16_swap_b32 v24, v26
v_add_f32 v16, v16, v18
v_add_f32 v24, v24, v26
v_permlane32_swap_b32 v16, v24
v_add_f32 v16, v16, v24
v_mov_b32 v18, v16
v_permlane16_swap_b32 v16, v18''')
    a.rnd(16, 16); a.rnd(18, 18)
    a('v_add_f32 v18, 1.0, v18')
    a.rnd(18, 18)
    a('v_mul_f32 v18, v20, v18')
    a.rnd(18, 18)
    a('v_add_f32 v16, v18, v16\nv_cvt_pk_bf16_f32 v16, v16, v16\nds_write_b16 v5, v16')
    a.bar()
    a('ds_read_b128 v[16:19], v7\ns_waitcnt lgkmcnt(0)')
    a.gemv2(24, 16, 96, True)
    a.pack2(8, 24)
    a('v_cndmask_b32 v60, v8, v10, s[42:43]\nv_cndmask_b32 v62, v9, v11, s[42:43]')
    a.lanes_lt(32)
    a.st_local('s[50:51]', f'global_store_dwordx4 v6, v[60:63], {WS}')
    a.full()
    a.stamp('qpub')
    a('s_setprio 0\ns_barrier')
    if P['sl_dma2']: a(f's_sleep {P["sl_dma2"]}')
    a('s_branch LB_dma')
    a.label('LB_dma0')
    a.get_tag()
    a.label('LB_dma')
    a.wave_is('eq', 7, 'LB_nrp')
    a.ready_publish()
    a.label('LB_nrp')
    def bump():
        a('v_mov_b32 v8, 1\ns_mov_b64 exec, 1\nds_add_u32 v253, v8\ns_mov_b64 exec, -1')
    def ckwait(lab): a.lds_wait(253, 8)
    if P['dma8']: dma(N1, 12)
    a.wave_is('lt', 4, 'LB_qa')
    if N0 < N1:
        a(f's_cmp_lt_u32 s39, {P["gsplit"]}\ns_cbranch_scc1 LB_d1')
        for i in range(N0, N1):
            dma(i, i + 1); dma(i, i + 1, 1)
        a.label('LB_d1')
    if not P['dma8']:
        for i in range(N1, 12):
            dma(i, i + 1); dma(i, i + 1, 1)
    a(f'''v_lshrrev_b32 v4, 2, v2            ; rr
v_lshl_add_u32 v4, v3, 3, v4       ; 8g+rr
v_and_b32 v5, 3, v1                ; cc
s_mul_i32 s40, s3, 24
v_add_u32 v5, s40, v5              ; 24w+cc''')
    for t in range(6):
        for sub in range(2):
            a(f'''v_add_u32 v6, {4*sub}, v4
v_and_b32 v7, 15, v6
v_add_u32 v8, {4*t}, v5
v_xor_b32 v7, v7, v8
v_mul_u32_u24 v6, 1536, v6
v_lshl_add_u32 v{40+t*2+sub}, v7, 4, v6''')
    a('s_waitcnt vmcnt(0)')
    bump()
    ckwait('LB_ck0')
    a.stamp('ckv')
    for t in range(6):
        for sub in range(2):
            for hf in range(2):
                for ks in range(2):
                    r = 64 + ((t*2+hf)*2+ks)*4 + 2*sub
                    a(f'ds_read_b64_tr_b16 {vr(r,2)}, v{40+t*2+sub} offset:{ks*49152 + hf*8}')
    a(f'''s_mul_i32 s41, s2, 384
s_mul_i32 s40, s3, 49152
s_add_u32 s41, s41, s40
s_add_u32 s41, s41, {H4}
s_mov_b32 s40, 196608
v_lshrrev_b32 v61, 3, v1
v_mul_lo_u32 v52, v61, s40
v_and_b32 v8, 7, v1
v_lshl_add_u32 v52, v8, 4, v52
v_add_u32 v52, s41, v52
s_mul_i32 s40, s3, 4608
s_add_u32 s40, s40, {SPB}
v_mul_u32_u24 v60, 144, v2
v_lshl_add_u32 v60, v3, 4, v60
v_add_u32 v60, s40, v60
v_mul_u32_u24 v61, 144, v61
v_lshl_add_u32 v61, v8, 4, v61
v_add_u32 v61, s40, v61
v_add_u32 v53, {8*196608}, v52
v_add_u32 v54, {16*196608}, v52
v_add_u32 v55, {24*196608}, v52
s_lshl_b32 s40, s3, 11
s_lshl_b32 s41, s2, 4
s_add_u32 s40, s40, s41
s_add_u32 s40, s40, {AUX}
v_lshl_add_u32 v56, v1, 13, s40
v_and_b32 v57, 31, v1
v_lshlrev_b32 v57, 4, v57
v_add_u32 v57, {STB}, v57
s_branch LB_noqk''')
    a.label('LB_qa')
    a('s_sub_u32 s45, s3, 4\ns_mul_i32 s40, s45, 24\nv_add_u32 v5, s40, v3\nv_mul_u32_u24 v4, 1536, v2')
    for s_ in range(6):
        a(f'v_add_u32 v6, {4*s_}, v5\nv_xor_b32 v6, v6, v2\nv_lshl_add_u32 v{240+2*s_}, v6, 4, v4\nv_add_u32 v{241+2*s_}, 49152, v{240+2*s_}')
    a(f'''s_mul_i32 s40, s45, 12288
s_add_u32 s40, s40, {H2}
{'v_lshl_add_u32 v4, v1, 4, s40' if P['h2lay'] else 'v_lshl_add_u32 v4, v2, 6, s40'}
{'s_nop 0' if P['h2lay'] else 'v_lshl_add_u32 v4, v3, 4, v4'}
v_add_u32 v5, 4096, v4
v_add_u32 v6, 8192, v4
s_and_b32 s41, s2, 3
s_lshl_b32 s41, s41, {4 if P['h2lay'] else 6}
s_add_u32 s40, s40, s41
s_add_u32 s40, s40, 10240
v_and_b32 v9, 3, v1
v_lshl_add_u32 v9, v9, {6 if P['h2lay'] else 8}, s40
v_bfe_u32 v8, v1, 2, 1
v_lshl_add_u32 v9, v8, 10, v9
s_mul_i32 s40, s45, {32*272}
s_add_u32 s40, s40, {SPB}
v_mul_u32_u24 v7, 272, v2
v_lshl_add_u32 v7, v3, 4, v7
v_add_u32 v7, s40, v7
s_mov_b32 s52, 0
s_waitcnt vmcnt(0)''')
    bump()
    a.ready_check(1, 10)
    a('v_mov_b32 v12, 0\nv_mov_b32 v10, 0')
    def cf():
        for kt in range(4):
            for s_ in range(6):
                a(f'ds_read_b128 {vr(64+(kt*6+s_)*4,4)}, v{240 + 2*s_ + (kt >> 1)} offset:{(kt & 1)*24576}')
    a(f'''LB_q0:
s_mov_b64 exec, {P['k_h2']}
global_load_dword v10, v9, {WS} sc1
s_mov_b64 exec, -1
s_cmp_eq_u32 s52, 0
s_cbranch_scc0 LB_q1
ds_read_b32 v8, v253
s_waitcnt lgkmcnt(0)
v_cmp_gt_u32 vcc, 8, v8
s_cbranch_vccnz LB_q1
s_mov_b32 s52, 1''')
    cf()
    a(f'''LB_q1:
s_waitcnt vmcnt(0)
v_cmp_eq_u32 vcc, -1, v10
s_cbranch_vccz LB_h2go
s_add_u32 {SPIN}, {SPIN}, 1
s_cmp_gt_u32 {SPIN}, {SPINMAX}
s_cbranch_scc1 LB_h2go
s_sleep {P['sl_pr2']}
s_branch LB_q0
LB_h2go:''')
    if P['post_h2']: a(f's_sleep {P["post_h2"]}')
    def ld():
        for i in range(12): a(f'global_load_dwordx4 {vr(16+4*i,4)}, v{4 + i//4}, {WS} offset:{(i%4)*1024} sc1')
    def mid():
        a('s_cmp_eq_u32 s52, 0\ns_cbranch_scc0 LB_q2')
        ckwait('LB_ck1')
        cf()
        a.label('LB_q2')
    ld(); mid()
    a('s_setprio 3\ns_waitcnt lgkmcnt(0)\ns_branch LB_qm')
    a.label('LB_qr')
    ld()
    a.label('LB_qm')
    for s_ in range(6):
        a(f's_waitcnt vmcnt({10 - 2*s_})')
        if s_ == 5: a.stamp('h2')
        for kt in range(4):
            for ht in range(2):
                d = 224 + (kt*2+ht)*4
                a(f'v_mfma_f32_16x16x32_bf16 {vr(d,4)}, {vr(64+(kt*6+s_)*4,4)}, {vr(16+(s_*2+ht)*4,4)}, {"0" if s_ == 0 else vr(d,4)}')
                if s_ > 0 or True:
                    r = 16 + s_*8 + (kt*2+ht)
                    if kt*2+ht < 4:
                        q = 16 + s_*8 + 2*(kt*2+ht)
                        a(f'v_max_u32 v8, v{q}, v{q+1}' if (s_ == 0 and kt*2+ht == 0) else f'v_max3_u32 v8, v8, v{q}, v{q+1}')
    a(f'''v_cmp_eq_u32 vcc, -1, v8
s_cbranch_vccz LB_qd
s_add_u32 {SPIN}, {SPIN}, 1
s_cmp_gt_u32 {SPIN}, {SPINMAX}
s_cbranch_scc1 LB_qd
s_sleep {P['sl_h2']}
s_branch LB_qr
LB_qd:''')
    for kt in range(4):
        for ht in range(2): a(f'ds_write_b128 v7, {vr(224+(kt*2+ht)*4,4)} offset:{ht*16*272 + kt*64}')
    a.label('LB_noqk')
    a(f'''s_lshl_b32 s40, s3, 2
v_add_u32 v9, s40, v3              ; head = 4w+g
v_mul_u32_u24 v4, 272, v9
v_lshl_add_u32 v4, v2, 4, v4
v_add_u32 v4, {SPB}, v4
v_mul_u32_u24 v5, 144, v9
v_lshl_add_u32 v5, v2, 3, v5
v_add_u32 v5, {PB}, v5
s_lshl_b32 s40, s2, 4
s_add_u32 s40, s40, {H3}
v_lshl_add_u32 v6, v9, 11, s40
v_lshlrev_b32 v7, 4, v9
v_add_u32 v7, {STB}, v7
v_lshlrev_b32 v10, 2, v2           ; 4*kq
v_mov_b32 v45, {TAG}
v_mov_b32 v47, {TAG}
s_lshl_b32 s40, s2, 7
s_add_u32 s40, s40, {DB3}
v_mov_b32 v8, s40
v_cmp_eq_u32 vcc, 1, v1
v_cndmask_b32 v6, v6, v8, vcc
s_cmp_eq_u32 s3, 7
s_cselect_b32 s49, 2, 0
s_or_b32 s49, s49, 0x00010001
v_mov_b32 v58, {STB + 512}
v_mov_b32 v13, 0
ds_write_b64 v58, v[12:13]
ds_write_b32 v58, v12 offset:12
ds_write_b32 v58, v12 offset:16''')
    for i in range(4): a(f'v_add_u32 v{40+i}, {i}, v10')
    a.bar()
    a.stamp('qk')
    a('s_setprio 3')
    for i in range(4): a(f'ds_read_b128 {vr(16+4*i,4)}, v4 offset:{8704*i}')
    a(f'''v_mul_u32_u24 v4, 144, v2
v_lshl_add_u32 v4, v3, 4, v4
v_add_u32 v4, {PB}, v4
v_mov_b32 v11, {NEGINF:#x}
s_mov_b32 s40, 0xffffffc0
s_waitcnt lgkmcnt(0)''')
    for i in (0, 2):
        a(f'v_pk_add_f32 {vr(16+i,2)}, {vr(16+i,2)}, {vr(20+i,2)}\nv_pk_add_f32 {vr(24+i,2)}, {vr(24+i,2)}, {vr(28+i,2)}')
    for i in (0, 2): a(f'v_pk_add_f32 {vr(32+i,2)}, {vr(16+i,2)}, {vr(24+i,2)}')
    for i in range(4): a(f'v_and_or_b32 v{36+i}, v{32+i}, s40, v{40+i}')
    a('v_max3_f32 v50, v36, v37, v38\nv_max_f32 v50, v50, v39')
    a('v_cvt_pk_bf16_f32 v36, v32, v33\nv_cvt_pk_bf16_f32 v37, v34, v35')
    fill = ['v_lshlrev_b32 v32, 16, v36\nv_and_b32 v33, 0xffff0000, v36', 'v_lshlrev_b32 v34, 16, v37\nv_and_b32 v35, 0xffff0000, v37',
            'v_mul_f32 v32, s59, v32\nv_mul_f32 v33, s59, v33', 'v_mul_f32 v34, s59, v34\nv_mul_f32 v35, s59, v35']
    for k, f in zip((8, 4, 2, 1), fill):
        a(f'v_max_f32_dpp v50, v50, v50 row_ror:{k} row_mask:0xf bank_mask:0xf')
        a(f)
    a('''v_cvt_pk_bf16_f32 v44, v50, v50
v_cvt_pk_bf16_f32 v36, v32, v33
v_and_b32 v44, 0xffff0000, v44
v_cvt_pk_bf16_f32 v37, v34, v35
v_mul_f32 v44, s59, v44
v_and_b32 v46, 63, v50
v_cvt_pk_bf16_f32 v44, v44, v44
v_lshlrev_b32 v32, 16, v36
v_and_b32 v44, 0xffff0000, v44
s_mov_b32 exec_lo, s49
s_mov_b32 exec_hi, 0x00010001''')
    a(f'global_store_dwordx4 v6, v[44:47], {WS} sc1')
    a.full()
    a.stamp('h3pub')
    a('''v_and_b32 v33, 0xffff0000, v36
v_lshlrev_b32 v34, 16, v37
v_and_b32 v35, 0xffff0000, v37''')
    for i in range(4): a(f'v_sub_f32 v{24+i}, v{32+i}, v44')
    for i in range(4): a(f'v_mul_f32 v{24+i}, s56, v{24+i}')
    for i in range(4): a(f'v_exp_f32 v{24+i}, v{24+i}')
    a('''v_cvt_pk_bf16_f32 v36, v24, v25
v_cvt_pk_bf16_f32 v37, v26, v27
ds_write_b64 v5, v[36:37]
v_add_f32 v49, v24, v25
v_add_f32 v48, v26, v27
v_add_f32 v49, v49, v48''')
    def deferred():
        for i in range(4):
            a(f'v_cmp_eq_u32 vcc, v{40+i}, v46\nv_cndmask_b32 v{32+i}, v{32+i}, v11, vcc')
        a('v_max3_f32 v50, v32, v33, v34\nv_max_f32 v50, v50, v35')
        for k in (8, 4, 2, 1):
            a(f'v_max_f32_dpp v50, v50, v50 row_ror:{k} row_mask:0xf bank_mask:0xf\nv_add_f32_dpp v49, v49, v49 row_ror:{k} row_mask:0xf bank_mask:0xf')
        for i in range(4): a(f'v_sub_f32 v{32+i}, v{32+i}, v50')
        for i in range(4): a(f'v_mul_f32 v{32+i}, s56, v{32+i}')
        for i in range(4): a(f'v_exp_f32 v{32+i}, v{32+i}')
        a('''v_add_f32 v51, v32, v33
v_add_f32 v48, v34, v35
v_add_f32 v51, v51, v48
v_cvt_pk_bf16_f32 v38, v32, v33
v_cvt_pk_bf16_f32 v39, v34, v35
ds_write_b64 v5, v[38:39] offset:4608
v_mov_b32 v48, v44''')
        a.row_red('v_add_f32', [51])
        a('ds_write_b128 v7, v[48:51]\nv_mov_b32 v8, 1\ns_mov_b64 exec, 1\nds_add_u32 v58, v8 offset:16\ns_mov_b64 exec, -1')
    a.stamp('xa')
    a.bar()
    a.stamp('xb')
    a.wave_is('lt', 4, 'LB_lw')
    for ht in range(2):
        for ks in range(2): a(f'ds_read_b128 {vr(16+(ht*2+ks)*4,4)}, v4 offset:{ht*16*144 + ks*64}')
    a('s_waitcnt lgkmcnt(0)')
    def unit(i):
        cl, ht = i >> 1, i & 1
        for tp in range(2):
            for hf in range(2):
                d = 160 + (i % 3)*16 + (tp*2+hf)*4
                t = cl*2 + tp
                for ks in range(2):
                    a(f'v_mfma_f32_16x16x32_bf16 {vr(d,4)}, {vr(64+((t*2+hf)*2+ks)*4,4)}, {vr(16+(ht*2+ks)*4,4)}, {"0" if ks == 0 else vr(d,4)}')
    def stw(i):
        d = 160 + (i % 3)*16; o = 208 + (i % 2)*8
        for k in range(8): a(f'v_cvt_pk_bf16_f32 v{o+k}, v{d+2*k}, v{d+2*k+1}')
        a(f'ds_write_b128 v60, {vr(o,4)} offset:{(i % 2)*2304}\nds_write_b128 v60, {vr(o+4,4)} offset:{(i % 2)*2304 + 64}')
        o2 = 224 + (i % 3)*8
        a(f'ds_read_b128 {vr(o2,4)}, v61 offset:{(i % 2)*2304}\nds_read_b128 {vr(o2+4,4)}, v61 offset:{(i % 2)*2304 + 1152}')
    def stg(i, pol, n):
        cl, ht = i >> 1, i & 1
        o2 = 224 + (i % 3)*8
        a(f's_waitcnt lgkmcnt({n})')
        a(f'global_store_dwordx4 v{52+2*ht}, {vr(o2,4)}, {WS} offset:{128*cl} {pol}')
        a(f'global_store_dwordx4 v{53+2*ht}, {vr(o2+4,4)}, {WS} offset:{128*cl} {pol}')
    def pvloop(pol):
        unit(0)
        a.stamp('xc')
        unit(1); stw(0)
        for i in range(2, 6):
            unit(i); stw(i - 1); stg(i - 2, pol, 0 if P['stamps'] == 2 else 4)
            if i in (3, 5): a.stamp(f'xd{i}')
        stw(5); stg(4, pol, 0 if P['stamps'] == 2 else 4); stg(5, pol, 0)
    if P['local'] and P['pv_local']:
        a('s_cmp_eq_u64 s[16:17], 0\ns_cbranch_scc0 LB_pvf')
        pvloop('')
        a('s_branch LB_pvd')
        a.label('LB_pvf')
    pvloop('sc1')
    a.label('LB_pvd')
    a('v_mov_b32 v8, 1')
    a.lanes_lt(1)
    a('ds_add_u32 v58, v8')
    a.full()
    a.stamp('pvst')
    deferred()
    a('s_sub_u32 s40, s54, 80\ns_cmp_lt_u32 s40, 24\ns_cbranch_scc0 LB_nrc0')
    a.ready_check(0, 16)
    a.label('LB_nrc0')
    a.lds_wait(58, 8, off=16, extra='ds_read_b64 v[36:37], v57')
    a(f'v_mov_b32 v8, 1\nv_mov_b32 v33, {TAG}\nv_mov_b32 v32, v36\nv_mov_b32 v34, v37\nv_mov_b32 v35, {TAG}')
    a.lanes_lt(32)
    a(f's_waitcnt vmcnt(0)\nglobal_store_dwordx4 v56, v[32:35], {WS} sc1')
    a.lanes_lt(1)
    a('ds_add_u32 v58, v8 offset:12')
    a.full()
    a.stamp('auxpub')
    a(f'''v_lshlrev_b32 v9, 2, v2
v_add_u32 v9, {STB + 576}, v9
s_lshl_b32 s40, s3, 9
s_add_u32 s40, s40, {SIDE}
v_lshlrev_b32 v10, 13, v2
v_lshl_add_u32 v10, v3, 4, v10
v_add_u32 v10, s40, v10
v_lshlrev_b32 v11, 4, v2
v_add_u32 v11, {STB}, v11
''')
    a.lds_wait(58, 1, off=4, extra='ds_read2_b32 v[40:41], v9 offset0:0 offset1:16')
    for ht in range(2):
        a(f'''v_cmp_gt_u32 s[42:43], 4, v{40+ht}
s_cmp_eq_u64 s[42:43], 0
s_cbranch_scc1 LB_cn{ht}
ds_read_b128 v[16:19], v4 offset:{4608 + ht*16*144}
ds_read_b128 v[20:23], v4 offset:{4608 + ht*16*144 + 64}
ds_read_b64 v[44:45], v11 offset:{ht*256 + 8}
v_and_b32 v42, 3, v{40+ht}
v_lshl_add_u32 v42, v42, 11, v10
v_add_u32 v42, {ht*16*8192}, v42
s_waitcnt lgkmcnt(0)''')
        for t in range(6):
            for hf in range(2):
                d = 160 + (t*2+hf)*4
                for ks in range(2):
                    a(f'v_mfma_f32_16x16x32_bf16 {vr(d,4)}, {vr(64+((t*2+hf)*2+ks)*4,4)}, {vr(16+ks*4,4)}, {"0" if ks == 0 else vr(d,4)}')
        for t in range(6):
            for k in range(4): a(f'v_cvt_pk_bf16_f32 v{208+4*t+k}, v{160+8*t+2*k}, v{161+8*t+2*k}')
        a.san(range(208, 232))
        a(f'v_mov_b32 v46, v45\nv_mov_b32 v45, {TAG}\nv_mov_b32 v47, {TAG}\ns_mov_b64 exec, s[42:43]')
        for t in range(6): a(f'global_store_dwordx4 v42, {vr(208+4*t,4)}, {WS} offset:{64*t} sc1')
        a(f's_and_b64 exec, exec, 0xffff\nglobal_store_dwordx4 v42, v[44:47], {WS} offset:384 sc1')
        a.full()
        a.label(f'LB_cn{ht}')
    a('v_mov_b32 v8, 1')
    a.lanes_lt(1)
    a('ds_add_u32 v58, v8')
    a.full()
    a('s_branch LB_lw2')
    a.label('LB_lw')
    a('s_setprio 0')
    deferred()
    a('s_sub_u32 s40, s54, 80\ns_cmp_lt_u32 s40, 24\ns_cbranch_scc0 LB_nrc1')
    a.ready_check(0, 16)
    a.label('LB_nrc1')
    a.wave_is('eq', 4, 'LB_lw3')
    a(f'''v_and_b32 v9, 31, v1
v_lshlrev_b32 v10, 2, v9
v_add_u32 v10, {STB + 576}, v10
s_lshl_b32 s40, s39, 4
s_add_u32 s40, s40, s38
s_lshl_b32 s40, s40, 8
s_add_u32 s40, s40, {MB}
v_lshl_add_u32 v9, v9, 3, s40
''')
    a.lds_wait(58, P['ew_cnt'], sleep=2)
    a.poll(lambda: a(f'global_load_dwordx2 v[16:17], v9, {WS} sc1'), lambda: a.chk_tag([17], 8), sleep=P['sl_el'])
    a.stamp('el')
    a('ds_write_b32 v10, v16\nv_mov_b32 v8, 1\nds_write_b32 v58, v8 offset:4')
    a.label('LB_lw2')
    a.lds_wait(58, 8, sleep=P['sl_lw'])
    a('s_branch LB_late')
    a.label('LB_lw3')
    if P['early_late']: a.lds_wait(58, 4, off=12, sleep=P['sl_lw'])
    else: a.lds_wait(58, 8, sleep=P['sl_lw'])
    a.label('LB_late')
    def gate2(): a.lds_wait(58, 8, sleep=P['sl_lw'])
    a('s_cmp_lt_u32 s54, 80\ns_cbranch_scc0 LB_hi')
    a.wave_is('ge', 4, 'LB_wob')
    a(f'''s_mul_i32 s40, s39, 768
s_mul_i32 s41, s45, 192
s_add_u32 s40, s40, s41
s_lshl_b32 s41, s38, 7''')
    blk2_addr(a, 4, 's40', 1280, 's41')
    a(f'v_add_u32 v5, {64*1280}, v4\nv_add_u32 v6, {128*1280}, v4')
    for i in range(3):
        a.load_rows(64 + 32*i, 4, 4 + i, WO, 1280)
        if i == P['early_late'] - 1: gate2()
    a(f'''s_mul_i32 s40, s39, 12
s_mul_i32 s41, s45, 3
s_add_u32 s40, s40, s41
s_lshl_b32 s40, s40, 10
s_add_u32 s40, s40, {H5}
v_lshl_add_u32 v4, v1, 4, s40
s_mul_i32 s40, s45, 384
s_add_u32 s40, s40, {MISC + 4096}
v_lshl_add_u32 v5, v2, 2, v3
v_lshl_add_u32 v5, v5, 1, s40      ; (4p+g)*2''')
    frag2_addr(a, 6, 's40')
    gemv_out_prep(a, MISC + 2048 - 1024)
    for i in range(3):
        a(f's_waitcnt vmcnt({16 - 8*i})')
        a.perm_block(160 + 32*i, 64 + 32*i)
    a.stamp('late')
    if P['probe_h5']: a.probe(4, 8, off=2048, sleep=P['sl_pr'], post=P['post_h5'], mask=0x0001000100010001)
    def ld():
        for i in range(3): a(f'global_load_dwordx4 {vr(16+4*i,4)}, v4, {WS} offset:{1024*i} sc1')
    a.poll(ld, lambda: a.chk_sent(range(16, 28), 8), sleep=P['sl_h5'])
    a.stamp('h5')
    a('s_setprio 3')
    for i in range(3): a.xrow_tr4(16 + 4*i)
    for i in range(3): a(f'v_cvt_pk_bf16_f32 v{16+4*i}, v{16+4*i}, v{16+4*i}\nds_write_b16 v5, v{16+4*i} offset:{128*i}')
    a('s_waitcnt lgkmcnt(0)')
    for i in range(3): a(f'ds_read_b128 {vr(16+4*i,4)}, v6 offset:{128*i}')
    for i in range(3):
        a(f's_waitcnt lgkmcnt({2-i})')
        a.gemv2(64, 16 + 4*i, 160 + 32*i, i == 0)
    gemv_out_lds(a, 64, 0)
    a.label('LB_wob')
    a(f'''v_lshlrev_b32 v4, 4, v2
v_add_u32 v4, {MISC + 2048}, v4
s_mul_i32 s40, s39, 2560
s_lshl_b32 s41, s38, 8
s_add_u32 s40, s40, s41
s_add_u32 s40, s40, {H6}
v_lshl_add_u32 v5, v2, 4, s40''')
    a.bar()
    a.wave_is('eq', 4, 'Lfin')
    for i in range(4): a(f'ds_read_b128 {vr(16+4*i,4)}, v4 offset:{256*i}')
    a('s_waitcnt lgkmcnt(0)')
    tree(a, range(16, 32, 4), n=4)
    a.lanes_lt(16)
    a(f'global_store_dwordx4 v5, v[16:19], {WS} sc1')
    a.full()
    a.stamp('h6pub')
    a('s_branch Lfin')
    a.label('LB_hi')
    a('s_cmp_lt_u32 s54, 104\ns_cbranch_scc0 LB_mr')
    a(f's_sub_u32 s46, s54, 80\ns_lshl_b32 s40, s46, 6\ns_lshl_b32 s41, s3, 7')
    blk2_addr(a, 10, 's40', 1280, 's41')
    a('s_add_u32 s45, s3, 3\ns_and_b32 s45, s45, 7\ns_lshl_b32 s40, s45, 6\nv_add_u32 v62, s40, v1\ns_cmp_lt_u32 s45, 5\ns_cbranch_scc0 LB_f5')
    a(f's_lshl_b32 s40, s45, 7\ns_lshl_b32 s41, s46, 7')
    blk2_addr(a, 4, 's40', 3072, 's41')
    a(f'v_add_u32 v5, {64*3072}, v4\nv_lshlrev_b32 v6, 2, v62\nglobal_load_dword v24, v6, {X}')
    a.load_rows(128, 4, 4, W1, 3072)
    if P['early_hi'] < 2: gate2()
    a.load_rows(160, 4, 5, W1, 3072)
    if P['early_hi'] == 2: gate2()
    a.load_rows(64, 4, 10, W2, 1280)
    a(f'v_lshlrev_b32 v4, 2, v62\nv_add_u32 v4, {MODR}, v4\nv_add_u32 v5, 2560, v4\ns_waitcnt vmcnt(8)')
    a.perm_block(192, 128)
    a.perm_block(224, 160)
    a('s_waitcnt vmcnt(0)')
    a.stamp('late1')
    a.perm_block(96, 64)
    a(f'''v_mov_b32 v58, v4
v_mov_b32 v59, v5
v_lshlrev_b32 v4, 3, v62
v_add_u32 v8, {H6}, v4
v_lshlrev_b32 v28, 16, v24
v_and_b32 v29, 0xffff0000, v24''')
    for i in range(1, 4): a(f'v_add_u32 v{8+i}, {5120*i}, v8')
    a(f'''s_lshl_b32 s40, s45, 3
s_add_u32 s40, s40, {MISC + 8192}
v_mov_b32 v13, s40
s_lshl_b32 s40, s45, 8
s_add_u32 s40, s40, {MISC + 4096}
v_lshl_add_u32 v5, v1, 2, s40''')
    frag2_addr(a, 6, 's40')
    a(f's_lshl_b32 s40, s45, 8\ns_add_u32 s40, s40, {MISC}')
    pack_addr(a, 14, 's40')
    def ld():
        a(f'''global_load_dword v25, v58, {WS} sc1
global_load_dword v26, v58, {WS} offset:1280 sc1
global_load_dword v27, v59, {WS} sc1
global_load_dword v38, v59, {WS} offset:1280 sc1''')
        for i in range(8): a(f'global_load_dwordx2 {vr(40+2*i,2)}, v{8 + i//2}, {WS} offset:{2560*(i%2)} sc1')
    a.poll(ld, lambda: a.chk_sent([25, 26, 27, 38] + list(range(40, 56)), 4), sleep=P['sl_h6'])
    a.stamp('h6')
    a('s_setprio 3')
    a('v_lshlrev_b32 v30, 16, v25\nv_and_b32 v31, 0xffff0000, v25')
    tree(a, range(40, 56, 2), n=2)
    for i in range(2): a.rnd(40 + i, 40 + i)
    for i in range(2): a(f'v_mul_f32 v{40+i}, v{30+i}, v{40+i}')
    for i in range(2): a.rnd(40 + i, 40 + i)
    for i in range(2): a(f'v_add_f32 v{40+i}, v{28+i}, v{40+i}')
    a('''v_cvt_pk_bf16_f32 v36, v40, v41
v_lshlrev_b32 v40, 16, v36
v_and_b32 v41, 0xffff0000, v36
v_readfirstlane_b32 s42, v40
v_subrev_f32 v44, s42, v40
v_subrev_f32 v45, s42, v41
v_add_f32 v42, v44, v45
v_mul_f32 v43, v44, v44
v_fmac_f32 v43, v45, v45''')
    a.row_red('v_add_f32', [42, 43])
    a(f'''v_permlane16_swap_b32 v42, v43
v_add_f32 v42, v42, v43
v_mov_b32 v43, v42
v_permlane32_swap_b32 v42, v43
v_add_f32 v42, v42, v43
v_mov_b32 v43, v42
v_permlane16_swap_b32 v42, v43
v_mul_f32 v42, {f2u(1/128):#x}, v42
v_mul_f32 v44, {f2u(128.0):#x}, v42
v_fma_f32 v43, -v44, v42, v43
v_add_f32 v42, s42, v42
ds_write_b64 v13, v[42:43]
v_lshlrev_b32 v32, 16, v26
v_and_b32 v33, 0xffff0000, v26
v_lshlrev_b32 v34, 16, v27
v_and_b32 v35, 0xffff0000, v27
v_add_f32 v34, 1.0, v34
v_add_f32 v35, 1.0, v35
v_cvt_pk_bf16_f32 v34, v34, v35
v_and_b32 v35, 0xffff0000, v34
v_lshlrev_b32 v34, 16, v34
s_branch LB_w1b''')
    a.label('LB_f5')
    a.load_rows(64, 4, 10, W2, 1280)
    a.wave_is('lt', 4, 'LB_f7')
    a(f's_lshl_b32 s40, s46, 6\ns_add_u32 s41, s3, 6\ns_lshl_b32 s41, s41, 7')
    blk2_addr(a, 10, 's40', 1280, 's41')
    a.load_rows(128, 4, 10, W2, 1280)
    a.label('LB_f7')
    a('s_waitcnt vmcnt(0)')
    a.perm_block(96, 64)
    a.perm_block(192, 128)
    a.label('LB_w1b')
    a(f'v_mov_b32 v4, {MISC + 8192}')
    a.bar()
    a('s_setprio 3')
    a('s_cmp_lt_u32 s45, 5\ns_cbranch_scc0 LB_w1c')
    a(f'''ds_read_b128 v[44:47], v4
ds_read_b128 v[48:51], v4 offset:16
ds_read_b64 v[52:53], v4 offset:32
s_waitcnt lgkmcnt(0)
v_add_f32 v54, v44, v46
v_add_f32 v55, v48, v50
v_add_f32 v56, v45, v47
v_add_f32 v54, v54, v55
v_add_f32 v57, v49, v51
v_add_f32 v54, v54, v52
v_add_f32 v55, v56, v57
v_mul_f32 v54, {f2u(0.2):#x}, v54      ; mean
v_add_f32 v55, v55, v53''')
    for r in (44, 46, 48, 50, 52): a(f'v_sub_f32 v{r}, v{r}, v54')
    a('v_mul_f32 v56, v44, v44\nv_mul_f32 v57, v46, v46\nv_fmac_f32 v56, v48, v48\nv_fmac_f32 v57, v50, v50\nv_fmac_f32 v56, v52, v52\nv_add_f32 v56, v56, v57')
    a(f'v_fmac_f32 v55, {f2u(128.0):#x}, v56\nv_mul_f32 v55, {f2u(1/640):#x}, v55')
    ln_finish(a, 54, 55, 56)
    for i in range(2): a(f'v_sub_f32 v{44+i}, v{40+i}, v54')
    for i in range(2): a.rnd(44 + i, 44 + i)
    for i in range(2): a.div(42 + i, 44 + i, 55, 56, 57 + i)
    for i in range(2): a.rnd(42 + i, 42 + i)
    for i in range(2): a(f'v_mul_f32 v{42+i}, v{42+i}, v{34+i}')
    for i in range(2): a.rnd(42 + i, 42 + i)
    for i in range(2): a(f'v_add_f32 v{42+i}, v{42+i}, v{32+i}')
    a('''v_cvt_pk_bf16_f32 v42, v42, v43
ds_write_b32 v5, v42
s_waitcnt lgkmcnt(0)
ds_read_b128 v[16:19], v6
ds_read_b128 v[20:23], v6 offset:128
s_waitcnt lgkmcnt(1)''')
    a.gemv2(128, 16, 192, True)
    a('s_waitcnt lgkmcnt(0)')
    a.gemv2(128, 20, 224, False)
    gemv_out_lds(a, 128, MISC)
    a.label('LB_w1c')
    a(f'''v_and_b32 v4, 31, v1
v_lshlrev_b32 v5, 2, v4
v_lshlrev_b32 v4, 3, v4
v_add_u32 v4, {MISC}, v4
s_lshl_b32 s40, s3, 7
s_add_u32 s40, s40, {MISC + 6144}
v_add_u32 v5, s40, v5''')
    frag2_addr(a, 6, 's40')
    a(f's_mul_i32 s40, s46, 2560\ns_lshl_b32 s41, s3, 8\ns_add_u32 s40, s40, s41\ns_add_u32 s40, s40, {H7Y}')
    pack_addr(a, 14, 's40')
    a.bar()
    for i in range(5): a(f'ds_read_b64 {vr(16+2*i,2)}, v4 offset:{256*i}')
    a('s_waitcnt lgkmcnt(0)')
    tree(a, range(16, 26, 2), n=2)
    a('''v_max_f32 v16, 0, v16
v_max_f32 v17, 0, v17
v_cvt_pk_bf16_f32 v8, v16, v17
ds_write_b32 v5, v8
s_waitcnt lgkmcnt(0)
ds_read_b128 v[16:19], v6
s_waitcnt lgkmcnt(0)''')
    a.gemv2(64, 16, 96, True)
    a('s_sub_u32 s40, s3, 2\ns_cmp_lt_u32 s40, 2\ns_cbranch_scc0 LB_y1')
    a.gemv2(128, 16, 192, True)
    a.label('LB_y1')
    a.pack2(8, 64)
    a.lanes_lt(16)
    a(f'global_store_dwordx4 v14, v[8:11], {WS} sc1')
    a.full()
    a('s_cbranch_scc0 LB_y2')
    a.pack2(20, 128)
    a.lanes_lt(16)
    a(f'global_store_dwordx4 v14, v[20:23], {WS} offset:1536 sc1')
    a.full()
    a.label('LB_y2')
    a.stamp('h7pub')
    a('s_lshr_b32 s40, s46, 2\ns_cmp_eq_u32 s40, s45\ns_cbranch_scc0 Lfin\ns_cmp_lt_u32 s45, 5\ns_cbranch_scc0 Lfin\ns_and_b32 s40, s46, 3\ns_lshl_b32 s40, s40, 4\ns_mov_b64 s[42:43], 0xffff\ns_lshl_b64 exec, s[42:43], s40')
    a(f'v_lshlrev_b32 v4, 3, v62\nv_add_u32 v4, {H7Y}, v4')
    for i in range(1, 12): a(f'v_add_u32 v{16+i}, {5120*i}, v4')
    a(f'''v_mov_b32 v16, v4
v_lshlrev_b32 v5, 2, v62
v_lshlrev_b32 v30, 16, v38
v_and_b32 v31, 0xffff0000, v38''')
    def ld():
        for i in range(24): a(f'global_load_dwordx2 {vr(64+2*i,2)}, v{16 + i//2}, {WS} offset:{2560*(i%2)} sc1')
    a.poll(ld, lambda: a.chk_sent(range(64, 112), 4), sleep=P['sl_h7'], pre=P['pre_h7'])
    a.stamp('h7')
    tree(a, range(64, 112, 2), n=2)
    for i in range(2): a.rnd(64 + i, 64 + i)
    for i in range(2): a(f'v_mul_f32 v{64+i}, v{30+i}, v{64+i}')
    for i in range(2): a.rnd(64 + i, 64 + i)
    for i in range(2): a(f'v_add_f32 v{64+i}, v{40+i}, v{64+i}')
    a(f'v_cvt_pk_bf16_f32 v64, v64, v65\nglobal_store_dword v5, v64, {OUT}\ns_mov_b64 exec, -1')
    a.stamp('out')
    a('s_branch Lfin')
    a.label('LB_mr')
    a('s_cmp_lt_u32 s54, 124\ns_cbranch_scc0 Lfin\ns_sub_u32 s46, s54, 104\ns_add_u32 s45, s3, 3\ns_and_b32 s45, s45, 7\ns_cmp_lt_u32 s45, 5\ns_cbranch_scc0 LB_mrb')
    a(f'''s_lshl_b32 s40, s45, 7
v_lshl_add_u32 v4, v3, 3, s40      ; row = 128w + 8g
v_lshlrev_b32 v6, 1, v4
v_add_u32 v6, {MISC + 4096}, v6
v_mul_u32_u24 v4, 7680, v4
v_lshl_add_u32 v4, v2, 4, v4
s_lshl_b32 s40, s46, 8
s_add_u32 s40, s40, 2560
v_add_u32 v4, s40, v4
s_lshl_b32 s40, s45, 8
v_lshl_add_u32 v7, v1, 2, s40
global_load_dword v16, v7, {CC}
v_add_u32 v7, {MISC + 4096}, v7''')
    for i in range(4):
        a.load_rows(64 + 32*i, 4, 4, WMOD, 7680)
        if i < 3: a(f'v_add_u32 v4, {25*7680}, v4')
        if i == P['early_hi'] - 1: gate2()
    a('s_waitcnt vmcnt(32)')
    a('v_lshlrev_b32 v32, 16, v16\nv_and_b32 v33, 0xffff0000, v16')
    a.silu(32, 32, 8); a.silu(33, 33, 8)
    a(f'v_perm_b32 v16, v33, v32, {PHI}\nds_write_b32 v7, v16\ns_waitcnt lgkmcnt(0)')
    for i in range(4): a(f'ds_read_b128 {vr(16+4*i,4)}, v6 offset:{64*i}')
    a('s_waitcnt lgkmcnt(0)')
    a(f'''v_cmp_eq_u32 s[42:43], 1, v3
v_lshlrev_b32 v4, 5, v2
v_lshl_add_u32 v4, v3, 4, v4
s_lshl_b32 s40, s45, 9
s_add_u32 s40, s40, {MISC}
v_add_u32 v4, s40, v4''')
    for i in range(4):
        a(f's_waitcnt vmcnt({24 - 8*i})')
        a.perm_block(192, 64 + 32*i)
        a.gemv2(224, 16 + 4*i, 192, i == 0)
    a.stamp('late2')
    for i in range(4): a(f'v_cndmask_b32 v{8+i}, v{224+4*i}, v{224+4*(i+4)}, s[42:43]')
    a.lanes_lt(32)
    a('ds_write_b128 v4, v[8:11]')
    a.full()
    a.label('LB_mrb')
    a.bar()
    a.wave_is('eq', 2, 'Lfin')
    a(f'v_lshlrev_b32 v4, 3, v1\nv_add_u32 v4, {MISC}, v4')
    for i in range(5): a(f'ds_read_b64 {vr(16+2*i,2)}, v4 offset:{512*i}')
    a(f's_lshl_b32 s40, s46, 8\ns_add_u32 s40, s40, {MODR}\nv_lshl_add_u32 v4, v1, 2, s40\ns_waitcnt lgkmcnt(0)')
    tree(a, range(16, 26, 2), n=2)
    a('v_cvt_pk_bf16_f32 v8, v16, v17')
    a.san([8])
    for i in range(1, 4): a(f'v_mov_b32_dpp v{8+i}, v8 quad_perm:[{i},{i},{i},{i}] row_mask:0xf bank_mask:0xf')
    a.exec_mask(0x1111111111111111)
    a(f'global_store_dwordx4 v4, v[8:11], {WS} sc1')
    a.full()
    a.stamp('mrpub')
    a('s_branch Lfin')

LS1, LQ, LKEY, LEK, LWT, LWP, LFW, LKP = 0, 2816, 3328, 3840, 4096, 4608, 5120, 6144
LRP = LKP + 18432; LCC = LRP + 6144; LVP = LCC + 1024; LQF = LVP + 4608; LSR = LQF + 1024; LFL = LSR + 1536
def load_uk(a, base, off=128, lo=0, hi=8, v=4, rm=None):
    if lo == hi: return
    rm = rm or (lambda j: (off + 4*j, off + 32 + 2*j))
    a(f'''s_mul_i32 s40, s41, 192
s_lshl_b32 s42, s3, 5
s_add_u32 s40, s40, s42
s_add_u32 s40, s40, {lo}
v_lshl_add_u32 v{v}, v3, 3, s40
v_mul_u32_u24 v{v}, 12288, v{v}
s_mul_i32 s40, s47, 384
v_add_u32 v{v}, s40, v{v}
v_lshl_add_u32 v{v+1}, v2, 3, v{v}
v_lshl_add_u32 v{v}, v2, 4, v{v}''')
    for j in range(lo, hi):
        a(f'global_load_dwordx4 {vr(rm(j)[0],4)}, v{v}, {base} nt')
        a(f'global_load_dwordx2 {vr(rm(j)[1],2)}, v{v+1}, {base} offset:256 nt')
        if j < hi - 1: a(f'v_add_u32 v{v}, 12288, v{v}\nv_add_u32 v{v+1}, 12288, v{v+1}')
def perm12(a, dst, src=128, rm=None):
    rm = rm or (lambda j: (src + 4*j, src + 32 + 2*j))
    for e in range(12):
        w, ee = (0, e) if e < 8 else (1, e - 8)
        for k in range(4):
            a(f'v_perm_b32 v{dst+4*e+k}, v{rm(2*k+1)[w]+(ee>>1)}, v{rm(2*k)[w]+(ee>>1)}, {PHI if ee & 1 else PLO}')
def mfma12(a, D, A, F):
    for e in range(12): a(f'v_mfma_f32_16x16x32_bf16 {vr(D+4*e,4)}, {vr(A,4)}, {vr(F+4*e,4)}, 0')
def out12_prep(a, v, lbase):
    a(f's_mul_i32 s40, s3, 768\ns_add_u32 s40, s40, {lbase}\nv_lshl_add_u32 v{v}, v2, 5, s40\nv_lshl_add_u32 v{v+1}, v2, 4, s40')
def out12(a, D, o, v):
    for e in range(12): a(f'v_add_f32 v{o+e}, v{D+4*e}, v{D+4*e+1}')
    a.lanes_lt(16)
    a(f'ds_write_b128 v{v}, {vr(o,4)}\nds_write_b128 v{v}, {vr(o+4,4)} offset:16\nds_write_b128 v{v+1}, {vr(o+8,4)} offset:512')
    a.full()
def weights_out(a, val, lbase, k):
    a(f'''v_cvt_pk_bf16_f32 v8, v{val}, v{val}
ds_write_b16 v4, v8 offset:{lbase + 128*k}
v_and_b32 v9, 0xffff0000, v8
v_sub_f32 v9, v{val}, v9
v_cvt_pk_bf16_f32 v9, v9, v9
ds_write_b16 v4, v9 offset:{lbase + 256 + 128*k}''')

def role_A(a):
    P = a.P
    a(f'''s_and_b32 s44, s2, 7
s_lshl_b32 s44, s44, 4
s_bfe_u32 s40, s2, 0x40003
s_add_u32 s44, s44, s40
s_xor_b32 s43, s44, {P['s1x']}
s_cmp_lt_u32 s44, 64
s_cselect_b32 s43, s44, s43
s_mul_i32 s39, s43, 205
s_lshr_b32 s39, s39, 11          ; kp
s_mul_i32 s40, s39, 10
s_sub_u32 s38, s43, s40          ; mg
s_lshr_b32 s47, s44, 2           ; head
s_and_b32 s41, s44, 3            ; quarter
v_mov_b32 v12, 0
s_mul_i32 s40, s39, 80
s_lshl_b32 s42, s3, 4
s_add_u32 s40, s40, s42
v_lshl_add_u32 v5, v3, 2, s40      ; row0
v_mul_u32_u24 v4, 7680, v5
v_lshrrev_b32 v6, 3, v2
v_mul_u32_u24 v6, 1152, v6
v_lshl_add_u32 v6, v2, 4, v6
s_lshl_b32 s42, s38, 7
v_add3_u32 v4, v4, v6, s42
v_lshlrev_b32 v5, 1, v5
s_waitcnt lgkmcnt(0)''')
    a.stamp('start')
    a.wave_is('lt', 5, 'LA_nos1')
    a('s_cmp_lt_u32 s39, 8\ns_cbranch_scc0 LA_nos1')
    a(f'global_load_dwordx2 v[32:33], v5, {CC}')
    a.load_rows(16, 4, 4, WMOD, 7680, rows=4)
    a(f'global_load_dword v15, v12, {WS} sc1')
    U1 = P['uk1']
    load_uk(a, WUK, hi=U1)
    a.stamp('x1')
    a('s_branch LA2')

def role_A2(a):
    P = a.P; U1 = P['uk1']
    a.label('LA2')
    consts(a)
    a(f'''s_waitcnt vmcnt({5+2*U1})
v_lshlrev_b32 v36, 16, v32
v_and_b32 v37, 0xffff0000, v32
v_lshlrev_b32 v38, 16, v33
v_and_b32 v39, 0xffff0000, v33''')
    a.stamp('x2')
    for i in range(4): a.silu(36 + i, 36 + i, 8)
    a.stamp('x3')
    a(f'''v_perm_b32 v34, v37, v36, {PHI}
v_perm_b32 v35, v39, v38, {PHI}
v_cmp_eq_u32 vcc, 1, v3
v_lshlrev_b32 v4, 5, v2
v_lshl_add_u32 v4, v3, 4, v4
s_lshl_b32 s40, s3, 9
v_add_u32 v4, s40, v4''')
    a(f's_waitcnt vmcnt({1+2*U1})')
    a.stamp('x4')
    for e in range(8):
        for k in range(2):
            a(f'v_perm_b32 v{40+2*e+k}, v{16+(2*k+1)*4+(e>>1)}, v{16+2*k*4+(e>>1)}, {PHI if e & 1 else PLO}')
        a(f'v_mfma_f32_16x16x16_bf16 {vr(64+4*e,4)}, v[34:35], {vr(40+2*e,2)}, 0')
    for i in range(4): a(f'v_cndmask_b32 v{8+i}, v{64+4*i}, v{64+4*(i+4)}, vcc')
    a.lanes_lt(32)
    a('ds_write_b128 v4, v[8:11]')
    a.full()
    a(f's_waitcnt vmcnt({2*U1})')
    a.get_tag()
    a('s_branch LA_b1')
    a.label('LA_nos1')
    a('s_getreg_b32 s16, hwreg(HW_REG_XCC_ID, 0, 4)' if False else 's_nop 0')
    a(f'global_load_dword v15, v12, {WS} sc1')
    a.wave_is('lt', 6, 'LA_nos1b')
    load_uk(a, WUK, hi=U1)
    a.label('LA_nos1b')
    consts(a)
    a.wave_is('eq', 7, 'LA_not7')
    neg1(a)
    a(f'''s_mul_i32 s40, s41, 12288
s_lshr_b32 s42, s47, 4
s_lshl_b32 s42, s42, 10
s_add_u32 s40, s40, s42
s_and_b32 s42, s47, 15
s_lshl_b32 s42, s42, {4 if P['h2lay'] else 6}
s_add_u32 s40, s40, s42
s_add_u32 s40, s40, {H2}
v_lshrrev_b32 v4, 2, v1
v_min_u32 v4, 5, v4
v_lshlrev_b32 v4, 11, v4
v_and_b32 v5, 3, v1
v_lshl_add_u32 v4, v5, {8 if P['h2lay'] else 4}, v4
v_add_u32 v4, s40, v4
global_store_dwordx4 v4, v[8:11], {WS} sc1''')
    a.ready_publish()
    a(f'''s_mul_i32 s40, s44, 3072
s_add_u32 s40, s40, {H4S}
v_lshl_add_u32 v4, v1, 4, s40
global_store_dwordx4 v4, v[8:11], {WS} sc1
global_store_dwordx4 v4, v[8:11], {WS} offset:1024 sc1
global_store_dwordx4 v4, v[8:11], {WS} offset:2048 sc1
s_lshl_b32 s40, s47, 13
s_lshl_b32 s42, s41, 9
s_add_u32 s40, s40, s42
s_add_u32 s40, s40, {SIDE}
v_lshrrev_b32 v4, 5, v1
v_lshlrev_b32 v4, 11, v4
v_and_b32 v5, 31, v1
v_lshl_add_u32 v4, v5, 4, v4
v_add_u32 v4, s40, v4
v_add_u32 v5, 4096, v4
global_store_dwordx4 v4, v[8:11], {WS} sc1
global_store_dwordx4 v5, v[8:11], {WS} sc1
s_mul_i32 s40, s47, 3072
s_lshl_b32 s42, s41, 8
s_add_u32 s40, s40, s42
s_add_u32 s40, s40, {H5}
v_min_u32 v4, 2, v3
v_lshlrev_b32 v4, 10, v4
v_lshl_add_u32 v4, v2, 4, v4
v_add_u32 v4, s40, v4
global_store_dwordx4 v4, v[8:11], {WS} sc1''')
    a('s_branch LA_b1')
    a.label('LA_not7')
    a.wave_is('eq', 6, 'LA_b1')
    code_warm(a)
    if P['tlb']:
        a(f'''s_mov_b32 s50, 196608
v_mul_lo_u32 v4, v1, s50
global_load_dword v14, v4, {CKV} nt
v_lshlrev_b32 v4, 17, v1
global_load_dword v14, v4, {WS} offset:64 nt''')
    a.label('LA_b1')
    a(f'''v_lshlrev_b32 v4, 2, v1
s_lshl_b32 s40, s38, 13
s_lshl_b32 s42, s39, 7
s_add_u32 s40, s40, s42
s_add_u32 s40, s40, {H1}
v_lshrrev_b32 v5, 3, v1
v_lshlrev_b32 v5, 10, v5
v_and_b32 v6, 7, v1
v_lshl_add_u32 v5, v6, 4, v5
v_add_u32 v5, s40, v5
v_mov_b32 v9, {TAG}
v_mov_b32 v11, {TAG}''')
    a('s_cmp_lt_u32 s39, 8\ns_cbranch_scc0 LA_u80')
    a.bar()
    a.wave_is('eq', 0, 'LA_uk0')
    for w in range(5): a(f'ds_read2st64_b32 {vr(16+2*w,2)}, v4 offset0:{2*w} offset1:{2*w+1}')
    a(f'''s_waitcnt lgkmcnt(0)
v_add_f32 v16, v16, v18
v_add_f32 v17, v17, v19
v_add_f32 v20, v20, v22
v_add_f32 v21, v21, v23
v_add_f32 v16, v16, v20
v_add_f32 v17, v17, v21
v_add_f32 v8, v16, v24
v_add_f32 v10, v17, v25
global_store_dwordx4 v5, v[8:11], {WS} sc1''')
    a.stamp('h1pub')
    a.label('LA_uk0')
    a('s_barrier\ns_branch LA_uk')
    a.label('LA_u80')
    if P['sl_a80']: a(f's_sleep {P["sl_a80"]}')
    a.label('LA_uk')
    a.wave_is('lt', 6, 'LA_nouk')
    load_uk(a, WUK, lo=U1)
    V1 = P['uv1']
    rmv = lambda j: (224 + 4*j, 244 + 2*j) if j < V1 else (128 + 4*j, 160 + 2*j)
    load_uk(a, WUV, hi=V1, rm=rmv)
    a.label('LA_nouk')
    a(f'''s_mul_i32 s40, s47, 15360
s_mul_i32 s42, s3, 192
s_add_u32 s40, s40, s42
s_add_u32 s40, s40, {H1B}
v_min_u32 v5, 11, v2
v_mul_u32_u24 v4, 1536, v3
v_lshl_add_u32 v4, v5, 4, v4
v_add_u32 v4, s40, v4
v_add_u32 v7, 6144, v4
v_add_u32 v13, 12288, v4
s_mul_i32 s40, s3, 48
v_and_b32 v8, 1, v3
v_lshl_add_u32 v5, v5, 1, v8
v_lshl_add_u32 v5, v5, 1, s40      ; (24w+2dp+(g&1))*2
v_lshlrev_b32 v40, 5, v2
v_lshlrev_b32 v41, 4, v2
v_lshlrev_b32 v42, 1, v5
s_mul_i32 s40, s41, 6
s_add_u32 s40, s40, s3
s_lshl_b32 s40, s40, 11
s_lshr_b32 s42, s47, 4
s_lshl_b32 s42, s42, 10
s_add_u32 s40, s40, s42
s_and_b32 s42, s47, 15
s_lshl_b32 s42, s42, {4 if P['h2lay'] else 6}
s_add_u32 s40, s40, s42
s_add_u32 s40, s40, {H2}
v_lshl_add_u32 v6, v3, {8 if P['h2lay'] else 4}, s40
s_waitcnt vmcnt(0)''')
    a.get_tag()
    a(f'v_mov_b32 v24, 0\nv_mov_b32 v25, {TAG}\nv_mov_b32 v26, 0\nv_mov_b32 v27, {TAG}')
    a.stamp('uk')
    def U(j, k): n = j*6 + k; return 64 + 2*n if n < 32 else 176 + 2*(n - 32)
    def unp():
        a.wave_is('lt', 6, 'LA_nounp')
        for j in range(8):
            for k in range(6):
                src = 128 + 4*j + k if k < 4 else 160 + 2*j + (k - 4)
                a(f'v_lshlrev_b32 v{U(j,k)}, 16, v{src}\nv_and_b32 v{U(j,k)+1}, 0xffff0000, v{src}')
        a.label('LA_nounp')
    if P['probe_h1b']: a.probe(7, 8, off=4, sleep=P['sl_pr'], post=P['post_h1b'], tag=True, mask=0x0001000100010001)
    def ld():
        a(f'global_load_dwordx4 v[16:19], v4, {WS} sc1\nglobal_load_dwordx4 v[20:23], v7, {WS} sc1')
        a.lanes_lt(32)
        a(f'global_load_dwordx4 v[24:27], v13, {WS} sc1')
        a.full()
    a.poll(ld, lambda: a.chk_tag(range(17, 28, 2), 8), sleep=P['sl_h1b'], mid=unp)
    a.stamp('h1b')
    a('s_setprio 3')
    a(f'''v_add_f32 v16, v16, v20
v_add_f32 v18, v18, v22
v_add_f32 v16, v16, v24
v_add_f32 v18, v18, v26
v_permlane16_swap_b32 v16, v18
v_add_f32 v16, v16, v18
v_mov_b32 v18, v16
v_permlane32_swap_b32 v16, v18
v_add_f32 v16, v16, v18
v_cvt_pk_bf16_f32 v16, v16, v16
v_and_b32 v17, 0xffff0000, v16
ds_write_b32 v42, v17 offset:{LQF}
ds_write_b16 v5, v16 offset:{LQ}''')
    a.bar()
    a.wave_is('lt', 6, 'LA_nos3')
    a(f'ds_read_b128 v[44:47], v40 offset:{LQF}\nds_read_b128 v[48:51], v40 offset:{LQF+16}\nds_read_b128 v[52:55], v41 offset:{LQF+512}')
    for k in range(6):
        if k in (0, 2, 4): a(f's_waitcnt lgkmcnt({2 - k//2})')
        for j in range(8):
            if k == 0: a(f'v_pk_mul_f32 {vr(208+2*j,2)}, {vr(U(j,k),2)}, {vr(44+2*k,2)}')
            else: a(f'v_pk_fma_f32 {vr(208+2*j,2)}, {vr(U(j,k),2)}, {vr(44+2*k,2)}, {vr(208+2*j,2)}')
    for j in range(8): a(f'v_add_f32 v{24+j}, v{208+2*j}, v{209+2*j}')
    for i in range(4): a(f'v_add_f32_dpp v{32+i}, v{24+i}, v{24+i} row_ror:8 row_mask:0xf bank_mask:0x3')
    for i in range(4): a(f'v_add_f32_dpp v{32+i}, v{28+i}, v{28+i} row_ror:8 row_mask:0xf bank_mask:0xc')
    for i in range(2): a(f'v_add_f32_dpp v{36+i}, v{32+i}, v{32+i} row_shl:4 row_mask:0xf bank_mask:0x5')
    for i in range(2): a(f'v_add_f32_dpp v{36+i}, v{34+i}, v{34+i} row_shr:4 row_mask:0xf bank_mask:0xa')
    for qp in ('[2,3,0,1]', '[1,0,3,2]'):
        for i in range(2): a(f'v_add_f32_dpp v{36+i}, v{36+i}, v{36+i} quad_perm:{qp} row_mask:0xf bank_mask:0xf')
    a('v_cvt_pk_bf16_f32 v36, v36, v37')
    a.san([36])
    for i in range(1, 4): a(f'v_mov_b32_dpp v{36+i}, v36 row_shl:{4*i} row_mask:0xf bank_mask:0xf')
    a.exec_mask(0x0001000100010001)
    a(f'global_store_dwordx4 v6, v[36:39], {WS} sc1')
    a.full()
    a.stamp('h2pub')
    a('s_setprio 0')
    a('s_barrier')
    perm12(a, 64)
    if P['sl_uv']:
        if P['uv_ad']: a(f's_cmp_lt_u32 {SPIN}, {P["uv_ad"]}\ns_cbranch_scc1 LA_nsl')
        a(f's_sleep {P["sl_uv"]}')
        a.label('LA_nsl')
    load_uk(a, WUV, lo=V1, rm=rmv)
    a('s_waitcnt vmcnt(0)')
    perm12(a, 176, rm=rmv)
    a.stamp('wuv')
    a('s_branch LA_s3d')
    a.label('LA_nos3')
    a(f'v_lshlrev_b32 v4, 2, v1\nds_write_b32 v4, v12 offset:{LWP}\nv_and_b32 v4, 12, v4\nds_write_b32 v4, v12 offset:{LFL}\nv_mov_b32 v8, {NEGINF:#x}\nv_mov_b32 v9, 0\nds_write_b64 v12, v[8:9] offset:{LFW+112}\nds_write_b64 v12, v[8:9] offset:{LFW+120}\ns_setprio 0')
    a.bar()
    if P['pv_local'] and P['pf_pol'] < 3:
        if P['sl_pf']: a(f's_sleep {P["sl_pf"]}')
        a(f'''s_mul_i32 s40, s44, {CP}
s_and_b32 s42, s3, 1
s_mul_i32 s42, s42, {200*128}
s_add_u32 s40, s40, s42
s_add_u32 s40, s40, {H4}
v_lshl_add_u32 v4, v1, 7, s40''')
        for i in range(4):
            if i == 3: a.lanes_lt(8)
            a(f'global_load_dword v14, v4, {WS} {["nt", "", "sc1"][P["pf_pol"]]}')
            if i < 3: a('v_add_u32 v4, 8192, v4')
        a.full()
    a.label('LA_s3d')
    def fl_wait(i, lab, n=1): a.lds_wait(12, n, off=LFL + 4*i)
    def fl_set(i): a(f'v_mov_b32 v8, 1\nds_write_b32 v12, v8 offset:{LFL + 4*i}')
    def fl_add(i): a(f'v_mov_b32 v8, 1\ns_mov_b64 exec, 1\nds_add_u32 v12, v8 offset:{LFL + 4*i}\ns_mov_b64 exec, -1')
    def l2addr(v):
        a(f'''s_lshl_b32 s40, s3, 7
s_mul_i32 s42, s44, 6144
s_add_u32 s42, s42, s40
s_add_u32 s42, s42, {H4G}
v_and_b32 v{v}, 31, v1
v_lshrrev_b32 v{v+1}, 5, v1
v_mul_u32_u24 v{v+1}, 3072, v{v+1}
v_lshl_add_u32 v{v}, v{v}, 2, s42
v_add_u32 v{v}, v{v}, v{v+1}''')
    def esel(sh, probe):
        a(f'''s_lshl_b32 s40, {sh}, 11
s_add_u32 s40, s40, {H3}
v_lshl_add_u32 v4, v1, 4, s40
s_and_b32 s42, s47, 15
s_lshl_b32 s42, s42, 7
s_add_u32 s42, s42, {DB3}
v_lshl_add_u32 v5, v1, 11, s42
s_mov_b32 s48, {f2u(-1/64):#x}
v_mov_b32 v24, {NEGINF:#x}''')
        if probe: a.probe(5, 8, off=4, sleep=P['sl_pr3'], post=P['post_h3'], tag=True, mask=0xff)
        a.poll(lambda: a(f'global_load_dwordx4 v[28:31], v4, {WS} sc1\nglobal_load_dwordx4 v[32:35], v4, {WS} offset:1024 sc1'),
               lambda: a.chk_tag(range(29, 36, 2), 8), sleep=P['sl_h3'])
        a.stamp('h3')
        a('v_max_f32 v20, v28, v32\nv_mov_b32 v16, v28\nv_mov_b32 v18, v32')
        a.wave_red('v_max_f32', 20, 21)
        a(f'''v_and_b32 v21, 0x7f800000, v20
v_fma_f32 v20, v21, s48, v20
v_cmp_ge_f32 s[50:51], v16, v20
v_cmp_ge_f32 s[52:53], v18, v20
s_bcnt1_i32_b64 s49, s[50:51]
v_mbcnt_lo_u32_b32 v22, s50, 0
v_mbcnt_hi_u32_b32 v22, s51, v22
v_mov_b32 v23, s49
v_mbcnt_lo_u32_b32 v23, s52, v23
v_mbcnt_hi_u32_b32 v23, s53, v23
v_cmp_gt_u32 vcc, 4, v22
s_and_b64 s[50:51], s[50:51], vcc
v_cmp_gt_u32 vcc, 4, v23
s_and_b64 s[52:53], s[52:53], vcc''')
    def l1w():
        a(f'''s_lshr_b32 s40, s44, 4
s_lshl_b32 s42, 0x01010101, s40
s_mov_b32 s43, s42
v_cndmask_b32 v36, 15, v22, s[50:51]
v_cndmask_b32 v38, 15, v23, s[52:53]
v_mov_b32 v37, {TAG}
v_mov_b32 v39, {TAG}
s_lshl_b32 s40, s40, 12
s_lshl_b32 s49, s46, 3
s_add_u32 s40, s40, s49
s_add_u32 s40, s40, {MB}
v_lshrrev_b32 v5, 3, v1
v_lshl_add_u32 v4, v5, 8, s40
s_mov_b64 exec, s[42:43]''')
        a.st_local('s[38:39]', f'global_store_dwordx2 v4, v[36:37], {WS}', f'global_store_dwordx2 v4, v[38:39], {WS} offset:2048')
        a('s_mov_b64 exec, -1')
    a(f'''s_getreg_b32 s16, hwreg(HW_REG_XCC_ID, 0, 4)
s_and_b32 s40, s2, 7
s_lshl_b32 s40, s40, 4
s_add_u32 s40, s40, {READY}
v_and_b32 v4, 31, v1
v_lshl_add_u32 v4, v4, 7, s40''')
    a.poll(lambda: a(f'global_load_dwordx2 v[8:9], v4, {WS} sc1'), lambda: a.chk_tag([8], 10), sleep=4)
    a('v_cmp_ne_u32 s[38:39], s16, v9')
    a('s_and_b32 s46, s44, 15\ns_lshl_b32 s46, s46, 1\ns_and_b32 s40, s3, 1\ns_add_u32 s46, s46, s40')
    a.wave_is('ge', 6, 'LA_n6')
    esel('s46', P['probe_h3'])
    l1w()
    a.label('LA_n6')
    a.wave_is('eq', 5, 'LA_noh3')
    esel('s47', P['probe_h3'])
    a(f'''v_and_b32 v17, 63, v30
v_and_b32 v19, 63, v34
v_lshl_add_u32 v17, v1, 6, v17
v_lshl_add_u32 v19, v1, 6, v19
v_add_u32 v19, 4096, v19
v_lshlrev_b32 v4, 2, v1
v_mov_b32 v25, 999
v_add_u32 v26, 64, v1
v_lshlrev_b32 v22, 2, v22
v_lshlrev_b32 v23, 2, v23
s_mov_b64 exec, 15
ds_write_b32 v4, v17 offset:{LEK}
ds_write_b32 v4, v25 offset:{LEK+16}
s_mov_b64 exec, s[50:51]
ds_write_b32 v22, v17 offset:{LEK}
ds_write_b32 v22, v1 offset:{LEK+16}
s_mov_b64 exec, s[52:53]
ds_write_b32 v23, v19 offset:{LEK}
ds_write_b32 v23, v26 offset:{LEK+16}
s_mov_b64 exec, -1''')
    a.label('LA_noh3')
    a(f'''v_and_b32 v4, 3, v2
v_lshlrev_b32 v4, 2, v4
s_mul_i32 s40, s41, 384
s_lshl_b32 s42, s3, 6
s_add_u32 s42, s40, s42
v_lshl_add_u32 v6, v3, 4, s42
v_and_b32 v7, 31, v1
v_lshl_add_u32 v7, v7, 1, s42
s_movk_i32 s55, 1536''')
    a.bar()
    a.stamp('b3')
    a('s_setprio 3')
    a.wave_is('lt', 6, 'LA_noe')
    a(f'''ds_read_b32 v5, v4 offset:{LEK}
ds_read_b128 v[8:11], v12 offset:{LEK}
s_waitcnt lgkmcnt(1)
v_mad_u32_u24 v5, v5, s55, v6
global_load_dwordx4 v[224:227], v5, {CKV} {'nt' if P['e_nt'] else ''}
s_waitcnt lgkmcnt(0)''')
    for j in range(4): a(f'v_mad_u32_u24 v{8+j}, v{8+j}, s55, v7\nglobal_load_ushort v{232+j}, v{8+j}, {CKV} {"nt" if P["e_nt"] else ""}')
    a(f's_mul_i32 s40, s3, 3072\ns_add_u32 s40, s40, {LKP}\nv_lshl_add_u32 v4, v1, 4, s40\ns_waitcnt vmcnt(4)')
    a.stamp('erow')
    mfma12(a, 16, 224, 64)
    for t in range(3):
        d = 16 + 16*t
        for r in range(4): a(f'v_permlane16_swap_b32 v{d+r}, v{d+4+r}\nv_permlane16_swap_b32 v{d+8+r}, v{d+12+r}')
        for r in range(4): a(f'v_permlane32_swap_b32 v{d+r}, v{d+8+r}')
        a(f'ds_write_b128 v4, {vr(d,4)} offset:{1024*t}')
    a('s_branch LA_b4')
    a.label('LA_noe')
    a.label('LA_g')
    a(f'''s_setprio 1
s_and_b32 s42, s3, 1
s_mul_i32 s40, s42, 768
s_add_u32 s40, s40, {LRP}
v_lshl_add_u32 v248, v2, 5, s40
v_lshl_add_u32 v249, v2, 4, s40
s_lshl_b32 s40, s42, 8
s_add_u32 s40, s40, {LWP}
v_and_b32 v250, 1, v2
v_lshlrev_b32 v250, 7, v250
v_lshl_add_u32 v250, v3, 4, v250
v_add_u32 v250, s40, v250
v_lshl_add_u32 v251, v1, 1, s40
s_lshl_b32 s43, s42, 6
v_add_u32 v7, s43, v1
s_lshl_b32 s40, s44, 11
s_add_u32 s40, s40, {AUX}
v_lshl_add_u32 v6, v7, 4, s40
ds_read_b128 v[24:27], v12 offset:{LEK+16}
s_lshl_b32 s40, s44, 7
s_add_u32 s40, s40, s43
v_lshl_add_u32 v4, v3, 3, s40
v_mul_u32_u24 v4, 384, v4
v_add_u32 v4, {H4}, v4
v_lshl_add_u32 v5, v2, 3, v4
v_lshl_add_u32 v4, v2, 4, v4
v_add_u32 v10, {32*384}, v4
v_add_u32 v11, {32*384}, v5
s_mov_b64 s[52:53], 0
s_mov_b32 s48, 0x01010101
v_mov_b32 v22, {NEGINF:#x}
s_lshl_b32 s40, s42, 3
v_mov_b32 v23, s40
s_waitcnt lgkmcnt(0)
v_cmp_eq_u32 s[54:55], v24, v7''')
    for j in range(1, 4): a(f'v_cmp_eq_u32 vcc, v{24+j}, v7\ns_or_b64 s[54:55], s[54:55], vcc')
    a(f's_sleep {P["pre_aux"]}')
    a.label('LA_g0')
    a(f'''global_load_dwordx4 v[28:31], v6, {WS} sc1
s_waitcnt vmcnt(0)
v_cmp_eq_u32 vcc, {TAG}, v29
v_cmp_eq_u32 s[50:51], {TAG}, v31
s_and_b64 s[50:51], s[50:51], vcc
s_andn2_b64 s[42:43], s[50:51], s[52:53]
s_mov_b64 s[52:53], s[50:51]
s_cbranch_scc0 LA_gn''')
    for b in range(2):
        for j in range(8):
            a(f'''s_lshr_b32 s40, s{42+b}, {j}
s_and_b32 s40, s40, s48
s_cbranch_scc0 LA_gs{b}_{j}
s_and_b32 s38, s40, 0x101
s_lshr_b32 s39, s40, 16
s_mul_i32 s38, s38, 0x101
s_mul_i32 s39, s39, 0x101
s_and_b32 s38, s38, 0x10001
s_and_b32 s39, s39, 0x10001
s_mul_i32 exec_lo, s38, 0xffff
s_mul_i32 exec_hi, s39, 0xffff
global_load_dwordx4 {vr(64+48*b+4*j,4)}, v{4+6*b}, {WS} offset:{384*j} sc1
global_load_dwordx2 {vr(96+48*b+2*j,2)}, v{5+6*b}, {WS} offset:{384*j+256} sc1
LA_gs{b}_{j}:''')
    a(f'''s_mov_b64 exec, -1
s_cmp_eq_u64 s[52:53], -1
s_cbranch_scc1 LA_g1
LA_gn:
s_add_u32 {SPIN}, {SPIN}, 1
s_cmp_gt_u32 {SPIN}, {SPINMAX}
s_cbranch_scc1 LA_g1
s_sleep {P['sl_aux']}
s_branch LA_g0
LA_g1:''')
    a.stamp('aux')
    a('s_setprio 3\nv_cndmask_b32 v16, v28, v22, s[54:55]\nv_mov_b32 v20, v16')
    a.wave_red('v_max_f32', 20, 21)
    a(f'''v_sub_f32 v16, v16, v20
v_mul_f32 v16, s56, v16
v_exp_f32 v16, v16
v_cvt_pk_bf16_f32 v8, v16, v16
v_mul_f32 v21, v16, v30
ds_write_b16 v251, v8
v_and_b32 v9, 0xffff0000, v8
v_sub_f32 v9, v16, v9
v_cvt_pk_bf16_f32 v9, v9, v9
ds_write_b16 v251, v9 offset:128
s_waitcnt lgkmcnt(0)
ds_read_b128 v[224:227], v250
ds_read_b128 v[228:231], v250 offset:64''')
    a.wave_red('v_add_f32', 21, 22)
    a(f'v_mov_b32 v8, 1\nds_write_b64 v23, v[20:21] offset:{LFW+96}\ns_mov_b64 exec, 1\nds_add_u32 v12, v8 offset:{LFL+8}\ns_mov_b64 exec, -1\ns_waitcnt vmcnt(0) lgkmcnt(0)')
    a.stamp('gath')
    for b in range(2):
        for e in range(12):
            nreg, src, ee = (4, 64 + 48*b, e) if e < 8 else (2, 96 + 48*b, e - 8)
            f = 16 + 4*(e % 6) + 24*b
            for k in range(4):
                a(f'v_perm_b32 v{f+k}, v{src+(2*k+1)*nreg+(ee>>1)}, v{src+2*k*nreg+(ee>>1)}, {PHI if ee & 1 else PLO}')
            a(f'v_mfma_f32_16x16x32_bf16 {vr(160+4*e,4)}, {vr(224+4*b,4)}, {vr(f,4)}, {"0" if b == 0 else vr(160+4*e,4)}')
    out12(a, 160, 16, 248)
    fl_add(3)
    a('s_branch LA_nov')
    a.label('LA_b4')
    a(f'v_mov_b32 v8, 1\ns_mov_b64 exec, 1\nds_add_u32 v12, v8 offset:{LFL}\ns_mov_b64 exec, -1')
    a.wave_is('lt', 3, 'LA_nopub')
    a(f'v_lshlrev_b32 v6, 4, v0\nv_add_u32 v7, {LKP}, v6\ns_mul_i32 s40, s44, 3072\ns_add_u32 s40, s40, {H4S}\nv_add_u32 v6, s40, v6')
    fl_wait(0, 'LA_f0', 6)
    a.stamp('b4')
    for w in range(6): a(f'ds_read_b128 {vr(16+4*w,4)}, v7 offset:{3072*w}')
    a('s_waitcnt lgkmcnt(0)')
    tree(a, range(16, 40, 4), n=4)
    a.st_local('s[38:39]', f'global_store_dwordx4 v6, v[16:19], {WS}')
    a.stamp('kpub')
    a('s_branch LA_l2')
    a.label('LA_nopub')
    a.wave_is('eq', 5, 'LA_w6')
    a(f'''s_mul_i32 s40, s47, 12288
s_add_u32 s40, s40, {H4S}
v_lshl_add_u32 v4, v1, 4, s40
v_add_u32 v5, 3072, v4
v_add_u32 v6, 6144, v4
v_add_u32 v7, 9216, v4
v_lshl_add_u32 v8, v2, 3, v3
v_lshlrev_b32 v8, 1, v8
v_lshl_add_u32 v9, v2, 2, v3
v_lshlrev_b32 v9, 1, v9
v_lshlrev_b32 v10, 2, v3
ds_read_u16 v64, v8 offset:{LQ}
ds_read_u16 v65, v8 offset:{LQ+8}
ds_read_u16 v66, v9 offset:{LQ+256}
ds_read_b32 v67, v10 offset:{LEK+16}
v_lshl_add_u32 v11, v1, 10, s40
s_sleep {P['pre_h4s']}''')
    if P['pr_h4s']: a.probe(11, 16, sleep=P['pr_h4s'], mask=0xfff)
    def ld():
        for qq in range(4):
            for k in range(3): a(f'global_load_dwordx4 {vr(16+(qq*3+k)*4,4)}, v{4+qq}, {WS} offset:{1024*k} sc1')
    a.poll(ld, lambda: a.chk_sent(range(16, 64), 9), sleep=P['sl_h4s'])

    a.stamp('h4s')
    a('s_waitcnt lgkmcnt(0)\nv_cmp_gt_u32 s[52:53], 0x80, v67' if False else 's_waitcnt lgkmcnt(0)\ns_movk_i32 s40, 128\nv_cmp_gt_u32 s[52:53], s40, v67')
    for k in range(3): a(f'v_lshlrev_b32 v{64+k}, 16, v{64+k}')
    for i in range(0, 12, 2): a(f'v_pk_add_f32 {vr(16+i,2)}, {vr(16+i,2)}, {vr(28+i,2)}\nv_pk_add_f32 {vr(40+i,2)}, {vr(40+i,2)}, {vr(52+i,2)}')
    for i in range(0, 12, 2): a(f'v_pk_add_f32 {vr(16+i,2)}, {vr(16+i,2)}, {vr(40+i,2)}')
    for i in range(0, 12, 2): a(f'v_cvt_pk_bf16_f32 v{17+i}, v{16+i}, v{17+i}')
    for i in range(0, 12, 2): a(f'v_lshlrev_b32 v{16+i}, 16, v{17+i}\nv_and_b32 v{17+i}, 0xffff0000, v{17+i}')
    for j in range(4):
        a(f'v_mul_f32 v{68+j}, v{16+j}, v64\nv_fmac_f32 v{68+j}, v{20+j}, v65\nv_fmac_f32 v{68+j}, v{24+j}, v66')
    a.row_red('v_add_f32', [68, 69, 70, 71])
    a.xrow_tr4(68)
    a.rnd(68, 68)
    a('v_mul_f32 v68, s59, v68')
    a.rnd(68, 68)
    a(f'v_mov_b32 v21, {NEGINF:#x}\nv_cndmask_b32 v68, v21, v68, s[52:53]\nv_lshlrev_b32 v11, 3, v3')
    fl_wait(2, 'LA_f2', 3)
    a(f'''ds_read_b64 v[228:229], v11 offset:{LFW+64}
ds_read_b64 v[230:231], v11 offset:{LFW+96}
s_waitcnt lgkmcnt(0)
v_max3_f32 v69, v68, v228, v230''')
    a.xrow_red('v_max_f32', 69, 70)
    a(f'''v_sub_f32 v68, v68, v69
v_sub_f32 v228, v228, v69
v_sub_f32 v230, v230, v69
v_mul_f32 v68, s56, v68
v_mul_f32 v228, s56, v228
v_mul_f32 v230, s56, v230
v_exp_f32 v68, v68
v_exp_f32 v228, v228
v_exp_f32 v230, v230
v_fma_f32 v70, v228, v229, v68
v_fmac_f32 v70, v230, v231''')
    a.xrow_red('v_add_f32', 70, 71)
    a.recip(71, 70, 72)
    a.div(73, 68, 70, 71, 72)
    a.rnd(73, 73)
    a(f'''v_mul_f32 v74, v230, v71
v_mul_f32 v75, v228, v71
ds_write_b32 v10, v73 offset:{LFW}
ds_write_b32 v10, v75 offset:{LFW+16}
ds_write_b32 v10, v74 offset:{LFW+32}''')
    fl_add(3)
    a('s_branch LA_l2')
    a.label('LA_w6')
    a.wave_is('eq', 4, 'LA_l2')
    a(f'''v_lshlrev_b32 v10, 2, v3
ds_read_b32 v11, v10 offset:{LEK+16}
s_lshl_b32 s40, s47, 13
s_lshl_b32 s42, s41, 9
s_add_u32 s40, s40, s42
s_add_u32 s40, s40, {SIDE}
v_lshl_add_u32 v6, v3, 11, s40
v_lshl_add_u32 v4, v2, 4, v6
v_lshl_add_u32 v5, v2, 3, v6
v_mul_u32_u24 v9, 384, v3
v_lshl_add_u32 v7, v2, 4, v9
v_lshl_add_u32 v9, v2, 3, v9
v_lshlrev_b32 v10, 3, v3
v_mov_b32 v24, {NEGINF:#x}
v_mov_b32 v26, 0
s_movk_i32 s40, 128
s_waitcnt lgkmcnt(0)
v_cmp_gt_u32 s[52:53], s40, v11''')
    for i in range(6): a(f'v_mov_b32 v{16+i}, 0')
    a(f's_sleep {P["pre_side"]}\ns_mov_b64 exec, s[52:53]')
    def ck():
        a.chk_sent(range(16, 22), 8)
        a(f'v_cmp_ne_u32 s[50:51], {TAG}, v25\ns_or_b64 vcc, vcc, s[50:51]\nv_cmp_ne_u32 s[50:51], {TAG}, v27\ns_or_b64 vcc, vcc, s[50:51]')
    a.poll(lambda: a(f'global_load_dwordx4 v[16:19], v4, {WS} sc1\nglobal_load_dwordx2 v[20:21], v5, {WS} offset:256 sc1\nglobal_load_dwordx4 v[24:27], v6, {WS} offset:384 sc1'),
           ck, sleep=P['sl_side'])
    a.full()
    a.stamp('side')
    a(f'v_mov_b32 v25, v26\nds_write_b128 v7, v[16:19] offset:{LSR}\nds_write_b64 v9, v[20:21] offset:{LSR+256}\nds_write_b64 v10, v[24:25] offset:{LFW+64}')
    fl_add(2)
    a.label('LA_l2')
    a(f'''s_lshl_b32 s40, s3, 7
v_and_b32 v4, 31, v1
v_lshl_add_u32 v5, v4, 1, s40
s_lshl_b32 s42, s3, 6
v_lshl_add_u32 v7, v4, 1, s42
v_lshl_add_u32 v4, v4, 2, s40
v_mov_b32 v20, 0
v_mov_b32 v21, 0
v_mov_b32 v22, 0
v_mov_b32 v23, 0''')
    frag2_addr(a, 6, 's40')
    out12_prep(a, 248, LVP)
    a('s_waitcnt vmcnt(0)')
    for j in range(4): a(f'v_lshlrev_b32 v{232+j}, 16, v{232+j}')
    fl_wait(3, 'x', 3)
    a.stamp('b6')
    for w in range(2): a(f'ds_read_b32 v{16+w}, v4 offset:{LRP + 768*w}')
    for j in range(4): a(f'ds_read_u16_d16_hi v{20+j}, v7 offset:{LSR + 384*j}')
    a(f'ds_read_b128 v[24:27], v12 offset:{LFW}\nds_read_b128 v[28:31], v12 offset:{LFW+16}\nds_read_b64 v[32:33], v12 offset:{LFW+32}')
    a(f'''s_waitcnt lgkmcnt(0)
v_mul_f32 v16, v16, v32
v_mul_f32 v24, v24, v232
v_mul_f32 v28, v28, v20
v_fmac_f32 v16, v17, v33
v_fmac_f32 v24, v25, v233
v_fmac_f32 v28, v29, v21
v_fmac_f32 v24, v26, v234
v_fmac_f32 v28, v30, v22
v_fmac_f32 v24, v27, v235
v_fmac_f32 v28, v31, v23
v_add_f32 v24, v24, v28
v_add_f32 v16, v16, v24
v_cvt_pk_bf16_f32 v17, v16, v16
ds_write_b16 v5, v17 offset:{LCC}
v_and_b32 v18, 0xffff0000, v17
v_sub_f32 v18, v16, v18
v_cvt_pk_bf16_f32 v18, v18, v18
ds_write_b16 v5, v18 offset:{LCC+64}
s_waitcnt lgkmcnt(0)
ds_read_b128 v[224:227], v6 offset:{LCC}
s_waitcnt lgkmcnt(0)''')
    mfma12(a, 128, 224, 176)
    out12(a, 128, 16, 248)
    a.label('LA_nov')
    a(f'''v_lshlrev_b32 v4, 4, v1
s_mul_i32 s40, s47, 3072
s_lshl_b32 s42, s41, 8
s_add_u32 s40, s40, s42
s_add_u32 s40, s40, {H5}
v_lshlrev_b32 v5, 10, v3
v_lshl_add_u32 v5, v2, 4, v5
v_add_u32 v5, s40, v5''')
    a.bar()
    a.wave_is('eq', 0, 'Lfin')
    for w in range(6): a(f'ds_read_b128 {vr(16+4*w,4)}, v4 offset:{LVP + 768*w}')
    a('s_waitcnt lgkmcnt(0)')
    tree(a, range(16, 40, 4), n=4)
    a.lanes_lt(48)
    a.st_local('s[38:39]', f'global_store_dwordx4 v5, v[16:19], {WS}')
    a.full()
    a.stamp('h5pub')
    a(f'''s_add_u32 s40, s44, s3
s_cmp_eq_u32 s40, 0
s_cbranch_scc0 Lfin
v_mov_b32 v5, {TAG}
global_store_dword v12, v5, {WS} sc1''')

DEFAULTS = dict(code_last=0x1000, stamps=False, warm_loads=2, sl_pr=1, sl_pr3=4, sl_h1=3, sl_h1b=1, sl_h2=4, sl_h3=2, sl_aux=2, sl_h4s=1, sl_h5=1, sl_h6=3, sl_h7=2, sl_x2=4, sl_lw=1, lw_cnt=4, dma1=5, sl_top2=4, pre_h7=12, pr_h4s=2, early_hi=2, g6=0, dma0=12, gsplit=4, s1x=0, rot=0, uv_ad=0, sl_dma=0, sl_b80=0, uv1=0, h2lay=0, dma8=0, bpf=0, pf_pol=2, sl_pf=10, pre_hdr=8, pv_local=0, g_pol=0, pre_l2=6, sl_hdr=2, sl_l2=2, local=1, early_late=1, sl_pr2=4, sl_dma2=0, m_h2=0, m_h6=0, k_h2=255, pre_aux=30, swap=0, sl_a80=30, pre_h1=0, tlb=0, e_nt=0, pv_nt=0, uk1=0, ew_cnt=4, sl_el=1, pre_side=10, sl_side=2, sl_uv=20, pre_h4s=4, sl_top=6,
    probe_h1b=0, post_h1b=1, probe_h2=1, post_h2=0, probe_h3=1, post_h3=0, probe_aux=0, post_aux=2, probe_h5=0, post_h5=1, probe_h6=0, post_h6=1, probe_h7=1, post_h7=0)

def generate(**kw):
    P = dict(DEFAULTS); P.update(kw)
    a = G(P)
    a(f'''s_cmp_ge_u32 s2, 256
s_cbranch_scc1 Lend
s_load_dwordx16 s[4:19], s[0:1], 0
{'s_xor_b32 s2, s2, 128' if P['swap'] else 's_nop 0'}
s_load_dwordx8 s[20:27], s[0:1], 64
{f's_add_u32 s3, s2, {P["rot"]}' if P['rot'] else ''}
{'s_and_b32 s3, s3, 7' if P['rot'] else ''}
{'s_andn2_b32 s2, s2, 7' if P['rot'] else ''}
{'s_or_b32 s2, s2, s3' if P['rot'] else ''}
s_load_dwordx4 s[28:31], s[0:1], 96
s_getpc_b64 s[36:37]
Lpc:
v_lshrrev_b32 v4, 6, v0
v_and_b32 v1, 63, v0
v_readfirstlane_b32 s3, v4
v_and_b32 v2, 15, v0
v_lshrrev_b32 v3, 4, v1''')
    if P['stamps']:
        for i in range(21): a(f's_mov_b64 s[{60+2*i}:{61+2*i}], 0')
    if P.get('dbgtime') or P.get('padto'): a('s_memrealtime s[60:61]')
    a('s_cmp_lt_u32 s2, 128\ns_cbranch_scc1 LB')
    role_A(a)
    namesA = a.stnames; a.stnames = []
    a.label('LB')
    role_B(a)
    namesB = a.stnames; a.stnames = namesA
    role_A2(a)
    a('s_branch Lfin')
    namesA = a.stnames; a.stnames = namesB
    role_B2(a)
    namesB = a.stnames
    a.label('Lfin')
    if P['stamps']:
        a(f'''s_waitcnt lgkmcnt(0)
s_lshl_b32 s40, s2, 3
s_add_u32 s40, s40, s3
s_lshl_b32 s40, s40, 7
s_add_u32 s40, s40, {STAMP}
v_mov_b32 v4, s40''')
        for i in range(21): a(f'v_mov_b32 v5, s{60+2*i}\nglobal_store_dword v4, v5, {WS} offset:{4*i}')
    if P.get('dbgtime'):
        a(f'''s_memrealtime s[62:63]
s_cmp_eq_u32 s3, 7
s_cbranch_scc0 Lend
s_and_b32 s40, s2, 31
s_cmp_eq_u32 s40, 31
s_cbranch_scc0 Lend
s_waitcnt lgkmcnt(0)
s_lshr_b32 s40, s2, 5
s_lshl_b32 s40, s40, 3
v_mov_b32 v4, s40
v_mov_b32 v6, s60
v_mov_b32 v7, s62
s_mov_b64 exec, 1
global_store_dwordx2 v4, v[6:7], s[28:29]''')
    if P.get('padto'):
        a(f'''s_add_u32 s40, s2, s3
s_cmp_eq_u32 s40, 0
s_cbranch_scc0 Lend
Lpad:
s_memrealtime s[62:63]
s_waitcnt lgkmcnt(0)
s_sub_u32 s40, s62, s60
s_cmp_lt_u32 s40, {P['padto']}
s_cbranch_scc1 Lpad''')
    a.label('Lend')
    a('s_endpgm')
    a.raw('Lcode_end:')
    hdr = open(f'cdna_kernels/{NAME}.s.ref').read().split('; Override launch')[0]
    lds = MISC + 8192 + 256
    doc = '''; One persistent launch, 256 workgroups (one per CU), two roles:
; so that the bf16 rounding of the scores follows the reference; their tile partials are re-sent without that key.
; Hand-offs go through d_ws: {value,tag} granules (tag derived from an epoch word in d_ws), or slots cleared to
'''
    txt = hdr + f'''; @launch grid=(256,1,1) block=(512,1,1) lds={lds}
''' + doc + f'''.amdgcn_target "amdgcn-amd-amdhsa--gfx950"
.text
.globl {NAME}_kernel
.p2align 8
.type {NAME}_kernel,@function
.set CODE_LAST, {P['code_last']:#x}
{NAME}_kernel:
''' + a.text() + f'''.section .rodata,"a"
.p2align 6
.amdhsa_kernel {NAME}_kernel
  .amdhsa_next_free_vgpr 256
  .amdhsa_next_free_sgpr 102
  .amdhsa_accum_offset 256
  .amdhsa_group_segment_fixed_size 0
  .amdhsa_kernarg_size 112
  .amdhsa_user_sgpr_count 2
  .amdhsa_user_sgpr_kernarg_segment_ptr 1
  .amdhsa_system_sgpr_workgroup_id_x 1
  .amdhsa_float_denorm_mode_32 3
.end_amdhsa_kernel
'''
    return txt, namesB, namesA

if __name__ == '__main__':
    import json
    out = sys.argv[1]
    kw = {}
    for x in sys.argv[2:]:
        k, v = x.split('='); kw[k] = int(v)
    import subprocess, re
    txt, nb, na = generate(**kw)
    open('_g.s', 'w').write(txt)
    subprocess.check_call(['clang', '-x', 'assembler', '-target', 'amdgcn-amd-amdhsa', '-mcpu=gfx950', '-c', '_g.s', '-o', '_g.o'])
    h = subprocess.check_output(['llvm-objdump', '-h', '_g.o'], text=True)
    size = int(re.search(r'\.text\s+([0-9a-f]+)', h).group(1), 16)
    kw['code_last'] = size - 0x40 - 4
    assert size <= 32768 * kw.get('warm_loads', DEFAULTS['warm_loads'])
    txt, nb, na = generate(**kw)
    print('code bytes', size)
    open(out, 'w').write(txt)
    json.dump({'B': nb, 'A': na}, open(out + '.names.json', 'w'))
```

```python
import sys, struct
sys.path.insert(0, 'gen')
from asmlib import *
NAME = 'adaLN_cond__compressed_kv_cla__dense_activation_relu__decode'

EPOCH, READY, H1, H1B, H2, H3, AUX, H4S, H5 = 0x0, 0x1000, 0x2000, 0x120000, 0x58000, 0x68000, 0x1A0000, 0x88000, 0xE8000
H6, MODR, H7F, H7X, H4, STAMP = 0x100000, 0x108000, 0x110000, 0x111000, 0x200000, 0x4000000
H7Y = 0x110000
H4G, HDR, MB = 0x880000, 0x1FA000, 0x78000
DB3, DB4, ELIST, SIDE = 0x1E0000, 0x1E4000, 0x1F8000, 0x18000
X, CKV, WQ, WUK, WUV, WO, W1, W2, CC, WMOD, OUT, WS = [f's[{i}:{i+1}]' for i in (4, 6, 8, 10, 12, 14, 18, 20, 22, 24, 26, 30)]
TAG, SPIN, PLO, PHI = 's32', 's33', 's34', 's35'
SPINMAX = 200000
def f2u(x): return struct.unpack('<I', struct.pack('<f', x))[0]
L2E = f2u(1.4426950408889634)
L2E_LO = f2u(1.4426950408889634 - struct.unpack('<f', struct.pack('<f', 1.4426950408889634))[0])
LN2 = f2u(0.6931471805599453)
SCALE = f2u(192 ** -0.5)
NEGINF = 0xff800000

class G(Asm):
    def __init__(self, P):
        super().__init__(); self.P = P; self.nst = 0; self.stnames = []
    def stamp(self, name):
        if not self.P.get('stamps'): return
        if name in ('wq', 'b4', 'hdr', 'late2', 'h1', 'lepub'): return
        if name.startswith('x') != (self.P['stamps'] == 2) and name not in ('start', 'h1pub', 'out', 'wq', 'h1', 'qpub', 'h1b', 'h2pub', 'h5', 'h6pub', 'h6', 'h7pub', 'gath', 'b6', 'h5pub', 'h2', 'qk', 'h3pub', 'pvst', 'auxpub'): return
        i = self.stnames.index(name) if name in self.stnames else None
        if i is None:
            self.stnames.append(name); i = len(self.stnames) - 1
        assert i < 21
        self(f's_memrealtime s[{60+2*i}:{61+2*i}]')
    def rnd(self, d, s):
        self(f'v_cvt_pk_bf16_f32 v{d}, v{s}, v{s}\nv_and_b32 v{d}, 0xffff0000, v{d}')
    def wave_is(self, cond, n, lab):
        self(f's_cmp_{cond}_u32 s3, {n}\ns_cbranch_scc0 {lab}')
    def row_red(self, op, regs):
        for k in (8, 4, 2, 1):
            for r in regs: self(f'{op}_dpp v{r}, v{r}, v{r} row_ror:{k} row_mask:0xf bank_mask:0xf')
    def xrow_red(self, op, r, t):
        self(f'v_mov_b32 v{t}, v{r}\nv_permlane16_swap_b32 v{r}, v{t}\n{op} v{r}, v{r}, v{t}')
        self(f'v_mov_b32 v{t}, v{r}\nv_permlane32_swap_b32 v{r}, v{t}\n{op} v{r}, v{r}, v{t}')
    def wave_red(self, op, r, t):
        self.row_red(op, [r]); self.xrow_red(op, r, t)
    def xrow_tr4(self, r):
        self(f'''v_permlane16_swap_b32 v{r}, v{r+1}
v_permlane16_swap_b32 v{r+2}, v{r+3}
v_add_f32 v{r}, v{r}, v{r+1}
v_add_f32 v{r+2}, v{r+2}, v{r+3}
v_permlane32_swap_b32 v{r}, v{r+2}
v_add_f32 v{r}, v{r}, v{r+2}''')
    def recip(self, d, y, t):
        self(f'v_rcp_f32 v{d}, v{y}\nv_fma_f32 v{t}, -v{y}, v{d}, 1.0\nv_fma_f32 v{d}, v{t}, v{d}, v{d}')
    def div(self, d, x, y, rinv, t):
        self(f'v_mul_f32 v{d}, v{x}, v{rinv}\nv_fma_f32 v{t}, -v{y}, v{d}, v{x}\nv_fma_f32 v{d}, v{t}, v{rinv}, v{d}')
    def silu(self, d, x, t):
        self(f'''v_mul_f32 v{t}, s56, v{x}
v_fma_f32 v{t+1}, v{x}, s56, -v{t}
v_fma_f32 v{t+1}, v{x}, s57, v{t+1}
v_exp_f32 v{t}, -v{t}
v_mul_f32 v{t+1}, s58, v{t+1}
v_fma_f32 v{t}, -v{t}, v{t+1}, v{t}
v_min_f32 v{t}, 0x7f000000, v{t}
v_add_f32 v{t}, 1.0, v{t}''')
        self.recip(t + 1, t, t + 2)
        self.div(t + 3, x, t, t + 1, t + 2)
        self.rnd(d, t + 3)
    def perm_block(self, dst, src, nreg=4, rows=8):
        for e in range(2 * nreg):
            for k in range(rows // 2):
                self(f'v_perm_b32 v{dst + e * (rows // 2) + k}, v{src + (2*k+1) * nreg + (e >> 1)}, v{src + 2*k*nreg + (e >> 1)}, {PHI if e & 1 else PLO}')
    def poll(self, loads, check, sleep=2, pre=None, mid=None):
        top = self.newlabel('Lp'); done = self.newlabel('Ld'); chk = self.newlabel('Lc')
        if pre: self(f's_sleep {pre}')
        if mid:
            loads(); mid(); self(f's_branch {chk}')
        self.label(top)
        loads()
        self.label(chk)
        self('s_waitcnt vmcnt(0)')
        check()
        self(f'''s_cbranch_vccz {done}
s_add_u32 {SPIN}, {SPIN}, 1
s_cmp_gt_u32 {SPIN}, {SPINMAX}
s_cbranch_scc1 {done}
s_sleep {sleep}
s_branch {top}''')
        self.label(done)
    def poll_masked(self, items, t, sleep=2, tag=False):
        top = self.newlabel('Lm'); done = self.newlabel('Lmd')
        for ld, regs in items: self(ld)
        self.label(top)
        self('s_waitcnt vmcnt(0)\ns_mov_b32 s49, 0')
        for ld, regs in items:
            skip = self.newlabel('Lms')
            if tag: self.chk_tag(regs, t)
            else: self.chk_sent(regs, t)
            self(f's_cbranch_vccz {skip}\ns_mov_b64 exec, vcc\n{ld}\ns_mov_b64 exec, -1\ns_mov_b32 s49, 1')
            self.label(skip)
        self(f'''s_cmp_eq_u32 s49, 0
s_cbranch_scc1 {done}
s_add_u32 {SPIN}, {SPIN}, 1
s_cmp_gt_u32 {SPIN}, {SPINMAX}
s_cbranch_scc1 {done}
s_sleep {sleep}
s_branch {top}''')
        self.label(done)
        self('s_waitcnt vmcnt(0)')
    def lds_wait(self, addr, n, off=0, sleep=1, extra=None, t=8):
        top = self.newlabel('Lw'); done = self.newlabel('Lwd')
        self.label(top)
        self(f'ds_read_b32 v{t}, v{addr} offset:{off}')
        if extra: self(extra)
        self(f'''s_waitcnt lgkmcnt(0)
v_cmp_gt_u32 vcc, {n}, v{t}
s_cbranch_vccz {done}
s_add_u32 {SPIN}, {SPIN}, 1
s_cmp_gt_u32 {SPIN}, {SPINMAX}
s_cbranch_scc1 {done}
s_sleep {sleep}
s_branch {top}''')
        self.label(done)
    def probe(self, va, t, off=0, sleep=1, post=None, tag=False, mask=1):
        self.exec_mask(mask)
        def ck():
            if tag: self(f'v_cmp_ne_u32 vcc, {TAG}, v{t}')
            else: self(f'v_cmp_eq_u32 vcc, -1, v{t}')
        self.poll(lambda: self(f'global_load_dword v{t}, v{va}, {WS} offset:{off} sc1'), ck, sleep=sleep)
        self.full()
        if post: self(f's_sleep {post}')
    def chk_sent(self, regs, t):
        regs = list(regs)
        if len(regs) == 1:
            self(f'v_cmp_eq_u32 vcc, -1, v{regs[0]}'); return
        if len(regs) == 2: self(f'v_max_u32 v{t}, v{regs[0]}, v{regs[1]}'); rest = []
        else: self(f'v_max3_u32 v{t}, v{regs[0]}, v{regs[1]}, v{regs[2]}'); rest = regs[3:]
        while rest:
            if len(rest) >= 2: self(f'v_max3_u32 v{t}, v{t}, v{rest[0]}, v{rest[1]}'); rest = rest[2:]
            else: self(f'v_max_u32 v{t}, v{t}, v{rest[0]}'); rest = []
        self(f'v_cmp_eq_u32 vcc, -1, v{t}')
    def chk_tag(self, regs, t):
        regs = list(regs)
        self(f'v_cmp_ne_u32 vcc, {TAG}, v{regs[0]}')
        for r in regs[1:]:
            self(f'v_cmp_ne_u32 s[50:51], {TAG}, v{r}\ns_or_b64 vcc, vcc, s[50:51]')
    def san(self, regs):
        for r in regs: self(f'v_min_u32 v{r}, -2, v{r}')
    def lanes_lt(self, n):
        assert n <= 64
        lo = (1 << min(n, 32)) - 1; hi = (1 << max(n - 32, 0)) - 1
        self(f's_mov_b32 exec_lo, {lo:#x}\ns_mov_b32 exec_hi, {hi:#x}')
    def exec_mask(self, m):
        self(f's_mov_b32 exec_lo, {m & 0xffffffff:#x}\ns_mov_b32 exec_hi, {m >> 32:#x}')
    def full(self): self('s_mov_b64 exec, -1')
    def bar(self): self('s_waitcnt lgkmcnt(0)\ns_barrier')
    def get_tag(self):
        self(f'''v_readfirstlane_b32 {TAG}, v15
s_mul_i32 {TAG}, {TAG}, 0x9E3779B1
s_add_u32 {TAG}, {TAG}, 0x7F4A7C15''')
    def ready_publish(self):
        self('s_getreg_b32 s41x, hwreg(HW_REG_XCC_ID, 0, 4)\ns_waitcnt vmcnt(0)'.replace('s41x', 's51'))
        self.get_tag()
        self(f'''s_lshl_b32 s40, s2, 4
s_add_u32 s40, s40, {READY}
v_mov_b32 v4, s40
v_mov_b32 v6, {TAG}
v_mov_b32 v7, s51''')
        self.lanes_lt(1)
        self(f'global_store_dwordx2 v4, v[6:7], {WS} sc1')
        self.full()
    def st_local(self, mism, *sts):
        far = self.newlabel('Lsf'); done = self.newlabel('Lsd')
        if self.P['local']:
            self(f's_cmp_eq_u64 {mism}, 0\ns_cbranch_scc0 {far}')
            for st in sts: self(st)
            self(f's_branch {done}')
            self.label(far)
        for st in sts: self(st + ' sc1')
        self.label(done)
    def ready_check(self, half, v=8):
        self(f'v_lshlrev_b32 v{v+2}, 4, v1\nv_add_u32 v{v+2}, {READY + 2048*half}, v{v+2}')
        def ld():
            for i in range(2): self(f'global_load_dword v{v+i}, v{v+2}, {WS} offset:{1024*i} sc1')
        self.poll(ld, lambda: self.chk_tag([v, v + 1], 0), sleep=4)
    def gemv2(self, D, A, F, first=True):
        for e in range(8):
            c = '0' if first else vr(D + 4*e, 4)
            self(f'v_mfma_f32_16x16x32_bf16 {vr(D+4*e,4)}, {vr(A,4)}, {vr(F+4*e,4)}, {c}')
    def pack2(self, o, D):
        for i in range(4):
            self(f'v_add_f32_dpp v{o+i}, v{D+4*i+1}, v{D+4*i} row_ror:8 row_mask:0xf bank_mask:0x3')
        for i in range(4):
            self(f'v_add_f32_dpp v{o+i}, v{D+4*(i+4)}, v{D+4*(i+4)+1} row_ror:8 row_mask:0xf bank_mask:0xc')
    def load_rows(self, dst, nreg, va, base, pitch, rows=8, pol='nt', t=None):
        op = {1: 'dword', 2: 'dwordx2', 4: 'dwordx4'}[nreg]
        per = 4095 // pitch + 1 if pitch <= 4095 else 1
        for j in range(rows):
            k = j % per
            self(f'global_load_{op} {vr(dst + j*nreg, nreg)}, v{va}, {base} offset:{k*pitch} {pol}')
            if k == per - 1 and j + 1 < rows: self(f'v_add_u32 v{va}, {per*pitch}, v{va}')

def consts(a):
    a(f'''s_mov_b32 {PLO}, 0x05040100
s_mov_b32 {PHI}, 0x07060302
s_mov_b32 {SPIN}, 0
s_mov_b32 s56, {L2E:#x}
s_mov_b32 s57, {L2E_LO:#x}
s_mov_b32 s58, {LN2:#x}
s_mov_b32 s59, {SCALE:#x}''')

def code_warm(a, v=4):
    n = a.P['warm_loads']
    a(f'''s_lshr_b32 s50, s2, 3
s_lshl_b32 s50, s50, 10
v_lshlrev_b32 v{v}, 4, v1
v_add_u32 v{v}, s50, v{v}
v_min_u32 v{v}, CODE_LAST, v{v}
global_load_dword v14, v{v}, s[36:37]''')
    if n > 1:
        a(f'''v_add_u32 v{v}, 32768, v{v}
v_min_u32 v{v}, CODE_LAST, v{v}
global_load_dword v14, v{v}, s[36:37]''')

CT, SPB, PB, STB, MISC = 0, 98304, 98304 + 34816, 98304 + 34816 + 9216, 98304 + 34816 + 9216 + 1024
def blk2_addr(a, v, srow, pitch, scol):
    a(f'''v_lshrrev_b32 v{v}, 3, v2
v_lshlrev_b32 v{v}, 5, v{v}
v_lshl_add_u32 v{v}, v3, 3, v{v}
v_add_u32 v{v}, {srow}, v{v}
v_mul_u32_u24 v{v}, {pitch}, v{v}
v_and_b32 v{v+1}, 7, v2
v_lshl_add_u32 v{v}, v{v+1}, 4, v{v}
v_add_u32 v{v}, {scol}, v{v}''')
def frag2_addr(a, v, sbase):
    a(f'v_and_b32 v{v}, 1, v2\nv_lshlrev_b32 v{v}, 6, v{v}\nv_lshl_add_u32 v{v}, v3, 4, v{v}\nv_add_u32 v{v}, {sbase}, v{v}')
def pack_addr(a, v, sbase):
    a(f'v_and_b32 v{v}, 7, v2\nv_lshlrev_b32 v{v}, 5, v{v}\nv_lshrrev_b32 v{v+1}, 3, v2\nv_lshl_add_u32 v{v}, v{v+1}, 4, v{v}\nv_add_u32 v{v}, {sbase}, v{v}')
def gemv_out_lds(a, D, base):
    a.pack2(8, D)
    a.lanes_lt(16)
    a('ds_write_b128 v14, v[8:11]')
    a.full()
def gemv_out_prep(a, base):
    a(f's_lshl_b32 s40, s3, 8\ns_add_u32 s40, s40, {base}')
    pack_addr(a, 14, 's40')
def tree(a, regs, stride=1, n=1):
    regs = list(regs)
    while len(regs) > 1:
        nxt = []
        for i in range(0, len(regs) - 1, 2):
            for k in range(n): a(f'v_add_f32 v{regs[i]+k}, v{regs[i]+k}, v{regs[i+1]+k}')
            nxt.append(regs[i])
        if len(regs) & 1: nxt.append(regs[-1])
        regs = nxt
def ln_finish(a, m, v, ri):
    a.rnd(m, m); a.rnd(v, v)
    a(f'v_add_f32 v{v}, {f2u(1e-5):#x}, v{v}')
    a.rnd(v, v)
    a(f'v_sqrt_f32 v{v}, v{v}')
    a.rnd(v, v)
    a.recip(ri, v, ri + 1)
def neg1(a, r=8):
    for i in range(4): a(f'v_mov_b32 v{r+i}, -1')

JP, CP = 3200, 51328
def role_B(a):
    P = a.P
    a(f'''s_and_b32 s39, s2, 7
s_lshr_b32 s38, s2, 3            ; j
s_mul_i32 s55, s38, 43
s_lshr_b32 s55, s55, 7           ; Tp = j/3
s_mul_i32 s40, s55, 3
s_sub_u32 s40, s38, s40          ; cbl
s_lshl_b32 s40, s40, 2
s_mul_i32 s45, s39, 12
s_add_u32 s45, s45, s40
s_lshr_b32 s40, s3, 1
s_add_u32 s45, s45, s40
s_and_b32 s53, s3, 1
s_lshl_b32 s42, s55, 1
s_add_u32 s53, s53, s42          ; T = 2Tp + (w&1)
v_mov_b32 v12, 0
s_lshl_b32 s40, s53, 6
s_lshl_b32 s41, s45, 7''')
    blk2_addr(a, 4, 's40', 12288, 's41')
    a(f'''v_lshlrev_b32 v6, 2, v1
s_lshl_b32 s42, s3, 3
v_and_b32 v7, 7, v1
v_add_u32 v7, s42, v7
v_lshrrev_b32 v8, 5, v1
v_lshl_add_u32 v13, v8, 6, v7
s_min_u32 s40, s55, 4
s_lshl_b32 s40, s40, 7
v_add_u32 v7, s40, v13
v_lshlrev_b32 v7, 1, v7
s_waitcnt lgkmcnt(0)''')
    a.stamp('start')
    for k in range(5): a(f'global_load_dword v{16+k}, v6, {X} offset:{256*k}')
    a(f'global_load_ushort v21, v7, {X}')
    a('s_cmp_lt_u32 s2, 120\ns_cbranch_scc0 LB_nowq')
    a.load_rows(64, 4, 4, WQ, 12288)
    a.label('LB_nowq')
    a(f'global_load_dword v15, v12, {WS} sc1\ns_branch LB2')

def role_B2(a):
    P = a.P
    a.label('LB2')
    a(f'''s_mov_b32 s49, 0
s_mul_i32 s54, s39, 10
s_add_u32 s54, s54, s38
s_add_u32 s40, s2, 0
s_cmp_lt_u32 s38, 10
s_cselect_b32 s54, s54, s40
s_getreg_b32 s16, hwreg(HW_REG_XCC_ID, 0, 4)''')
    a.wave_is('eq', 6, 'LB_not6')
    code_warm(a, 24)
    if P['tlb']:
        a(f'''v_lshlrev_b32 v24, 17, v1
global_load_dword v14, v24, {WS} offset:64 nt''')
    a('s_mov_b32 s49, 1')
    a.label('LB_not6')
    a.wave_is('eq', 7, 'LB_not7')
    neg1(a, 28)
    a(f'''s_mul_i32 s50, s39, 2560
s_lshl_b32 s51, s38, 8
s_add_u32 s50, s50, s51
s_add_u32 s50, s50, {H6}
s_lshl_b32 s51, s54, 8
s_add_u32 s51, s51, {MODR - 104*256}
s_cmp_lt_u32 s54, 104
s_cselect_b32 s50, s50, s51
v_lshl_add_u32 v24, v2, 4, s50
s_cmp_lt_u32 s54, 80
s_cbranch_scc1 LB_c1
s_cmp_lt_u32 s54, 104
s_cbranch_scc0 LB_c1
s_mul_i32 s50, s54, 2560
s_add_u32 s50, s50, {H7Y - 80*2560}
v_lshl_add_u32 v24, v1, 4, s50
global_store_dwordx4 v24, v[28:31], {WS} sc1
global_store_dwordx4 v24, v[28:31], {WS} offset:1024 sc1
v_and_b32 v24, 31, v1
v_lshl_add_u32 v24, v24, 4, s50
v_add_u32 v24, 2048, v24
LB_c1:
global_store_dwordx4 v24, v[28:31], {WS} sc1''')
    a('s_mov_b32 s49, 1')
    a.label('LB_not7')
    a(f'''s_lshl_b32 s46, s2, 6
s_lshl_b32 s41, s3, 3
s_add_u32 s46, s46, s41
s_mul_i32 s46, s46, 1536           ; (64b+8w)*1536
s_and_b32 s47, s3, 1
s_lshl_b32 s47, s47, 3             ; 8*(w&1)
s_mul_i32 s48, s3, 12288
v_cmp_le_u32 vcc, 32, v1
v_add_u32 v56, 64, v1
v_subrev_u32 v57, 32, v1
v_cndmask_b32 v56, v56, v57, vcc
v_cndmask_b32 v58, 0, 1, vcc
v_xor_b32 v56, v56, v58
v_mul_u32_u24 v58, 1536, v58
v_add_u32 v57, 32, v1
v_xor_b32 v57, 1, v57''')
    def dma(lo, hi, other=0):
        for i in range(lo, hi):
            k, j = divmod(i, 3)
            src = ('v1', 'v56', 'v57')[j]
            a(f's_add_u32 s43, s47, {2*k}\nv_xor_b32 v8, s43, {src}')
            a(f's_add_u32 s44, s46, {2*k*1536 + (1536 if j == 2 else 0) + other*32*1536}')
            if j == 1: a('v_lshl_add_u32 v8, v8, 4, v58\nv_add_u32 v8, s44, v8')
            else: a('v_lshl_add_u32 v8, v8, 4, s44')
            a(f's_add_u32 m0, s48, {i*1024 + other*49152}\nglobal_load_lds_dwordx4 v8, {CKV} nt')
    N1 = P['dma1']
    a(f'v_mov_b32 v253, {STB + 520}\nds_write_b32 v253, v12')
    a.bar()
    N0 = min(P['dma0'], N1)
    def early(lab): a(f's_cmp_lt_u32 s39, {P["gsplit"]}\ns_cbranch_scc0 {lab}')
    def vw(base):
        if N0 == N1: a(f's_waitcnt vmcnt({base+N1})'); return
        l1 = a.newlabel('Lv'); l2 = a.newlabel('Lv')
        early(l1); a(f's_waitcnt vmcnt({base+N1})\ns_branch {l2}'); a.label(l1); a(f's_waitcnt vmcnt({base+N0})'); a.label(l2)
    dma(0, N0)
    if N0 < N1:
        early('LB_d0'); dma(N0, N1); a.label('LB_d0')
    consts(a)
    a('s_cmp_ge_u32 s2, 120\ns_cselect_b32 s49, 1, s49\ns_cmp_eq_u32 s49, 0\ns_cbranch_scc1 LB_w8')
    vw(0)
    a.label('LB_w8')
    vw(9)
    for k in range(5): a(f'v_lshlrev_b32 v{24+2*k}, 16, v{16+k}\nv_and_b32 v{25+2*k}, 0xffff0000, v{16+k}')
    a('v_add_f32 v22, v24, v25')
    for k in range(2, 10): a(f'v_add_f32 v22, v22, v{24+k}')
    a.wave_red('v_add_f32', 22, 23)
    a(f'v_mul_f32 v22, {f2u(1/640):#x}, v22\nv_mov_b32 v23, 0')
    for k in range(10): a(f'v_sub_f32 v{24+k}, v{24+k}, v22\nv_fmac_f32 v23, v{24+k}, v{24+k}')
    a.wave_red('v_add_f32', 23, 24)
    a(f'v_mul_f32 v23, {f2u(1/640):#x}, v23')
    ln_finish(a, 22, 23, 24)
    a('v_lshlrev_b32 v21, 16, v21\nv_sub_f32 v21, v21, v22')
    a.rnd(21, 21)
    a.div(20, 21, 23, 24, 25)
    a.rnd(20, 20)
    a('s_cmp_lt_u32 s2, 120\ns_cbranch_scc0 LB_dma0')
    a(f'''s_lshl_b32 s40, s55, 14
s_lshl_b32 s42, s3, 10
s_add_u32 s40, s40, s42
s_add_u32 s40, s40, {H1}
v_lshl_add_u32 v4, v1, 4, s40
v_add_u32 v9, 8192, v4
v_lshlrev_b32 v5, 1, v13
v_add_u32 v5, {MISC}, v5
s_lshl_b32 s40, s39, 4
s_add_u32 s40, s40, {READY + 2048}
v_lshl_add_u32 v10, v2, 7, s40
s_mul_i32 s40, s45, 43
s_lshr_b32 s40, s40, 7
s_mul_i32 s42, s40, 3
s_sub_u32 s42, s45, s42
s_lshl_b32 s42, s42, 9
s_mul_i32 s40, s40, 15360
s_add_u32 s40, s40, s42
s_mul_i32 s42, s53, 1536
s_add_u32 s40, s40, s42
s_add_u32 s40, s40, {H1B}''')
    pack_addr(a, 6, 0)
    a(f'v_lshlrev_b32 v6, 1, v6\nv_lshl_add_u32 v6, v3, 4, v6\nv_add_u32 v6, s40, v6\nv_cmp_eq_u32 s[42:43], 1, v3')
    a(f's_and_b32 s40, s3, 1\ns_lshl_b32 s40, s40, 7\ns_add_u32 s40, s40, {MISC}')
    frag2_addr(a, 7, 's40')
    vw(0)
    a.stamp('wq')
    a.get_tag()
    a(f'v_mov_b32 v61, {TAG}\nv_mov_b32 v63, {TAG}')
    a.poll(lambda: a(f'global_load_dwordx4 v[16:19], v4, {WS} sc1\nglobal_load_dwordx4 v[24:27], v9, {WS} sc1\nglobal_load_dwordx2 v[28:29], v10, {WS} sc1'),
           lambda: a.chk_tag([17, 19, 25, 27], 8), sleep=P['sl_h1'], pre=P['pre_h1'], mid=lambda: a.perm_block(96, 64))
    a.stamp('h1')
    a('s_setprio 3')
    a('''v_add_f32_dpp v16, v16, v16 row_ror:8 row_mask:0xf bank_mask:0xf
v_add_f32_dpp v18, v18, v18 row_ror:8 row_mask:0xf bank_mask:0xf
v_add_f32_dpp v24, v24, v24 row_ror:8 row_mask:0xf bank_mask:0xf
v_add_f32_dpp v26, v26, v26 row_ror:8 row_mask:0xf bank_mask:0xf
v_cmp_ne_u32 s[50:51], s16, v29
v_cmp_ne_u32 vcc, s32, v28
s_or_b64 s[50:51], s[50:51], vcc
v_permlane16_swap_b32 v16, v18
v_permlane16_swap_b32 v24, v26
v_add_f32 v16, v16, v18
v_add_f32 v24, v24, v26
v_permlane32_swap_b32 v16, v24
v_add_f32 v16, v16, v24
v_mov_b32 v18, v16
v_permlane16_swap_b32 v16, v18''')
    a.rnd(16, 16); a.rnd(18, 18)
    a('v_add_f32 v18, 1.0, v18')
    a.rnd(18, 18)
    a('v_mul_f32 v18, v20, v18')
    a.rnd(18, 18)
    a('v_add_f32 v16, v18, v16\nv_cvt_pk_bf16_f32 v16, v16, v16\nds_write_b16 v5, v16')
    a.bar()
    a('ds_read_b128 v[16:19], v7\ns_waitcnt lgkmcnt(0)')
    a.gemv2(24, 16, 96, True)
    a.pack2(8, 24)
    a('v_cndmask_b32 v60, v8, v10, s[42:43]\nv_cndmask_b32 v62, v9, v11, s[42:43]')
    a.lanes_lt(32)
    a.st_local('s[50:51]', f'global_store_dwordx4 v6, v[60:63], {WS}')
    a.full()
    a.stamp('qpub')
    a('s_setprio 0\ns_barrier')
    if P['sl_dma2']: a(f's_sleep {P["sl_dma2"]}')
    a('s_branch LB_dma')
    a.label('LB_dma0')
    a.get_tag()
    a.label('LB_dma')
    a.wave_is('eq', 7, 'LB_nrp')
    a.ready_publish()
    a.label('LB_nrp')
    def bump():
        a('v_mov_b32 v8, 1\ns_mov_b64 exec, 1\nds_add_u32 v253, v8\ns_mov_b64 exec, -1')
    def ckwait(lab): a.lds_wait(253, 8)
    if P['dma8']: dma(N1, 12)
    a.wave_is('lt', 4, 'LB_qa')
    if N0 < N1:
        a(f's_cmp_lt_u32 s39, {P["gsplit"]}\ns_cbranch_scc1 LB_d1')
        for i in range(N0, N1):
            dma(i, i + 1); dma(i, i + 1, 1)
        a.label('LB_d1')
    if not P['dma8']:
        for i in range(N1, 12):
            dma(i, i + 1); dma(i, i + 1, 1)
    a(f'''v_lshrrev_b32 v4, 2, v2            ; rr
v_lshl_add_u32 v4, v3, 3, v4       ; 8g+rr
v_and_b32 v5, 3, v1                ; cc
s_mul_i32 s40, s3, 24
v_add_u32 v5, s40, v5              ; 24w+cc''')
    for t in range(6):
        for sub in range(2):
            a(f'''v_add_u32 v6, {4*sub}, v4
v_and_b32 v7, 15, v6
v_add_u32 v8, {4*t}, v5
v_xor_b32 v7, v7, v8
v_mul_u32_u24 v6, 1536, v6
v_lshl_add_u32 v{40+t*2+sub}, v7, 4, v6''')
    a('s_waitcnt vmcnt(0)')
    bump()
    ckwait('LB_ck0')
    a.stamp('ckv')
    for t in range(6):
        for sub in range(2):
            for hf in range(2):
                for ks in range(2):
                    r = 64 + ((t*2+hf)*2+ks)*4 + 2*sub
                    a(f'ds_read_b64_tr_b16 {vr(r,2)}, v{40+t*2+sub} offset:{ks*49152 + hf*8}')
    a(f'''s_mul_i32 s41, s2, 384
s_mul_i32 s40, s3, 49152
s_add_u32 s41, s41, s40
s_add_u32 s41, s41, {H4}
s_mov_b32 s40, 196608
v_lshrrev_b32 v61, 3, v1
v_mul_lo_u32 v52, v61, s40
v_and_b32 v8, 7, v1
v_lshl_add_u32 v52, v8, 4, v52
v_add_u32 v52, s41, v52
s_mul_i32 s40, s3, 4608
s_add_u32 s40, s40, {SPB}
v_mul_u32_u24 v60, 144, v2
v_lshl_add_u32 v60, v3, 4, v60
v_add_u32 v60, s40, v60
v_mul_u32_u24 v61, 144, v61
v_lshl_add_u32 v61, v8, 4, v61
v_add_u32 v61, s40, v61
v_add_u32 v53, {8*196608}, v52
v_add_u32 v54, {16*196608}, v52
v_add_u32 v55, {24*196608}, v52
s_lshl_b32 s40, s3, 11
s_lshl_b32 s41, s2, 4
s_add_u32 s40, s40, s41
s_add_u32 s40, s40, {AUX}
v_lshl_add_u32 v56, v1, 13, s40
v_and_b32 v57, 31, v1
v_lshlrev_b32 v57, 4, v57
v_add_u32 v57, {STB}, v57
s_branch LB_noqk''')
    a.label('LB_qa')
    a('s_sub_u32 s45, s3, 4\ns_mul_i32 s40, s45, 24\nv_add_u32 v5, s40, v3\nv_mul_u32_u24 v4, 1536, v2')
    for s_ in range(6):
        a(f'v_add_u32 v6, {4*s_}, v5\nv_xor_b32 v6, v6, v2\nv_lshl_add_u32 v{240+2*s_}, v6, 4, v4\nv_add_u32 v{241+2*s_}, 49152, v{240+2*s_}')
    a(f'''s_mul_i32 s40, s45, 384
s_add_u32 s40, s40, {H2}
v_lshrrev_b32 v8, 3, v1
v_mul_u32_u24 v4, 1536, v8
v_and_b32 v9, 7, v1
v_xor_b32 v9, v9, v8
v_lshl_add_u32 v4, v9, 4, v4
v_add_u32 v4, s40, v4
v_add_u32 v5, 12288, v4
v_add_u32 v6, 24576, v4
v_add_u32 v14, 36864, v4
s_and_b32 s41, s2, 3
s_mul_i32 s41, s41, 1536
s_add_u32 s40, s40, s41
s_add_u32 s40, s40, 320
v_mul_u32_u24 v9, 6144, v1
v_add_u32 v9, s40, v9
s_mul_i32 s53, s45, {32*272}
s_add_u32 s53, s53, {SPB}          ; slots 0..7
s_lshl_b32 s55, s45, 12
s_add_u32 s41, s55, {MISC + 8192 + 256 - 16384}
s_add_u32 s55, s55, {PB - 8192}
s_cmp_lt_u32 s45, 2
s_cselect_b32 s55, s55, s41
v_and_b32 v8, 7, v2
v_lshlrev_b32 v13, 7, v2           ; (p>>3)*1024 + (p&7)*128
v_xor_b32 v11, v3, v8
v_lshl_add_u32 v11, v11, 4, v13
v_xor_b32 v13, 64, v11
v_add_u32 v15, s55, v13
v_add_u32 v13, s53, v13
v_add_u32 v160, s55, v11
v_add_u32 v11, s53, v11
s_mul_i32 s40, s45, {32*272}
s_add_u32 s40, s40, {SPB}
v_mul_u32_u24 v7, 272, v2
v_lshl_add_u32 v7, v3, 4, v7
v_add_u32 v7, s40, v7
s_mov_b32 s52, 0
s_waitcnt vmcnt(0)''')
    bump()
    a.ready_check(1, 16)
    a('v_mov_b32 v10, 0')
    def cf():
        for kt in range(4):
            for s_ in range(6):
                a(f'ds_read_b128 {vr(64+(kt*6+s_)*4,4)}, v{240 + 2*s_ + (kt >> 1)} offset:{(kt & 1)*24576}')
    a(f'''LB_q0:
s_mov_b64 exec, {P['k_h2']}
global_load_dword v10, v9, {WS} sc1
s_mov_b64 exec, -1
s_cmp_eq_u32 s52, 0
s_cbranch_scc0 LB_q1
ds_read_b32 v8, v253
s_waitcnt lgkmcnt(0)
v_cmp_gt_u32 vcc, 8, v8
s_cbranch_vccnz LB_q1
s_mov_b32 s52, 1''')
    cf()
    a(f'''LB_q1:
s_waitcnt vmcnt(0)
v_cmp_eq_u32 vcc, -1, v10
s_cbranch_vccz LB_h2go
s_add_u32 {SPIN}, {SPIN}, 1
s_cmp_gt_u32 {SPIN}, {SPINMAX}
s_cbranch_scc1 LB_h2go
s_sleep {P['sl_pr2']}
s_branch LB_q0
LB_h2go:''')
    if P['post_h2']: a(f's_sleep {P["post_h2"]}')
    def ld():
        for l3 in range(3):
            for o in range(4):
                slot = l3*4 + o
                base = 's53' if slot < 8 else 's55'
                a(f's_add_u32 m0, {base}, {slot*1024 - 128*l3}\nglobal_load_lds_dwordx4 v{(4, 5, 6, 14)[o]}, {WS} offset:{128*l3} sc1')
    def mid():
        a('s_cmp_eq_u32 s52, 0\ns_cbranch_scc0 LB_q2')
        ckwait('LB_ck1')
        cf()
        a.label('LB_q2')
    ld(); mid()
    a('s_setprio 3\ns_branch LB_qm')
    a.label('LB_qr')
    ld()
    a.label('LB_qm')
    def rd(l3):
        for par in range(2):
            for ht in range(2):
                va = ((11, 13), (160, 15))[l3 == 2][par]
                a(f'ds_read_b128 {vr(16+((2*l3+par)*2+ht)*4,4)}, v{va} offset:{(l3*4 + 2*ht)*1024}')
    def mm(l3):
        for s_ in (2*l3, 2*l3+1):
            for kt in range(4):
                for ht in range(2):
                    d = 224 + (kt*2+ht)*4
                    a(f'v_mfma_f32_16x16x32_bf16 {vr(d,4)}, {vr(64+(kt*6+s_)*4,4)}, {vr(16+(s_*2+ht)*4,4)}, {"0" if s_ == 0 else vr(d,4)}')
                    if kt*2+ht < 4:
                        q = 16 + s_*8 + 2*(kt*2+ht)
                        a(f'v_max_u32 v8, v{q}, v{q+1}' if (s_ == 0 and kt*2+ht == 0) else f'v_max3_u32 v8, v8, v{q}, v{q+1}')
    a('s_waitcnt vmcnt(8)'); rd(0)
    a('s_waitcnt vmcnt(4)'); rd(1)
    a('s_waitcnt lgkmcnt(4)');
    a('s_waitcnt vmcnt(0)' if P['h2w'] else 's_nop 0')
    if P['h2w']: rd(2)
    mm(0)
    if not P['h2w']:
        a('s_waitcnt vmcnt(0)'); rd(2)
    a.stamp('h2')
    a('s_waitcnt lgkmcnt(0)' if P['stamps'] else 's_waitcnt lgkmcnt(4)')
    mm(1)
    a('s_waitcnt lgkmcnt(0)')
    mm(2)
    a(f'''v_cmp_eq_u32 vcc, -1, v8
s_cbranch_vccz LB_qd
s_add_u32 {SPIN}, {SPIN}, 1
s_cmp_gt_u32 {SPIN}, {SPINMAX}
s_cbranch_scc1 LB_qd
s_sleep {P['sl_h2']}
s_branch LB_qr
LB_qd:''')
    for kt in range(4):
        for ht in range(2): a(f'ds_write_b128 v7, {vr(224+(kt*2+ht)*4,4)} offset:{ht*16*272 + kt*64}')
    a.label('LB_noqk')
    a(f'''s_lshl_b32 s40, s3, 2
v_add_u32 v9, s40, v3              ; head = 4w+g
v_mul_u32_u24 v4, 272, v9
v_lshl_add_u32 v4, v2, 4, v4
v_add_u32 v4, {SPB}, v4
v_mul_u32_u24 v5, 144, v9
v_lshl_add_u32 v5, v2, 3, v5
v_add_u32 v5, {PB}, v5
s_lshl_b32 s40, s2, 4
s_add_u32 s40, s40, {H3}
v_lshl_add_u32 v6, v9, 11, s40
v_lshlrev_b32 v7, 4, v9
v_add_u32 v7, {STB}, v7
v_lshlrev_b32 v10, 2, v2           ; 4*kq
v_mov_b32 v45, {TAG}
v_mov_b32 v47, {TAG}
s_lshl_b32 s40, s2, 7
s_add_u32 s40, s40, {DB3}
v_mov_b32 v8, s40
v_cmp_eq_u32 vcc, 1, v1
v_cndmask_b32 v6, v6, v8, vcc
s_cmp_eq_u32 s3, 7
s_cselect_b32 s49, 2, 0
s_or_b32 s49, s49, 0x00010001
v_mov_b32 v58, {STB + 512}
v_mov_b32 v13, 0
ds_write_b64 v58, v[12:13]
ds_write_b32 v58, v12 offset:12
ds_write_b32 v58, v12 offset:16''')
    for i in range(4): a(f'v_add_u32 v{40+i}, {i}, v10')
    a.bar()
    a.stamp('qk')
    a('s_setprio 3')
    for i in range(4): a(f'ds_read_b128 {vr(16+4*i,4)}, v4 offset:{8704*i}')
    a(f'''v_mul_u32_u24 v4, 144, v2
v_lshl_add_u32 v4, v3, 4, v4
v_add_u32 v4, {PB}, v4
v_mov_b32 v11, {NEGINF:#x}
s_mov_b32 s40, 0xffffffc0
s_waitcnt lgkmcnt(0)''')
    for i in (0, 2):
        a(f'v_pk_add_f32 {vr(16+i,2)}, {vr(16+i,2)}, {vr(20+i,2)}\nv_pk_add_f32 {vr(24+i,2)}, {vr(24+i,2)}, {vr(28+i,2)}')
    for i in (0, 2): a(f'v_pk_add_f32 {vr(32+i,2)}, {vr(16+i,2)}, {vr(24+i,2)}')
    for i in range(4): a(f'v_and_or_b32 v{36+i}, v{32+i}, s40, v{40+i}')
    a('v_max3_f32 v50, v36, v37, v38\nv_max_f32 v50, v50, v39')
    a('v_cvt_pk_bf16_f32 v36, v32, v33\nv_cvt_pk_bf16_f32 v37, v34, v35')
    fill = ['v_lshlrev_b32 v32, 16, v36\nv_and_b32 v33, 0xffff0000, v36', 'v_lshlrev_b32 v34, 16, v37\nv_and_b32 v35, 0xffff0000, v37',
            'v_mul_f32 v32, s59, v32\nv_mul_f32 v33, s59, v33', 'v_mul_f32 v34, s59, v34\nv_mul_f32 v35, s59, v35']
    for k, f in zip((8, 4, 2, 1), fill):
        a(f'v_max_f32_dpp v50, v50, v50 row_ror:{k} row_mask:0xf bank_mask:0xf')
        a(f)
    a('''v_cvt_pk_bf16_f32 v44, v50, v50
v_cvt_pk_bf16_f32 v36, v32, v33
v_and_b32 v44, 0xffff0000, v44
v_cvt_pk_bf16_f32 v37, v34, v35
v_mul_f32 v44, s59, v44
v_and_b32 v46, 63, v50
v_cvt_pk_bf16_f32 v44, v44, v44
v_lshlrev_b32 v32, 16, v36
v_and_b32 v44, 0xffff0000, v44
s_mov_b32 exec_lo, s49
s_mov_b32 exec_hi, 0x00010001''')
    a(f'global_store_dwordx4 v6, v[44:47], {WS} sc1')
    a.full()
    a.stamp('h3pub')
    a('''v_and_b32 v33, 0xffff0000, v36
v_lshlrev_b32 v34, 16, v37
v_and_b32 v35, 0xffff0000, v37''')
    for i in range(4): a(f'v_sub_f32 v{24+i}, v{32+i}, v44')
    for i in range(4): a(f'v_mul_f32 v{24+i}, s56, v{24+i}')
    for i in range(4): a(f'v_exp_f32 v{24+i}, v{24+i}')
    a('''v_cvt_pk_bf16_f32 v36, v24, v25
v_cvt_pk_bf16_f32 v37, v26, v27
ds_write_b64 v5, v[36:37]
v_add_f32 v49, v24, v25
v_add_f32 v48, v26, v27
v_add_f32 v49, v49, v48''')
    def deferred():
        for i in range(4):
            a(f'v_cmp_eq_u32 vcc, v{40+i}, v46\nv_cndmask_b32 v{32+i}, v{32+i}, v11, vcc')
        a('v_max3_f32 v50, v32, v33, v34\nv_max_f32 v50, v50, v35')
        for k in (8, 4, 2, 1):
            a(f'v_max_f32_dpp v50, v50, v50 row_ror:{k} row_mask:0xf bank_mask:0xf\nv_add_f32_dpp v49, v49, v49 row_ror:{k} row_mask:0xf bank_mask:0xf')
        for i in range(4): a(f'v_sub_f32 v{32+i}, v{32+i}, v50')
        for i in range(4): a(f'v_mul_f32 v{32+i}, s56, v{32+i}')
        for i in range(4): a(f'v_exp_f32 v{32+i}, v{32+i}')
        a('''v_add_f32 v51, v32, v33
v_add_f32 v48, v34, v35
v_add_f32 v51, v51, v48
v_cvt_pk_bf16_f32 v38, v32, v33
v_cvt_pk_bf16_f32 v39, v34, v35
ds_write_b64 v5, v[38:39] offset:4608
v_mov_b32 v48, v44''')
        a.row_red('v_add_f32', [51])
        a('ds_write_b128 v7, v[48:51]\nv_mov_b32 v8, 1\ns_mov_b64 exec, 1\nds_add_u32 v58, v8 offset:16\ns_mov_b64 exec, -1')
    a.stamp('xa')
    a.bar()
    a.stamp('xb')
    a.wave_is('lt', 4, 'LB_lw')
    for ht in range(2):
        for ks in range(2): a(f'ds_read_b128 {vr(16+(ht*2+ks)*4,4)}, v4 offset:{ht*16*144 + ks*64}')
    a('s_waitcnt lgkmcnt(0)')
    def unit(i):
        cl, ht = i >> 1, i & 1
        for tp in range(2):
            for hf in range(2):
                d = 160 + (i % 3)*16 + (tp*2+hf)*4
                t = cl*2 + tp
                for ks in range(2):
                    a(f'v_mfma_f32_16x16x32_bf16 {vr(d,4)}, {vr(64+((t*2+hf)*2+ks)*4,4)}, {vr(16+(ht*2+ks)*4,4)}, {"0" if ks == 0 else vr(d,4)}')
    def stw(i):
        d = 160 + (i % 3)*16; o = 208 + (i % 2)*8
        for k in range(8): a(f'v_cvt_pk_bf16_f32 v{o+k}, v{d+2*k}, v{d+2*k+1}')
        a(f'ds_write_b128 v60, {vr(o,4)} offset:{(i % 2)*2304}\nds_write_b128 v60, {vr(o+4,4)} offset:{(i % 2)*2304 + 64}')
        o2 = 224 + (i % 3)*8
        a(f'ds_read_b128 {vr(o2,4)}, v61 offset:{(i % 2)*2304}\nds_read_b128 {vr(o2+4,4)}, v61 offset:{(i % 2)*2304 + 1152}')
    def stg(i, pol, n):
        cl, ht = i >> 1, i & 1
        o2 = 224 + (i % 3)*8
        a(f's_waitcnt lgkmcnt({n})')
        a(f'global_store_dwordx4 v{52+2*ht}, {vr(o2,4)}, {WS} offset:{128*cl} {pol}')
        a(f'global_store_dwordx4 v{53+2*ht}, {vr(o2+4,4)}, {WS} offset:{128*cl} {pol}')
    def pvloop(pol):
        unit(0)
        a.stamp('xc')
        unit(1); stw(0)
        for i in range(2, 6):
            unit(i); stw(i - 1); stg(i - 2, pol, 0 if P['stamps'] == 2 else 4)
            if i in (3, 5): a.stamp(f'xd{i}')
        stw(5); stg(4, pol, 0 if P['stamps'] == 2 else 4); stg(5, pol, 0)
    if P['local'] and P['pv_local']:
        a('s_cmp_eq_u64 s[16:17], 0\ns_cbranch_scc0 LB_pvf')
        pvloop('')
        a('s_branch LB_pvd')
        a.label('LB_pvf')
    pvloop('sc1')
    a.label('LB_pvd')
    a('v_mov_b32 v8, 1')
    a.lanes_lt(1)
    a('ds_add_u32 v58, v8')
    a.full()
    a.stamp('pvst')
    deferred()
    a('s_sub_u32 s40, s54, 80\ns_cmp_lt_u32 s40, 24\ns_cbranch_scc0 LB_nrc0')
    a.ready_check(0, 16)
    a.label('LB_nrc0')
    a.lds_wait(58, 8, off=16, extra='ds_read_b64 v[36:37], v57')
    a(f'v_mov_b32 v8, 1\nv_mov_b32 v33, {TAG}\nv_mov_b32 v32, v36\nv_mov_b32 v34, v37\nv_mov_b32 v35, {TAG}')
    a.lanes_lt(32)
    a(f's_waitcnt vmcnt(0)\nglobal_store_dwordx4 v56, v[32:35], {WS} sc1')
    a.lanes_lt(1)
    a('ds_add_u32 v58, v8 offset:12')
    a.full()
    a.stamp('auxpub')
    a(f'''v_lshlrev_b32 v9, 2, v2
v_add_u32 v9, {STB + 576}, v9
s_lshl_b32 s40, s3, 9
s_add_u32 s40, s40, {SIDE}
v_lshlrev_b32 v10, 13, v2
v_lshl_add_u32 v10, v3, 4, v10
v_add_u32 v10, s40, v10
v_lshlrev_b32 v11, 4, v2
v_add_u32 v11, {STB}, v11
''')
    a.lds_wait(58, 1, off=4, extra='ds_read2_b32 v[40:41], v9 offset0:0 offset1:16')
    for ht in range(2):
        a(f'''v_cmp_gt_u32 s[42:43], 4, v{40+ht}
s_cmp_eq_u64 s[42:43], 0
s_cbranch_scc1 LB_cn{ht}
ds_read_b128 v[16:19], v4 offset:{4608 + ht*16*144}
ds_read_b128 v[20:23], v4 offset:{4608 + ht*16*144 + 64}
ds_read_b64 v[44:45], v11 offset:{ht*256 + 8}
v_and_b32 v42, 3, v{40+ht}
v_lshl_add_u32 v42, v42, 11, v10
v_add_u32 v42, {ht*16*8192}, v42
s_waitcnt lgkmcnt(0)''')
        for t in range(6):
            for hf in range(2):
                d = 160 + (t*2+hf)*4
                for ks in range(2):
                    a(f'v_mfma_f32_16x16x32_bf16 {vr(d,4)}, {vr(64+((t*2+hf)*2+ks)*4,4)}, {vr(16+ks*4,4)}, {"0" if ks == 0 else vr(d,4)}')
        for t in range(6):
            for k in range(4): a(f'v_cvt_pk_bf16_f32 v{208+4*t+k}, v{160+8*t+2*k}, v{161+8*t+2*k}')
        a.san(range(208, 232))
        a(f'v_mov_b32 v46, v45\nv_mov_b32 v45, {TAG}\nv_mov_b32 v47, {TAG}\ns_mov_b64 exec, s[42:43]')
        for t in range(6): a(f'global_store_dwordx4 v42, {vr(208+4*t,4)}, {WS} offset:{64*t} sc1')
        a(f's_and_b64 exec, exec, 0xffff\nglobal_store_dwordx4 v42, v[44:47], {WS} offset:384 sc1')
        a.full()
        a.label(f'LB_cn{ht}')
    a('v_mov_b32 v8, 1')
    a.lanes_lt(1)
    a('ds_add_u32 v58, v8')
    a.full()
    a('s_branch LB_lw2')
    a.label('LB_lw')
    a('s_setprio 0')
    deferred()
    a('s_sub_u32 s40, s54, 80\ns_cmp_lt_u32 s40, 24\ns_cbranch_scc0 LB_nrc1')
    a.ready_check(0, 16)
    a.label('LB_nrc1')
    a.wave_is('eq', 4, 'LB_lw3')
    a(f'''v_and_b32 v9, 31, v1
v_lshlrev_b32 v10, 2, v9
v_add_u32 v10, {STB + 576}, v10
s_lshl_b32 s40, s39, 4
s_add_u32 s40, s40, s38
s_lshl_b32 s40, s40, 8
s_add_u32 s40, s40, {MB}
v_lshl_add_u32 v9, v9, 3, s40
''')
    a.lds_wait(58, P['ew_cnt'], sleep=2)
    a.poll(lambda: a(f'global_load_dwordx2 v[16:17], v9, {WS} sc1'), lambda: a.chk_tag([17], 8), sleep=P['sl_el'])
    a.stamp('el')
    a('ds_write_b32 v10, v16\nv_mov_b32 v8, 1\nds_write_b32 v58, v8 offset:4')
    a.label('LB_lw2')
    a.lds_wait(58, 8, sleep=P['sl_lw'])
    a('s_branch LB_late')
    a.label('LB_lw3')
    if P['early_late']: a.lds_wait(58, 4, off=12, sleep=P['sl_lw'])
    else: a.lds_wait(58, 8, sleep=P['sl_lw'])
    a.label('LB_late')
    def gate2(): a.lds_wait(58, 8, sleep=P['sl_lw'])
    a('s_cmp_lt_u32 s54, 80\ns_cbranch_scc0 LB_hi')
    a.wave_is('ge', 4, 'LB_wob')
    a(f'''s_mul_i32 s40, s39, 768
s_mul_i32 s41, s45, 192
s_add_u32 s40, s40, s41
s_lshl_b32 s41, s38, 7''')
    blk2_addr(a, 4, 's40', 1280, 's41')
    a(f'v_add_u32 v5, {64*1280}, v4\nv_add_u32 v6, {128*1280}, v4')
    for i in range(3):
        a.load_rows(64 + 32*i, 4, 4 + i, WO, 1280)
        if i == P['early_late'] - 1: gate2()
    a(f'''s_mul_i32 s40, s39, 12
s_mul_i32 s41, s45, 3
s_add_u32 s40, s40, s41
s_lshl_b32 s40, s40, 10
s_add_u32 s40, s40, {H5}
v_lshl_add_u32 v4, v1, 4, s40
s_mul_i32 s40, s45, 384
s_add_u32 s40, s40, {MISC + 4096}
v_lshl_add_u32 v5, v2, 2, v3
v_lshl_add_u32 v5, v5, 1, s40      ; (4p+g)*2''')
    frag2_addr(a, 6, 's40')
    gemv_out_prep(a, MISC + 2048 - 1024)
    for i in range(3):
        a(f's_waitcnt vmcnt({16 - 8*i})')
        a.perm_block(160 + 32*i, 64 + 32*i)
    a.stamp('late')
    if P['probe_h5']: a.probe(4, 8, off=2048, sleep=P['sl_pr'], post=P['post_h5'], mask=0x0001000100010001)
    def ld():
        for i in range(3): a(f'global_load_dwordx4 {vr(16+4*i,4)}, v4, {WS} offset:{1024*i} sc1')
    a.poll(ld, lambda: a.chk_sent(range(16, 28), 8), sleep=P['sl_h5'])
    a.stamp('h5')
    a('s_setprio 3')
    for i in range(3): a.xrow_tr4(16 + 4*i)
    for i in range(3): a(f'v_cvt_pk_bf16_f32 v{16+4*i}, v{16+4*i}, v{16+4*i}\nds_write_b16 v5, v{16+4*i} offset:{128*i}')
    a('s_waitcnt lgkmcnt(0)')
    for i in range(3): a(f'ds_read_b128 {vr(16+4*i,4)}, v6 offset:{128*i}')
    for i in range(3):
        a(f's_waitcnt lgkmcnt({2-i})')
        a.gemv2(64, 16 + 4*i, 160 + 32*i, i == 0)
    gemv_out_lds(a, 64, 0)
    a.label('LB_wob')
    a(f'''v_lshlrev_b32 v4, 4, v2
v_add_u32 v4, {MISC + 2048}, v4
s_mul_i32 s40, s39, 2560
s_lshl_b32 s41, s38, 8
s_add_u32 s40, s40, s41
s_add_u32 s40, s40, {H6}
v_lshl_add_u32 v5, v2, 4, s40''')
    a.bar()
    a.wave_is('eq', 4, 'Lfin')
    for i in range(4): a(f'ds_read_b128 {vr(16+4*i,4)}, v4 offset:{256*i}')
    a('s_waitcnt lgkmcnt(0)')
    tree(a, range(16, 32, 4), n=4)
    a.lanes_lt(16)
    a(f'global_store_dwordx4 v5, v[16:19], {WS} sc1')
    a.full()
    a.stamp('h6pub')
    a('s_branch Lfin')
    a.label('LB_hi')
    a('s_cmp_lt_u32 s54, 104\ns_cbranch_scc0 LB_mr')
    a(f's_sub_u32 s46, s54, 80\ns_lshl_b32 s40, s46, 6\ns_lshl_b32 s41, s3, 7')
    blk2_addr(a, 10, 's40', 1280, 's41')
    a('s_add_u32 s45, s3, 3\ns_and_b32 s45, s45, 7\ns_lshl_b32 s40, s45, 6\nv_add_u32 v62, s40, v1\ns_cmp_lt_u32 s45, 5\ns_cbranch_scc0 LB_f5')
    a(f's_lshl_b32 s40, s45, 7\ns_lshl_b32 s41, s46, 7')
    blk2_addr(a, 4, 's40', 3072, 's41')
    a(f'v_add_u32 v5, {64*3072}, v4\nv_lshlrev_b32 v6, 2, v62\nglobal_load_dword v24, v6, {X}')
    a.load_rows(128, 4, 4, W1, 3072)
    if P['early_hi'] < 2: gate2()
    a.load_rows(160, 4, 5, W1, 3072)
    if P['early_hi'] == 2: gate2()
    a.load_rows(64, 4, 10, W2, 1280)
    a(f'v_lshlrev_b32 v4, 2, v62\nv_add_u32 v4, {MODR}, v4\nv_add_u32 v5, 2560, v4\ns_waitcnt vmcnt(8)')
    a.perm_block(192, 128)
    a.perm_block(224, 160)
    a('s_waitcnt vmcnt(0)')
    a.stamp('late1')
    a.perm_block(96, 64)
    a(f'''v_mov_b32 v58, v4
v_mov_b32 v59, v5
v_lshlrev_b32 v4, 3, v62
v_add_u32 v8, {H6}, v4
v_lshlrev_b32 v28, 16, v24
v_and_b32 v29, 0xffff0000, v24''')
    for i in range(1, 4): a(f'v_add_u32 v{8+i}, {5120*i}, v8')
    a(f'''s_lshl_b32 s40, s45, 3
s_add_u32 s40, s40, {MISC + 8192}
v_mov_b32 v13, s40
s_lshl_b32 s40, s45, 8
s_add_u32 s40, s40, {MISC + 4096}
v_lshl_add_u32 v5, v1, 2, s40''')
    frag2_addr(a, 6, 's40')
    a(f's_lshl_b32 s40, s45, 8\ns_add_u32 s40, s40, {MISC}')
    pack_addr(a, 14, 's40')
    def ld():
        a(f'''global_load_dword v25, v58, {WS} sc1
global_load_dword v26, v58, {WS} offset:1280 sc1
global_load_dword v27, v59, {WS} sc1
global_load_dword v38, v59, {WS} offset:1280 sc1''')
        for i in range(8): a(f'global_load_dwordx2 {vr(40+2*i,2)}, v{8 + i//2}, {WS} offset:{2560*(i%2)} sc1')
    a.poll(ld, lambda: a.chk_sent([25, 26, 27, 38] + list(range(40, 56)), 4), sleep=P['sl_h6'])
    a.stamp('h6')
    a('s_setprio 3')
    a('v_lshlrev_b32 v30, 16, v25\nv_and_b32 v31, 0xffff0000, v25')
    tree(a, range(40, 56, 2), n=2)
    for i in range(2): a.rnd(40 + i, 40 + i)
    for i in range(2): a(f'v_mul_f32 v{40+i}, v{30+i}, v{40+i}')
    for i in range(2): a.rnd(40 + i, 40 + i)
    for i in range(2): a(f'v_add_f32 v{40+i}, v{28+i}, v{40+i}')
    a('''v_cvt_pk_bf16_f32 v36, v40, v41
v_lshlrev_b32 v40, 16, v36
v_and_b32 v41, 0xffff0000, v36
v_readfirstlane_b32 s42, v40
v_subrev_f32 v44, s42, v40
v_subrev_f32 v45, s42, v41
v_add_f32 v42, v44, v45
v_mul_f32 v43, v44, v44
v_fmac_f32 v43, v45, v45''')
    a.row_red('v_add_f32', [42, 43])
    a(f'''v_permlane16_swap_b32 v42, v43
v_add_f32 v42, v42, v43
v_mov_b32 v43, v42
v_permlane32_swap_b32 v42, v43
v_add_f32 v42, v42, v43
v_mov_b32 v43, v42
v_permlane16_swap_b32 v42, v43
v_mul_f32 v42, {f2u(1/128):#x}, v42
v_mul_f32 v44, {f2u(128.0):#x}, v42
v_fma_f32 v43, -v44, v42, v43
v_add_f32 v42, s42, v42
ds_write_b64 v13, v[42:43]
v_lshlrev_b32 v32, 16, v26
v_and_b32 v33, 0xffff0000, v26
v_lshlrev_b32 v34, 16, v27
v_and_b32 v35, 0xffff0000, v27
v_add_f32 v34, 1.0, v34
v_add_f32 v35, 1.0, v35
v_cvt_pk_bf16_f32 v34, v34, v35
v_and_b32 v35, 0xffff0000, v34
v_lshlrev_b32 v34, 16, v34
s_branch LB_w1b''')
    a.label('LB_f5')
    a.load_rows(64, 4, 10, W2, 1280)
    a.wave_is('lt', 4, 'LB_f7')
    a(f's_lshl_b32 s40, s46, 6\ns_add_u32 s41, s3, 6\ns_lshl_b32 s41, s41, 7')
    blk2_addr(a, 10, 's40', 1280, 's41')
    a.load_rows(128, 4, 10, W2, 1280)
    a.label('LB_f7')
    a('s_waitcnt vmcnt(0)')
    a.perm_block(96, 64)
    a.perm_block(192, 128)
    a.label('LB_w1b')
    a(f'v_mov_b32 v4, {MISC + 8192}')
    a.bar()
    a('s_setprio 3')
    a('s_cmp_lt_u32 s45, 5\ns_cbranch_scc0 LB_w1c')
    a(f'''ds_read_b128 v[44:47], v4
ds_read_b128 v[48:51], v4 offset:16
ds_read_b64 v[52:53], v4 offset:32
s_waitcnt lgkmcnt(0)
v_add_f32 v54, v44, v46
v_add_f32 v55, v48, v50
v_add_f32 v56, v45, v47
v_add_f32 v54, v54, v55
v_add_f32 v57, v49, v51
v_add_f32 v54, v54, v52
v_add_f32 v55, v56, v57
v_mul_f32 v54, {f2u(0.2):#x}, v54      ; mean
v_add_f32 v55, v55, v53''')
    for r in (44, 46, 48, 50, 52): a(f'v_sub_f32 v{r}, v{r}, v54')
    a('v_mul_f32 v56, v44, v44\nv_mul_f32 v57, v46, v46\nv_fmac_f32 v56, v48, v48\nv_fmac_f32 v57, v50, v50\nv_fmac_f32 v56, v52, v52\nv_add_f32 v56, v56, v57')
    a(f'v_fmac_f32 v55, {f2u(128.0):#x}, v56\nv_mul_f32 v55, {f2u(1/640):#x}, v55')
    ln_finish(a, 54, 55, 56)
    for i in range(2): a(f'v_sub_f32 v{44+i}, v{40+i}, v54')
    for i in range(2): a.rnd(44 + i, 44 + i)
    for i in range(2): a.div(42 + i, 44 + i, 55, 56, 57 + i)
    for i in range(2): a.rnd(42 + i, 42 + i)
    for i in range(2): a(f'v_mul_f32 v{42+i}, v{42+i}, v{34+i}')
    for i in range(2): a.rnd(42 + i, 42 + i)
    for i in range(2): a(f'v_add_f32 v{42+i}, v{42+i}, v{32+i}')
    a('''v_cvt_pk_bf16_f32 v42, v42, v43
ds_write_b32 v5, v42
s_waitcnt lgkmcnt(0)
ds_read_b128 v[16:19], v6
ds_read_b128 v[20:23], v6 offset:128
s_waitcnt lgkmcnt(1)''')
    a.gemv2(128, 16, 192, True)
    a('s_waitcnt lgkmcnt(0)')
    a.gemv2(128, 20, 224, False)
    gemv_out_lds(a, 128, MISC)
    a.label('LB_w1c')
    a(f'''v_and_b32 v4, 31, v1
v_lshlrev_b32 v5, 2, v4
v_lshlrev_b32 v4, 3, v4
v_add_u32 v4, {MISC}, v4
s_lshl_b32 s40, s3, 7
s_add_u32 s40, s40, {MISC + 6144}
v_add_u32 v5, s40, v5''')
    frag2_addr(a, 6, 's40')
    a(f's_mul_i32 s40, s46, 2560\ns_lshl_b32 s41, s3, 8\ns_add_u32 s40, s40, s41\ns_add_u32 s40, s40, {H7Y}')
    pack_addr(a, 14, 's40')
    a.bar()
    for i in range(5): a(f'ds_read_b64 {vr(16+2*i,2)}, v4 offset:{256*i}')
    a('s_waitcnt lgkmcnt(0)')
    tree(a, range(16, 26, 2), n=2)
    a('''v_max_f32 v16, 0, v16
v_max_f32 v17, 0, v17
v_cvt_pk_bf16_f32 v8, v16, v17
ds_write_b32 v5, v8
s_waitcnt lgkmcnt(0)
ds_read_b128 v[16:19], v6
s_waitcnt lgkmcnt(0)''')
    a.gemv2(64, 16, 96, True)
    a('s_sub_u32 s40, s3, 2\ns_cmp_lt_u32 s40, 2\ns_cbranch_scc0 LB_y1')
    a.gemv2(128, 16, 192, True)
    a.label('LB_y1')
    a.pack2(8, 64)
    a.lanes_lt(16)
    a(f'global_store_dwordx4 v14, v[8:11], {WS} sc1')
    a.full()
    a('s_cbranch_scc0 LB_y2')
    a.pack2(20, 128)
    a.lanes_lt(16)
    a(f'global_store_dwordx4 v14, v[20:23], {WS} offset:1536 sc1')
    a.full()
    a.label('LB_y2')
    a.stamp('h7pub')
    a('s_lshr_b32 s40, s46, 2\ns_cmp_eq_u32 s40, s45\ns_cbranch_scc0 Lfin\ns_cmp_lt_u32 s45, 5\ns_cbranch_scc0 Lfin\ns_and_b32 s40, s46, 3\ns_lshl_b32 s40, s40, 4\ns_mov_b64 s[42:43], 0xffff\ns_lshl_b64 exec, s[42:43], s40')
    a(f'v_lshlrev_b32 v4, 3, v62\nv_add_u32 v4, {H7Y}, v4')
    for i in range(1, 12): a(f'v_add_u32 v{16+i}, {5120*i}, v4')
    a(f'''v_mov_b32 v16, v4
v_lshlrev_b32 v5, 2, v62
v_lshlrev_b32 v30, 16, v38
v_and_b32 v31, 0xffff0000, v38''')
    def ld():
        for i in range(24): a(f'global_load_dwordx2 {vr(64+2*i,2)}, v{16 + i//2}, {WS} offset:{2560*(i%2)} sc1')
    a.poll(ld, lambda: a.chk_sent(range(64, 112), 4), sleep=P['sl_h7'], pre=P['pre_h7'])
    a.stamp('h7')
    tree(a, range(64, 112, 2), n=2)
    for i in range(2): a.rnd(64 + i, 64 + i)
    for i in range(2): a(f'v_mul_f32 v{64+i}, v{30+i}, v{64+i}')
    for i in range(2): a.rnd(64 + i, 64 + i)
    for i in range(2): a(f'v_add_f32 v{64+i}, v{40+i}, v{64+i}')
    a(f'v_cvt_pk_bf16_f32 v64, v64, v65\nglobal_store_dword v5, v64, {OUT}\ns_mov_b64 exec, -1')
    a.stamp('out')
    a('s_branch Lfin')
    a.label('LB_mr')
    a('s_cmp_lt_u32 s54, 124\ns_cbranch_scc0 Lfin\ns_sub_u32 s46, s54, 104\ns_add_u32 s45, s3, 3\ns_and_b32 s45, s45, 7\ns_cmp_lt_u32 s45, 5\ns_cbranch_scc0 LB_mrb')
    a(f'''s_lshl_b32 s40, s45, 7
v_lshl_add_u32 v4, v3, 3, s40      ; row = 128w + 8g
v_lshlrev_b32 v6, 1, v4
v_add_u32 v6, {MISC + 4096}, v6
v_mul_u32_u24 v4, 7680, v4
v_lshl_add_u32 v4, v2, 4, v4
s_lshl_b32 s40, s46, 8
s_add_u32 s40, s40, 2560
v_add_u32 v4, s40, v4
s_lshl_b32 s40, s45, 8
v_lshl_add_u32 v7, v1, 2, s40
global_load_dword v16, v7, {CC}
v_add_u32 v7, {MISC + 4096}, v7''')
    for i in range(4):
        a.load_rows(64 + 32*i, 4, 4, WMOD, 7680)
        if i < 3: a(f'v_add_u32 v4, {25*7680}, v4')
        if i == P['early_hi'] - 1: gate2()
    a('s_waitcnt vmcnt(32)')
    a('v_lshlrev_b32 v32, 16, v16\nv_and_b32 v33, 0xffff0000, v16')
    a.silu(32, 32, 8); a.silu(33, 33, 8)
    a(f'v_perm_b32 v16, v33, v32, {PHI}\nds_write_b32 v7, v16\ns_waitcnt lgkmcnt(0)')
    for i in range(4): a(f'ds_read_b128 {vr(16+4*i,4)}, v6 offset:{64*i}')
    a('s_waitcnt lgkmcnt(0)')
    a(f'''v_cmp_eq_u32 s[42:43], 1, v3
v_lshlrev_b32 v4, 5, v2
v_lshl_add_u32 v4, v3, 4, v4
s_lshl_b32 s40, s45, 9
s_add_u32 s40, s40, {MISC}
v_add_u32 v4, s40, v4''')
    for i in range(4):
        a(f's_waitcnt vmcnt({24 - 8*i})')
        a.perm_block(192, 64 + 32*i)
        a.gemv2(224, 16 + 4*i, 192, i == 0)
    a.stamp('late2')
    for i in range(4): a(f'v_cndmask_b32 v{8+i}, v{224+4*i}, v{224+4*(i+4)}, s[42:43]')
    a.lanes_lt(32)
    a('ds_write_b128 v4, v[8:11]')
    a.full()
    a.label('LB_mrb')
    a.bar()
    a.wave_is('eq', 2, 'Lfin')
    a(f'v_lshlrev_b32 v4, 3, v1\nv_add_u32 v4, {MISC}, v4')
    for i in range(5): a(f'ds_read_b64 {vr(16+2*i,2)}, v4 offset:{512*i}')
    a(f's_lshl_b32 s40, s46, 8\ns_add_u32 s40, s40, {MODR}\nv_lshl_add_u32 v4, v1, 2, s40\ns_waitcnt lgkmcnt(0)')
    tree(a, range(16, 26, 2), n=2)
    a('v_cvt_pk_bf16_f32 v8, v16, v17')
    a.san([8])
    for i in range(1, 4): a(f'v_mov_b32_dpp v{8+i}, v8 quad_perm:[{i},{i},{i},{i}] row_mask:0xf bank_mask:0xf')
    a.exec_mask(0x1111111111111111)
    a(f'global_store_dwordx4 v4, v[8:11], {WS} sc1')
    a.full()
    a.stamp('mrpub')
    a('s_branch Lfin')

LS1, LQ, LKEY, LEK, LWT, LWP, LFW, LKP = 0, 2816, 3328, 3840, 4096, 4608, 5120, 6144
LRP = LKP + 18432; LCC = LRP + 6144; LVP = LCC + 1024; LQF = LVP + 4608; LSR = LQF + 1024; LFL = LSR + 1536
def load_uk(a, base, off=128, lo=0, hi=8, v=4, rm=None):
    if lo == hi: return
    rm = rm or (lambda j: (off + 4*j, off + 32 + 2*j))
    a(f'''s_mul_i32 s40, s41, 192
s_lshl_b32 s42, s3, 5
s_add_u32 s40, s40, s42
s_add_u32 s40, s40, {lo}
v_lshl_add_u32 v{v}, v3, 3, s40
v_mul_u32_u24 v{v}, 12288, v{v}
s_mul_i32 s40, s47, 384
v_add_u32 v{v}, s40, v{v}
v_lshl_add_u32 v{v+1}, v2, 3, v{v}
v_lshl_add_u32 v{v}, v2, 4, v{v}''')
    for j in range(lo, hi):
        a(f'global_load_dwordx4 {vr(rm(j)[0],4)}, v{v}, {base} nt')
        a(f'global_load_dwordx2 {vr(rm(j)[1],2)}, v{v+1}, {base} offset:256 nt')
        if j < hi - 1: a(f'v_add_u32 v{v}, 12288, v{v}\nv_add_u32 v{v+1}, 12288, v{v+1}')
def perm12(a, dst, src=128, rm=None):
    rm = rm or (lambda j: (src + 4*j, src + 32 + 2*j))
    for e in range(12):
        w, ee = (0, e) if e < 8 else (1, e - 8)
        for k in range(4):
            a(f'v_perm_b32 v{dst+4*e+k}, v{rm(2*k+1)[w]+(ee>>1)}, v{rm(2*k)[w]+(ee>>1)}, {PHI if ee & 1 else PLO}')
def mfma12(a, D, A, F):
    for e in range(12): a(f'v_mfma_f32_16x16x32_bf16 {vr(D+4*e,4)}, {vr(A,4)}, {vr(F+4*e,4)}, 0')
def out12_prep(a, v, lbase):
    a(f's_mul_i32 s40, s3, 768\ns_add_u32 s40, s40, {lbase}\nv_lshl_add_u32 v{v}, v2, 5, s40\nv_lshl_add_u32 v{v+1}, v2, 4, s40')
def out12(a, D, o, v):
    for e in range(12): a(f'v_add_f32 v{o+e}, v{D+4*e}, v{D+4*e+1}')
    a.lanes_lt(16)
    a(f'ds_write_b128 v{v}, {vr(o,4)}\nds_write_b128 v{v}, {vr(o+4,4)} offset:16\nds_write_b128 v{v+1}, {vr(o+8,4)} offset:512')
    a.full()
def weights_out(a, val, lbase, k):
    a(f'''v_cvt_pk_bf16_f32 v8, v{val}, v{val}
ds_write_b16 v4, v8 offset:{lbase + 128*k}
v_and_b32 v9, 0xffff0000, v8
v_sub_f32 v9, v{val}, v9
v_cvt_pk_bf16_f32 v9, v9, v9
ds_write_b16 v4, v9 offset:{lbase + 256 + 128*k}''')

def role_A(a):
    P = a.P
    a(f'''s_and_b32 s44, s2, 7
s_lshl_b32 s44, s44, 4
s_bfe_u32 s40, s2, 0x40003
s_add_u32 s44, s44, s40
s_xor_b32 s43, s44, {P['s1x']}
s_cmp_lt_u32 s44, 64
s_cselect_b32 s43, s44, s43
s_mul_i32 s39, s43, 205
s_lshr_b32 s39, s39, 11          ; kp
s_mul_i32 s40, s39, 10
s_sub_u32 s38, s43, s40          ; mg
s_lshr_b32 s47, s44, 2           ; head
s_and_b32 s41, s44, 3            ; quarter
v_mov_b32 v12, 0
s_mul_i32 s40, s39, 80
s_lshl_b32 s42, s3, 4
s_add_u32 s40, s40, s42
v_lshl_add_u32 v5, v3, 2, s40      ; row0
v_mul_u32_u24 v4, 7680, v5
v_lshrrev_b32 v6, 3, v2
v_mul_u32_u24 v6, 1152, v6
v_lshl_add_u32 v6, v2, 4, v6
s_lshl_b32 s42, s38, 7
v_add3_u32 v4, v4, v6, s42
v_lshlrev_b32 v5, 1, v5
s_waitcnt lgkmcnt(0)''')
    a.stamp('start')
    a.wave_is('lt', 5, 'LA_nos1')
    a('s_cmp_lt_u32 s39, 8\ns_cbranch_scc0 LA_nos1')
    a(f'global_load_dwordx2 v[32:33], v5, {CC}')
    a.load_rows(16, 4, 4, WMOD, 7680, rows=4)
    a(f'global_load_dword v15, v12, {WS} sc1')
    U1 = P['uk1']
    load_uk(a, WUK, hi=U1)
    a.stamp('x1')
    a('s_branch LA2')

def role_A2(a):
    P = a.P; U1 = P['uk1']
    a.label('LA2')
    consts(a)
    a(f'''s_waitcnt vmcnt({5+2*U1})
v_lshlrev_b32 v36, 16, v32
v_and_b32 v37, 0xffff0000, v32
v_lshlrev_b32 v38, 16, v33
v_and_b32 v39, 0xffff0000, v33''')
    a.stamp('x2')
    for i in range(4): a.silu(36 + i, 36 + i, 8)
    a.stamp('x3')
    a(f'''v_perm_b32 v34, v37, v36, {PHI}
v_perm_b32 v35, v39, v38, {PHI}
v_cmp_eq_u32 vcc, 1, v3
v_lshlrev_b32 v4, 5, v2
v_lshl_add_u32 v4, v3, 4, v4
s_lshl_b32 s40, s3, 9
v_add_u32 v4, s40, v4''')
    a(f's_waitcnt vmcnt({1+2*U1})')
    a.stamp('x4')
    for e in range(8):
        for k in range(2):
            a(f'v_perm_b32 v{40+2*e+k}, v{16+(2*k+1)*4+(e>>1)}, v{16+2*k*4+(e>>1)}, {PHI if e & 1 else PLO}')
        a(f'v_mfma_f32_16x16x16_bf16 {vr(64+4*e,4)}, v[34:35], {vr(40+2*e,2)}, 0')
    for i in range(4): a(f'v_cndmask_b32 v{8+i}, v{64+4*i}, v{64+4*(i+4)}, vcc')
    a.lanes_lt(32)
    a('ds_write_b128 v4, v[8:11]')
    a.full()
    a(f's_waitcnt vmcnt({2*U1})')
    a.get_tag()
    a('s_branch LA_b1')
    a.label('LA_nos1')
    a('s_getreg_b32 s16, hwreg(HW_REG_XCC_ID, 0, 4)' if False else 's_nop 0')
    a(f'global_load_dword v15, v12, {WS} sc1')
    a.wave_is('lt', 6, 'LA_nos1b')
    load_uk(a, WUK, hi=U1)
    a.label('LA_nos1b')
    consts(a)
    a.wave_is('eq', 7, 'LA_not7')
    neg1(a)
    a(f'''s_mul_i32 s40, s44, 384
s_add_u32 s40, s40, {H2}
v_min_u32 v4, 23, v1
v_lshl_add_u32 v4, v4, 4, s40
global_store_dwordx4 v4, v[8:11], {WS} sc1''')
    a.ready_publish()
    a(f'''s_mul_i32 s40, s44, 3072
s_add_u32 s40, s40, {H4S}
v_lshl_add_u32 v4, v1, 4, s40
global_store_dwordx4 v4, v[8:11], {WS} sc1
global_store_dwordx4 v4, v[8:11], {WS} offset:1024 sc1
global_store_dwordx4 v4, v[8:11], {WS} offset:2048 sc1
s_lshl_b32 s40, s47, 13
s_lshl_b32 s42, s41, 9
s_add_u32 s40, s40, s42
s_add_u32 s40, s40, {SIDE}
v_lshrrev_b32 v4, 5, v1
v_lshlrev_b32 v4, 11, v4
v_and_b32 v5, 31, v1
v_lshl_add_u32 v4, v5, 4, v4
v_add_u32 v4, s40, v4
v_add_u32 v5, 4096, v4
global_store_dwordx4 v4, v[8:11], {WS} sc1
global_store_dwordx4 v5, v[8:11], {WS} sc1
s_mul_i32 s40, s47, 3072
s_lshl_b32 s42, s41, 8
s_add_u32 s40, s40, s42
s_add_u32 s40, s40, {H5}
v_min_u32 v4, 2, v3
v_lshlrev_b32 v4, 10, v4
v_lshl_add_u32 v4, v2, 4, v4
v_add_u32 v4, s40, v4
global_store_dwordx4 v4, v[8:11], {WS} sc1''')
    a('s_branch LA_b1')
    a.label('LA_not7')
    a.wave_is('eq', 6, 'LA_b1')
    code_warm(a)
    if P['tlb']:
        a(f'''s_mov_b32 s50, 196608
v_mul_lo_u32 v4, v1, s50
global_load_dword v14, v4, {CKV} nt
v_lshlrev_b32 v4, 17, v1
global_load_dword v14, v4, {WS} offset:64 nt''')
    a.label('LA_b1')
    a(f'''v_lshlrev_b32 v4, 2, v1
s_lshl_b32 s40, s38, 13
s_lshl_b32 s42, s39, 7
s_add_u32 s40, s40, s42
s_add_u32 s40, s40, {H1}
v_lshrrev_b32 v5, 3, v1
v_lshlrev_b32 v5, 10, v5
v_and_b32 v6, 7, v1
v_lshl_add_u32 v5, v6, 4, v5
v_add_u32 v5, s40, v5
v_mov_b32 v9, {TAG}
v_mov_b32 v11, {TAG}''')
    a('s_cmp_lt_u32 s39, 8\ns_cbranch_scc0 LA_u80')
    a.bar()
    a.wave_is('eq', 0, 'LA_uk0')
    for w in range(5): a(f'ds_read2st64_b32 {vr(16+2*w,2)}, v4 offset0:{2*w} offset1:{2*w+1}')
    a(f'''s_waitcnt lgkmcnt(0)
v_add_f32 v16, v16, v18
v_add_f32 v17, v17, v19
v_add_f32 v20, v20, v22
v_add_f32 v21, v21, v23
v_add_f32 v16, v16, v20
v_add_f32 v17, v17, v21
v_add_f32 v8, v16, v24
v_add_f32 v10, v17, v25
global_store_dwordx4 v5, v[8:11], {WS} sc1''')
    a.stamp('h1pub')
    a.label('LA_uk0')
    a('s_barrier\ns_branch LA_uk')
    a.label('LA_u80')
    if P['sl_a80']: a(f's_sleep {P["sl_a80"]}')
    a.label('LA_uk')
    a.wave_is('lt', 6, 'LA_nouk')
    load_uk(a, WUK, lo=U1)
    V1 = P['uv1']
    rmv = lambda j: (224 + 4*j, 244 + 2*j) if j < V1 else (128 + 4*j, 160 + 2*j)
    load_uk(a, WUV, hi=V1, rm=rmv)
    a.label('LA_nouk')
    a(f'''s_mul_i32 s40, s47, 15360
s_mul_i32 s42, s3, 192
s_add_u32 s40, s40, s42
s_add_u32 s40, s40, {H1B}
v_min_u32 v5, 11, v2
v_mul_u32_u24 v4, 1536, v3
v_lshl_add_u32 v4, v5, 4, v4
v_add_u32 v4, s40, v4
v_add_u32 v7, 6144, v4
v_add_u32 v13, 12288, v4
s_mul_i32 s40, s3, 48
v_and_b32 v8, 1, v3
v_lshl_add_u32 v5, v5, 1, v8
v_lshl_add_u32 v5, v5, 1, s40      ; (24w+2dp+(g&1))*2
v_lshlrev_b32 v40, 5, v2
v_lshlrev_b32 v41, 4, v2
v_lshlrev_b32 v42, 1, v5
s_mul_i32 s40, s44, 384
s_lshl_b32 s42, s3, 6
s_add_u32 s40, s40, s42
s_add_u32 s40, s40, {H2}
v_lshl_add_u32 v6, v3, 4, s40
s_waitcnt vmcnt(0)''')
    a.get_tag()
    a(f'v_mov_b32 v24, 0\nv_mov_b32 v25, {TAG}\nv_mov_b32 v26, 0\nv_mov_b32 v27, {TAG}')
    a.stamp('uk')
    def U(j, k): n = j*6 + k; return 64 + 2*n if n < 32 else 176 + 2*(n - 32)
    def unp():
        a.wave_is('lt', 6, 'LA_nounp')
        for j in range(8):
            for k in range(6):
                src = 128 + 4*j + k if k < 4 else 160 + 2*j + (k - 4)
                a(f'v_lshlrev_b32 v{U(j,k)}, 16, v{src}\nv_and_b32 v{U(j,k)+1}, 0xffff0000, v{src}')
        a.label('LA_nounp')
    if P['probe_h1b']: a.probe(7, 8, off=4, sleep=P['sl_pr'], post=P['post_h1b'], tag=True, mask=0x0001000100010001)
    def ld():
        a(f'global_load_dwordx4 v[16:19], v4, {WS} sc1\nglobal_load_dwordx4 v[20:23], v7, {WS} sc1')
        a.lanes_lt(32)
        a(f'global_load_dwordx4 v[24:27], v13, {WS} sc1')
        a.full()
    a.poll(ld, lambda: a.chk_tag(range(17, 28, 2), 8), sleep=P['sl_h1b'], mid=unp)
    a.stamp('h1b')
    a('s_setprio 3')
    a(f'''v_add_f32 v16, v16, v20
v_add_f32 v18, v18, v22
v_add_f32 v16, v16, v24
v_add_f32 v18, v18, v26
v_permlane16_swap_b32 v16, v18
v_add_f32 v16, v16, v18
v_mov_b32 v18, v16
v_permlane32_swap_b32 v16, v18
v_add_f32 v16, v16, v18
v_cvt_pk_bf16_f32 v16, v16, v16
v_and_b32 v17, 0xffff0000, v16
ds_write_b32 v42, v17 offset:{LQF}
ds_write_b16 v5, v16 offset:{LQ}''')
    a.bar()
    a.wave_is('lt', 6, 'LA_nos3')
    a(f'ds_read_b128 v[44:47], v40 offset:{LQF}\nds_read_b128 v[48:51], v40 offset:{LQF+16}\nds_read_b128 v[52:55], v41 offset:{LQF+512}')
    for k in range(6):
        if k in (0, 2, 4): a(f's_waitcnt lgkmcnt({2 - k//2})')
        for j in range(8):
            if k == 0: a(f'v_pk_mul_f32 {vr(208+2*j,2)}, {vr(U(j,k),2)}, {vr(44+2*k,2)}')
            else: a(f'v_pk_fma_f32 {vr(208+2*j,2)}, {vr(U(j,k),2)}, {vr(44+2*k,2)}, {vr(208+2*j,2)}')
    for j in range(8): a(f'v_add_f32 v{24+j}, v{208+2*j}, v{209+2*j}')
    for i in range(4): a(f'v_add_f32_dpp v{32+i}, v{24+i}, v{24+i} row_ror:8 row_mask:0xf bank_mask:0x3')
    for i in range(4): a(f'v_add_f32_dpp v{32+i}, v{28+i}, v{28+i} row_ror:8 row_mask:0xf bank_mask:0xc')
    for i in range(2): a(f'v_add_f32_dpp v{36+i}, v{32+i}, v{32+i} row_shl:4 row_mask:0xf bank_mask:0x5')
    for i in range(2): a(f'v_add_f32_dpp v{36+i}, v{34+i}, v{34+i} row_shr:4 row_mask:0xf bank_mask:0xa')
    for qp in ('[2,3,0,1]', '[1,0,3,2]'):
        for i in range(2): a(f'v_add_f32_dpp v{36+i}, v{36+i}, v{36+i} quad_perm:{qp} row_mask:0xf bank_mask:0xf')
    a('v_cvt_pk_bf16_f32 v36, v36, v37')
    a.san([36])
    for i in range(1, 4): a(f'v_mov_b32_dpp v{36+i}, v36 row_shl:{4*i} row_mask:0xf bank_mask:0xf')
    a.exec_mask(0x0001000100010001)
    a(f'global_store_dwordx4 v6, v[36:39], {WS} sc1')
    a.full()
    a.stamp('h2pub')
    a('s_setprio 0')
    a('s_barrier')
    perm12(a, 64)
    if P['sl_uv']:
        if P['uv_ad']: a(f's_cmp_lt_u32 {SPIN}, {P["uv_ad"]}\ns_cbranch_scc1 LA_nsl')
        a(f's_sleep {P["sl_uv"]}')
        a.label('LA_nsl')
    load_uk(a, WUV, lo=V1, rm=rmv)
    a('s_waitcnt vmcnt(0)')
    perm12(a, 176, rm=rmv)
    a.stamp('wuv')
    a('s_branch LA_s3d')
    a.label('LA_nos3')
    a(f'v_lshlrev_b32 v4, 2, v1\nds_write_b32 v4, v12 offset:{LWP}\nv_and_b32 v4, 12, v4\nds_write_b32 v4, v12 offset:{LFL}\nv_mov_b32 v8, {NEGINF:#x}\nv_mov_b32 v9, 0\nds_write_b64 v12, v[8:9] offset:{LFW+112}\nds_write_b64 v12, v[8:9] offset:{LFW+120}\ns_setprio 0')
    a.bar()
    if P['pv_local'] and P['pf_pol'] < 3:
        if P['sl_pf']: a(f's_sleep {P["sl_pf"]}')
        a(f'''s_mul_i32 s40, s44, {CP}
s_and_b32 s42, s3, 1
s_mul_i32 s42, s42, {200*128}
s_add_u32 s40, s40, s42
s_add_u32 s40, s40, {H4}
v_lshl_add_u32 v4, v1, 7, s40''')
        for i in range(4):
            if i == 3: a.lanes_lt(8)
            a(f'global_load_dword v14, v4, {WS} {["nt", "", "sc1"][P["pf_pol"]]}')
            if i < 3: a('v_add_u32 v4, 8192, v4')
        a.full()
    a.label('LA_s3d')
    def fl_wait(i, lab, n=1): a.lds_wait(12, n, off=LFL + 4*i)
    def fl_set(i): a(f'v_mov_b32 v8, 1\nds_write_b32 v12, v8 offset:{LFL + 4*i}')
    def fl_add(i): a(f'v_mov_b32 v8, 1\ns_mov_b64 exec, 1\nds_add_u32 v12, v8 offset:{LFL + 4*i}\ns_mov_b64 exec, -1')
    def l2addr(v):
        a(f'''s_lshl_b32 s40, s3, 7
s_mul_i32 s42, s44, 6144
s_add_u32 s42, s42, s40
s_add_u32 s42, s42, {H4G}
v_and_b32 v{v}, 31, v1
v_lshrrev_b32 v{v+1}, 5, v1
v_mul_u32_u24 v{v+1}, 3072, v{v+1}
v_lshl_add_u32 v{v}, v{v}, 2, s42
v_add_u32 v{v}, v{v}, v{v+1}''')
    def esel(sh, probe):
        a(f'''s_lshl_b32 s40, {sh}, 11
s_add_u32 s40, s40, {H3}
v_lshl_add_u32 v4, v1, 4, s40
s_and_b32 s42, s47, 15
s_lshl_b32 s42, s42, 7
s_add_u32 s42, s42, {DB3}
v_lshl_add_u32 v5, v1, 11, s42
s_mov_b32 s48, {f2u(-1/64):#x}
v_mov_b32 v24, {NEGINF:#x}''')
        if probe: a.probe(5, 8, off=4, sleep=P['sl_pr3'], post=P['post_h3'], tag=True, mask=0xff)
        a.poll(lambda: a(f'global_load_dwordx4 v[28:31], v4, {WS} sc1\nglobal_load_dwordx4 v[32:35], v4, {WS} offset:1024 sc1'),
               lambda: a.chk_tag(range(29, 36, 2), 8), sleep=P['sl_h3'])
        a.stamp('h3')
        a('v_max_f32 v20, v28, v32\nv_mov_b32 v16, v28\nv_mov_b32 v18, v32')
        a.wave_red('v_max_f32', 20, 21)
        a(f'''v_and_b32 v21, 0x7f800000, v20
v_fma_f32 v20, v21, s48, v20
v_cmp_ge_f32 s[50:51], v16, v20
v_cmp_ge_f32 s[52:53], v18, v20
s_bcnt1_i32_b64 s49, s[50:51]
v_mbcnt_lo_u32_b32 v22, s50, 0
v_mbcnt_hi_u32_b32 v22, s51, v22
v_mov_b32 v23, s49
v_mbcnt_lo_u32_b32 v23, s52, v23
v_mbcnt_hi_u32_b32 v23, s53, v23
v_cmp_gt_u32 vcc, 4, v22
s_and_b64 s[50:51], s[50:51], vcc
v_cmp_gt_u32 vcc, 4, v23
s_and_b64 s[52:53], s[52:53], vcc''')
    def l1w():
        a(f'''s_lshr_b32 s40, s44, 4
s_lshl_b32 s42, 0x01010101, s40
s_mov_b32 s43, s42
v_cndmask_b32 v36, 15, v22, s[50:51]
v_cndmask_b32 v38, 15, v23, s[52:53]
v_mov_b32 v37, {TAG}
v_mov_b32 v39, {TAG}
s_lshl_b32 s40, s40, 12
s_lshl_b32 s49, s46, 3
s_add_u32 s40, s40, s49
s_add_u32 s40, s40, {MB}
v_lshrrev_b32 v5, 3, v1
v_lshl_add_u32 v4, v5, 8, s40
s_mov_b64 exec, s[42:43]''')
        a.st_local('s[38:39]', f'global_store_dwordx2 v4, v[36:37], {WS}', f'global_store_dwordx2 v4, v[38:39], {WS} offset:2048')
        a('s_mov_b64 exec, -1')
    a(f'''s_getreg_b32 s16, hwreg(HW_REG_XCC_ID, 0, 4)
s_and_b32 s40, s2, 7
s_lshl_b32 s40, s40, 4
s_add_u32 s40, s40, {READY}
v_and_b32 v4, 31, v1
v_lshl_add_u32 v4, v4, 7, s40''')
    a.poll(lambda: a(f'global_load_dwordx2 v[8:9], v4, {WS} sc1'), lambda: a.chk_tag([8], 10), sleep=4)
    a('v_cmp_ne_u32 s[38:39], s16, v9')
    a('s_and_b32 s46, s44, 15\ns_lshl_b32 s46, s46, 1\ns_and_b32 s40, s3, 1\ns_add_u32 s46, s46, s40')
    a.wave_is('ge', 6, 'LA_n6')
    esel('s46', P['probe_h3'])
    l1w()
    a.label('LA_n6')
    a.wave_is('eq', 5, 'LA_noh3')
    esel('s47', P['probe_h3'])
    a(f'''v_and_b32 v17, 63, v30
v_and_b32 v19, 63, v34
v_lshl_add_u32 v17, v1, 6, v17
v_lshl_add_u32 v19, v1, 6, v19
v_add_u32 v19, 4096, v19
v_lshlrev_b32 v4, 2, v1
v_mov_b32 v25, 999
v_add_u32 v26, 64, v1
v_lshlrev_b32 v22, 2, v22
v_lshlrev_b32 v23, 2, v23
s_mov_b64 exec, 15
ds_write_b32 v4, v17 offset:{LEK}
ds_write_b32 v4, v25 offset:{LEK+16}
s_mov_b64 exec, s[50:51]
ds_write_b32 v22, v17 offset:{LEK}
ds_write_b32 v22, v1 offset:{LEK+16}
s_mov_b64 exec, s[52:53]
ds_write_b32 v23, v19 offset:{LEK}
ds_write_b32 v23, v26 offset:{LEK+16}
s_mov_b64 exec, -1''')
    a.label('LA_noh3')
    a(f'''v_and_b32 v4, 3, v2
v_lshlrev_b32 v4, 2, v4
s_mul_i32 s40, s41, 384
s_lshl_b32 s42, s3, 6
s_add_u32 s42, s40, s42
v_lshl_add_u32 v6, v3, 4, s42
v_and_b32 v7, 31, v1
v_lshl_add_u32 v7, v7, 1, s42
s_movk_i32 s55, 1536''')
    a.bar()
    a.stamp('b3')
    a('s_setprio 3')
    a.wave_is('lt', 6, 'LA_noe')
    a(f'''ds_read_b32 v5, v4 offset:{LEK}
ds_read_b128 v[8:11], v12 offset:{LEK}
s_waitcnt lgkmcnt(1)
v_mad_u32_u24 v5, v5, s55, v6
global_load_dwordx4 v[224:227], v5, {CKV} {'nt' if P['e_nt'] else ''}
s_waitcnt lgkmcnt(0)''')
    for j in range(4): a(f'v_mad_u32_u24 v{8+j}, v{8+j}, s55, v7\nglobal_load_ushort v{232+j}, v{8+j}, {CKV} {"nt" if P["e_nt"] else ""}')
    a(f's_mul_i32 s40, s3, 3072\ns_add_u32 s40, s40, {LKP}\nv_lshl_add_u32 v4, v1, 4, s40\ns_waitcnt vmcnt(4)')
    a.stamp('erow')
    mfma12(a, 16, 224, 64)
    for t in range(3):
        d = 16 + 16*t
        for r in range(4): a(f'v_permlane16_swap_b32 v{d+r}, v{d+4+r}\nv_permlane16_swap_b32 v{d+8+r}, v{d+12+r}')
        for r in range(4): a(f'v_permlane32_swap_b32 v{d+r}, v{d+8+r}')
        a(f'ds_write_b128 v4, {vr(d,4)} offset:{1024*t}')
    a('s_branch LA_b4')
    a.label('LA_noe')
    a.label('LA_g')
    a(f'''s_setprio 1
s_and_b32 s42, s3, 1
s_mul_i32 s40, s42, 768
s_add_u32 s40, s40, {LRP}
v_lshl_add_u32 v248, v2, 5, s40
v_lshl_add_u32 v249, v2, 4, s40
s_lshl_b32 s40, s42, 8
s_add_u32 s40, s40, {LWP}
v_and_b32 v250, 1, v2
v_lshlrev_b32 v250, 7, v250
v_lshl_add_u32 v250, v3, 4, v250
v_add_u32 v250, s40, v250
v_lshl_add_u32 v251, v1, 1, s40
s_lshl_b32 s43, s42, 6
v_add_u32 v7, s43, v1
s_lshl_b32 s40, s44, 11
s_add_u32 s40, s40, {AUX}
v_lshl_add_u32 v6, v7, 4, s40
ds_read_b128 v[24:27], v12 offset:{LEK+16}
s_lshl_b32 s40, s44, 7
s_add_u32 s40, s40, s43
v_lshl_add_u32 v4, v3, 3, s40
v_mul_u32_u24 v4, 384, v4
v_add_u32 v4, {H4}, v4
v_lshl_add_u32 v5, v2, 3, v4
v_lshl_add_u32 v4, v2, 4, v4
v_add_u32 v10, {32*384}, v4
v_add_u32 v11, {32*384}, v5
s_mov_b64 s[52:53], 0
s_mov_b32 s48, 0x01010101
v_mov_b32 v22, {NEGINF:#x}
s_lshl_b32 s40, s42, 3
v_mov_b32 v23, s40
s_waitcnt lgkmcnt(0)
v_cmp_eq_u32 s[54:55], v24, v7''')
    for j in range(1, 4): a(f'v_cmp_eq_u32 vcc, v{24+j}, v7\ns_or_b64 s[54:55], s[54:55], vcc')
    a(f's_sleep {P["pre_aux"]}')
    a.label('LA_g0')
    a(f'''global_load_dwordx4 v[28:31], v6, {WS} sc1
s_waitcnt vmcnt(0)
v_cmp_eq_u32 vcc, {TAG}, v29
v_cmp_eq_u32 s[50:51], {TAG}, v31
s_and_b64 s[50:51], s[50:51], vcc
s_andn2_b64 s[42:43], s[50:51], s[52:53]
s_mov_b64 s[52:53], s[50:51]
s_cbranch_scc0 LA_gn''')
    for b in range(2):
        for j in range(8):
            a(f'''s_lshr_b32 s40, s{42+b}, {j}
s_and_b32 s40, s40, s48
s_cbranch_scc0 LA_gs{b}_{j}
s_and_b32 s38, s40, 0x101
s_lshr_b32 s39, s40, 16
s_mul_i32 s38, s38, 0x101
s_mul_i32 s39, s39, 0x101
s_and_b32 s38, s38, 0x10001
s_and_b32 s39, s39, 0x10001
s_mul_i32 exec_lo, s38, 0xffff
s_mul_i32 exec_hi, s39, 0xffff
global_load_dwordx4 {vr(64+48*b+4*j,4)}, v{4+6*b}, {WS} offset:{384*j} sc1
global_load_dwordx2 {vr(96+48*b+2*j,2)}, v{5+6*b}, {WS} offset:{384*j+256} sc1
LA_gs{b}_{j}:''')
    a(f'''s_mov_b64 exec, -1
s_cmp_eq_u64 s[52:53], -1
s_cbranch_scc1 LA_g1
LA_gn:
s_add_u32 {SPIN}, {SPIN}, 1
s_cmp_gt_u32 {SPIN}, {SPINMAX}
s_cbranch_scc1 LA_g1
s_sleep {P['sl_aux']}
s_branch LA_g0
LA_g1:''')
    a.stamp('aux')
    a('s_setprio 3\nv_cndmask_b32 v16, v28, v22, s[54:55]\nv_mov_b32 v20, v16')
    a.wave_red('v_max_f32', 20, 21)
    a(f'''v_sub_f32 v16, v16, v20
v_mul_f32 v16, s56, v16
v_exp_f32 v16, v16
v_cvt_pk_bf16_f32 v8, v16, v16
v_mul_f32 v21, v16, v30
ds_write_b16 v251, v8
v_and_b32 v9, 0xffff0000, v8
v_sub_f32 v9, v16, v9
v_cvt_pk_bf16_f32 v9, v9, v9
ds_write_b16 v251, v9 offset:128
s_waitcnt lgkmcnt(0)
ds_read_b128 v[224:227], v250
ds_read_b128 v[228:231], v250 offset:64''')
    a.wave_red('v_add_f32', 21, 22)
    a(f'v_mov_b32 v8, 1\nds_write_b64 v23, v[20:21] offset:{LFW+96}\ns_mov_b64 exec, 1\nds_add_u32 v12, v8 offset:{LFL+8}\ns_mov_b64 exec, -1\ns_waitcnt vmcnt(0) lgkmcnt(0)')
    a.stamp('gath')
    for b in range(2):
        for e in range(12):
            nreg, src, ee = (4, 64 + 48*b, e) if e < 8 else (2, 96 + 48*b, e - 8)
            f = 16 + 4*(e % 6) + 24*b
            for k in range(4):
                a(f'v_perm_b32 v{f+k}, v{src+(2*k+1)*nreg+(ee>>1)}, v{src+2*k*nreg+(ee>>1)}, {PHI if ee & 1 else PLO}')
            a(f'v_mfma_f32_16x16x32_bf16 {vr(160+4*e,4)}, {vr(224+4*b,4)}, {vr(f,4)}, {"0" if b == 0 else vr(160+4*e,4)}')
    out12(a, 160, 16, 248)
    fl_add(3)
    a('s_branch LA_nov')
    a.label('LA_b4')
    a(f'v_mov_b32 v8, 1\ns_mov_b64 exec, 1\nds_add_u32 v12, v8 offset:{LFL}\ns_mov_b64 exec, -1')
    a.wave_is('lt', 3, 'LA_nopub')
    a(f'v_lshlrev_b32 v6, 4, v0\nv_add_u32 v7, {LKP}, v6\ns_mul_i32 s40, s44, 3072\ns_add_u32 s40, s40, {H4S}\nv_add_u32 v6, s40, v6')
    fl_wait(0, 'LA_f0', 6)
    a.stamp('b4')
    for w in range(6): a(f'ds_read_b128 {vr(16+4*w,4)}, v7 offset:{3072*w}')
    a('s_waitcnt lgkmcnt(0)')
    tree(a, range(16, 40, 4), n=4)
    a.st_local('s[38:39]', f'global_store_dwordx4 v6, v[16:19], {WS}')
    a.stamp('kpub')
    a('s_branch LA_l2')
    a.label('LA_nopub')
    a.wave_is('eq', 5, 'LA_w6')
    a(f'''s_mul_i32 s40, s47, 12288
s_add_u32 s40, s40, {H4S}
v_lshl_add_u32 v4, v1, 4, s40
v_add_u32 v5, 3072, v4
v_add_u32 v6, 6144, v4
v_add_u32 v7, 9216, v4
v_lshl_add_u32 v8, v2, 3, v3
v_lshlrev_b32 v8, 1, v8
v_lshl_add_u32 v9, v2, 2, v3
v_lshlrev_b32 v9, 1, v9
v_lshlrev_b32 v10, 2, v3
ds_read_u16 v64, v8 offset:{LQ}
ds_read_u16 v65, v8 offset:{LQ+8}
ds_read_u16 v66, v9 offset:{LQ+256}
ds_read_b32 v67, v10 offset:{LEK+16}
v_lshl_add_u32 v11, v1, 10, s40
s_sleep {P['pre_h4s']}''')
    if P['pr_h4s']: a.probe(11, 16, sleep=P['pr_h4s'], mask=0xfff)
    def ld():
        for qq in range(4):
            for k in range(3): a(f'global_load_dwordx4 {vr(16+(qq*3+k)*4,4)}, v{4+qq}, {WS} offset:{1024*k} sc1')
    a.poll(ld, lambda: a.chk_sent(range(16, 64), 9), sleep=P['sl_h4s'])

    a.stamp('h4s')
    a('s_waitcnt lgkmcnt(0)\nv_cmp_gt_u32 s[52:53], 0x80, v67' if False else 's_waitcnt lgkmcnt(0)\ns_movk_i32 s40, 128\nv_cmp_gt_u32 s[52:53], s40, v67')
    for k in range(3): a(f'v_lshlrev_b32 v{64+k}, 16, v{64+k}')
    for i in range(0, 12, 2): a(f'v_pk_add_f32 {vr(16+i,2)}, {vr(16+i,2)}, {vr(28+i,2)}\nv_pk_add_f32 {vr(40+i,2)}, {vr(40+i,2)}, {vr(52+i,2)}')
    for i in range(0, 12, 2): a(f'v_pk_add_f32 {vr(16+i,2)}, {vr(16+i,2)}, {vr(40+i,2)}')
    for i in range(0, 12, 2): a(f'v_cvt_pk_bf16_f32 v{17+i}, v{16+i}, v{17+i}')
    for i in range(0, 12, 2): a(f'v_lshlrev_b32 v{16+i}, 16, v{17+i}\nv_and_b32 v{17+i}, 0xffff0000, v{17+i}')
    for j in range(4):
        a(f'v_mul_f32 v{68+j}, v{16+j}, v64\nv_fmac_f32 v{68+j}, v{20+j}, v65\nv_fmac_f32 v{68+j}, v{24+j}, v66')
    a.row_red('v_add_f32', [68, 69, 70, 71])
    a.xrow_tr4(68)
    a.rnd(68, 68)
    a('v_mul_f32 v68, s59, v68')
    a.rnd(68, 68)
    a(f'v_mov_b32 v21, {NEGINF:#x}\nv_cndmask_b32 v68, v21, v68, s[52:53]\nv_lshlrev_b32 v11, 3, v3')
    fl_wait(2, 'LA_f2', 3)
    a(f'''ds_read_b64 v[228:229], v11 offset:{LFW+64}
ds_read_b64 v[230:231], v11 offset:{LFW+96}
s_waitcnt lgkmcnt(0)
v_max3_f32 v69, v68, v228, v230''')
    a.xrow_red('v_max_f32', 69, 70)
    a(f'''v_sub_f32 v68, v68, v69
v_sub_f32 v228, v228, v69
v_sub_f32 v230, v230, v69
v_mul_f32 v68, s56, v68
v_mul_f32 v228, s56, v228
v_mul_f32 v230, s56, v230
v_exp_f32 v68, v68
v_exp_f32 v228, v228
v_exp_f32 v230, v230
v_fma_f32 v70, v228, v229, v68
v_fmac_f32 v70, v230, v231''')
    a.xrow_red('v_add_f32', 70, 71)
    a.recip(71, 70, 72)
    a.div(73, 68, 70, 71, 72)
    a.rnd(73, 73)
    a(f'''v_mul_f32 v74, v230, v71
v_mul_f32 v75, v228, v71
ds_write_b32 v10, v73 offset:{LFW}
ds_write_b32 v10, v75 offset:{LFW+16}
ds_write_b32 v10, v74 offset:{LFW+32}''')
    fl_add(3)
    a('s_branch LA_l2')
    a.label('LA_w6')
    a.wave_is('eq', 4, 'LA_l2')
    a(f'''v_lshlrev_b32 v10, 2, v3
ds_read_b32 v11, v10 offset:{LEK+16}
s_lshl_b32 s40, s47, 13
s_lshl_b32 s42, s41, 9
s_add_u32 s40, s40, s42
s_add_u32 s40, s40, {SIDE}
v_lshl_add_u32 v6, v3, 11, s40
v_lshl_add_u32 v4, v2, 4, v6
v_lshl_add_u32 v5, v2, 3, v6
v_mul_u32_u24 v9, 384, v3
v_lshl_add_u32 v7, v2, 4, v9
v_lshl_add_u32 v9, v2, 3, v9
v_lshlrev_b32 v10, 3, v3
v_mov_b32 v24, {NEGINF:#x}
v_mov_b32 v26, 0
s_movk_i32 s40, 128
s_waitcnt lgkmcnt(0)
v_cmp_gt_u32 s[52:53], s40, v11''')
    for i in range(6): a(f'v_mov_b32 v{16+i}, 0')
    a(f's_sleep {P["pre_side"]}\ns_mov_b64 exec, s[52:53]')
    def ck():
        a.chk_sent(range(16, 22), 8)
        a(f'v_cmp_ne_u32 s[50:51], {TAG}, v25\ns_or_b64 vcc, vcc, s[50:51]\nv_cmp_ne_u32 s[50:51], {TAG}, v27\ns_or_b64 vcc, vcc, s[50:51]')
    a.poll(lambda: a(f'global_load_dwordx4 v[16:19], v4, {WS} sc1\nglobal_load_dwordx2 v[20:21], v5, {WS} offset:256 sc1\nglobal_load_dwordx4 v[24:27], v6, {WS} offset:384 sc1'),
           ck, sleep=P['sl_side'])
    a.full()
    a.stamp('side')
    a(f'v_mov_b32 v25, v26\nds_write_b128 v7, v[16:19] offset:{LSR}\nds_write_b64 v9, v[20:21] offset:{LSR+256}\nds_write_b64 v10, v[24:25] offset:{LFW+64}')
    fl_add(2)
    a.label('LA_l2')
    a(f'''s_lshl_b32 s40, s3, 7
v_and_b32 v4, 31, v1
v_lshl_add_u32 v5, v4, 1, s40
s_lshl_b32 s42, s3, 6
v_lshl_add_u32 v7, v4, 1, s42
v_lshl_add_u32 v4, v4, 2, s40
v_mov_b32 v20, 0
v_mov_b32 v21, 0
v_mov_b32 v22, 0
v_mov_b32 v23, 0''')
    frag2_addr(a, 6, 's40')
    out12_prep(a, 248, LVP)
    a('s_waitcnt vmcnt(0)')
    for j in range(4): a(f'v_lshlrev_b32 v{232+j}, 16, v{232+j}')
    fl_wait(3, 'x', 3)
    a.stamp('b6')
    for w in range(2): a(f'ds_read_b32 v{16+w}, v4 offset:{LRP + 768*w}')
    for j in range(4): a(f'ds_read_u16_d16_hi v{20+j}, v7 offset:{LSR + 384*j}')
    a(f'ds_read_b128 v[24:27], v12 offset:{LFW}\nds_read_b128 v[28:31], v12 offset:{LFW+16}\nds_read_b64 v[32:33], v12 offset:{LFW+32}')
    a(f'''s_waitcnt lgkmcnt(0)
v_mul_f32 v16, v16, v32
v_mul_f32 v24, v24, v232
v_mul_f32 v28, v28, v20
v_fmac_f32 v16, v17, v33
v_fmac_f32 v24, v25, v233
v_fmac_f32 v28, v29, v21
v_fmac_f32 v24, v26, v234
v_fmac_f32 v28, v30, v22
v_fmac_f32 v24, v27, v235
v_fmac_f32 v28, v31, v23
v_add_f32 v24, v24, v28
v_add_f32 v16, v16, v24
v_cvt_pk_bf16_f32 v17, v16, v16
ds_write_b16 v5, v17 offset:{LCC}
v_and_b32 v18, 0xffff0000, v17
v_sub_f32 v18, v16, v18
v_cvt_pk_bf16_f32 v18, v18, v18
ds_write_b16 v5, v18 offset:{LCC+64}
s_waitcnt lgkmcnt(0)
ds_read_b128 v[224:227], v6 offset:{LCC}
s_waitcnt lgkmcnt(0)''')
    mfma12(a, 128, 224, 176)
    out12(a, 128, 16, 248)
    a.label('LA_nov')
    a(f'''v_lshlrev_b32 v4, 4, v1
s_mul_i32 s40, s47, 3072
s_lshl_b32 s42, s41, 8
s_add_u32 s40, s40, s42
s_add_u32 s40, s40, {H5}
v_lshlrev_b32 v5, 10, v3
v_lshl_add_u32 v5, v2, 4, v5
v_add_u32 v5, s40, v5''')
    a.bar()
    a.wave_is('eq', 0, 'Lfin')
    for w in range(6): a(f'ds_read_b128 {vr(16+4*w,4)}, v4 offset:{LVP + 768*w}')
    a('s_waitcnt lgkmcnt(0)')
    tree(a, range(16, 40, 4), n=4)
    a.lanes_lt(48)
    a.st_local('s[38:39]', f'global_store_dwordx4 v5, v[16:19], {WS}')
    a.full()
    a.stamp('h5pub')
    a(f'''s_add_u32 s40, s44, s3
s_cmp_eq_u32 s40, 0
s_cbranch_scc0 Lfin
v_mov_b32 v5, {TAG}
global_store_dword v12, v5, {WS} sc1''')

DEFAULTS = dict(code_last=0x1000, stamps=False, warm_loads=2, sl_pr=1, sl_pr3=4, sl_h1=3, sl_h1b=1, sl_h2=1, sl_h3=2, sl_aux=2, sl_h4s=1, sl_h5=1, sl_h6=3, sl_h7=2, sl_x2=4, sl_lw=1, lw_cnt=4, dma1=5, sl_top2=4, pre_h7=12, dma15=0, nack=0, h2w=0, col_at=0, pr_h4s=2, early_hi=2, g6=0, dma0=12, gsplit=4, s1x=0, rot=0, uv_ad=0, sl_dma=0, sl_b80=0, uv1=0, h2lay=0, dma8=0, bpf=0, pf_pol=2, sl_pf=10, pre_hdr=8, pv_local=0, g_pol=0, pre_l2=6, sl_hdr=2, sl_l2=2, local=1, early_late=1, sl_pr2=1, sl_dma2=0, m_h2=0, m_h6=0, k_h2=3, pre_aux=30, swap=0, sl_a80=30, pre_h1=0, tlb=0, e_nt=0, pv_nt=0, uk1=0, ew_cnt=4, sl_el=1, pre_side=10, sl_side=2, sl_uv=20, pre_h4s=4, sl_top=6,
    probe_h1b=0, post_h1b=1, probe_h2=1, post_h2=0, probe_h3=1, post_h3=0, probe_aux=0, post_aux=2, probe_h5=0, post_h5=1, probe_h6=0, post_h6=1, probe_h7=1, post_h7=0)

def generate(**kw):
    P = dict(DEFAULTS); P.update(kw)
    a = G(P)
    a(f'''s_cmp_ge_u32 s2, 256
s_cbranch_scc1 Lend
s_load_dwordx16 s[4:19], s[0:1], 0
{'s_xor_b32 s2, s2, 128' if P['swap'] else 's_nop 0'}
s_load_dwordx8 s[20:27], s[0:1], 64
{f's_add_u32 s3, s2, {P["rot"]}' if P['rot'] else ''}
{'s_and_b32 s3, s3, 7' if P['rot'] else ''}
{'s_andn2_b32 s2, s2, 7' if P['rot'] else ''}
{'s_or_b32 s2, s2, s3' if P['rot'] else ''}
s_load_dwordx4 s[28:31], s[0:1], 96
s_getpc_b64 s[36:37]
Lpc:
v_lshrrev_b32 v4, 6, v0
v_and_b32 v1, 63, v0
v_readfirstlane_b32 s3, v4
v_and_b32 v2, 15, v0
v_lshrrev_b32 v3, 4, v1''')
    if P['stamps']:
        for i in range(21): a(f's_mov_b64 s[{60+2*i}:{61+2*i}], 0')
    if P.get('dbgtime') or P.get('padto'): a('s_memrealtime s[60:61]')
    a('s_cmp_lt_u32 s2, 128\ns_cbranch_scc1 LB')
    role_A(a)
    namesA = a.stnames; a.stnames = []
    a.label('LB')
    role_B(a)
    namesB = a.stnames; a.stnames = namesA
    role_A2(a)
    a('s_branch Lfin')
    namesA = a.stnames; a.stnames = namesB
    role_B2(a)
    namesB = a.stnames
    a.label('Lfin')
    if P['stamps']:
        a(f'''s_waitcnt lgkmcnt(0)
s_lshl_b32 s40, s2, 3
s_add_u32 s40, s40, s3
s_lshl_b32 s40, s40, 7
s_add_u32 s40, s40, {STAMP}
v_mov_b32 v4, s40''')
        for i in range(21): a(f'v_mov_b32 v5, s{60+2*i}\nglobal_store_dword v4, v5, {WS} offset:{4*i}')
    if P.get('dbgtime'):
        a(f'''s_memrealtime s[62:63]
s_cmp_eq_u32 s3, 7
s_cbranch_scc0 Lend
s_and_b32 s40, s2, 31
s_cmp_eq_u32 s40, 31
s_cbranch_scc0 Lend
s_waitcnt lgkmcnt(0)
s_lshr_b32 s40, s2, 5
s_lshl_b32 s40, s40, 3
v_mov_b32 v4, s40
v_mov_b32 v6, s60
v_mov_b32 v7, s62
s_mov_b64 exec, 1
global_store_dwordx2 v4, v[6:7], s[28:29]''')
    if P.get('padto'):
        a(f'''s_add_u32 s40, s2, s3
s_cmp_eq_u32 s40, 0
s_cbranch_scc0 Lend
Lpad:
s_memrealtime s[62:63]
s_waitcnt lgkmcnt(0)
s_sub_u32 s40, s62, s60
s_cmp_lt_u32 s40, {P['padto']}
s_cbranch_scc1 Lpad''')
    a.label('Lend')
    a('s_endpgm')
    a.raw('Lcode_end:')
    hdr = open(f'cdna_kernels/{NAME}.s.ref').read().split('; Override launch')[0]
    lds = MISC + 8192 + 256 + 8192
    doc = '''; One persistent launch, 256 workgroups (one per CU), two roles:
; so that the bf16 rounding of the scores follows the reference; their tile partials are re-sent without that key.
; Hand-offs go through d_ws: {value,tag} granules (tag derived from an epoch word in d_ws), or slots cleared to
'''
    txt = hdr + f'''; @launch grid=(256,1,1) block=(512,1,1) lds={lds}
''' + doc + f'''.amdgcn_target "amdgcn-amd-amdhsa--gfx950"
.text
.globl {NAME}_kernel
.p2align 8
.type {NAME}_kernel,@function
.set CODE_LAST, {P['code_last']:#x}
{NAME}_kernel:
''' + a.text() + f'''.section .rodata,"a"
.p2align 6
.amdhsa_kernel {NAME}_kernel
  .amdhsa_next_free_vgpr 256
  .amdhsa_next_free_sgpr 102
  .amdhsa_accum_offset 256
  .amdhsa_group_segment_fixed_size 0
  .amdhsa_kernarg_size 112
  .amdhsa_user_sgpr_count 2
  .amdhsa_user_sgpr_kernarg_segment_ptr 1
  .amdhsa_system_sgpr_workgroup_id_x 1
  .amdhsa_float_denorm_mode_32 3
.end_amdhsa_kernel
'''
    return txt, namesB, namesA

if __name__ == '__main__':
    import json
    out = sys.argv[1]
    kw = {}
    for x in sys.argv[2:]:
        k, v = x.split('='); kw[k] = int(v)
    import subprocess, re
    txt, nb, na = generate(**kw)
    open('_g.s', 'w').write(txt)
    subprocess.check_call(['clang', '-x', 'assembler', '-target', 'amdgcn-amd-amdhsa', '-mcpu=gfx950', '-c', '_g.s', '-o', '_g.o'])
    h = subprocess.check_output(['llvm-objdump', '-h', '_g.o'], text=True)
    size = int(re.search(r'\.text\s+([0-9a-f]+)', h).group(1), 16)
    kw['code_last'] = size - 0x40 - 4
    assert size <= 32768 * kw.get('warm_loads', DEFAULTS['warm_loads'])
    txt, nb, na = generate(**kw)
    print('code bytes', size)
    open(out, 'w').write(txt)
    json.dump({'B': nb, 'A': na}, open(out + '.names.json', 'w'))
```

```python
import sys, struct
sys.path.insert(0, 'gen')
from asmlib import *
NAME = 'adaLN_cond__compressed_kv_cla__dense_activation_relu__decode'

EPOCH, READY, H1, H1B, H2, H3, AUX, H4S, H5 = 0x0, 0x1000, 0x2000, 0x120000, 0x58000, 0x68000, 0x1A0000, 0x88000, 0xE8000
H6, MODR, H7F, H7X, H4, STAMP = 0x100000, 0x108000, 0x110000, 0x111000, 0x200000, 0x4000000
H7Y = 0x110000
H4G, HDR, MB = 0x880000, 0x1FA000, 0x78000
DB3, DB4, ELIST, SIDE = 0x1E0000, 0x1E4000, 0x1F8000, 0x18000
X, CKV, WQ, WUK, WUV, WO, W1, W2, CC, WMOD, OUT, WS = [f's[{i}:{i+1}]' for i in (4, 6, 8, 10, 12, 14, 18, 20, 22, 24, 26, 30)]
TAG, SPIN, PLO, PHI = 's32', 's33', 's34', 's35'
SPINMAX = 200000
def f2u(x): return struct.unpack('<I', struct.pack('<f', x))[0]
L2E = f2u(1.4426950408889634)
L2E_LO = f2u(1.4426950408889634 - struct.unpack('<f', struct.pack('<f', 1.4426950408889634))[0])
LN2 = f2u(0.6931471805599453)
SCALE = f2u(192 ** -0.5)
NEGINF = 0xff800000

class G(Asm):
    def __init__(self, P):
        super().__init__(); self.P = P; self.nst = 0; self.stnames = []
    def stamp(self, name):
        if not self.P.get('stamps'): return
        if name in ('wq', 'b4', 'hdr', 'late2', 'h1', 'lepub'): return
        if name.startswith('x') != (self.P['stamps'] == 2) and name not in ('start', 'h1pub', 'out', 'wq', 'h1', 'qpub', 'h1b', 'h2pub', 'h5', 'h6pub', 'h6', 'h7pub', 'gath', 'b6', 'h5pub', 'h2', 'qk', 'h3pub', 'pvst', 'auxpub'): return
        i = self.stnames.index(name) if name in self.stnames else None
        if i is None:
            self.stnames.append(name); i = len(self.stnames) - 1
        assert i < 21
        self(f's_memrealtime s[{60+2*i}:{61+2*i}]')
    def rnd(self, d, s):
        self(f'v_cvt_pk_bf16_f32 v{d}, v{s}, v{s}\nv_and_b32 v{d}, 0xffff0000, v{d}')
    def wave_is(self, cond, n, lab):
        self(f's_cmp_{cond}_u32 s3, {n}\ns_cbranch_scc0 {lab}')
    def row_red(self, op, regs):
        for k in (8, 4, 2, 1):
            for r in regs: self(f'{op}_dpp v{r}, v{r}, v{r} row_ror:{k} row_mask:0xf bank_mask:0xf')
    def xrow_red(self, op, r, t):
        self(f'v_mov_b32 v{t}, v{r}\nv_permlane16_swap_b32 v{r}, v{t}\n{op} v{r}, v{r}, v{t}')
        self(f'v_mov_b32 v{t}, v{r}\nv_permlane32_swap_b32 v{r}, v{t}\n{op} v{r}, v{r}, v{t}')
    def wave_red(self, op, r, t):
        self.row_red(op, [r]); self.xrow_red(op, r, t)
    def xrow_tr4(self, r):
        self(f'''v_permlane16_swap_b32 v{r}, v{r+1}
v_permlane16_swap_b32 v{r+2}, v{r+3}
v_add_f32 v{r}, v{r}, v{r+1}
v_add_f32 v{r+2}, v{r+2}, v{r+3}
v_permlane32_swap_b32 v{r}, v{r+2}
v_add_f32 v{r}, v{r}, v{r+2}''')
    def recip(self, d, y, t):
        self(f'v_rcp_f32 v{d}, v{y}\nv_fma_f32 v{t}, -v{y}, v{d}, 1.0\nv_fma_f32 v{d}, v{t}, v{d}, v{d}')
    def div(self, d, x, y, rinv, t):
        self(f'v_mul_f32 v{d}, v{x}, v{rinv}\nv_fma_f32 v{t}, -v{y}, v{d}, v{x}\nv_fma_f32 v{d}, v{t}, v{rinv}, v{d}')
    def silu(self, d, x, t):
        self(f'''v_mul_f32 v{t}, s56, v{x}
v_fma_f32 v{t+1}, v{x}, s56, -v{t}
v_fma_f32 v{t+1}, v{x}, s57, v{t+1}
v_exp_f32 v{t}, -v{t}
v_mul_f32 v{t+1}, s58, v{t+1}
v_fma_f32 v{t}, -v{t}, v{t+1}, v{t}
v_min_f32 v{t}, 0x7f000000, v{t}
v_add_f32 v{t}, 1.0, v{t}''')
        self.recip(t + 1, t, t + 2)
        self.div(t + 3, x, t, t + 1, t + 2)
        self.rnd(d, t + 3)
    def perm_block(self, dst, src, nreg=4, rows=8):
        for e in range(2 * nreg):
            for k in range(rows // 2):
                self(f'v_perm_b32 v{dst + e * (rows // 2) + k}, v{src + (2*k+1) * nreg + (e >> 1)}, v{src + 2*k*nreg + (e >> 1)}, {PHI if e & 1 else PLO}')
    def poll(self, loads, check, sleep=2, pre=None, mid=None):
        top = self.newlabel('Lp'); done = self.newlabel('Ld'); chk = self.newlabel('Lc')
        if pre: self(f's_sleep {pre}')
        if mid:
            loads(); mid(); self(f's_branch {chk}')
        self.label(top)
        loads()
        self.label(chk)
        self('s_waitcnt vmcnt(0)')
        check()
        self(f'''s_cbranch_vccz {done}
s_add_u32 {SPIN}, {SPIN}, 1
s_cmp_gt_u32 {SPIN}, {SPINMAX}
s_cbranch_scc1 {done}
s_sleep {sleep}
s_branch {top}''')
        self.label(done)
    def poll_masked(self, items, t, sleep=2, tag=False):
        top = self.newlabel('Lm'); done = self.newlabel('Lmd')
        for ld, regs in items: self(ld)
        self.label(top)
        self('s_waitcnt vmcnt(0)\ns_mov_b32 s49, 0')
        for ld, regs in items:
            skip = self.newlabel('Lms')
            if tag: self.chk_tag(regs, t)
            else: self.chk_sent(regs, t)
            self(f's_cbranch_vccz {skip}\ns_mov_b64 exec, vcc\n{ld}\ns_mov_b64 exec, -1\ns_mov_b32 s49, 1')
            self.label(skip)
        self(f'''s_cmp_eq_u32 s49, 0
s_cbranch_scc1 {done}
s_add_u32 {SPIN}, {SPIN}, 1
s_cmp_gt_u32 {SPIN}, {SPINMAX}
s_cbranch_scc1 {done}
s_sleep {sleep}
s_branch {top}''')
        self.label(done)
        self('s_waitcnt vmcnt(0)')
    def lds_wait(self, addr, n, off=0, sleep=1, extra=None, t=8):
        top = self.newlabel('Lw'); done = self.newlabel('Lwd')
        self.label(top)
        self(f'ds_read_b32 v{t}, v{addr} offset:{off}')
        if extra: self(extra)
        self(f'''s_waitcnt lgkmcnt(0)
v_cmp_gt_u32 vcc, {n}, v{t}
s_cbranch_vccz {done}
s_add_u32 {SPIN}, {SPIN}, 1
s_cmp_gt_u32 {SPIN}, {SPINMAX}
s_cbranch_scc1 {done}
s_sleep {sleep}
s_branch {top}''')
        self.label(done)
    def probe(self, va, t, off=0, sleep=1, post=None, tag=False, mask=1):
        self.exec_mask(mask)
        def ck():
            if tag: self(f'v_cmp_ne_u32 vcc, {TAG}, v{t}')
            else: self(f'v_cmp_eq_u32 vcc, -1, v{t}')
        self.poll(lambda: self(f'global_load_dword v{t}, v{va}, {WS} offset:{off} sc1'), ck, sleep=sleep)
        self.full()
        if post: self(f's_sleep {post}')
    def chk_sent(self, regs, t):
        regs = list(regs)
        if len(regs) == 1:
            self(f'v_cmp_eq_u32 vcc, -1, v{regs[0]}'); return
        if len(regs) == 2: self(f'v_max_u32 v{t}, v{regs[0]}, v{regs[1]}'); rest = []
        else: self(f'v_max3_u32 v{t}, v{regs[0]}, v{regs[1]}, v{regs[2]}'); rest = regs[3:]
        while rest:
            if len(rest) >= 2: self(f'v_max3_u32 v{t}, v{t}, v{rest[0]}, v{rest[1]}'); rest = rest[2:]
            else: self(f'v_max_u32 v{t}, v{t}, v{rest[0]}'); rest = []
        self(f'v_cmp_eq_u32 vcc, -1, v{t}')
    def chk_tag(self, regs, t):
        regs = list(regs)
        self(f'v_cmp_ne_u32 vcc, {TAG}, v{regs[0]}')
        for r in regs[1:]:
            self(f'v_cmp_ne_u32 s[50:51], {TAG}, v{r}\ns_or_b64 vcc, vcc, s[50:51]')
    def san(self, regs):
        for r in regs: self(f'v_min_u32 v{r}, -2, v{r}')
    def lanes_lt(self, n):
        assert n <= 64
        lo = (1 << min(n, 32)) - 1; hi = (1 << max(n - 32, 0)) - 1
        self(f's_mov_b32 exec_lo, {lo:#x}\ns_mov_b32 exec_hi, {hi:#x}')
    def exec_mask(self, m):
        self(f's_mov_b32 exec_lo, {m & 0xffffffff:#x}\ns_mov_b32 exec_hi, {m >> 32:#x}')
    def full(self): self('s_mov_b64 exec, -1')
    def bar(self): self('s_waitcnt lgkmcnt(0)\ns_barrier')
    def get_tag(self):
        self(f'''v_readfirstlane_b32 {TAG}, v15
s_mul_i32 {TAG}, {TAG}, 0x9E3779B1
s_add_u32 {TAG}, {TAG}, 0x7F4A7C15''')
    def ready_publish(self):
        self('s_getreg_b32 s41x, hwreg(HW_REG_XCC_ID, 0, 4)\ns_waitcnt vmcnt(0)'.replace('s41x', 's51'))
        self.get_tag()
        self(f'''s_lshl_b32 s40, s2, 4
s_add_u32 s40, s40, {READY}
v_mov_b32 v4, s40
v_mov_b32 v6, {TAG}
v_mov_b32 v7, s51''')
        self.lanes_lt(1)
        self(f'global_store_dwordx2 v4, v[6:7], {WS} sc1')
        self.full()
    def st_local(self, mism, *sts):
        far = self.newlabel('Lsf'); done = self.newlabel('Lsd')
        if self.P['local']:
            self(f's_cmp_eq_u64 {mism}, 0\ns_cbranch_scc0 {far}')
            for st in sts: self(st)
            self(f's_branch {done}')
            self.label(far)
        for st in sts: self(st + ' sc1')
        self.label(done)
    def ready_check(self, half, v=8):
        self(f'v_lshlrev_b32 v{v+2}, 4, v1\nv_add_u32 v{v+2}, {READY + 2048*half}, v{v+2}')
        def ld():
            for i in range(2): self(f'global_load_dword v{v+i}, v{v+2}, {WS} offset:{1024*i} sc1')
        self.poll(ld, lambda: self.chk_tag([v, v + 1], 0), sleep=4)
    def gemv2(self, D, A, F, first=True):
        for e in range(8):
            c = '0' if first else vr(D + 4*e, 4)
            self(f'v_mfma_f32_16x16x32_bf16 {vr(D+4*e,4)}, {vr(A,4)}, {vr(F+4*e,4)}, {c}')
    def pack2(self, o, D):
        for i in range(4):
            self(f'v_add_f32_dpp v{o+i}, v{D+4*i+1}, v{D+4*i} row_ror:8 row_mask:0xf bank_mask:0x3')
        for i in range(4):
            self(f'v_add_f32_dpp v{o+i}, v{D+4*(i+4)}, v{D+4*(i+4)+1} row_ror:8 row_mask:0xf bank_mask:0xc')
    def load_rows(self, dst, nreg, va, base, pitch, rows=8, pol='nt', t=None):
        op = {1: 'dword', 2: 'dwordx2', 4: 'dwordx4'}[nreg]
        per = 4095 // pitch + 1 if pitch <= 4095 else 1
        for j in range(rows):
            k = j % per
            self(f'global_load_{op} {vr(dst + j*nreg, nreg)}, v{va}, {base} offset:{k*pitch} {pol}')
            if k == per - 1 and j + 1 < rows: self(f'v_add_u32 v{va}, {per*pitch}, v{va}')

def consts(a):
    a(f'''s_mov_b32 {PLO}, 0x05040100
s_mov_b32 {PHI}, 0x07060302
s_mov_b32 {SPIN}, 0
s_mov_b32 s56, {L2E:#x}
s_mov_b32 s57, {L2E_LO:#x}
s_mov_b32 s58, {LN2:#x}
s_mov_b32 s59, {SCALE:#x}''')

def code_warm(a, v=4):
    n = a.P['warm_loads']
    a(f'''s_lshr_b32 s50, s2, 3
s_lshl_b32 s50, s50, 10
v_lshlrev_b32 v{v}, 4, v1
v_add_u32 v{v}, s50, v{v}
v_min_u32 v{v}, CODE_LAST, v{v}
global_load_dword v14, v{v}, s[36:37]''')
    if n > 1:
        a(f'''v_add_u32 v{v}, 32768, v{v}
v_min_u32 v{v}, CODE_LAST, v{v}
global_load_dword v14, v{v}, s[36:37]''')

CT, SPB, PB, STB, MISC = 0, 98304, 98304 + 34816, 98304 + 34816 + 9216, 98304 + 34816 + 9216 + 1024
def blk2_addr(a, v, srow, pitch, scol):
    a(f'''v_lshrrev_b32 v{v}, 3, v2
v_lshlrev_b32 v{v}, 5, v{v}
v_lshl_add_u32 v{v}, v3, 3, v{v}
v_add_u32 v{v}, {srow}, v{v}
v_mul_u32_u24 v{v}, {pitch}, v{v}
v_and_b32 v{v+1}, 7, v2
v_lshl_add_u32 v{v}, v{v+1}, 4, v{v}
v_add_u32 v{v}, {scol}, v{v}''')
def frag2_addr(a, v, sbase):
    a(f'v_and_b32 v{v}, 1, v2\nv_lshlrev_b32 v{v}, 6, v{v}\nv_lshl_add_u32 v{v}, v3, 4, v{v}\nv_add_u32 v{v}, {sbase}, v{v}')
def pack_addr(a, v, sbase):
    a(f'v_and_b32 v{v}, 7, v2\nv_lshlrev_b32 v{v}, 5, v{v}\nv_lshrrev_b32 v{v+1}, 3, v2\nv_lshl_add_u32 v{v}, v{v+1}, 4, v{v}\nv_add_u32 v{v}, {sbase}, v{v}')
def gemv_out_lds(a, D, base):
    a.pack2(8, D)
    a.lanes_lt(16)
    a('ds_write_b128 v14, v[8:11]')
    a.full()
def gemv_out_prep(a, base):
    a(f's_lshl_b32 s40, s3, 8\ns_add_u32 s40, s40, {base}')
    pack_addr(a, 14, 's40')
def tree(a, regs, stride=1, n=1):
    regs = list(regs)
    while len(regs) > 1:
        nxt = []
        for i in range(0, len(regs) - 1, 2):
            for k in range(n): a(f'v_add_f32 v{regs[i]+k}, v{regs[i]+k}, v{regs[i+1]+k}')
            nxt.append(regs[i])
        if len(regs) & 1: nxt.append(regs[-1])
        regs = nxt
def ln_finish(a, m, v, ri):
    a.rnd(m, m); a.rnd(v, v)
    a(f'v_add_f32 v{v}, {f2u(1e-5):#x}, v{v}')
    a.rnd(v, v)
    a(f'v_sqrt_f32 v{v}, v{v}')
    a.rnd(v, v)
    a.recip(ri, v, ri + 1)
def neg1(a, r=8):
    for i in range(4): a(f'v_mov_b32 v{r+i}, -1')

PB2 = SPB + 18432
JP, CP = 3200, 51328
def role_B(a):
    P = a.P
    a(f'''s_and_b32 s39, s2, 7
s_lshr_b32 s38, s2, 3            ; j
s_mul_i32 s55, s38, 43
s_lshr_b32 s55, s55, 7           ; Tp = j/3
s_mul_i32 s40, s55, 3
s_sub_u32 s40, s38, s40          ; cbl
s_lshl_b32 s40, s40, 2
s_mul_i32 s45, s39, 12
s_add_u32 s45, s45, s40
s_lshr_b32 s40, s3, 1
s_add_u32 s45, s45, s40
s_and_b32 s53, s3, 1
s_lshl_b32 s42, s55, 1
s_add_u32 s53, s53, s42          ; T = 2Tp + (w&1)
v_mov_b32 v12, 0
s_lshl_b32 s40, s53, 6
s_lshl_b32 s41, s45, 7''')
    blk2_addr(a, 4, 's40', 12288, 's41')
    a(f'''v_lshlrev_b32 v6, 2, v1
s_lshl_b32 s42, s3, 3
v_and_b32 v7, 7, v1
v_add_u32 v7, s42, v7
v_lshrrev_b32 v8, 5, v1
v_lshl_add_u32 v13, v8, 6, v7
s_min_u32 s40, s55, 4
s_lshl_b32 s40, s40, 7
v_add_u32 v7, s40, v13
v_lshlrev_b32 v7, 1, v7
s_waitcnt lgkmcnt(0)''')
    a.stamp('start')
    for k in range(5): a(f'global_load_dword v{16+k}, v6, {X} offset:{256*k}')
    a(f'global_load_ushort v21, v7, {X}')
    a('s_cmp_lt_u32 s2, 120\ns_cbranch_scc0 LB_nowq')
    a.load_rows(64, 4, 4, WQ, 12288)
    a.label('LB_nowq')
    a(f'global_load_dword v15, v12, {WS} sc1\ns_branch LB2')

def role_B2(a):
    P = a.P
    a.label('LB2')
    a(f'''s_mov_b32 s49, 0
s_mul_i32 s54, s39, 10
s_add_u32 s54, s54, s38
s_add_u32 s40, s2, 0
s_cmp_lt_u32 s38, 10
s_cselect_b32 s54, s54, s40
s_getreg_b32 s16, hwreg(HW_REG_XCC_ID, 0, 4)''')
    a.wave_is('eq', 6, 'LB_not6')
    code_warm(a, 24)
    if P['tlb']:
        a(f'''v_lshlrev_b32 v24, 17, v1
global_load_dword v14, v24, {WS} offset:64 nt''')
    a('s_mov_b32 s49, 1')
    a.label('LB_not6')
    a.wave_is('eq', 7, 'LB_not7')
    neg1(a, 28)
    a(f'''s_mul_i32 s50, s39, 2560
s_lshl_b32 s51, s38, 8
s_add_u32 s50, s50, s51
s_add_u32 s50, s50, {H6}
s_lshl_b32 s51, s54, 8
s_add_u32 s51, s51, {MODR - 104*256}
s_cmp_lt_u32 s54, 104
s_cselect_b32 s50, s50, s51
v_lshl_add_u32 v24, v2, 4, s50
s_cmp_lt_u32 s54, 80
s_cbranch_scc1 LB_c1
s_cmp_lt_u32 s54, 104
s_cbranch_scc0 LB_c1
s_mul_i32 s50, s54, 2560
s_add_u32 s50, s50, {H7Y - 80*2560}
v_lshl_add_u32 v24, v1, 4, s50
global_store_dwordx4 v24, v[28:31], {WS} sc1
global_store_dwordx4 v24, v[28:31], {WS} offset:1024 sc1
v_and_b32 v24, 31, v1
v_lshl_add_u32 v24, v24, 4, s50
v_add_u32 v24, 2048, v24
LB_c1:
global_store_dwordx4 v24, v[28:31], {WS} sc1''')
    a('s_mov_b32 s49, 1')
    a.label('LB_not7')
    a(f'''s_lshl_b32 s46, s2, 6
s_lshl_b32 s41, s3, 3
s_add_u32 s46, s46, s41
s_mul_i32 s46, s46, 1536           ; (64b+8w)*1536
s_and_b32 s47, s3, 1
s_lshl_b32 s47, s47, 3             ; 8*(w&1)
s_mul_i32 s48, s3, 12288
v_cmp_le_u32 vcc, 32, v1
v_add_u32 v56, 64, v1
v_subrev_u32 v57, 32, v1
v_cndmask_b32 v56, v56, v57, vcc
v_cndmask_b32 v58, 0, 1, vcc
v_xor_b32 v56, v56, v58
v_mul_u32_u24 v58, 1536, v58
v_add_u32 v57, 32, v1
v_xor_b32 v57, 1, v57''')
    def dma(lo, hi, other=0):
        for i in range(lo, hi):
            k, j = divmod(i, 3)
            src = ('v1', 'v56', 'v57')[j]
            a(f's_add_u32 s43, s47, {2*k}\nv_xor_b32 v8, s43, {src}')
            a(f's_add_u32 s44, s46, {2*k*1536 + (1536 if j == 2 else 0) + other*32*1536}')
            if j == 1: a('v_lshl_add_u32 v8, v8, 4, v58\nv_add_u32 v8, s44, v8')
            else: a('v_lshl_add_u32 v8, v8, 4, s44')
            a(f's_add_u32 m0, s48, {i*1024 + other*49152}\nglobal_load_lds_dwordx4 v8, {CKV} nt')
    N1 = P['dma1']
    a(f'v_mov_b32 v253, {STB + 520}\nds_write_b32 v253, v12')
    a.bar()
    N0 = min(P['dma0'], N1)
    def early(lab): a(f's_cmp_lt_u32 s39, {P["gsplit"]}\ns_cbranch_scc0 {lab}')
    def vw(base):
        if N0 == N1: a(f's_waitcnt vmcnt({base+N1})'); return
        l1 = a.newlabel('Lv'); l2 = a.newlabel('Lv')
        early(l1); a(f's_waitcnt vmcnt({base+N1})\ns_branch {l2}'); a.label(l1); a(f's_waitcnt vmcnt({base+N0})'); a.label(l2)
    dma(0, N0)
    if N0 < N1:
        early('LB_d0'); dma(N0, N1); a.label('LB_d0')
    consts(a)
    a('s_cmp_ge_u32 s2, 120\ns_cselect_b32 s49, 1, s49\ns_cmp_eq_u32 s49, 0\ns_cbranch_scc1 LB_w8')
    vw(0)
    a.label('LB_w8')
    vw(9)
    for k in range(5): a(f'v_lshlrev_b32 v{24+2*k}, 16, v{16+k}\nv_and_b32 v{25+2*k}, 0xffff0000, v{16+k}')
    a('v_add_f32 v22, v24, v25')
    for k in range(2, 10): a(f'v_add_f32 v22, v22, v{24+k}')
    a.wave_red('v_add_f32', 22, 23)
    a(f'v_mul_f32 v22, {f2u(1/640):#x}, v22\nv_mov_b32 v23, 0')
    for k in range(10): a(f'v_sub_f32 v{24+k}, v{24+k}, v22\nv_fmac_f32 v23, v{24+k}, v{24+k}')
    a.wave_red('v_add_f32', 23, 24)
    a(f'v_mul_f32 v23, {f2u(1/640):#x}, v23')
    ln_finish(a, 22, 23, 24)
    a('v_lshlrev_b32 v21, 16, v21\nv_sub_f32 v21, v21, v22')
    a.rnd(21, 21)
    a.div(20, 21, 23, 24, 25)
    a.rnd(20, 20)
    a('s_cmp_lt_u32 s2, 120\ns_cbranch_scc0 LB_dma0')
    a(f'''s_lshl_b32 s40, s55, 14
s_lshl_b32 s42, s3, 10
s_add_u32 s40, s40, s42
s_add_u32 s40, s40, {H1}
v_lshl_add_u32 v4, v1, 4, s40
v_add_u32 v9, 8192, v4
v_lshlrev_b32 v5, 1, v13
v_add_u32 v5, {MISC}, v5
s_lshl_b32 s40, s39, 4
s_add_u32 s40, s40, {READY + 2048}
v_lshl_add_u32 v10, v2, 7, s40
s_mul_i32 s40, s45, 43
s_lshr_b32 s40, s40, 7
s_mul_i32 s42, s40, 3
s_sub_u32 s42, s45, s42
s_lshl_b32 s42, s42, 9
s_mul_i32 s40, s40, 15360
s_add_u32 s40, s40, s42
s_mul_i32 s42, s53, 1536
s_add_u32 s40, s40, s42
s_add_u32 s40, s40, {H1B}''')
    pack_addr(a, 6, 0)
    a(f'v_lshlrev_b32 v6, 1, v6\nv_lshl_add_u32 v6, v3, 4, v6\nv_add_u32 v6, s40, v6\nv_cmp_eq_u32 s[42:43], 1, v3')
    a(f's_and_b32 s40, s3, 1\ns_lshl_b32 s40, s40, 7\ns_add_u32 s40, s40, {MISC}')
    frag2_addr(a, 7, 's40')
    vw(0)
    a.stamp('wq')
    a.get_tag()
    a(f'v_mov_b32 v61, {TAG}\nv_mov_b32 v63, {TAG}')
    a.poll(lambda: a(f'global_load_dwordx4 v[16:19], v4, {WS} sc1\nglobal_load_dwordx4 v[24:27], v9, {WS} sc1\nglobal_load_dwordx2 v[28:29], v10, {WS} sc1'),
           lambda: a.chk_tag([17, 19, 25, 27], 8), sleep=P['sl_h1'], pre=P['pre_h1'], mid=lambda: a.perm_block(96, 64))
    a.stamp('h1')
    a('s_setprio 3')
    a('''v_add_f32_dpp v16, v16, v16 row_ror:8 row_mask:0xf bank_mask:0xf
v_add_f32_dpp v18, v18, v18 row_ror:8 row_mask:0xf bank_mask:0xf
v_add_f32_dpp v24, v24, v24 row_ror:8 row_mask:0xf bank_mask:0xf
v_add_f32_dpp v26, v26, v26 row_ror:8 row_mask:0xf bank_mask:0xf
v_cmp_ne_u32 s[50:51], s16, v29
v_cmp_ne_u32 vcc, s32, v28
s_or_b64 s[50:51], s[50:51], vcc
v_permlane16_swap_b32 v16, v18
v_permlane16_swap_b32 v24, v26
v_add_f32 v16, v16, v18
v_add_f32 v24, v24, v26
v_permlane32_swap_b32 v16, v24
v_add_f32 v16, v16, v24
v_mov_b32 v18, v16
v_permlane16_swap_b32 v16, v18''')
    a.rnd(16, 16); a.rnd(18, 18)
    a('v_add_f32 v18, 1.0, v18')
    a.rnd(18, 18)
    a('v_mul_f32 v18, v20, v18')
    a.rnd(18, 18)
    a('v_add_f32 v16, v18, v16\nv_cvt_pk_bf16_f32 v16, v16, v16\nds_write_b16 v5, v16')
    a.bar()
    a('ds_read_b128 v[16:19], v7\ns_waitcnt lgkmcnt(0)')
    a.gemv2(24, 16, 96, True)
    a.pack2(8, 24)
    a('v_cndmask_b32 v60, v8, v10, s[42:43]\nv_cndmask_b32 v62, v9, v11, s[42:43]')
    a.lanes_lt(32)
    a.st_local('s[50:51]', f'global_store_dwordx4 v6, v[60:63], {WS}')
    a.full()
    a.stamp('qpub')
    a('s_setprio 0\ns_barrier')
    if P['sl_dma2']: a(f's_sleep {P["sl_dma2"]}')
    a('s_branch LB_dma')
    a.label('LB_dma0')
    a.get_tag()
    a.label('LB_dma')
    a.wave_is('eq', 7, 'LB_nrp')
    a.ready_publish()
    a.label('LB_nrp')
    def bump():
        a('v_mov_b32 v8, 1\ns_mov_b64 exec, 1\nds_add_u32 v253, v8\ns_mov_b64 exec, -1')
    def ckwait(lab): a.lds_wait(253, 8)
    if P['dma8']: dma(N1, 12)
    a.wave_is('lt', 4, 'LB_qa')
    if N0 < N1:
        a(f's_cmp_lt_u32 s39, {P["gsplit"]}\ns_cbranch_scc1 LB_d1')
        for i in range(N0, N1):
            dma(i, i + 1); dma(i, i + 1, 1)
        a.label('LB_d1')
    if not P['dma8']:
        for i in range(N1, 12):
            dma(i, i + 1); dma(i, i + 1, 1)
    a(f'''v_lshrrev_b32 v4, 2, v2            ; rr
v_lshl_add_u32 v4, v3, 3, v4       ; 8g+rr
v_and_b32 v5, 3, v1                ; cc
s_mul_i32 s40, s3, 24
v_add_u32 v5, s40, v5              ; 24w+cc''')
    for t in range(6):
        for sub in range(2):
            a(f'''v_add_u32 v6, {4*sub}, v4
v_and_b32 v7, 15, v6
v_add_u32 v8, {4*t}, v5
v_xor_b32 v7, v7, v8
v_mul_u32_u24 v6, 1536, v6
v_lshl_add_u32 v{40+t*2+sub}, v7, 4, v6''')
    a('s_waitcnt vmcnt(0)')
    bump()
    ckwait('LB_ck0')
    a.stamp('ckv')
    for t in range(6):
        for sub in range(2):
            for hf in range(2):
                for ks in range(2):
                    r = 64 + ((t*2+hf)*2+ks)*4 + 2*sub
                    a(f'ds_read_b64_tr_b16 {vr(r,2)}, v{40+t*2+sub} offset:{ks*49152 + hf*8}')
    a(f'''s_mul_i32 s41, s2, 384
s_mul_i32 s40, s3, 49152
s_add_u32 s41, s41, s40
s_add_u32 s41, s41, {H4}
s_mov_b32 s40, 196608
v_lshrrev_b32 v61, 3, v1
v_mul_lo_u32 v52, v61, s40
v_and_b32 v8, 7, v1
v_lshl_add_u32 v52, v8, 4, v52
v_add_u32 v52, s41, v52
s_mul_i32 s40, s3, 4608
s_add_u32 s40, s40, {SPB}
v_mul_u32_u24 v60, 144, v2
v_lshl_add_u32 v60, v3, 4, v60
v_add_u32 v60, s40, v60
v_mul_u32_u24 v61, 144, v61
v_lshl_add_u32 v61, v8, 4, v61
v_add_u32 v61, s40, v61
v_add_u32 v53, {8*196608}, v52
v_add_u32 v54, {16*196608}, v52
v_add_u32 v55, {24*196608}, v52
s_lshl_b32 s40, s3, 11
s_lshl_b32 s41, s2, 4
s_add_u32 s40, s40, s41
s_add_u32 s40, s40, {AUX}
v_lshl_add_u32 v56, v1, 13, s40
v_and_b32 v57, 31, v1
v_lshlrev_b32 v57, 4, v57
v_add_u32 v57, {STB}, v57
s_branch LB_noqk''')
    a.label('LB_qa')
    a('s_sub_u32 s45, s3, 4\ns_mul_i32 s40, s45, 24\nv_add_u32 v5, s40, v3\nv_mul_u32_u24 v4, 1536, v2')
    for s_ in range(6):
        a(f'v_add_u32 v6, {4*s_}, v5\nv_xor_b32 v6, v6, v2\nv_lshl_add_u32 v{240+2*s_}, v6, 4, v4\nv_add_u32 v{241+2*s_}, 49152, v{240+2*s_}')
    a(f'''s_mul_i32 s40, s45, 384
s_add_u32 s40, s40, {H2}
v_lshrrev_b32 v8, 3, v1
v_mul_u32_u24 v4, 1536, v8
v_and_b32 v9, 7, v1
v_xor_b32 v9, v9, v8
v_lshl_add_u32 v4, v9, 4, v4
v_add_u32 v4, s40, v4
v_add_u32 v5, 12288, v4
v_add_u32 v6, 24576, v4
v_add_u32 v14, 36864, v4
s_and_b32 s41, s2, 3
s_mul_i32 s41, s41, 1536
s_add_u32 s40, s40, s41
s_add_u32 s40, s40, 320
v_mul_u32_u24 v9, 6144, v1
v_add_u32 v9, s40, v9
s_mul_i32 s53, s45, {32*272}
s_add_u32 s53, s53, {SPB}          ; slots 0..7
s_lshl_b32 s55, s45, 12
s_add_u32 s41, s55, {MISC + 8192 + 256 - 16384}
s_add_u32 s55, s55, {PB - 8192}
s_cmp_lt_u32 s45, 2
s_cselect_b32 s55, s55, s41
v_and_b32 v8, 7, v2
v_lshlrev_b32 v13, 7, v2           ; (p>>3)*1024 + (p&7)*128
v_xor_b32 v11, v3, v8
v_lshl_add_u32 v11, v11, 4, v13
v_xor_b32 v13, 64, v11
v_add_u32 v15, s55, v13
v_add_u32 v13, s53, v13
v_add_u32 v160, s55, v11
v_add_u32 v11, s53, v11
s_mul_i32 s40, s45, {32*272}
s_add_u32 s40, s40, {SPB}
v_mul_u32_u24 v7, 272, v2
v_lshl_add_u32 v7, v3, 4, v7
v_add_u32 v7, s40, v7
s_mov_b32 s52, 0
s_waitcnt vmcnt(0)''')
    bump()
    a.ready_check(1, 16)
    a('v_mov_b32 v10, 0')
    def cf():
        for kt in range(4):
            for s_ in range(6):
                a(f'ds_read_b128 {vr(64+(kt*6+s_)*4,4)}, v{240 + 2*s_ + (kt >> 1)} offset:{(kt & 1)*24576}')
    a(f'''LB_q0:
s_mov_b64 exec, {P['k_h2']}
global_load_dword v10, v9, {WS} sc1
s_mov_b64 exec, -1
s_cmp_eq_u32 s52, 0
s_cbranch_scc0 LB_q1
ds_read_b32 v8, v253
s_waitcnt lgkmcnt(0)
v_cmp_gt_u32 vcc, 8, v8
s_cbranch_vccnz LB_q1
s_mov_b32 s52, 1''')
    cf()
    a(f'''LB_q1:
s_waitcnt vmcnt(0)
v_cmp_eq_u32 vcc, -1, v10
s_cbranch_vccz LB_h2go
s_add_u32 {SPIN}, {SPIN}, 1
s_cmp_gt_u32 {SPIN}, {SPINMAX}
s_cbranch_scc1 LB_h2go
s_sleep {P['sl_pr2']}
s_branch LB_q0
LB_h2go:''')
    if P['post_h2']: a(f's_sleep {P["post_h2"]}')
    def ld():
        for l3 in range(3):
            for o in range(4):
                slot = l3*4 + o
                base = 's53' if slot < 8 else 's55'
                a(f's_add_u32 m0, {base}, {slot*1024 - 128*l3}\nglobal_load_lds_dwordx4 v{(4, 5, 6, 14)[o]}, {WS} offset:{128*l3} sc1')
    def mid():
        a('s_cmp_eq_u32 s52, 0\ns_cbranch_scc0 LB_q2')
        ckwait('LB_ck1')
        cf()
        a.label('LB_q2')
    ld(); mid()
    a('s_setprio 3\ns_branch LB_qm')
    a.label('LB_qr')
    ld()
    a.label('LB_qm')
    def rd(l3):
        for par in range(2):
            for ht in range(2):
                va = ((11, 13), (160, 15))[l3 == 2][par]
                a(f'ds_read_b128 {vr(16+((2*l3+par)*2+ht)*4,4)}, v{va} offset:{(l3*4 + 2*ht)*1024}')
    def mm(l3):
        for s_ in (2*l3, 2*l3+1):
            for kt in range(4):
                for ht in range(2):
                    d = 224 + (kt*2+ht)*4
                    a(f'v_mfma_f32_16x16x32_bf16 {vr(d,4)}, {vr(64+(kt*6+s_)*4,4)}, {vr(16+(s_*2+ht)*4,4)}, {"0" if s_ == 0 else vr(d,4)}')
                    if kt*2+ht < 4:
                        q = 16 + s_*8 + 2*(kt*2+ht)
                        a(f'v_max_u32 v8, v{q}, v{q+1}' if (s_ == 0 and kt*2+ht == 0) else f'v_max3_u32 v8, v8, v{q}, v{q+1}')
    a('s_waitcnt vmcnt(8)'); rd(0)
    a('s_waitcnt vmcnt(4)'); rd(1)
    a('s_waitcnt lgkmcnt(4)');
    a('s_waitcnt vmcnt(0)' if P['h2w'] else 's_nop 0')
    if P['h2w']: rd(2)
    mm(0)
    if not P['h2w']:
        a('s_waitcnt vmcnt(0)'); rd(2)
    a.stamp('h2')
    a('s_waitcnt lgkmcnt(0)' if P['stamps'] else 's_waitcnt lgkmcnt(4)')
    mm(1)
    a('s_waitcnt lgkmcnt(0)')
    mm(2)
    a(f'''v_cmp_eq_u32 vcc, -1, v8
s_cbranch_vccz LB_qd
s_add_u32 {SPIN}, {SPIN}, 1
s_cmp_gt_u32 {SPIN}, {SPINMAX}
s_cbranch_scc1 LB_qd
s_sleep {P['sl_h2']}
s_branch LB_qr
LB_qd:''')
    for kt in range(4):
        for ht in range(2): a(f'ds_write_b128 v7, {vr(224+(kt*2+ht)*4,4)} offset:{ht*16*272 + kt*64}')
    a.label('LB_noqk')
    a(f'''s_lshl_b32 s40, s3, 2
v_add_u32 v9, s40, v3              ; head = 4w+g
v_mul_u32_u24 v4, 272, v9
v_lshl_add_u32 v4, v2, 4, v4
v_add_u32 v4, {SPB}, v4
v_mul_u32_u24 v5, 144, v9
v_lshl_add_u32 v5, v2, 3, v5
v_add_u32 v5, {PB}, v5
s_lshl_b32 s40, s2, 4
s_add_u32 s40, s40, {H3}
v_lshl_add_u32 v6, v9, 11, s40
v_lshlrev_b32 v7, 4, v9
v_add_u32 v7, {STB}, v7
v_lshlrev_b32 v10, 2, v2           ; 4*kq
v_mov_b32 v45, {TAG}
v_mov_b32 v47, {TAG}
s_lshl_b32 s40, s2, 7
s_add_u32 s40, s40, {DB3}
v_mov_b32 v8, s40
v_cmp_eq_u32 vcc, 1, v1
v_cndmask_b32 v6, v6, v8, vcc
s_cmp_eq_u32 s3, 7
s_cselect_b32 s49, 2, 0
s_or_b32 s49, s49, 0x00010001
v_mov_b32 v58, {STB + 512}
v_mov_b32 v13, 0
ds_write_b64 v58, v[12:13]
ds_write_b32 v58, v12 offset:12
ds_write_b32 v58, v12 offset:16
ds_write_b32 v58, v12 offset:20''')
    for i in range(4): a(f'v_add_u32 v{40+i}, {i}, v10')
    a.bar()
    a.stamp('qk')
    a('s_setprio 3')
    for i in range(4): a(f'ds_read_b128 {vr(16+4*i,4)}, v4 offset:{8704*i}')
    a(f'''v_mul_u32_u24 v4, 144, v2
v_lshl_add_u32 v4, v3, 4, v4
v_add_u32 v4, {PB}, v4
v_mov_b32 v11, {NEGINF:#x}
s_mov_b32 s40, 0xffffffc0
s_waitcnt lgkmcnt(0)''')
    for i in (0, 2):
        a(f'v_pk_add_f32 {vr(16+i,2)}, {vr(16+i,2)}, {vr(20+i,2)}\nv_pk_add_f32 {vr(24+i,2)}, {vr(24+i,2)}, {vr(28+i,2)}')
    for i in (0, 2): a(f'v_pk_add_f32 {vr(32+i,2)}, {vr(16+i,2)}, {vr(24+i,2)}')
    for i in range(4): a(f'v_and_or_b32 v{36+i}, v{32+i}, s40, v{40+i}')
    a('v_max3_f32 v50, v36, v37, v38\nv_max_f32 v50, v50, v39')
    a('v_cvt_pk_bf16_f32 v16, v36, v37\nv_cvt_pk_bf16_f32 v17, v38, v39')
    fill = ['v_lshlrev_b32 v32, 16, v16\nv_and_b32 v33, 0xffff0000, v16', 'v_lshlrev_b32 v34, 16, v17\nv_and_b32 v35, 0xffff0000, v17',
            'v_mul_f32 v32, s59, v32\nv_mul_f32 v33, s59, v33', 'v_mul_f32 v34, s59, v34\nv_mul_f32 v35, s59, v35']
    for k, f in zip((8, 4, 2, 1), fill):
        a(f'v_max_f32_dpp v50, v50, v50 row_ror:{k} row_mask:0xf bank_mask:0xf')
        a(f)
    for i in range(4): a(f'v_cmp_eq_u32 s[{50+2*(i&1)}:{51+2*(i&1)}], v{36+i}, v50' + (f'\nv_cndmask_b32 v{35+i}, v{35+i}, v11, s[{52-2*(i&1)}:{53-2*(i&1)}]' if i else '\nv_cvt_pk_bf16_f32 v62, v50, v50'))
    a('''v_cvt_pk_bf16_f32 v16, v32, v33
v_cndmask_b32 v39, v39, v11, s[52:53]
v_and_b32 v62, 0xffff0000, v62
v_max3_f32 v51, v36, v37, v38
v_cvt_pk_bf16_f32 v17, v34, v35
v_max_f32 v51, v51, v39''')
    fill = ['v_mul_f32 v62, s59, v62\nv_lshlrev_b32 v32, 16, v16', 'v_cvt_pk_bf16_f32 v62, v62, v62\nv_and_b32 v33, 0xffff0000, v16',
            'v_and_b32 v62, 0xffff0000, v62\nv_lshlrev_b32 v34, 16, v17', 'v_and_b32 v35, 0xffff0000, v17\nv_and_or_b32 v44, v50, 63, v62']
    for k, f in zip((8, 4, 2, 1), fill):
        a(f)
        a(f'v_max_f32_dpp v51, v51, v51 row_ror:{k} row_mask:0xf bank_mask:0xf')
    a('''v_sub_f32 v24, v32, v62
v_sub_f32 v25, v33, v62
v_cvt_pk_bf16_f32 v18, v51, v51
v_sub_f32 v26, v34, v62
v_and_b32 v18, 0xffff0000, v18
v_sub_f32 v27, v35, v62
v_mul_f32 v18, s59, v18
v_mul_f32 v24, s56, v24
v_cvt_pk_bf16_f32 v18, v18, v18
v_mul_f32 v25, s56, v25
v_and_b32 v18, 0xffff0000, v18
v_mul_f32 v26, s56, v26
v_and_or_b32 v46, v51, 63, v18
s_mov_b32 exec_lo, s49
s_mov_b32 exec_hi, 0x00010001''')
    a(f'global_store_dwordx4 v6, v[44:47], {WS} sc1')
    a.full()
    a.stamp('h3pub')
    a('v_mul_f32 v27, s56, v27')
    for i in range(4): a(f'v_exp_f32 v{24+i}, v{24+i}')
    a('''v_cvt_pk_bf16_f32 v36, v24, v25
v_cvt_pk_bf16_f32 v37, v26, v27
ds_write_b64 v5, v[36:37]
v_add_f32 v49, v24, v25
v_add_f32 v48, v26, v27
v_add_f32 v49, v49, v48''')
    def lfull():
        a.row_red('v_add_f32', [49])
        a('v_mov_b32 v48, v62\nds_write_b64 v7, v[48:49]\nv_mov_b32 v8, 1\ns_mov_b64 exec, 1\nds_add_u32 v58, v8 offset:16\ns_mov_b64 exec, -1')
    def deferred():
        for var in range(2):
            a(f'v_and_b32 v8, 63, v{44 + 2*var}')
            for i in range(4):
                a(f'v_cmp_eq_u32 vcc, v{40+i}, v8\nv_cndmask_b32 v{32+i}, v{32+i}, v11, vcc')
            a('v_max3_f32 v50, v32, v33, v34\nv_max_f32 v50, v50, v35')
            for k in (8, 4, 2, 1):
                a(f'v_max_f32_dpp v50, v50, v50 row_ror:{k} row_mask:0xf bank_mask:0xf')
            for i in range(4): a(f'v_sub_f32 v{24+i}, v{32+i}, v50')
            for i in range(4): a(f'v_mul_f32 v{24+i}, s56, v{24+i}')
            for i in range(4): a(f'v_exp_f32 v{24+i}, v{24+i}')
            a(f'''v_add_f32 v51, v24, v25
v_add_f32 v48, v26, v27
v_add_f32 v51, v51, v48
v_cvt_pk_bf16_f32 v38, v24, v25
v_cvt_pk_bf16_f32 v39, v26, v27''')
            if var == 0: a('ds_write_b64 v5, v[38:39] offset:4608')
            else: a(f'v_subrev_u32 v8, {PB - PB2 + 4608}, v5\nds_write_b64 v8, v[38:39] offset:4608\nv_lshrrev_b32 v8, 1, v7')
            a.row_red('v_add_f32', [51])
            if var == 0: a('ds_write_b64 v7, v[50:51] offset:8')
            else: a(f'v_add_u32 v8, {STB + 768 - STB//2}, v8\nds_write_b64 v8, v[50:51]')
        a('v_mov_b32 v8, 1\ns_mov_b64 exec, 1\nds_add_u32 v58, v8 offset:20\ns_mov_b64 exec, -1')
    a.stamp('xa')
    a.bar()
    a.stamp('xb')
    a.wave_is('lt', 4, 'LB_lw')
    for ht in range(2):
        for ks in range(2): a(f'ds_read_b128 {vr(16+(ht*2+ks)*4,4)}, v4 offset:{ht*16*144 + ks*64}')
    a('s_waitcnt lgkmcnt(0)')
    def unit(i):
        cl, ht = i >> 1, i & 1
        for tp in range(2):
            for hf in range(2):
                d = 160 + (i % 3)*16 + (tp*2+hf)*4
                t = cl*2 + tp
                for ks in range(2):
                    a(f'v_mfma_f32_16x16x32_bf16 {vr(d,4)}, {vr(64+((t*2+hf)*2+ks)*4,4)}, {vr(16+(ht*2+ks)*4,4)}, {"0" if ks == 0 else vr(d,4)}')
    def stw(i):
        d = 160 + (i % 3)*16; o = 208 + (i % 2)*8
        for k in range(8): a(f'v_cvt_pk_bf16_f32 v{o+k}, v{d+2*k}, v{d+2*k+1}')
        a(f'ds_write_b128 v60, {vr(o,4)} offset:{(i % 2)*2304}\nds_write_b128 v60, {vr(o+4,4)} offset:{(i % 2)*2304 + 64}')
        o2 = 224 + (i % 3)*8
        a(f'ds_read_b128 {vr(o2,4)}, v61 offset:{(i % 2)*2304}\nds_read_b128 {vr(o2+4,4)}, v61 offset:{(i % 2)*2304 + 1152}')
    def stg(i, pol, n):
        cl, ht = i >> 1, i & 1
        o2 = 224 + (i % 3)*8
        a(f's_waitcnt lgkmcnt({n})')
        a(f'global_store_dwordx4 v{52+2*ht}, {vr(o2,4)}, {WS} offset:{128*cl} {pol}')
        a(f'global_store_dwordx4 v{53+2*ht}, {vr(o2+4,4)}, {WS} offset:{128*cl} {pol}')
    def pvloop(pol):
        unit(0)
        a.stamp('xc')
        unit(1); stw(0)
        for i in range(2, 6):
            unit(i); stw(i - 1); stg(i - 2, pol, 0 if P['stamps'] == 2 else 4)
            if i in (3, 5): a.stamp(f'xd{i}')
        stw(5); stg(4, pol, 0 if P['stamps'] == 2 else 4); stg(5, pol, 0)
    if P['local'] and P['pv_local']:
        a('s_cmp_eq_u64 s[16:17], 0\ns_cbranch_scc0 LB_pvf')
        pvloop('')
        a('s_branch LB_pvd')
        a.label('LB_pvf')
    pvloop('sc1')
    a.label('LB_pvd')
    a('v_mov_b32 v8, 1')
    a.lanes_lt(1)
    a('ds_add_u32 v58, v8')
    a.full()
    a.stamp('pvst')
    lfull()
    a('s_sub_u32 s40, s54, 80\ns_cmp_lt_u32 s40, 24\ns_cbranch_scc0 LB_nrc0')
    a.ready_check(0, 16)
    a.label('LB_nrc0')
    a.lds_wait(58, 8, off=16, extra='ds_read_b64 v[36:37], v57')
    a(f'v_mov_b32 v8, 1\nv_mov_b32 v29, {TAG}\nv_mov_b32 v28, v36\nv_mov_b32 v30, v37\nv_mov_b32 v31, {TAG}')
    a.lanes_lt(32)
    a(f's_waitcnt vmcnt(0)\nglobal_store_dwordx4 v56, v[28:31], {WS} sc1')
    a.lanes_lt(1)
    a('ds_add_u32 v58, v8 offset:12')
    a.full()
    a.stamp('auxpub')
    deferred()
    a.lds_wait(58, 8, off=20)
    a(f'''v_lshlrev_b32 v9, 2, v2
v_add_u32 v9, {STB + 576}, v9
s_lshl_b32 s40, s3, 9
s_add_u32 s40, s40, {SIDE}
v_lshlrev_b32 v10, 13, v2
v_lshl_add_u32 v10, v3, 4, v10
v_add_u32 v10, s40, v10
v_lshlrev_b32 v11, 4, v2
v_add_u32 v11, {STB}, v11
''')
    a.lds_wait(58, 1, off=4, extra='ds_read2_b32 v[40:41], v9 offset0:0 offset1:16')
    for ht in range(2):
        a(f'''v_cmp_gt_u32 s[42:43], 8, v{40+ht}
s_cmp_eq_u64 s[42:43], 0
s_cbranch_scc1 LB_cn{ht}
v_and_b32 v8, 4, v{40+ht}
v_cmp_ne_u32 vcc, 0, v8
v_subrev_u32 v8, {PB - PB2 + 4608}, v4
v_cndmask_b32 v8, v4, v8, vcc
ds_read_b128 v[16:19], v8 offset:{4608 + ht*16*144}
ds_read_b128 v[20:23], v8 offset:{4608 + ht*16*144 + 64}
v_lshlrev_b32 v43, 3, v2
v_add_u32 v43, {STB + 768 + ht*128}, v43
v_add_u32 v8, {ht*256 + 8}, v11
v_cndmask_b32 v8, v8, v43, vcc
ds_read_b64 v[44:45], v8
v_and_b32 v42, 3, v{40+ht}
v_lshl_add_u32 v42, v42, 11, v10
v_add_u32 v42, {ht*16*8192}, v42
s_waitcnt lgkmcnt(0)''')
        for t in range(6):
            for hf in range(2):
                d = 160 + (t*2+hf)*4
                for ks in range(2):
                    a(f'v_mfma_f32_16x16x32_bf16 {vr(d,4)}, {vr(64+((t*2+hf)*2+ks)*4,4)}, {vr(16+ks*4,4)}, {"0" if ks == 0 else vr(d,4)}')
        for t in range(6):
            for k in range(4): a(f'v_cvt_pk_bf16_f32 v{208+4*t+k}, v{160+8*t+2*k}, v{161+8*t+2*k}')
        a.san(range(208, 232))
        a(f'v_mov_b32 v46, v45\nv_mov_b32 v45, {TAG}\nv_mov_b32 v47, {TAG}\ns_mov_b64 exec, s[42:43]')
        for t in range(6): a(f'global_store_dwordx4 v42, {vr(208+4*t,4)}, {WS} offset:{64*t} sc1')
        a(f's_and_b64 exec, exec, 0xffff\nglobal_store_dwordx4 v42, v[44:47], {WS} offset:384 sc1')
        a.full()
        a.label(f'LB_cn{ht}')
    a('v_mov_b32 v8, 1')
    a.lanes_lt(1)
    a('ds_add_u32 v58, v8')
    a.full()
    a('s_branch LB_lw2')
    a.label('LB_lw')
    a('s_setprio 0')
    lfull()
    deferred()
    a('s_sub_u32 s40, s54, 80\ns_cmp_lt_u32 s40, 24\ns_cbranch_scc0 LB_nrc1')
    a.ready_check(0, 16)
    a.label('LB_nrc1')
    a.wave_is('eq', 4, 'LB_lw3')
    a(f'''v_and_b32 v9, 31, v1
v_lshlrev_b32 v10, 2, v9
v_add_u32 v10, {STB + 576}, v10
s_lshl_b32 s40, s39, 4
s_add_u32 s40, s40, s38
s_lshl_b32 s40, s40, 8
s_add_u32 s40, s40, {MB}
v_lshl_add_u32 v9, v9, 3, s40
''')
    a.lds_wait(58, P['ew_cnt'], sleep=2)
    a.poll(lambda: a(f'global_load_dwordx2 v[16:17], v9, {WS} sc1'), lambda: a.chk_tag([17], 8), sleep=P['sl_el'])
    a.stamp('el')
    a('ds_write_b32 v10, v16\nv_mov_b32 v8, 1\nds_write_b32 v58, v8 offset:4')
    a.label('LB_lw2')
    a.lds_wait(58, 8, sleep=P['sl_lw'])
    a('s_branch LB_late')
    a.label('LB_lw3')
    if P['early_late']: a.lds_wait(58, 4, off=12, sleep=P['sl_lw'])
    else: a.lds_wait(58, 8, sleep=P['sl_lw'])
    a.label('LB_late')
    def gate2(): a.lds_wait(58, 8, sleep=P['sl_lw'])
    a('s_cmp_lt_u32 s54, 80\ns_cbranch_scc0 LB_hi')
    a.wave_is('ge', 4, 'LB_wob')
    a(f'''s_mul_i32 s40, s39, 768
s_mul_i32 s41, s45, 192
s_add_u32 s40, s40, s41
s_lshl_b32 s41, s38, 7''')
    blk2_addr(a, 4, 's40', 1280, 's41')
    a(f'v_add_u32 v5, {64*1280}, v4\nv_add_u32 v6, {128*1280}, v4')
    for i in range(3):
        a.load_rows(64 + 32*i, 4, 4 + i, WO, 1280)
        if i == P['early_late'] - 1: gate2()
    a(f'''s_mul_i32 s40, s39, 12
s_mul_i32 s41, s45, 3
s_add_u32 s40, s40, s41
s_lshl_b32 s40, s40, 10
s_add_u32 s40, s40, {H5}
v_lshl_add_u32 v4, v1, 4, s40
s_mul_i32 s40, s45, 384
s_add_u32 s40, s40, {MISC + 4096}
v_lshl_add_u32 v5, v2, 2, v3
v_lshl_add_u32 v5, v5, 1, s40      ; (4p+g)*2''')
    frag2_addr(a, 6, 's40')
    gemv_out_prep(a, MISC + 2048 - 1024)
    for i in range(3):
        a(f's_waitcnt vmcnt({16 - 8*i})')
        a.perm_block(160 + 32*i, 64 + 32*i)
    a.stamp('late')
    if P['probe_h5']: a.probe(4, 8, off=2048, sleep=P['sl_pr'], post=P['post_h5'], mask=0x0001000100010001)
    def ld():
        for i in range(3): a(f'global_load_dwordx4 {vr(16+4*i,4)}, v4, {WS} offset:{1024*i} sc1')
    a.poll(ld, lambda: a.chk_sent(range(16, 28), 8), sleep=P['sl_h5'])
    a.stamp('h5')
    a('s_setprio 3')
    for i in range(3): a.xrow_tr4(16 + 4*i)
    for i in range(3): a(f'v_cvt_pk_bf16_f32 v{16+4*i}, v{16+4*i}, v{16+4*i}\nds_write_b16 v5, v{16+4*i} offset:{128*i}')
    a('s_waitcnt lgkmcnt(0)')
    for i in range(3): a(f'ds_read_b128 {vr(16+4*i,4)}, v6 offset:{128*i}')
    for i in range(3):
        a(f's_waitcnt lgkmcnt({2-i})')
        a.gemv2(64, 16 + 4*i, 160 + 32*i, i == 0)
    gemv_out_lds(a, 64, 0)
    a.label('LB_wob')
    a(f'''v_lshlrev_b32 v4, 4, v2
v_add_u32 v4, {MISC + 2048}, v4
s_mul_i32 s40, s39, 2560
s_lshl_b32 s41, s38, 8
s_add_u32 s40, s40, s41
s_add_u32 s40, s40, {H6}
v_lshl_add_u32 v5, v2, 4, s40''')
    a.bar()
    a.wave_is('eq', 4, 'Lfin')
    for i in range(4): a(f'ds_read_b128 {vr(16+4*i,4)}, v4 offset:{256*i}')
    a('s_waitcnt lgkmcnt(0)')
    tree(a, range(16, 32, 4), n=4)
    a.lanes_lt(16)
    a(f'global_store_dwordx4 v5, v[16:19], {WS} sc1')
    a.full()
    a.stamp('h6pub')
    a('s_branch Lfin')
    a.label('LB_hi')
    a('s_cmp_lt_u32 s54, 104\ns_cbranch_scc0 LB_mr')
    a(f's_sub_u32 s46, s54, 80\ns_lshl_b32 s40, s46, 6\ns_lshl_b32 s41, s3, 7')
    blk2_addr(a, 10, 's40', 1280, 's41')
    a('s_add_u32 s45, s3, 3\ns_and_b32 s45, s45, 7\ns_lshl_b32 s40, s45, 6\nv_add_u32 v62, s40, v1\ns_cmp_lt_u32 s45, 5\ns_cbranch_scc0 LB_f5')
    a(f's_lshl_b32 s40, s45, 7\ns_lshl_b32 s41, s46, 7')
    blk2_addr(a, 4, 's40', 3072, 's41')
    a(f'v_add_u32 v5, {64*3072}, v4\nv_lshlrev_b32 v6, 2, v62\nglobal_load_dword v24, v6, {X}')
    a.load_rows(128, 4, 4, W1, 3072)
    if P['early_hi'] < 2: gate2()
    a.load_rows(160, 4, 5, W1, 3072)
    if P['early_hi'] == 2: gate2()
    a.load_rows(64, 4, 10, W2, 1280)
    a(f'v_lshlrev_b32 v4, 2, v62\nv_add_u32 v4, {MODR}, v4\nv_add_u32 v5, 2560, v4\ns_waitcnt vmcnt(8)')
    a.perm_block(192, 128)
    a.perm_block(224, 160)
    a('s_waitcnt vmcnt(0)')
    a.stamp('late1')
    a.perm_block(96, 64)
    a(f'''v_mov_b32 v58, v4
v_mov_b32 v59, v5
v_lshlrev_b32 v4, 3, v62
v_add_u32 v8, {H6}, v4
v_lshlrev_b32 v28, 16, v24
v_and_b32 v29, 0xffff0000, v24''')
    for i in range(1, 4): a(f'v_add_u32 v{8+i}, {5120*i}, v8')
    a(f'''s_lshl_b32 s40, s45, 3
s_add_u32 s40, s40, {MISC + 8192}
v_mov_b32 v13, s40
s_lshl_b32 s40, s45, 8
s_add_u32 s40, s40, {MISC + 4096}
v_lshl_add_u32 v5, v1, 2, s40''')
    frag2_addr(a, 6, 's40')
    a(f's_lshl_b32 s40, s45, 8\ns_add_u32 s40, s40, {MISC}')
    pack_addr(a, 14, 's40')
    def ld():
        a(f'''global_load_dword v25, v58, {WS} sc1
global_load_dword v26, v58, {WS} offset:1280 sc1
global_load_dword v27, v59, {WS} sc1
global_load_dword v38, v59, {WS} offset:1280 sc1''')
        for i in range(8): a(f'global_load_dwordx2 {vr(40+2*i,2)}, v{8 + i//2}, {WS} offset:{2560*(i%2)} sc1')
    a.poll(ld, lambda: a.chk_sent([25, 26, 27, 38] + list(range(40, 56)), 4), sleep=P['sl_h6'])
    a.stamp('h6')
    a('s_setprio 3')
    a('v_lshlrev_b32 v30, 16, v25\nv_and_b32 v31, 0xffff0000, v25')
    tree(a, range(40, 56, 2), n=2)
    for i in range(2): a.rnd(40 + i, 40 + i)
    for i in range(2): a(f'v_mul_f32 v{40+i}, v{30+i}, v{40+i}')
    for i in range(2): a.rnd(40 + i, 40 + i)
    for i in range(2): a(f'v_add_f32 v{40+i}, v{28+i}, v{40+i}')
    a('''v_cvt_pk_bf16_f32 v36, v40, v41
v_lshlrev_b32 v40, 16, v36
v_and_b32 v41, 0xffff0000, v36
v_readfirstlane_b32 s42, v40
v_subrev_f32 v44, s42, v40
v_subrev_f32 v45, s42, v41
v_add_f32 v42, v44, v45
v_mul_f32 v43, v44, v44
v_fmac_f32 v43, v45, v45''')
    a.row_red('v_add_f32', [42, 43])
    a(f'''v_permlane16_swap_b32 v42, v43
v_add_f32 v42, v42, v43
v_mov_b32 v43, v42
v_permlane32_swap_b32 v42, v43
v_add_f32 v42, v42, v43
v_mov_b32 v43, v42
v_permlane16_swap_b32 v42, v43
v_mul_f32 v42, {f2u(1/128):#x}, v42
v_mul_f32 v44, {f2u(128.0):#x}, v42
v_fma_f32 v43, -v44, v42, v43
v_add_f32 v42, s42, v42
ds_write_b64 v13, v[42:43]
v_lshlrev_b32 v32, 16, v26
v_and_b32 v33, 0xffff0000, v26
v_lshlrev_b32 v34, 16, v27
v_and_b32 v35, 0xffff0000, v27
v_add_f32 v34, 1.0, v34
v_add_f32 v35, 1.0, v35
v_cvt_pk_bf16_f32 v34, v34, v35
v_and_b32 v35, 0xffff0000, v34
v_lshlrev_b32 v34, 16, v34
s_branch LB_w1b''')
    a.label('LB_f5')
    a.load_rows(64, 4, 10, W2, 1280)
    a.wave_is('lt', 4, 'LB_f7')
    a(f's_lshl_b32 s40, s46, 6\ns_add_u32 s41, s3, 6\ns_lshl_b32 s41, s41, 7')
    blk2_addr(a, 10, 's40', 1280, 's41')
    a.load_rows(128, 4, 10, W2, 1280)
    a.label('LB_f7')
    a('s_waitcnt vmcnt(0)')
    a.perm_block(96, 64)
    a.perm_block(192, 128)
    a.label('LB_w1b')
    a(f'v_mov_b32 v4, {MISC + 8192}')
    a.bar()
    a('s_setprio 3')
    a('s_cmp_lt_u32 s45, 5\ns_cbranch_scc0 LB_w1c')
    a(f'''ds_read_b128 v[44:47], v4
ds_read_b128 v[48:51], v4 offset:16
ds_read_b64 v[52:53], v4 offset:32
s_waitcnt lgkmcnt(0)
v_add_f32 v54, v44, v46
v_add_f32 v55, v48, v50
v_add_f32 v56, v45, v47
v_add_f32 v54, v54, v55
v_add_f32 v57, v49, v51
v_add_f32 v54, v54, v52
v_add_f32 v55, v56, v57
v_mul_f32 v54, {f2u(0.2):#x}, v54      ; mean
v_add_f32 v55, v55, v53''')
    for r in (44, 46, 48, 50, 52): a(f'v_sub_f32 v{r}, v{r}, v54')
    a('v_mul_f32 v56, v44, v44\nv_mul_f32 v57, v46, v46\nv_fmac_f32 v56, v48, v48\nv_fmac_f32 v57, v50, v50\nv_fmac_f32 v56, v52, v52\nv_add_f32 v56, v56, v57')
    a(f'v_fmac_f32 v55, {f2u(128.0):#x}, v56\nv_mul_f32 v55, {f2u(1/640):#x}, v55')
    ln_finish(a, 54, 55, 56)
    for i in range(2): a(f'v_sub_f32 v{44+i}, v{40+i}, v54')
    for i in range(2): a.rnd(44 + i, 44 + i)
    for i in range(2): a.div(42 + i, 44 + i, 55, 56, 57 + i)
    for i in range(2): a.rnd(42 + i, 42 + i)
    for i in range(2): a(f'v_mul_f32 v{42+i}, v{42+i}, v{34+i}')
    for i in range(2): a.rnd(42 + i, 42 + i)
    for i in range(2): a(f'v_add_f32 v{42+i}, v{42+i}, v{32+i}')
    a('''v_cvt_pk_bf16_f32 v42, v42, v43
ds_write_b32 v5, v42
s_waitcnt lgkmcnt(0)
ds_read_b128 v[16:19], v6
ds_read_b128 v[20:23], v6 offset:128
s_waitcnt lgkmcnt(1)''')
    a.gemv2(128, 16, 192, True)
    a('s_waitcnt lgkmcnt(0)')
    a.gemv2(128, 20, 224, False)
    gemv_out_lds(a, 128, MISC)
    a.label('LB_w1c')
    a(f'''v_and_b32 v4, 31, v1
v_lshlrev_b32 v5, 2, v4
v_lshlrev_b32 v4, 3, v4
v_add_u32 v4, {MISC}, v4
s_lshl_b32 s40, s3, 7
s_add_u32 s40, s40, {MISC + 6144}
v_add_u32 v5, s40, v5''')
    frag2_addr(a, 6, 's40')
    a(f's_mul_i32 s40, s46, 2560\ns_lshl_b32 s41, s3, 8\ns_add_u32 s40, s40, s41\ns_add_u32 s40, s40, {H7Y}')
    pack_addr(a, 14, 's40')
    a.bar()
    for i in range(5): a(f'ds_read_b64 {vr(16+2*i,2)}, v4 offset:{256*i}')
    a('s_waitcnt lgkmcnt(0)')
    tree(a, range(16, 26, 2), n=2)
    a('''v_max_f32 v16, 0, v16
v_max_f32 v17, 0, v17
v_cvt_pk_bf16_f32 v8, v16, v17
ds_write_b32 v5, v8
s_waitcnt lgkmcnt(0)
ds_read_b128 v[16:19], v6
s_waitcnt lgkmcnt(0)''')
    a.gemv2(64, 16, 96, True)
    a('s_sub_u32 s40, s3, 2\ns_cmp_lt_u32 s40, 2\ns_cbranch_scc0 LB_y1')
    a.gemv2(128, 16, 192, True)
    a.label('LB_y1')
    a.pack2(8, 64)
    a.lanes_lt(16)
    a(f'global_store_dwordx4 v14, v[8:11], {WS} sc1')
    a.full()
    a('s_cbranch_scc0 LB_y2')
    a.pack2(20, 128)
    a.lanes_lt(16)
    a(f'global_store_dwordx4 v14, v[20:23], {WS} offset:1536 sc1')
    a.full()
    a.label('LB_y2')
    a.stamp('h7pub')
    a('s_lshr_b32 s40, s46, 2\ns_cmp_eq_u32 s40, s45\ns_cbranch_scc0 Lfin\ns_cmp_lt_u32 s45, 5\ns_cbranch_scc0 Lfin\ns_and_b32 s40, s46, 3\ns_lshl_b32 s40, s40, 4\ns_mov_b64 s[42:43], 0xffff\ns_lshl_b64 exec, s[42:43], s40')
    a(f'v_lshlrev_b32 v4, 3, v62\nv_add_u32 v4, {H7Y}, v4')
    for i in range(1, 12): a(f'v_add_u32 v{16+i}, {5120*i}, v4')
    a(f'''v_mov_b32 v16, v4
v_lshlrev_b32 v5, 2, v62
v_lshlrev_b32 v30, 16, v38
v_and_b32 v31, 0xffff0000, v38''')
    def ld():
        for i in range(24): a(f'global_load_dwordx2 {vr(64+2*i,2)}, v{16 + i//2}, {WS} offset:{2560*(i%2)} sc1')
    a.poll(ld, lambda: a.chk_sent(range(64, 112), 4), sleep=P['sl_h7'], pre=P['pre_h7'])
    a.stamp('h7')
    tree(a, range(64, 112, 2), n=2)
    for i in range(2): a.rnd(64 + i, 64 + i)
    for i in range(2): a(f'v_mul_f32 v{64+i}, v{30+i}, v{64+i}')
    for i in range(2): a.rnd(64 + i, 64 + i)
    for i in range(2): a(f'v_add_f32 v{64+i}, v{40+i}, v{64+i}')
    a(f'v_cvt_pk_bf16_f32 v64, v64, v65\nglobal_store_dword v5, v64, {OUT}\ns_mov_b64 exec, -1')
    a.stamp('out')
    a('s_branch Lfin')
    a.label('LB_mr')
    a('s_cmp_lt_u32 s54, 124\ns_cbranch_scc0 Lfin\ns_sub_u32 s46, s54, 104\ns_add_u32 s45, s3, 3\ns_and_b32 s45, s45, 7\ns_cmp_lt_u32 s45, 5\ns_cbranch_scc0 LB_mrb')
    a(f'''s_lshl_b32 s40, s45, 7
v_lshl_add_u32 v4, v3, 3, s40      ; row = 128w + 8g
v_lshlrev_b32 v6, 1, v4
v_add_u32 v6, {MISC + 4096}, v6
v_mul_u32_u24 v4, 7680, v4
v_lshl_add_u32 v4, v2, 4, v4
s_lshl_b32 s40, s46, 8
s_add_u32 s40, s40, 2560
v_add_u32 v4, s40, v4
s_lshl_b32 s40, s45, 8
v_lshl_add_u32 v7, v1, 2, s40
global_load_dword v16, v7, {CC}
v_add_u32 v7, {MISC + 4096}, v7''')
    for i in range(4):
        a.load_rows(64 + 32*i, 4, 4, WMOD, 7680)
        if i < 3: a(f'v_add_u32 v4, {25*7680}, v4')
        if i == P['early_hi'] - 1: gate2()
    a('s_waitcnt vmcnt(32)')
    a('v_lshlrev_b32 v32, 16, v16\nv_and_b32 v33, 0xffff0000, v16')
    a.silu(32, 32, 8); a.silu(33, 33, 8)
    a(f'v_perm_b32 v16, v33, v32, {PHI}\nds_write_b32 v7, v16\ns_waitcnt lgkmcnt(0)')
    for i in range(4): a(f'ds_read_b128 {vr(16+4*i,4)}, v6 offset:{64*i}')
    a('s_waitcnt lgkmcnt(0)')
    a(f'''v_cmp_eq_u32 s[42:43], 1, v3
v_lshlrev_b32 v4, 5, v2
v_lshl_add_u32 v4, v3, 4, v4
s_lshl_b32 s40, s45, 9
s_add_u32 s40, s40, {MISC}
v_add_u32 v4, s40, v4''')
    for i in range(4):
        a(f's_waitcnt vmcnt({24 - 8*i})')
        a.perm_block(192, 64 + 32*i)
        a.gemv2(224, 16 + 4*i, 192, i == 0)
    a.stamp('late2')
    for i in range(4): a(f'v_cndmask_b32 v{8+i}, v{224+4*i}, v{224+4*(i+4)}, s[42:43]')
    a.lanes_lt(32)
    a('ds_write_b128 v4, v[8:11]')
    a.full()
    a.label('LB_mrb')
    a.bar()
    a.wave_is('eq', 2, 'Lfin')
    a(f'v_lshlrev_b32 v4, 3, v1\nv_add_u32 v4, {MISC}, v4')
    for i in range(5): a(f'ds_read_b64 {vr(16+2*i,2)}, v4 offset:{512*i}')
    a(f's_lshl_b32 s40, s46, 8\ns_add_u32 s40, s40, {MODR}\nv_lshl_add_u32 v4, v1, 2, s40\ns_waitcnt lgkmcnt(0)')
    tree(a, range(16, 26, 2), n=2)
    a('v_cvt_pk_bf16_f32 v8, v16, v17')
    a.san([8])
    for i in range(1, 4): a(f'v_mov_b32_dpp v{8+i}, v8 quad_perm:[{i},{i},{i},{i}] row_mask:0xf bank_mask:0xf')
    a.exec_mask(0x1111111111111111)
    a(f'global_store_dwordx4 v4, v[8:11], {WS} sc1')
    a.full()
    a.stamp('mrpub')
    a('s_branch Lfin')

LS1, LQ, LKEY, LEK, LWT, LWP, LFW, LKP = 0, 2816, 3328, 3840, 4096, 4608, 5120, 6144
LRP = LKP + 18432; LCC = LRP + 6144; LVP = LCC + 1024; LQF = LVP + 4608; LSR = LQF + 1024; LFL = LSR + 1536
def load_uk(a, base, off=128, lo=0, hi=8, v=4, rm=None):
    if lo == hi: return
    rm = rm or (lambda j: (off + 4*j, off + 32 + 2*j))
    a(f'''s_mul_i32 s40, s41, 192
s_lshl_b32 s42, s3, 5
s_add_u32 s40, s40, s42
s_add_u32 s40, s40, {lo}
v_lshl_add_u32 v{v}, v3, 3, s40
v_mul_u32_u24 v{v}, 12288, v{v}
s_mul_i32 s40, s47, 384
v_add_u32 v{v}, s40, v{v}
v_lshl_add_u32 v{v+1}, v2, 3, v{v}
v_lshl_add_u32 v{v}, v2, 4, v{v}''')
    for j in range(lo, hi):
        a(f'global_load_dwordx4 {vr(rm(j)[0],4)}, v{v}, {base} nt')
        a(f'global_load_dwordx2 {vr(rm(j)[1],2)}, v{v+1}, {base} offset:256 nt')
        if j < hi - 1: a(f'v_add_u32 v{v}, 12288, v{v}\nv_add_u32 v{v+1}, 12288, v{v+1}')
def perm12(a, dst, src=128, rm=None):
    rm = rm or (lambda j: (src + 4*j, src + 32 + 2*j))
    for e in range(12):
        w, ee = (0, e) if e < 8 else (1, e - 8)
        for k in range(4):
            a(f'v_perm_b32 v{dst+4*e+k}, v{rm(2*k+1)[w]+(ee>>1)}, v{rm(2*k)[w]+(ee>>1)}, {PHI if ee & 1 else PLO}')
def mfma12(a, D, A, F):
    for e in range(12): a(f'v_mfma_f32_16x16x32_bf16 {vr(D+4*e,4)}, {vr(A,4)}, {vr(F+4*e,4)}, 0')
def out12_prep(a, v, lbase):
    a(f's_mul_i32 s40, s3, 768\ns_add_u32 s40, s40, {lbase}\nv_lshl_add_u32 v{v}, v2, 5, s40\nv_lshl_add_u32 v{v+1}, v2, 4, s40')
def out12(a, D, o, v):
    for e in range(12): a(f'v_add_f32 v{o+e}, v{D+4*e}, v{D+4*e+1}')
    a.lanes_lt(16)
    a(f'ds_write_b128 v{v}, {vr(o,4)}\nds_write_b128 v{v}, {vr(o+4,4)} offset:16\nds_write_b128 v{v+1}, {vr(o+8,4)} offset:512')
    a.full()
def weights_out(a, val, lbase, k):
    a(f'''v_cvt_pk_bf16_f32 v8, v{val}, v{val}
ds_write_b16 v4, v8 offset:{lbase + 128*k}
v_and_b32 v9, 0xffff0000, v8
v_sub_f32 v9, v{val}, v9
v_cvt_pk_bf16_f32 v9, v9, v9
ds_write_b16 v4, v9 offset:{lbase + 256 + 128*k}''')

def role_A(a):
    P = a.P
    a(f'''s_and_b32 s44, s2, 7
s_lshl_b32 s44, s44, 4
s_bfe_u32 s40, s2, 0x40003
s_add_u32 s44, s44, s40
s_xor_b32 s43, s44, {P['s1x']}
s_cmp_lt_u32 s44, 64
s_cselect_b32 s43, s44, s43
s_mul_i32 s39, s43, 205
s_lshr_b32 s39, s39, 11          ; kp
s_mul_i32 s40, s39, 10
s_sub_u32 s38, s43, s40          ; mg
s_lshr_b32 s47, s44, 2           ; head
s_and_b32 s41, s44, 3            ; quarter
v_mov_b32 v12, 0
s_mul_i32 s40, s39, 80
s_lshl_b32 s42, s3, 4
s_add_u32 s40, s40, s42
v_lshl_add_u32 v5, v3, 2, s40      ; row0
v_mul_u32_u24 v4, 7680, v5
v_lshrrev_b32 v6, 3, v2
v_mul_u32_u24 v6, 1152, v6
v_lshl_add_u32 v6, v2, 4, v6
s_lshl_b32 s42, s38, 7
v_add3_u32 v4, v4, v6, s42
v_lshlrev_b32 v5, 1, v5
s_waitcnt lgkmcnt(0)''')
    a.stamp('start')
    a.wave_is('lt', 5, 'LA_nos1')
    a('s_cmp_lt_u32 s39, 8\ns_cbranch_scc0 LA_nos1')
    a(f'global_load_dwordx2 v[32:33], v5, {CC}')
    a.load_rows(16, 4, 4, WMOD, 7680, rows=4)
    a(f'global_load_dword v15, v12, {WS} sc1')
    U1 = P['uk1']
    load_uk(a, WUK, hi=U1)
    a.stamp('x1')
    a('s_branch LA2')

def role_A2(a):
    P = a.P; U1 = P['uk1']
    a.label('LA2')
    consts(a)
    a(f'''s_waitcnt vmcnt({5+2*U1})
v_lshlrev_b32 v36, 16, v32
v_and_b32 v37, 0xffff0000, v32
v_lshlrev_b32 v38, 16, v33
v_and_b32 v39, 0xffff0000, v33''')
    a.stamp('x2')
    for i in range(4): a.silu(36 + i, 36 + i, 8)
    a.stamp('x3')
    a(f'''v_perm_b32 v34, v37, v36, {PHI}
v_perm_b32 v35, v39, v38, {PHI}
v_cmp_eq_u32 vcc, 1, v3
v_lshlrev_b32 v4, 5, v2
v_lshl_add_u32 v4, v3, 4, v4
s_lshl_b32 s40, s3, 9
v_add_u32 v4, s40, v4''')
    a(f's_waitcnt vmcnt({1+2*U1})')
    a.stamp('x4')
    for e in range(8):
        for k in range(2):
            a(f'v_perm_b32 v{40+2*e+k}, v{16+(2*k+1)*4+(e>>1)}, v{16+2*k*4+(e>>1)}, {PHI if e & 1 else PLO}')
        a(f'v_mfma_f32_16x16x16_bf16 {vr(64+4*e,4)}, v[34:35], {vr(40+2*e,2)}, 0')
    for i in range(4): a(f'v_cndmask_b32 v{8+i}, v{64+4*i}, v{64+4*(i+4)}, vcc')
    a.lanes_lt(32)
    a('ds_write_b128 v4, v[8:11]')
    a.full()
    a(f's_waitcnt vmcnt({2*U1})')
    a.get_tag()
    a('s_branch LA_b1')
    a.label('LA_nos1')
    a('s_getreg_b32 s16, hwreg(HW_REG_XCC_ID, 0, 4)' if False else 's_nop 0')
    a(f'global_load_dword v15, v12, {WS} sc1')
    a.wave_is('lt', 6, 'LA_nos1b')
    load_uk(a, WUK, hi=U1)
    a.label('LA_nos1b')
    consts(a)
    a.wave_is('eq', 7, 'LA_not7')
    neg1(a)
    a(f'''s_mul_i32 s40, s44, 384
s_add_u32 s40, s40, {H2}
v_min_u32 v4, 23, v1
v_lshl_add_u32 v4, v4, 4, s40
global_store_dwordx4 v4, v[8:11], {WS} sc1''')
    a.ready_publish()
    a(f'''s_mul_i32 s40, s44, 3072
s_add_u32 s40, s40, {H4S}
v_lshl_add_u32 v4, v1, 4, s40
global_store_dwordx4 v4, v[8:11], {WS} sc1
global_store_dwordx4 v4, v[8:11], {WS} offset:1024 sc1
global_store_dwordx4 v4, v[8:11], {WS} offset:2048 sc1
s_lshl_b32 s40, s47, 13
s_lshl_b32 s42, s41, 9
s_add_u32 s40, s40, s42
s_add_u32 s40, s40, {SIDE}
v_lshrrev_b32 v4, 5, v1
v_lshlrev_b32 v4, 11, v4
v_and_b32 v5, 31, v1
v_lshl_add_u32 v4, v5, 4, v4
v_add_u32 v4, s40, v4
v_add_u32 v5, 4096, v4
global_store_dwordx4 v4, v[8:11], {WS} sc1
global_store_dwordx4 v5, v[8:11], {WS} sc1
s_mul_i32 s40, s47, 3072
s_lshl_b32 s42, s41, 8
s_add_u32 s40, s40, s42
s_add_u32 s40, s40, {H5}
v_min_u32 v4, 2, v3
v_lshlrev_b32 v4, 10, v4
v_lshl_add_u32 v4, v2, 4, v4
v_add_u32 v4, s40, v4
global_store_dwordx4 v4, v[8:11], {WS} sc1''')
    a('s_branch LA_b1')
    a.label('LA_not7')
    a.wave_is('eq', 6, 'LA_b1')
    code_warm(a)
    if P['tlb']:
        a(f'''s_mov_b32 s50, 196608
v_mul_lo_u32 v4, v1, s50
global_load_dword v14, v4, {CKV} nt
v_lshlrev_b32 v4, 17, v1
global_load_dword v14, v4, {WS} offset:64 nt''')
    a.label('LA_b1')
    a(f'''v_lshlrev_b32 v4, 2, v1
s_lshl_b32 s40, s38, 13
s_lshl_b32 s42, s39, 7
s_add_u32 s40, s40, s42
s_add_u32 s40, s40, {H1}
v_lshrrev_b32 v5, 3, v1
v_lshlrev_b32 v5, 10, v5
v_and_b32 v6, 7, v1
v_lshl_add_u32 v5, v6, 4, v5
v_add_u32 v5, s40, v5
v_mov_b32 v9, {TAG}
v_mov_b32 v11, {TAG}''')
    a('s_cmp_lt_u32 s39, 8\ns_cbranch_scc0 LA_u80')
    a.bar()
    a.wave_is('eq', 0, 'LA_uk0')
    for w in range(5): a(f'ds_read2st64_b32 {vr(16+2*w,2)}, v4 offset0:{2*w} offset1:{2*w+1}')
    a(f'''s_waitcnt lgkmcnt(0)
v_add_f32 v16, v16, v18
v_add_f32 v17, v17, v19
v_add_f32 v20, v20, v22
v_add_f32 v21, v21, v23
v_add_f32 v16, v16, v20
v_add_f32 v17, v17, v21
v_add_f32 v8, v16, v24
v_add_f32 v10, v17, v25
global_store_dwordx4 v5, v[8:11], {WS} sc1''')
    a.stamp('h1pub')
    a.label('LA_uk0')
    a('s_barrier\ns_branch LA_uk')
    a.label('LA_u80')
    if P['sl_a80']: a(f's_sleep {P["sl_a80"]}')
    a.label('LA_uk')
    a.wave_is('lt', 6, 'LA_nouk')
    load_uk(a, WUK, lo=U1)
    V1 = P['uv1']
    rmv = lambda j: (224 + 4*j, 244 + 2*j) if j < V1 else (128 + 4*j, 160 + 2*j)
    load_uk(a, WUV, hi=V1, rm=rmv)
    a.label('LA_nouk')
    a(f'''s_mul_i32 s40, s47, 15360
s_mul_i32 s42, s3, 192
s_add_u32 s40, s40, s42
s_add_u32 s40, s40, {H1B}
v_min_u32 v5, 11, v2
v_mul_u32_u24 v4, 1536, v3
v_lshl_add_u32 v4, v5, 4, v4
v_add_u32 v4, s40, v4
v_add_u32 v7, 6144, v4
v_add_u32 v13, 12288, v4
s_mul_i32 s40, s3, 48
v_and_b32 v8, 1, v3
v_lshl_add_u32 v5, v5, 1, v8
v_lshl_add_u32 v5, v5, 1, s40      ; (24w+2dp+(g&1))*2
v_lshlrev_b32 v40, 5, v2
v_lshlrev_b32 v41, 4, v2
v_lshlrev_b32 v42, 1, v5
s_mul_i32 s40, s44, 384
s_lshl_b32 s42, s3, 6
s_add_u32 s40, s40, s42
s_add_u32 s40, s40, {H2}
v_lshl_add_u32 v6, v3, 4, s40
s_waitcnt vmcnt(0)''')
    a.get_tag()
    a(f'v_mov_b32 v24, 0\nv_mov_b32 v25, {TAG}\nv_mov_b32 v26, 0\nv_mov_b32 v27, {TAG}')
    a.stamp('uk')
    def U(j, k): n = j*6 + k; return 64 + 2*n if n < 32 else 176 + 2*(n - 32)
    def unp():
        a.wave_is('lt', 6, 'LA_nounp')
        for j in range(8):
            for k in range(6):
                src = 128 + 4*j + k if k < 4 else 160 + 2*j + (k - 4)
                a(f'v_lshlrev_b32 v{U(j,k)}, 16, v{src}\nv_and_b32 v{U(j,k)+1}, 0xffff0000, v{src}')
        a.label('LA_nounp')
    if P['probe_h1b']: a.probe(7, 8, off=4, sleep=P['sl_pr'], post=P['post_h1b'], tag=True, mask=0x0001000100010001)
    def ld():
        a(f'global_load_dwordx4 v[16:19], v4, {WS} sc1\nglobal_load_dwordx4 v[20:23], v7, {WS} sc1')
        a.lanes_lt(32)
        a(f'global_load_dwordx4 v[24:27], v13, {WS} sc1')
        a.full()
    a.poll(ld, lambda: a.chk_tag(range(17, 28, 2), 8), sleep=P['sl_h1b'], mid=unp)
    a.stamp('h1b')
    a('s_setprio 3')
    a(f'''v_add_f32 v16, v16, v20
v_add_f32 v18, v18, v22
v_add_f32 v16, v16, v24
v_add_f32 v18, v18, v26
v_permlane16_swap_b32 v16, v18
v_add_f32 v16, v16, v18
v_mov_b32 v18, v16
v_permlane32_swap_b32 v16, v18
v_add_f32 v16, v16, v18
v_cvt_pk_bf16_f32 v16, v16, v16
v_and_b32 v17, 0xffff0000, v16
ds_write_b32 v42, v17 offset:{LQF}
ds_write_b16 v5, v16 offset:{LQ}''')
    a.bar()
    a.wave_is('lt', 6, 'LA_nos3')
    a(f'ds_read_b128 v[44:47], v40 offset:{LQF}\nds_read_b128 v[48:51], v40 offset:{LQF+16}\nds_read_b128 v[52:55], v41 offset:{LQF+512}')
    for k in range(6):
        if k in (0, 2, 4): a(f's_waitcnt lgkmcnt({2 - k//2})')
        for j in range(8):
            if k == 0: a(f'v_pk_mul_f32 {vr(208+2*j,2)}, {vr(U(j,k),2)}, {vr(44+2*k,2)}')
            else: a(f'v_pk_fma_f32 {vr(208+2*j,2)}, {vr(U(j,k),2)}, {vr(44+2*k,2)}, {vr(208+2*j,2)}')
    for j in range(8): a(f'v_add_f32 v{24+j}, v{208+2*j}, v{209+2*j}')
    for i in range(4): a(f'v_add_f32_dpp v{32+i}, v{24+i}, v{24+i} row_ror:8 row_mask:0xf bank_mask:0x3')
    for i in range(4): a(f'v_add_f32_dpp v{32+i}, v{28+i}, v{28+i} row_ror:8 row_mask:0xf bank_mask:0xc')
    for i in range(2): a(f'v_add_f32_dpp v{36+i}, v{32+i}, v{32+i} row_shl:4 row_mask:0xf bank_mask:0x5')
    for i in range(2): a(f'v_add_f32_dpp v{36+i}, v{34+i}, v{34+i} row_shr:4 row_mask:0xf bank_mask:0xa')
    for qp in ('[2,3,0,1]', '[1,0,3,2]'):
        for i in range(2): a(f'v_add_f32_dpp v{36+i}, v{36+i}, v{36+i} quad_perm:{qp} row_mask:0xf bank_mask:0xf')
    a('v_cvt_pk_bf16_f32 v36, v36, v37')
    a.san([36])
    for i in range(1, 4): a(f'v_mov_b32_dpp v{36+i}, v36 row_shl:{4*i} row_mask:0xf bank_mask:0xf')
    a.exec_mask(0x0001000100010001)
    a(f'global_store_dwordx4 v6, v[36:39], {WS} sc1')
    a.full()
    a.stamp('h2pub')
    a('s_setprio 0')
    a('s_barrier')
    perm12(a, 64)
    if P['sl_uv']:
        if P['uv_ad']: a(f's_cmp_lt_u32 {SPIN}, {P["uv_ad"]}\ns_cbranch_scc1 LA_nsl')
        a(f's_sleep {P["sl_uv"]}')
        a.label('LA_nsl')
    load_uk(a, WUV, lo=V1, rm=rmv)
    a('s_waitcnt vmcnt(0)')
    perm12(a, 176, rm=rmv)
    a.stamp('wuv')
    a('s_branch LA_s3d')
    a.label('LA_nos3')
    a(f'v_lshlrev_b32 v4, 2, v1\nds_write_b32 v4, v12 offset:{LWP}\nv_and_b32 v4, 12, v4\nds_write_b32 v4, v12 offset:{LFL}\nv_mov_b32 v8, {NEGINF:#x}\nv_mov_b32 v9, 0\nds_write_b64 v12, v[8:9] offset:{LFW+112}\nds_write_b64 v12, v[8:9] offset:{LFW+120}\ns_setprio 0')
    a.bar()
    if P['pv_local'] and P['pf_pol'] < 3:
        if P['sl_pf']: a(f's_sleep {P["sl_pf"]}')
        a(f'''s_mul_i32 s40, s44, {CP}
s_and_b32 s42, s3, 1
s_mul_i32 s42, s42, {200*128}
s_add_u32 s40, s40, s42
s_add_u32 s40, s40, {H4}
v_lshl_add_u32 v4, v1, 7, s40''')
        for i in range(4):
            if i == 3: a.lanes_lt(8)
            a(f'global_load_dword v14, v4, {WS} {["nt", "", "sc1"][P["pf_pol"]]}')
            if i < 3: a('v_add_u32 v4, 8192, v4')
        a.full()
    a.label('LA_s3d')
    def fl_wait(i, lab, n=1): a.lds_wait(12, n, off=LFL + 4*i)
    def fl_set(i): a(f'v_mov_b32 v8, 1\nds_write_b32 v12, v8 offset:{LFL + 4*i}')
    def fl_add(i): a(f'v_mov_b32 v8, 1\ns_mov_b64 exec, 1\nds_add_u32 v12, v8 offset:{LFL + 4*i}\ns_mov_b64 exec, -1')
    def l2addr(v):
        a(f'''s_lshl_b32 s40, s3, 7
s_mul_i32 s42, s44, 6144
s_add_u32 s42, s42, s40
s_add_u32 s42, s42, {H4G}
v_and_b32 v{v}, 31, v1
v_lshrrev_b32 v{v+1}, 5, v1
v_mul_u32_u24 v{v+1}, 3072, v{v+1}
v_lshl_add_u32 v{v}, v{v}, 2, s42
v_add_u32 v{v}, v{v}, v{v+1}''')
    def esel(sh, probe):
        a(f'''s_lshl_b32 s40, {sh}, 11
s_add_u32 s40, s40, {H3}
v_lshl_add_u32 v4, v1, 4, s40
s_and_b32 s42, s47, 15
s_lshl_b32 s42, s42, 7
s_add_u32 s42, s42, {DB3}
v_lshl_add_u32 v5, v1, 11, s42
s_mov_b32 s48, {f2u(-3/128):#x}
s_mov_b32 s42, 0''')
        if probe: a.probe(5, 8, off=4, sleep=P['sl_pr3'], post=P['post_h3'], tag=True, mask=0xff)
        a.poll(lambda: a(f'global_load_dwordx4 v[28:31], v4, {WS} sc1\nglobal_load_dwordx4 v[32:35], v4, {WS} offset:1024 sc1'),
               lambda: a.chk_tag(range(29, 36, 2), 8), sleep=P['sl_h3'])
        a.stamp('h3')
        a('v_and_b32 v16, 0xffff0000, v28\nv_and_b32 v18, 0xffff0000, v32\nv_max_f32 v20, v16, v18\nv_and_b32 v17, 0xffff0000, v30\nv_and_b32 v19, 0xffff0000, v34')
        a.wave_red('v_max_f32', 20, 21)
        a('v_and_b32 v21, 0x7f800000, v20\nv_fma_f32 v27, v21, s48, v20')
        again = a.newlabel('Le'); ok = a.newlabel('Le')
        a(f'''{again}:
v_cmp_ge_f32 s[50:51], v16, v27
v_cmp_ge_f32 s[52:53], v18, v27
v_cmp_ge_f32 s[54:55], v17, v27
v_cmp_ge_f32 s[36:37], v19, v27
s_bcnt1_i32_b64 s49, s[50:51]
s_bcnt1_i32_b64 s43, s[52:53]
s_add_u32 s43, s43, s49
s_bcnt1_i32_b64 s45, s[54:55]
s_add_u32 s45, s45, s43
s_bcnt1_i32_b64 s40, s[36:37]
s_add_u32 s40, s40, s45
s_cmp_le_u32 s40, 4
s_cbranch_scc1 {ok}
s_add_u32 s42, s42, 1
s_cmp_gt_u32 s42, 3
s_cbranch_scc1 {ok}
v_fmac_f32 v27, {f2u(1/128):#x}, v21
s_branch {again}
{ok}:
v_mov_b32 v23, s49
v_mov_b32 v25, s43
v_mov_b32 v26, s45
v_mbcnt_lo_u32_b32 v22, s50, 0
v_mbcnt_lo_u32_b32 v23, s52, v23
v_mbcnt_lo_u32_b32 v25, s54, v25
v_mbcnt_lo_u32_b32 v26, s36, v26
v_mbcnt_hi_u32_b32 v22, s51, v22
v_mbcnt_hi_u32_b32 v23, s53, v23
v_mbcnt_hi_u32_b32 v25, s55, v25
v_mbcnt_hi_u32_b32 v26, s37, v26
v_cmp_gt_u32 vcc, 4, v22
s_and_b64 s[50:51], s[50:51], vcc
v_cmp_gt_u32 vcc, 4, v23
s_and_b64 s[52:53], s[52:53], vcc
v_cmp_gt_u32 vcc, 4, v25
s_and_b64 s[54:55], s[54:55], vcc
v_cmp_gt_u32 vcc, 4, v26
s_and_b64 s[36:37], s[36:37], vcc''')
    def l1w():
        a(f'''s_lshr_b32 s40, s44, 4
s_lshl_b32 s42, 0x01010101, s40
s_mov_b32 s43, s42
v_cndmask_b32 v36, 0, 4, s[54:55]
v_cndmask_b32 v38, 0, 4, s[36:37]
v_or_b32 v22, v22, v36
v_or_b32 v23, v23, v38
v_cndmask_b32 v36, 15, v22, s[50:51]
v_cndmask_b32 v38, 15, v23, s[52:53]
v_mov_b32 v37, {TAG}
v_mov_b32 v39, {TAG}
s_lshl_b32 s40, s40, 12
s_lshl_b32 s49, s46, 3
s_add_u32 s40, s40, s49
s_add_u32 s40, s40, {MB}
v_lshrrev_b32 v5, 3, v1
v_lshl_add_u32 v4, v5, 8, s40
s_mov_b64 exec, s[42:43]''')
        a.st_local('s[38:39]', f'global_store_dwordx2 v4, v[36:37], {WS}', f'global_store_dwordx2 v4, v[38:39], {WS} offset:2048')
        a('s_mov_b64 exec, -1')
    a(f'''s_getreg_b32 s16, hwreg(HW_REG_XCC_ID, 0, 4)
s_and_b32 s40, s2, 7
s_lshl_b32 s40, s40, 4
s_add_u32 s40, s40, {READY}
v_and_b32 v4, 31, v1
v_lshl_add_u32 v4, v4, 7, s40''')
    a.poll(lambda: a(f'global_load_dwordx2 v[8:9], v4, {WS} sc1'), lambda: a.chk_tag([8], 10), sleep=4)
    a('v_cmp_ne_u32 s[38:39], s16, v9')
    a('s_and_b32 s46, s44, 15\ns_lshl_b32 s46, s46, 1\ns_and_b32 s40, s3, 1\ns_add_u32 s46, s46, s40')
    a.wave_is('ge', 6, 'LA_n6')
    esel('s46', P['probe_h3'])
    l1w()
    a.label('LA_n6')
    a.wave_is('eq', 5, 'LA_noh3')
    esel('s47', P['probe_h3'])
    a(f'''v_lshlrev_b32 v5, 6, v1
v_add_u32 v6, 4096, v5
v_and_or_b32 v16, v28, 63, v5
v_and_or_b32 v18, v32, 63, v6
v_and_or_b32 v17, v30, 63, v5
v_and_or_b32 v19, v34, 63, v6
v_lshlrev_b32 v4, 2, v1
v_mov_b32 v20, 999
v_mov_b32 v21, 998
v_add_u32 v27, 64, v1
v_lshlrev_b32 v22, 2, v22
v_lshlrev_b32 v23, 2, v23
v_lshlrev_b32 v25, 2, v25
v_lshlrev_b32 v26, 2, v26
s_mov_b64 exec, 15
ds_write_b32 v4, v16 offset:{LEK}
ds_write_b32 v4, v20 offset:{LEK+16}
s_mov_b64 exec, s[50:51]
ds_write_b32 v22, v16 offset:{LEK}
ds_write_b32 v22, v1 offset:{LEK+16}
s_mov_b64 exec, s[52:53]
ds_write_b32 v23, v18 offset:{LEK}
ds_write_b32 v23, v27 offset:{LEK+16}
s_or_b64 s[42:43], s[54:55], s[36:37]
s_cbranch_scc0 LA_n2
s_mov_b64 exec, s[54:55]
ds_write_b32 v25, v17 offset:{LEK}
ds_write_b32 v25, v21 offset:{LEK+16}
s_mov_b64 exec, s[36:37]
ds_write_b32 v26, v19 offset:{LEK}
ds_write_b32 v26, v21 offset:{LEK+16}
LA_n2:
s_mov_b64 exec, -1''')
    a.label('LA_noh3')
    a(f'''v_and_b32 v4, 3, v2
v_lshlrev_b32 v4, 2, v4
s_mul_i32 s40, s41, 384
s_lshl_b32 s42, s3, 6
s_add_u32 s42, s40, s42
v_lshl_add_u32 v6, v3, 4, s42
v_and_b32 v7, 31, v1
v_lshl_add_u32 v7, v7, 1, s42
s_movk_i32 s55, 1536''')
    a.bar()
    a.stamp('b3')
    a('s_setprio 3')
    a.wave_is('lt', 6, 'LA_noe')
    a(f'''ds_read_b32 v5, v4 offset:{LEK}
ds_read_b128 v[8:11], v12 offset:{LEK}
s_waitcnt lgkmcnt(1)
v_mad_u32_u24 v5, v5, s55, v6
global_load_dwordx4 v[224:227], v5, {CKV} {'nt' if P['e_nt'] else ''}
s_waitcnt lgkmcnt(0)''')
    for j in range(4): a(f'v_mad_u32_u24 v{8+j}, v{8+j}, s55, v7\nglobal_load_ushort v{232+j}, v{8+j}, {CKV} {"nt" if P["e_nt"] else ""}')
    a(f's_mul_i32 s40, s3, 3072\ns_add_u32 s40, s40, {LKP}\nv_lshl_add_u32 v4, v1, 4, s40\ns_waitcnt vmcnt(4)')
    a.stamp('erow')
    mfma12(a, 16, 224, 64)
    for t in range(3):
        d = 16 + 16*t
        for r in range(4): a(f'v_permlane16_swap_b32 v{d+r}, v{d+4+r}\nv_permlane16_swap_b32 v{d+8+r}, v{d+12+r}')
        for r in range(4): a(f'v_permlane32_swap_b32 v{d+r}, v{d+8+r}')
        a(f'ds_write_b128 v4, {vr(d,4)} offset:{1024*t}')
    a('s_branch LA_b4')
    a.label('LA_noe')
    a.label('LA_g')
    a(f'''s_setprio 1
s_and_b32 s42, s3, 1
s_mul_i32 s40, s42, 768
s_add_u32 s40, s40, {LRP}
v_lshl_add_u32 v248, v2, 5, s40
v_lshl_add_u32 v249, v2, 4, s40
s_lshl_b32 s40, s42, 8
s_add_u32 s40, s40, {LWP}
v_and_b32 v250, 1, v2
v_lshlrev_b32 v250, 7, v250
v_lshl_add_u32 v250, v3, 4, v250
v_add_u32 v250, s40, v250
v_lshl_add_u32 v251, v1, 1, s40
s_lshl_b32 s43, s42, 6
v_add_u32 v7, s43, v1
s_lshl_b32 s40, s44, 11
s_add_u32 s40, s40, {AUX}
v_lshl_add_u32 v6, v7, 4, s40
ds_read_b128 v[24:27], v12 offset:{LEK+16}
s_lshl_b32 s40, s44, 7
s_add_u32 s40, s40, s43
v_lshl_add_u32 v4, v3, 3, s40
v_mul_u32_u24 v4, 384, v4
v_add_u32 v4, {H4}, v4
v_lshl_add_u32 v5, v2, 3, v4
v_lshl_add_u32 v4, v2, 4, v4
v_add_u32 v10, {32*384}, v4
v_add_u32 v11, {32*384}, v5
s_mov_b64 s[52:53], 0
s_mov_b32 s48, 0x01010101
v_mov_b32 v22, {NEGINF:#x}
s_lshl_b32 s40, s42, 3
v_mov_b32 v23, s40
s_waitcnt lgkmcnt(0)
v_cmp_eq_u32 s[54:55], v24, v7''')
    for j in range(1, 4): a(f'v_cmp_eq_u32 vcc, v{24+j}, v7\ns_or_b64 s[54:55], s[54:55], vcc')
    a(f's_sleep {P["pre_aux"]}')
    a.label('LA_g0')
    a(f'''global_load_dwordx4 v[28:31], v6, {WS} sc1
s_waitcnt vmcnt(0)
v_cmp_eq_u32 vcc, {TAG}, v29
v_cmp_eq_u32 s[50:51], {TAG}, v31
s_and_b64 s[50:51], s[50:51], vcc
s_andn2_b64 s[42:43], s[50:51], s[52:53]
s_mov_b64 s[52:53], s[50:51]
s_cbranch_scc0 LA_gn''')
    for b in range(2):
        for j in range(8):
            a(f'''s_lshr_b32 s40, s{42+b}, {j}
s_and_b32 s40, s40, s48
s_cbranch_scc0 LA_gs{b}_{j}
s_and_b32 s38, s40, 0x101
s_lshr_b32 s39, s40, 16
s_mul_i32 s38, s38, 0x101
s_mul_i32 s39, s39, 0x101
s_and_b32 s38, s38, 0x10001
s_and_b32 s39, s39, 0x10001
s_mul_i32 exec_lo, s38, 0xffff
s_mul_i32 exec_hi, s39, 0xffff
global_load_dwordx4 {vr(64+48*b+4*j,4)}, v{4+6*b}, {WS} offset:{384*j} sc1
global_load_dwordx2 {vr(96+48*b+2*j,2)}, v{5+6*b}, {WS} offset:{384*j+256} sc1
LA_gs{b}_{j}:''')
    a(f'''s_mov_b64 exec, -1
s_cmp_eq_u64 s[52:53], -1
s_cbranch_scc1 LA_g1
LA_gn:
s_add_u32 {SPIN}, {SPIN}, 1
s_cmp_gt_u32 {SPIN}, {SPINMAX}
s_cbranch_scc1 LA_g1
s_sleep {P['sl_aux']}
s_branch LA_g0
LA_g1:''')
    a.stamp('aux')
    a('s_setprio 3\nv_cndmask_b32 v16, v28, v22, s[54:55]\nv_mov_b32 v20, v16')
    a.wave_red('v_max_f32', 20, 21)
    a(f'''v_sub_f32 v16, v16, v20
v_mul_f32 v16, s56, v16
v_exp_f32 v16, v16
v_cvt_pk_bf16_f32 v8, v16, v16
v_mul_f32 v21, v16, v30
ds_write_b16 v251, v8
v_and_b32 v9, 0xffff0000, v8
v_sub_f32 v9, v16, v9
v_cvt_pk_bf16_f32 v9, v9, v9
ds_write_b16 v251, v9 offset:128
s_waitcnt lgkmcnt(0)
ds_read_b128 v[224:227], v250
ds_read_b128 v[228:231], v250 offset:64''')
    a.wave_red('v_add_f32', 21, 22)
    a(f'v_mov_b32 v8, 1\nds_write_b64 v23, v[20:21] offset:{LFW+96}\ns_mov_b64 exec, 1\nds_add_u32 v12, v8 offset:{LFL+8}\ns_mov_b64 exec, -1\ns_waitcnt vmcnt(0) lgkmcnt(0)')
    a.stamp('gath')
    for b in range(2):
        for e in range(12):
            nreg, src, ee = (4, 64 + 48*b, e) if e < 8 else (2, 96 + 48*b, e - 8)
            f = 16 + 4*(e % 6) + 24*b
            for k in range(4):
                a(f'v_perm_b32 v{f+k}, v{src+(2*k+1)*nreg+(ee>>1)}, v{src+2*k*nreg+(ee>>1)}, {PHI if ee & 1 else PLO}')
            a(f'v_mfma_f32_16x16x32_bf16 {vr(160+4*e,4)}, {vr(224+4*b,4)}, {vr(f,4)}, {"0" if b == 0 else vr(160+4*e,4)}')
    out12(a, 160, 16, 248)
    fl_add(3)
    a('s_branch LA_nov')
    a.label('LA_b4')
    a(f'v_mov_b32 v8, 1\ns_mov_b64 exec, 1\nds_add_u32 v12, v8 offset:{LFL}\ns_mov_b64 exec, -1')
    a.wave_is('lt', 3, 'LA_nopub')
    a(f'v_lshlrev_b32 v6, 4, v0\nv_add_u32 v7, {LKP}, v6\ns_mul_i32 s40, s44, 3072\ns_add_u32 s40, s40, {H4S}\nv_add_u32 v6, s40, v6')
    fl_wait(0, 'LA_f0', 6)
    a.stamp('b4')
    for w in range(6): a(f'ds_read_b128 {vr(16+4*w,4)}, v7 offset:{3072*w}')
    a('s_waitcnt lgkmcnt(0)')
    tree(a, range(16, 40, 4), n=4)
    a.st_local('s[38:39]', f'global_store_dwordx4 v6, v[16:19], {WS}')
    a.stamp('kpub')
    a('s_branch LA_l2')
    a.label('LA_nopub')
    a.wave_is('eq', 5, 'LA_w6')
    a(f'''s_mul_i32 s40, s47, 12288
s_add_u32 s40, s40, {H4S}
v_lshl_add_u32 v4, v1, 4, s40
v_add_u32 v5, 3072, v4
v_add_u32 v6, 6144, v4
v_add_u32 v7, 9216, v4
v_lshl_add_u32 v8, v2, 3, v3
v_lshlrev_b32 v8, 1, v8
v_lshl_add_u32 v9, v2, 2, v3
v_lshlrev_b32 v9, 1, v9
v_lshlrev_b32 v10, 2, v3
ds_read_u16 v64, v8 offset:{LQ}
ds_read_u16 v65, v8 offset:{LQ+8}
ds_read_u16 v66, v9 offset:{LQ+256}
ds_read_b32 v67, v10 offset:{LEK+16}
v_lshl_add_u32 v11, v1, 10, s40
s_sleep {P['pre_h4s']}''')
    if P['pr_h4s']: a.probe(11, 16, sleep=P['pr_h4s'], mask=0xfff)
    def ld():
        for qq in range(4):
            for k in range(3): a(f'global_load_dwordx4 {vr(16+(qq*3+k)*4,4)}, v{4+qq}, {WS} offset:{1024*k} sc1')
    a.poll(ld, lambda: a.chk_sent(range(16, 64), 9), sleep=P['sl_h4s'])

    a.stamp('h4s')
    a('s_waitcnt lgkmcnt(0)\nv_cmp_gt_u32 s[52:53], 0x80, v67' if False else 's_waitcnt lgkmcnt(0)\ns_movk_i32 s40, 999\nv_cmp_gt_u32 s[52:53], s40, v67')
    for k in range(3): a(f'v_lshlrev_b32 v{64+k}, 16, v{64+k}')
    for i in range(0, 12, 2): a(f'v_pk_add_f32 {vr(16+i,2)}, {vr(16+i,2)}, {vr(28+i,2)}\nv_pk_add_f32 {vr(40+i,2)}, {vr(40+i,2)}, {vr(52+i,2)}')
    for i in range(0, 12, 2): a(f'v_pk_add_f32 {vr(16+i,2)}, {vr(16+i,2)}, {vr(40+i,2)}')
    for i in range(0, 12, 2): a(f'v_cvt_pk_bf16_f32 v{17+i}, v{16+i}, v{17+i}')
    for i in range(0, 12, 2): a(f'v_lshlrev_b32 v{16+i}, 16, v{17+i}\nv_and_b32 v{17+i}, 0xffff0000, v{17+i}')
    for j in range(4):
        a(f'v_mul_f32 v{68+j}, v{16+j}, v64\nv_fmac_f32 v{68+j}, v{20+j}, v65\nv_fmac_f32 v{68+j}, v{24+j}, v66')
    a.row_red('v_add_f32', [68, 69, 70, 71])
    a.xrow_tr4(68)
    a.rnd(68, 68)
    a('v_mul_f32 v68, s59, v68')
    a.rnd(68, 68)
    a(f'v_mov_b32 v21, {NEGINF:#x}\nv_cndmask_b32 v68, v21, v68, s[52:53]\nv_lshlrev_b32 v11, 3, v3')
    fl_wait(2, 'LA_f2', 3)
    a(f'''ds_read_b64 v[228:229], v11 offset:{LFW+64}
ds_read_b64 v[230:231], v11 offset:{LFW+96}
s_waitcnt lgkmcnt(0)
v_max3_f32 v69, v68, v228, v230''')
    a.xrow_red('v_max_f32', 69, 70)
    a(f'''v_sub_f32 v68, v68, v69
v_sub_f32 v228, v228, v69
v_sub_f32 v230, v230, v69
v_mul_f32 v68, s56, v68
v_mul_f32 v228, s56, v228
v_mul_f32 v230, s56, v230
v_exp_f32 v68, v68
v_exp_f32 v228, v228
v_exp_f32 v230, v230
v_fma_f32 v70, v228, v229, v68
v_fmac_f32 v70, v230, v231''')
    a.xrow_red('v_add_f32', 70, 71)
    a.recip(71, 70, 72)
    a.div(73, 68, 70, 71, 72)
    a.rnd(73, 73)
    a(f'''v_mul_f32 v74, v230, v71
v_mul_f32 v75, v228, v71
ds_write_b32 v10, v73 offset:{LFW}
ds_write_b32 v10, v75 offset:{LFW+16}
ds_write_b32 v10, v74 offset:{LFW+32}''')
    fl_add(3)
    a('s_branch LA_l2')
    a.label('LA_w6')
    a.wave_is('eq', 4, 'LA_l2')
    a(f'''v_lshlrev_b32 v10, 2, v3
ds_read_b32 v11, v10 offset:{LEK+16}
s_lshl_b32 s40, s47, 13
s_lshl_b32 s42, s41, 9
s_add_u32 s40, s40, s42
s_add_u32 s40, s40, {SIDE}
v_lshl_add_u32 v6, v3, 11, s40
v_lshl_add_u32 v4, v2, 4, v6
v_lshl_add_u32 v5, v2, 3, v6
v_mul_u32_u24 v9, 384, v3
v_lshl_add_u32 v7, v2, 4, v9
v_lshl_add_u32 v9, v2, 3, v9
v_lshlrev_b32 v10, 3, v3
v_mov_b32 v24, {NEGINF:#x}
v_mov_b32 v26, 0
s_movk_i32 s40, 128
s_waitcnt lgkmcnt(0)
v_cmp_gt_u32 s[52:53], s40, v11''')
    for i in range(6): a(f'v_mov_b32 v{16+i}, 0')
    a(f's_sleep {P["pre_side"]}\ns_mov_b64 exec, s[52:53]')
    def ck():
        a.chk_sent(range(16, 22), 8)
        a(f'v_cmp_ne_u32 s[50:51], {TAG}, v25\ns_or_b64 vcc, vcc, s[50:51]\nv_cmp_ne_u32 s[50:51], {TAG}, v27\ns_or_b64 vcc, vcc, s[50:51]')
    a.poll(lambda: a(f'global_load_dwordx4 v[16:19], v4, {WS} sc1\nglobal_load_dwordx2 v[20:21], v5, {WS} offset:256 sc1\nglobal_load_dwordx4 v[24:27], v6, {WS} offset:384 sc1'),
           ck, sleep=P['sl_side'])
    a.full()
    a.stamp('side')
    a(f'v_mov_b32 v25, v26\nds_write_b128 v7, v[16:19] offset:{LSR}\nds_write_b64 v9, v[20:21] offset:{LSR+256}\nds_write_b64 v10, v[24:25] offset:{LFW+64}')
    fl_add(2)
    a.label('LA_l2')
    a(f'''s_lshl_b32 s40, s3, 7
v_and_b32 v4, 31, v1
v_lshl_add_u32 v5, v4, 1, s40
s_lshl_b32 s42, s3, 6
v_lshl_add_u32 v7, v4, 1, s42
v_lshl_add_u32 v4, v4, 2, s40
v_mov_b32 v20, 0
v_mov_b32 v21, 0
v_mov_b32 v22, 0
v_mov_b32 v23, 0''')
    frag2_addr(a, 6, 's40')
    out12_prep(a, 248, LVP)
    a('s_waitcnt vmcnt(0)')
    for j in range(4): a(f'v_lshlrev_b32 v{232+j}, 16, v{232+j}')
    fl_wait(3, 'x', 3)
    a.stamp('b6')
    for w in range(2): a(f'ds_read_b32 v{16+w}, v4 offset:{LRP + 768*w}')
    for j in range(4): a(f'ds_read_u16_d16_hi v{20+j}, v7 offset:{LSR + 384*j}')
    a(f'ds_read_b128 v[24:27], v12 offset:{LFW}\nds_read_b128 v[28:31], v12 offset:{LFW+16}\nds_read_b64 v[32:33], v12 offset:{LFW+32}')
    a(f'''s_waitcnt lgkmcnt(0)
v_mul_f32 v16, v16, v32
v_mul_f32 v24, v24, v232
v_mul_f32 v28, v28, v20
v_fmac_f32 v16, v17, v33
v_fmac_f32 v24, v25, v233
v_fmac_f32 v28, v29, v21
v_fmac_f32 v24, v26, v234
v_fmac_f32 v28, v30, v22
v_fmac_f32 v24, v27, v235
v_fmac_f32 v28, v31, v23
v_add_f32 v24, v24, v28
v_add_f32 v16, v16, v24
v_cvt_pk_bf16_f32 v17, v16, v16
ds_write_b16 v5, v17 offset:{LCC}
v_and_b32 v18, 0xffff0000, v17
v_sub_f32 v18, v16, v18
v_cvt_pk_bf16_f32 v18, v18, v18
ds_write_b16 v5, v18 offset:{LCC+64}
s_waitcnt lgkmcnt(0)
ds_read_b128 v[224:227], v6 offset:{LCC}
s_waitcnt lgkmcnt(0)''')
    mfma12(a, 128, 224, 176)
    out12(a, 128, 16, 248)
    a.label('LA_nov')
    a(f'''v_lshlrev_b32 v4, 4, v1
s_mul_i32 s40, s47, 3072
s_lshl_b32 s42, s41, 8
s_add_u32 s40, s40, s42
s_add_u32 s40, s40, {H5}
v_lshlrev_b32 v5, 10, v3
v_lshl_add_u32 v5, v2, 4, v5
v_add_u32 v5, s40, v5''')
    a.bar()
    a.wave_is('eq', 0, 'Lfin')
    for w in range(6): a(f'ds_read_b128 {vr(16+4*w,4)}, v4 offset:{LVP + 768*w}')
    a('s_waitcnt lgkmcnt(0)')
    tree(a, range(16, 40, 4), n=4)
    a.lanes_lt(48)
    a.st_local('s[38:39]', f'global_store_dwordx4 v5, v[16:19], {WS}')
    a.full()
    a.stamp('h5pub')
    a(f'''s_add_u32 s40, s44, s3
s_cmp_eq_u32 s40, 0
s_cbranch_scc0 Lfin
v_mov_b32 v5, {TAG}
global_store_dword v12, v5, {WS} sc1''')

DEFAULTS = dict(code_last=0x1000, stamps=False, warm_loads=2, sl_pr=1, sl_pr3=4, sl_h1=3, sl_h1b=1, sl_h2=1, sl_h3=2, sl_aux=2, sl_h4s=1, sl_h5=1, sl_h6=3, sl_h7=2, sl_x2=4, sl_lw=1, lw_cnt=4, dma1=5, sl_top2=4, pre_h7=12, dma15=0, nack=0, h2w=0, col_at=0, pr_h4s=2, early_hi=2, g6=0, dma0=12, gsplit=4, s1x=0, rot=0, uv_ad=0, sl_dma=0, sl_b80=0, uv1=0, h2lay=0, dma8=0, bpf=0, pf_pol=2, sl_pf=10, pre_hdr=8, pv_local=0, g_pol=0, pre_l2=6, sl_hdr=2, sl_l2=2, local=1, early_late=1, sl_pr2=1, sl_dma2=0, m_h2=0, m_h6=0, k_h2=3, pre_aux=30, swap=0, sl_a80=30, pre_h1=0, tlb=0, e_nt=0, pv_nt=0, uk1=0, ew_cnt=4, sl_el=1, pre_side=10, sl_side=2, sl_uv=20, pre_h4s=4, sl_top=6,
    probe_h1b=0, post_h1b=1, probe_h2=1, post_h2=0, probe_h3=1, post_h3=0, probe_aux=0, post_aux=2, probe_h5=0, post_h5=1, probe_h6=0, post_h6=1, probe_h7=1, post_h7=0)

def generate(**kw):
    P = dict(DEFAULTS); P.update(kw)
    a = G(P)
    a(f'''s_cmp_ge_u32 s2, 256
s_cbranch_scc1 Lend
s_load_dwordx16 s[4:19], s[0:1], 0
{'s_xor_b32 s2, s2, 128' if P['swap'] else 's_nop 0'}
s_load_dwordx8 s[20:27], s[0:1], 64
{f's_add_u32 s3, s2, {P["rot"]}' if P['rot'] else ''}
{'s_and_b32 s3, s3, 7' if P['rot'] else ''}
{'s_andn2_b32 s2, s2, 7' if P['rot'] else ''}
{'s_or_b32 s2, s2, s3' if P['rot'] else ''}
s_load_dwordx4 s[28:31], s[0:1], 96
s_getpc_b64 s[36:37]
Lpc:
v_lshrrev_b32 v4, 6, v0
v_and_b32 v1, 63, v0
v_readfirstlane_b32 s3, v4
v_and_b32 v2, 15, v0
v_lshrrev_b32 v3, 4, v1''')
    if P['stamps']:
        for i in range(21): a(f's_mov_b64 s[{60+2*i}:{61+2*i}], 0')
    if P.get('dbgtime') or P.get('padto'): a('s_memrealtime s[60:61]')
    a('s_cmp_lt_u32 s2, 128\ns_cbranch_scc1 LB')
    role_A(a)
    namesA = a.stnames; a.stnames = []
    a.label('LB')
    role_B(a)
    namesB = a.stnames; a.stnames = namesA
    role_A2(a)
    a('s_branch Lfin')
    namesA = a.stnames; a.stnames = namesB
    role_B2(a)
    namesB = a.stnames
    a.label('Lfin')
    if P['stamps']:
        a(f'''s_waitcnt lgkmcnt(0)
s_lshl_b32 s40, s2, 3
s_add_u32 s40, s40, s3
s_lshl_b32 s40, s40, 7
s_add_u32 s40, s40, {STAMP}
v_mov_b32 v4, s40''')
        for i in range(21): a(f'v_mov_b32 v5, s{60+2*i}\nglobal_store_dword v4, v5, {WS} offset:{4*i}')
    if P.get('dbgtime'):
        a(f'''s_memrealtime s[62:63]
s_cmp_eq_u32 s3, 7
s_cbranch_scc0 Lend
s_and_b32 s40, s2, 31
s_cmp_eq_u32 s40, 31
s_cbranch_scc0 Lend
s_waitcnt lgkmcnt(0)
s_lshr_b32 s40, s2, 5
s_lshl_b32 s40, s40, 3
v_mov_b32 v4, s40
v_mov_b32 v6, s60
v_mov_b32 v7, s62
s_mov_b64 exec, 1
global_store_dwordx2 v4, v[6:7], s[28:29]''')
    if P.get('padto'):
        a(f'''s_add_u32 s40, s2, s3
s_cmp_eq_u32 s40, 0
s_cbranch_scc0 Lend
Lpad:
s_memrealtime s[62:63]
s_waitcnt lgkmcnt(0)
s_sub_u32 s40, s62, s60
s_cmp_lt_u32 s40, {P['padto']}
s_cbranch_scc1 Lpad''')
    a.label('Lend')
    a('s_endpgm')
    a.raw('Lcode_end:')
    hdr = open(f'cdna_kernels/{NAME}.s.ref').read().split('; Override launch')[0]
    lds = MISC + 8192 + 256 + 8192
    doc = '''; One persistent launch, 256 workgroups (one per CU), two roles:
; so that the bf16 rounding of the scores follows the reference; their tile partials are re-sent without that key.
; Hand-offs go through d_ws: {value,tag} granules (tag derived from an epoch word in d_ws), or slots cleared to
'''
    txt = hdr + f'''; @launch grid=(256,1,1) block=(512,1,1) lds={lds}
''' + doc + f'''.amdgcn_target "amdgcn-amd-amdhsa--gfx950"
.text
.globl {NAME}_kernel
.p2align 8
.type {NAME}_kernel,@function
.set CODE_LAST, {P['code_last']:#x}
{NAME}_kernel:
''' + a.text() + f'''.section .rodata,"a"
.p2align 6
.amdhsa_kernel {NAME}_kernel
  .amdhsa_next_free_vgpr 256
  .amdhsa_next_free_sgpr 102
  .amdhsa_accum_offset 256
  .amdhsa_group_segment_fixed_size 0
  .amdhsa_kernarg_size 112
  .amdhsa_user_sgpr_count 2
  .amdhsa_user_sgpr_kernarg_segment_ptr 1
  .amdhsa_system_sgpr_workgroup_id_x 1
  .amdhsa_float_denorm_mode_32 3
.end_amdhsa_kernel
'''
    return txt, namesB, namesA

if __name__ == '__main__':
    import json
    out = sys.argv[1]
    kw = {}
    for x in sys.argv[2:]:
        k, v = x.split('='); kw[k] = int(v)
    import subprocess, re
    txt, nb, na = generate(**kw)
    open('_g.s', 'w').write(txt)
    subprocess.check_call(['clang', '-x', 'assembler', '-target', 'amdgcn-amd-amdhsa', '-mcpu=gfx950', '-c', '_g.s', '-o', '_g.o'])
    h = subprocess.check_output(['llvm-objdump', '-h', '_g.o'], text=True)
    size = int(re.search(r'\.text\s+([0-9a-f]+)', h).group(1), 16)
    kw['code_last'] = size - 0x40 - 4
    assert size <= 32768 * kw.get('warm_loads', DEFAULTS['warm_loads'])
    txt, nb, na = generate(**kw)
    print('code bytes', size)
    open(out, 'w').write(txt)
    json.dump({'B': nb, 'A': na}, open(out + '.names.json', 'w'))
```
